```python
import torch

def _softmax(x, axis=-1):
    return torch.softmax(x, dim=axis)
def _gelu(x):
    return torch.nn.functional.gelu(x, approximate="tanh")
def _silu(x):
    return torch.nn.functional.silu(x)
def _sigmoid(x):
    return torch.sigmoid(x)
def _layernorm(x, axis=-1, eps=1e-5):
    m = x.mean(dim=axis, keepdim=True)
    v = x.var(dim=axis, keepdim=True, unbiased=False)
    return (x - m) / torch.sqrt(v + eps)
def _scatter_add(tgt, idx, src, axis=0):
    return tgt.clone().index_add_(axis, idx, src)
def _segment_sum(src, seg, n):
    out = torch.zeros((n,) + src.shape[1:], dtype=src.dtype)
    return out.index_add_(0, seg, src)
def _pad(x, pw):
    flat = tuple(v for pair in reversed(pw) for v in pair)
    return torch.nn.functional.pad(x, flat)

kernel_name = 'interleave_layers__mha_block__glu_gated_bilinear__prompt'

def setup_inputs():

    _w = (lambda a: (lambda t: t.to(torch.bfloat16) if t.is_floating_point() else t)(torch.as_tensor(a)))
    def _A_setup():
        B, S, D, H = 1, 2048, 512, 32
        return {
            "x": _w((lambda *s: torch.randn(*s, dtype=torch.bfloat16) * 0.05)(B, S, D)),
            "wqkv": _w((lambda *s: torch.randn(*s, dtype=torch.bfloat16) * 0.05)(D, 3 * D)),
            "wo": _w((lambda *s: torch.randn(*s, dtype=torch.bfloat16) * 0.05)(D, D)),
        }
    _A_in = _A_setup()

    def _B_setup():
        B, S, D, F = 1, 2048, 512, 1792
        return {
            "x": _w((lambda *s: torch.randn(*s, dtype=torch.bfloat16) * 0.05)(B, S, D)),
            "w_gate": _w((lambda *s: torch.randn(*s, dtype=torch.bfloat16) * 0.4)(D, F) * (D ** -0.5)),
            "w_up": _w((lambda *s: torch.randn(*s, dtype=torch.bfloat16) * 0.4)(D, F) * (D ** -0.5)),
            "w_down": _w((lambda *s: torch.randn(*s, dtype=torch.bfloat16) * 0.4)(F, D) * (F ** -0.5)),
        }
    _B_in = _B_setup()

    return {
        "A_x": _A_in["x"],
        "A_wqkv": _A_in["wqkv"],
        "A_wo": _A_in["wo"],
        "B_x": _B_in["x"],
        "B_w_gate": _B_in["w_gate"],
        "B_w_up": _B_in["w_up"],
        "B_w_down": _B_in["w_down"],
    }

def reference(A_x, A_wqkv, A_wo, B_x, B_w_gate, B_w_up, B_w_down):
    def _A_ref(x, wqkv, wo):
        B, S, D = x.shape
        H = 32
        Dh = D // H
        qkv = (lambda x, *d: x.permute(*d))((x @ wqkv).reshape(B, S, 3, H, Dh), 2, 0, 3, 1, 4)
        q, k, v = qkv[0], qkv[1], qkv[2]
        scores = torch.einsum("bhqd,bhkd->bhqk", q, k) * (Dh ** -0.5)
        p = _softmax(scores, axis=-1)
        o = torch.einsum("bhqk,bhkd->bhqd", p, v)
        return (lambda x, *d: x.permute(*d))(o, 0, 2, 1, 3).reshape(B, S, D) @ wo

    def _B_ref(x, w_gate, w_up, w_down):
        g = torch.einsum("bsd,df->bsf", x, w_gate)
        u = torch.einsum("bsd,df->bsf", x, w_up)
        h = g * u
        return torch.einsum("bsf,fd->bsd", h, w_down)

    x = A_x
    x = x + _A_ref(_layernorm(x, axis=-1), A_wqkv, A_wo)
    x = x + _B_ref(_layernorm(x, axis=-1), B_w_gate, B_w_up, B_w_down)
    x = x + _A_ref(_layernorm(x, axis=-1), A_wqkv, A_wo)
    x = x + _B_ref(_layernorm(x, axis=-1), B_w_gate, B_w_up, B_w_down)
    return x
```

```python
class Asm:
    def __init__(self):
        self.lines = []
        self.uid = 0

    def __call__(self, s=""):
        for ln in s.split("\n"):
            ln = ln.strip()
            if not ln:
                continue
            if ln.endswith(":") or ln.startswith("."):
                self.lines.append(ln)
            else:
                self.lines.append("    " + ln)

    def label(self, base):
        self.uid += 1
        return f"L_{base}_{self.uid}"

    def c(self, s):
        self.lines.append("    ; " + s)

    def text(self):
        return "\n".join(self.lines) + "\n"


def vr(a, n=1):
    return f"v{a}" if n == 1 else f"v[{a}:{a+n-1}]"

def ar(a, n=1):
    return f"a{a}" if n == 1 else f"a[{a}:{a+n-1}]"

def sr(a, n=1):
    return f"s{a}" if n == 1 else f"s[{a}:{a+n-1}]"


class Regs:
    def __init__(self, start=0):
        self.n = start
    def alloc(self, cnt=1, align=None):
        if align is None:
            align = 1 if cnt == 1 else (2 if cnt == 2 else 4)
        self.n = (self.n + align - 1) // align * align
        r = self.n
        self.n += cnt
        return r


def kernel_header(a, name):
    a(f".globl {name}")
    a(".p2align 8")
    a(f".type {name},@function")
    a(f"{name}:")


def kernel_desc(name, vgpr, sgpr=96, agpr=0):
    acc = (vgpr + 3) // 4 * 4
    total = acc + agpr if agpr else vgpr
    return f""".p2align 6
.amdhsa_kernel {name}
  .amdhsa_next_free_vgpr {total}
  .amdhsa_next_free_sgpr {sgpr}
  .amdhsa_accum_offset {acc}
  .amdhsa_group_segment_fixed_size 0
  .amdhsa_kernarg_size 80
  .amdhsa_user_sgpr_count 2
  .amdhsa_user_sgpr_kernarg_segment_ptr 1
  .amdhsa_system_sgpr_workgroup_id_x 1
.end_amdhsa_kernel
"""
```

```python
import sys, struct, math
from asmlib import *

NAME = "interleave_layers__mha_block__glu_gated_bilinear__prompt"

WS_Q   = 0x000000
WS_K   = 0x200000
WS_V   = 0x400000
WS_O   = 0x600000
WS_X1  = 0x800000
WS_X2  = 0xA00000
WS_H   = 0xC00000
WS_ST1 = 0x1300000
WS_ST2 = 0x1380000
WS_WQKV = 0x1400000
WS_WO   = 0x1600000
WS_WGU  = 0x1700000
WS_WD   = 0x1B00000
WS_END  = 0x1D00000

KA_X, KA_WQKV, KA_WO, KA_BX, KA_WG, KA_WU, KA_WD, KA_OUT, KA_DBG, KA_WS = [8 * i for i in range(10)]

def f32bits(x):
    return struct.unpack("<I", struct.pack("<f", x))[0]

QSCALE = 0.25 * math.log2(math.e)
MFMA = "v_mfma_f32_32x32x16_bf16"

def srd(a, d, lo, hi, nbytes):
    a(f"s_mov_b32 s{d}, s{lo}")
    a(f"s_and_b32 s{d+1}, s{hi}, 0xffff")
    a(f"s_mov_b32 s{d+2}, {nbytes:#x}")
    a(f"s_mov_b32 s{d+3}, 0x20000")


def gen_prep(a):
    name = "prep_kernel"
    kernel_header(a, name)
    NT = 304
    done = a.label("prep_done")
    a(f"s_cmp_ge_u32 s2, {NT}")
    a(f"s_cbranch_scc1 {done}")
    a(f"s_load_dwordx4 s[20:23], s[0:1], {KA_X}")
    a(f"s_load_dwordx2 s[24:25], s[0:1], {KA_WO}")
    a(f"s_load_dwordx4 s[28:31], s[0:1], {KA_WG}")
    a(f"s_load_dwordx2 s[32:33], s[0:1], {KA_WD}")
    a(f"s_load_dwordx2 s[34:35], s[0:1], {KA_WS}")
    a("s_waitcnt lgkmcnt(0)")
    srd(a, 4, 34, 35, WS_END)
    l_gu, l_o, l_d, l_x, l_go = [a.label(x) for x in ("gu", "o", "d", "x", "go")]
    a("s_cmp_ge_u32 s2, 240")
    a(f"s_cbranch_scc1 {l_x}")
    a("s_cmp_ge_u32 s2, 176")
    a(f"s_cbranch_scc1 {l_d}")
    a("s_cmp_ge_u32 s2, 160")
    a(f"s_cbranch_scc1 {l_o}")
    a("s_cmp_ge_u32 s2, 48")
    a(f"s_cbranch_scc1 {l_gu}")
    srd(a, 8, 22, 23, 512 * 1536 * 2)
    srd(a, 12, 22, 23, 512 * 1536 * 2)
    a("s_mul_i32 s43, s2, 43691")
    a("s_lshr_b32 s43, s43, 17")
    a("s_mul_i32 s44, s43, 3")
    a("s_sub_u32 s44, s2, s44")
    a("s_mov_b32 s36, 3072")
    a("s_lshl_b32 s37, s44, 10")
    a("s_lshl_b32 s45, s43, 6")
    a("s_add_u32 s37, s37, s45")
    a("s_add_u32 s38, s37, 32")
    a(f"s_mul_i32 s39, s43, {99*1024}")
    a("s_lshl_b32 s45, s44, 10")
    a("s_add_u32 s39, s39, s45")
    a(f"s_add_u32 s39, s39, {WS_WQKV:#x}")
    a("s_mov_b32 s40, 3072")
    a("s_mov_b32 s41, 16")
    a("s_mov_b32 s42, 1")
    a(f"s_branch {l_go}")
    a(f"{l_gu}:")
    srd(a, 8, 28, 29, 512 * 1792 * 2)
    srd(a, 12, 30, 31, 512 * 1792 * 2)
    a("s_sub_u32 s46, s2, 48")
    a("s_mul_i32 s43, s46, 9363")
    a("s_lshr_b32 s43, s43, 16")
    a("s_mul_i32 s44, s43, 7")
    a("s_sub_u32 s44, s46, s44")
    a("s_mov_b32 s36, 3584")
    a("s_lshl_b32 s37, s46, 5")
    a("s_mov_b32 s38, s37")
    a(f"s_mul_i32 s39, s43, {231*1024}")
    a("s_lshl_b32 s45, s44, 10")
    a("s_add_u32 s39, s39, s45")
    a(f"s_add_u32 s39, s39, {WS_WGU:#x}")
    a("s_mov_b32 s40, 7168")
    a("s_mov_b32 s41, 16")
    a("s_mov_b32 s42, 1")
    a(f"s_branch {l_go}")
    a(f"{l_o}:")
    srd(a, 8, 24, 25, 512 * 512 * 2)
    srd(a, 12, 24, 25, 512 * 512 * 2)
    a("s_sub_u32 s46, s2, 160")
    a("s_mov_b32 s36, 1024")
    a("s_lshl_b32 s37, s46, 6")
    a("s_add_u32 s38, s37, 32")
    a("s_lshr_b32 s43, s46, 1")
    a("s_and_b32 s44, s46, 1")
    a("s_lshl_b32 s39, s43, 16")
    a("s_lshl_b32 s45, s44, 10")
    a("s_add_u32 s39, s39, s45")
    a(f"s_add_u32 s39, s39, {WS_WO:#x}")
    a("s_mov_b32 s40, 2048")
    a("s_mov_b32 s41, 16")
    a("s_mov_b32 s42, 0")
    a(f"s_branch {l_go}")
    a(f"{l_d}:")
    srd(a, 8, 32, 33, 1792 * 512 * 2)
    srd(a, 12, 32, 33, 1792 * 512 * 2)
    a("s_sub_u32 s46, s2, 176")
    a("s_and_b32 s47, s46, 15")
    a("s_lshr_b32 s48, s46, 4")
    a("s_mov_b32 s36, 1024")
    a("s_lshl_b32 s37, s47, 6")
    a(f"s_mul_i32 s45, s48, {448*1024}")
    a("s_add_u32 s37, s37, s45")
    a("s_add_u32 s38, s37, 32")
    a("s_lshr_b32 s43, s47, 1")
    a("s_and_b32 s44, s47, 1")
    a(f"s_mul_i32 s39, s43, {224*1024}")
    a("s_lshl_b32 s45, s44, 10")
    a("s_add_u32 s39, s39, s45")
    a(f"s_mul_i32 s45, s48, {28*2048}")
    a("s_add_u32 s39, s39, s45")
    a(f"s_add_u32 s39, s39, {WS_WD:#x}")
    a("s_mov_b32 s40, 2048")
    a("s_mov_b32 s41, 14")
    a("s_mov_b32 s42, 0")
    a(f"{l_go}:")
    HALF = 16384 + 128
    a("v_lshrrev_b32 v1, 1, v0")
    a("v_mul_lo_u32 v1, v1, s36")
    a("v_and_b32 v2, 1, v0")
    a("v_lshl_add_u32 v1, v2, 4, v1")
    a("s_lshl_b32 s49, s36, 5")
    a("s_mov_b32 s50, 0")
    a("s_mov_b32 s51, 0")
    lp = a.label("ld")
    a(f"{lp}:")
    a("s_mov_b32 m0, s51")
    a(f"s_add_u32 s52, s51, {HALF}")
    a("buffer_load_dwordx4 v1, s[8:11], s37 offen lds")
    a("s_mov_b32 m0, s52")
    a("s_add_u32 s37, s37, s49")
    a("buffer_load_dwordx4 v1, s[12:15], s38 offen lds")
    a("s_add_u32 s38, s38, s49")
    a("s_add_u32 s51, s51, 1024")
    a("s_add_u32 s50, s50, 1")
    a("s_cmp_lt_u32 s50, s41")
    a(f"s_cbranch_scc1 {lp}")
    a("v_lshrrev_b32 v3, 5, v0")
    a("v_bfe_u32 v4, v0, 4, 1")
    a("v_bfe_u32 v5, v0, 2, 2")
    a("v_and_b32 v6, 1, v0")
    a("v_bfe_u32 v7, v0, 1, 1")
    a("v_lshl_add_u32 v6, v6, 1, v7")
    a("v_lshl_add_u32 v5, v3, 3, v5")
    a("v_lshlrev_b32 v5, 5, v5")
    a("v_lshl_add_u32 v5, v6, 3, v5")
    a(f"v_mul_u32_u24 v4, {HALF}, v4")
    a("v_add_u32 v5, v5, v4")
    a("v_lshlrev_b32 v8, 4, v0")
    a("v_mov_b32 v9, 0")
    a("s_mov_b32 s53, 0x3f803f80")
    a("s_lshl_b32 s41, s41, 1")
    a("s_mov_b32 s50, 0")
    a("s_waitcnt vmcnt(0)")
    lp = a.label("tr")
    a(f"{lp}:")
    a("ds_read_b64_tr_b16 v[12:13], v5")
    a("ds_read_b64_tr_b16 v[14:15], v5 offset:128")
    a("v_add_u32 v5, 512, v5")
    a("s_waitcnt lgkmcnt(0)")
    a("buffer_store_dwordx4 v[12:15], v8, s[4:7], s39 offen")
    for i in range(4):
        a(f"v_dot2c_f32_bf16 v9, s53, v{12+i}")
    a("s_add_u32 s39, s39, s40")
    a("s_add_u32 s50, s50, 1")
    a("s_cmp_lt_u32 s50, s41")
    a("s_waitcnt vmcnt(0)")
    a(f"s_cbranch_scc1 {lp}")
    a("s_cmp_eq_u32 s42, 0")
    a(f"s_cbranch_scc1 {done}")
    a("s_nop 3")
    a("v_mov_b32 v10, v9")
    a("s_nop 1")
    a("v_permlane32_swap_b32 v9, v10")
    a("s_nop 1")
    a("v_add_f32 v9, v9, v10")
    a("v_cvt_pk_bf16_f32 v10, v9, v9")
    a("v_lshlrev_b32 v11, 16, v10")
    a("v_sub_f32 v11, v9, v11")
    a("v_cvt_pk_bf16_f32 v12, v9, v11")
    a("v_cmp_gt_u32 vcc, 32, v0")
    a("s_nop 1")
    a("v_cndmask_b32 v12, 0, v12, vcc")
    a("v_mov_b32 v13, v12")
    a("v_mov_b32 v14, 0")
    a("v_mov_b32 v15, 0")
    a("buffer_store_dwordx4 v[12:15], v8, s[4:7], s39 offen")
    a("s_endpgm")
    a(f"{l_x}:")
    srd(a, 8, 20, 21, 2048 * 512 * 2)
    a("s_sub_u32 s46, s2, 240")
    a("v_and_b32 v1, 31, v0")
    a("v_lshlrev_b32 v1, 10, v1")
    a("v_lshrrev_b32 v2, 5, v0")
    a("v_lshl_add_u32 v1, v2, 4, v1")
    a("s_lshl_b32 s37, s46, 15")
    for ks in range(32):
        a(f"buffer_load_dwordx4 v[{16+4*ks}:{19+4*ks}], v1, s[8:11], s37 offen offset:{ks*32}")
    a("s_lshr_b32 s39, s46, 2")
    a("s_lshl_b32 s39, s39, 17")
    a("s_and_b32 s45, s46, 3")
    a("s_lshl_b32 s45, s45, 10")
    a("s_add_u32 s39, s39, s45")
    a(f"s_add_u32 s39, s39, {WS_X2:#x}")
    a("s_lshl_b32 s40, s46, 13")
    a(f"s_add_u32 s40, s40, {WS_ST2:#x}")
    a("v_lshlrev_b32 v8, 4, v0")
    a("v_lshlrev_b32 v9, 3, v0")
    a("s_mov_b32 s53, 0x3f803f80")
    a("s_waitcnt vmcnt(0)")
    for p in range(16):
        a("v_mov_b32 v10, 0")
        a("v_mov_b32 v11, 0")
        for ks in (2 * p, 2 * p + 1):
            a(f"buffer_store_dwordx4 v[{16+4*ks}:{19+4*ks}], v8, s[4:7], s39 offen")
            a("s_add_u32 s39, s39, 4096")
            for i in range(4):
                r = 16 + 4 * ks + i
                a(f"v_dot2c_f32_bf16 v10, s53, v{r}")
                a(f"v_dot2c_f32_bf16 v11, v{r}, v{r}")
        a("s_nop 3")
        a(f"buffer_store_dwordx2 v[10:11], v9, s[4:7], s40 offen")
        a("s_add_u32 s40, s40, 512")
        a("s_waitcnt vmcnt(0)")
    a(f"{done}:")
    a("s_endpgm")
    return (name, 144, NT, 64, 2 * HALF)


class Gemm:
    pass

def gen_gemm(a, g):
    name = g.name
    NA, NW = g.NA, g.NW
    KST = g.KST
    NC = KST // 4
    NS = g.NS
    KSB = (NA + NW) * 1024
    SLOT = 4 * KSB
    L = NA + NW
    SCR = NS * SLOT
    lds_total = SCR + 1024
    assert lds_total <= 160 * 1024, lds_total
    kernel_header(a, name)
    done = a.label("done")
    comp = a.label("comp")
    a(f"s_cmp_ge_u32 s2, {g.NWG}")
    a(f"s_cbranch_scc1 {done}")
    a(f"s_load_dwordx2 s[12:13], s[0:1], {KA_WS}")
    if g.aux is not None:
        a(f"s_load_dwordx2 s[14:15], s[0:1], {g.aux}")
    a("v_lshrrev_b32 v1, 6, v0")
    a("v_and_b32 v0, 63, v0")
    a("v_readfirstlane_b32 s16, v1")
    a("s_and_b32 s17, s2, 7")
    a("s_lshr_b32 s18, s2, 3")
    if NA == 4:
        a("s_and_b32 s19, s18, 1")
        a("s_lshl_b32 s21, s17, 1")
        a("s_add_u32 s19, s19, s21")
        a("s_lshl_b32 s19, s19, 2")
        a("s_lshr_b32 s20, s18, 1")
    else:
        a("s_and_b32 s19, s18, 3")
        a("s_lshl_b32 s21, s17, 2")
        a("s_add_u32 s19, s19, s21")
        a("s_lshl_b32 s19, s19, 1")
        a("s_lshr_b32 s20, s18, 2")
    a("v_lshlrev_b32 v2, 4, v0")
    a(f"s_mul_i32 s23, s20, {g.WNT}")
    a(f"s_add_u32 s23, s23, {g.WBASE:#x}")
    a("s_waitcnt lgkmcnt(0)")
    srd(a, 4, 12, 13, WS_END)
    if g.aux is not None:
        srd(a, 8, 14, 15, 2048 * 512 * 2)
    a("s_cmp_ge_u32 s16, 4")
    a(f"s_cbranch_scc1 {comp}")
    a.c("loader wave: k-step (wave id) of every chunk")
    a("s_lshr_b32 s22, s19, 2")
    a(f"s_mul_i32 s22, s22, {KST*4096}")
    a("s_and_b32 s24, s19, 3")
    a("s_lshl_b32 s24, s24, 10")
    a("s_add_u32 s22, s22, s24")
    a(f"s_add_u32 s22, s22, {g.ABASE:#x}")
    a("s_lshl_b32 s24, s16, 12")
    a("s_add_u32 s22, s22, s24")
    a(f"s_mul_i32 s24, s16, {NW*1024}")
    a("s_add_u32 s23, s23, s24")
    a(f"s_mul_i32 s25, s16, {KSB}")
    a("s_mov_b32 s26, s25")
    a(f"s_add_u32 s27, s25, {NS*SLOT}")

    def issue():
        a("s_mov_b32 m0, s26")
        a(f"s_add_u32 s28, s26, {NA*1024}")
        for i in range(NA):
            a(f"buffer_load_dwordx4 v2, s[4:7], s22 offen offset:{i*1024} lds")
        a("s_mov_b32 m0, s28")
        a("s_add_u32 s22, s22, 16384")
        for i in range(min(NW, 4)):
            a(f"buffer_load_dwordx4 v2, s[4:7], s23 offen offset:{i*1024} lds")
        if NW > 4:
            a("s_add_u32 s28, s28, 4096")
            a("s_add_u32 s29, s23, 4096")
            a("s_mov_b32 m0, s28")
            a("s_nop 0")
            for i in range(NW - 4):
                a(f"buffer_load_dwordx4 v2, s[4:7], s29 offen offset:{i*1024} lds")
        a(f"s_add_u32 s23, s23, {4*NW*1024}")
        a(f"s_add_u32 s26, s26, {SLOT}")
        a("s_cmp_eq_u32 s26, s27")
        a("s_cselect_b32 s26, s25, s26")

    npro = min(NS, NC)
    lp = a.label("pro")
    a(f"s_mov_b32 s30, {npro}")
    a(f"{lp}:")
    issue()
    a("s_sub_u32 s30, s30, 1")
    a("s_cmp_lg_u32 s30, 0")
    a(f"s_cbranch_scc1 {lp}")
    assert (npro - 1) * L <= 63
    a(f"s_waitcnt vmcnt({(npro-1)*L})")
    a("s_barrier")
    nsteady = NC - npro
    if nsteady > 0:
        lp = a.label("steady")
        a(f"s_mov_b32 s30, {nsteady}")
        a(f"{lp}:")
        a(f"s_waitcnt vmcnt({(npro-2)*L})")
        a("s_barrier")
        issue()
        a("s_sub_u32 s30, s30, 1")
        a("s_cmp_lg_u32 s30, 0")
        a(f"s_cbranch_scc1 {lp}")
    for c in range(nsteady + 1, NC):
        a(f"s_waitcnt vmcnt({(NC-1-c)*L})")
        a("s_barrier")
    a("s_endpgm")

    a(f"{comp}:")
    a("s_sub_u32 s16, s16, 4")
    R = Regs(4)
    vA0, vW0, vA, vW = R.alloc(), R.alloc(), R.alloc(), R.alloc()
    vRstd = R.alloc()
    NT = g.NT
    G = g.G
    acc = [R.alloc(16) for _ in range(NT)]
    sets = [[(R.alloc(4), [R.alloc(4) for _ in range(NT)]) for _ in range(G)] for _ in range(2)]
    tmp = R.alloc(32)
    if g.kind == "qkv":
        vRs = R.alloc(16)
    if g.kind == "res":
        a("s_and_b32 s24, s16, 1")
        a("s_lshr_b32 s25, s16, 1")
    else:
        a("s_mov_b32 s24, s16")
        a("s_mov_b32 s25, 0")
    a("s_add_u32 s31, s19, s24")
    a("s_lshl_b32 s26, s24, 10")
    a(f"v_add_u32 v{vA0}, s26, v2")
    a("s_lshl_b32 s26, s25, 10")
    a(f"s_add_u32 s26, s26, {NA*1024}")
    a(f"v_add_u32 v{vW0}, s26, v2")
    a("s_lshr_b32 s32, s31, 2")
    a("s_lshl_b32 s32, s32, 17")
    a("s_and_b32 s26, s31, 3")
    a("s_lshl_b32 s26, s26, 10")
    a("s_add_u32 s32, s32, s26")
    a("v_lshlrev_b32 v3, 3, v0")

    if g.kind in ("qkv", "gu"):
        a.c("row statistics partials and column-sum fragments")
        a("s_lshl_b32 s26, s31, 13")
        a(f"s_add_u32 s26, s26, {g.STIN:#x}")
        a("s_add_u32 s27, s26, 4096")
        for p in range(16):
            so = "s26" if p < 8 else "s27"
            a(f"buffer_load_dwordx2 v[{tmp+2*p}:{tmp+2*p+1}], v3, s[4:7], {so} offen offset:{(p%8)*512}")
        a(f"s_add_u32 s26, s23, {32*NW*1024}")
        a("s_add_u32 s27, s26, 4096")
        for t in range(NT):
            so = "s26" if t < 4 else "s27"
            a(f"buffer_load_dwordx4 {vr(sets[1][0][1][t],4)}, v2, s[4:7], {so} offen offset:{(t%4)*1024}")
        a(f"s_waitcnt vmcnt({NT})")
        n = 16
        while n > 1:
            n //= 2
            for p in range(n):
                a(f"v_pk_add_f32 v[{tmp+2*p}:{tmp+2*p+1}], v[{tmp+2*p}:{tmp+2*p+1}], v[{tmp+2*(p+n)}:{tmp+2*(p+n)+1}]")
        a(f"v_mov_b32 v{tmp+2}, v{tmp}")
        a(f"v_mov_b32 v{tmp+3}, v{tmp+1}")
        a("s_nop 1")
        a(f"v_permlane32_swap_b32 v{tmp}, v{tmp+2}")
        a(f"v_permlane32_swap_b32 v{tmp+1}, v{tmp+3}")
        a("s_nop 1")
        a(f"v_add_f32 v{tmp}, v{tmp}, v{tmp+2}")
        a(f"v_add_f32 v{tmp+1}, v{tmp+1}, v{tmp+3}")
        a(f"v_mul_f32 v{tmp}, {f32bits(-1.0/512):#x}, v{tmp}")
        a(f"v_mul_f32 v{tmp+1}, {f32bits(1.0/512):#x}, v{tmp+1}")
        a(f"v_fma_f32 v{tmp+1}, -v{tmp}, v{tmp}, v{tmp+1}")
        a(f"v_max_f32 v{tmp+1}, 0, v{tmp+1}")
        a(f"v_add_f32 v{tmp+1}, {f32bits(1e-5):#x}, v{tmp+1}")
        a(f"v_rsq_f32 v{vRstd}, v{tmp+1}")
        xa = sets[1][0][0]
        a(f"v_cvt_pk_bf16_f32 v{xa}, v{tmp}, v{tmp}")
        a(f"v_lshlrev_b32 v{tmp+2}, 16, v{xa}")
        a(f"v_sub_f32 v{tmp+2}, v{tmp}, v{tmp+2}")
        a(f"v_cvt_pk_bf16_f32 v{xa+1}, v{tmp+2}, v{tmp+2}")
        a(f"v_mov_b32 v{xa+2}, 0")
        a(f"v_mov_b32 v{xa+3}, 0")
        if g.kind == "qkv":
            a.c("rstd per accumulator row (token) for the V tile")
            a("s_lshl_b32 s26, s16, 8")
            a(f"s_add_u32 s26, s26, {SCR}")
            a(f"v_lshl_add_u32 v{tmp+4}, v0, 2, s26")
            a(f"ds_write_b32 v{tmp+4}, v{vRstd}")
            a(f"v_lshrrev_b32 v{tmp+5}, 5, v0")
            a(f"v_lshl_add_u32 v{tmp+5}, v{tmp+5}, 4, s26")
            a("s_waitcnt lgkmcnt(0)")
            for q in range(4):
                a(f"ds_read_b128 {vr(vRs+4*q,4)}, v{tmp+5} offset:{q*32}")
        a("s_waitcnt vmcnt(0) lgkmcnt(0)")
        a("s_nop 1")
        for t in range(NT):
            wf = sets[1][0][1][t]
            if g.swap[t]:
                a(f"{MFMA} {vr(acc[t],16)}, {vr(xa,4)}, {vr(wf,4)}, 0")
            else:
                a(f"{MFMA} {vr(acc[t],16)}, {vr(wf,4)}, {vr(xa,4)}, 0")
    else:
        a.c("residual as accumulator init")
        a("s_lshl_b32 s33, s20, 1")
        a("s_add_u32 s33, s33, s25")
        if g.res_rowmajor:
            a(f"v_and_b32 v{tmp+8}, 31, v0")
            a(f"v_lshlrev_b32 v{tmp+8}, 10, v{tmp+8}")
            a(f"v_lshrrev_b32 v{tmp+9}, 5, v0")
            a(f"v_lshl_add_u32 v{tmp+8}, v{tmp+9}, 4, v{tmp+8}")
            a("s_lshl_b32 s26, s31, 15")
            a("s_lshl_b32 s27, s33, 6")
            a("s_add_u32 s26, s26, s27")
            a(f"buffer_load_dwordx4 {vr(tmp,4)}, v{tmp+8}, s[8:11], s26 offen")
            a(f"buffer_load_dwordx4 {vr(tmp+4,4)}, v{tmp+8}, s[8:11], s26 offen offset:32")
        else:
            a("s_lshl_b32 s26, s33, 13")
            a("s_add_u32 s26, s26, s32")
            a(f"s_add_u32 s26, s26, {g.RES:#x}")
            a("s_add_u32 s27, s26, 4096")
            a(f"buffer_load_dwordx4 {vr(tmp,4)}, v2, s[4:7], s26 offen")
            a(f"buffer_load_dwordx4 {vr(tmp+4,4)}, v2, s[4:7], s27 offen")
        a("s_waitcnt vmcnt(0)")
        for i in range(8):
            a(f"v_lshlrev_b32 v{acc[0]+2*i}, 16, v{tmp+i}")
            a(f"v_and_b32 v{acc[0]+2*i+1}, 0xffff0000, v{tmp+i}")

    SPC = 4 // G
    nreads = G * (1 + NT)

    def reads(step_in_chunk, par):
        for gi in range(G):
            ks = step_in_chunk * G + gi
            xa, wfs = sets[par][gi]
            a(f"ds_read_b128 {vr(xa,4)}, v{vA} offset:{ks*KSB}")
            for t in range(NT):
                a(f"ds_read_b128 {vr(wfs[t],4)}, v{vW} offset:{ks*KSB + t*1024}")

    def mfmas(par, pending):
        k = 0
        for gi in range(G):
            xa, wfs = sets[par][gi]
            for t in range(NT):
                if pending is not None:
                    done_needed = gi * (1 + NT) + 2 + t
                    n = pending + nreads - done_needed
                    a(f"s_waitcnt lgkmcnt({min(n, 15)})")
                if g.swap[t]:
                    a(f"{MFMA} {vr(acc[t],16)}, {vr(xa,4)}, {vr(wfs[t],4)}, {vr(acc[t],16)}")
                else:
                    a(f"{MFMA} {vr(acc[t],16)}, {vr(wfs[t],4)}, {vr(xa,4)}, {vr(acc[t],16)}")

    def advance():
        a(f"s_add_u32 s34, s34, {SLOT}")
        a(f"s_cmp_eq_u32 s34, {NS*SLOT}")
        a("s_cselect_b32 s34, 0, s34")
        a(f"v_add_u32 v{vA}, s34, v{vA0}")
        a(f"v_add_u32 v{vW}, s34, v{vW0}")

    assert 2 * nreads - 2 <= 15 or True
    a("s_mov_b32 s34, 0")
    a(f"v_mov_b32 v{vA}, v{vA0}")
    a(f"v_mov_b32 v{vW}, v{vW0}")
    a("s_barrier")
    reads(0, 0)
    CPI = 1 if SPC % 2 == 0 else 2

    def chunk_body(par0, last):
        par = par0
        for s in range(SPC):
            if s < SPC - 1:
                reads(s + 1, par ^ 1)
                mfmas(par, nreads)
            elif not last:
                a("s_waitcnt lgkmcnt(0)")
                advance()
                a("s_barrier")
                reads(0, par ^ 1)
                mfmas(par, None)
            else:
                mfmas(par, 0)
            par ^= 1
        return par

    nloop = (NC - 1) // CPI
    rem = NC - nloop * CPI
    lp = a.label("kloop")
    a(f"s_mov_b32 s35, {nloop}")
    a(f"{lp}:")
    par = 0
    for _ in range(CPI):
        par = chunk_body(par, False)
    assert par == 0
    a("s_sub_u32 s35, s35, 1")
    a("s_cmp_lg_u32 s35, 0")
    a(f"s_cbranch_scc1 {lp}")
    for i in range(rem):
        par = chunk_body(par, i == rem - 1)

    a("s_nop 15")
    if g.kind == "qkv":
        a("s_lshl_b32 s26, s20, 17")
        a("s_lshl_b32 s27, s31, 10")
        a("s_add_u32 s26, s26, s27")
        a(f"v_mul_f32 v{tmp+16}, {f32bits(QSCALE):#x}, v{vRstd}")
        for t, base, sc in ((0, WS_Q, tmp + 16), (1, WS_K, vRstd)):
            for hh in range(2):
                o = tmp + 4 * (2 * t + hh)
                for i in range(4):
                    r = acc[t] + 8 * hh + 2 * i
                    a(f"v_mul_f32 v{r}, v{sc}, v{r}")
                    a(f"v_mul_f32 v{r+1}, v{sc}, v{r+1}")
                    a(f"v_cvt_pk_bf16_f32 v{o+i}, v{r}, v{r+1}")
                a(f"s_add_u32 s27, s26, {base + hh*65536:#x}")
                a(f"buffer_store_dwordx4 {vr(o,4)}, v2, s[4:7], s27 offen")
        va = tmp + 17
        a(f"v_bfe_u32 v{va}, v0, 4, 1")
        a(f"v_lshlrev_b32 v{va}, 16, v{va}")
        a(f"v_lshrrev_b32 v{va+1}, 5, v0")
        a(f"v_lshl_add_u32 v{va}, v{va+1}, 8, v{va}")
        a(f"v_and_b32 v{va+1}, 15, v0")
        a(f"v_lshl_add_u32 v{va}, v{va+1}, 4, v{va}")
        a(f"s_add_u32 s27, s26, {WS_V:#x}")
        for hh in range(2):
            o = tmp + 20 + 4 * hh
            for i in range(4):
                r = acc[2] + 8 * hh + 2 * i
                a(f"v_mul_f32 v{r}, v{vRs+8*hh+2*i}, v{r}")
                a(f"v_mul_f32 v{r+1}, v{vRs+8*hh+2*i+1}, v{r+1}")
                a(f"v_cvt_pk_bf16_f32 v{o+i}, v{r}, v{r+1}")
            a(f"buffer_store_dwordx4 {vr(o,4)}, v{va}, s[4:7], s27 offen offset:{hh*512}")
    elif g.kind == "gu":
        a("s_lshr_b32 s26, s31, 2")
        a(f"s_mul_i32 s26, s26, {112*4096}")
        a("s_and_b32 s27, s31, 3")
        a("s_lshl_b32 s27, s27, 10")
        a("s_add_u32 s26, s26, s27")
        a(f"s_mul_i32 s27, s20, {7*4096}")
        a("s_add_u32 s26, s26, s27")
        a(f"s_add_u32 s26, s26, {WS_H:#x}")
        a(f"v_mul_f32 v{vRstd}, v{vRstd}, v{vRstd}")
        for t in range(NT):
            o = tmp + 4 * t
            for i in range(4):
                r = acc[t] + 2 * i
                a(f"v_mul_f32 v{r}, v{r}, v{r+8}")
                a(f"v_mul_f32 v{r+1}, v{r+1}, v{r+9}")
                a(f"v_mul_f32 v{r}, v{vRstd}, v{r}")
                a(f"v_mul_f32 v{r+1}, v{vRstd}, v{r+1}")
                a(f"v_cvt_pk_bf16_f32 v{o+i}, v{r}, v{r+1}")
            a(f"buffer_store_dwordx4 {vr(o,4)}, v2, s[4:7], s26 offen")
            a("s_add_u32 s26, s26, 4096")
    else:
        c0 = acc[0]
        for i in range(8):
            a(f"v_cvt_pk_bf16_f32 v{tmp+i}, v{c0+2*i}, v{c0+2*i+1}")
        if g.out_rowmajor:
            a(f"v_and_b32 v{tmp+8}, 31, v0")
            a(f"v_lshlrev_b32 v{tmp+8}, 10, v{tmp+8}")
            a(f"v_lshrrev_b32 v{tmp+9}, 5, v0")
            a(f"v_lshl_add_u32 v{tmp+8}, v{tmp+9}, 4, v{tmp+8}")
            a("s_lshl_b32 s26, s31, 15")
            a("s_lshl_b32 s27, s33, 6")
            a("s_add_u32 s26, s26, s27")
            a(f"buffer_store_dwordx4 {vr(tmp,4)}, v{tmp+8}, s[8:11], s26 offen")
            a(f"buffer_store_dwordx4 {vr(tmp+4,4)}, v{tmp+8}, s[8:11], s26 offen offset:32")
        else:
            a("s_lshl_b32 s26, s33, 13")
            a("s_add_u32 s26, s26, s32")
            a(f"s_add_u32 s26, s26, {g.OUT:#x}")
            a("s_add_u32 s27, s26, 4096")
            a(f"buffer_store_dwordx4 {vr(tmp,4)}, v2, s[4:7], s26 offen")
            a(f"buffer_store_dwordx4 {vr(tmp+4,4)}, v2, s[4:7], s27 offen")
            a.c("row statistics partials")
            q = tmp + 10
            a(f"v_pk_mul_f32 v[{q}:{q+1}], v[{c0}:{c0+1}], v[{c0}:{c0+1}]")
            for i in range(1, 8):
                a(f"v_pk_fma_f32 v[{q}:{q+1}], v[{c0+2*i}:{c0+2*i+1}], v[{c0+2*i}:{c0+2*i+1}], v[{q}:{q+1}]")
                a(f"v_pk_add_f32 v[{c0}:{c0+1}], v[{c0}:{c0+1}], v[{c0+2*i}:{c0+2*i+1}]")
            a(f"v_add_f32 v{q+2}, v{c0}, v{c0+1}")
            a(f"v_add_f32 v{q+3}, v{q}, v{q+1}")
            a("s_lshl_b32 s26, s31, 13")
            a("s_lshl_b32 s27, s33, 9")
            a("s_add_u32 s26, s26, s27")
            a(f"s_add_u32 s26, s26, {g.STOUT:#x}")
            a(f"buffer_store_dwordx2 v[{q+2}:{q+3}], v3, s[4:7], s26 offen")
    a(f"{done}:")
    a("s_endpgm")
    return (name, R.n, g.NWG, 512, lds_total)


def cfg(**kw):
    g = Gemm()
    g.aux = None
    g.res_rowmajor = False
    g.out_rowmajor = False
    g.NWG = 256
    for k, v in kw.items():
        setattr(g, k, v)
    return g


def gen_attn(a):
    name = "attn_kernel"
    kernel_header(a, name)
    done = a.label("done")
    a("s_cmp_ge_u32 s2, 256")
    a(f"s_cbranch_scc1 {done}")
    a(f"s_load_dwordx2 s[12:13], s[0:1], {KA_WS}")
    a("v_lshrrev_b32 v1, 6, v0")
    a("v_and_b32 v0, 63, v0")
    a("v_readfirstlane_b32 s16, v1")
    a("s_and_b32 s17, s2, 7")
    a("s_lshr_b32 s18, s2, 3")
    a("s_and_b32 s19, s18, 3")
    a("s_lshl_b32 s17, s17, 2")
    a("s_add_u32 s19, s19, s17")
    a("s_lshr_b32 s20, s18, 2")
    a("s_lshl_b32 s20, s20, 3")
    a("s_add_u32 s20, s20, s16")
    a("v_lshlrev_b32 v2, 4, v0")
    a("s_lshl_b32 s21, s19, 16")
    a("s_waitcnt lgkmcnt(0)")
    srd(a, 4, 12, 13, WS_END)
    R = Regs(4)
    vK, vV = R.alloc(), R.alloc()
    t0, t1 = R.alloc(), R.alloc()
    Q = R.alloc(4)
    NM = R.alloc(16)
    O = R.alloc(16)
    S = [R.alloc(16), R.alloc(16)]
    P = R.alloc(8)
    KF = [R.alloc(4), R.alloc(4)]
    VF = [R.alloc(8), R.alloc(8)]
    a("s_lshl_b32 s22, s20, 10")
    a("s_add_u32 s22, s22, s21")
    if WS_Q:
        a(f"s_add_u32 s22, s22, {WS_Q:#x}")
    a(f"buffer_load_dwordx4 {vr(Q,4)}, v2, s[4:7], s22 offen")
    a("s_lshl_b32 s23, s16, 12")
    for half in range(2):
        for base, lbase in ((WS_K, 0), (WS_V, 65536)):
            a(f"s_add_u32 s24, s23, {lbase + half*32768}")
            a("s_mov_b32 m0, s24")
            a("s_add_u32 s25, s23, s21")
            a(f"s_add_u32 s25, s25, {base + half*32768:#x}")
            for i in range(4):
                a(f"buffer_load_dwordx4 v2, s[4:7], s25 offen offset:{i*1024} lds")
    for b in range(2):
        for i in range(8):
            a(f"v_mov_b32 v{VF[b]+i}, 0x3f803f80")
    a(f"v_lshrrev_b32 v{t0}, 5, v0")
    a(f"v_lshlrev_b32 v{t0}, 8, v{t0}")
    a(f"v_and_b32 v{t1}, 15, v0")
    a(f"v_lshl_add_u32 v{t0}, v{t1}, 4, v{t0}")
    a(f"v_add_u32 v3, 0x10000, v{t0}")
    a("s_mov_b32 s28, 0x0000ffff")
    a("s_mov_b32 s29, 0x0000ffff")
    a("s_mov_b32 s30, 0")
    a("s_waitcnt vmcnt(0)")
    a("s_barrier")
    a(f"ds_read_b128 {vr(KF[0],4)}, v2")
    a("s_waitcnt lgkmcnt(0)")
    a(f"{MFMA} {vr(S[0],16)}, {vr(KF[0],4)}, {vr(Q,4)}, 0")
    a("s_nop 15")
    a(f"v_max3_f32 v{t0}, v{S[0]}, v{S[0]+1}, v{S[0]+2}")
    for i in range(3, 15, 2):
        a(f"v_max3_f32 v{t0}, v{t0}, v{S[0]+i}, v{S[0]+i+1}")
    a(f"v_max_f32 v{t0}, v{t0}, v{S[0]+15}")
    setm = a.label("setm")
    a(f"{setm}:")
    a(f"v_mov_b32 v{t1}, v{t0}")
    a("s_nop 1")
    a(f"v_permlane32_swap_b32 v{t0}, v{t1}")
    a("s_nop 1")
    a(f"v_max_f32 v{t0}, v{t0}, v{t1}")
    for i in range(16):
        a(f"v_sub_f32 v{NM+i}, 0, v{t0}")
    for i in range(16):
        a(f"v_mov_b32 v{O+i}, 0")
    for i in range(4, 8):
        a(f"v_mov_b32 v{P+i}, 0")
    a(f"v_mov_b32 v{vK}, v2")
    a(f"v_mov_b32 v{vV}, v3")
    a(f"ds_read_b128 {vr(KF[0],4)}, v{vK}")
    a(f"ds_read_b128 {vr(KF[1],4)}, v{vK} offset:1024")
    a("s_mov_b64 exec, s[28:29]")
    a(f"ds_read_b128 {vr(VF[0],4)}, v{vV}")
    a(f"ds_read_b128 {vr(VF[0]+4,4)}, v{vV} offset:512")
    a(f"ds_read_b128 {vr(VF[1]+4,4)}, v{vV} offset:512")
    a("s_mov_b64 exec, -1")
    a("s_waitcnt lgkmcnt(0)")
    a(f"{MFMA} {vr(S[0],16)}, {vr(KF[0],4)}, {vr(Q,4)}, {vr(NM,16)}")
    a("s_nop 15")
    U = 2
    a(f"s_mov_b32 s31, {64//U}")
    lp = a.label("attn")
    a(f"{lp}:")
    for u in range(U):
        c, n = S[u & 1], S[(u + 1) & 1]
        E = lambda i: a(f"v_exp_f32 v{c+i}, v{c+i}")
        C = lambda j: a(f"v_cvt_pk_bf16_f32 v{P+j}, v{c+2*j}, v{c+2*j+1}")
        E(0); E(1)
        a(f"{MFMA} {vr(O,16)}, {vr(VF[(u+1)&1]+4,4)}, {vr(P+4,4)}, {vr(O,16)}")
        E(2)
        a(f"ds_read_b128 {vr(KF[u&1],4)}, v{vK} offset:{(u+2)*1024}")
        E(3)
        a("s_mov_b64 exec, s[28:29]")
        a(f"ds_read_b128 {vr(VF[(u+1)&1],4)}, v{vV} offset:{(u+1)*1024}")
        a(f"ds_read_b128 {vr(VF[(u+1)&1]+4,4)}, v{vV} offset:{(u+1)*1024+512}")
        a("s_mov_b64 exec, -1")
        C(0); E(4); E(5); C(1); E(6)
        a("s_waitcnt lgkmcnt(3)")
        a(f"{MFMA} {vr(n,16)}, {vr(KF[(u+1)&1],4)}, {vr(Q,4)}, {vr(NM,16)}")
        E(7); C(2); E(8); C(3); E(9); E(10); C(4); E(11)
        a(f"{MFMA} {vr(O,16)}, {vr(VF[u&1],4)}, {vr(P,4)}, {vr(O,16)}")
        E(12); C(5); E(13); E(14); C(6); E(15)
        if u == U - 1:
            a(f"v_add_u32 v{vK}, {U*1024}, v{vK}")
            C(7)
            a(f"v_add_u32 v{vV}, {U*1024}, v{vV}")
        else:
            a("s_nop 0")
            C(7)
    a("s_sub_u32 s31, s31, 1")
    a("s_cmp_lg_u32 s31, 0")
    a(f"s_cbranch_scc1 {lp}")
    a(f"{MFMA} {vr(O,16)}, {vr(VF[1]+4,4)}, {vr(P+4,4)}, {vr(O,16)}")
    a("s_waitcnt lgkmcnt(0)")
    a("s_nop 15")
    fin = a.label("fin")
    a(f"v_add_f32 v{t1}, v{O}, v{O+1}")
    for i in range(2, 8):
        a(f"v_add_f32 v{t1}, v{t1}, v{O+i}")
    a(f"v_mul_f32 v{t1}, 0, v{t1}")
    a(f"v_add_f32 v{t1}, v{t1}, v{O+8}")
    a(f"v_cmp_ngt_f32 vcc, {f32bits(2.0**64):#x}, v{t1}")
    a("s_cmp_lg_u32 s30, 0")
    a(f"s_cbranch_scc1 {fin}")
    a("s_cmp_eq_u64 vcc, 0")
    a(f"s_cbranch_scc1 {fin}")
    a.c("fallback: exact row max over all keys")
    a("s_mov_b32 s30, 1")
    a(f"v_mov_b32 v{vK}, v2")
    a(f"v_mov_b32 v{t0}, 0xff800000")
    a("s_mov_b32 s31, 64")
    lp2 = a.label("maxl")
    a(f"{lp2}:")
    a(f"ds_read_b128 {vr(KF[0],4)}, v{vK}")
    a(f"v_add_u32 v{vK}, 1024, v{vK}")
    a("s_waitcnt lgkmcnt(0)")
    a(f"{MFMA} {vr(S[0],16)}, {vr(KF[0],4)}, {vr(Q,4)}, 0")
    a("s_nop 15")
    for i in range(0, 16, 2):
        a(f"v_max3_f32 v{t0}, v{t0}, v{S[0]+i}, v{S[0]+i+1}")
    a("s_sub_u32 s31, s31, 1")
    a("s_cmp_lg_u32 s31, 0")
    a(f"s_cbranch_scc1 {lp2}")
    a(f"s_branch {setm}")
    a(f"{fin}:")
    a(f"v_rcp_f32 v{t0}, v{O+8}")
    a("s_lshr_b32 s22, s20, 2")
    a("s_lshl_b32 s22, s22, 17")
    a("s_and_b32 s23, s20, 3")
    a("s_lshl_b32 s23, s23, 10")
    a("s_add_u32 s22, s22, s23")
    a("s_lshl_b32 s23, s19, 12")
    a("s_add_u32 s22, s22, s23")
    a(f"s_add_u32 s22, s22, {WS_O:#x}")
    for i in range(8):
        a(f"v_mul_f32 v{O+i}, v{t0}, v{O+i}")
    for i in range(4):
        a(f"v_cvt_pk_bf16_f32 v{P+i}, v{O+2*i}, v{O+2*i+1}")
    a(f"buffer_store_dwordx4 {vr(P,4)}, v2, s[4:7], s22 offen")
    a(f"{done}:")
    a("s_endpgm")
    return (name, R.n, 256, 512, 131072 + 2048)


HEADER = open("cdna_kernels/" + NAME + ".s.ref").read().split("; Override launch")[0]

def main(out):
    a = Asm()
    ks = {}
    def add(r):
        ks[r[0]] = r
    add(gen_prep(a))
    add(gen_gemm(a, cfg(name="qkv_kernel", kind="qkv", NA=4, NW=3, NT=3, G=1, KST=32, NS=5, swap=[0, 0, 1],
                        ABASE=WS_X2, WBASE=WS_WQKV, WNT=99 * 1024, STIN=WS_ST2)))
    add(gen_attn(a))
    add(gen_gemm(a, cfg(name="oproj_kernel", kind="res", NA=2, NW=2, NT=1, G=4, KST=32, NS=8, swap=[0],
                        ABASE=WS_O, WBASE=WS_WO, WNT=64 * 1024, RES=WS_X2, OUT=WS_X1, STOUT=WS_ST1)))
    add(gen_gemm(a, cfg(name="gu_kernel", kind="gu", NA=4, NW=7, NT=7, G=1, KST=32, NS=3, swap=[0] * 7,
                        ABASE=WS_X1, WBASE=WS_WGU, WNT=231 * 1024, STIN=WS_ST1)))
    add(gen_gemm(a, cfg(name="down1_kernel", kind="res", NA=2, NW=2, NT=1, G=4, KST=112, NS=9, swap=[0],
                        ABASE=WS_H, WBASE=WS_WD, WNT=224 * 1024, RES=WS_X1, OUT=WS_X2, STOUT=WS_ST2)))
    add(gen_gemm(a, cfg(name="down2_kernel", kind="res", NA=2, NW=2, NT=1, G=4, KST=112, NS=9, swap=[0],
                        ABASE=WS_H, WBASE=WS_WD, WNT=224 * 1024, RES=WS_X1, out_rowmajor=True, aux=KA_OUT)))
    order = ["prep_kernel", "qkv_kernel", "attn_kernel", "oproj_kernel", "gu_kernel", "down1_kernel",
             "qkv_kernel", "attn_kernel", "oproj_kernel", "gu_kernel", "down2_kernel"]
    txt = HEADER
    for k in order:
        _, v, nwg, blk, lds = ks[k]
        txt += f"; @launch kernel={k} grid=({nwg},1,1) block=({blk},1,1) lds={lds}\n"
    txt += '.amdgcn_target "amdgcn-amd-amdhsa--gfx950"\n.text\n'
    txt += a.text()
    txt += '.section .rodata,"a"\n'
    for k, (_, v, nwg, blk, lds) in ks.items():
        txt += kernel_desc(k, v)
        print(f"{k}: vgpr={v} lds={lds}", file=sys.stderr)
    open(out, "w").write(txt)

if __name__ == "__main__":
    main(sys.argv[1] if len(sys.argv) > 1 else "cdna_kernels/" + NAME + ".s")
```

```python
import sys, struct, math, os
from asmlib import *

NAME = "interleave_layers__mha_block__glu_gated_bilinear__prompt"
def env(k, d):
    return int(os.environ.get(k, d))

WS_WQKV = 0x000000
WS_WO   = 0x200000
WS_WGU  = 0x300000
WS_WD   = 0x700000
WS_FLAG = 0x8C0000
FL_IT = 0x8000
FL_A, FL_O, FL_G, FL_D, FL_Q = 0x0, 0x1000, 0x2000, 0x3000, 0x4000
WS_IT0 = 0xA00000
IT_STRIDE = 0x1400000
B_Q, B_K, B_V, B_O, B_X1, B_XIN, B_H, B_ST1, B_STIN = (
    0x0, 0x200000, 0x400000, 0x600000, 0x800000, 0xA00000, 0xC00000, 0x1300000, 0x1340000)
WS_END = WS_IT0 + 2 * IT_STRIDE
WS_STAMP = WS_END
LDS_MAX = 160 * 1024

KA_X, KA_WQKV, KA_WO, KA_BX, KA_WG, KA_WU, KA_WD, KA_OUT, KA_DBG, KA_WS = [8 * i for i in range(10)]

def f32bits(x):
    return struct.unpack("<I", struct.pack("<f", x))[0]

QSCALE = 0.25 * math.log2(math.e)
MFMA = "v_mfma_f32_32x32x16_bf16"
STAMP = os.environ.get("STAMP", "") != ""
SC = " sc1"
SPIN_MAX = 1 << 18

def srd(a, d, lo, hi, nbytes):
    a(f"s_mov_b32 s{d}, s{lo}")
    a(f"s_and_b32 s{d+1}, s{hi}, 0xffff")
    a(f"s_mov_b32 s{d+2}, {nbytes:#x}")
    a(f"s_mov_b32 s{d+3}, 0x20000")

S_WAVE, S_XCD, S_IDX, S_IT, S_BASE, S_FL = 16, 17, 18, 40, 41, 42
S_TT64, S_NT64, S_TT128, S_NT128 = 43, 44, 45, 46
S_ARR, S_SIG = 47, 48
LDS_CNT = LDS_MAX - 16
V_L16, V_ST, V_L4 = 2, 3, 1
V_RES = 4
V_STAMP = 12
V_PF, V_L128 = 14, 15
V_FREE = 16

def stamp(a, i):
    if STAMP:
        a("s_memrealtime s[56:57]")
        a("s_memtime s[58:59]")
        a(f"s_lshl_b32 s60, s{S_IT}, 5")
        a(f"s_add_u32 s60, s60, {i}")
        a("s_waitcnt lgkmcnt(0)")
        a("s_mov_b32 s61, m0")
        a("s_mov_b32 m0, s60")
        a("s_nop 0")
        a(f"v_writelane_b32 v{V_STAMP}, s56, m0")
        a(f"v_writelane_b32 v{V_STAMP+1}, s58, m0")
        a("s_mov_b32 m0, s61")

def stamp_flush(a, which=0):
    if STAMP:
        a("s_lshl_b32 s60, s2, 3")
        a(f"s_add_u32 s60, s60, s{S_WAVE}")
        a("s_lshl_b32 s60, s60, 9")
        a(f"s_add_u32 s60, s60, {WS_STAMP + which*0x100000:#x}")
        a(f"s_mov_b32 s6, {WS_STAMP + 0x200000:#x}")
        a(f"buffer_store_dword v{V_STAMP}, v{V_L4}, s[4:7], s60 offen")
        a(f"buffer_store_dword v{V_STAMP+1}, v{V_L4}, s[4:7], s60 offen offset:256")

def handoff(a, soff, need):
    lp, ok = a.label("poll"), a.label("pok")
    a("s_mov_b32 s38, 1")
    a(f"s_atomic_add s38, s[14:15], s{S_SIG}")
    a(f"s_mov_b32 s39, {SPIN_MAX}")
    a(f"{lp}:")
    a("s_mov_b32 s49, 0")
    a(f"s_atomic_add s49, s[14:15], s{soff} glc")
    a("s_sub_u32 s39, s39, 1")
    a("s_waitcnt lgkmcnt(0)")
    a(f"s_cmp_ge_u32 s49, {need}")
    a(f"s_cbranch_scc1 {ok}")
    if env("POLL_SLEEP", 2):
        a(f"s_sleep {env('POLL_SLEEP', 2)}")
    a("s_cmp_lg_u32 s39, 0")
    a(f"s_cbranch_scc1 {lp}")
    a(f"{ok}:")


def gen_first(a):
    name = "first_kernel"
    XB_ = 528
    XT = 64 * XB_
    W0 = 2 * XT
    NSW, WCH, NC = 5, 12288, 16
    P0 = W0 + NSW * WCH
    lds_total = P0 + 32768
    assert lds_total <= LDS_MAX
    kernel_header(a, name)
    done = a.label("done")
    a("s_cmp_ge_u32 s2, 256")
    a(f"s_cbranch_scc1 {done}")
    a(f"s_load_dwordx4 s[64:67], s[0:1], {KA_X}")
    a(f"s_load_dwordx2 s[68:69], s[0:1], {KA_WO}")
    a(f"s_load_dwordx4 s[72:75], s[0:1], {KA_WG}")
    a(f"s_load_dwordx2 s[76:77], s[0:1], {KA_WD}")
    a(f"s_load_dwordx2 s[12:13], s[0:1], {KA_WS}")
    a("v_lshrrev_b32 v1, 6, v0")
    a("v_and_b32 v0, 63, v0")
    a(f"v_readfirstlane_b32 s{S_WAVE}, v1")
    a(f"s_and_b32 s{S_XCD}, s2, 7")
    a(f"s_lshr_b32 s{S_IDX}, s2, 3")
    a(f"s_and_b32 s{S_TT64}, s{S_IDX}, 3")
    a(f"s_lshl_b32 s19, s{S_XCD}, 2")
    a(f"s_add_u32 s{S_TT64}, s{S_TT64}, s19")
    a(f"s_lshl_b32 s{S_TT64}, s{S_TT64}, 1")
    a(f"s_lshr_b32 s{S_NT64}, s{S_IDX}, 2")
    a(f"s_mov_b32 s{S_IT}, 0")
    a(f"v_lshlrev_b32 v{V_L16}, 4, v0")
    a(f"v_lshlrev_b32 v{V_L4}, 2, v0")
    if STAMP:
        a(f"v_mov_b32 v{V_STAMP}, 0")
        a(f"v_mov_b32 v{V_STAMP+1}, 0")
    R = Regs(V_FREE)
    vD, vT0, vT1, vXW = R.alloc(), R.alloc(), R.alloc(), R.alloc()
    X = R.alloc(32)
    ST = R.alloc(16)
    U = R.alloc(16)
    a(f"s_lshl_b32 s19, s{S_TT64}, 15")
    a(f"s_lshl_b32 s20, s{S_WAVE}, 13")
    a("s_add_u32 s19, s19, s20")
    a("s_add_u32 s20, s19, 4096")
    a(f"v_lshrrev_b32 v{vT0}, 3, v0")
    a(f"v_bfe_u32 v{vT1}, v0, 4, 1")
    a(f"v_lshlrev_b32 v{vT1}, 2, v{vT1}")
    a(f"v_and_b32 v{vD}, 7, v0")
    a(f"v_xor_b32 v{vD}, v{vD}, v{vT1}")
    a(f"v_lshlrev_b32 v{vD}, 4, v{vD}")
    a("s_waitcnt lgkmcnt(0)")
    srd(a, 8, 64, 65, 2048 * 512 * 2)
    for r in range(8):
        a(f"buffer_load_dwordx4 {vr(X+4*r,4)}, v{V_L16}, s[8:11], s{19 + r//4} offen offset:{(r%4)*1024}")
    srd(a, 4, 12, 13, WS_END)
    stamp(a, 31)
    a(f"s_and_b32 s50, s{S_WAVE}, 3")
    l_gu, l_o, l_d, l_go = [a.label(x) for x in ("gu", "o", "d", "go")]
    a("s_cmp_ge_u32 s2, 176")
    a(f"s_cbranch_scc1 {l_d}")
    a("s_cmp_ge_u32 s2, 160")
    a(f"s_cbranch_scc1 {l_o}")
    a("s_cmp_ge_u32 s2, 48")
    a(f"s_cbranch_scc1 {l_gu}")
    srd(a, 24, 66, 67, 512 * 1536 * 2)
    srd(a, 28, 66, 67, 512 * 1536 * 2)
    a("s_and_b32 s51, s2, 3")
    a("s_lshr_b32 s52, s2, 2")
    a("s_mov_b32 s32, 3072")
    a("s_lshl_b32 s33, s52, 8")
    a("s_add_u32 s34, s33, 128")
    a("s_mov_b32 s35, 0")
    a("s_lshl_b32 s53, s52, 2")
    a("s_add_u32 s53, s53, s50")
    a("s_and_b32 s54, s53, 15")
    a(f"s_mul_i32 s38, s54, {99*1024}")
    a("s_lshr_b32 s54, s53, 4")
    a("s_lshl_b32 s54, s54, 10")
    a("s_add_u32 s38, s38, s54")
    assert WS_WQKV == 0
    a("s_mov_b32 s37, 3072")
    a("s_mov_b32 s55, 1")
    a(f"s_branch {l_go}")
    a(f"{l_gu}:")
    srd(a, 24, 72, 73, 512 * 1792 * 2)
    srd(a, 28, 74, 75, 512 * 1792 * 2)
    a("s_sub_u32 s53, s2, 48")
    a("s_and_b32 s51, s53, 3")
    a("s_lshr_b32 s52, s53, 2")
    a("s_mov_b32 s32, 3584")
    a("s_lshl_b32 s33, s52, 7")
    a("s_mov_b32 s34, s33")
    a("s_mov_b32 s35, 1")
    a("s_lshl_b32 s53, s52, 2")
    a("s_add_u32 s53, s53, s50")
    a("s_mul_i32 s54, s53, 9363")
    a("s_lshr_b32 s54, s54, 16")
    a(f"s_mul_i32 s38, s54, {224*1024}")
    a("s_lshl_b32 s54, s53, 10")
    a("s_add_u32 s38, s38, s54")
    a(f"s_add_u32 s38, s38, {WS_WGU:#x}")
    a("s_mov_b32 s37, 7168")
    a("s_mov_b32 s55, 1")
    a(f"s_branch {l_go}")
    for lab, first, lo, nbytes, wnt, wbase in ((l_o, 160, 68, 512 * 512 * 2, 64 * 1024, WS_WO),
                                               (l_d, 176, 76, 1792 * 512 * 2, 224 * 1024, WS_WD)):
        a(f"{lab}:")
        srd(a, 24, lo, lo + 1, nbytes)
        srd(a, 28, lo, lo + 1, nbytes)
        a(f"s_sub_u32 s53, s2, {first}")
        a("s_lshr_b32 s51, s53, 2")
        a("s_and_b32 s52, s53, 3")
        a("s_mov_b32 s32, 1024")
        a("s_lshl_b32 s33, s52, 8")
        a("s_add_u32 s34, s33, 128")
        a("s_mov_b32 s35, 0")
        a("s_lshl_b32 s53, s52, 2")
        a("s_add_u32 s53, s53, s50")
        a("s_lshr_b32 s54, s53, 1")
        a(f"s_mul_i32 s38, s54, {wnt}")
        a("s_and_b32 s54, s53, 1")
        a("s_lshl_b32 s54, s54, 10")
        a("s_add_u32 s38, s38, s54")
        a(f"s_add_u32 s38, s38, {wbase:#x}")
        a("s_mov_b32 s37, 2048")
        a("s_mov_b32 s55, 0")
        if lab == l_o:
            a(f"s_branch {l_go}")
    a(f"{l_go}:")
    a("s_lshl_b32 s54, s37, 3")
    a("s_mul_i32 s54, s54, s51")
    a("s_add_u32 s36, s38, s54")
    a("s_lshl_b32 s54, s37, 5")
    a("s_add_u32 s38, s38, s54")
    srd(a, 20, 66, 67, 512 * 1536 * 2)

    def layernorm(dma):
        ops = []
        for r in range(8):
            ops.append(f"v_mov_b32 v{ST+r}, 0")
            ops.append(f"v_mov_b32 v{ST+8+r}, 0")
        pre = len(ops)
        for r in range(8):
            ops.append(("wait", r))
            for i in range(4):
                ops.append(f"v_dot2c_f32_bf16 v{ST+r}, s49, v{X+4*r+i}")
                ops.append(f"v_dot2c_f32_bf16 v{ST+8+r}, v{X+4*r+i}, v{X+4*r+i}")
        ops.append("s_nop 2")
        for b in (ST, ST + 8):
            for r in range(4):
                ops.append(f"v_permlane32_swap_b32 v{b+r}, v{b+r+4}")
        for b in (ST, ST + 8):
            for r in range(4):
                ops.append(f"v_add_f32 v{b+r}, v{b+r}, v{b+r+4}")
        ops.append("s_nop 1")
        for b in (ST, ST + 8):
            for r in range(2):
                ops.append(f"v_permlane16_swap_b32 v{b+r}, v{b+r+2}")
        for b in (ST, ST + 8):
            for r in range(2):
                ops.append(f"v_add_f32 v{b+r}, v{b+r}, v{b+r+2}")
        for d in ("row_ror:8", "row_ror:4", "quad_perm:[2,3,0,1]", "quad_perm:[1,0,3,2]"):
            for v in (ST, ST + 1, ST + 8, ST + 9):
                ops.append(f"v_add_f32_dpp v{v}, v{v}, v{v} {d} row_mask:0xf bank_mask:0xf")
        for r in range(2):
            ops.append(f"v_mul_f32 v{ST+r}, {f32bits(-1.0/512):#x}, v{ST+r}")
            ops.append(f"v_mul_f32 v{ST+8+r}, {f32bits(1.0/512):#x}, v{ST+8+r}")
        for r in range(2):
            ops.append(f"v_fma_f32 v{ST+8+r}, -v{ST+r}, v{ST+r}, v{ST+8+r}")
        for r in range(2):
            ops.append(f"v_max_f32 v{ST+8+r}, 0, v{ST+8+r}")
        for r in range(2):
            ops.append(f"v_add_f32 v{ST+8+r}, {f32bits(1e-5):#x}, v{ST+8+r}")
        for r in range(2):
            ops.append(f"v_rsq_f32 v{ST+8+r}, v{ST+8+r}")
        ops.append("s_nop 0")
        for r in range(2):
            ops.append(f"v_mul_f32 v{ST+r}, v{ST+r}, v{ST+8+r}")
        ops.append("s_nop 0")
        for r in range(8):
            ops.append(f"v_readlane_b32 s{78+2*r}, v{ST+8+(r&1)}, {16*(r>>1)}")
            ops.append(f"v_readlane_b32 s{79+2*r}, v{ST+(r&1)}, {16*(r>>1)}")
        for r in range(8):
            u = U + 8 * (r & 1)
            for i in range(4):
                ops.append(f"v_lshlrev_b32 v{u+2*i}, 16, v{X+4*r+i}")
                ops.append(f"v_and_b32 v{u+2*i+1}, 0xffff0000, v{X+4*r+i}")
            for i in range(4):
                ops.append(f"v_pk_fma_f32 {vr(u+2*i,2)}, {vr(u+2*i,2)}, s[{78+2*r}:{79+2*r}], s[{78+2*r}:{79+2*r}] op_sel:[0,0,1] op_sel_hi:[1,0,1]")
            for i in range(4):
                ops.append(f"v_cvt_pk_bf16_f32 v{X+4*r+i}, v{u+2*i}, v{u+2*i+1}")
            ops.append(f"ds_write_b128 v{vXW}, {vr(X+4*r,4)} offset:{r*16}")
        dma = list(dma)
        npre = env("K1_PRE", 4)
        issued = 0
        for _ in range(min(npre, len(dma))):
            a(dma.pop(0)); issued += 1
        body = len(ops) - pre
        step = max(1, (body - 10) // max(1, len(dma))) if dma else 0
        k = 0
        for j, op in enumerate(ops):
            if isinstance(op, tuple):
                a(f"s_waitcnt vmcnt({7 - op[1] + issued})")
            else:
                a(op)
            if j >= pre and dma:
                k += 1
                if k % step == 0:
                    a(dma.pop(0)); issued += 1
        while dma:
            a(dma.pop(0)); issued += 1

    a("s_mov_b32 s49, 0x3f803f80")
    a(f"s_lshr_b32 s39, s{S_WAVE}, 2")
    a(f"s_mul_i32 s39, s39, {XT}")
    a("s_lshl_b32 s54, s50, 7")
    a("s_add_u32 s39, s39, s54")
    a(f"v_mul_u32_u24 v{vXW}, {XB_}, v0")
    a(f"v_add_u32 v{vXW}, s39, v{vXW}")
    comp = a.label("k1_comp")
    a(f"s_cmp_lt_u32 s{S_WAVE}, 4")
    a(f"s_cbranch_scc1 {comp}")
    a(f"v_mul_u32_u24 v{vT0}, 3072, v{vT0}")
    a(f"v_add_u32 v{vD}, v{vD}, v{vT0}")
    a(f"s_mul_i32 s56, s50, {8*3072}")
    a(f"s_lshl_b32 s54, s{S_NT64}, 7")
    a("s_add_u32 s56, s56, s54") if not STAMP else None
    SW = 56 if not STAMP else 62
    if STAMP:
        a("s_add_u32 s62, s56, s54")
    a("s_lshl_b32 s63, s50, 10")
    a(f"s_add_u32 s63, s63, {W0}")
    def w_instr(slot, seg, last):
        t = f"s_add_u32 s54, s63, {slot*WCH + seg*3072}\ns_mov_b32 m0, s54\ns_nop 0\n"
        t += f"buffer_load_dwordx4 v{vD}, s[20:23], s{SW} offen offset:{seg*1024} lds"
        if last:
            t += f"\ns_add_u32 s{SW}, s{SW}, {32*3072}"
        return t
    layernorm([w_instr(c, sg, sg == 2) for c in range(NSW) for sg in range(3)])
    vP, vC, F = R.alloc(), R.alloc(), X
    a(f"v_lshrrev_b32 v{vT0}, 5, v0")
    a(f"v_bfe_u32 v{vT1}, v0, 2, 2")
    a(f"v_lshl_add_u32 v{vP}, v{vT0}, 3, v{vT1}")
    a(f"v_lshlrev_b32 v{vP}, 7, v{vP}")
    a(f"v_and_b32 v{vT0}, 1, v0")
    a(f"v_bfe_u32 v{vT1}, v0, 1, 1")
    a(f"v_lshl_add_u32 v{vT0}, v{vT0}, 1, v{vT1}")
    a(f"v_lshl_add_u32 v{vP}, v{vT0}, 3, v{vP}")
    a("s_cmp_eq_u32 s35, 0")
    a("s_cselect_b32 s52, 5, 14")
    a("s_lshl_b32 s53, s50, 5")
    a("s_and_b32 s54, s50, 1")
    a("s_lshl_b32 s54, s54, 6")
    a("s_lshr_b32 s39, s50, 1")
    a("s_lshl_b32 s39, s39, 14")
    a("s_add_u32 s54, s54, s39")
    a("s_cmp_eq_u32 s35, 0")
    a("s_cselect_b32 s53, s54, s53")
    a(f"v_bfe_u32 v{vT0}, v0, 4, 1")
    a(f"v_lshlrev_b32 v{vT0}, s52, v{vT0}")
    a(f"v_add_u32 v{vT0}, s53, v{vT0}")
    a(f"v_bfe_u32 v{vT1}, v0, 3, 1")
    a(f"v_lshlrev_b32 v{vT1}, 6, v{vT1}")
    a(f"v_xor_b32 v{vT0}, v{vT0}, v{vT1}")
    a(f"v_add3_u32 v{vP}, v{vP}, v{vT0}, s47") if False else None
    a(f"v_add_u32 v{vP}, v{vP}, v{vT0}")
    a(f"v_add_u32 v{vP}, {P0}, v{vP}")
    a(f"v_mov_b32 v{vC}, 0")
    a("s_cmp_ge_u32 s2, 232")
    a(f"s_cselect_b32 s6, 0, {WS_END:#x}")
    stamp(a, 0)
    younger = 0
    for c in range(NC):
        last_issued = min(NC - 1, NSW - 1 + max(0, c - 1))
        a(f"s_waitcnt vmcnt({(last_issued - c)*3 + younger}) lgkmcnt(0)")
        a("s_barrier")
        if c == 0:
            stamp(a, 1)
        if c >= 1 and c - 1 + NSW < NC:
            for sg in range(3):
                a(w_instr((c - 1) % NSW, sg, sg == 2))
        c0 = NC - NSW
        if c0 <= c < c0 + 4:
            for k in (2 * (c - c0), 2 * (c - c0) + 1):
                a(f"ds_read_b64_tr_b16 {vr(F+4*k,2)}, v{vP} offset:{k*2048}")
                a(f"ds_read_b64_tr_b16 {vr(F+4*k+2,2)}, v{vP} offset:{k*2048+512}")
            for j, k in enumerate((2 * (c - c0), 2 * (c - c0) + 1)):
                a(f"s_waitcnt lgkmcnt({2 - 2*j})")
                a(f"buffer_store_dwordx4 {vr(F+4*k,4)}, v{V_L16}, s[4:7], s36 offen{SC}")
                a("s_add_u32 s36, s36, s37")
                younger += 1
    stamp(a, 2)
    nocs, zer = a.label("nocs"), a.label("zero")
    a("s_cmp_eq_u32 s55, 0")
    a(f"s_cbranch_scc1 {nocs}")
    for k in range(32):
        a(f"v_dot2c_f32_bf16 v{vC}, s49, v{F+k}")
    a("s_lshr_b32 s54, s51, 1")
    a("s_lshl_b32 s54, s54, 9")
    a("s_add_u32 s38, s38, s54")
    a(f"v_mov_b32 v{vT0}, v{vC}")
    a("s_and_b32 s54, s51, 1")
    a("s_lshl_b32 s54, s54, 3")
    a(f"v_permlane32_swap_b32 v{vC}, v{vT0}")
    a("s_add_u32 s38, s38, s54")
    a(f"v_add_f32 v{vC}, v{vC}, v{vT0}")
    a(f"v_cvt_pk_bf16_f32 v{vT0}, v{vC}, v{vC}")
    a(f"v_lshlrev_b32 v{vT0}, 16, v{vT0}")
    a(f"v_sub_f32 v{vT0}, v{vC}, v{vT0}")
    a(f"v_cvt_pk_bf16_f32 v{U}, v{vC}, v{vT0}")
    a(f"v_mov_b32 v{U+1}, v{U}")
    a("s_mov_b32 exec_hi, 0")
    a(f"buffer_store_dwordx2 {vr(U,2)}, v{V_L16}, s[4:7], s38 offen{SC}")
    a("s_mov_b64 exec, -1")
    a(f"{nocs}:")
    a(f"s_mov_b32 s6, {WS_END:#x}")
    a("s_cmp_lg_u32 s2, 255")
    a(f"s_cbranch_scc1 {zer}")
    a.c("reset the hand-off counters: 256 words, 256 B apart")
    a(f"v_lshlrev_b32 v{vT0}, 8, v0")
    a(f"v_mov_b32 v{vT1}, 0")
    a("s_lshl_b32 s54, s50, 14")
    a(f"s_add_u32 s54, s54, {WS_FLAG:#x}")
    a(f"buffer_store_dword v{vT1}, v{vT0}, s[4:7], s54 offen")
    a(f"{zer}:")
    if STAMP:
        a("s_waitcnt vmcnt(0)")
        stamp(a, 3)
        stamp_flush(a, 1)
    a("s_endpgm")
    a(f"{comp}:")
    a(f"v_mul_lo_u32 v{vT0}, v{vT0}, s32")
    a(f"v_add_u32 v{vD}, v{vD}, v{vT0}")
    a("s_lshl_b32 s54, s51, 2")
    a("s_add_u32 s54, s54, s50")
    a("s_lshl_b32 s54, s54, 5")
    a("s_mul_i32 s54, s54, s32")
    a("s_add_u32 s33, s33, s54")
    a("s_add_u32 s34, s34, s54")
    a("s_lshl_b32 s53, s32, 3")
    a("s_lshl_b32 s63, s50, 12")
    a(f"s_add_u32 s63, s63, {P0}")
    def p_instr(g8, strip):
        so = 33 + strip
        t = f"s_add_u32 s54, s63, {strip*16384 + g8*1024}\ns_mov_b32 m0, s54\ns_nop 0\n"
        t += f"buffer_load_dwordx4 v{vD}, s[{24+4*strip}:{27+4*strip}], s{so} offen lds\ns_add_u32 s{so}, s{so}, s53"
        return t
    layernorm([p_instr(g8, st) for g8 in range(4) for st in range(2)])
    R2 = Regs(V_FREE + 4)
    vA, vW0, vW = R2.alloc(), R2.alloc(), R2.alloc()
    acc = [R2.alloc(16) for _ in range(3)]
    sets = [(R2.alloc(4), [R2.alloc(4) for _ in range(3)]) for _ in range(2)]
    a("s_waitcnt lgkmcnt(0)")
    a(f"s_and_b32 s24, s{S_WAVE}, 1")
    a(f"s_lshr_b32 s25, s{S_WAVE}, 1")
    a(f"s_mul_i32 s26, s24, {XT}")
    a(f"v_lshrrev_b32 v{vT0}, 5, v0")
    a(f"v_mul_u32_u24 v{vA}, {XB_}, v{vT0}")
    a(f"v_and_b32 v{vT1}, 31, v0")
    a(f"v_lshl_add_u32 v{vA}, v{vT1}, 4, v{vA}")
    a(f"v_add_u32 v{vA}, s26, v{vA}")
    a(f"v_bfe_u32 v{vT1}, v0, 2, 2")
    a(f"v_lshl_add_u32 v{vW0}, v{vT0}, 3, v{vT1}")
    a(f"v_lshlrev_b32 v{vW0}, 7, v{vW0}")
    a(f"v_and_b32 v{vT0}, 1, v0")
    a(f"v_bfe_u32 v{vT1}, v0, 1, 1")
    a(f"v_lshl_add_u32 v{vT0}, v{vT0}, 1, v{vT1}")
    a(f"v_lshl_add_u32 v{vW0}, v{vT0}, 3, v{vW0}")
    a(f"v_bfe_u32 v{vT0}, v0, 4, 1")
    a(f"v_lshl_add_u32 v{vW0}, v{vT0}, 5, v{vW0}")
    a(f"v_bfe_u32 v{vT0}, v0, 3, 1")
    a(f"v_xor_b32 v{vT0}, s25, v{vT0}")
    a(f"v_lshl_add_u32 v{vW0}, v{vT0}, 6, v{vW0}")
    a(f"v_add_u32 v{vW0}, {W0}, v{vW0}")
    a(f"v_mov_b32 v{vW}, v{vW0}")
    for t in range(3):
        for i in range(16):
            a(f"v_mov_b32 v{acc[t]+i}, 0")
    a("s_mov_b32 s37, 0")

    def read_list(ks, par):
        xa, wfs = sets[par]
        out = [f"ds_read_b128 {vr(xa,4)}, v{vA} offset:{ks*2*XB_}"]
        for t in range(3):
            for jj in range(2):
                out.append(f"ds_read_b64_tr_b16 {vr(wfs[t]+2*jj,2)}, v{vW} offset:{t*4096 + ks*2048 + jj*512}")
        return out

    def step(par, nxt, boundary, first_drain=False):
        xa, wfs = sets[par]
        issued = 0
        landed = False
        plan = [1, 4, 7] if not boundary else [0, 4, 7]
        for t in range(3):
            if boundary and t == 1:
                a("s_waitcnt lgkmcnt(0)" + (" vmcnt(0)" if first_drain else ""))
                a("s_barrier")
                landed = True
            while issued < min(plan[t], len(nxt)):
                a(nxt[issued]); issued += 1
            if not landed:
                a(f"s_waitcnt lgkmcnt({issued + 7 - (3 + 2*t)})")
            if t == 2:
                a(f"{MFMA} {vr(acc[t],16)}, {vr(xa,4)}, {vr(wfs[t],4)}, {vr(acc[t],16)}")
            else:
                a(f"{MFMA} {vr(acc[t],16)}, {vr(wfs[t],4)}, {vr(xa,4)}, {vr(acc[t],16)}")
            if boundary and t == 0:
                a(f"s_add_u32 s37, s37, {WCH}")
                a(f"s_cmp_eq_u32 s37, {NSW*WCH}")
                a("s_cselect_b32 s37, 0, s37")
                a(f"v_add_u32 v{vW}, s37, v{vW0}")
                a(f"v_add_u32 v{vA}, {4*XB_}, v{vA}")

    stamp(a, 0)
    a("s_barrier")
    stamp(a, 1)
    for r in read_list(0, 0):
        a(r)
    lp = a.label("k1loop")
    a(f"s_mov_b32 s35, {NC-NSW-1}")
    a(f"s_mov_b32 s36, {NSW}")
    a(f"{lp}:")
    step(0, read_list(1, 1), False)
    step(1, read_list(0, 0), True)
    a("s_sub_u32 s35, s35, 1")
    a("s_cmp_lg_u32 s35, 0")
    a(f"s_cbranch_scc1 {lp}")
    a("s_waitcnt vmcnt(0)")
    a("s_mov_b32 s35, s36")
    a("s_mov_b32 s36, 0")
    a("s_cmp_lg_u32 s35, 0")
    a(f"s_cbranch_scc1 {lp}")
    step(0, read_list(1, 1), False)
    step(1, [], False)
    stamp(a, 2)
    ot = sets[0][0]
    a(f"s_lshl_b32 s26, s{S_NT64}, 1")
    a("s_add_u32 s26, s26, s25")
    a("s_lshl_b32 s26, s26, 17")
    a(f"s_add_u32 s27, s{S_TT64}, s24")
    a("s_lshl_b32 s27, s27, 10")
    a("s_add_u32 s26, s26, s27")
    a(f"v_bfe_u32 v{vT0}, v0, 4, 1")
    a(f"v_lshlrev_b32 v{vT0}, 16, v{vT0}")
    a(f"v_lshrrev_b32 v{vT1}, 5, v0")
    a(f"v_lshl_add_u32 v{vT0}, v{vT1}, 8, v{vT0}")
    a(f"v_and_b32 v{vT1}, 15, v0")
    a(f"v_lshl_add_u32 v{vT0}, v{vT1}, 4, v{vT0}")
    a(f"s_mov_b32 s28, {f32bits(QSCALE):#x}")
    a("s_mov_b32 s29, s28")
    K1SC = SC if env("K1_SC1", 1) else ""
    for t, base in ((0, B_Q), (1, B_K), (2, B_V)):
        for hh in range(2):
            o = ot + 4 * (2 * t + hh)
            for i in range(4):
                r = acc[t] + 8 * hh + 2 * i
                if t == 0:
                    a(f"v_pk_mul_f32 {vr(r,2)}, {vr(r,2)}, s[28:29]")
                a(f"v_cvt_pk_bf16_f32 v{o+i}, v{r}, v{r+1}")
            if t < 2:
                a(f"s_add_u32 s27, s26, {WS_IT0 + base + hh*65536:#x}")
                a(f"buffer_store_dwordx4 {vr(o,4)}, v{V_L16}, s[4:7], s27 offen{K1SC}")
            else:
                a(f"s_add_u32 s27, s26, {WS_IT0 + base:#x}")
                a(f"buffer_store_dwordx4 {vr(o,4)}, v{vT0}, s[4:7], s27 offen offset:{hh*512}{K1SC}")
    if STAMP:
        stamp(a, 3)
        a("s_waitcnt vmcnt(0)")
        stamp(a, 4)
        stamp_flush(a, 1)
    a(f"{done}:")
    a("s_endpgm")
    return (name, max(R.n, R2.n), 256, 512, lds_total)


class Cfg:
    def __init__(self, **kw):
        self.__dict__.update(kw)
        for k in ("DA", "NSA", "NSW", "PRE"):
            e = os.environ.get(self.name.upper() + "_" + k)
            if e:
                setattr(self, k, int(e))

def gemm_phase(a, g):
    NA, NW, NT, G, KC = g.NA, g.NW, g.NT, g.G, g.KC
    NC = g.KST // KC
    NSA, NSW, DA = min(g.NSA, NC), min(g.NSW, NC), g.DA
    ACH = NA * KC * 1024
    assert ACH == 8192
    WCH = NW * KC * 1024
    LW = NW * KC // 2
    ln = g.kind in ("qkv", "gu")
    A0 = 0
    W0 = NSA * ACH
    CS0 = W0 + NSW * WCH
    SCR = CS0 + (NW * 1024 if ln else 0)
    lds_total = SCR + (1024 if g.kind == "qkv" else 0)
    assert lds_total <= LDS_MAX, (g.name, lds_total)
    assert NSA >= DA + 1 or NSA == NC
    s_tt, s_nt = (S_TT128, S_NT128) if NA == 4 else (S_TT64, S_NT64)
    comp, wload, end = a.label(g.name + "_comp"), a.label(g.name + "_wl"), a.label(g.name + "_end")
    SB = g.sb
    a.c(f"================ phase {g.name} ================")
    a(f"s_cmp_lt_u32 s{S_WAVE}, 4")
    a(f"s_cbranch_scc1 {comp}")
    a(f"s_cmp_ge_u32 s{S_WAVE}, 6")
    a(f"s_cbranch_scc1 {wload}")
    idle = a.label(g.name + "_idle")
    a(f"s_cmp_eq_u32 s{S_WAVE}, 5")
    a(f"s_cbranch_scc1 {idle}")
    a(f"s_mul_i32 s22, s{s_tt}, {g.KST*1024}")
    a(f"s_add_u32 s22, s22, s{S_BASE}")
    a(f"s_add_u32 s22, s22, {g.ABUF:#x}")
    a("s_mov_b32 s26, 0")
    nopoll = a.label("nopoll")
    a(f"s_lshr_b32 s23, s{s_tt}, {g.FIN_SH}")
    a("s_lshl_b32 s23, s23, 8")
    a(f"s_add_u32 s23, s23, s{S_FL}")
    a(f"s_add_u32 s23, s23, {g.FIN:#x}")
    a("s_waitcnt vmcnt(0)")
    a("s_barrier")
    stamp(a, SB)
    handoff(a, 23, g.NEED)
    a(f"{nopoll}:")
    stamp(a, SB + 1)

    def issueA():
        a("s_mov_b32 m0, s26")
        a("s_add_u32 s28, s26, 4096")
        for i in range(4):
            a(f"buffer_load_dwordx4 v{V_L16}, s[4:7], s22 offen offset:{i*1024}{SC} lds")
        a("s_mov_b32 m0, s28")
        a("s_add_u32 s22, s22, 4096")
        for i in range(4):
            a(f"buffer_load_dwordx4 v{V_L16}, s[4:7], s22 offen offset:{i*1024}{SC} lds")
        a("s_add_u32 s22, s22, 4096")
        a(f"s_add_u32 s26, s26, {ACH}")
        a(f"s_cmp_eq_u32 s26, {NSA*ACH}")
        a("s_cselect_b32 s26, 0, s26")
    assert DA * 8 <= 63
    for _ in range(DA):
        issueA()
    if g.kind == "qkv":
        a(f"s_lshl_b32 s{S_SIG}, s{s_nt}, 8")
    else:
        a(f"s_lshr_b32 s{S_SIG}, s{s_tt}, 2")
        a(f"s_lshl_b32 s{S_SIG}, s{S_SIG}, 8")
    a(f"s_add_u32 s{S_SIG}, s{S_SIG}, s{S_FL}")
    a(f"s_add_u32 s{S_SIG}, s{S_SIG}, {g.FOUT:#x}")
    lp = a.label("asteady")
    a(f"s_mov_b32 s30, {NC-DA}")
    a(f"{lp}:")
    a(f"s_waitcnt vmcnt({(DA-1)*8})")
    a("s_barrier")
    issueA()
    a("s_sub_u32 s30, s30, 1")
    a("s_cmp_lg_u32 s30, 0")
    a(f"s_cbranch_scc1 {lp}")
    for c in range(NC - DA, NC):
        a(f"s_waitcnt vmcnt({(NC-1-c)*8})")
        if c == NC - 1:
            stamp(a, SB + 2)
        a("s_barrier")
    a("s_barrier")
    a(f"s_branch {end}")
    a(f"{idle}:")
    a("s_waitcnt vmcnt(0)")
    a("s_barrier")
    def barriers(n):
        if n > 0:
            lp = a.label("idle")
            a(f"s_mov_b32 s30, {n}")
            a(f"{lp}:")
            a("s_barrier")
            a("s_sub_u32 s30, s30, 1")
            a("s_cmp_lg_u32 s30, 0")
            a(f"s_cbranch_scc1 {lp}")
    if g.pf is None or not env("PF", 1):
        barriers(NC + 1)
    else:
        base, xn_stride, share, ninstr, start = g.pf
        start = env(g.name.upper() + "_PFSTART", start)
        a.c("wave 5: pull this workgroup's share of the next weights into L2")
        a(f"s_mul_i32 s22, s{S_IDX}, {share}")
        if xn_stride:
            a(f"s_and_b32 s23, s{S_XCD}, 1")
            a(f"s_mul_i32 s23, s23, {xn_stride}")
            a("s_add_u32 s22, s22, s23")
        if base:
            a(f"s_add_u32 s22, s22, {base:#x}")
        barriers(start)
        lp = a.label("pf")
        a(f"s_mov_b32 s30, {ninstr}")
        a(f"{lp}:")
        a(f"buffer_load_dword v{V_PF}, v{V_L128}, s[4:7], s22 offen")
        a("s_add_u32 s22, s22, 8192")
        a("s_barrier")
        a("s_sub_u32 s30, s30, 1")
        a("s_cmp_lg_u32 s30, 0")
        a(f"s_cbranch_scc1 {lp}")
        assert NC + 1 - start - ninstr >= 0
        barriers(NC + 1 - start - ninstr)
    a(f"s_branch {end}")
    a(f"{wload}:")
    a(f"s_and_b32 s19, s{S_WAVE}, 1")
    a(f"s_mul_i32 s25, s19, {LW*1024}")
    a(f"s_mul_i32 s23, s{s_nt}, {g.WNT}")
    a(f"s_add_u32 s23, s23, {g.WBASE:#x}")
    stamp(a, SB)
    if ln:
        a.c("column-sum fragments (both loaders write the same bytes)")
        a(f"s_add_u32 s29, s23, {32*NW*1024}")
        n = 0
        while n < NW:
            a(f"s_mov_b32 m0, {CS0 + n*1024}")
            a("s_nop 0")
            for i in range(min(4, NW - n)):
                a(f"buffer_load_dwordx4 v{V_L16}, s[4:7], s29 offen offset:{i*1024} lds")
            n += 4
            if n < NW:
                a("s_add_u32 s29, s29, 4096")
    a("s_add_u32 s23, s23, s25")
    a(f"s_add_u32 s25, s25, {W0}")
    a("s_mov_b32 s26, s25")
    a(f"s_add_u32 s27, s25, {NSW*WCH}")

    def issueW():
        a("s_mov_b32 m0, s26")
        a("s_add_u32 s28, s26, 4096")
        for i in range(min(LW, 4)):
            a(f"buffer_load_dwordx4 v{V_L16}, s[4:7], s23 offen offset:{i*1024} lds")
        if LW > 4:
            a("s_mov_b32 m0, s28")
            a("s_add_u32 s29, s23, 4096")
            for i in range(LW - 4):
                a(f"buffer_load_dwordx4 v{V_L16}, s[4:7], s29 offen offset:{i*1024} lds")
        a(f"s_add_u32 s23, s23, {WCH}")
        a(f"s_add_u32 s26, s26, {WCH}")
        a("s_cmp_eq_u32 s26, s27")
        a("s_cselect_b32 s26, s25, s26")
    nb1 = min(NSW - 1, max(1, (env("WB1", 16) - (NW if ln else 0)) // LW))
    for n, last in ((nb1, False), (NSW - nb1, True)):
        lp = a.label("wpro")
        a(f"s_mov_b32 s30, {n}")
        a(f"{lp}:")
        issueW()
        a("s_sub_u32 s30, s30, 1")
        a("s_cmp_lg_u32 s30, 0")
        a(f"s_cbranch_scc1 {lp}")
        if not last:
            a(f"s_waitcnt vmcnt({nb1*LW + (NW if ln else 0)})")
            a("s_barrier")
    stamp(a, SB + 1)
    assert (NSW - 1) * LW <= 63
    a(f"s_waitcnt vmcnt({(NSW-1)*LW})")
    a("s_barrier")
    nst = NC - NSW
    if nst > 0:
        lp = a.label("wsteady")
        a(f"s_mov_b32 s30, {nst}")
        a(f"{lp}:")
        a(f"s_waitcnt vmcnt({(NSW-2)*LW})")
        a("s_barrier")
        issueW()
        a("s_sub_u32 s30, s30, 1")
        a("s_cmp_lg_u32 s30, 0")
        a(f"s_cbranch_scc1 {lp}")
    for c in range(nst + 1, NC):
        a(f"s_waitcnt vmcnt({(NC-1-c)*LW})")
        a("s_barrier")
    a("s_barrier")
    a(f"s_branch {end}")

    a(f"{comp}:")
    R = Regs(V_FREE)
    vA0, vW0, vA, vW = R.alloc(), R.alloc(), R.alloc(), R.alloc()
    vRstd, vX = R.alloc(), R.alloc()
    acc = [R.alloc(16) for _ in range(NT)]
    sets = [[(R.alloc(4), [R.alloc(4) for _ in range(NT)]) for _ in range(G)] for _ in range(2)]
    tmp = R.alloc(16)
    xc = R.alloc(4)
    if g.kind == "qkv":
        vRs = R.alloc(16)
    if g.kind == "res":
        a(f"s_and_b32 s24, s{S_WAVE}, 1")
        a(f"s_lshr_b32 s25, s{S_WAVE}, 1")
        a(f"s_lshl_b32 s33, s{s_nt}, 1")
        a("s_add_u32 s33, s33, s25")
    else:
        a(f"s_mov_b32 s24, s{S_WAVE}")
        a("s_mov_b32 s25, 0")
    a(f"s_add_u32 s31, s{s_tt}, s24")
    a("s_lshl_b32 s26, s24, 10")
    a(f"v_add_u32 v{vA0}, s26, v{V_L16}")
    a("s_lshl_b32 s26, s25, 10")
    a(f"s_add_u32 s26, s26, {W0}")
    a(f"v_add_u32 v{vW0}, s26, v{V_L16}")
    if ln:
        for t in range(NT):
            for i in range(16):
                a(f"v_mov_b32 v{acc[t]+i}, 0")
        a("s_lshl_b32 s36, s31, 12")
        a(f"s_add_u32 s36, s36, s{S_BASE}")
        a(f"s_add_u32 s36, s36, {g.STIN:#x}")
    else:
        for i in range(8):
            a(f"v_lshlrev_b32 v{acc[0]+2*i}, 16, v{V_RES+i}")
            a(f"v_and_b32 v{acc[0]+2*i+1}, 0xffff0000, v{V_RES+i}")

    SPC = KC // G
    nreads = G * (1 + NT)

    def read_list(step, par):
        out = []
        for gi in range(G):
            ks = step * G + gi
            xa, wfs = sets[par][gi]
            out.append(f"ds_read_b128 {vr(xa,4)}, v{vA} offset:{ks*NA*1024}")
            for t in range(NT):
                out.append(f"ds_read_b128 {vr(wfs[t],4)}, v{vW} offset:{(ks*NW + t)*1024}")
        return out

    def advance():
        a(f"s_add_u32 s34, s34, {ACH}")
        a(f"s_cmp_eq_u32 s34, {NSA*ACH}")
        a("s_cselect_b32 s34, 0, s34")
        a(f"v_add_u32 v{vA}, s34, v{vA0}")
        a(f"s_add_u32 s37, s37, {WCH}")
        a(f"s_cmp_eq_u32 s37, {NSW*WCH}")
        a("s_cselect_b32 s37, 0, s37")
        a(f"v_add_u32 v{vW}, s37, v{vW0}")

    fill = []
    def mfma(t, xa, wf):
        if g.swap[t]:
            a(f"{MFMA} {vr(acc[t],16)}, {vr(xa,4)}, {vr(wf,4)}, {vr(acc[t],16)}")
        else:
            a(f"{MFMA} {vr(acc[t],16)}, {vr(wf,4)}, {vr(xa,4)}, {vr(acc[t],16)}")
        for _ in range(min(3, len(fill))):
            a(fill.pop(0))

    def mfmas(par, nxt, pre=None):
        nm = G * NT
        issued = 0
        landed = False
        k = 0
        k0 = pre or 0
        for gi in range(G):
            xa, wfs = sets[par][gi]
            for t in range(NT):
                if pre is not None and k == pre:
                    a("s_waitcnt lgkmcnt(0)")
                    a("s_barrier")
                    landed = True
                if k >= k0:
                    want = min(len(nxt), -(-len(nxt) * (k - k0 + 1) // (nm - k0)))
                    if k == 0 and not landed:
                        want = min(want, 1)
                    while issued < want:
                        a(nxt[issued]); issued += 1
                if not landed:
                    done_needed = gi * (1 + NT) + 2 + t
                    n = issued + nreads - done_needed
                    a(f"s_waitcnt lgkmcnt({min(n, 15)})")
                mfma(t, xa, wfs[t])
                if pre is not None and k == 0:
                    advance()
                k += 1
        while issued < len(nxt):
            a(nxt[issued]); issued += 1

    a("s_mov_b32 s34, 0")
    a("s_mov_b32 s37, 0")
    a(f"v_mov_b32 v{vA}, v{vA0}")
    a(f"v_mov_b32 v{vW}, v{vW0}")
    a("s_waitcnt vmcnt(0)")
    stamp(a, SB)
    a("s_barrier")
    a("s_barrier")
    stamp(a, SB + 1)
    for r in read_list(0, 0):
        a(r)
    if ln:
        for i in range(4):
            a(f"buffer_load_dwordx4 {vr(tmp+4*i,4)}, v{V_L16}, s[4:7], s36 offen offset:{i*1024}{SC}")
    CPI = 1 if SPC % 2 == 0 else 2

    def chunk_body(par, last):
        for s in range(SPC):
            if s < SPC - 1:
                mfmas(par, read_list(s + 1, par ^ 1))
            elif not last:
                mfmas(par, read_list(0, par ^ 1), g.PRE)
            elif ln:
                wfs = sets[par ^ 1][0][1]
                mfmas(par, [f"ds_read_b128 {vr(wfs[t],4)}, v{vX} offset:{t*1024}" for t in range(NT)])
            else:
                mfmas(par, [])
            par ^= 1
        return par

    rem = g.PEEL
    nloop = (NC - rem) // CPI
    assert nloop * CPI + rem == NC
    lp = a.label("kloop")
    a(f"s_mov_b32 s35, {nloop}")
    a(f"{lp}:")
    par = 0
    for _ in range(CPI):
        par = chunk_body(par, False)
    assert par == 0
    a("s_sub_u32 s35, s35, 1")
    a("s_cmp_lg_u32 s35, 0")
    a(f"s_cbranch_scc1 {lp}")
    if ln:
        a.c("LayerNorm statistics -> (-mu) fragment and rstd, spread under the MFMAs")
        f = fill
        f.append("s_waitcnt vmcnt(0)")
        f.append(f"v_add_u32 v{vX}, {CS0}, v{V_L16}")
        n = 8
        while n > 1:
            n //= 2
            for p in range(n):
                f.append(f"v_add_f32 v{tmp+2*p}, v{tmp+2*p}, v{tmp+2*(p+n)}")
                f.append(f"v_add_f32 v{tmp+2*p+1}, v{tmp+2*p+1}, v{tmp+2*(p+n)+1}")
        f.append(f"v_mov_b32 v{tmp+2}, v{tmp}")
        f.append(f"v_mov_b32 v{tmp+3}, v{tmp+1}")
        f.append("s_nop 1")
        f.append(f"v_permlane32_swap_b32 v{tmp}, v{tmp+2}")
        f.append(f"v_permlane32_swap_b32 v{tmp+1}, v{tmp+3}")
        f.append(f"v_add_f32 v{tmp}, v{tmp}, v{tmp+2}")
        f.append(f"v_add_f32 v{tmp+1}, v{tmp+1}, v{tmp+3}")
        f.append(f"v_mul_f32 v{tmp}, {f32bits(-1.0/512):#x}, v{tmp}")
        f.append(f"v_mul_f32 v{tmp+1}, {f32bits(1.0/512):#x}, v{tmp+1}")
        f.append(f"v_fma_f32 v{tmp+1}, -v{tmp}, v{tmp}, v{tmp+1}")
        f.append(f"v_max_f32 v{tmp+1}, 0, v{tmp+1}")
        f.append(f"v_add_f32 v{tmp+1}, {f32bits(1e-5):#x}, v{tmp+1}")
        f.append(f"v_rsq_f32 v{vRstd}, v{tmp+1}")
        f.append(f"v_cvt_pk_bf16_f32 v{xc}, v{tmp}, v{tmp}")
        f.append(f"v_lshlrev_b32 v{tmp+2}, 16, v{xc}")
        f.append(f"v_sub_f32 v{tmp+2}, v{tmp}, v{tmp+2}")
        f.append(f"v_cvt_pk_bf16_f32 v{xc+1}, v{tmp+2}, v{tmp+2}")
        f.append(f"v_mov_b32 v{xc+2}, v{xc}")
        f.append(f"v_mov_b32 v{xc+3}, v{xc+1}")
    for i in range(rem):
        par = chunk_body(par, i == rem - 1)
    if ln:
        while fill:
            a(fill.pop(0))
        if g.kind == "qkv":
            a(f"s_lshl_b32 s26, s{S_WAVE}, 8")
            a(f"s_add_u32 s26, s26, {SCR}")
            a(f"v_add_u32 v{tmp+4}, s26, v{V_L4}")
            a(f"ds_write_b32 v{tmp+4}, v{vRstd}")
            a(f"v_lshrrev_b32 v{tmp+5}, 5, v0")
            a(f"v_lshl_add_u32 v{tmp+5}, v{tmp+5}, 4, s26")
        a("s_waitcnt lgkmcnt(0)")
        if g.kind == "qkv":
            for q in range(4):
                a(f"ds_read_b128 {vr(vRs+4*q,4)}, v{tmp+5} offset:{q*32}")
        else:
            a("s_nop 0")
        wfs = sets[par][0][1]
        for t in range(NT):
            mfma(t, xc, wfs[t])
        if g.kind == "qkv":
            a("s_waitcnt lgkmcnt(0)")
    EARLY = env("EARLY_END", 0)
    if EARLY:
        a("s_barrier")
    stamp(a, SB + 2)
    ot = sets[0][0][0]
    if g.kind == "qkv":
        a(f"s_lshl_b32 s26, s{s_nt}, 17")
        a("s_lshl_b32 s27, s31, 10")
        a("s_add_u32 s26, s26, s27")
        a(f"s_add_u32 s26, s26, s{S_BASE}")
        va = tmp + 8
        a(f"v_mul_f32 v{tmp+6}, {f32bits(QSCALE):#x}, v{vRstd}")
        a(f"v_bfe_u32 v{va}, v0, 4, 1")
        a(f"v_lshlrev_b32 v{va}, 16, v{va}")
        a(f"v_lshrrev_b32 v{va+1}, 5, v0")
        a(f"v_lshl_add_u32 v{va}, v{va+1}, 8, v{va}")
        a(f"v_and_b32 v{va+1}, 15, v0")
        a(f"v_lshl_add_u32 v{va}, v{va+1}, 4, v{va}")
        a("s_nop 1")
        for t, base, sc in ((0, B_Q, tmp + 6), (1, B_K, vRstd)):
            for hh in range(2):
                o = ot + 4 * (2 * t + hh)
                for i in range(4):
                    r = acc[t] + 8 * hh + 2 * i
                    a(f"v_mul_f32 v{r}, v{sc}, v{r}")
                    a(f"v_mul_f32 v{r+1}, v{sc}, v{r+1}")
                    a(f"v_cvt_pk_bf16_f32 v{o+i}, v{r}, v{r+1}")
                a(f"s_add_u32 s27, s26, {base + hh*65536:#x}")
                a(f"buffer_store_dwordx4 {vr(o,4)}, v{V_L16}, s[4:7], s27 offen{SC}")
        a(f"s_add_u32 s27, s26, {B_V:#x}")
        for hh in range(2):
            o = ot + 16 + 4 * hh
            for i in range(4):
                r = acc[2] + 8 * hh + 2 * i
                a(f"v_pk_mul_f32 {vr(r,2)}, {vr(vRs+8*hh+2*i,2)}, {vr(r,2)}")
                a(f"v_cvt_pk_bf16_f32 v{o+i}, v{r}, v{r+1}")
            a(f"buffer_store_dwordx4 {vr(o,4)}, v{va}, s[4:7], s27 offen offset:{hh*512}{SC}")
    elif g.kind == "gu":
        a("s_lshr_b32 s26, s31, 1")
        a(f"s_mul_i32 s26, s26, {112*2048}")
        a("s_and_b32 s27, s31, 1")
        a("s_lshl_b32 s27, s27, 10")
        a("s_add_u32 s26, s26, s27")
        a(f"s_mul_i32 s27, s{s_nt}, {7*2048}")
        a("s_add_u32 s26, s26, s27")
        a(f"s_add_u32 s26, s26, s{S_BASE}")
        a(f"s_add_u32 s26, s26, {B_H:#x}")
        a(f"v_mul_f32 v{tmp}, v{vRstd}, v{vRstd}")
        a(f"v_mov_b32 v{tmp+1}, v{tmp}")
        for t in range(NT):
            o = ot + 4 * t
            for i in range(4):
                r = acc[t] + 2 * i
                a(f"v_pk_mul_f32 {vr(r,2)}, {vr(r,2)}, {vr(r+8,2)}")
            for i in range(4):
                r = acc[t] + 2 * i
                a(f"v_pk_mul_f32 {vr(r,2)}, {vr(r,2)}, {vr(tmp,2)}")
            for i in range(4):
                r = acc[t] + 2 * i
                a(f"v_cvt_pk_bf16_f32 v{o+i}, v{r}, v{r+1}")
            a(f"buffer_store_dwordx4 {vr(o,4)}, v{V_L16}, s[4:7], s26 offen{SC}")
            a("s_add_u32 s26, s26, 2048")
    else:
        c0 = acc[0]
        fin = a.label("final")
        a("s_lshr_b32 s26, s31, 2")
        a("s_lshl_b32 s26, s26, 17")
        a("s_and_b32 s27, s31, 3")
        a("s_lshl_b32 s27, s27, 10")
        a("s_add_u32 s26, s26, s27")
        a("s_lshl_b32 s27, s33, 13")
        a("s_add_u32 s26, s26, s27")
        a(f"s_add_u32 s26, s26, s{S_BASE}")
        a(f"s_add_u32 s26, s26, {g.OUT:#x}")
        a("s_add_u32 s27, s26, 4096")
        a("s_lshl_b32 s28, s31, 12")
        a("s_lshr_b32 s29, s33, 1")
        a("s_lshl_b32 s29, s29, 9")
        a("s_add_u32 s28, s28, s29")
        for i in range(8):
            a(f"v_cvt_pk_bf16_f32 v{V_RES+i}, v{c0+2*i}, v{c0+2*i+1}")
        if g.final:
            a(f"s_cmp_eq_u32 s{S_IT}, 1")
            a(f"s_cbranch_scc1 {fin}")
        a(f"buffer_store_dwordx4 {vr(V_RES,4)}, v{V_L16}, s[4:7], s26 offen{SC}")
        a(f"buffer_store_dwordx4 {vr(V_RES+4,4)}, v{V_L16}, s[4:7], s27 offen{SC}")
        q = tmp
        a(f"v_pk_mul_f32 v[{q}:{q+1}], v[{c0}:{c0+1}], v[{c0}:{c0+1}]")
        for i in range(1, 8):
            a(f"v_pk_fma_f32 v[{q}:{q+1}], v[{c0+2*i}:{c0+2*i+1}], v[{c0+2*i}:{c0+2*i+1}], v[{q}:{q+1}]")
            a(f"v_pk_add_f32 v[{c0}:{c0+1}], v[{c0}:{c0+1}], v[{c0+2*i}:{c0+2*i+1}]")
        a(f"v_add_f32 v{q+2}, v{c0}, v{c0+1}")
        a(f"v_add_f32 v{q+3}, v{q}, v{q+1}")
        a("s_and_b32 s29, s33, 1")
        a("s_lshl_b32 s29, s29, 3")
        a(f"v_permlane32_swap_b32 v{q+2}, v{q+3}")
        a("s_add_u32 s28, s28, s29")
        a(f"s_add_u32 s28, s28, s{S_BASE}")
        a(f"v_add_f32 v{q+2}, v{q+2}, v{q+3}")
        a(f"s_add_u32 s28, s28, {g.STOUT:#x}")
        a(f"buffer_store_dword v{q+2}, v{V_ST}, s[4:7], s28 offen{SC}")
    if not EARLY:
        a("s_barrier")
    stamp(a, SB + 3)
    if g.kind == "res" and g.final:
        a(f"s_branch {end}")
        a(f"{fin}:")
        a(f"v_and_b32 v{tmp}, 31, v0")
        a(f"v_lshlrev_b32 v{tmp}, 10, v{tmp}")
        a(f"v_lshrrev_b32 v{tmp+1}, 5, v0")
        a(f"v_lshl_add_u32 v{tmp}, v{tmp+1}, 4, v{tmp}")
        a("s_lshl_b32 s26, s31, 15")
        a("s_lshl_b32 s27, s33, 6")
        a("s_add_u32 s26, s26, s27")
        a(f"buffer_store_dwordx4 {vr(V_RES,4)}, v{tmp}, s[8:11], s26 offen")
        a(f"buffer_store_dwordx4 {vr(V_RES+4,4)}, v{tmp}, s[8:11], s26 offen offset:32")
        if not EARLY:
            a("s_barrier")
        stamp(a, SB + 3)
    a(f"{end}:")
    return R.n


def attn_phase(a, SB):
    U = 2
    NIT = 32 // U
    B2IT = env("ATT_B2", 1)
    B3IT = env("ATT_B3", 3)
    PRIO_IT = env("ATT_PRIO", 14)
    CB = 131072
    XB = CB + 4096
    assert XB + 8 * 2304 <= LDS_MAX
    R = Regs(V_FREE)
    vK, vV, vInc, vV0 = R.alloc(), R.alloc(), R.alloc(), R.alloc()
    t0, t1 = R.alloc(), R.alloc()
    Q = [R.alloc(4), R.alloc(4)]
    NM = [R.alloc(16), R.alloc(16)]
    O = [R.alloc(16), R.alloc(16)]
    S = [R.alloc(16), R.alloc(16)]
    P = R.alloc(8)
    KF = [R.alloc(4), R.alloc(4)]
    VF = [R.alloc(8), R.alloc(8)]
    a.c("================ phase attention ================")
    a(f"s_and_b32 s19, s{S_IDX}, 3")
    a(f"s_lshl_b32 s20, s{S_XCD}, 2")
    a("s_add_u32 s19, s19, s20")
    a(f"s_lshr_b32 s20, s{S_IDX}, 2")
    a("s_lshl_b32 s20, s20, 3")
    a(f"s_and_b32 s26, s{S_WAVE}, 3")
    a(f"s_lshr_b32 s27, s{S_WAVE}, 2")
    a("s_lshl_b32 s22, s26, 1")
    a("s_add_u32 s20, s20, s22")
    a("s_lshl_b32 s21, s19, 16")
    a(f"s_add_u32 s21, s21, s{S_BASE}")
    setup = a.label("att_setup")
    assert B_Q == 0 and B_V - B_K == 0x200000
    a("s_and_b32 s24, s26, 1")
    a("s_lshr_b32 s25, s26, 1")
    a("s_lshl_b32 s28, s24, 16")
    a("s_lshl_b32 s29, s24, 21")
    a("s_add_u32 s29, s29, s21")
    a(f"s_add_u32 s29, s29, {B_K:#x}")

    def dma(first_tile, per_wave):
        a(f"s_mul_i32 s24, s25, {per_wave*1024}")
        if first_tile:
            a(f"s_add_u32 s24, s24, {first_tile*1024}")
        n = 0
        while n < per_wave:
            a("s_add_u32 s30, s28, s24")
            a("s_mov_b32 m0, s30")
            a("s_add_u32 s31, s29, s24")
            for i in range(min(4, per_wave - n)):
                a(f"buffer_load_dwordx4 v{V_L16}, s[4:7], s31 offen offset:{i*1024}{SC} lds")
            n += 4
            if n < per_wave:
                a("s_add_u32 s24, s24, 4096")
    a(f"v_and_b32 v{t0}, 11, v0")
    a(f"v_cmp_eq_u32 vcc, 0, v{t0}")
    a(f"v_mov_b32 v{t1}, 0x3f803f80")
    a("s_lshl_b32 s30, s26, 10")
    a(f"s_add_u32 s30, s30, {CB}")
    a(f"v_cndmask_b32 v{P}, 0, v{t1}, vcc")
    a(f"v_add_u32 v{t0}, s30, v{V_L16}")
    for i in range(1, 4):
        a(f"v_mov_b32 v{P+i}, v{P}")
    a(f"ds_write_b128 v{t0}, {vr(P,4)}")
    a(f"v_lshrrev_b32 v{t0}, 5, v0")
    a(f"v_lshlrev_b32 v{t0}, 8, v{t0}")
    a(f"v_and_b32 v{t1}, 15, v0")
    a(f"v_lshl_add_u32 v{t0}, v{t1}, 4, v{t0}")
    a(f"v_and_b32 v{t1}, 16, v0")
    a(f"v_cmp_eq_u32 vcc, 0, v{t1}")
    a("s_lshl_b32 s30, s27, 15")
    a(f"v_add_u32 v{vK}, s30, v{V_L16}")
    a("s_add_u32 s31, s30, 0x10000")
    a(f"v_mov_b32 v{t1}, s31")
    a(f"v_mov_b32 v{vInc}, {CB}")
    a(f"v_cndmask_b32 v{t1}, v{vInc}, v{t1}, vcc")
    a(f"v_add_u32 v{vV}, v{t0}, v{t1}")
    a(f"v_mov_b32 v{t1}, 0x10000")
    a(f"v_cndmask_b32 v{t1}, v{vInc}, v{t1}, vcc")
    a(f"v_add_u32 v{vV0}, v{t0}, v{t1}")
    a(f"v_mov_b32 v{t1}, {U*1024}")
    a(f"v_cndmask_b32 v{vInc}, 0, v{t1}, vcc")
    for q in range(2):
        for i in range(16):
            a(f"v_mov_b32 v{O[q]+i}, 0")
    for i in range(4, 8):
        a(f"v_mov_b32 v{P+i}, 0")
    for i in range(4, 8):
        a(f"v_mov_b32 v{VF[1]+i}, 0")
    a("s_lshl_b32 s30, s26, 11")
    a(f"s_add_u32 s30, s30, {XB}")
    a(f"v_add_u32 v{t0}, s30, v{V_L16}")
    a("s_waitcnt vmcnt(0) lgkmcnt(0)")
    stamp(a, SB)
    a("s_barrier")
    a(f"s_cmp_lg_u32 s{S_WAVE}, 4")
    a(f"s_cbranch_scc1 {setup}")
    a.c("wave 4: wait for Q/K/V of this head, then fetch the first tiles")
    a("s_lshr_b32 s23, s19, 1")
    a("s_lshl_b32 s23, s23, 8")
    a(f"s_add_u32 s23, s23, s{S_FL}")
    a(f"s_add_u32 s23, s23, {FL_Q:#x}")
    a("s_lshl_b32 s22, s20, 10")
    a("s_add_u32 s22, s22, s21")
    a(f"s_add_u32 s31, s29, {B_V - B_K:#x}")
    nopoll = a.label("nopoll")
    a(f"s_cmp_eq_u32 s{S_IT}, 0")
    a(f"s_cbranch_scc1 {nopoll}")
    handoff(a, 23, 16)
    a(f"{nopoll}:")
    stamp(a, SB + 1)
    for m0v, so in ((0, "s29"), (XB, "s22"), (XB + 4096, "s30"), (65536, "s31")):
        a(f"s_mov_b32 m0, {m0v}")
        a("s_add_u32 s30, s22, 4096")
        for i in range(4):
            a(f"buffer_load_dwordx4 v{V_L16}, s[4:7], {so} offen offset:{i*1024}{SC} lds")
    a(f"s_lshr_b32 s{S_SIG}, s{S_IDX}, 2")
    a(f"s_lshl_b32 s{S_SIG}, s{S_SIG}, 8")
    a(f"s_add_u32 s{S_SIG}, s{S_SIG}, s{S_FL}")
    assert FL_A == 0

    a("s_waitcnt vmcnt(0)")
    a(f"{setup}:")
    a("s_barrier")
    stamp(a, SB + 2)
    a(f"ds_read_b128 {vr(Q[0],4)}, v{t0}")
    a(f"ds_read_b128 {vr(Q[1],4)}, v{t0} offset:1024")
    older = a.label("older")
    a(f"s_mov_b32 s32, {NIT - B2IT}")
    a(f"s_mov_b32 s33, {NIT - B3IT}")
    a("s_mov_b32 s34, -1")
    a("s_cmp_eq_u32 s27, 0")
    a(f"s_cbranch_scc1 {older}")
    dma(4, 6)
    dma(16, 8)
    a("s_waitcnt vmcnt(8)")
    a("s_barrier")
    dma(32, 16)
    a("s_waitcnt vmcnt(0)")
    a("s_barrier")
    a("s_mov_b32 s32, -1")
    a(f"s_mov_b32 s33, {3 if env('PF', 1) else 0}")
    a(f"s_mov_b32 s34, {NIT - 1}")
    a.c("L2 prefetch list: 12 pieces of 8 KB per workgroup (8 of gate/up, 2 of wo), 3 per younger wave")
    a(f"s_mul_i32 s50, s{S_IDX}, 59136")
    a(f"s_and_b32 s23, s{S_XCD}, 1")
    a(f"s_mul_i32 s23, s23, {8*231*1024}")
    a("s_add_u32 s50, s50, s23")
    a("s_lshl_b32 s23, s26, 14")
    a("s_add_u32 s50, s50, s23")
    a(f"s_add_u32 s50, s50, {WS_WGU:#x}")
    a("s_add_u32 s51, s50, 8192")
    a(f"s_lshl_b32 s52, s{S_IDX}, 14")
    a("s_and_b32 s23, s26, 1")
    a("s_lshl_b32 s23, s23, 13")
    a("s_add_u32 s52, s52, s23")
    a(f"s_add_u32 s52, s52, {WS_WO:#x}")
    a("s_setprio 1")
    a(f"{older}:")
    a(f"ds_read_b128 {vr(KF[1],4)}, v{V_L16}")
    a(f"ds_read_b128 {vr(KF[0],4)}, v{vK}")
    a(f"ds_read_b128 {vr(VF[0],4)}, v{vV}")
    a(f"ds_read_b128 {vr(VF[0]+4,4)}, v{vV} offset:512")
    a("s_waitcnt lgkmcnt(0)")
    for q in range(2):
        a(f"{MFMA} {vr(S[q],16)}, {vr(KF[1],4)}, {vr(Q[q],4)}, 0")
    a("s_nop 11")
    for q, t in ((0, t0), (1, t1)):
        a(f"v_max3_f32 v{t}, v{S[q]}, v{S[q]+1}, v{S[q]+2}")
        for i in range(3, 15, 2):
            a(f"v_max3_f32 v{t}, v{t}, v{S[q]+i}, v{S[q]+i+1}")
        a(f"v_max_f32 v{t}, v{t}, v{S[q]+15}")
        a(f"v_mov_b32 v{P+q}, v{t}")
    a("s_nop 1")
    a(f"v_permlane32_swap_b32 v{t0}, v{P}")
    a(f"v_permlane32_swap_b32 v{t1}, v{P+1}")
    a("s_nop 0")
    a(f"v_max_f32 v{t0}, v{t0}, v{P}")
    a(f"v_max_f32 v{t1}, v{t1}, v{P+1}")
    for i in range(16):
        a(f"v_sub_f32 v{NM[0]+i}, 0, v{t0}")
    a(f"v_sub_f32 v{NM[1]}, 0, v{t1}")
    a(f"v_sub_f32 v{NM[1]+1}, 0, v{t1}")
    a(f"{MFMA} {vr(S[0],16)}, {vr(KF[0],4)}, {vr(Q[0],4)}, {vr(NM[0],16)}")
    for i in range(2, 16):
        a(f"v_sub_f32 v{NM[1]+i}, 0, v{t1}")
    a(f"s_mov_b32 s31, {NIT}")
    stamp(a, SB + 3)
    lp, hook, back = a.label("attn"), a.label("hook"), a.label("back")
    a(f"{lp}:")
    for u in range(U):
        for q in range(2):
            c = S[q]
            E = lambda i: a(f"v_exp_f32 v{c+i}, v{c+i}")
            C = lambda j: a(f"v_cvt_pk_bf16_f32 v{P+j}, v{c+2*j}, v{c+2*j+1}")
            E(0); E(1)
            pv = VF[(u + 1) & 1] if q == 0 else VF[u & 1]
            a(f"{MFMA} {vr(O[q^1],16)}, {vr(pv+4,4)}, {vr(P+4,4)}, {vr(O[q^1],16)}")
            E(2)
            if q == 0:
                a(f"ds_read_b128 {vr(KF[(u+1)&1],4)}, v{vK} offset:{(u+1)*1024}")
            E(3); C(0); E(4)
            if q == 0:
                a(f"ds_read_b128 {vr(VF[(u+1)&1],4)}, v{vV} offset:{(u+1)*1024}")
            E(5); C(1); E(6)
            if q == 0:
                a(f"{MFMA} {vr(S[1],16)}, {vr(KF[u&1],4)}, {vr(Q[1],4)}, {vr(NM[1],16)}")
            else:
                a("s_waitcnt lgkmcnt(0)")
                a(f"{MFMA} {vr(S[0],16)}, {vr(KF[(u+1)&1],4)}, {vr(Q[0],4)}, {vr(NM[0],16)}")
            E(7); C(2); E(8)
            if q == 0:
                a(f"ds_read_b128 {vr(VF[(u+1)&1]+4,4)}, v{vV} offset:{(u+1)*1024+512}")
            C(3); E(9); E(10); C(4); E(11)
            a(f"{MFMA} {vr(O[q],16)}, {vr(VF[u&1],4)}, {vr(P,4)}, {vr(O[q],16)}")
            E(12); C(5); E(13); E(14); E(15); C(6)
            if u == U - 1 and q == 1:
                a(f"v_add_u32 v{vK}, {U*1024}, v{vK}")
                a(f"v_add_u32 v{vV}, v{vInc}, v{vV}")
            C(7)
    a("s_sub_u32 s31, s31, 1")
    a("s_cmp_eq_u32 s31, s32")
    a(f"s_cbranch_scc1 {hook}")
    a("s_cmp_eq_u32 s31, s34")
    a(f"s_cbranch_scc1 {hook}")
    a(f"{back}:")
    a("s_cmp_lg_u32 s31, 0")
    a(f"s_cbranch_scc1 {lp}")
    a(f"{MFMA} {vr(O[1],16)}, {vr(VF[1]+4,4)}, {vr(P+4,4)}, {vr(O[1],16)}")
    stamp(a, SB + 4)
    a(f"s_mul_i32 s28, s{S_WAVE}, 2304")
    a(f"s_add_u32 s28, s28, {XB}")
    a(f"s_xor_b32 s29, s{S_WAVE}, 4")
    a(f"s_mul_i32 s29, s29, 2304")
    a(f"s_add_u32 s29, s29, {XB}")
    a(f"v_add_u32 v{t0}, s28, v{V_L16}")
    a(f"v_add_u32 v{t1}, s29, v{V_L16}")
    a(f"v_add_u32 v{vK}, s28, v{V_L4}")
    a(f"v_add_u32 v{vV}, s29, v{V_L4}")
    a("s_add_u32 s20, s20, s27")
    a("s_nop 3")
    k1, kj = a.label("keep1"), a.label("keepj")
    a("s_cmp_eq_u32 s27, 0")
    a(f"s_cbranch_scc0 {k1}")
    a(f"ds_write_b128 v{t0}, {vr(O[1],4)}")
    a(f"ds_write_b128 v{t0}, {vr(O[1]+4,4)} offset:1024")
    a(f"ds_write_b32 v{vK}, v{O[1]+8} offset:2048")
    a(f"s_branch {kj}")
    a(f"{k1}:")
    a(f"ds_write_b128 v{t0}, {vr(O[0],4)}")
    a(f"ds_write_b128 v{t0}, {vr(O[0]+4,4)} offset:1024")
    a(f"ds_write_b32 v{vK}, v{O[0]+8} offset:2048")
    a("s_waitcnt lgkmcnt(0)")
    for i in range(9):
        a(f"v_mov_b32 v{O[0]+i}, v{O[1]+i}")
    for i in range(4):
        a(f"v_mov_b32 v{Q[0]+i}, v{Q[1]+i}")
    a(f"{kj}:")
    a("s_lshr_b32 s22, s20, 1")
    a("s_lshl_b32 s22, s22, 16")
    a("s_and_b32 s23, s20, 1")
    a("s_lshl_b32 s23, s23, 10")
    a("s_add_u32 s22, s22, s23")
    a("s_lshl_b32 s23, s19, 11")
    a("s_add_u32 s22, s22, s23")
    a(f"s_add_u32 s22, s22, s{S_BASE}")
    a(f"s_add_u32 s22, s22, {B_O:#x}")
    a("s_waitcnt lgkmcnt(0)")
    a("s_barrier")
    a(f"ds_read_b128 {vr(S[0],4)}, v{t1}")
    a(f"ds_read_b128 {vr(S[0]+4,4)}, v{t1} offset:1024")
    a(f"ds_read_b32 v{S[0]+8}, v{vV} offset:2048")
    a("s_waitcnt lgkmcnt(0)")
    OO = O[0]
    for i in range(9):
        a(f"v_add_f32 v{OO+i}, v{OO+i}, v{S[0]+i}")
    fin, fb, endl = a.label("fin"), a.label("fallback"), a.label("att_end")
    a(f"v_add_f32 v{t1}, v{OO}, v{OO+1}")
    for i in range(2, 8):
        a(f"v_add_f32 v{t1}, v{t1}, v{OO+i}")
    a(f"v_fma_f32 v{t1}, 0, v{t1}, v{OO+8}")
    a(f"v_cmp_ngt_f32 vcc, {f32bits(2.0**64):#x}, v{t1}")
    a(f"v_rcp_f32 v{t0}, v{OO+8}")
    a("s_cmp_lg_u64 vcc, 0")
    a(f"s_cbranch_scc1 {fb}")
    a(f"{fin}:")
    for i in range(8):
        a(f"v_mul_f32 v{OO+i}, v{t0}, v{OO+i}")
    for i in range(4):
        a(f"v_cvt_pk_bf16_f32 v{P+i}, v{OO+2*i}, v{OO+2*i+1}")
    a(f"buffer_store_dwordx4 {vr(P,4)}, v{V_L16}, s[4:7], s22 offen{SC}")
    a("s_barrier")
    stamp(a, SB + 5)
    a(f"s_branch {endl}")
    a(f"{hook}:")
    hp = a.label("hookp")
    a("s_cmp_eq_u32 s27, 0")
    a(f"s_cbranch_scc0 {hp}")
    a("s_barrier")
    a("s_mov_b32 s32, s33")
    a("s_mov_b32 s33, -1")
    a(f"s_branch {back}")
    a(f"{hp}:")
    hq = a.label("hookq")
    a("s_cmp_eq_u32 s33, 0")
    a(f"s_cbranch_scc1 {hq}")
    a(f"buffer_load_dword v{V_PF}, v{V_L128}, s[4:7], s50 offen")
    a("s_mov_b32 s50, s51")
    a("s_mov_b32 s51, s52")
    a("s_sub_u32 s33, s33, 1")
    a("s_sub_u32 s34, s34, 2")
    a(f"s_branch {back}")
    a(f"{hq}:")
    hr = a.label("hookr")
    a(f"s_cmp_eq_u32 s34, {NIT - PRIO_IT}")
    a(f"s_cbranch_scc1 {hr}")
    a(f"s_mov_b32 s34, {NIT - PRIO_IT}")
    a(f"s_branch {back}")
    a(f"{hr}:")
    a("s_setprio 0")
    a(f"s_branch {back}")
    a(f"{fb}:")
    a(f"v_mov_b32 v{vK}, v{V_L16}")
    a(f"v_mov_b32 v{t0}, 0xff800000")
    a("s_mov_b32 s31, 64")
    lp2 = a.label("maxl")
    a(f"{lp2}:")
    a(f"ds_read_b128 {vr(KF[0],4)}, v{vK}")
    a(f"v_add_u32 v{vK}, 1024, v{vK}")
    a("s_waitcnt lgkmcnt(0)")
    a(f"{MFMA} {vr(S[0],16)}, {vr(KF[0],4)}, {vr(Q[0],4)}, 0")
    a("s_nop 15")
    for i in range(0, 16, 2):
        a(f"v_max3_f32 v{t0}, v{t0}, v{S[0]+i}, v{S[0]+i+1}")
    a("s_sub_u32 s31, s31, 1")
    a("s_cmp_lg_u32 s31, 0")
    a(f"s_cbranch_scc1 {lp2}")
    a(f"v_mov_b32 v{t1}, v{t0}")
    a("s_nop 1")
    a(f"v_permlane32_swap_b32 v{t0}, v{t1}")
    a("s_nop 1")
    a(f"v_max_f32 v{t0}, v{t0}, v{t1}")
    for i in range(16):
        a(f"v_sub_f32 v{NM[0]+i}, 0, v{t0}")
        a(f"v_mov_b32 v{OO+i}, 0")
    a(f"v_mov_b32 v{vK}, v{V_L16}")
    a(f"v_mov_b32 v{vV}, v{vV0}")
    a(f"v_lshrrev_b32 v{vInc}, {U.bit_length()-1}, v{vInc}")
    a("s_mov_b32 s31, 64")
    lp3 = a.label("pass2")
    a(f"{lp3}:")
    a(f"ds_read_b128 {vr(KF[0],4)}, v{vK}")
    a(f"ds_read_b128 {vr(VF[0],4)}, v{vV}")
    a(f"ds_read_b128 {vr(VF[0]+4,4)}, v{vV} offset:512")
    a(f"v_add_u32 v{vK}, 1024, v{vK}")
    a(f"v_add_u32 v{vV}, v{vInc}, v{vV}")
    a("s_waitcnt lgkmcnt(0)")
    a(f"{MFMA} {vr(S[0],16)}, {vr(KF[0],4)}, {vr(Q[0],4)}, {vr(NM[0],16)}")
    a("s_nop 15")
    for i in range(16):
        a(f"v_exp_f32 v{S[0]+i}, v{S[0]+i}")
    a("s_nop 0")
    for j in range(8):
        a(f"v_cvt_pk_bf16_f32 v{P+j}, v{S[0]+2*j}, v{S[0]+2*j+1}")
    a("s_nop 1")
    a(f"{MFMA} {vr(OO,16)}, {vr(VF[0],4)}, {vr(P,4)}, {vr(OO,16)}")
    a(f"{MFMA} {vr(OO,16)}, {vr(VF[0]+4,4)}, {vr(P+4,4)}, {vr(OO,16)}")
    a("s_sub_u32 s31, s31, 1")
    a("s_cmp_lg_u32 s31, 0")
    a("s_nop 7")
    a(f"s_cbranch_scc1 {lp3}")
    a("s_nop 15")
    a(f"v_rcp_f32 v{t0}, v{OO+8}")
    a("s_nop 0")
    a(f"s_branch {fin}")
    a(f"{endl}:")
    return R.n


def gen_main(a):
    name = "main_kernel"
    kernel_header(a, name)
    done = a.label("done")
    a("s_cmp_ge_u32 s2, 256")
    a(f"s_cbranch_scc1 {done}")
    a(f"s_load_dwordx2 s[12:13], s[0:1], {KA_WS}")
    a(f"s_load_dwordx2 s[14:15], s[0:1], {KA_OUT}")
    a(f"s_load_dwordx2 s[20:21], s[0:1], {KA_X}")
    a("v_lshrrev_b32 v1, 6, v0")
    a("v_and_b32 v0, 63, v0")
    a(f"v_readfirstlane_b32 s{S_WAVE}, v1")
    a(f"s_and_b32 s{S_XCD}, s2, 7")
    a(f"s_lshr_b32 s{S_IDX}, s2, 3")
    a(f"s_and_b32 s{S_TT128}, s{S_IDX}, 3")
    a(f"s_lshr_b32 s19, s{S_XCD}, 1")
    a("s_lshl_b32 s19, s19, 2")
    a(f"s_add_u32 s{S_TT128}, s{S_TT128}, s19")
    a(f"s_lshl_b32 s{S_TT128}, s{S_TT128}, 2")
    a(f"s_lshr_b32 s{S_NT128}, s{S_IDX}, 2")
    a(f"s_and_b32 s19, s{S_XCD}, 1")
    a("s_lshl_b32 s19, s19, 3")
    a(f"s_add_u32 s{S_NT128}, s{S_NT128}, s19")
    a(f"s_and_b32 s{S_TT64}, s{S_IDX}, 3")
    a(f"s_lshl_b32 s19, s{S_XCD}, 2")
    a(f"s_add_u32 s{S_TT64}, s{S_TT64}, s19")
    a(f"s_lshl_b32 s{S_TT64}, s{S_TT64}, 1")
    a(f"s_lshr_b32 s{S_NT64}, s{S_IDX}, 2")
    a(f"s_mov_b32 s{S_IT}, 0")
    a(f"s_mov_b32 s{S_BASE}, {WS_IT0:#x}")
    a(f"s_mov_b32 s{S_FL}, 0")
    a(f"v_lshlrev_b32 v{V_L16}, 4, v0")
    a(f"v_and_b32 v{V_ST}, 31, v0")
    a(f"v_lshlrev_b32 v{V_FREE}, 10, v{V_ST}")
    a(f"v_lshlrev_b32 v{V_ST}, 4, v{V_ST}")
    a(f"v_lshrrev_b32 v1, 5, v0")
    a(f"v_lshl_add_u32 v{V_FREE}, v1, 4, v{V_FREE}")
    a(f"v_lshl_add_u32 v{V_ST}, v1, 2, v{V_ST}")
    a(f"v_lshlrev_b32 v{V_L4}, 2, v0")
    a(f"v_lshlrev_b32 v{V_L128}, 7, v0")
    if STAMP:
        a(f"v_mov_b32 v{V_STAMP}, 0")
        a(f"v_mov_b32 v{V_STAMP+1}, 0")
    a(f"s_and_b32 s24, s{S_WAVE}, 1")
    a(f"s_bfe_u32 s25, s{S_WAVE}, 0x10001")
    a(f"s_add_u32 s24, s24, s{S_TT64}")
    a("s_lshl_b32 s24, s24, 15")
    a(f"s_lshl_b32 s26, s{S_NT64}, 1")
    a("s_add_u32 s25, s25, s26")
    a("s_lshl_b32 s25, s25, 6")
    a("s_add_u32 s24, s24, s25")
    a("s_waitcnt lgkmcnt(0)")
    srd(a, 4, 12, 13, WS_END)
    srd(a, 8, 20, 21, 2048 * 512 * 2)
    a(f"buffer_load_dwordx4 {vr(V_RES,4)}, v{V_FREE}, s[8:11], s24 offen")
    a(f"buffer_load_dwordx4 {vr(V_RES+4,4)}, v{V_FREE}, s[8:11], s24 offen offset:32")
    a(f"s_mov_b32 s{S_SIG}, 0")
    a("s_waitcnt vmcnt(0)")
    srd(a, 8, 14, 15, 2048 * 512 * 2)
    a(f"s_add_u32 s14, s12, {WS_FLAG:#x}")
    a("s_addc_u32 s15, s13, 0")
    stamp(a, 31)
    top, att = a.label("top"), a.label("att")
    a(f"s_branch {att}")
    a(f"{top}:")
    nv = []
    nv.append(gemm_phase(a, Cfg(name="qkv", kind="qkv", NA=4, NW=3, NT=3, G=1, KC=2, KST=32, NSA=7, NSW=16, DA=4, PRE=1,
                                PEEL=2, swap=[0, 0, 1], ABUF=B_XIN, WBASE=WS_WQKV, WNT=99 * 1024, STIN=B_STIN,
                                FIN=FL_D - FL_IT + (1 << 32), FIN_SH=2, NEED=16, NARR=4, FOUT=FL_Q, sb=0, pf=None)))
    a(f"{att}:")
    nv.append(attn_phase(a, 5))
    nv.append(gemm_phase(a, Cfg(name="oproj", kind="res", NA=2, NW=2, NT=1, G=4, KC=4, KST=32, NSA=8, NSW=8, DA=4, PRE=2,
                                PEEL=2, swap=[0], ABUF=B_O, WBASE=WS_WO, WNT=64 * 1024, OUT=B_X1, STOUT=B_ST1,
                                FIN=FL_A, FIN_SH=3, NEED=32, NARR=8, FOUT=FL_O, final=False, sb=12, pf=None)))
    nv.append(gemm_phase(a, Cfg(name="gu", kind="gu", NA=4, NW=7, NT=7, G=1, KC=2, KST=32, NSA=5, NSW=8, DA=4, PRE=3,
                                PEEL=1, swap=[0] * 7, ABUF=B_X1, WBASE=WS_WGU, WNT=231 * 1024, STIN=B_ST1,
                                FIN=FL_O, FIN_SH=2, NEED=16, NARR=4, FOUT=FL_G, sb=17, pf=(WS_WD, 0, 57344, 7, 8))))
    nv.append(gemm_phase(a, Cfg(name="down", kind="res", NA=2, NW=2, NT=1, G=4, KC=4, KST=112, NSA=6, NSW=14, DA=4, PRE=2,
                                PEEL=2, swap=[0], ABUF=B_H, WBASE=WS_WD, WNT=224 * 1024, OUT=B_XIN + IT_STRIDE,
                                STOUT=B_STIN + IT_STRIDE, FIN=FL_G, FIN_SH=2, NEED=16, NARR=4, FOUT=FL_D, final=True, sb=22, pf=(WS_WQKV, 8 * 99 * 1024, 25344, 4, 15))))
    a(f"s_add_u32 s{S_IT}, s{S_IT}, 1")
    a(f"s_add_u32 s{S_BASE}, s{S_BASE}, {IT_STRIDE:#x}")
    a(f"s_add_u32 s{S_FL}, s{S_FL}, {FL_IT:#x}")
    a(f"s_cmp_lt_u32 s{S_IT}, 2")
    a(f"s_cbranch_scc1 {top}")
    if STAMP:
        a("s_waitcnt vmcnt(0)")
        a(f"s_mov_b32 s{S_IT}, 1")
        stamp(a, 31)
        stamp_flush(a)
    a(f"{done}:")
    a("s_endpgm")
    print("phase vgprs", nv, file=sys.stderr)
    assert max(nv) <= 256
    return (name, max(nv), 256, 512, LDS_MAX)


HEADER = open("cdna_kernels/" + NAME + ".s.ref").read().split("; Override launch")[0]

def main(out):
    a = Asm()
    ks = {}
    for r in (gen_first(a), gen_main(a)):
        ks[r[0]] = r
    order = ["first_kernel", "main_kernel"]
    txt = HEADER
    for k in order:
        _, v, nwg, blk, lds = ks[k]
        txt += f"; @launch kernel={k} grid=({nwg},1,1) block=({blk},1,1) lds={lds}\n"
    txt += '.amdgcn_target "amdgcn-amd-amdhsa--gfx950"\n.text\n'
    txt += a.text()
    txt += '.section .rodata,"a"\n'
    for k, (_, v, nwg, blk, lds) in ks.items():
        txt += kernel_desc(k, v)
        print(f"{k}: vgpr={v} lds={lds}", file=sys.stderr)
    open(out, "w").write(txt)

if __name__ == "__main__":
    main(sys.argv[1] if len(sys.argv) > 1 else "v2.s")
```

```python
import sys, struct, math, os
from asmlib import *

NAME = "interleave_layers__mha_block__glu_gated_bilinear__prompt"
def env(k, d):
    return int(os.environ.get(k, d))

WS_WQKV = 0x000000
WS_WO   = 0x200000
WS_WGU  = 0x300000
WS_WD   = 0x700000
WS_FLAG = 0x8C0000
FL_IT = 0x8000
FL_A, FL_O, FL_G, FL_D, FL_Q, FL_W = 0x0, 0x1000, 0x2000, 0x3000, 0x4000, 0x5000
WS_IT0 = 0xA00000
IT_STRIDE = 0x1400000
B_Q, B_K, B_V, B_O, B_X1, B_XIN, B_H, B_ST1, B_STIN = (
    0x0, 0x200000, 0x400000, 0x600000, 0x800000, 0xA00000, 0xC00000, 0x1300000, 0x1340000)
WS_END = WS_IT0 + 2 * IT_STRIDE
WS_STAMP = WS_END
LDS_MAX = 160 * 1024

KA_X, KA_WQKV, KA_WO, KA_BX, KA_WG, KA_WU, KA_WD, KA_OUT, KA_DBG, KA_WS = [8 * i for i in range(10)]

def f32bits(x):
    return struct.unpack("<I", struct.pack("<f", x))[0]

QSCALE = 0.25 * math.log2(math.e)
MFMA = "v_mfma_f32_32x32x16_bf16"
STAMP = os.environ.get("STAMP", "") != ""
SC = " sc1"
SPIN_MAX = 1 << 18

def srd(a, d, lo, hi, nbytes):
    a(f"s_mov_b32 s{d}, s{lo}")
    a(f"s_and_b32 s{d+1}, s{hi}, 0xffff")
    a(f"s_mov_b32 s{d+2}, {nbytes:#x}")
    a(f"s_mov_b32 s{d+3}, 0x20000")

S_WAVE, S_XCD, S_IDX, S_IT, S_BASE, S_FL = 16, 17, 18, 40, 41, 42
S_TT64, S_NT64, S_TT128, S_NT128 = 43, 44, 45, 46
S_ARR, S_SIG = 47, 48
LDS_CNT = LDS_MAX - 16
V_L16, V_ST, V_L4 = 2, 3, 1
V_RES = 4
V_STAMP = 12
V_PF, V_L128 = 14, 15
V_FREE = 16

def stamp(a, i):
    if STAMP:
        a("s_memrealtime s[56:57]")
        a("s_memtime s[58:59]")
        a(f"s_lshl_b32 s60, s{S_IT}, 5")
        a(f"s_add_u32 s60, s60, {i}")
        a("s_waitcnt lgkmcnt(0)")
        a("s_mov_b32 s61, m0")
        a("s_mov_b32 m0, s60")
        a("s_nop 0")
        a(f"v_writelane_b32 v{V_STAMP}, s56, m0")
        a(f"v_writelane_b32 v{V_STAMP+1}, s58, m0")
        a("s_mov_b32 m0, s61")

def stamp_flush(a, which=0):
    if STAMP:
        a("s_lshl_b32 s60, s2, 3")
        a(f"s_add_u32 s60, s60, s{S_WAVE}")
        a("s_lshl_b32 s60, s60, 9")
        a(f"s_add_u32 s60, s60, {WS_STAMP + which*0x100000:#x}")
        a(f"s_mov_b32 s6, {WS_STAMP + 0x200000:#x}")
        a(f"buffer_store_dword v{V_STAMP}, v{V_L4}, s[4:7], s60 offen")
        a(f"buffer_store_dword v{V_STAMP+1}, v{V_L4}, s[4:7], s60 offen offset:256")

def handoff(a, soff, need):
    lp, ok = a.label("poll"), a.label("pok")
    a("s_mov_b32 s38, 1")
    a(f"s_atomic_add s38, s[14:15], s{S_SIG}")
    a(f"s_mov_b32 s39, {SPIN_MAX}")
    a(f"{lp}:")
    a("s_mov_b32 s49, 0")
    a(f"s_atomic_add s49, s[14:15], s{soff} glc")
    a("s_sub_u32 s39, s39, 1")
    a("s_waitcnt lgkmcnt(0)")
    a(f"s_cmp_ge_u32 s49, {need}")
    a(f"s_cbranch_scc1 {ok}")
    if env("POLL_SLEEP", 2):
        a(f"s_sleep {env('POLL_SLEEP', 2)}")
    a("s_cmp_lg_u32 s39, 0")
    a(f"s_cbranch_scc1 {lp}")
    a(f"{ok}:")


V_TF = 176

def first_phase(a, end_label, code_end):
    XB_ = 528
    XT = 64 * XB_
    W0 = 2 * XT
    NSW, WCH, NC = 7, 12288, 16
    assert W0 + NSW * WCH <= LDS_MAX
    FS = 27
    NPS = env("K1_NPS", 2)
    R = Regs(V_FREE)
    vD, vT0, vT1, vXW = R.alloc(), R.alloc(), R.alloc(), R.alloc()
    X = R.alloc(32)
    ST = R.alloc(16)
    U = R.alloc(16)
    vD2, vZ = R.alloc(), R.alloc()
    a(f"s_lshl_b32 s19, s{S_TT64}, 15")
    a(f"s_lshl_b32 s24, s{S_WAVE}, 13")
    a("s_add_u32 s19, s19, s24")
    a("s_add_u32 s25, s19, 4096")
    a(f"s_lshl_b32 s26, s{S_XCD}, 18")
    a(f"s_lshl_b32 s27, s{S_IDX}, 13")
    a("s_add_u32 s26, s26, s27")
    a(f"s_mul_i32 s27, s{S_IDX}, 49152")
    a("s_add_u32 s27, s27, s24")
    a("s_sub_u32 s27, s27, 8192")
    a(f"v_lshrrev_b32 v{vT0}, 3, v0")
    a(f"v_bfe_u32 v{vT1}, v0, 4, 1")
    a(f"v_lshlrev_b32 v{vT1}, 2, v{vT1}")
    a(f"v_and_b32 v{vD2}, 7, v0")
    a(f"v_xor_b32 v{vD2}, v{vD2}, v{vT1}")
    a(f"v_lshlrev_b32 v{vD2}, 4, v{vD2}")
    a(f"v_mul_u32_u24 v{vD}, 3072, v{vT0}")
    a(f"v_add_u32 v{vD}, v{vD}, v{vD2}")
    a(f"s_and_b32 s50, s{S_WAVE}, 3")
    a("s_waitcnt lgkmcnt(0)")
    srd(a, 8, 64, 65, 2048 * 512 * 2)
    srd(a, 20, 66, 67, 512 * 1536 * 2)
    if env("TOUCH", 1):
        tw, tj = a.label("tw"), a.label("tj")
        a(f"s_cmp_lg_u32 s{S_WAVE}, 0")
        a(f"s_cbranch_scc1 {tw}")
        a(f"buffer_load_dword v{V_PF}, v{V_L128}, s[8:11], s26 offen")
        a(f"s_branch {tj}")
        a(f"{tw}:")
        tc = a.label("tc")
        a(f"s_cmp_eq_u32 s{S_WAVE}, 7")
        a(f"s_cbranch_scc1 {tc}")
        a(f"buffer_load_dword v{V_PF}, v{V_L128}, s[20:23], s27 offen")
        a(f"s_branch {tj}")
        a(f"{tc}:")
        a("s_getpc_b64 s[98:99]")
        a(f"global_load_dword v{V_PF}, v{V_L128}, s[98:99]")
        a(f"{tj}:")
    for r in range(8):
        a(f"buffer_load_dwordx4 {vr(X+4*r,4)}, v{V_L16}, s[8:11], s{(19, 25)[r//4]} offen offset:{(r%4)*1024}")
    srd(a, 4, 12, 13, WS_END)
    a(f"s_add_u32 s14, s12, {WS_FLAG:#x}")
    a("s_addc_u32 s15, s13, 0")
    a.c("one wave resets the hand-off counters (256 words, 256 B apart), then raises the flag in d_debug")
    nz = a.label("nozero")
    a(f"s_lshl_b32 s54, s2, 3")
    a(f"s_add_u32 s54, s54, s{S_WAVE}")
    a("s_cmp_lg_u32 s54, 7")
    a(f"s_cbranch_scc1 {nz}")
    a(f"v_lshlrev_b32 v{ST}, 8, v0")
    a(f"v_mov_b32 v{ST+1}, 0")
    for i in range(4):
        a(f"s_mov_b32 s54, {WS_FLAG + i*16384:#x}")
        a(f"buffer_store_dword v{ST+1}, v{ST}, s[4:7], s54 offen sc1")
    a("s_waitcnt vmcnt(0)")
    a("s_mov_b32 s54, 1")
    a("s_atomic_add s54, s[94:95], 0x0")
    a("s_waitcnt lgkmcnt(0)")
    a(f"{nz}:")
    a("s_mov_b32 s49, 0x3f803f80")
    a(f"s_lshr_b32 s55, s{S_WAVE}, 2")
    a(f"s_mul_i32 s39, s55, {XT}")
    a("s_lshl_b32 s54, s50, 7")
    a("s_add_u32 s39, s39, s54")
    a(f"v_mul_u32_u24 v{vXW}, {XB_}, v0")
    a(f"v_add_u32 v{vXW}, s39, v{vXW}")
    a(f"s_mul_i32 s62, s50, {8*3072}")
    a(f"s_lshl_b32 s54, s{S_NT64}, 7")
    a("s_add_u32 s62, s62, s54")
    a(f"s_mul_i32 s54, s55, {NPS*32*3072}")
    a("s_add_u32 s62, s62, s54")
    a("s_lshl_b32 s63, s50, 10")
    a(f"s_add_u32 s63, s63, {W0}")
    a(f"s_mul_i32 s54, s55, {NPS*WCH}")
    a("s_add_u32 s48, s63, s54")
    def w_instr(slot, seg, base=63):
        t = f"s_add_u32 s54, s{base}, {slot*WCH + seg*3072}\ns_mov_b32 m0, s54\ns_nop 0\n"
        t += f"buffer_load_dwordx4 v{vD}, s[20:23], s62 offen offset:{seg*1024} lds"
        if seg == 2:
            t += f"\ns_add_u32 s62, s62, {32*3072}"
        return t
    dma = [w_instr(c, sg, 48) for c in range(NPS) for sg in range(3)]
    ops = []
    for r in range(8):
        ops.append(f"v_mov_b32 v{ST+r}, 0")
        ops.append(f"v_mov_b32 v{ST+8+r}, 0")
    pre = len(ops)
    for r in range(8):
        ops.append(("wait", r))
        for i in range(4):
            ops.append(f"v_dot2c_f32_bf16 v{ST+r}, s49, v{X+4*r+i}")
            ops.append(f"v_dot2c_f32_bf16 v{ST+8+r}, v{X+4*r+i}, v{X+4*r+i}")
    ops.append("s_nop 2")
    for b in (ST, ST + 8):
        for r in range(4):
            ops.append(f"v_permlane32_swap_b32 v{b+r}, v{b+r+4}")
    for b in (ST, ST + 8):
        for r in range(4):
            ops.append(f"v_add_f32 v{b+r}, v{b+r}, v{b+r+4}")
    ops.append("s_nop 1")
    for b in (ST, ST + 8):
        for r in range(2):
            ops.append(f"v_permlane16_swap_b32 v{b+r}, v{b+r+2}")
    for b in (ST, ST + 8):
        for r in range(2):
            ops.append(f"v_add_f32 v{b+r}, v{b+r}, v{b+r+2}")
    for d in ("row_ror:8", "row_ror:4", "quad_perm:[2,3,0,1]", "quad_perm:[1,0,3,2]"):
        for v in (ST, ST + 1, ST + 8, ST + 9):
            ops.append(f"v_add_f32_dpp v{v}, v{v}, v{v} {d} row_mask:0xf bank_mask:0xf")
    for r in range(2):
        ops.append(f"v_mul_f32 v{ST+r}, {f32bits(-1.0/512):#x}, v{ST+r}")
        ops.append(f"v_mul_f32 v{ST+8+r}, {f32bits(1.0/512):#x}, v{ST+8+r}")
    for r in range(2):
        ops.append(f"v_fma_f32 v{ST+8+r}, -v{ST+r}, v{ST+r}, v{ST+8+r}")
    for r in range(2):
        ops.append(f"v_max_f32 v{ST+8+r}, 0, v{ST+8+r}")
    for r in range(2):
        ops.append(f"v_add_f32 v{ST+8+r}, {f32bits(1e-5):#x}, v{ST+8+r}")
    for r in range(2):
        ops.append(f"v_rsq_f32 v{ST+8+r}, v{ST+8+r}")
    ops.append("s_nop 0")
    for r in range(2):
        ops.append(f"v_mul_f32 v{ST+r}, v{ST+r}, v{ST+8+r}")
    ops.append("s_nop 0")
    for r in range(8):
        ops.append(f"v_readlane_b32 s{78+2*r}, v{ST+8+(r&1)}, {16*(r>>1)}")
        ops.append(f"v_readlane_b32 s{79+2*r}, v{ST+(r&1)}, {16*(r>>1)}")
    for r in range(8):
        u = U + 8 * (r & 1)
        for i in range(4):
            ops.append(f"v_lshlrev_b32 v{u+2*i}, 16, v{X+4*r+i}")
            ops.append(f"v_and_b32 v{u+2*i+1}, 0xffff0000, v{X+4*r+i}")
        for i in range(4):
            ops.append(f"v_pk_fma_f32 {vr(u+2*i,2)}, {vr(u+2*i,2)}, s[{78+2*r}:{79+2*r}], s[{78+2*r}:{79+2*r}] op_sel:[0,0,1] op_sel_hi:[1,0,1]")
        for i in range(4):
            ops.append(f"v_cvt_pk_bf16_f32 v{X+4*r+i}, v{u+2*i}, v{u+2*i+1}")
        ops.append(f"ds_write_b128 v{vXW}, {vr(X+4*r,4)} offset:{r*16}")
    npre = env("K1_PRE", 2)
    issued = 0
    for _ in range(npre):
        a(dma.pop(0)); issued += 1
    step_ = env("K1_STEP", 24)
    k = 0
    for j, op in enumerate(ops):
        if isinstance(op, tuple):
            a(f"s_waitcnt vmcnt({7 - op[1] + issued})")
        else:
            a(op)
        if j >= pre + env("K1_SKIP", 40) and dma:
            k += 1
            if k % step_ == 0:
                a(dma.pop(0)); issued += 1
    assert not dma
    comp = a.label("k1_comp")
    a(f"s_cmp_lt_u32 s{S_WAVE}, 4")
    a(f"s_cbranch_scc1 {comp}")
    DW = env("K1_DW", 5)
    assert 2 * NPS <= DW <= NSW - 2
    for c in range(2 * NPS, DW):
        for sg in range(3):
            a(w_instr(c, sg))
    lp = a.label("k1ld")
    a(f"s_mov_b32 s47, {NC-DW}")
    a(f"s_add_u32 s48, s63, {DW*WCH}")
    a(f"s_add_u32 s39, s63, {NSW*WCH}")
    a(f"v_mov_b32 v{vT1}, 0")
    stamp(a, FS)
    a("s_waitcnt lgkmcnt(0)")
    a(f"{lp}:")
    a(f"s_waitcnt vmcnt({(DW-1)*3})")
    a("s_barrier")
    for sg in range(3):
        a(w_instr(0, sg, 48))
    a(f"s_add_u32 s48, s48, {WCH}")
    a("s_cmp_eq_u32 s48, s39")
    a("s_cselect_b32 s48, s63, s48")
    a("s_sub_u32 s47, s47, 1")
    a("s_cmp_lg_u32 s47, 0")
    a(f"s_cbranch_scc1 {lp}")
    a(f"global_load_dword v{vZ}, v{vT1}, s[94:95] sc1")
    for c in range(NC - DW, NC):
        a(f"s_waitcnt vmcnt({(NC - 1 - c)*3 + 1})")
        a("s_barrier")
    stamp(a, FS + 2)
    a(f"s_lshl_b32 s{S_SIG}, s{S_NT64}, 9")
    a(f"s_add_u32 s{S_SIG}, s{S_SIG}, {FL_Q:#x}")
    a.c("the counters must have been reset before this workgroup touches them")
    lp, ok = a.label("zpoll"), a.label("zok")
    a(f"s_mov_b32 s39, {SPIN_MAX}")
    a("s_waitcnt vmcnt(0)")
    a(f"{lp}:")
    a(f"v_cmp_eq_u32 vcc, 0, v{vZ}")
    a("s_sub_u32 s39, s39, 1")
    a("s_cmp_eq_u32 s39, 0")
    a(f"s_cbranch_scc1 {ok}")
    a(f"s_cbranch_vccz {ok}")
    a(f"global_load_dword v{vZ}, v{vT1}, s[94:95] sc1")
    a("s_waitcnt vmcnt(0)")
    a(f"s_branch {lp}")
    a(f"{ok}:")
    a("s_barrier")
    a(f"s_branch {end_label}")
    a(f"{comp}:")
    R2 = Regs(V_FREE + 4)
    vA, vW0, vW = R2.alloc(), R2.alloc(), R2.alloc()
    acc = [R2.alloc(16) for _ in range(3)]
    sets = [(R2.alloc(4), [R2.alloc(4) for _ in range(3)]) for _ in range(2)]
    a("s_waitcnt lgkmcnt(0)")
    a(f"s_and_b32 s24, s{S_WAVE}, 1")
    a(f"s_lshr_b32 s25, s{S_WAVE}, 1")
    a(f"s_mul_i32 s26, s24, {XT}")
    a(f"v_lshrrev_b32 v{vT0}, 5, v0")
    a(f"v_mul_u32_u24 v{vA}, {XB_}, v{vT0}")
    a(f"v_and_b32 v{vT1}, 31, v0")
    a(f"v_lshl_add_u32 v{vA}, v{vT1}, 4, v{vA}")
    a(f"v_add_u32 v{vA}, s26, v{vA}")
    a(f"v_bfe_u32 v{vT1}, v0, 2, 2")
    a(f"v_lshl_add_u32 v{vW0}, v{vT0}, 3, v{vT1}")
    a(f"v_lshlrev_b32 v{vW0}, 7, v{vW0}")
    a(f"v_and_b32 v{vT0}, 1, v0")
    a(f"v_bfe_u32 v{vT1}, v0, 1, 1")
    a(f"v_lshl_add_u32 v{vT0}, v{vT0}, 1, v{vT1}")
    a(f"v_lshl_add_u32 v{vW0}, v{vT0}, 3, v{vW0}")
    a(f"v_bfe_u32 v{vT0}, v0, 4, 1")
    a(f"v_lshl_add_u32 v{vW0}, v{vT0}, 5, v{vW0}")
    a(f"v_bfe_u32 v{vT0}, v0, 3, 1")
    a(f"v_xor_b32 v{vT0}, s25, v{vT0}")
    a(f"v_lshl_add_u32 v{vW0}, v{vT0}, 6, v{vW0}")
    a(f"v_add_u32 v{vW0}, {W0}, v{vW0}")
    a(f"v_mov_b32 v{vW}, v{vW0}")
    for t in range(3):
        for i in range(16):
            a(f"v_mov_b32 v{acc[t]+i}, 0")
    a("s_mov_b32 s37, 0")

    def read_list(ks, par):
        xa, wfs = sets[par]
        out = [f"ds_read_b128 {vr(xa,4)}, v{vA} offset:{ks*2*XB_}"]
        for t in range(3):
            for jj in range(2):
                out.append(f"ds_read_b64_tr_b16 {vr(wfs[t]+2*jj,2)}, v{vW} offset:{t*4096 + ks*2048 + jj*512}")
        return out

    def step(par, nxt, boundary, adv=False):
        xa, wfs = sets[par]
        issued = 0
        plan = [3, 5, 7]
        if boundary:
            a("s_barrier")
        for t in range(3):
            while issued < min(plan[t], len(nxt)):
                a(nxt[issued]); issued += 1
            a(f"s_waitcnt lgkmcnt({issued + 7 - (3 + 2*t)})")
            if t == 2:
                a(f"{MFMA} {vr(acc[t],16)}, {vr(xa,4)}, {vr(wfs[t],4)}, {vr(acc[t],16)}")
            else:
                a(f"{MFMA} {vr(acc[t],16)}, {vr(wfs[t],4)}, {vr(xa,4)}, {vr(acc[t],16)}")
        if adv:
            a(f"s_add_u32 s37, s37, {WCH}")
            a(f"s_cmp_eq_u32 s37, {NSW*WCH}")
            a("s_cselect_b32 s37, 0, s37")
            a(f"v_add_u32 v{vW}, s37, v{vW0}")
            a(f"v_add_u32 v{vA}, {4*XB_}, v{vA}")

    a("s_waitcnt vmcnt(0)")
    stamp(a, FS)
    a("s_barrier")
    stamp(a, FS + 1)
    for r in read_list(0, 0):
        a(r)
    lp = a.label("k1loop")
    a(f"s_mov_b32 s35, {NC-1}")
    a(f"{lp}:")
    step(0, read_list(1, 1), False, True)
    step(1, read_list(0, 0), True)
    a("s_sub_u32 s35, s35, 1")
    a("s_cmp_lg_u32 s35, 0")
    a(f"s_cbranch_scc1 {lp}")
    step(0, read_list(1, 1), False)
    step(1, [], False)
    stamp(a, FS + 2)
    ot = sets[0][0]
    a(f"s_lshl_b32 s26, s{S_NT64}, 1")
    a("s_add_u32 s26, s26, s25")
    a("s_lshl_b32 s26, s26, 17")
    a(f"s_add_u32 s27, s{S_TT64}, s24")
    a("s_lshl_b32 s27, s27, 10")
    a("s_add_u32 s26, s26, s27")
    a(f"v_bfe_u32 v{vT0}, v0, 4, 1")
    a(f"v_lshlrev_b32 v{vT0}, 16, v{vT0}")
    a(f"v_lshrrev_b32 v{vT1}, 5, v0")
    a(f"v_lshl_add_u32 v{vT0}, v{vT1}, 8, v{vT0}")
    a(f"v_and_b32 v{vT1}, 15, v0")
    a(f"v_lshl_add_u32 v{vT0}, v{vT1}, 4, v{vT0}")
    a(f"s_mov_b32 s28, {f32bits(QSCALE):#x}")
    a("s_mov_b32 s29, s28")
    K1SC = SC
    for t, base in ((0, B_Q), (1, B_K), (2, B_V)):
        for hh in range(2):
            o = ot + 4 * (2 * t + hh)
            for i in range(4):
                r = acc[t] + 8 * hh + 2 * i
                if t == 0:
                    a(f"v_pk_mul_f32 {vr(r,2)}, {vr(r,2)}, s[28:29]")
                a(f"v_cvt_pk_bf16_f32 v{o+i}, v{r}, v{r+1}")
            if t < 2:
                a(f"s_add_u32 s27, s26, {WS_IT0 + base + hh*65536:#x}")
                a(f"buffer_store_dwordx4 {vr(o,4)}, v{V_L16}, s[4:7], s27 offen{K1SC}")
            else:
                a(f"s_add_u32 s27, s26, {WS_IT0 + base:#x}")
                a(f"buffer_store_dwordx4 {vr(o,4)}, v{vT0}, s[4:7], s27 offen offset:{hh*512}{K1SC}")
    a("s_barrier")
    stamp(a, FS + 3)
    a(f"s_branch {end_label}")
    return max(R.n, R2.n)


class Cfg:
    def __init__(self, **kw):
        self.__dict__.update(kw)
        for k in ("DA", "NSA", "NSW", "PRE"):
            e = os.environ.get(self.name.upper() + "_" + k)
            if e:
                setattr(self, k, int(e))

NSTG = 14

def gemm_phase(a, g):
    NA, NW, NT, G, KC = g.NA, g.NW, g.NT, g.G, g.KC
    NC = g.KST // KC
    NSA, NSW, DA = min(g.NSA, NC), min(g.NSW, NC), g.DA
    ACH = NA * KC * 1024
    assert ACH == 8192
    WCH = NW * KC * 1024
    LW = NW * KC // 2
    ln = g.kind in ("qkv", "gu")
    A0 = 0
    W0 = NSA * ACH
    CS0 = W0 + NSW * WCH
    SCR = CS0 + (NW * 1024 if ln else 0)
    lds_total = SCR + (1024 if g.kind == "qkv" else 0)
    assert lds_total <= LDS_MAX, (g.name, lds_total)
    assert NSA >= DA + 2 or NSA == NC
    s_tt, s_nt = (S_TT128, S_NT128) if NA == 4 else (S_TT64, S_NT64)
    comp, wload, end = a.label(g.name + "_comp"), a.label(g.name + "_wl"), a.label(g.name + "_end")
    SB = g.sb
    a.c(f"================ phase {g.name} ================")
    a(f"s_cmp_lt_u32 s{S_WAVE}, 4")
    a(f"s_cbranch_scc1 {comp}")
    a(f"s_cmp_ge_u32 s{S_WAVE}, 6")
    a(f"s_cbranch_scc1 {wload}")
    a(f"s_and_b32 s25, s{S_WAVE}, 1")
    a("s_lshl_b32 s25, s25, 12")
    a(f"s_mul_i32 s22, s{s_tt}, {g.KST*1024}")
    a("s_add_u32 s22, s22, s25")
    a(f"s_add_u32 s22, s22, s{S_BASE}")
    a(f"s_add_u32 s22, s22, {g.ABUF:#x}")
    a("s_mov_b32 s26, s25")
    a(f"s_add_u32 s27, s25, {NSA*ACH}")
    nopoll = a.label("nopoll")
    a(f"s_lshr_b32 s23, s{s_tt}, {g.FIN_SH}")
    a("s_lshl_b32 s23, s23, 8")
    a(f"s_add_u32 s23, s23, s{S_FL}")
    a(f"s_add_u32 s23, s23, {g.FIN:#x}")
    a("s_waitcnt vmcnt(0)")
    a("s_barrier")
    stamp(a, SB)
    a(f"s_cmp_lg_u32 s{S_WAVE}, 4")
    a(f"s_cbranch_scc1 {nopoll}")
    handoff(a, 23, g.NEED)
    a(f"{nopoll}:")
    stamp(a, SB + 1)
    a("s_barrier")

    def issueA():
        a("s_mov_b32 m0, s26")
        a(f"s_add_u32 s26, s26, {ACH}")
        for i in range(0 if env("NOLOAD", 0) else 4):
            a(f"buffer_load_dwordx4 v{V_L16}, s[4:7], s22 offen offset:{i*1024}{SC} lds")
        a(f"s_add_u32 s22, s22, {ACH}")
        a("s_cmp_eq_u32 s26, s27")
        a("s_cselect_b32 s26, s25, s26")
    assert DA * 4 <= 63
    for _ in range(DA):
        issueA()
    if g.kind == "qkv":
        a(f"s_lshl_b32 s{S_SIG}, s{s_nt}, 8")
    else:
        a(f"s_lshr_b32 s{S_SIG}, s{s_tt}, 2")
        a(f"s_lshl_b32 s{S_SIG}, s{S_SIG}, 8")
    a(f"s_add_u32 s{S_SIG}, s{S_SIG}, s{S_FL}")
    a(f"s_add_u32 s{S_SIG}, s{S_SIG}, {g.FOUT:#x}")
    lp = a.label("asteady")
    a(f"s_mov_b32 s30, {NC-DA}")
    a(f"{lp}:")
    a(f"s_waitcnt vmcnt({(DA-1)*4})")
    a("s_barrier")
    issueA()
    a("s_sub_u32 s30, s30, 1")
    a("s_cmp_lg_u32 s30, 0")
    a(f"s_cbranch_scc1 {lp}")
    for c in range(NC - DA, NC):
        a(f"s_waitcnt vmcnt({(NC-1-c)*4})")
        if c == NC - 1:
            stamp(a, SB + 2)
        a("s_barrier")
    a("s_barrier")
    a(f"s_branch {end}")
    a(f"{wload}:")
    a(f"s_and_b32 s19, s{S_WAVE}, 1")
    a(f"s_mul_i32 s25, s19, {LW*1024}")
    a(f"s_mul_i32 s23, s{s_nt}, {g.WNT}")
    a(f"s_add_u32 s23, s23, {g.WBASE:#x}")
    stamp(a, SB)
    if ln:
        a.c("column-sum fragments (both loaders write the same bytes)")
        a(f"s_add_u32 s29, s23, {32*NW*1024}")
        n = 0
        while n < NW:
            a(f"s_mov_b32 m0, {CS0 + n*1024}")
            a("s_nop 0")
            for i in range(min(4, NW - n)):
                a(f"buffer_load_dwordx4 v{V_L16}, s[4:7], s29 offen offset:{i*1024}{SC} lds")
            n += 4
            if n < NW:
                a("s_add_u32 s29, s29, 4096")
    a("s_add_u32 s23, s23, s25")
    a(f"s_add_u32 s25, s25, {W0}")
    a("s_mov_b32 s26, s25")
    a(f"s_add_u32 s27, s25, {NSW*WCH}")

    def issueW():
        a("s_mov_b32 m0, s26")
        a("s_add_u32 s28, s26, 4096")
        for i in range(min(LW, 4)):
            a(f"buffer_load_dwordx4 v{V_L16}, s[4:7], s23 offen offset:{i*1024}{SC} lds")
        if LW > 4:
            a("s_mov_b32 m0, s28")
            a("s_add_u32 s29, s23, 4096")
            for i in range(LW - 4):
                a(f"buffer_load_dwordx4 v{V_L16}, s[4:7], s29 offen offset:{i*1024}{SC} lds")
        a(f"s_add_u32 s23, s23, {WCH}")
        a(f"s_add_u32 s26, s26, {WCH}")
        a("s_cmp_eq_u32 s26, s27")
        a("s_cselect_b32 s26, s25, s26")
    nb1 = min(NSW - 1, max(1, (env("WB1", 16) - (NW if ln else 0)) // LW))
    for n, last in ((nb1, False), (NSW - nb1, True)):
        lp = a.label("wpro")
        a(f"s_mov_b32 s30, {n}")
        a(f"{lp}:")
        issueW()
        a("s_sub_u32 s30, s30, 1")
        a("s_cmp_lg_u32 s30, 0")
        a(f"s_cbranch_scc1 {lp}")
        if not last:
            a(f"s_waitcnt vmcnt({nb1*LW + (NW if ln else 0)})")
            a("s_barrier")
    stamp(a, SB + 1)
    assert (NSW - 1) * LW <= 63
    nst = NC - NSW
    a("s_barrier")
    VS = V_FREE + 4
    if g.staged:
        a.c("the next chunks of the weights wait in registers: copy them into the ring as slots free up")
        nstg = min(nst, NSTG)
        assert nstg * LW * 4 + VS <= 256
        for i in range(2):
            a(f"v_add_u32 v{V_FREE+i}, {i*0x10000}, v{V_L16}")
            a(f"v_add_u32 v{V_FREE+i}, s25, v{V_FREE+i}")
        a(f"s_add_u32 s23, s23, {nstg*WCH}")
        a(f"s_add_u32 s26, s25, {(nstg % NSW)*WCH}")
        for c in range(NC):
            w = []
            if c < NSW:
                w.append(f"vmcnt({(NSW-1-c)*LW})")
            elif c < NSW + nstg:
                w.append(f"lgkmcnt({min(15, LW * max(0, min(nstg, c - 2) - (c - NSW) - 1))})")
            else:
                w.append(f"vmcnt({(min(NC - 1, c - 3 + NSW) - c)*LW})")
            a("s_waitcnt " + " ".join(w))
            a("s_barrier")
            j = c - 2
            if 0 <= j < nstg and not env("NOLOAD", 0):
                for i in range(LW):
                    off = (j % NSW) * WCH + i * 1024
                    a(f"ds_write_b128 v{V_FREE + (off >> 16)}, {vr(VS + (j*LW + i)*4, 4)} offset:{off & 0xffff}")
            elif nstg <= j < nst:
                assert c >= NSW
                issueW()
    else:
        for c in range(2):
            a(f"s_waitcnt vmcnt({(NSW-1-c)*LW})")
            a("s_barrier")
        if nst > 0:
            lp = a.label("wsteady")
            a(f"s_mov_b32 s30, {nst}")
            a(f"{lp}:")
            a(f"s_waitcnt vmcnt({(NSW-3)*LW})")
            a("s_barrier")
            if not env("NOLOAD", 0):
                issueW()
            a("s_sub_u32 s30, s30, 1")
            a("s_cmp_lg_u32 s30, 0")
            a(f"s_cbranch_scc1 {lp}")
        st = []
        if g.stage_next is not None:
            n = g.stage_next
            nlw = n.NW * n.KC // 2
            a.c("fetch the second half of the next phase's weights into registers")
            a(f"s_mul_i32 s22, s{S_NT64}, {n.WNT}")
            a(f"s_mul_i32 s24, s19, {nlw*1024}")
            a("s_add_u32 s22, s22, s24")
            a(f"s_add_u32 s22, s22, {n.WBASE + n.NSW*n.NW*n.KC*1024:#x}")
            for c in range(min(NSTG, n.KST // n.KC - n.NSW)):
                for i in range(nlw):
                    t = f"buffer_load_dwordx4 {vr(VS + (c*nlw + i)*4, 4)}, v{V_L16}, s[4:7], s22 offen offset:{i*1024}{SC}"
                    if i == nlw - 1:
                        t += f"\ns_add_u32 s22, s22, {n.NW*n.KC*1024}"
                    st.append(t)
        per = -(-len(st) // max(1, NC - nst - 2 + env("STG_SPILL", 0)))
        younger = 0
        for c in range(nst + 2, NC):
            for _ in range(min(per, len(st))):
                a(st.pop(0)); younger += 1
            a(f"s_waitcnt vmcnt({min(63, (NC-1-c)*LW + younger)})")
            a("s_barrier")
        while st:
            a(st.pop(0))
    a("s_barrier")
    a(f"s_branch {end}")

    a(f"{comp}:")
    R = Regs(V_FREE)
    vA0, vW0, vA, vW = R.alloc(), R.alloc(), R.alloc(), R.alloc()
    vRstd, vX = R.alloc(), R.alloc()
    acc = [R.alloc(16) for _ in range(NT)]
    sets = [[(R.alloc(4), [R.alloc(4) for _ in range(NT)]) for _ in range(G)] for _ in range(2)]
    tmp = R.alloc(16)
    xc = R.alloc(4)
    if g.kind == "qkv":
        vRs = R.alloc(16)
    if g.kind == "res":
        a(f"s_and_b32 s24, s{S_WAVE}, 1")
        a(f"s_lshr_b32 s25, s{S_WAVE}, 1")
        a(f"s_lshl_b32 s33, s{s_nt}, 1")
        a("s_add_u32 s33, s33, s25")
    else:
        a(f"s_mov_b32 s24, s{S_WAVE}")
        a("s_mov_b32 s25, 0")
    a(f"s_add_u32 s31, s{s_tt}, s24")
    a("s_lshl_b32 s26, s24, 10")
    a(f"v_add_u32 v{vA0}, s26, v{V_L16}")
    a("s_lshl_b32 s26, s25, 10")
    a(f"s_add_u32 s26, s26, {W0}")
    a(f"v_add_u32 v{vW0}, s26, v{V_L16}")
    if ln:
        for t in range(NT):
            for i in range(16):
                a(f"v_mov_b32 v{acc[t]+i}, 0")
        a("s_lshl_b32 s36, s31, 12")
        a(f"s_add_u32 s36, s36, s{S_BASE}")
        a(f"s_add_u32 s36, s36, {g.STIN:#x}")
    else:
        for i in range(8):
            a(f"v_lshlrev_b32 v{acc[0]+2*i}, 16, v{V_RES+i}")
            a(f"v_and_b32 v{acc[0]+2*i+1}, 0xffff0000, v{V_RES+i}")

    SPC = KC // G
    nreads = G * (1 + NT)

    def read_list(step, par):
        out = []
        for gi in range(G):
            ks = step * G + gi
            xa, wfs = sets[par][gi]
            out.append(f"ds_read_b128 {vr(xa,4)}, v{vA} offset:{ks*NA*1024}")
            for t in range(NT):
                out.append(f"ds_read_b128 {vr(wfs[t],4)}, v{vW} offset:{(ks*NW + t)*1024}")
        return out

    def adv_a():
        if NSA == NC:
            return [f"v_add_u32 v{vA}, {ACH}, v{vA}"]
        return [f"s_add_u32 s34, s34, {ACH}\ns_cmp_eq_u32 s34, {NSA*ACH}\ns_cselect_b32 s34, 0, s34",
                f"v_add_u32 v{vA}, s34, v{vA0}"]
    def adv_w():
        if NSW == NC:
            return [f"v_add_u32 v{vW}, {WCH}, v{vW}"]
        return [f"s_add_u32 s37, s37, {WCH}\ns_cmp_eq_u32 s37, {NSW*WCH}\ns_cselect_b32 s37, 0, s37",
                f"v_add_u32 v{vW}, s37, v{vW0}"]
    def advance():
        for x in adv_a() + adv_w():
            a(x)

    fill = []
    def mfma(t, xa, wf):
        if g.swap[t]:
            a(f"{MFMA} {vr(acc[t],16)}, {vr(xa,4)}, {vr(wf,4)}, {vr(acc[t],16)}")
        else:
            a(f"{MFMA} {vr(acc[t],16)}, {vr(wf,4)}, {vr(xa,4)}, {vr(acc[t],16)}")
        for _ in range(min(3, len(fill))):
            a(fill.pop(0))

    def mfmas(par, nxt, boundary=False, adv=False):
        nm = G * NT
        issued = 0
        k = 0
        if boundary:
            a("s_barrier")
        if env("NOCOMP", 0):
            return
        early = (adv_a()[:-1] + adv_w()[:-1]) if adv else []
        lateA = adv_a()[-1:] if adv else []
        lastA = max(i for i, r in enumerate(nxt) if f"v{vA} " in r) if adv else 0
        for gi in range(G):
            xa, wfs = sets[par][gi]
            for t in range(NT):
                want = min(len(nxt), -(-len(nxt) * (k + 1) // nm))
                while issued < want:
                    a(nxt[issued]); issued += 1
                done_needed = gi * (1 + NT) + 2 + t
                n = issued + nreads - done_needed
                a(f"s_waitcnt lgkmcnt({min(n, 15)})")
                mfma(t, xa, wfs[t])
                k += 1
                if k < nm:
                    if early:
                        a(early.pop(0))
                    elif lateA and issued > lastA:
                        a(lateA.pop(0))
        for x in early + lateA + (adv_w()[-1:] if adv else []):
            a(x)

    a("s_mov_b32 s34, 0")
    a("s_mov_b32 s37, 0")
    a(f"v_mov_b32 v{vA}, v{vA0}")
    a(f"v_mov_b32 v{vW}, v{vW0}")
    a("s_waitcnt vmcnt(0)")
    stamp(a, SB)
    a("s_barrier")
    a("s_barrier")
    a("s_barrier")
    stamp(a, SB + 1)
    for r in read_list(0, 0):
        a(r)
    if ln:
        for i in range(4):
            a(f"buffer_load_dwordx4 {vr(tmp+4*i,4)}, v{V_L16}, s[4:7], s36 offen offset:{i*1024}{SC}")
    CPI = 1 if SPC % 2 == 0 else 2

    if SPC == 1:
        advance()

    def chunk_body(par, last):
        for s in range(SPC):
            if s < SPC - 1:
                mfmas(par, read_list(s + 1, par ^ 1), adv=(s == SPC - 2 and not last))
            elif not last:
                mfmas(par, read_list(0, par ^ 1), boundary=True, adv=(SPC == 1))
            elif ln:
                wfs = sets[par ^ 1][0][1]
                mfmas(par, [f"ds_read_b128 {vr(wfs[t],4)}, v{vX} offset:{t*1024}" for t in range(NT)])
            else:
                mfmas(par, [])
            par ^= 1
        return par

    rem = g.PEEL
    nloop = (NC - rem) // CPI
    assert nloop * CPI + rem == NC
    lp = a.label("kloop")
    a(f"s_mov_b32 s35, {nloop}")
    a(f"{lp}:")
    par = 0
    for _ in range(CPI):
        par = chunk_body(par, False)
    assert par == 0
    a("s_sub_u32 s35, s35, 1")
    a("s_cmp_lg_u32 s35, 0")
    a(f"s_cbranch_scc1 {lp}")
    if ln:
        a.c("LayerNorm statistics -> (-mu) fragment and rstd, spread under the MFMAs")
        f = fill
        f.append("s_waitcnt vmcnt(0)")
        f.append(f"v_add_u32 v{vX}, {CS0}, v{V_L16}")
        n = 8
        while n > 1:
            n //= 2
            for p in range(n):
                f.append(f"v_add_f32 v{tmp+2*p}, v{tmp+2*p}, v{tmp+2*(p+n)}")
                f.append(f"v_add_f32 v{tmp+2*p+1}, v{tmp+2*p+1}, v{tmp+2*(p+n)+1}")
        f.append(f"v_mov_b32 v{tmp+2}, v{tmp}")
        f.append(f"v_mov_b32 v{tmp+3}, v{tmp+1}")
        f.append("s_nop 1")
        f.append(f"v_permlane32_swap_b32 v{tmp}, v{tmp+2}")
        f.append(f"v_permlane32_swap_b32 v{tmp+1}, v{tmp+3}")
        f.append(f"v_add_f32 v{tmp}, v{tmp}, v{tmp+2}")
        f.append(f"v_add_f32 v{tmp+1}, v{tmp+1}, v{tmp+3}")
        f.append(f"v_mul_f32 v{tmp}, {f32bits(-1.0/512):#x}, v{tmp}")
        f.append(f"v_mul_f32 v{tmp+1}, {f32bits(1.0/512):#x}, v{tmp+1}")
        f.append(f"v_fma_f32 v{tmp+1}, -v{tmp}, v{tmp}, v{tmp+1}")
        f.append(f"v_max_f32 v{tmp+1}, 0, v{tmp+1}")
        f.append(f"v_add_f32 v{tmp+1}, {f32bits(1e-5):#x}, v{tmp+1}")
        f.append(f"v_rsq_f32 v{vRstd}, v{tmp+1}")
        f.append(f"v_cvt_pk_bf16_f32 v{xc}, v{tmp}, v{tmp}")
        f.append(f"v_lshlrev_b32 v{tmp+2}, 16, v{xc}")
        f.append(f"v_sub_f32 v{tmp+2}, v{tmp}, v{tmp+2}")
        f.append(f"v_cvt_pk_bf16_f32 v{xc+1}, v{tmp+2}, v{tmp+2}")
        f.append(f"v_mov_b32 v{xc+2}, v{xc}")
        f.append(f"v_mov_b32 v{xc+3}, v{xc+1}")
    for i in range(rem):
        par = chunk_body(par, i == rem - 1)
    if ln:
        while fill:
            a(fill.pop(0))
        if g.kind == "qkv":
            a(f"s_lshl_b32 s26, s{S_WAVE}, 8")
            a(f"s_add_u32 s26, s26, {SCR}")
            a(f"v_add_u32 v{tmp+4}, s26, v{V_L4}")
            a(f"ds_write_b32 v{tmp+4}, v{vRstd}")
            a(f"v_lshrrev_b32 v{tmp+5}, 5, v0")
            a(f"v_lshl_add_u32 v{tmp+5}, v{tmp+5}, 4, s26")
        a("s_waitcnt lgkmcnt(0)")
        if g.kind == "qkv":
            for q in range(4):
                a(f"ds_read_b128 {vr(vRs+4*q,4)}, v{tmp+5} offset:{q*32}")
        else:
            a("s_nop 0")
        wfs = sets[par][0][1]
        for t in range(NT):
            mfma(t, xc, wfs[t])
        if g.kind == "qkv":
            a("s_waitcnt lgkmcnt(0)")
    EARLY = env("EARLY_END", 0)
    if EARLY:
        a("s_barrier")
    stamp(a, SB + 2)
    ot = sets[0][0][0]
    if g.kind == "qkv":
        a(f"s_lshl_b32 s26, s{s_nt}, 17")
        a("s_lshl_b32 s27, s31, 10")
        a("s_add_u32 s26, s26, s27")
        a(f"s_add_u32 s26, s26, s{S_BASE}")
        va = tmp + 8
        a(f"v_mul_f32 v{tmp+6}, {f32bits(QSCALE):#x}, v{vRstd}")
        a(f"v_bfe_u32 v{va}, v0, 4, 1")
        a(f"v_lshlrev_b32 v{va}, 16, v{va}")
        a(f"v_lshrrev_b32 v{va+1}, 5, v0")
        a(f"v_lshl_add_u32 v{va}, v{va+1}, 8, v{va}")
        a(f"v_and_b32 v{va+1}, 15, v0")
        a(f"v_lshl_add_u32 v{va}, v{va+1}, 4, v{va}")
        a("s_nop 1")
        for t, base, sc in ((0, B_Q, tmp + 6), (1, B_K, vRstd)):
            for hh in range(2):
                o = ot + 4 * (2 * t + hh)
                for i in range(4):
                    r = acc[t] + 8 * hh + 2 * i
                    a(f"v_mul_f32 v{r}, v{sc}, v{r}")
                    a(f"v_mul_f32 v{r+1}, v{sc}, v{r+1}")
                    a(f"v_cvt_pk_bf16_f32 v{o+i}, v{r}, v{r+1}")
                a(f"s_add_u32 s27, s26, {base + hh*65536:#x}")
                a(f"buffer_store_dwordx4 {vr(o,4)}, v{V_L16}, s[4:7], s27 offen{SC}")
        a(f"s_add_u32 s27, s26, {B_V:#x}")
        for hh in range(2):
            o = ot + 16 + 4 * hh
            for i in range(4):
                r = acc[2] + 8 * hh + 2 * i
                a(f"v_pk_mul_f32 {vr(r,2)}, {vr(vRs+8*hh+2*i,2)}, {vr(r,2)}")
                a(f"v_cvt_pk_bf16_f32 v{o+i}, v{r}, v{r+1}")
            a(f"buffer_store_dwordx4 {vr(o,4)}, v{va}, s[4:7], s27 offen offset:{hh*512}{SC}")
    elif g.kind == "gu":
        a("s_lshr_b32 s26, s31, 1")
        a(f"s_mul_i32 s26, s26, {112*2048}")
        a("s_and_b32 s27, s31, 1")
        a("s_lshl_b32 s27, s27, 10")
        a("s_add_u32 s26, s26, s27")
        a(f"s_mul_i32 s27, s{s_nt}, {7*2048}")
        a("s_add_u32 s26, s26, s27")
        a(f"s_add_u32 s26, s26, s{S_BASE}")
        a(f"s_add_u32 s26, s26, {B_H:#x}")
        a(f"v_mul_f32 v{tmp}, v{vRstd}, v{vRstd}")
        a(f"v_mov_b32 v{tmp+1}, v{tmp}")
        for t in range(NT):
            o = ot + 4 * t
            for i in range(4):
                r = acc[t] + 2 * i
                a(f"v_pk_mul_f32 {vr(r,2)}, {vr(r,2)}, {vr(r+8,2)}")
            for i in range(4):
                r = acc[t] + 2 * i
                a(f"v_pk_mul_f32 {vr(r,2)}, {vr(r,2)}, {vr(tmp,2)}")
            for i in range(4):
                r = acc[t] + 2 * i
                a(f"v_cvt_pk_bf16_f32 v{o+i}, v{r}, v{r+1}")
            a(f"buffer_store_dwordx4 {vr(o,4)}, v{V_L16}, s[4:7], s26 offen{SC}")
            a("s_add_u32 s26, s26, 2048")
    else:
        c0 = acc[0]
        fin = a.label("final")
        a("s_lshr_b32 s26, s31, 2")
        a("s_lshl_b32 s26, s26, 17")
        a("s_and_b32 s27, s31, 3")
        a("s_lshl_b32 s27, s27, 10")
        a("s_add_u32 s26, s26, s27")
        a("s_lshl_b32 s27, s33, 13")
        a("s_add_u32 s26, s26, s27")
        a(f"s_add_u32 s26, s26, s{S_BASE}")
        a(f"s_add_u32 s26, s26, {g.OUT:#x}")
        a("s_add_u32 s27, s26, 4096")
        a("s_lshl_b32 s28, s31, 12")
        a("s_lshr_b32 s29, s33, 1")
        a("s_lshl_b32 s29, s29, 9")
        a("s_add_u32 s28, s28, s29")
        for i in range(8):
            a(f"v_cvt_pk_bf16_f32 v{V_RES+i}, v{c0+2*i}, v{c0+2*i+1}")
        if g.final:
            a(f"s_cmp_eq_u32 s{S_IT}, 1")
            a(f"s_cbranch_scc1 {fin}")
        a(f"buffer_store_dwordx4 {vr(V_RES,4)}, v{V_L16}, s[4:7], s26 offen{SC}")
        a(f"buffer_store_dwordx4 {vr(V_RES+4,4)}, v{V_L16}, s[4:7], s27 offen{SC}")
        q = tmp
        a(f"v_pk_mul_f32 v[{q}:{q+1}], v[{c0}:{c0+1}], v[{c0}:{c0+1}]")
        for i in range(1, 8):
            a(f"v_pk_fma_f32 v[{q}:{q+1}], v[{c0+2*i}:{c0+2*i+1}], v[{c0+2*i}:{c0+2*i+1}], v[{q}:{q+1}]")
            a(f"v_pk_add_f32 v[{c0}:{c0+1}], v[{c0}:{c0+1}], v[{c0+2*i}:{c0+2*i+1}]")
        a(f"v_add_f32 v{q+2}, v{c0}, v{c0+1}")
        a(f"v_add_f32 v{q+3}, v{q}, v{q+1}")
        a("s_and_b32 s29, s33, 1")
        a("s_lshl_b32 s29, s29, 3")
        a(f"v_permlane32_swap_b32 v{q+2}, v{q+3}")
        a("s_add_u32 s28, s28, s29")
        a(f"s_add_u32 s28, s28, s{S_BASE}")
        a(f"v_add_f32 v{q+2}, v{q+2}, v{q+3}")
        a(f"s_add_u32 s28, s28, {g.STOUT:#x}")
        a(f"buffer_store_dword v{q+2}, v{V_ST}, s[4:7], s28 offen{SC}")
    if not EARLY:
        a("s_barrier")
    stamp(a, SB + 3)
    if g.kind == "res" and g.final:
        a(f"s_branch {end}")
        a(f"{fin}:")
        srd(a, 8, 70, 71, 2048 * 512 * 2)
        a(f"v_and_b32 v{tmp}, 31, v0")
        a(f"v_lshlrev_b32 v{tmp}, 10, v{tmp}")
        a(f"v_lshrrev_b32 v{tmp+1}, 5, v0")
        a(f"v_lshl_add_u32 v{tmp}, v{tmp+1}, 4, v{tmp}")
        a("s_lshl_b32 s26, s31, 15")
        a("s_lshl_b32 s27, s33, 6")
        a("s_add_u32 s26, s26, s27")
        a(f"buffer_store_dwordx4 {vr(V_RES,4)}, v{tmp}, s[8:11], s26 offen")
        a(f"buffer_store_dwordx4 {vr(V_RES+4,4)}, v{tmp}, s[8:11], s26 offen offset:32")
        if not EARLY:
            a("s_barrier")
        stamp(a, SB + 3)
    a(f"{end}:")
    return R.n


def attn_phase(a, SB, code_end):
    U = 2
    NIT = 32 // U
    B2IT = env("ATT_B2", 1)
    B3IT = env("ATT_B3", 3)
    PRIO_IT = env("ATT_PRIO", 14)
    CB = 0
    XB = CB + 4096
    KB, VB = 32768, 98304
    assert XB + 8 * 2304 <= KB
    R = Regs(V_FREE)
    vK, vV, vInc, vV0 = R.alloc(), R.alloc(), R.alloc(), R.alloc()
    t0, t1 = R.alloc(), R.alloc()
    Q = [R.alloc(4), R.alloc(4)]
    NM = [R.alloc(16), R.alloc(16)]
    O = [R.alloc(16), R.alloc(16)]
    S = [R.alloc(16), R.alloc(16)]
    P = R.alloc(8)
    KF = [R.alloc(4), R.alloc(4)]
    VF = [R.alloc(8), R.alloc(8)]
    a.c("================ phase attention ================")
    a(f"s_and_b32 s19, s{S_IDX}, 3")
    a(f"s_lshl_b32 s20, s{S_XCD}, 2")
    a("s_add_u32 s19, s19, s20")
    a(f"s_lshr_b32 s20, s{S_IDX}, 2")
    a("s_lshl_b32 s20, s20, 3")
    a(f"s_and_b32 s26, s{S_WAVE}, 3")
    a(f"s_lshr_b32 s27, s{S_WAVE}, 2")
    a("s_lshl_b32 s22, s26, 1")
    a("s_add_u32 s20, s20, s22")
    a("s_lshl_b32 s21, s19, 16")
    a(f"s_add_u32 s21, s21, s{S_BASE}")
    setup = a.label("att_setup")
    assert B_Q == 0 and B_V - B_K == 0x200000
    a("s_and_b32 s24, s26, 1")
    a("s_lshr_b32 s25, s26, 1")
    a("s_lshl_b32 s28, s24, 16")
    a(f"s_add_u32 s28, s28, {KB}")
    a("s_lshl_b32 s29, s24, 21")
    a("s_add_u32 s29, s29, s21")
    a(f"s_add_u32 s29, s29, {B_K:#x}")

    def dma(first_tile, per_wave):
        a(f"s_mul_i32 s24, s25, {per_wave*1024}")
        if first_tile:
            a(f"s_add_u32 s24, s24, {first_tile*1024}")
        n = 0
        while n < per_wave:
            a("s_add_u32 s30, s28, s24")
            a("s_mov_b32 m0, s30")
            a("s_add_u32 s31, s29, s24")
            for i in range(min(4, per_wave - n)):
                a(f"buffer_load_dwordx4 v{V_L16}, s[4:7], s31 offen offset:{i*1024}{SC} lds")
            n += 4
            if n < per_wave:
                a("s_add_u32 s24, s24, 4096")
    a(f"v_and_b32 v{t0}, 11, v0")
    a(f"v_cmp_eq_u32 vcc, 0, v{t0}")
    a(f"v_mov_b32 v{t1}, 0x3f803f80")
    a("s_lshl_b32 s30, s26, 10")
    a(f"s_add_u32 s30, s30, {CB}")
    a(f"v_cndmask_b32 v{P}, 0, v{t1}, vcc")
    a(f"v_add_u32 v{t0}, s30, v{V_L16}")
    for i in range(1, 4):
        a(f"v_mov_b32 v{P+i}, v{P}")
    a(f"ds_write_b128 v{t0}, {vr(P,4)}")
    a(f"v_lshrrev_b32 v{t0}, 5, v0")
    a(f"v_lshlrev_b32 v{t0}, 8, v{t0}")
    a(f"v_and_b32 v{t1}, 15, v0")
    a(f"v_lshl_add_u32 v{t0}, v{t1}, 4, v{t0}")
    a(f"v_and_b32 v{t1}, 16, v0")
    a(f"v_cmp_eq_u32 vcc, 0, v{t1}")
    a("s_lshl_b32 s30, s27, 15")
    a(f"s_add_u32 s30, s30, {KB}")
    a(f"v_add_u32 v{vK}, s30, v{V_L16}")
    a("s_add_u32 s31, s30, 0x10000")
    a(f"v_mov_b32 v{t1}, s31")
    a(f"v_mov_b32 v{vInc}, {CB}")
    a(f"v_cndmask_b32 v{t1}, v{vInc}, v{t1}, vcc")
    a(f"v_add_u32 v{vV}, v{t0}, v{t1}")
    a(f"v_mov_b32 v{t1}, {VB}")
    a(f"v_cndmask_b32 v{t1}, v{vInc}, v{t1}, vcc")
    a(f"v_add_u32 v{vV0}, v{t0}, v{t1}")
    a(f"v_mov_b32 v{t1}, {U*1024}")
    a(f"v_cndmask_b32 v{vInc}, 0, v{t1}, vcc")
    for q in range(2):
        for i in range(16):
            a(f"v_mov_b32 v{O[q]+i}, 0")
    for i in range(4, 8):
        a(f"v_mov_b32 v{P+i}, 0")
    for i in range(4, 8):
        a(f"v_mov_b32 v{VF[1]+i}, 0")
    a(f"ds_write_b128 v{V_L16}, {vr(VF[1]+4,4)} offset:{XB + 9216}")
    a("s_lshl_b32 s30, s26, 11")
    a(f"s_add_u32 s30, s30, {XB}")
    a(f"v_add_u32 v{t0}, s30, v{V_L16}")
    nw = a.label("nowait")
    a("s_cmp_lg_u32 s27, 0")
    a(f"s_cbranch_scc1 {nw}")
    a("s_waitcnt vmcnt(0)")
    a(f"{nw}:")
    a("s_waitcnt lgkmcnt(0)")
    stamp(a, SB)
    a("s_barrier")
    a(f"s_cmp_lg_u32 s{S_WAVE}, 4")
    a(f"s_cbranch_scc1 {setup}")
    a.c("wave 4: wait for Q/K/V of this head, then fetch the first tiles")
    a("s_lshr_b32 s23, s19, 1")
    a(f"s_cmp_eq_u32 s{S_IT}, 0")
    a("s_cselect_b32 s53, 32, 16")
    a("s_cselect_b32 s52, -2, -1")
    a("s_and_b32 s23, s23, s52")
    a("s_lshl_b32 s23, s23, 8")
    a(f"s_add_u32 s23, s23, s{S_FL}")
    a(f"s_add_u32 s23, s23, {FL_Q:#x}")
    a("s_lshl_b32 s22, s20, 10")
    a("s_add_u32 s22, s22, s21")
    a(f"s_add_u32 s31, s29, {B_V - B_K:#x}")
    handoff(a, 23, "s53")
    stamp(a, SB + 1)
    for m0v, so in ((KB, "s29"), (XB, "s22"), (XB + 4096, "s30"), (VB, "s31")):
        a(f"s_mov_b32 m0, {m0v}")
        a("s_add_u32 s30, s22, 4096")
        for i in range(4):
            a(f"buffer_load_dwordx4 v{V_L16}, s[4:7], {so} offen offset:{i*1024}{SC} lds")
    a(f"s_lshr_b32 s{S_SIG}, s{S_IDX}, 2")
    a(f"s_lshl_b32 s{S_SIG}, s{S_SIG}, 8")
    a(f"s_add_u32 s{S_SIG}, s{S_SIG}, s{S_FL}")
    assert FL_A == 0

    a(f"{setup}:")
    a("s_waitcnt vmcnt(0)")
    a("s_barrier")
    stamp(a, SB + 2)
    a(f"ds_read_b128 {vr(Q[0],4)}, v{t0}")
    a(f"ds_read_b128 {vr(Q[1],4)}, v{t0} offset:1024")
    older = a.label("older")
    a(f"s_mov_b32 s32, {NIT - B2IT}")
    a(f"s_mov_b32 s33, {NIT - B3IT}")
    a("s_mov_b32 s34, -1")
    a("s_cmp_eq_u32 s27, 0")
    a(f"s_cbranch_scc1 {older}")
    dma(4, 6)
    dma(16, 8)
    a("s_waitcnt vmcnt(8)")
    a("s_barrier")
    dma(32, 16)
    a("s_waitcnt vmcnt(0)")
    a("s_barrier")
    a("s_mov_b32 s32, -1")
    a(f"s_cmp_eq_u32 s{S_IT}, 0")
    a(f"s_cselect_b32 s33, {env('X_START', 0)}, 4")
    a(f"s_mov_b32 s34, {NIT - 1}")
    a.c("L2 prefetch (wave 4): this workgroup's share of gate/up (8 x 8 KB) and wo (2 x 8 KB)")
    a(f"s_mul_i32 s50, s{S_IDX}, 59136")
    a(f"s_and_b32 s23, s{S_XCD}, 1")
    a(f"s_mul_i32 s23, s23, {8*231*1024}")
    a("s_add_u32 s50, s50, s23")
    a(f"s_add_u32 s50, s50, {WS_WGU:#x}")
    a(f"s_lshl_b32 s51, s{S_IDX}, 14")
    a(f"s_add_u32 s51, s51, {WS_WO:#x}")
    a("s_setprio 1")
    a(f"{older}:")
    a(f"ds_read_b128 {vr(KF[1],4)}, v{V_L16} offset:{KB}")
    a(f"ds_read_b128 {vr(KF[0],4)}, v{vK}")
    a(f"ds_read_b128 {vr(VF[0],4)}, v{vV}")
    a(f"ds_read_b128 {vr(VF[0]+4,4)}, v{vV} offset:512")
    a("s_waitcnt lgkmcnt(0)")
    for q in range(2):
        a(f"{MFMA} {vr(S[q],16)}, {vr(KF[1],4)}, {vr(Q[q],4)}, 0")
    a("s_nop 11")
    for q, t in ((0, t0), (1, t1)):
        a(f"v_max3_f32 v{t}, v{S[q]}, v{S[q]+1}, v{S[q]+2}")
        for i in range(3, 15, 2):
            a(f"v_max3_f32 v{t}, v{t}, v{S[q]+i}, v{S[q]+i+1}")
        a(f"v_max_f32 v{t}, v{t}, v{S[q]+15}")
        a(f"v_mov_b32 v{P+q}, v{t}")
    a("s_nop 1")
    a(f"v_permlane32_swap_b32 v{t0}, v{P}")
    a(f"v_permlane32_swap_b32 v{t1}, v{P+1}")
    a("s_nop 0")
    a(f"v_max_f32 v{t0}, v{t0}, v{P}")
    a(f"v_max_f32 v{t1}, v{t1}, v{P+1}")
    for i in range(16):
        a(f"v_sub_f32 v{NM[0]+i}, 0, v{t0}")
    a(f"v_sub_f32 v{NM[1]}, 0, v{t1}")
    a(f"v_sub_f32 v{NM[1]+1}, 0, v{t1}")
    a(f"{MFMA} {vr(S[0],16)}, {vr(KF[0],4)}, {vr(Q[0],4)}, {vr(NM[0],16)}")
    for i in range(2, 16):
        a(f"v_sub_f32 v{NM[1]+i}, 0, v{t1}")
    a(f"s_mov_b32 s31, {NIT}")
    stamp(a, SB + 3)
    lp, hook, back = a.label("attn"), a.label("hook"), a.label("back")
    a(f"{lp}:")
    for u in range(U):
        for q in range(2):
            c = S[q]
            E = lambda i: a(f"v_exp_f32 v{c+i}, v{c+i}")
            C = lambda j: a(f"v_cvt_pk_bf16_f32 v{P+j}, v{c+2*j}, v{c+2*j+1}")
            E(0); E(1)
            pv = VF[(u + 1) & 1] if q == 0 else VF[u & 1]
            a(f"{MFMA} {vr(O[q^1],16)}, {vr(pv+4,4)}, {vr(P+4,4)}, {vr(O[q^1],16)}")
            E(2)
            if q == 0:
                a(f"ds_read_b128 {vr(KF[(u+1)&1],4)}, v{vK} offset:{(u+1)*1024}")
            E(3); C(0); E(4)
            if q == 0:
                a(f"ds_read_b128 {vr(VF[(u+1)&1],4)}, v{vV} offset:{(u+1)*1024}")
            E(5); C(1); E(6)
            if q == 0:
                a(f"{MFMA} {vr(S[1],16)}, {vr(KF[u&1],4)}, {vr(Q[1],4)}, {vr(NM[1],16)}")
            else:
                a("s_waitcnt lgkmcnt(0)")
                a(f"{MFMA} {vr(S[0],16)}, {vr(KF[(u+1)&1],4)}, {vr(Q[0],4)}, {vr(NM[0],16)}")
            E(7); C(2); E(8)
            if q == 0:
                a(f"ds_read_b128 {vr(VF[(u+1)&1]+4,4)}, v{vV} offset:{(u+1)*1024+512}")
            C(3); E(9); E(10); C(4); E(11)
            a(f"{MFMA} {vr(O[q],16)}, {vr(VF[u&1],4)}, {vr(P,4)}, {vr(O[q],16)}")
            E(12); C(5); E(13); E(14); E(15); C(6)
            if u == U - 1 and q == 1:
                a(f"v_add_u32 v{vK}, {U*1024}, v{vK}")
                a(f"v_add_u32 v{vV}, v{vInc}, v{vV}")
            C(7)
    a("s_sub_u32 s31, s31, 1")
    a("s_cmp_eq_u32 s31, s32")
    a(f"s_cbranch_scc1 {hook}")
    a("s_cmp_eq_u32 s31, s34")
    a(f"s_cbranch_scc1 {hook}")
    a(f"{back}:")
    a("s_cmp_lg_u32 s31, 0")
    a(f"s_cbranch_scc1 {lp}")
    a(f"{MFMA} {vr(O[1],16)}, {vr(VF[1]+4,4)}, {vr(P+4,4)}, {vr(O[1],16)}")
    stamp(a, SB + 4)
    a("s_mul_i32 s30, s26, 2304")
    a(f"s_add_u32 s30, s30, {XB}")
    a("s_lshl_b32 s31, s26, 12")
    a(f"s_add_u32 s31, s31, {XB + 12288}")
    a("s_cmp_eq_u32 s27, 0")
    a("s_cselect_b32 s28, s30, s31")
    a("s_cselect_b32 s29, s31, s30")
    a(f"v_add_u32 v{t0}, s28, v{V_L16}")
    a(f"v_add_u32 v{t1}, s29, v{V_L16}")
    a(f"v_add_u32 v{vK}, s28, v{V_L4}")
    a(f"v_add_u32 v{vV}, s29, v{V_L4}")
    a("s_add_u32 s20, s20, s27")
    a("s_nop 3")
    k1, kj = a.label("keep1"), a.label("keepj")
    a("s_cmp_eq_u32 s27, 0")
    a(f"s_cbranch_scc0 {k1}")
    a(f"ds_write_b128 v{t0}, {vr(O[1],4)}")
    a(f"ds_write_b128 v{t0}, {vr(O[1]+4,4)} offset:1024")
    a(f"ds_write_b32 v{vK}, v{O[1]+8} offset:2048")
    a(f"s_branch {kj}")
    a(f"{k1}:")
    a(f"ds_write_b128 v{t0}, {vr(O[0],4)}")
    a(f"ds_write_b128 v{t0}, {vr(O[0]+4,4)} offset:1024")
    a(f"ds_write_b32 v{vK}, v{O[0]+8} offset:2048")
    a("s_waitcnt lgkmcnt(0)")
    for i in range(9):
        a(f"v_mov_b32 v{O[0]+i}, v{O[1]+i}")
    for i in range(4):
        a(f"v_mov_b32 v{Q[0]+i}, v{Q[1]+i}")
    a(f"{kj}:")
    a("s_lshr_b32 s22, s20, 1")
    a("s_lshl_b32 s22, s22, 16")
    a("s_and_b32 s23, s20, 1")
    a("s_lshl_b32 s23, s23, 10")
    a("s_add_u32 s22, s22, s23")
    a("s_lshl_b32 s23, s19, 11")
    a("s_add_u32 s22, s22, s23")
    a(f"s_add_u32 s22, s22, s{S_BASE}")
    a(f"s_add_u32 s22, s22, {B_O:#x}")
    a("s_waitcnt vmcnt(0) lgkmcnt(0)")
    a("s_barrier")
    a(f"ds_read_b128 {vr(S[0],4)}, v{t1}")
    a(f"ds_read_b128 {vr(S[0]+4,4)}, v{t1} offset:1024")
    a(f"ds_read_b32 v{S[0]+8}, v{vV} offset:2048")
    a("s_waitcnt lgkmcnt(0)")
    OO = O[0]
    for i in range(9):
        a(f"v_add_f32 v{OO+i}, v{OO+i}, v{S[0]+i}")
    fin, fb, endl = a.label("fin"), a.label("fallback"), a.label("att_end")
    a(f"v_add_f32 v{t1}, v{OO}, v{OO+1}")
    for i in range(2, 8):
        a(f"v_add_f32 v{t1}, v{t1}, v{OO+i}")
    a(f"v_fma_f32 v{t1}, 0, v{t1}, v{OO+8}")
    a(f"v_cmp_ngt_f32 vcc, {f32bits(2.0**64):#x}, v{t1}")
    a(f"v_rcp_f32 v{t0}, v{OO+8}")
    a("s_cmp_lg_u64 vcc, 0")
    a(f"s_cbranch_scc1 {fb}")
    a(f"{fin}:")
    for i in range(8):
        a(f"v_mul_f32 v{OO+i}, v{t0}, v{OO+i}")
    for i in range(4):
        a(f"v_cvt_pk_bf16_f32 v{P+i}, v{OO+2*i}, v{OO+2*i+1}")
    a(f"buffer_store_dwordx4 {vr(P,4)}, v{V_L16}, s[4:7], s22 offen{SC}")
    a("s_barrier")
    stamp(a, SB + 5)
    a(f"s_branch {endl}")
    a(f"{hook}:")
    hp = a.label("hookp")
    a("s_cmp_eq_u32 s27, 0")
    a(f"s_cbranch_scc0 {hp}")
    a("s_barrier")
    a("s_mov_b32 s32, s33")
    a("s_mov_b32 s33, -1")
    a(f"s_add_u32 s23, s32, s{S_IT}")
    a("s_cmp_lg_u32 s23, -1")
    a(f"s_cbranch_scc1 {back}")
    a.c("residual tile of x for the first output projection")
    a(f"v_and_b32 v{V_TF}, 31, v0")
    a(f"v_lshlrev_b32 v{V_TF}, 10, v{V_TF}")
    a(f"v_lshrrev_b32 v{V_TF+1}, 5, v0")
    a(f"v_lshl_add_u32 v{V_TF}, v{V_TF+1}, 4, v{V_TF}")
    a(f"s_and_b32 s23, s{S_WAVE}, 1")
    a(f"s_add_u32 s23, s23, s{S_TT64}")
    a("s_lshl_b32 s23, s23, 15")
    a(f"s_lshl_b32 s24, s{S_NT64}, 1")
    a(f"s_lshr_b32 s25, s{S_WAVE}, 1")
    a("s_add_u32 s24, s24, s25")
    a("s_lshl_b32 s24, s24, 6")
    a("s_add_u32 s23, s23, s24")
    a(f"buffer_load_dwordx4 {vr(V_RES,4)}, v{V_TF}, s[8:11], s23 offen")
    a(f"buffer_load_dwordx4 {vr(V_RES+4,4)}, v{V_TF}, s[8:11], s23 offen offset:32")
    a(f"s_branch {back}")
    a(f"{hp}:")
    gaps = [3, 2, 3, 1, 1, 1, 1]
    assert 1 + sum(gaps) < PRIO_IT
    hs = [a.label(f"hs{i}") for i in range(9)]
    for i in (0, 1, 2, 3, 7, 8):
        a(f"s_cmp_eq_u32 s33, {i}")
        a(f"s_cbranch_scc1 {hs[i]}")
    HS = env("HSTAMP", 0)
    def next_step(i):
        if i - HS in (0, 1):
            stamp(a, 1 + 2 * (i - HS))
        a("s_add_u32 s33, s33, 1")
        a(f"s_sub_u32 s34, s34, {gaps[i]}")
        a(f"s_branch {back}")
    a(f"s_cmp_lg_u32 s{S_WAVE}, 4")
    a(f"s_cbranch_scc1 {hs[7]}")
    for i in range(3):
        a(f"buffer_load_dword v{V_PF}, v{V_L128}, s[4:7], s50 offen{SC}")
        a("s_add_u32 s50, s50, 8192")
    a(f"buffer_load_dword v{V_PF}, v{V_L128}, s[4:7], s51 offen{SC}")
    a("s_xor_b32 s51, s51, 8192")
    next_step(4)
    a(f"{hs[7]}:")
    a("s_mov_b32 s33, 8")
    a(f"s_mov_b32 s34, {NIT - PRIO_IT}")
    a(f"s_branch {back}")
    a(f"{hs[8]}:")
    a("s_setprio 0")
    a(f"s_branch {back}")
    F, G_, vS, vR, vC = V_TF, V_TF + 32, V_TF + 48, V_TF + 49, V_TF + 52
    CSA = XB + 10240
    CNT = XB + 9216
    a(f"{hs[0]}:")
    if 0 - HS in (0, 1):
        stamp(a, 2 * (0 - HS))
    a.c("re-tiling task: 128 rows x two 64-column strips; this wave takes 32 rows")
    l_gu, l_o, l_d, l_go = [a.label(x) for x in ("gu", "o", "d", "go")]
    a("s_cmp_ge_u32 s2, 176")
    a(f"s_cbranch_scc1 {l_d}")
    a("s_cmp_ge_u32 s2, 160")
    a(f"s_cbranch_scc1 {l_o}")
    a("s_cmp_ge_u32 s2, 48")
    a(f"s_cbranch_scc1 {l_gu}")
    srd(a, 80, 66, 67, 512 * 1536 * 2)
    srd(a, 84, 66, 67, 512 * 1536 * 2)
    a("s_and_b32 s79, s2, 3")
    a("s_lshr_b32 s54, s2, 2")
    a("s_mov_b32 s88, 3072")
    a("s_lshl_b32 s89, s54, 8")
    a("s_add_u32 s90, s89, 128")
    a("s_mov_b32 s91, 0")
    a("s_and_b32 s62, s54, 3")
    a(f"s_mul_i32 s96, s62, {4*99*1024}")
    a("s_lshr_b32 s62, s54, 2")
    a("s_lshl_b32 s62, s62, 10")
    a("s_add_u32 s96, s96, s62")
    assert WS_WQKV == 0
    a(f"s_add_u32 s97, s96, {99*1024}")
    a(f"s_add_u32 s100, s96, {2*99*1024}")
    a(f"s_add_u32 s101, s96, {3*99*1024}")
    a("s_mov_b32 s93, 3072")
    a("s_mov_b32 s63, 1")
    a(f"s_branch {l_go}")
    a(f"{l_gu}:")
    srd(a, 80, 72, 73, 512 * 1792 * 2)
    srd(a, 84, 74, 75, 512 * 1792 * 2)
    a("s_sub_u32 s55, s2, 48")
    a("s_and_b32 s79, s55, 3")
    a("s_lshr_b32 s54, s55, 2")
    a("s_mov_b32 s88, 3584")
    a("s_lshl_b32 s89, s54, 7")
    a("s_mov_b32 s90, s89")
    a("s_mov_b32 s91, 1")
    a("s_lshl_b32 s55, s54, 2")
    for d in (96, 97, 100, 101):
        a("s_mul_i32 s62, s55, 9363")
        a("s_lshr_b32 s62, s62, 16")
        a(f"s_mul_i32 s{d}, s62, {224*1024}")
        a("s_lshl_b32 s62, s55, 10")
        a(f"s_add_u32 s{d}, s{d}, s62")
        a(f"s_add_u32 s{d}, s{d}, {WS_WGU:#x}")
        a("s_add_u32 s55, s55, 1")
    a("s_mov_b32 s93, 7168")
    a("s_mov_b32 s63, 1")
    a(f"s_branch {l_go}")
    for lab, first, lo, nbytes, wnt, wbase in ((l_o, 160, 68, 512 * 512 * 2, 64 * 1024, WS_WO),
                                               (l_d, 176, 76, 1792 * 512 * 2, 224 * 1024, WS_WD)):
        a(f"{lab}:")
        srd(a, 80, lo, lo + 1, nbytes)
        srd(a, 84, lo, lo + 1, nbytes)
        a(f"s_sub_u32 s55, s2, {first}")
        a("s_lshr_b32 s79, s55, 2")
        a("s_and_b32 s54, s55, 3")
        a("s_mov_b32 s88, 1024")
        a("s_lshl_b32 s89, s54, 8")
        a("s_add_u32 s90, s89, 128")
        a("s_mov_b32 s91, 0")
        a(f"s_mul_i32 s96, s54, {2*wnt}")
        a(f"s_add_u32 s96, s96, {wbase:#x}")
        a("s_add_u32 s97, s96, 1024")
        a(f"s_add_u32 s100, s96, {wnt}")
        a(f"s_add_u32 s101, s96, {wnt+1024}")
        a("s_mov_b32 s93, 2048")
        a("s_mov_b32 s63, 0")
        if lab == l_o:
            a(f"s_branch {l_go}")
    a(f"{l_go}:")
    a("s_lshl_b32 s62, s79, 2")
    a("s_add_u32 s62, s62, s26")
    a("s_lshl_b32 s92, s62, 1")
    a("s_mul_i32 s92, s92, s93")
    a("s_lshl_b32 s62, s62, 5")
    a("s_mul_i32 s62, s62, s88")
    a("s_add_u32 s89, s89, s62")
    a("s_add_u32 s90, s90, s62")
    a("s_lshl_b32 s55, s88, 3")
    a(f"v_lshrrev_b32 v{vS}, 3, v0")
    a(f"v_mul_lo_u32 v{vS}, v{vS}, s88")
    a(f"v_and_b32 v{vR}, 7, v0")
    a(f"v_lshl_add_u32 v{vS}, v{vR}, 4, v{vS}")
    for g8 in range(4):
        for h in range(2):
            a(f"buffer_load_dwordx4 {vr(F+8*g8+4*h,4)}, v{vS}, s[{80+4*h}:{83+4*h}], s{89+h} offen")
            a(f"s_add_u32 s{89+h}, s{89+h}, s55")
    next_step(0)
    a(f"{hs[1]}:")
    if 1 - HS in (0, 1):
        stamp(a, 2 * (1 - HS))
    nost = a.label("nostore")
    a("s_cmp_ge_u32 s2, 232")
    a(f"s_cbranch_scc1 {nost}")
    a("s_lshl_b32 s62, s26, 12")
    a(f"s_add_u32 s62, s62, {XB + 12288}")
    a(f"v_add_u32 v{vS}, s62, v{V_L16}")
    a(f"v_and_b32 v{vC}, 1, v0")
    a(f"v_bfe_u32 v{vC+1}, v0, 1, 1")
    a(f"v_lshl_add_u32 v{vC}, v{vC}, 1, v{vC+1}")
    a(f"v_lshrrev_b32 v{vR}, 5, v0")
    a(f"v_bfe_u32 v{vC+1}, v0, 2, 2")
    a(f"v_lshl_add_u32 v{vR}, v{vR}, 3, v{vC+1}")
    a(f"v_lshlrev_b32 v{vR}, 7, v{vR}")
    a(f"v_lshl_add_u32 v{vR}, v{vC}, 3, v{vR}")
    a("s_cmp_eq_u32 s91, 0")
    a("s_cselect_b32 s54, 5, 11")
    a("s_cselect_b32 s55, 64, 32")
    a("s_cselect_b32 s78, 2048, 64")
    a(f"v_bfe_u32 v{vC+1}, v0, 4, 1")
    a(f"v_lshlrev_b32 v{vC+1}, s54, v{vC+1}")
    a(f"v_add3_u32 v{vR}, v{vR}, v{vC+1}, s62")
    a(f"v_add_u32 v{vR+1}, s55, v{vR}")
    a(f"v_add_u32 v{vR+2}, s78, v{vR}")
    a(f"v_add_u32 v{vC+4}, s78, v{vR+1}")
    tr_addr = [vR, vR + 1, vR + 2, vC + 4]
    dests = (96, 97, 100, 101)
    a("s_mov_b32 s49, 0x3f803f80")
    a("s_waitcnt vmcnt(0)")
    for half in range(2):
        dst = G_ if half == 0 else F
        for g8 in range(2):
            for h in range(2):
                a(f"ds_write_b128 v{vS}, {vr(F+16*half+8*g8+4*h,4)} offset:{h*2048 + g8*1024}")
        for t in range(4):
            for jj in range(2):
                a(f"ds_read_b64_tr_b16 {vr(dst+4*t+2*jj,2)}, v{tr_addr[t]} offset:{jj*512}")
        a("s_waitcnt lgkmcnt(0)")
        for t in range(4):
            a(f"s_add_u32 s62, s{dests[t]}, s92")
            if not env("X_NOST", 0):
                a(f"buffer_store_dwordx4 {vr(dst+4*t,4)}, v{V_L16}, s[4:7], s62 offen{'' if env('X_PLAIN', 0) else SC}")
        a("s_add_u32 s92, s92, s93")
    a("s_cmp_eq_u32 s63, 0")
    a(f"s_cbranch_scc1 {nost}")
    if env("X_NOCS", 0):
        a(f"s_branch {nost}")
    for t in range(4):
        a(f"v_mov_b32 v{vC+t}, 0")
    for k in range(4):
        for t in range(4):
            a(f"v_dot2c_f32_bf16 v{vC+t}, s49, v{G_+4*t+k}")
        for t in range(4):
            a(f"v_dot2c_f32_bf16 v{vC+t}, s49, v{F+4*t+k}")
    a("s_lshl_b32 s62, s26, 9")
    a(f"v_add_u32 v{vS}, s62, v{V_L4}")
    a(f"v_mov_b32 v{vR}, 1")
    a(f"v_mov_b32 v{vR+1}, {CNT}")
    a(f"v_permlane32_swap_b32 v{vC}, v{vC+1}")
    a(f"v_permlane32_swap_b32 v{vC+2}, v{vC+3}")
    a("s_nop 0")
    a(f"v_add_f32 v{vC}, v{vC}, v{vC+1}")
    a(f"v_add_f32 v{vC+2}, v{vC+2}, v{vC+3}")
    a(f"ds_write_b32 v{vS}, v{vC} offset:{CSA}")
    a(f"ds_write_b32 v{vS}, v{vC+2} offset:{CSA + 256}")
    a("s_mov_b64 exec, 1")
    a(f"ds_add_rtn_u32 v{vR+2}, v{vR+1}, v{vR}")
    a("s_mov_b64 exec, -1")
    a("s_waitcnt lgkmcnt(0)")
    a(f"v_readfirstlane_b32 s62, v{vR+2}")
    a("s_nop 0")
    a("s_cmp_lg_u32 s62, 3")
    a(f"s_cbranch_scc1 {nost}")
    a.c("last of the four waves: write the column-sum pieces")
    for w in range(4):
        for p in range(2):
            a(f"ds_read_b32 v{F+16+2*w+p}, v{V_L4} offset:{CSA + w*512 + p*256}")
    a("s_lshl_b32 s92, s93, 5")
    a("s_lshr_b32 s62, s79, 1")
    a("s_lshl_b32 s62, s62, 9")
    a("s_add_u32 s92, s92, s62")
    a("s_and_b32 s62, s79, 1")
    a("s_lshl_b32 s62, s62, 3")
    a("s_add_u32 s92, s92, s62")
    a("v_cmp_gt_u32 vcc, 32, v0")
    a(f"v_and_b32 v{vS}, 0x1ff, v{V_L16}")
    for p in range(2):
        a(f"v_mov_b32 v{vC}, s{dests[2*p]}")
        a(f"v_mov_b32 v{vC+1}, s{dests[2*p+1]}")
        a(f"v_cndmask_b32 v{vC}, v{vC+1}, v{vC}, vcc")
        a(f"v_add_u32 v{vR+p}, v{vC}, v{vS}")
    a("s_waitcnt lgkmcnt(0)")
    for p in range(2):
        c, o = F + 16 + p, F + 24 + 2 * p
        for w in range(1, 4):
            a(f"v_add_f32 v{c}, v{c}, v{c+2*w}")
        a(f"v_cvt_pk_bf16_f32 v{o}, v{c}, v{c}")
        a(f"v_lshlrev_b32 v{o}, 16, v{o}")
        a(f"v_sub_f32 v{o}, v{c}, v{o}")
        a(f"v_cvt_pk_bf16_f32 v{o}, v{c}, v{o}")
        a(f"v_mov_b32 v{o+1}, v{o}")
        a(f"buffer_store_dwordx2 {vr(o,2)}, v{vR+p}, s[4:7], s92 offen{SC}")
    a(f"{nost}:")
    next_step(1)
    a(f"{hs[2]}:")
    if 2 - HS in (0, 1):
        stamp(a, 2 * (2 - HS))
    nsig = a.label("nosig")
    a(f"v_mov_b32 v{vR}, 1")
    a(f"v_mov_b32 v{vR+1}, {CNT + 4}")
    a("s_waitcnt vmcnt(0)")
    a("s_mov_b64 exec, 1")
    a(f"ds_add_rtn_u32 v{vR+2}, v{vR+1}, v{vR}")
    a("s_mov_b64 exec, -1")
    a("s_and_b32 s23, s2, 15")
    a("s_lshl_b32 s23, s23, 8")
    a(f"s_add_u32 s23, s23, {FL_W:#x}")
    a("s_mov_b32 s38, 1")
    a("s_waitcnt lgkmcnt(0)")
    a(f"v_readfirstlane_b32 s62, v{vR+2}")
    a("s_nop 0")
    a("s_cmp_lg_u32 s62, 3")
    a(f"s_cbranch_scc1 {nsig}")
    a("s_atomic_add s38, s[14:15], s23")
    a(f"{nsig}:")
    if env("WARM", 1):
        a.c("pull the rest of the code into L2 and touch every workspace page once")
        here = a.label("here")
        a("s_getpc_b64 s[98:99]")
        a(f"{here}:")
        a("s_lshl_b32 s62, s26, 13")
        a(f"v_add_u32 v{vC}, s62, v{V_L128}")
        a(f"v_min_u32 v{vC}, {code_end} - {here}, v{vC}")
        a(f"v_lshlrev_b32 v{vC+1}, 20, v0")
        a(f"global_load_dword v{V_PF}, v{vC}, s[98:99]")
        a(f"buffer_load_dword v{V_PF}, v{vC+1}, s[4:7], 0 offen sc1")
    next_step(2)
    a(f"{hs[3]}:")
    if 3 - HS in (0, 1):
        stamp(a, 2 * (3 - HS))
    a.c("the re-tiled weights are complete once all 16 arrival counters are")
    lp0, ok0 = a.label("wpoll"), a.label("wok")
    a(f"s_cmp_lg_u32 s{S_WAVE}, 4")
    a(f"s_cbranch_scc1 {hs[7]}")
    a(f"v_and_b32 v{vS}, 15, v0")
    a(f"v_lshlrev_b32 v{vS}, 8, v{vS}")
    a(f"s_mov_b32 s23, {WS_FLAG + FL_W:#x}")
    a(f"s_mov_b32 s39, {SPIN_MAX}")
    a(f"{lp0}:")
    a(f"buffer_load_dword v{vR}, v{vS}, s[4:7], s23 offen sc1")
    a("s_sub_u32 s39, s39, 1")
    a("s_waitcnt vmcnt(0)")
    a(f"v_cmp_gt_u32 vcc, 16, v{vR}")
    a("s_cmp_eq_u32 s39, 0")
    a(f"s_cbranch_scc1 {ok0}")
    a(f"s_cbranch_vccz {ok0}")
    a("s_sleep 8")
    a(f"s_branch {lp0}")
    a(f"{ok0}:")
    next_step(3)
    a(f"{fb}:")
    a(f"v_add_u32 v{vK}, {KB}, v{V_L16}")
    a(f"v_mov_b32 v{t0}, 0xff800000")
    a("s_mov_b32 s31, 64")
    lp2 = a.label("maxl")
    a(f"{lp2}:")
    a(f"ds_read_b128 {vr(KF[0],4)}, v{vK}")
    a(f"v_add_u32 v{vK}, 1024, v{vK}")
    a("s_waitcnt lgkmcnt(0)")
    a(f"{MFMA} {vr(S[0],16)}, {vr(KF[0],4)}, {vr(Q[0],4)}, 0")
    a("s_nop 15")
    for i in range(0, 16, 2):
        a(f"v_max3_f32 v{t0}, v{t0}, v{S[0]+i}, v{S[0]+i+1}")
    a("s_sub_u32 s31, s31, 1")
    a("s_cmp_lg_u32 s31, 0")
    a(f"s_cbranch_scc1 {lp2}")
    a(f"v_mov_b32 v{t1}, v{t0}")
    a("s_nop 1")
    a(f"v_permlane32_swap_b32 v{t0}, v{t1}")
    a("s_nop 1")
    a(f"v_max_f32 v{t0}, v{t0}, v{t1}")
    for i in range(16):
        a(f"v_sub_f32 v{NM[0]+i}, 0, v{t0}")
        a(f"v_mov_b32 v{OO+i}, 0")
    a(f"v_add_u32 v{vK}, {KB}, v{V_L16}")
    a(f"v_mov_b32 v{vV}, v{vV0}")
    a(f"v_lshrrev_b32 v{vInc}, {U.bit_length()-1}, v{vInc}")
    a("s_mov_b32 s31, 64")
    lp3 = a.label("pass2")
    a(f"{lp3}:")
    a(f"ds_read_b128 {vr(KF[0],4)}, v{vK}")
    a(f"ds_read_b128 {vr(VF[0],4)}, v{vV}")
    a(f"ds_read_b128 {vr(VF[0]+4,4)}, v{vV} offset:512")
    a(f"v_add_u32 v{vK}, 1024, v{vK}")
    a(f"v_add_u32 v{vV}, v{vInc}, v{vV}")
    a("s_waitcnt lgkmcnt(0)")
    a(f"{MFMA} {vr(S[0],16)}, {vr(KF[0],4)}, {vr(Q[0],4)}, {vr(NM[0],16)}")
    a("s_nop 15")
    for i in range(16):
        a(f"v_exp_f32 v{S[0]+i}, v{S[0]+i}")
    a("s_nop 0")
    for j in range(8):
        a(f"v_cvt_pk_bf16_f32 v{P+j}, v{S[0]+2*j}, v{S[0]+2*j+1}")
    a("s_nop 1")
    a(f"{MFMA} {vr(OO,16)}, {vr(VF[0],4)}, {vr(P,4)}, {vr(OO,16)}")
    a(f"{MFMA} {vr(OO,16)}, {vr(VF[0]+4,4)}, {vr(P+4,4)}, {vr(OO,16)}")
    a("s_sub_u32 s31, s31, 1")
    a("s_cmp_lg_u32 s31, 0")
    a("s_nop 7")
    a(f"s_cbranch_scc1 {lp3}")
    a("s_nop 15")
    a(f"v_rcp_f32 v{t0}, v{OO+8}")
    a("s_nop 0")
    a(f"s_branch {fin}")
    a(f"{endl}:")
    return R.n


def gen_main(a):
    name = NAME + "_kernel"
    kernel_header(a, name)
    done = a.label("done")
    a("s_cmp_ge_u32 s2, 256")
    a(f"s_cbranch_scc1 {done}")
    a(f"s_load_dwordx4 s[64:67], s[0:1], {KA_X}")
    a(f"s_load_dwordx2 s[68:69], s[0:1], {KA_WO}")
    a(f"s_load_dwordx4 s[72:75], s[0:1], {KA_WG}")
    a(f"s_load_dwordx2 s[76:77], s[0:1], {KA_WD}")
    a(f"s_load_dwordx2 s[70:71], s[0:1], {KA_OUT}")
    a(f"s_load_dwordx2 s[94:95], s[0:1], {KA_DBG}")
    a(f"s_load_dwordx2 s[12:13], s[0:1], {KA_WS}")
    a("v_lshrrev_b32 v1, 6, v0")
    a("v_and_b32 v0, 63, v0")
    a(f"v_readfirstlane_b32 s{S_WAVE}, v1")
    a(f"s_and_b32 s{S_XCD}, s2, 7")
    a(f"s_lshr_b32 s{S_IDX}, s2, 3")
    a(f"s_and_b32 s{S_TT128}, s{S_IDX}, 3")
    a(f"s_lshr_b32 s19, s{S_XCD}, 1")
    a("s_lshl_b32 s19, s19, 2")
    a(f"s_add_u32 s{S_TT128}, s{S_TT128}, s19")
    a(f"s_lshl_b32 s{S_TT128}, s{S_TT128}, 2")
    a(f"s_lshr_b32 s{S_NT128}, s{S_IDX}, 2")
    a(f"s_and_b32 s19, s{S_XCD}, 1")
    a("s_lshl_b32 s19, s19, 3")
    a(f"s_add_u32 s{S_NT128}, s{S_NT128}, s19")
    a(f"s_and_b32 s{S_TT64}, s{S_IDX}, 3")
    a(f"s_lshl_b32 s19, s{S_XCD}, 2")
    a(f"s_add_u32 s{S_TT64}, s{S_TT64}, s19")
    a(f"s_lshl_b32 s{S_TT64}, s{S_TT64}, 1")
    a(f"s_lshr_b32 s{S_NT64}, s{S_IDX}, 2")
    a(f"s_mov_b32 s{S_IT}, 0")
    a(f"s_mov_b32 s{S_BASE}, {WS_IT0:#x}")
    a(f"s_mov_b32 s{S_FL}, 0")
    a(f"s_mov_b32 s{S_SIG}, 0")
    a(f"v_lshlrev_b32 v{V_L16}, 4, v0")
    a(f"v_and_b32 v{V_ST}, 31, v0")
    a(f"v_lshlrev_b32 v{V_ST}, 4, v{V_ST}")
    a(f"v_lshrrev_b32 v1, 5, v0")
    a(f"v_lshl_add_u32 v{V_ST}, v1, 2, v{V_ST}")
    a(f"v_lshlrev_b32 v{V_L4}, 2, v0")
    a(f"v_lshlrev_b32 v{V_L128}, 7, v0")
    if STAMP:
        a(f"v_mov_b32 v{V_STAMP}, 0")
        a(f"v_mov_b32 v{V_STAMP+1}, 0")
    stamp(a, 31)
    att, fin = a.label("att"), a.label("fin")
    nv = [first_phase(a, att, done)]
    a(f"{att}:")
    nv.append(attn_phase(a, 5, done))
    nv.append(gemm_phase(a, Cfg(name="oproj", kind="res", NA=2, NW=2, NT=1, G=4, KC=4, KST=32, NSA=8, NSW=8, DA=4, PRE=2,
                                PEEL=2, swap=[0], ABUF=B_O, WBASE=WS_WO, WNT=64 * 1024, OUT=B_X1, STOUT=B_ST1,
                                FIN=FL_A, FIN_SH=3, NEED=32, NARR=8, FOUT=FL_O, final=False, sb=12, staged=False, stage_next=None)))
    STG = env("STAGE", 1) != 0
    down = Cfg(name="down", kind="res", NA=2, NW=2, NT=1, G=4, KC=4, KST=112, NSA=6, NSW=14, DA=4, PRE=2,
               PEEL=2, swap=[0], ABUF=B_H, WBASE=WS_WD, WNT=224 * 1024, OUT=B_XIN + IT_STRIDE,
               STOUT=B_STIN + IT_STRIDE, FIN=FL_G, FIN_SH=2, NEED=16, NARR=4, FOUT=FL_D, final=True, sb=22,
               staged=STG, stage_next=None)
    nv.append(gemm_phase(a, Cfg(name="gu", kind="gu", NA=4, NW=7, NT=7, G=1, KC=2, KST=32, NSA=5, NSW=8, DA=3, PRE=3,
                                PEEL=1, swap=[0] * 7, ABUF=B_X1, WBASE=WS_WGU, WNT=231 * 1024, STIN=B_ST1,
                                FIN=FL_O, FIN_SH=2, NEED=16, NARR=4, FOUT=FL_G, sb=17,
                                staged=False, stage_next=down if STG else None)))
    nv.append(gemm_phase(a, down))
    nv.append(V_FREE + 4 + 224)
    a(f"s_cmp_eq_u32 s{S_IT}, 1")
    a(f"s_cbranch_scc1 {fin}")
    a(f"s_mov_b32 s{S_IT}, 1")
    a(f"s_add_u32 s{S_BASE}, s{S_BASE}, {IT_STRIDE:#x}")
    a(f"s_add_u32 s{S_FL}, s{S_FL}, {FL_IT:#x}")
    nv.append(gemm_phase(a, Cfg(name="qkv", kind="qkv", NA=4, NW=3, NT=3, G=1, KC=2, KST=32, NSA=7, NSW=16, DA=4, PRE=1,
                                PEEL=2, swap=[0, 0, 1], ABUF=B_XIN, WBASE=WS_WQKV, WNT=99 * 1024, STIN=B_STIN,
                                FIN=FL_D - FL_IT + (1 << 32), FIN_SH=2, NEED=16, NARR=4, FOUT=FL_Q, sb=0, staged=False, stage_next=None)))
    a(f"s_branch {att}")
    a(f"{fin}:")
    if STAMP:
        a("s_waitcnt vmcnt(0)")
        a(f"s_mov_b32 s{S_IT}, 1")
        stamp(a, 31)
        stamp_flush(a)
    a(f"{done}:")
    a("s_endpgm")
    print("phase vgprs", nv, file=sys.stderr)
    nv.append(V_TF + 58)
    assert max(nv) <= 256
    return (name, max(nv), 256, 512, LDS_MAX)


HEADER = open("cdna_kernels/" + NAME + ".s.ref").read().split("; Override launch")[0]

def main(out):
    a = Asm()
    k, v, nwg, blk, lds = gen_main(a)
    txt = HEADER
    if env("ASLIST", 0):
        txt += f"; @launch kernel={k} grid=({nwg},1,1) block=({blk},1,1) lds={lds}\n"
    else:
        txt += f"; @launch grid=({nwg},1,1) block=({blk},1,1) lds={lds}\n"
    txt += '.amdgcn_target "amdgcn-amd-amdhsa--gfx950"\n.text\n'
    txt += a.text()
    txt += '.section .rodata,"a"\n'
    txt += kernel_desc(k, v, 102)
    print(f"{k}: vgpr={v} lds={lds}", file=sys.stderr)
    open(out, "w").write(txt)

if __name__ == "__main__":
    main(sys.argv[1] if len(sys.argv) > 1 else "v2.s")
```

```python
import sys, struct, math, os
from asmlib import *

NAME = "interleave_layers__mha_block__glu_gated_bilinear__prompt"
def env(k, d):
    return int(os.environ.get(k, d))

WS_WQKV = 0x000000
WS_WO   = 0x200000
WS_WGU  = 0x300000
WS_WD   = 0x700000
WS_FLAG = 0x8C0000
FL_IT = 0x8000
FL_A, FL_O, FL_G, FL_D, FL_Q, FL_W = 0x0, 0x1000, 0x2000, 0x3000, 0x4000, 0x5000
WS_IT0 = 0xA00000
IT_STRIDE = 0x1400000
B_Q, B_K, B_V, B_O, B_X1, B_XIN, B_H, B_ST1, B_STIN = (
    0x0, 0x200000, 0x400000, 0x600000, 0x800000, 0xA00000, 0xC00000, 0x1300000, 0x1340000)
WS_END = WS_IT0 + 2 * IT_STRIDE
WS_STAMP = WS_END
LDS_MAX = 160 * 1024

KA_X, KA_WQKV, KA_WO, KA_BX, KA_WG, KA_WU, KA_WD, KA_OUT, KA_DBG, KA_WS = [8 * i for i in range(10)]

def f32bits(x):
    return struct.unpack("<I", struct.pack("<f", x))[0]

QSCALE = 0.25 * math.log2(math.e)
MFMA = "v_mfma_f32_32x32x16_bf16"
STAMP = os.environ.get("STAMP", "") != ""
SC = " sc1"
SPIN_MAX = 1 << 18

def srd(a, d, lo, hi, nbytes):
    a(f"s_mov_b32 s{d}, s{lo}")
    a(f"s_and_b32 s{d+1}, s{hi}, 0xffff")
    a(f"s_mov_b32 s{d+2}, {nbytes:#x}")
    a(f"s_mov_b32 s{d+3}, 0x20000")

S_WAVE, S_XCD, S_IDX, S_IT, S_BASE, S_FL = 16, 17, 18, 40, 41, 42
S_TT64, S_NT64, S_TT128, S_NT128 = 43, 44, 45, 46
S_ARR, S_SIG = 47, 48
LDS_CNT = LDS_MAX - 16
V_L16, V_ST, V_L4 = 2, 3, 1
V_RES = 4
V_STAMP = 12
V_PF, V_L128 = 14, 15
V_FREE = 16

def stamp(a, i):
    if STAMP:
        a("s_memrealtime s[56:57]")
        a("s_memtime s[58:59]")
        a(f"s_lshl_b32 s60, s{S_IT}, 5")
        a(f"s_add_u32 s60, s60, {i}")
        a("s_waitcnt lgkmcnt(0)")
        a("s_mov_b32 s61, m0")
        a("s_mov_b32 m0, s60")
        a("s_nop 0")
        a(f"v_writelane_b32 v{V_STAMP}, s56, m0")
        a(f"v_writelane_b32 v{V_STAMP+1}, s58, m0")
        a("s_mov_b32 m0, s61")

def stamp_flush(a, which=0):
    if STAMP:
        a("s_lshl_b32 s60, s2, 3")
        a(f"s_add_u32 s60, s60, s{S_WAVE}")
        a("s_lshl_b32 s60, s60, 9")
        a(f"s_add_u32 s60, s60, {WS_STAMP + which*0x100000:#x}")
        a(f"s_mov_b32 s6, {WS_STAMP + 0x200000:#x}")
        a(f"buffer_store_dword v{V_STAMP}, v{V_L4}, s[4:7], s60 offen")
        a(f"buffer_store_dword v{V_STAMP+1}, v{V_L4}, s[4:7], s60 offen offset:256")

def handoff(a, soff, need):
    lp, ok = a.label("poll"), a.label("pok")
    a("s_mov_b32 s38, 1")
    a(f"s_atomic_add s38, s[14:15], s{S_SIG}")
    a(f"s_mov_b32 s39, {SPIN_MAX}")
    a(f"{lp}:")
    a("s_mov_b32 s49, 0")
    a(f"s_atomic_add s49, s[14:15], s{soff} glc")
    a("s_sub_u32 s39, s39, 1")
    a("s_waitcnt lgkmcnt(0)")
    a(f"s_cmp_ge_u32 s49, {need}")
    a(f"s_cbranch_scc1 {ok}")
    if env("POLL_SLEEP", 2):
        a(f"s_sleep {env('POLL_SLEEP', 2)}")
    a("s_cmp_lg_u32 s39, 0")
    a(f"s_cbranch_scc1 {lp}")
    a(f"{ok}:")


V_TF = 176

def first_phase(a, end_label, code_end):
    XB_ = 528
    XT = 64 * XB_
    W0 = 2 * XT
    NSW, WCH, NC = 7, 12288, 16
    assert W0 + NSW * WCH <= LDS_MAX
    FS = 27
    NPS = env("K1_NPS", 2)
    R = Regs(V_FREE)
    vD, vT0, vT1, vXW = R.alloc(), R.alloc(), R.alloc(), R.alloc()
    X = R.alloc(32)
    ST = R.alloc(16)
    U = R.alloc(16)
    vD2, vZ = R.alloc(), R.alloc()
    a(f"s_lshl_b32 s19, s{S_TT64}, 15")
    a(f"s_lshl_b32 s24, s{S_WAVE}, 13")
    a("s_add_u32 s19, s19, s24")
    a("s_add_u32 s25, s19, 4096")
    a(f"s_lshl_b32 s26, s{S_XCD}, 18")
    a(f"s_lshl_b32 s27, s{S_IDX}, 13")
    a("s_add_u32 s26, s26, s27")
    a(f"s_mul_i32 s27, s{S_IDX}, 49152")
    a("s_add_u32 s27, s27, s24")
    a("s_sub_u32 s27, s27, 8192")
    a(f"v_lshrrev_b32 v{vT0}, 3, v0")
    a(f"v_bfe_u32 v{vT1}, v0, 4, 1")
    a(f"v_lshlrev_b32 v{vT1}, 2, v{vT1}")
    a(f"v_and_b32 v{vD2}, 7, v0")
    a(f"v_xor_b32 v{vD2}, v{vD2}, v{vT1}")
    a(f"v_lshlrev_b32 v{vD2}, 4, v{vD2}")
    a(f"v_mul_u32_u24 v{vD}, 3072, v{vT0}")
    a(f"v_add_u32 v{vD}, v{vD}, v{vD2}")
    a(f"s_and_b32 s50, s{S_WAVE}, 3")
    a("s_waitcnt lgkmcnt(0)")
    srd(a, 8, 64, 65, 2048 * 512 * 2)
    srd(a, 20, 66, 67, 512 * 1536 * 2)
    if env("TOUCH", 1):
        tw, tj = a.label("tw"), a.label("tj")
        a(f"s_cmp_lg_u32 s{S_WAVE}, 0")
        a(f"s_cbranch_scc1 {tw}")
        a(f"buffer_load_dword v{V_PF}, v{V_L128}, s[8:11], s26 offen")
        a(f"s_branch {tj}")
        a(f"{tw}:")
        tc = a.label("tc")
        a(f"s_cmp_eq_u32 s{S_WAVE}, 7")
        a(f"s_cbranch_scc1 {tc}")
        a(f"buffer_load_dword v{V_PF}, v{V_L128}, s[20:23], s27 offen")
        a(f"s_branch {tj}")
        a(f"{tc}:")
        a("s_getpc_b64 s[98:99]")
        a(f"global_load_dword v{V_PF}, v{V_L128}, s[98:99]")
        a(f"{tj}:")
    for r in range(8):
        a(f"buffer_load_dwordx4 {vr(X+4*r,4)}, v{V_L16}, s[8:11], s{(19, 25)[r//4]} offen offset:{(r%4)*1024}")
    srd(a, 4, 12, 13, WS_END)
    a(f"s_add_u32 s14, s12, {WS_FLAG:#x}")
    a("s_addc_u32 s15, s13, 0")
    a.c("one wave resets the hand-off counters (256 words, 256 B apart), then raises the flag in d_debug")
    nz = a.label("nozero")
    a(f"s_lshl_b32 s54, s2, 3")
    a(f"s_add_u32 s54, s54, s{S_WAVE}")
    a("s_cmp_lg_u32 s54, 7")
    a(f"s_cbranch_scc1 {nz}")
    a(f"v_lshlrev_b32 v{ST}, 8, v0")
    a(f"v_mov_b32 v{ST+1}, 0")
    for i in range(4):
        a(f"s_mov_b32 s54, {WS_FLAG + i*16384:#x}")
        a(f"buffer_store_dword v{ST+1}, v{ST}, s[4:7], s54 offen sc1")
    a("s_waitcnt vmcnt(0)")
    a("s_mov_b32 s54, 1")
    a("s_atomic_add s54, s[94:95], 0x0")
    a("s_waitcnt lgkmcnt(0)")
    a(f"{nz}:")
    a("s_mov_b32 s49, 0x3f803f80")
    a(f"s_lshr_b32 s55, s{S_WAVE}, 2")
    a(f"s_mul_i32 s39, s55, {XT}")
    a("s_lshl_b32 s54, s50, 7")
    a("s_add_u32 s39, s39, s54")
    a(f"v_mul_u32_u24 v{vXW}, {XB_}, v0")
    a(f"v_add_u32 v{vXW}, s39, v{vXW}")
    a(f"s_mul_i32 s62, s50, {8*3072}")
    a(f"s_lshl_b32 s54, s{S_NT64}, 7")
    a("s_add_u32 s62, s62, s54")
    a(f"s_mul_i32 s54, s55, {NPS*32*3072}")
    a("s_add_u32 s62, s62, s54")
    a("s_lshl_b32 s63, s50, 10")
    a(f"s_add_u32 s63, s63, {W0}")
    a(f"s_mul_i32 s54, s55, {NPS*WCH}")
    a("s_add_u32 s48, s63, s54")
    def w_instr(slot, seg, base=63):
        t = f"s_add_u32 s54, s{base}, {slot*WCH + seg*3072}\ns_mov_b32 m0, s54\ns_nop 0\n"
        t += f"buffer_load_dwordx4 v{vD}, s[20:23], s62 offen offset:{seg*1024} lds"
        if seg == 2:
            t += f"\ns_add_u32 s62, s62, {32*3072}"
        return t
    dma = [w_instr(c, sg, 48) for c in range(NPS) for sg in range(3)]
    ops = []
    for r in range(8):
        ops.append(f"v_mov_b32 v{ST+r}, 0")
        ops.append(f"v_mov_b32 v{ST+8+r}, 0")
    pre = len(ops)
    for r in range(8):
        ops.append(("wait", r))
        for i in range(4):
            ops.append(f"v_dot2c_f32_bf16 v{ST+r}, s49, v{X+4*r+i}")
            ops.append(f"v_dot2c_f32_bf16 v{ST+8+r}, v{X+4*r+i}, v{X+4*r+i}")
    ops.append("s_nop 2")
    for b in (ST, ST + 8):
        for r in range(4):
            ops.append(f"v_permlane32_swap_b32 v{b+r}, v{b+r+4}")
    for b in (ST, ST + 8):
        for r in range(4):
            ops.append(f"v_add_f32 v{b+r}, v{b+r}, v{b+r+4}")
    ops.append("s_nop 1")
    for b in (ST, ST + 8):
        for r in range(2):
            ops.append(f"v_permlane16_swap_b32 v{b+r}, v{b+r+2}")
    for b in (ST, ST + 8):
        for r in range(2):
            ops.append(f"v_add_f32 v{b+r}, v{b+r}, v{b+r+2}")
    for d in ("row_ror:8", "row_ror:4", "quad_perm:[2,3,0,1]", "quad_perm:[1,0,3,2]"):
        for v in (ST, ST + 1, ST + 8, ST + 9):
            ops.append(f"v_add_f32_dpp v{v}, v{v}, v{v} {d} row_mask:0xf bank_mask:0xf")
    for r in range(2):
        ops.append(f"v_mul_f32 v{ST+r}, {f32bits(-1.0/512):#x}, v{ST+r}")
        ops.append(f"v_mul_f32 v{ST+8+r}, {f32bits(1.0/512):#x}, v{ST+8+r}")
    for r in range(2):
        ops.append(f"v_fma_f32 v{ST+8+r}, -v{ST+r}, v{ST+r}, v{ST+8+r}")
    for r in range(2):
        ops.append(f"v_max_f32 v{ST+8+r}, 0, v{ST+8+r}")
    for r in range(2):
        ops.append(f"v_add_f32 v{ST+8+r}, {f32bits(1e-5):#x}, v{ST+8+r}")
    for r in range(2):
        ops.append(f"v_rsq_f32 v{ST+8+r}, v{ST+8+r}")
    ops.append("s_nop 0")
    for r in range(2):
        ops.append(f"v_mul_f32 v{ST+r}, v{ST+r}, v{ST+8+r}")
    ops.append("s_nop 0")
    for r in range(8):
        ops.append(f"v_readlane_b32 s{78+2*r}, v{ST+8+(r&1)}, {16*(r>>1)}")
        ops.append(f"v_readlane_b32 s{79+2*r}, v{ST+(r&1)}, {16*(r>>1)}")
    for r in range(8):
        u = U + 8 * (r & 1)
        for i in range(4):
            ops.append(f"v_lshlrev_b32 v{u+2*i}, 16, v{X+4*r+i}")
            ops.append(f"v_and_b32 v{u+2*i+1}, 0xffff0000, v{X+4*r+i}")
        for i in range(4):
            ops.append(f"v_pk_fma_f32 {vr(u+2*i,2)}, {vr(u+2*i,2)}, s[{78+2*r}:{79+2*r}], s[{78+2*r}:{79+2*r}] op_sel:[0,0,1] op_sel_hi:[1,0,1]")
        for i in range(4):
            ops.append(f"v_cvt_pk_bf16_f32 v{X+4*r+i}, v{u+2*i}, v{u+2*i+1}")
        ops.append(f"ds_write_b128 v{vXW}, {vr(X+4*r,4)} offset:{r*16}")
    npre = env("K1_PRE", 2)
    issued = 0
    for _ in range(npre):
        a(dma.pop(0)); issued += 1
    step_ = env("K1_STEP", 24)
    k = 0
    for j, op in enumerate(ops):
        if isinstance(op, tuple):
            a(f"s_waitcnt vmcnt({7 - op[1] + issued})")
        else:
            a(op)
        if j >= pre + env("K1_SKIP", 40) and dma:
            k += 1
            if k % step_ == 0:
                a(dma.pop(0)); issued += 1
    assert not dma
    comp = a.label("k1_comp")
    a(f"s_cmp_lt_u32 s{S_WAVE}, 4")
    a(f"s_cbranch_scc1 {comp}")
    DW = env("K1_DW", 5)
    assert 2 * NPS <= DW <= NSW - 2
    for c in range(2 * NPS, DW):
        for sg in range(3):
            a(w_instr(c, sg))
    lp = a.label("k1ld")
    a(f"s_mov_b32 s47, {NC-DW}")
    a(f"s_add_u32 s48, s63, {DW*WCH}")
    a(f"s_add_u32 s39, s63, {NSW*WCH}")
    a(f"v_mov_b32 v{vT1}, 0")
    stamp(a, FS)
    a("s_waitcnt lgkmcnt(0)")
    a(f"{lp}:")
    a(f"s_waitcnt vmcnt({(DW-1)*3})")
    a("s_barrier")
    for sg in range(3):
        a(w_instr(0, sg, 48))
    a(f"s_add_u32 s48, s48, {WCH}")
    a("s_cmp_eq_u32 s48, s39")
    a("s_cselect_b32 s48, s63, s48")
    a("s_sub_u32 s47, s47, 1")
    a("s_cmp_lg_u32 s47, 0")
    a(f"s_cbranch_scc1 {lp}")
    a(f"global_load_dword v{vZ}, v{vT1}, s[94:95] sc1")
    for c in range(NC - DW, NC):
        a(f"s_waitcnt vmcnt({(NC - 1 - c)*3 + 1})")
        a("s_barrier")
    stamp(a, FS + 2)
    a(f"s_lshl_b32 s{S_SIG}, s{S_NT64}, 9")
    a(f"s_add_u32 s{S_SIG}, s{S_SIG}, {FL_Q:#x}")
    a.c("the counters must have been reset before this workgroup touches them")
    lp, ok = a.label("zpoll"), a.label("zok")
    a(f"s_mov_b32 s39, {SPIN_MAX}")
    a("s_waitcnt vmcnt(0)")
    a(f"{lp}:")
    a(f"v_cmp_eq_u32 vcc, 0, v{vZ}")
    a("s_sub_u32 s39, s39, 1")
    a("s_cmp_eq_u32 s39, 0")
    a(f"s_cbranch_scc1 {ok}")
    a(f"s_cbranch_vccz {ok}")
    a(f"global_load_dword v{vZ}, v{vT1}, s[94:95] sc1")
    a("s_waitcnt vmcnt(0)")
    a(f"s_branch {lp}")
    a(f"{ok}:")
    a("s_barrier")
    a(f"s_branch {end_label}")
    a(f"{comp}:")
    R2 = Regs(V_FREE + 4)
    vA, vW0, vW = R2.alloc(), R2.alloc(), R2.alloc()
    acc = [R2.alloc(16) for _ in range(3)]
    sets = [(R2.alloc(4), [R2.alloc(4) for _ in range(3)]) for _ in range(2)]
    a("s_waitcnt lgkmcnt(0)")
    a(f"s_and_b32 s24, s{S_WAVE}, 1")
    a(f"s_lshr_b32 s25, s{S_WAVE}, 1")
    a(f"s_mul_i32 s26, s24, {XT}")
    a(f"v_lshrrev_b32 v{vT0}, 5, v0")
    a(f"v_mul_u32_u24 v{vA}, {XB_}, v{vT0}")
    a(f"v_and_b32 v{vT1}, 31, v0")
    a(f"v_lshl_add_u32 v{vA}, v{vT1}, 4, v{vA}")
    a(f"v_add_u32 v{vA}, s26, v{vA}")
    a(f"v_bfe_u32 v{vT1}, v0, 2, 2")
    a(f"v_lshl_add_u32 v{vW0}, v{vT0}, 3, v{vT1}")
    a(f"v_lshlrev_b32 v{vW0}, 7, v{vW0}")
    a(f"v_and_b32 v{vT0}, 1, v0")
    a(f"v_bfe_u32 v{vT1}, v0, 1, 1")
    a(f"v_lshl_add_u32 v{vT0}, v{vT0}, 1, v{vT1}")
    a(f"v_lshl_add_u32 v{vW0}, v{vT0}, 3, v{vW0}")
    a(f"v_bfe_u32 v{vT0}, v0, 4, 1")
    a(f"v_lshl_add_u32 v{vW0}, v{vT0}, 5, v{vW0}")
    a(f"v_bfe_u32 v{vT0}, v0, 3, 1")
    a(f"v_xor_b32 v{vT0}, s25, v{vT0}")
    a(f"v_lshl_add_u32 v{vW0}, v{vT0}, 6, v{vW0}")
    a(f"v_add_u32 v{vW0}, {W0}, v{vW0}")
    a(f"v_mov_b32 v{vW}, v{vW0}")
    for t in range(3):
        for i in range(16):
            a(f"v_mov_b32 v{acc[t]+i}, 0")
    a("s_mov_b32 s37, 0")

    def read_list(ks, par):
        xa, wfs = sets[par]
        out = [f"ds_read_b128 {vr(xa,4)}, v{vA} offset:{ks*2*XB_}"]
        for t in range(3):
            for jj in range(2):
                out.append(f"ds_read_b64_tr_b16 {vr(wfs[t]+2*jj,2)}, v{vW} offset:{t*4096 + ks*2048 + jj*512}")
        return out

    def step(par, nxt, boundary, adv=False):
        xa, wfs = sets[par]
        issued = 0
        plan = [3, 5, 7]
        if boundary:
            a("s_barrier")
        for t in range(3):
            while issued < min(plan[t], len(nxt)):
                a(nxt[issued]); issued += 1
            a(f"s_waitcnt lgkmcnt({issued + 7 - (3 + 2*t)})")
            if t == 2:
                a(f"{MFMA} {vr(acc[t],16)}, {vr(xa,4)}, {vr(wfs[t],4)}, {vr(acc[t],16)}")
            else:
                a(f"{MFMA} {vr(acc[t],16)}, {vr(wfs[t],4)}, {vr(xa,4)}, {vr(acc[t],16)}")
        if adv:
            a(f"s_add_u32 s37, s37, {WCH}")
            a(f"s_cmp_eq_u32 s37, {NSW*WCH}")
            a("s_cselect_b32 s37, 0, s37")
            a(f"v_add_u32 v{vW}, s37, v{vW0}")
            a(f"v_add_u32 v{vA}, {4*XB_}, v{vA}")

    a("s_waitcnt vmcnt(0)")
    stamp(a, FS)
    a("s_barrier")
    stamp(a, FS + 1)
    for r in read_list(0, 0):
        a(r)
    lp = a.label("k1loop")
    a(f"s_mov_b32 s35, {NC-1}")
    a(f"{lp}:")
    step(0, read_list(1, 1), False, True)
    step(1, read_list(0, 0), True)
    a("s_sub_u32 s35, s35, 1")
    a("s_cmp_lg_u32 s35, 0")
    a(f"s_cbranch_scc1 {lp}")
    step(0, read_list(1, 1), False)
    step(1, [], False)
    stamp(a, FS + 2)
    ot = sets[0][0]
    a(f"s_lshl_b32 s26, s{S_NT64}, 1")
    a("s_add_u32 s26, s26, s25")
    a("s_lshl_b32 s26, s26, 17")
    a(f"s_add_u32 s27, s{S_TT64}, s24")
    a("s_lshl_b32 s27, s27, 10")
    a("s_add_u32 s26, s26, s27")
    a(f"v_bfe_u32 v{vT0}, v0, 4, 1")
    a(f"v_lshlrev_b32 v{vT0}, 16, v{vT0}")
    a(f"v_lshrrev_b32 v{vT1}, 5, v0")
    a(f"v_lshl_add_u32 v{vT0}, v{vT1}, 8, v{vT0}")
    a(f"v_and_b32 v{vT1}, 15, v0")
    a(f"v_lshl_add_u32 v{vT0}, v{vT1}, 4, v{vT0}")
    a(f"s_mov_b32 s28, {f32bits(QSCALE):#x}")
    a("s_mov_b32 s29, s28")
    K1SC = SC
    for t, base in ((0, B_Q), (1, B_K), (2, B_V)):
        for hh in range(2):
            o = ot + 4 * (2 * t + hh)
            for i in range(4):
                r = acc[t] + 8 * hh + 2 * i
                if t == 0:
                    a(f"v_pk_mul_f32 {vr(r,2)}, {vr(r,2)}, s[28:29]")
                a(f"v_cvt_pk_bf16_f32 v{o+i}, v{r}, v{r+1}")
            if t < 2:
                a(f"s_add_u32 s27, s26, {WS_IT0 + base + hh*65536:#x}")
                a(f"buffer_store_dwordx4 {vr(o,4)}, v{V_L16}, s[4:7], s27 offen{K1SC}")
            else:
                a(f"s_add_u32 s27, s26, {WS_IT0 + base:#x}")
                a(f"buffer_store_dwordx4 {vr(o,4)}, v{vT0}, s[4:7], s27 offen offset:{hh*512}{K1SC}")
    a("s_barrier")
    stamp(a, FS + 3)
    a(f"s_branch {end_label}")
    return max(R.n, R2.n)


class Cfg:
    def __init__(self, **kw):
        self.__dict__.update(kw)
        for k in ("DA", "NSA", "NSW", "PRE"):
            e = os.environ.get(self.name.upper() + "_" + k)
            if e:
                setattr(self, k, int(e))

NSTG = 14

def gemm_phase(a, g):
    NA, NW, NT, G, KC = g.NA, g.NW, g.NT, g.G, g.KC
    NC = g.KST // KC
    NSA, NSW, DA = min(g.NSA, NC), min(g.NSW, NC), g.DA
    ACH = NA * KC * 1024
    assert ACH == 8192
    WCH = NW * KC * 1024
    LW = NW * KC // 2
    ln = g.kind in ("qkv", "gu")
    A0 = 0
    W0 = NSA * ACH
    CS0 = W0 + NSW * WCH
    SCR = CS0 + (NW * 1024 if ln else 0)
    lds_total = SCR + (1024 if g.kind == "qkv" else 0)
    assert lds_total <= LDS_MAX, (g.name, lds_total)
    assert NSA >= DA + 2 or NSA == NC
    s_tt, s_nt = (S_TT128, S_NT128) if NA == 4 else (S_TT64, S_NT64)
    comp, wload, end = a.label(g.name + "_comp"), a.label(g.name + "_wl"), a.label(g.name + "_end")
    SB = g.sb
    a.c(f"================ phase {g.name} ================")
    a(f"s_cmp_lt_u32 s{S_WAVE}, 4")
    a(f"s_cbranch_scc1 {comp}")
    a(f"s_cmp_ge_u32 s{S_WAVE}, 6")
    a(f"s_cbranch_scc1 {wload}")
    a(f"s_and_b32 s25, s{S_WAVE}, 1")
    a("s_lshl_b32 s25, s25, 12")
    a(f"s_mul_i32 s22, s{s_tt}, {g.KST*1024}")
    a("s_add_u32 s22, s22, s25")
    a(f"s_add_u32 s22, s22, s{S_BASE}")
    a(f"s_add_u32 s22, s22, {g.ABUF:#x}")
    a("s_mov_b32 s26, s25")
    a(f"s_add_u32 s27, s25, {NSA*ACH}")
    nopoll = a.label("nopoll")
    a(f"s_lshr_b32 s23, s{s_tt}, {g.FIN_SH}")
    a("s_lshl_b32 s23, s23, 8")
    a(f"s_add_u32 s23, s23, s{S_FL}")
    a(f"s_add_u32 s23, s23, {g.FIN:#x}")
    a("s_waitcnt vmcnt(0)")
    a("s_barrier")
    stamp(a, SB)
    a(f"s_cmp_lg_u32 s{S_WAVE}, 4")
    a(f"s_cbranch_scc1 {nopoll}")
    handoff(a, 23, g.NEED)
    a(f"{nopoll}:")
    stamp(a, SB + 1)
    a("s_barrier")

    def issueA():
        a("s_mov_b32 m0, s26")
        a(f"s_add_u32 s26, s26, {ACH}")
        for i in range(0 if env("NOLOAD", 0) else 4):
            a(f"buffer_load_dwordx4 v{V_L16}, s[4:7], s22 offen offset:{i*1024}{SC} lds")
        a(f"s_add_u32 s22, s22, {ACH}")
        a("s_cmp_eq_u32 s26, s27")
        a("s_cselect_b32 s26, s25, s26")
    assert DA * 4 <= 63
    for _ in range(DA):
        issueA()
    if g.kind == "qkv":
        a(f"s_lshl_b32 s{S_SIG}, s{s_nt}, 8")
    else:
        a(f"s_lshr_b32 s{S_SIG}, s{s_tt}, 2")
        a(f"s_lshl_b32 s{S_SIG}, s{S_SIG}, 8")
    a(f"s_add_u32 s{S_SIG}, s{S_SIG}, s{S_FL}")
    a(f"s_add_u32 s{S_SIG}, s{S_SIG}, {g.FOUT:#x}")
    lp = a.label("asteady")
    a(f"s_mov_b32 s30, {NC-DA}")
    a(f"{lp}:")
    a(f"s_waitcnt vmcnt({(DA-1)*4})")
    a("s_barrier")
    issueA()
    a("s_sub_u32 s30, s30, 1")
    a("s_cmp_lg_u32 s30, 0")
    a(f"s_cbranch_scc1 {lp}")
    for c in range(NC - DA, NC):
        a(f"s_waitcnt vmcnt({(NC-1-c)*4})")
        if c == NC - 1:
            stamp(a, SB + 2)
        a("s_barrier")
    a("s_barrier")
    a(f"s_branch {end}")
    a(f"{wload}:")
    a(f"s_and_b32 s19, s{S_WAVE}, 1")
    a(f"s_mul_i32 s25, s19, {LW*1024}")
    a(f"s_mul_i32 s23, s{s_nt}, {g.WNT}")
    a(f"s_add_u32 s23, s23, {g.WBASE:#x}")
    stamp(a, SB)
    if ln:
        a.c("column-sum fragments (both loaders write the same bytes)")
        a(f"s_add_u32 s29, s23, {32*NW*1024}")
        n = 0
        while n < NW:
            a(f"s_mov_b32 m0, {CS0 + n*1024}")
            a("s_nop 0")
            for i in range(min(4, NW - n)):
                a(f"buffer_load_dwordx4 v{V_L16}, s[4:7], s29 offen offset:{i*1024}{SC} lds")
            n += 4
            if n < NW:
                a("s_add_u32 s29, s29, 4096")
    a("s_add_u32 s23, s23, s25")
    a(f"s_add_u32 s25, s25, {W0}")
    a("s_mov_b32 s26, s25")
    a(f"s_add_u32 s27, s25, {NSW*WCH}")

    def issueW():
        a("s_mov_b32 m0, s26")
        a("s_add_u32 s28, s26, 4096")
        for i in range(min(LW, 4)):
            a(f"buffer_load_dwordx4 v{V_L16}, s[4:7], s23 offen offset:{i*1024}{SC} lds")
        if LW > 4:
            a("s_mov_b32 m0, s28")
            a("s_add_u32 s29, s23, 4096")
            for i in range(LW - 4):
                a(f"buffer_load_dwordx4 v{V_L16}, s[4:7], s29 offen offset:{i*1024}{SC} lds")
        a(f"s_add_u32 s23, s23, {WCH}")
        a(f"s_add_u32 s26, s26, {WCH}")
        a("s_cmp_eq_u32 s26, s27")
        a("s_cselect_b32 s26, s25, s26")
    nb1 = min(NSW - 1, max(1, (env("WB1", 16) - (NW if ln else 0)) // LW))
    for n, last in ((nb1, False), (NSW - nb1, True)):
        lp = a.label("wpro")
        a(f"s_mov_b32 s30, {n}")
        a(f"{lp}:")
        issueW()
        a("s_sub_u32 s30, s30, 1")
        a("s_cmp_lg_u32 s30, 0")
        a(f"s_cbranch_scc1 {lp}")
        if not last:
            a(f"s_waitcnt vmcnt({nb1*LW + (NW if ln else 0)})")
            a("s_barrier")
    stamp(a, SB + 1)
    assert (NSW - 1) * LW <= 63
    nst = NC - NSW
    a("s_barrier")
    VS = V_FREE + 4
    if g.staged:
        a.c("the next chunks of the weights wait in registers: copy them into the ring as slots free up")
        nstg = min(nst, NSTG)
        assert nstg * LW * 4 + VS <= 256
        for i in range(2):
            a(f"v_add_u32 v{V_FREE+i}, {i*0x10000}, v{V_L16}")
            a(f"v_add_u32 v{V_FREE+i}, s25, v{V_FREE+i}")
        a(f"s_add_u32 s23, s23, {nstg*WCH}")
        a(f"s_add_u32 s26, s25, {(nstg % NSW)*WCH}")
        for c in range(NC):
            w = []
            if c < NSW:
                w.append(f"vmcnt({(NSW-1-c)*LW})")
            elif c < NSW + nstg:
                w.append(f"lgkmcnt({min(15, LW * max(0, min(nstg, c - 2) - (c - NSW) - 1))})")
            else:
                w.append(f"vmcnt({(min(NC - 1, c - 3 + NSW) - c)*LW})")
            a("s_waitcnt " + " ".join(w))
            a("s_barrier")
            j = c - 2
            if 0 <= j < nstg and not env("NOLOAD", 0):
                for i in range(LW):
                    off = (j % NSW) * WCH + i * 1024
                    a(f"ds_write_b128 v{V_FREE + (off >> 16)}, {vr(VS + (j*LW + i)*4, 4)} offset:{off & 0xffff}")
            elif nstg <= j < nst:
                assert c >= NSW
                issueW()
    else:
        for c in range(2):
            a(f"s_waitcnt vmcnt({(NSW-1-c)*LW})")
            a("s_barrier")
        if nst > 0:
            lp = a.label("wsteady")
            a(f"s_mov_b32 s30, {nst}")
            a(f"{lp}:")
            a(f"s_waitcnt vmcnt({(NSW-3)*LW})")
            a("s_barrier")
            if not env("NOLOAD", 0):
                issueW()
            a("s_sub_u32 s30, s30, 1")
            a("s_cmp_lg_u32 s30, 0")
            a(f"s_cbranch_scc1 {lp}")
        st = []
        if g.stage_next is not None:
            n = g.stage_next
            nlw = n.NW * n.KC // 2
            a.c("fetch the second half of the next phase's weights into registers")
            a(f"s_mul_i32 s22, s{S_NT64}, {n.WNT}")
            a(f"s_mul_i32 s24, s19, {nlw*1024}")
            a("s_add_u32 s22, s22, s24")
            a(f"s_add_u32 s22, s22, {n.WBASE + n.NSW*n.NW*n.KC*1024:#x}")
            for c in range(min(NSTG, n.KST // n.KC - n.NSW)):
                for i in range(nlw):
                    t = f"buffer_load_dwordx4 {vr(VS + (c*nlw + i)*4, 4)}, v{V_L16}, s[4:7], s22 offen offset:{i*1024}{SC}"
                    if i == nlw - 1:
                        t += f"\ns_add_u32 s22, s22, {n.NW*n.KC*1024}"
                    st.append(t)
        per = -(-len(st) // max(1, NC - nst - 2 + env("STG_SPILL", 0)))
        younger = 0
        for c in range(nst + 2, NC):
            for _ in range(min(per, len(st))):
                a(st.pop(0)); younger += 1
            a(f"s_waitcnt vmcnt({min(63, (NC-1-c)*LW + younger)})")
            a("s_barrier")
        while st:
            a(st.pop(0))
    a("s_barrier")
    a(f"s_branch {end}")

    a(f"{comp}:")
    R = Regs(V_FREE)
    vA0, vW0, vA, vW = R.alloc(), R.alloc(), R.alloc(), R.alloc()
    vRstd, vX = R.alloc(), R.alloc()
    acc = [R.alloc(16) for _ in range(NT)]
    sets = [[(R.alloc(4), [R.alloc(4) for _ in range(NT)]) for _ in range(G)] for _ in range(2)]
    tmp = R.alloc(16)
    xc = R.alloc(4)
    if g.kind == "qkv":
        vRs = R.alloc(16)
    if g.kind == "res":
        a(f"s_and_b32 s24, s{S_WAVE}, 1")
        a(f"s_lshr_b32 s25, s{S_WAVE}, 1")
        a(f"s_lshl_b32 s33, s{s_nt}, 1")
        a("s_add_u32 s33, s33, s25")
    else:
        a(f"s_mov_b32 s24, s{S_WAVE}")
        a("s_mov_b32 s25, 0")
    a(f"s_add_u32 s31, s{s_tt}, s24")
    a("s_lshl_b32 s26, s24, 10")
    a(f"v_add_u32 v{vA0}, s26, v{V_L16}")
    a("s_lshl_b32 s26, s25, 10")
    a(f"s_add_u32 s26, s26, {W0}")
    a(f"v_add_u32 v{vW0}, s26, v{V_L16}")
    if ln:
        for t in range(NT):
            for i in range(16):
                a(f"v_mov_b32 v{acc[t]+i}, 0")
        a("s_lshl_b32 s36, s31, 12")
        a(f"s_add_u32 s36, s36, s{S_BASE}")
        a(f"s_add_u32 s36, s36, {g.STIN:#x}")
    else:
        for i in range(8):
            a(f"v_lshlrev_b32 v{acc[0]+2*i}, 16, v{V_RES+i}")
            a(f"v_and_b32 v{acc[0]+2*i+1}, 0xffff0000, v{V_RES+i}")

    SPC = KC // G
    nreads = G * (1 + NT)

    def read_list(step, par):
        out = []
        for gi in range(G):
            ks = step * G + gi
            xa, wfs = sets[par][gi]
            out.append(f"ds_read_b128 {vr(xa,4)}, v{vA} offset:{ks*NA*1024}")
            for t in range(NT):
                out.append(f"ds_read_b128 {vr(wfs[t],4)}, v{vW} offset:{(ks*NW + t)*1024}")
        return out

    def adv_a():
        if NSA == NC:
            return [f"v_add_u32 v{vA}, {ACH}, v{vA}"]
        return [f"s_add_u32 s34, s34, {ACH}\ns_cmp_eq_u32 s34, {NSA*ACH}\ns_cselect_b32 s34, 0, s34",
                f"v_add_u32 v{vA}, s34, v{vA0}"]
    def adv_w():
        if NSW == NC:
            return [f"v_add_u32 v{vW}, {WCH}, v{vW}"]
        return [f"s_add_u32 s37, s37, {WCH}\ns_cmp_eq_u32 s37, {NSW*WCH}\ns_cselect_b32 s37, 0, s37",
                f"v_add_u32 v{vW}, s37, v{vW0}"]
    def advance():
        for x in adv_a() + adv_w():
            a(x)

    fill = []
    def mfma(t, xa, wf):
        if g.swap[t]:
            a(f"{MFMA} {vr(acc[t],16)}, {vr(xa,4)}, {vr(wf,4)}, {vr(acc[t],16)}")
        else:
            a(f"{MFMA} {vr(acc[t],16)}, {vr(wf,4)}, {vr(xa,4)}, {vr(acc[t],16)}")
        for _ in range(min(3, len(fill))):
            a(fill.pop(0))

    def mfmas(par, nxt, boundary=False, adv=False):
        nm = G * NT
        issued = 0
        k = 0
        if boundary:
            a("s_barrier")
        if env("NOCOMP", 0):
            return
        early = (adv_a()[:-1] + adv_w()[:-1]) if adv else []
        lateA = adv_a()[-1:] if adv else []
        lastA = max(i for i, r in enumerate(nxt) if f"v{vA} " in r) if adv else 0
        for gi in range(G):
            xa, wfs = sets[par][gi]
            for t in range(NT):
                want = min(len(nxt), -(-len(nxt) * (k + 1) // nm))
                while issued < want:
                    a(nxt[issued]); issued += 1
                done_needed = gi * (1 + NT) + 2 + t
                n = issued + nreads - done_needed
                a(f"s_waitcnt lgkmcnt({min(n, 15)})")
                mfma(t, xa, wfs[t])
                k += 1
                if k < nm:
                    if early:
                        a(early.pop(0))
                    elif lateA and issued > lastA:
                        a(lateA.pop(0))
        for x in early + lateA + (adv_w()[-1:] if adv else []):
            a(x)

    a("s_mov_b32 s34, 0")
    a("s_mov_b32 s37, 0")
    a(f"v_mov_b32 v{vA}, v{vA0}")
    a(f"v_mov_b32 v{vW}, v{vW0}")
    a("s_waitcnt vmcnt(0)")
    stamp(a, SB)
    a("s_barrier")
    a("s_barrier")
    a("s_barrier")
    stamp(a, SB + 1)
    for r in read_list(0, 0):
        a(r)
    if ln:
        for i in range(4):
            a(f"buffer_load_dwordx4 {vr(tmp+4*i,4)}, v{V_L16}, s[4:7], s36 offen offset:{i*1024}{SC}")
    CPI = 1 if SPC % 2 == 0 else 2

    if SPC == 1:
        advance()

    def chunk_body(par, last):
        for s in range(SPC):
            if s < SPC - 1:
                mfmas(par, read_list(s + 1, par ^ 1), adv=(s == SPC - 2 and not last))
            elif not last:
                mfmas(par, read_list(0, par ^ 1), boundary=True, adv=(SPC == 1))
            elif ln:
                wfs = sets[par ^ 1][0][1]
                mfmas(par, [f"ds_read_b128 {vr(wfs[t],4)}, v{vX} offset:{t*1024}" for t in range(NT)])
            else:
                mfmas(par, [])
            par ^= 1
        return par

    rem = g.PEEL
    nloop = (NC - rem) // CPI
    assert nloop * CPI + rem == NC
    lp = a.label("kloop")
    a(f"s_mov_b32 s35, {nloop}")
    a(f"{lp}:")
    par = 0
    for _ in range(CPI):
        par = chunk_body(par, False)
    assert par == 0
    a("s_sub_u32 s35, s35, 1")
    a("s_cmp_lg_u32 s35, 0")
    a(f"s_cbranch_scc1 {lp}")
    if ln:
        a.c("LayerNorm statistics -> (-mu) fragment and rstd, spread under the MFMAs")
        f = fill
        f.append("s_waitcnt vmcnt(0)")
        f.append(f"v_add_u32 v{vX}, {CS0}, v{V_L16}")
        n = 8
        while n > 1:
            n //= 2
            for p in range(n):
                f.append(f"v_add_f32 v{tmp+2*p}, v{tmp+2*p}, v{tmp+2*(p+n)}")
                f.append(f"v_add_f32 v{tmp+2*p+1}, v{tmp+2*p+1}, v{tmp+2*(p+n)+1}")
        f.append(f"v_mov_b32 v{tmp+2}, v{tmp}")
        f.append(f"v_mov_b32 v{tmp+3}, v{tmp+1}")
        f.append("s_nop 1")
        f.append(f"v_permlane32_swap_b32 v{tmp}, v{tmp+2}")
        f.append(f"v_permlane32_swap_b32 v{tmp+1}, v{tmp+3}")
        f.append(f"v_add_f32 v{tmp}, v{tmp}, v{tmp+2}")
        f.append(f"v_add_f32 v{tmp+1}, v{tmp+1}, v{tmp+3}")
        f.append(f"v_mul_f32 v{tmp}, {f32bits(-1.0/512):#x}, v{tmp}")
        f.append(f"v_mul_f32 v{tmp+1}, {f32bits(1.0/512):#x}, v{tmp+1}")
        f.append(f"v_fma_f32 v{tmp+1}, -v{tmp}, v{tmp}, v{tmp+1}")
        f.append(f"v_max_f32 v{tmp+1}, 0, v{tmp+1}")
        f.append(f"v_add_f32 v{tmp+1}, {f32bits(1e-5):#x}, v{tmp+1}")
        f.append(f"v_rsq_f32 v{vRstd}, v{tmp+1}")
        f.append(f"v_cvt_pk_bf16_f32 v{xc}, v{tmp}, v{tmp}")
        f.append(f"v_lshlrev_b32 v{tmp+2}, 16, v{xc}")
        f.append(f"v_sub_f32 v{tmp+2}, v{tmp}, v{tmp+2}")
        f.append(f"v_cvt_pk_bf16_f32 v{xc+1}, v{tmp+2}, v{tmp+2}")
        f.append(f"v_mov_b32 v{xc+2}, v{xc}")
        f.append(f"v_mov_b32 v{xc+3}, v{xc+1}")
    for i in range(rem):
        par = chunk_body(par, i == rem - 1)
    if ln:
        while fill:
            a(fill.pop(0))
        if g.kind == "qkv":
            a(f"s_lshl_b32 s26, s{S_WAVE}, 8")
            a(f"s_add_u32 s26, s26, {SCR}")
            a(f"v_add_u32 v{tmp+4}, s26, v{V_L4}")
            a(f"ds_write_b32 v{tmp+4}, v{vRstd}")
            a(f"v_lshrrev_b32 v{tmp+5}, 5, v0")
            a(f"v_lshl_add_u32 v{tmp+5}, v{tmp+5}, 4, s26")
        a("s_waitcnt lgkmcnt(0)")
        if g.kind == "qkv":
            for q in range(4):
                a(f"ds_read_b128 {vr(vRs+4*q,4)}, v{tmp+5} offset:{q*32}")
        else:
            a("s_nop 0")
        wfs = sets[par][0][1]
        for t in range(NT):
            mfma(t, xc, wfs[t])
        if g.kind == "qkv":
            a("s_waitcnt lgkmcnt(0)")
    EARLY = env("EARLY_END", 0)
    if EARLY:
        a("s_barrier")
    stamp(a, SB + 2)
    ot = sets[0][0][0]
    if g.kind == "qkv":
        a(f"s_lshl_b32 s26, s{s_nt}, 17")
        a("s_lshl_b32 s27, s31, 10")
        a("s_add_u32 s26, s26, s27")
        a(f"s_add_u32 s26, s26, s{S_BASE}")
        va = tmp + 8
        a(f"v_mul_f32 v{tmp+6}, {f32bits(QSCALE):#x}, v{vRstd}")
        a(f"v_bfe_u32 v{va}, v0, 4, 1")
        a(f"v_lshlrev_b32 v{va}, 16, v{va}")
        a(f"v_lshrrev_b32 v{va+1}, 5, v0")
        a(f"v_lshl_add_u32 v{va}, v{va+1}, 8, v{va}")
        a(f"v_and_b32 v{va+1}, 15, v0")
        a(f"v_lshl_add_u32 v{va}, v{va+1}, 4, v{va}")
        a("s_nop 1")
        for t, base, sc in ((0, B_Q, tmp + 6), (1, B_K, vRstd)):
            for hh in range(2):
                o = ot + 4 * (2 * t + hh)
                for i in range(4):
                    r = acc[t] + 8 * hh + 2 * i
                    a(f"v_mul_f32 v{r}, v{sc}, v{r}")
                    a(f"v_mul_f32 v{r+1}, v{sc}, v{r+1}")
                    a(f"v_cvt_pk_bf16_f32 v{o+i}, v{r}, v{r+1}")
                a(f"s_add_u32 s27, s26, {base + hh*65536:#x}")
                a(f"buffer_store_dwordx4 {vr(o,4)}, v{V_L16}, s[4:7], s27 offen{SC}")
        a(f"s_add_u32 s27, s26, {B_V:#x}")
        for hh in range(2):
            o = ot + 16 + 4 * hh
            for i in range(4):
                r = acc[2] + 8 * hh + 2 * i
                a(f"v_pk_mul_f32 {vr(r,2)}, {vr(vRs+8*hh+2*i,2)}, {vr(r,2)}")
                a(f"v_cvt_pk_bf16_f32 v{o+i}, v{r}, v{r+1}")
            a(f"buffer_store_dwordx4 {vr(o,4)}, v{va}, s[4:7], s27 offen offset:{hh*512}{SC}")
    elif g.kind == "gu":
        a("s_lshr_b32 s26, s31, 1")
        a(f"s_mul_i32 s26, s26, {112*2048}")
        a("s_and_b32 s27, s31, 1")
        a("s_lshl_b32 s27, s27, 10")
        a("s_add_u32 s26, s26, s27")
        a(f"s_mul_i32 s27, s{s_nt}, {7*2048}")
        a("s_add_u32 s26, s26, s27")
        a(f"s_add_u32 s26, s26, s{S_BASE}")
        a(f"s_add_u32 s26, s26, {B_H:#x}")
        a(f"v_mul_f32 v{tmp}, v{vRstd}, v{vRstd}")
        a(f"v_mov_b32 v{tmp+1}, v{tmp}")
        for t in range(NT):
            o = ot + 4 * t
            for i in range(4):
                r = acc[t] + 2 * i
                a(f"v_pk_mul_f32 {vr(r,2)}, {vr(r,2)}, {vr(r+8,2)}")
            for i in range(4):
                r = acc[t] + 2 * i
                a(f"v_pk_mul_f32 {vr(r,2)}, {vr(r,2)}, {vr(tmp,2)}")
            for i in range(4):
                r = acc[t] + 2 * i
                a(f"v_cvt_pk_bf16_f32 v{o+i}, v{r}, v{r+1}")
            a(f"buffer_store_dwordx4 {vr(o,4)}, v{V_L16}, s[4:7], s26 offen{SC}")
            a("s_add_u32 s26, s26, 2048")
    else:
        c0 = acc[0]
        fin = a.label("final")
        a("s_lshr_b32 s26, s31, 2")
        a("s_lshl_b32 s26, s26, 17")
        a("s_and_b32 s27, s31, 3")
        a("s_lshl_b32 s27, s27, 10")
        a("s_add_u32 s26, s26, s27")
        a("s_lshl_b32 s27, s33, 13")
        a("s_add_u32 s26, s26, s27")
        a(f"s_add_u32 s26, s26, s{S_BASE}")
        a(f"s_add_u32 s26, s26, {g.OUT:#x}")
        a("s_add_u32 s27, s26, 4096")
        a("s_lshl_b32 s28, s31, 12")
        a("s_lshr_b32 s29, s33, 1")
        a("s_lshl_b32 s29, s29, 9")
        a("s_add_u32 s28, s28, s29")
        for i in range(8):
            a(f"v_cvt_pk_bf16_f32 v{V_RES+i}, v{c0+2*i}, v{c0+2*i+1}")
        if g.final:
            a(f"s_cmp_eq_u32 s{S_IT}, 1")
            a(f"s_cbranch_scc1 {fin}")
        a(f"buffer_store_dwordx4 {vr(V_RES,4)}, v{V_L16}, s[4:7], s26 offen{SC}")
        a(f"buffer_store_dwordx4 {vr(V_RES+4,4)}, v{V_L16}, s[4:7], s27 offen{SC}")
        q = tmp
        a(f"v_pk_mul_f32 v[{q}:{q+1}], v[{c0}:{c0+1}], v[{c0}:{c0+1}]")
        for i in range(1, 8):
            a(f"v_pk_fma_f32 v[{q}:{q+1}], v[{c0+2*i}:{c0+2*i+1}], v[{c0+2*i}:{c0+2*i+1}], v[{q}:{q+1}]")
            a(f"v_pk_add_f32 v[{c0}:{c0+1}], v[{c0}:{c0+1}], v[{c0+2*i}:{c0+2*i+1}]")
        a(f"v_add_f32 v{q+2}, v{c0}, v{c0+1}")
        a(f"v_add_f32 v{q+3}, v{q}, v{q+1}")
        a("s_and_b32 s29, s33, 1")
        a("s_lshl_b32 s29, s29, 3")
        a(f"v_permlane32_swap_b32 v{q+2}, v{q+3}")
        a("s_add_u32 s28, s28, s29")
        a(f"s_add_u32 s28, s28, s{S_BASE}")
        a(f"v_add_f32 v{q+2}, v{q+2}, v{q+3}")
        a(f"s_add_u32 s28, s28, {g.STOUT:#x}")
        a(f"buffer_store_dword v{q+2}, v{V_ST}, s[4:7], s28 offen{SC}")
    if not EARLY:
        a("s_barrier")
    stamp(a, SB + 3)
    if g.kind == "res" and g.final:
        a(f"s_branch {end}")
        a(f"{fin}:")
        srd(a, 8, 70, 71, 2048 * 512 * 2)
        a(f"v_and_b32 v{tmp}, 31, v0")
        a(f"v_lshlrev_b32 v{tmp}, 10, v{tmp}")
        a(f"v_lshrrev_b32 v{tmp+1}, 5, v0")
        a(f"v_lshl_add_u32 v{tmp}, v{tmp+1}, 4, v{tmp}")
        a("s_lshl_b32 s26, s31, 15")
        a("s_lshl_b32 s27, s33, 6")
        a("s_add_u32 s26, s26, s27")
        a(f"buffer_store_dwordx4 {vr(V_RES,4)}, v{tmp}, s[8:11], s26 offen")
        a(f"buffer_store_dwordx4 {vr(V_RES+4,4)}, v{tmp}, s[8:11], s26 offen offset:32")
        if not EARLY:
            a("s_barrier")
        stamp(a, SB + 3)
    a(f"{end}:")
    return R.n


def attn_phase(a, SB, code_end):
    U = 2
    NIT = 32 // U
    B2IT = env("ATT_B2", 1)
    B3IT = env("ATT_B3", 3)
    PRIO_IT = env("ATT_PRIO", 14)
    CB = 0
    XB = CB + 4096
    KB, VB = 32768, 98304
    assert XB + 8 * 2304 <= KB
    R = Regs(V_FREE)
    vK, vV, vInc, vV0 = R.alloc(), R.alloc(), R.alloc(), R.alloc()
    t0, t1 = R.alloc(), R.alloc()
    Q = [R.alloc(4), R.alloc(4)]
    NM = [R.alloc(16), R.alloc(16)]
    O = [R.alloc(16), R.alloc(16)]
    S = [R.alloc(16), R.alloc(16)]
    P = R.alloc(8)
    KF = [R.alloc(4), R.alloc(4)]
    VF = [R.alloc(8), R.alloc(8)]
    a.c("================ phase attention ================")
    a(f"s_and_b32 s19, s{S_IDX}, 3")
    a(f"s_lshl_b32 s20, s{S_XCD}, 2")
    a("s_add_u32 s19, s19, s20")
    a(f"s_lshr_b32 s20, s{S_IDX}, 2")
    a("s_lshl_b32 s20, s20, 3")
    a(f"s_and_b32 s26, s{S_WAVE}, 3")
    a(f"s_lshr_b32 s27, s{S_WAVE}, 2")
    a("s_lshl_b32 s22, s26, 1")
    a("s_add_u32 s20, s20, s22")
    a("s_lshl_b32 s21, s19, 16")
    a(f"s_add_u32 s21, s21, s{S_BASE}")
    setup = a.label("att_setup")
    assert B_Q == 0 and B_V - B_K == 0x200000
    a("s_and_b32 s24, s26, 1")
    a("s_lshr_b32 s25, s26, 1")
    a("s_lshl_b32 s28, s24, 16")
    a(f"s_add_u32 s28, s28, {KB}")
    a("s_lshl_b32 s29, s24, 21")
    a("s_add_u32 s29, s29, s21")
    a(f"s_add_u32 s29, s29, {B_K:#x}")

    def dma(first_tile, per_wave):
        a(f"s_mul_i32 s24, s25, {per_wave*1024}")
        if first_tile:
            a(f"s_add_u32 s24, s24, {first_tile*1024}")
        n = 0
        while n < per_wave:
            a("s_add_u32 s30, s28, s24")
            a("s_mov_b32 m0, s30")
            a("s_add_u32 s31, s29, s24")
            for i in range(min(4, per_wave - n)):
                a(f"buffer_load_dwordx4 v{V_L16}, s[4:7], s31 offen offset:{i*1024}{SC} lds")
            n += 4
            if n < per_wave:
                a("s_add_u32 s24, s24, 4096")
    a(f"v_and_b32 v{t0}, 11, v0")
    a(f"v_cmp_eq_u32 vcc, 0, v{t0}")
    a(f"v_mov_b32 v{t1}, 0x3f803f80")
    a("s_lshl_b32 s30, s26, 10")
    a(f"s_add_u32 s30, s30, {CB}")
    a(f"v_cndmask_b32 v{P}, 0, v{t1}, vcc")
    a(f"v_add_u32 v{t0}, s30, v{V_L16}")
    for i in range(1, 4):
        a(f"v_mov_b32 v{P+i}, v{P}")
    a(f"ds_write_b128 v{t0}, {vr(P,4)}")
    a(f"v_lshrrev_b32 v{t0}, 5, v0")
    a(f"v_lshlrev_b32 v{t0}, 8, v{t0}")
    a(f"v_and_b32 v{t1}, 15, v0")
    a(f"v_lshl_add_u32 v{t0}, v{t1}, 4, v{t0}")
    a(f"v_and_b32 v{t1}, 16, v0")
    a(f"v_cmp_eq_u32 vcc, 0, v{t1}")
    a("s_lshl_b32 s30, s27, 15")
    a(f"s_add_u32 s30, s30, {KB}")
    a(f"v_add_u32 v{vK}, s30, v{V_L16}")
    a("s_add_u32 s31, s30, 0x10000")
    a(f"v_mov_b32 v{t1}, s31")
    a(f"v_mov_b32 v{vInc}, {CB}")
    a(f"v_cndmask_b32 v{t1}, v{vInc}, v{t1}, vcc")
    a(f"v_add_u32 v{vV}, v{t0}, v{t1}")
    a(f"v_mov_b32 v{t1}, {VB}")
    a(f"v_cndmask_b32 v{t1}, v{vInc}, v{t1}, vcc")
    a(f"v_add_u32 v{vV0}, v{t0}, v{t1}")
    a(f"v_mov_b32 v{t1}, {U*1024}")
    a(f"v_cndmask_b32 v{vInc}, 0, v{t1}, vcc")
    for q in range(2):
        for i in range(16):
            a(f"v_mov_b32 v{O[q]+i}, 0")
    for i in range(4, 8):
        a(f"v_mov_b32 v{P+i}, 0")
    for i in range(4, 8):
        a(f"v_mov_b32 v{VF[1]+i}, 0")
    a(f"ds_write_b128 v{V_L16}, {vr(VF[1]+4,4)} offset:{XB + 9216}")
    a("s_lshl_b32 s30, s26, 11")
    a(f"s_add_u32 s30, s30, {XB}")
    a(f"v_add_u32 v{t0}, s30, v{V_L16}")
    nw = a.label("nowait")
    a("s_cmp_lg_u32 s27, 0")
    a(f"s_cbranch_scc1 {nw}")
    a("s_waitcnt vmcnt(0)")
    a(f"{nw}:")
    a("s_waitcnt lgkmcnt(0)")
    stamp(a, SB)
    a("s_barrier")
    a(f"s_cmp_lg_u32 s{S_WAVE}, 4")
    a(f"s_cbranch_scc1 {setup}")
    a.c("wave 4: wait for Q/K/V of this head, then fetch the first tiles")
    a("s_lshr_b32 s23, s19, 1")
    a(f"s_cmp_eq_u32 s{S_IT}, 0")
    a("s_cselect_b32 s53, 32, 16")
    a("s_cselect_b32 s52, -2, -1")
    a("s_and_b32 s23, s23, s52")
    a("s_lshl_b32 s23, s23, 8")
    a(f"s_add_u32 s23, s23, s{S_FL}")
    a(f"s_add_u32 s23, s23, {FL_Q:#x}")
    a("s_lshl_b32 s22, s20, 10")
    a("s_add_u32 s22, s22, s21")
    a(f"s_add_u32 s31, s29, {B_V - B_K:#x}")
    handoff(a, 23, "s53")
    stamp(a, SB + 1)
    for m0v, so in ((KB, "s29"), (XB, "s22"), (XB + 4096, "s30"), (VB, "s31")):
        a(f"s_mov_b32 m0, {m0v}")
        a("s_add_u32 s30, s22, 4096")
        for i in range(4):
            a(f"buffer_load_dwordx4 v{V_L16}, s[4:7], {so} offen offset:{i*1024}{SC} lds")
    a(f"s_lshr_b32 s{S_SIG}, s{S_IDX}, 2")
    a(f"s_lshl_b32 s{S_SIG}, s{S_SIG}, 8")
    a(f"s_add_u32 s{S_SIG}, s{S_SIG}, s{S_FL}")
    assert FL_A == 0

    a(f"{setup}:")
    a("s_waitcnt vmcnt(0)")
    a("s_barrier")
    stamp(a, SB + 2)
    a(f"ds_read_b128 {vr(Q[0],4)}, v{t0}")
    a(f"ds_read_b128 {vr(Q[1],4)}, v{t0} offset:1024")
    older = a.label("older")
    a(f"s_mov_b32 s32, {NIT - B2IT}")
    a(f"s_mov_b32 s33, {NIT - B3IT}")
    a("s_mov_b32 s34, -1")
    a("s_cmp_eq_u32 s27, 0")
    a(f"s_cbranch_scc1 {older}")
    dma(4, 6)
    dma(16, 8)
    a("s_waitcnt vmcnt(8)")
    a("s_barrier")
    dma(32, 16)
    a("s_waitcnt vmcnt(0)")
    a("s_barrier")
    a("s_mov_b32 s32, -1")
    a(f"s_cmp_eq_u32 s{S_IT}, 0")
    a(f"s_cselect_b32 s33, {env('X_START', 0)}, 4")
    a(f"s_mov_b32 s34, {NIT - 1}")
    a.c("L2 prefetch (wave 4): this workgroup's share of gate/up (8 x 8 KB) and wo (2 x 8 KB)")
    a(f"s_mul_i32 s50, s{S_IDX}, 59136")
    a(f"s_and_b32 s23, s{S_XCD}, 1")
    a(f"s_mul_i32 s23, s23, {8*231*1024}")
    a("s_add_u32 s50, s50, s23")
    a(f"s_add_u32 s50, s50, {WS_WGU:#x}")
    a(f"s_lshl_b32 s51, s{S_IDX}, 14")
    a(f"s_add_u32 s51, s51, {WS_WO:#x}")
    a("s_setprio 1")
    a(f"{older}:")
    a(f"ds_read_b128 {vr(KF[1],4)}, v{V_L16} offset:{KB}")
    a(f"ds_read_b128 {vr(KF[0],4)}, v{vK}")
    a(f"ds_read_b128 {vr(VF[0],4)}, v{vV}")
    a(f"ds_read_b128 {vr(VF[0]+4,4)}, v{vV} offset:512")
    a("s_waitcnt lgkmcnt(0)")
    for q in range(2):
        a(f"{MFMA} {vr(S[q],16)}, {vr(KF[1],4)}, {vr(Q[q],4)}, 0")
    a("s_nop 11")
    for q, t in ((0, t0), (1, t1)):
        a(f"v_max3_f32 v{t}, v{S[q]}, v{S[q]+1}, v{S[q]+2}")
        for i in range(3, 15, 2):
            a(f"v_max3_f32 v{t}, v{t}, v{S[q]+i}, v{S[q]+i+1}")
        a(f"v_max_f32 v{t}, v{t}, v{S[q]+15}")
        a(f"v_mov_b32 v{P+q}, v{t}")
    a("s_nop 1")
    a(f"v_permlane32_swap_b32 v{t0}, v{P}")
    a(f"v_permlane32_swap_b32 v{t1}, v{P+1}")
    a("s_nop 0")
    a(f"v_max_f32 v{t0}, v{t0}, v{P}")
    a(f"v_max_f32 v{t1}, v{t1}, v{P+1}")
    for i in range(16):
        a(f"v_sub_f32 v{NM[0]+i}, 0, v{t0}")
    a(f"v_sub_f32 v{NM[1]}, 0, v{t1}")
    a(f"v_sub_f32 v{NM[1]+1}, 0, v{t1}")
    a(f"{MFMA} {vr(S[0],16)}, {vr(KF[0],4)}, {vr(Q[0],4)}, {vr(NM[0],16)}")
    for i in range(2, 16):
        a(f"v_sub_f32 v{NM[1]+i}, 0, v{t1}")
    a(f"s_mov_b32 s31, {NIT}")
    stamp(a, SB + 3)
    lp, hook, back = a.label("attn"), a.label("hook"), a.label("back")
    a(f"{lp}:")
    for u in range(U):
        for q in range(2):
            c = S[q]
            E = lambda i: a(f"v_exp_f32 v{c+i}, v{c+i}")
            C = lambda j: a(f"v_cvt_pk_bf16_f32 v{P+j}, v{c+2*j}, v{c+2*j+1}")
            E(0); E(1)
            pv = VF[(u + 1) & 1] if q == 0 else VF[u & 1]
            a(f"{MFMA} {vr(O[q^1],16)}, {vr(pv+4,4)}, {vr(P+4,4)}, {vr(O[q^1],16)}")
            E(2)
            if q == 0:
                a(f"ds_read_b128 {vr(KF[(u+1)&1],4)}, v{vK} offset:{(u+1)*1024}")
            E(3); C(0); E(4)
            if q == 0:
                a(f"ds_read_b128 {vr(VF[(u+1)&1],4)}, v{vV} offset:{(u+1)*1024}")
            E(5); C(1); E(6)
            if q == 0:
                a(f"{MFMA} {vr(S[1],16)}, {vr(KF[u&1],4)}, {vr(Q[1],4)}, {vr(NM[1],16)}")
            else:
                a("s_waitcnt lgkmcnt(0)")
                a(f"{MFMA} {vr(S[0],16)}, {vr(KF[(u+1)&1],4)}, {vr(Q[0],4)}, {vr(NM[0],16)}")
            E(7); C(2); E(8)
            if q == 0:
                a(f"ds_read_b128 {vr(VF[(u+1)&1]+4,4)}, v{vV} offset:{(u+1)*1024+512}")
            C(3); E(9); E(10); C(4); E(11)
            a(f"{MFMA} {vr(O[q],16)}, {vr(VF[u&1],4)}, {vr(P,4)}, {vr(O[q],16)}")
            E(12); C(5); E(13); E(14); E(15); C(6)
            if u == U - 1 and q == 1:
                a(f"v_add_u32 v{vK}, {U*1024}, v{vK}")
                a(f"v_add_u32 v{vV}, v{vInc}, v{vV}")
            C(7)
    a("s_sub_u32 s31, s31, 1")
    a("s_cmp_eq_u32 s31, s32")
    a(f"s_cbranch_scc1 {hook}")
    a("s_cmp_eq_u32 s31, s34")
    a(f"s_cbranch_scc1 {hook}")
    a(f"{back}:")
    a("s_cmp_lg_u32 s31, 0")
    a(f"s_cbranch_scc1 {lp}")
    a(f"{MFMA} {vr(O[1],16)}, {vr(VF[1]+4,4)}, {vr(P+4,4)}, {vr(O[1],16)}")
    stamp(a, SB + 4)
    a("s_mul_i32 s30, s26, 2304")
    a(f"s_add_u32 s30, s30, {XB}")
    a("s_lshl_b32 s31, s26, 12")
    a(f"s_add_u32 s31, s31, {XB + 12288}")
    a("s_cmp_eq_u32 s27, 0")
    a("s_cselect_b32 s28, s30, s31")
    a("s_cselect_b32 s29, s31, s30")
    a(f"v_add_u32 v{t0}, s28, v{V_L16}")
    a(f"v_add_u32 v{t1}, s29, v{V_L16}")
    a(f"v_add_u32 v{vK}, s28, v{V_L4}")
    a(f"v_add_u32 v{vV}, s29, v{V_L4}")
    a("s_add_u32 s20, s20, s27")
    a("s_nop 3")
    k1, kj = a.label("keep1"), a.label("keepj")
    a("s_cmp_eq_u32 s27, 0")
    a(f"s_cbranch_scc0 {k1}")
    a(f"ds_write_b128 v{t0}, {vr(O[1],4)}")
    a(f"ds_write_b128 v{t0}, {vr(O[1]+4,4)} offset:1024")
    a(f"ds_write_b32 v{vK}, v{O[1]+8} offset:2048")
    a(f"s_branch {kj}")
    a(f"{k1}:")
    a(f"ds_write_b128 v{t0}, {vr(O[0],4)}")
    a(f"ds_write_b128 v{t0}, {vr(O[0]+4,4)} offset:1024")
    a(f"ds_write_b32 v{vK}, v{O[0]+8} offset:2048")
    a("s_waitcnt lgkmcnt(0)")
    for i in range(9):
        a(f"v_mov_b32 v{O[0]+i}, v{O[1]+i}")
    for i in range(4):
        a(f"v_mov_b32 v{Q[0]+i}, v{Q[1]+i}")
    a(f"{kj}:")
    a("s_lshr_b32 s22, s20, 1")
    a("s_lshl_b32 s22, s22, 16")
    a("s_and_b32 s23, s20, 1")
    a("s_lshl_b32 s23, s23, 10")
    a("s_add_u32 s22, s22, s23")
    a("s_lshl_b32 s23, s19, 11")
    a("s_add_u32 s22, s22, s23")
    a(f"s_add_u32 s22, s22, s{S_BASE}")
    a(f"s_add_u32 s22, s22, {B_O:#x}")
    a("s_waitcnt vmcnt(0) lgkmcnt(0)")
    a("s_barrier")
    a(f"ds_read_b128 {vr(S[0],4)}, v{t1}")
    a(f"ds_read_b128 {vr(S[0]+4,4)}, v{t1} offset:1024")
    a(f"ds_read_b32 v{S[0]+8}, v{vV} offset:2048")
    a("s_waitcnt lgkmcnt(0)")
    OO = O[0]
    for i in range(9):
        a(f"v_add_f32 v{OO+i}, v{OO+i}, v{S[0]+i}")
    fin, fb, endl = a.label("fin"), a.label("fallback"), a.label("att_end")
    a(f"v_add_f32 v{t1}, v{OO}, v{OO+1}")
    for i in range(2, 8):
        a(f"v_add_f32 v{t1}, v{t1}, v{OO+i}")
    a(f"v_fma_f32 v{t1}, 0, v{t1}, v{OO+8}")
    a(f"v_cmp_ngt_f32 vcc, {f32bits(2.0**64):#x}, v{t1}")
    a(f"v_rcp_f32 v{t0}, v{OO+8}")
    a("s_cmp_lg_u64 vcc, 0")
    a(f"s_cbranch_scc1 {fb}")
    a(f"{fin}:")
    for i in range(8):
        a(f"v_mul_f32 v{OO+i}, v{t0}, v{OO+i}")
    for i in range(4):
        a(f"v_cvt_pk_bf16_f32 v{P+i}, v{OO+2*i}, v{OO+2*i+1}")
    a(f"buffer_store_dwordx4 {vr(P,4)}, v{V_L16}, s[4:7], s22 offen{SC}")
    a("s_barrier")
    stamp(a, SB + 5)
    a(f"s_branch {endl}")
    a(f"{hook}:")
    hp = a.label("hookp")
    a("s_cmp_eq_u32 s27, 0")
    a(f"s_cbranch_scc0 {hp}")
    a("s_barrier")
    a("s_mov_b32 s32, s33")
    a("s_mov_b32 s33, -1")
    a(f"s_add_u32 s23, s32, s{S_IT}")
    a("s_cmp_lg_u32 s23, -1")
    a(f"s_cbranch_scc1 {back}")
    a.c("residual tile of x for the first output projection")
    a(f"v_and_b32 v{V_TF}, 31, v0")
    a(f"v_lshlrev_b32 v{V_TF}, 10, v{V_TF}")
    a(f"v_lshrrev_b32 v{V_TF+1}, 5, v0")
    a(f"v_lshl_add_u32 v{V_TF}, v{V_TF+1}, 4, v{V_TF}")
    a(f"s_and_b32 s23, s{S_WAVE}, 1")
    a(f"s_add_u32 s23, s23, s{S_TT64}")
    a("s_lshl_b32 s23, s23, 15")
    a(f"s_lshl_b32 s24, s{S_NT64}, 1")
    a(f"s_lshr_b32 s25, s{S_WAVE}, 1")
    a("s_add_u32 s24, s24, s25")
    a("s_lshl_b32 s24, s24, 6")
    a("s_add_u32 s23, s23, s24")
    a(f"buffer_load_dwordx4 {vr(V_RES,4)}, v{V_TF}, s[8:11], s23 offen")
    a(f"buffer_load_dwordx4 {vr(V_RES+4,4)}, v{V_TF}, s[8:11], s23 offen offset:32")
    a(f"s_branch {back}")
    a(f"{hp}:")
    gaps = [3, 2, 3, 1, 1, 1, 1]
    assert 1 + sum(gaps) < PRIO_IT
    hs = [a.label(f"hs{i}") for i in range(9)]
    for i in (0, 1, 2, 3, 7, 8):
        a(f"s_cmp_eq_u32 s33, {i}")
        a(f"s_cbranch_scc1 {hs[i]}")
    HS = env("HSTAMP", 0)
    def next_step(i):
        if i - HS in (0, 1):
            stamp(a, 1 + 2 * (i - HS))
        a("s_add_u32 s33, s33, 1")
        a(f"s_sub_u32 s34, s34, {gaps[i]}")
        a(f"s_branch {back}")
    a(f"s_cmp_lg_u32 s{S_WAVE}, 4")
    a(f"s_cbranch_scc1 {hs[7]}")
    for i in range(3):
        a(f"buffer_load_dword v{V_PF}, v{V_L128}, s[4:7], s50 offen{SC}")
        a("s_add_u32 s50, s50, 8192")
    a(f"buffer_load_dword v{V_PF}, v{V_L128}, s[4:7], s51 offen{SC}")
    a("s_xor_b32 s51, s51, 8192")
    next_step(4)
    a(f"{hs[7]}:")
    a("s_mov_b32 s33, 8")
    a(f"s_mov_b32 s34, {NIT - PRIO_IT}")
    a(f"s_branch {back}")
    a(f"{hs[8]}:")
    a("s_setprio 0")
    a(f"s_branch {back}")
    F, G_, vS, vR, vC = V_TF, V_TF + 32, V_TF + 48, V_TF + 49, V_TF + 52
    CSA = XB + 10240
    CNT = XB + 9216
    a(f"{hs[0]}:")
    if 0 - HS in (0, 1):
        stamp(a, 2 * (0 - HS))
    a.c("re-tiling task: 128 rows x two 64-column strips; this wave takes 32 rows")
    l_gu, l_o, l_d, l_go = [a.label(x) for x in ("gu", "o", "d", "go")]
    a("s_cmp_ge_u32 s2, 176")
    a(f"s_cbranch_scc1 {l_d}")
    a("s_cmp_ge_u32 s2, 160")
    a(f"s_cbranch_scc1 {l_o}")
    a("s_cmp_ge_u32 s2, 48")
    a(f"s_cbranch_scc1 {l_gu}")
    srd(a, 80, 66, 67, 512 * 1536 * 2)
    srd(a, 84, 66, 67, 512 * 1536 * 2)
    a("s_and_b32 s79, s2, 3")
    a("s_lshr_b32 s54, s2, 2")
    a("s_mov_b32 s88, 3072")
    a("s_lshl_b32 s89, s54, 8")
    a("s_add_u32 s90, s89, 128")
    a("s_mov_b32 s91, 0")
    a("s_and_b32 s62, s54, 3")
    a(f"s_mul_i32 s96, s62, {4*99*1024}")
    a("s_lshr_b32 s62, s54, 2")
    a("s_lshl_b32 s62, s62, 10")
    a("s_add_u32 s96, s96, s62")
    assert WS_WQKV == 0
    a(f"s_add_u32 s97, s96, {99*1024}")
    a(f"s_add_u32 s100, s96, {2*99*1024}")
    a(f"s_add_u32 s101, s96, {3*99*1024}")
    a("s_mov_b32 s93, 3072")
    a("s_mov_b32 s63, 1")
    a(f"s_branch {l_go}")
    a(f"{l_gu}:")
    srd(a, 80, 72, 73, 512 * 1792 * 2)
    srd(a, 84, 74, 75, 512 * 1792 * 2)
    a("s_sub_u32 s55, s2, 48")
    a("s_and_b32 s79, s55, 3")
    a("s_lshr_b32 s54, s55, 2")
    a("s_mov_b32 s88, 3584")
    a("s_lshl_b32 s89, s54, 7")
    a("s_mov_b32 s90, s89")
    a("s_mov_b32 s91, 1")
    a("s_lshl_b32 s55, s54, 2")
    for d in (96, 97, 100, 101):
        a("s_mul_i32 s62, s55, 9363")
        a("s_lshr_b32 s62, s62, 16")
        a(f"s_mul_i32 s{d}, s62, {224*1024}")
        a("s_lshl_b32 s62, s55, 10")
        a(f"s_add_u32 s{d}, s{d}, s62")
        a(f"s_add_u32 s{d}, s{d}, {WS_WGU:#x}")
        a("s_add_u32 s55, s55, 1")
    a("s_mov_b32 s93, 7168")
    a("s_mov_b32 s63, 1")
    a(f"s_branch {l_go}")
    for lab, first, lo, nbytes, wnt, wbase in ((l_o, 160, 68, 512 * 512 * 2, 64 * 1024, WS_WO),
                                               (l_d, 176, 76, 1792 * 512 * 2, 224 * 1024, WS_WD)):
        a(f"{lab}:")
        srd(a, 80, lo, lo + 1, nbytes)
        srd(a, 84, lo, lo + 1, nbytes)
        a(f"s_sub_u32 s55, s2, {first}")
        a("s_lshr_b32 s79, s55, 2")
        a("s_and_b32 s54, s55, 3")
        a("s_mov_b32 s88, 1024")
        a("s_lshl_b32 s89, s54, 8")
        a("s_add_u32 s90, s89, 128")
        a("s_mov_b32 s91, 0")
        a(f"s_mul_i32 s96, s54, {2*wnt}")
        a(f"s_add_u32 s96, s96, {wbase:#x}")
        a("s_add_u32 s97, s96, 1024")
        a(f"s_add_u32 s100, s96, {wnt}")
        a(f"s_add_u32 s101, s96, {wnt+1024}")
        a("s_mov_b32 s93, 2048")
        a("s_mov_b32 s63, 0")
        if lab == l_o:
            a(f"s_branch {l_go}")
    a(f"{l_go}:")
    a("s_lshl_b32 s62, s79, 2")
    a("s_add_u32 s62, s62, s26")
    a("s_lshl_b32 s92, s62, 1")
    a("s_mul_i32 s92, s92, s93")
    a("s_lshl_b32 s62, s62, 5")
    a("s_mul_i32 s62, s62, s88")
    a("s_add_u32 s89, s89, s62")
    a("s_add_u32 s90, s90, s62")
    a("s_lshl_b32 s55, s88, 3")
    a(f"v_lshrrev_b32 v{vS}, 3, v0")
    a(f"v_mul_lo_u32 v{vS}, v{vS}, s88")
    a(f"v_and_b32 v{vR}, 7, v0")
    a(f"v_lshl_add_u32 v{vS}, v{vR}, 4, v{vS}")
    for g8 in range(4):
        for h in range(2):
            a(f"buffer_load_dwordx4 {vr(F+8*g8+4*h,4)}, v{vS}, s[{80+4*h}:{83+4*h}], s{89+h} offen")
            a(f"s_add_u32 s{89+h}, s{89+h}, s55")
    next_step(0)
    a(f"{hs[1]}:")
    if 1 - HS in (0, 1):
        stamp(a, 2 * (1 - HS))
    nost = a.label("nostore")
    a("s_cmp_ge_u32 s2, 232")
    a(f"s_cbranch_scc1 {nost}")
    a("s_lshl_b32 s62, s26, 12")
    a(f"s_add_u32 s62, s62, {XB + 12288}")
    a(f"v_add_u32 v{vS}, s62, v{V_L16}")
    a(f"v_and_b32 v{vC}, 1, v0")
    a(f"v_bfe_u32 v{vC+1}, v0, 1, 1")
    a(f"v_lshl_add_u32 v{vC}, v{vC}, 1, v{vC+1}")
    a(f"v_lshrrev_b32 v{vR}, 5, v0")
    a(f"v_bfe_u32 v{vC+1}, v0, 2, 2")
    a(f"v_lshl_add_u32 v{vR}, v{vR}, 3, v{vC+1}")
    a(f"v_lshlrev_b32 v{vR}, 7, v{vR}")
    a(f"v_lshl_add_u32 v{vR}, v{vC}, 3, v{vR}")
    a("s_cmp_eq_u32 s91, 0")
    a("s_cselect_b32 s54, 5, 11")
    a("s_cselect_b32 s55, 64, 32")
    a("s_cselect_b32 s78, 2048, 64")
    a(f"v_bfe_u32 v{vC+1}, v0, 4, 1")
    a(f"v_lshlrev_b32 v{vC+1}, s54, v{vC+1}")
    a(f"v_add3_u32 v{vR}, v{vR}, v{vC+1}, s62")
    a(f"v_add_u32 v{vR+1}, s55, v{vR}")
    a(f"v_add_u32 v{vR+2}, s78, v{vR}")
    a(f"v_add_u32 v{vC+4}, s78, v{vR+1}")
    tr_addr = [vR, vR + 1, vR + 2, vC + 4]
    dests = (96, 97, 100, 101)
    a("s_mov_b32 s49, 0x3f803f80")
    a("s_waitcnt vmcnt(0)")
    for half in range(2):
        dst = G_ if half == 0 else F
        for g8 in range(2):
            for h in range(2):
                a(f"ds_write_b128 v{vS}, {vr(F+16*half+8*g8+4*h,4)} offset:{h*2048 + g8*1024}")
        for t in range(4):
            for jj in range(2):
                a(f"ds_read_b64_tr_b16 {vr(dst+4*t+2*jj,2)}, v{tr_addr[t]} offset:{jj*512}")
        a("s_waitcnt lgkmcnt(0)")
        for t in range(4):
            a(f"s_add_u32 s62, s{dests[t]}, s92")
            if not env("X_NOST", 0):
                a(f"buffer_store_dwordx4 {vr(dst+4*t,4)}, v{V_L16}, s[4:7], s62 offen{'' if env('X_PLAIN', 0) else SC}")
        a("s_add_u32 s92, s92, s93")
    a("s_cmp_eq_u32 s63, 0")
    a(f"s_cbranch_scc1 {nost}")
    if env("X_NOCS", 0):
        a(f"s_branch {nost}")
    for t in range(4):
        a(f"v_mov_b32 v{vC+t}, 0")
    for k in range(4):
        for t in range(4):
            a(f"v_dot2c_f32_bf16 v{vC+t}, s49, v{G_+4*t+k}")
        for t in range(4):
            a(f"v_dot2c_f32_bf16 v{vC+t}, s49, v{F+4*t+k}")
    a("s_lshl_b32 s62, s26, 9")
    a(f"v_add_u32 v{vS}, s62, v{V_L4}")
    a(f"v_mov_b32 v{vR}, 1")
    a(f"v_mov_b32 v{vR+1}, {CNT}")
    a(f"v_permlane32_swap_b32 v{vC}, v{vC+1}")
    a(f"v_permlane32_swap_b32 v{vC+2}, v{vC+3}")
    a("s_nop 0")
    a(f"v_add_f32 v{vC}, v{vC}, v{vC+1}")
    a(f"v_add_f32 v{vC+2}, v{vC+2}, v{vC+3}")
    a(f"ds_write_b32 v{vS}, v{vC} offset:{CSA}")
    a(f"ds_write_b32 v{vS}, v{vC+2} offset:{CSA + 256}")
    a("s_mov_b64 exec, 1")
    a(f"ds_add_rtn_u32 v{vR+2}, v{vR+1}, v{vR}")
    a("s_mov_b64 exec, -1")
    a("s_waitcnt lgkmcnt(0)")
    a(f"v_readfirstlane_b32 s62, v{vR+2}")
    a("s_nop 0")
    a("s_cmp_lg_u32 s62, 3")
    a(f"s_cbranch_scc1 {nost}")
    a.c("last of the four waves: write the column-sum pieces")
    for w in range(4):
        for p in range(2):
            a(f"ds_read_b32 v{F+16+2*w+p}, v{V_L4} offset:{CSA + w*512 + p*256}")
    a("s_lshl_b32 s92, s93, 5")
    a("s_lshr_b32 s62, s79, 1")
    a("s_lshl_b32 s62, s62, 9")
    a("s_add_u32 s92, s92, s62")
    a("s_and_b32 s62, s79, 1")
    a("s_lshl_b32 s62, s62, 3")
    a("s_add_u32 s92, s92, s62")
    a("v_cmp_gt_u32 vcc, 32, v0")
    a(f"v_and_b32 v{vS}, 0x1ff, v{V_L16}")
    for p in range(2):
        a(f"v_mov_b32 v{vC}, s{dests[2*p]}")
        a(f"v_mov_b32 v{vC+1}, s{dests[2*p+1]}")
        a(f"v_cndmask_b32 v{vC}, v{vC+1}, v{vC}, vcc")
        a(f"v_add_u32 v{vR+p}, v{vC}, v{vS}")
    a("s_waitcnt lgkmcnt(0)")
    for p in range(2):
        c, o = F + 16 + p, F + 24 + 2 * p
        for w in range(1, 4):
            a(f"v_add_f32 v{c}, v{c}, v{c+2*w}")
        a(f"v_cvt_pk_bf16_f32 v{o}, v{c}, v{c}")
        a(f"v_lshlrev_b32 v{o}, 16, v{o}")
        a(f"v_sub_f32 v{o}, v{c}, v{o}")
        a(f"v_cvt_pk_bf16_f32 v{o}, v{c}, v{o}")
        a(f"v_mov_b32 v{o+1}, v{o}")
        a(f"buffer_store_dwordx2 {vr(o,2)}, v{vR+p}, s[4:7], s92 offen{SC}")
    a(f"{nost}:")
    next_step(1)
    a(f"{hs[2]}:")
    if 2 - HS in (0, 1):
        stamp(a, 2 * (2 - HS))
    nsig = a.label("nosig")
    a(f"v_mov_b32 v{vR}, 1")
    a(f"v_mov_b32 v{vR+1}, {CNT + 4}")
    a("s_waitcnt vmcnt(0)")
    a("s_mov_b64 exec, 1")
    a(f"ds_add_rtn_u32 v{vR+2}, v{vR+1}, v{vR}")
    a("s_mov_b64 exec, -1")
    a("s_and_b32 s23, s2, 15")
    a("s_lshl_b32 s23, s23, 8")
    a(f"s_add_u32 s23, s23, {FL_W:#x}")
    a("s_mov_b32 s38, 1")
    a("s_waitcnt lgkmcnt(0)")
    a(f"v_readfirstlane_b32 s62, v{vR+2}")
    a("s_nop 0")
    a("s_cmp_lg_u32 s62, 3")
    a(f"s_cbranch_scc1 {nsig}")
    a("s_atomic_add s38, s[14:15], s23")
    a(f"{nsig}:")
    if env("WARM", 1):
        a.c("pull the rest of the code into L2 and touch every workspace page once")
        here = a.label("here")
        a("s_getpc_b64 s[98:99]")
        a(f"{here}:")
        a("s_lshl_b32 s62, s26, 13")
        a(f"v_add_u32 v{vC}, s62, v{V_L128}")
        a(f"v_min_u32 v{vC}, {code_end} - {here}, v{vC}")
        a(f"v_lshlrev_b32 v{vC+1}, 20, v0")
        a(f"global_load_dword v{V_PF}, v{vC}, s[98:99]")
        a(f"buffer_load_dword v{V_PF}, v{vC+1}, s[4:7], 0 offen sc1")
    next_step(2)
    a(f"{hs[3]}:")
    if 3 - HS in (0, 1):
        stamp(a, 2 * (3 - HS))
    a.c("the re-tiled weights are complete once all 16 arrival counters are")
    lp0, ok0 = a.label("wpoll"), a.label("wok")
    a(f"s_cmp_lg_u32 s{S_WAVE}, 4")
    a(f"s_cbranch_scc1 {hs[7]}")
    a(f"v_and_b32 v{vS}, 15, v0")
    a(f"v_lshlrev_b32 v{vS}, 8, v{vS}")
    a(f"s_mov_b32 s23, {WS_FLAG + FL_W:#x}")
    a(f"s_mov_b32 s39, {SPIN_MAX}")
    a(f"{lp0}:")
    a(f"buffer_load_dword v{vR}, v{vS}, s[4:7], s23 offen sc1")
    a("s_sub_u32 s39, s39, 1")
    a("s_waitcnt vmcnt(0)")
    a(f"v_cmp_gt_u32 vcc, 16, v{vR}")
    a("s_cmp_eq_u32 s39, 0")
    a(f"s_cbranch_scc1 {ok0}")
    a(f"s_cbranch_vccz {ok0}")
    a("s_sleep 8")
    a(f"s_branch {lp0}")
    a(f"{ok0}:")
    next_step(3)
    a(f"{fb}:")
    a(f"v_add_u32 v{vK}, {KB}, v{V_L16}")
    a(f"v_mov_b32 v{t0}, 0xff800000")
    a("s_mov_b32 s31, 64")
    lp2 = a.label("maxl")
    a(f"{lp2}:")
    a(f"ds_read_b128 {vr(KF[0],4)}, v{vK}")
    a(f"v_add_u32 v{vK}, 1024, v{vK}")
    a("s_waitcnt lgkmcnt(0)")
    a(f"{MFMA} {vr(S[0],16)}, {vr(KF[0],4)}, {vr(Q[0],4)}, 0")
    a("s_nop 15")
    for i in range(0, 16, 2):
        a(f"v_max3_f32 v{t0}, v{t0}, v{S[0]+i}, v{S[0]+i+1}")
    a("s_sub_u32 s31, s31, 1")
    a("s_cmp_lg_u32 s31, 0")
    a(f"s_cbranch_scc1 {lp2}")
    a(f"v_mov_b32 v{t1}, v{t0}")
    a("s_nop 1")
    a(f"v_permlane32_swap_b32 v{t0}, v{t1}")
    a("s_nop 1")
    a(f"v_max_f32 v{t0}, v{t0}, v{t1}")
    for i in range(16):
        a(f"v_sub_f32 v{NM[0]+i}, 0, v{t0}")
        a(f"v_mov_b32 v{OO+i}, 0")
    a(f"v_add_u32 v{vK}, {KB}, v{V_L16}")
    a(f"v_mov_b32 v{vV}, v{vV0}")
    a(f"v_lshrrev_b32 v{vInc}, {U.bit_length()-1}, v{vInc}")
    a("s_mov_b32 s31, 64")
    lp3 = a.label("pass2")
    a(f"{lp3}:")
    a(f"ds_read_b128 {vr(KF[0],4)}, v{vK}")
    a(f"ds_read_b128 {vr(VF[0],4)}, v{vV}")
    a(f"ds_read_b128 {vr(VF[0]+4,4)}, v{vV} offset:512")
    a(f"v_add_u32 v{vK}, 1024, v{vK}")
    a(f"v_add_u32 v{vV}, v{vInc}, v{vV}")
    a("s_waitcnt lgkmcnt(0)")
    a(f"{MFMA} {vr(S[0],16)}, {vr(KF[0],4)}, {vr(Q[0],4)}, {vr(NM[0],16)}")
    a("s_nop 15")
    for i in range(16):
        a(f"v_exp_f32 v{S[0]+i}, v{S[0]+i}")
    a("s_nop 0")
    for j in range(8):
        a(f"v_cvt_pk_bf16_f32 v{P+j}, v{S[0]+2*j}, v{S[0]+2*j+1}")
    a("s_nop 1")
    a(f"{MFMA} {vr(OO,16)}, {vr(VF[0],4)}, {vr(P,4)}, {vr(OO,16)}")
    a(f"{MFMA} {vr(OO,16)}, {vr(VF[0]+4,4)}, {vr(P+4,4)}, {vr(OO,16)}")
    a("s_sub_u32 s31, s31, 1")
    a("s_cmp_lg_u32 s31, 0")
    a("s_nop 7")
    a(f"s_cbranch_scc1 {lp3}")
    a("s_nop 15")
    a(f"v_rcp_f32 v{t0}, v{OO+8}")
    a("s_nop 0")
    a(f"s_branch {fin}")
    a(f"{endl}:")
    return R.n


def gen_main(a):
    name = NAME + "_kernel"
    kernel_header(a, name)
    done = a.label("done")
    a("s_cmp_ge_u32 s2, 256")
    a(f"s_cbranch_scc1 {done}")
    a(f"s_load_dwordx4 s[64:67], s[0:1], {KA_X}")
    a(f"s_load_dwordx2 s[68:69], s[0:1], {KA_WO}")
    a(f"s_load_dwordx4 s[72:75], s[0:1], {KA_WG}")
    a(f"s_load_dwordx2 s[76:77], s[0:1], {KA_WD}")
    a(f"s_load_dwordx2 s[70:71], s[0:1], {KA_OUT}")
    a(f"s_load_dwordx2 s[94:95], s[0:1], {KA_DBG}")
    a(f"s_load_dwordx2 s[12:13], s[0:1], {KA_WS}")
    a("v_lshrrev_b32 v1, 6, v0")
    a("v_and_b32 v0, 63, v0")
    a(f"v_readfirstlane_b32 s{S_WAVE}, v1")
    a(f"s_and_b32 s{S_XCD}, s2, 7")
    a(f"s_lshr_b32 s{S_IDX}, s2, 3")
    a(f"s_and_b32 s{S_TT128}, s{S_IDX}, 3")
    a(f"s_lshr_b32 s19, s{S_XCD}, 1")
    a("s_lshl_b32 s19, s19, 2")
    a(f"s_add_u32 s{S_TT128}, s{S_TT128}, s19")
    a(f"s_lshl_b32 s{S_TT128}, s{S_TT128}, 2")
    a(f"s_lshr_b32 s{S_NT128}, s{S_IDX}, 2")
    a(f"s_and_b32 s19, s{S_XCD}, 1")
    a("s_lshl_b32 s19, s19, 3")
    a(f"s_add_u32 s{S_NT128}, s{S_NT128}, s19")
    a(f"s_and_b32 s{S_TT64}, s{S_IDX}, 3")
    a(f"s_lshl_b32 s19, s{S_XCD}, 2")
    a(f"s_add_u32 s{S_TT64}, s{S_TT64}, s19")
    a(f"s_lshl_b32 s{S_TT64}, s{S_TT64}, 1")
    a(f"s_lshr_b32 s{S_NT64}, s{S_IDX}, 2")
    a(f"s_mov_b32 s{S_IT}, 0")
    a(f"s_mov_b32 s{S_BASE}, {WS_IT0:#x}")
    a(f"s_mov_b32 s{S_FL}, 0")
    a(f"s_mov_b32 s{S_SIG}, 0")
    a(f"v_lshlrev_b32 v{V_L16}, 4, v0")
    a(f"v_and_b32 v{V_ST}, 31, v0")
    a(f"v_lshlrev_b32 v{V_ST}, 4, v{V_ST}")
    a(f"v_lshrrev_b32 v1, 5, v0")
    a(f"v_lshl_add_u32 v{V_ST}, v1, 2, v{V_ST}")
    a(f"v_lshlrev_b32 v{V_L4}, 2, v0")
    a(f"v_lshlrev_b32 v{V_L128}, 7, v0")
    if STAMP:
        a(f"v_mov_b32 v{V_STAMP}, 0")
        a(f"v_mov_b32 v{V_STAMP+1}, 0")
    stamp(a, 31)
    att, fin = a.label("att"), a.label("fin")
    nv = [first_phase(a, att, done)]
    a(f"{att}:")
    nv.append(attn_phase(a, 5, done))
    nv.append(gemm_phase(a, Cfg(name="oproj", kind="res", NA=2, NW=2, NT=1, G=4, KC=4, KST=32, NSA=8, NSW=8, DA=4, PRE=2,
                                PEEL=2, swap=[0], ABUF=B_O, WBASE=WS_WO, WNT=64 * 1024, OUT=B_X1, STOUT=B_ST1,
                                FIN=FL_A, FIN_SH=3, NEED=32, NARR=8, FOUT=FL_O, final=False, sb=12, staged=False, stage_next=None)))
    STG = env("STAGE", 1) != 0
    down = Cfg(name="down", kind="res", NA=2, NW=2, NT=1, G=4, KC=4, KST=112, NSA=6, NSW=14, DA=4, PRE=2,
               PEEL=2, swap=[0], ABUF=B_H, WBASE=WS_WD, WNT=224 * 1024, OUT=B_XIN + IT_STRIDE,
               STOUT=B_STIN + IT_STRIDE, FIN=FL_G, FIN_SH=2, NEED=16, NARR=4, FOUT=FL_D, final=True, sb=22,
               staged=STG, stage_next=None)
    nv.append(gemm_phase(a, Cfg(name="gu", kind="gu", NA=4, NW=7, NT=7, G=1, KC=2, KST=32, NSA=5, NSW=8, DA=3, PRE=3,
                                PEEL=1, swap=[0] * 7, ABUF=B_X1, WBASE=WS_WGU, WNT=231 * 1024, STIN=B_ST1,
                                FIN=FL_O, FIN_SH=2, NEED=16, NARR=4, FOUT=FL_G, sb=17,
                                staged=False, stage_next=down if STG else None)))
    nv.append(gemm_phase(a, down))
    nv.append(V_FREE + 4 + 224)
    a(f"s_cmp_eq_u32 s{S_IT}, 1")
    a(f"s_cbranch_scc1 {fin}")
    a(f"s_mov_b32 s{S_IT}, 1")
    a(f"s_add_u32 s{S_BASE}, s{S_BASE}, {IT_STRIDE:#x}")
    a(f"s_add_u32 s{S_FL}, s{S_FL}, {FL_IT:#x}")
    nv.append(gemm_phase(a, Cfg(name="qkv", kind="qkv", NA=4, NW=3, NT=3, G=1, KC=2, KST=32, NSA=7, NSW=16, DA=4, PRE=1,
                                PEEL=2, swap=[0, 0, 1], ABUF=B_XIN, WBASE=WS_WQKV, WNT=99 * 1024, STIN=B_STIN,
                                FIN=FL_D - FL_IT + (1 << 32), FIN_SH=2, NEED=16, NARR=4, FOUT=FL_Q, sb=0, staged=False, stage_next=None)))
    a(f"s_branch {att}")
    a(f"{fin}:")
    if STAMP:
        a("s_waitcnt vmcnt(0)")
        a(f"s_mov_b32 s{S_IT}, 1")
        stamp(a, 31)
        stamp_flush(a)
        if env("DBGOUT", 0):
            nd = a.label("nodbg")
            a("s_lshl_b32 s54, s2, 3")
            a(f"s_add_u32 s54, s54, s{S_WAVE}")
            a(f"s_cmp_lg_u32 s54, {env('DBGOUT', 0)}")
            a(f"s_cbranch_scc1 {nd}")
            idx = [31, 27, 28, 29, 30, 8, 9, 13, 18, 23, 33, 40, 41, 50, 55, 63]
            a(f"v_readlane_b32 s55, v{V_STAMP}, 31")
            for i, k in enumerate(idx):
                a(f"v_readlane_b32 s54, v{V_STAMP}, {k}")
                a("s_nop 3")
                a("s_sub_u32 s54, s54, s55")
                a(f"v_writelane_b32 v{V_FREE}, s54, {i}")
            a("s_mov_b64 exec, 0xfffe")
            a(f"global_store_dword v{V_L4}, v{V_FREE}, s[94:95]")
            a(f"{nd}:")
    a(f"{done}:")
    a("s_endpgm")
    print("phase vgprs", nv, file=sys.stderr)
    nv.append(V_TF + 58)
    assert max(nv) <= 256
    return (name, max(nv), 256, 512, LDS_MAX)


HEADER = open("cdna_kernels/" + NAME + ".s.ref").read().split("; Override launch")[0]

def main(out):
    a = Asm()
    k, v, nwg, blk, lds = gen_main(a)
    txt = HEADER
    if env("ASLIST", 0):
        txt += f"; @launch kernel={k} grid=({nwg},1,1) block=({blk},1,1) lds={lds}\n"
    else:
        txt += f"; @launch grid=({nwg},1,1) block=({blk},1,1) lds={lds}\n"
    txt += '.amdgcn_target "amdgcn-amd-amdhsa--gfx950"\n.text\n'
    txt += a.text()
    txt += '.section .rodata,"a"\n'
    txt += kernel_desc(k, v, 102)
    print(f"{k}: vgpr={v} lds={lds}", file=sys.stderr)
    open(out, "w").write(txt)

if __name__ == "__main__":
    main(sys.argv[1] if len(sys.argv) > 1 else "v2.s")
```

```python
import sys, struct, math, os
from asmlib import *

NAME = "interleave_layers__mha_block__glu_gated_bilinear__prompt"
def env(k, d):
    return int(os.environ.get(k, d))

WS_WQKV = 0x000000
WS_WO   = 0x200000
WS_WGU  = 0x300000
WS_WD   = 0x700000
WS_FLAG = 0x8C0000
FL_IT = 0x10000
FL_A, FL_O, FL_D, FL_Q, FL_W, FL_G, FL_G2 = 0x0, 0x1000, 0x3000, 0x4000, 0x5000, 0x8000, 0xC000
WS_IT0 = 0xA00000
IT_STRIDE = 0x1400000
B_Q, B_K, B_V, B_O, B_X1, B_XIN, B_H, B_ST1, B_STIN = (
    0x0, 0x200000, 0x400000, 0x600000, 0x800000, 0xA00000, 0xC00000, 0x1300000, 0x1340000)
WS_END = WS_IT0 + 2 * IT_STRIDE
WS_STAMP = WS_END
LDS_MAX = 160 * 1024

KA_X, KA_WQKV, KA_WO, KA_BX, KA_WG, KA_WU, KA_WD, KA_OUT, KA_DBG, KA_WS = [8 * i for i in range(10)]

def f32bits(x):
    return struct.unpack("<I", struct.pack("<f", x))[0]

QSCALE = 0.25 * math.log2(math.e)
MFMA = "v_mfma_f32_32x32x16_bf16"
STAMP = os.environ.get("STAMP", "") != ""
SC = " sc1"
SPIN_MAX = 1 << 18
PASSES = [int(x) for x in os.environ.get("PASSES", "4,2,1").split(",")]
PFIRST = [sum(PASSES[:p]) for p in range(len(PASSES))]
assert sum(PASSES) == 7

def pass_of(a, si, sf, sw):
    a(f"s_mov_b32 s{sf}, 0")
    a(f"s_mov_b32 s{sw}, {PASSES[0]}")
    for p in range(1, len(PASSES)):
        a(f"s_cmp_ge_u32 s{si}, {PFIRST[p]}")
        a(f"s_cselect_b32 s{sf}, {PFIRST[p]}, s{sf}")
        a(f"s_cselect_b32 s{sw}, {PASSES[p]}, s{sw}")
GMX = env('GMX', 4)
PT = env('PT', 0)

def srd(a, d, lo, hi, nbytes):
    a(f"s_mov_b32 s{d}, s{lo}")
    a(f"s_and_b32 s{d+1}, s{hi}, 0xffff")
    a(f"s_mov_b32 s{d+2}, {nbytes:#x}")
    a(f"s_mov_b32 s{d+3}, 0x20000")

S_WAVE, S_XCD, S_IDX, S_IT, S_BASE, S_FL = 16, 17, 18, 40, 41, 42
S_TT64, S_NT64, S_TT128, S_NT128 = 43, 44, 45, 46
S_TTG, S_NTG, S_TCH = 68, 69, 47
S_ARR, S_SIG = 47, 48
LDS_CNT = LDS_MAX - 16
V_L16, V_ST, V_L4 = 2, 3, 1
V_RES = 4
V_STAMP = 12
V_PF, V_L128 = 14, 15
V_FREE = 16

def stamp(a, i):
    if STAMP:
        a("s_memrealtime s[56:57]")
        a("s_memtime s[58:59]")
        a(f"s_lshl_b32 s60, s{S_IT}, 5")
        a(f"s_add_u32 s60, s60, {i}")
        a("s_waitcnt lgkmcnt(0)")
        a("s_mov_b32 s61, m0")
        a("s_mov_b32 m0, s60")
        a("s_nop 0")
        a(f"v_writelane_b32 v{V_STAMP}, s56, m0")
        a(f"v_writelane_b32 v{V_STAMP+1}, s58, m0")
        a("s_mov_b32 m0, s61")

def stamp_flush(a, which=0):
    if STAMP:
        a("s_lshl_b32 s60, s2, 3")
        a(f"s_add_u32 s60, s60, s{S_WAVE}")
        a("s_lshl_b32 s60, s60, 9")
        a(f"s_add_u32 s60, s60, {WS_STAMP + which*0x100000:#x}")
        a(f"s_mov_b32 s6, {WS_STAMP + 0x200000:#x}")
        a(f"buffer_store_dword v{V_STAMP}, v{V_L4}, s[4:7], s60 offen")
        a(f"buffer_store_dword v{V_STAMP+1}, v{V_L4}, s[4:7], s60 offen offset:256")

def handoff(a, soff, need):
    a("s_mov_b32 s38, 1")
    a(f"s_atomic_add s38, s[14:15], s{S_SIG}")
    poll(a, soff, need)

def poll(a, soff, need):
    lp, ok = a.label("poll"), a.label("pok")
    a(f"s_mov_b32 s39, {SPIN_MAX}")
    a(f"{lp}:")
    a("s_mov_b32 s49, 0")
    a(f"s_atomic_add s49, s[14:15], s{soff} glc")
    a("s_sub_u32 s39, s39, 1")
    a("s_waitcnt lgkmcnt(0)")
    a(f"s_cmp_ge_u32 s49, {need}")
    a(f"s_cbranch_scc1 {ok}")
    if env("POLL_SLEEP", 2):
        a(f"s_sleep {env('POLL_SLEEP', 2)}")
    a("s_cmp_lg_u32 s39, 0")
    a(f"s_cbranch_scc1 {lp}")
    a(f"{ok}:")


V_TF = 176

def first_phase(a, end_label, code_end):
    XB_ = 528
    XT = 64 * XB_
    W0 = 2 * XT
    NSW, WCH, NC = 7, 12288, 16
    assert W0 + NSW * WCH <= LDS_MAX
    FS = 27
    NPS = env("K1_NPS", 2)
    R = Regs(V_FREE)
    vD, vT0, vT1, vXW = R.alloc(), R.alloc(), R.alloc(), R.alloc()
    X = R.alloc(32)
    ST = R.alloc(16)
    U = R.alloc(16)
    vD2, vZ = R.alloc(), R.alloc()
    a(f"s_lshl_b32 s19, s{S_TT64}, 15")
    a(f"s_lshl_b32 s24, s{S_WAVE}, 13")
    a("s_add_u32 s19, s19, s24")
    a("s_add_u32 s25, s19, 4096")
    a(f"s_mul_i32 s27, s{S_IDX}, 49152")
    a(f"s_mul_i32 s26, s{S_WAVE}, 6144")
    a("s_add_u32 s27, s27, s26")
    a(f"v_lshrrev_b32 v{vT0}, 3, v0")
    a(f"v_bfe_u32 v{vT1}, v0, 4, 1")
    a(f"v_lshlrev_b32 v{vT1}, 2, v{vT1}")
    a(f"v_and_b32 v{vD2}, 7, v0")
    a(f"v_xor_b32 v{vD2}, v{vD2}, v{vT1}")
    a(f"v_lshlrev_b32 v{vD2}, 4, v{vD2}")
    a(f"v_mul_u32_u24 v{vD}, 3072, v{vT0}")
    a(f"v_add_u32 v{vD}, v{vD}, v{vD2}")
    a(f"s_and_b32 s50, s{S_WAVE}, 3")
    a("s_waitcnt lgkmcnt(0)")
    srd(a, 8, 64, 65, 2048 * 512 * 2)
    srd(a, 20, 66, 67, 512 * 1536 * 2)
    for r in range(8):
        a(f"buffer_load_dwordx4 {vr(X+4*r,4)}, v{V_L16}, s[8:11], s{(19, 25)[r//4]} offen offset:{(r%4)*1024}")
    TOUCH = env("TOUCH", 1)
    if TOUCH:
        a("s_mov_b32 exec_hi, 0xffff")
        a(f"buffer_load_dword v{V_PF}, v{V_L128}, s[20:23], s27 offen")
        a("s_mov_b64 exec, -1")
    srd(a, 4, 12, 13, WS_END)
    a(f"s_add_u32 s14, s12, {WS_FLAG:#x}")
    a("s_addc_u32 s15, s13, 0")
    a.c("one wave resets the hand-off counters (512 words, 256 B apart), then raises the flag in d_debug")
    nz = a.label("nozero")
    a(f"s_lshl_b32 s54, s2, 3")
    a(f"s_add_u32 s54, s54, s{S_WAVE}")
    a("s_cmp_lg_u32 s54, 7")
    a(f"s_cbranch_scc1 {nz}")
    a(f"v_lshlrev_b32 v{ST}, 8, v0")
    for i in range(4):
        a(f"v_mov_b32 v{ST+4+i}, 0")
    for i in range(8):
        a(f"s_mov_b32 s54, {WS_FLAG + i*16384:#x}")
        a(f"buffer_store_dwordx4 {vr(ST+4,4)}, v{ST}, s[4:7], s54 offen sc1")
    a("s_waitcnt vmcnt(0)")
    a("s_mov_b32 s54, 1")
    a("s_atomic_add s54, s[94:95], 0x0")
    a("s_waitcnt lgkmcnt(0)")
    a(f"{nz}:")
    a("s_mov_b32 s49, 0x3f803f80")
    a(f"s_lshr_b32 s55, s{S_WAVE}, 2")
    a(f"s_mul_i32 s39, s55, {XT}")
    a("s_lshl_b32 s54, s50, 7")
    a("s_add_u32 s39, s39, s54")
    a(f"v_mul_u32_u24 v{vXW}, {XB_}, v0")
    a(f"v_add_u32 v{vXW}, s39, v{vXW}")
    a(f"s_mul_i32 s62, s50, {8*3072}")
    a(f"s_lshl_b32 s54, s{S_NT64}, 7")
    a("s_add_u32 s62, s62, s54")
    a(f"s_mul_i32 s54, s55, {NPS*32*3072}")
    a("s_add_u32 s62, s62, s54")
    a("s_lshl_b32 s63, s50, 10")
    a(f"s_add_u32 s63, s63, {W0}")
    a(f"s_mul_i32 s54, s55, {NPS*WCH}")
    a("s_add_u32 s48, s63, s54")
    def w_instr(slot, seg, base=63):
        t = f"s_add_u32 s54, s{base}, {slot*WCH + seg*3072}\ns_mov_b32 m0, s54\ns_nop 0\n"
        t += f"buffer_load_dwordx4 v{vD}, s[20:23], s62 offen offset:{seg*1024} lds"
        if seg == 2:
            t += f"\ns_add_u32 s62, s62, {32*3072}"
        return t
    dma = [w_instr(c, sg, 48) for c in range(NPS) for sg in range(3)]
    ops = []
    for r in range(8):
        ops.append(f"v_mov_b32 v{ST+r}, 0")
        ops.append(f"v_mov_b32 v{ST+8+r}, 0")
    pre = len(ops)
    for r in range(8):
        ops.append(("wait", r))
        for i in range(4):
            ops.append(f"v_dot2c_f32_bf16 v{ST+r}, s49, v{X+4*r+i}")
            ops.append(f"v_dot2c_f32_bf16 v{ST+8+r}, v{X+4*r+i}, v{X+4*r+i}")
    ops.append("s_nop 2")
    for b in (ST, ST + 8):
        for r in range(4):
            ops.append(f"v_permlane32_swap_b32 v{b+r}, v{b+r+4}")
    for b in (ST, ST + 8):
        for r in range(4):
            ops.append(f"v_add_f32 v{b+r}, v{b+r}, v{b+r+4}")
    ops.append("s_nop 1")
    for b in (ST, ST + 8):
        for r in range(2):
            ops.append(f"v_permlane16_swap_b32 v{b+r}, v{b+r+2}")
    for b in (ST, ST + 8):
        for r in range(2):
            ops.append(f"v_add_f32 v{b+r}, v{b+r}, v{b+r+2}")
    for d in ("row_ror:8", "row_ror:4", "quad_perm:[2,3,0,1]", "quad_perm:[1,0,3,2]"):
        for v in (ST, ST + 1, ST + 8, ST + 9):
            ops.append(f"v_add_f32_dpp v{v}, v{v}, v{v} {d} row_mask:0xf bank_mask:0xf")
    for r in range(2):
        ops.append(f"v_mul_f32 v{ST+r}, {f32bits(-1.0/512):#x}, v{ST+r}")
        ops.append(f"v_mul_f32 v{ST+8+r}, {f32bits(1.0/512):#x}, v{ST+8+r}")
    for r in range(2):
        ops.append(f"v_fma_f32 v{ST+8+r}, -v{ST+r}, v{ST+r}, v{ST+8+r}")
    for r in range(2):
        ops.append(f"v_max_f32 v{ST+8+r}, 0, v{ST+8+r}")
    for r in range(2):
        ops.append(f"v_add_f32 v{ST+8+r}, {f32bits(1e-5):#x}, v{ST+8+r}")
    for r in range(2):
        ops.append(f"v_rsq_f32 v{ST+8+r}, v{ST+8+r}")
    ops.append("s_nop 0")
    for r in range(2):
        ops.append(f"v_mul_f32 v{ST+r}, v{ST+r}, v{ST+8+r}")
    ops.append("s_nop 0")
    for r in range(8):
        ops.append(f"v_readlane_b32 s{78+2*r}, v{ST+8+(r&1)}, {16*(r>>1)}")
        ops.append(f"v_readlane_b32 s{79+2*r}, v{ST+(r&1)}, {16*(r>>1)}")
    for r in range(8):
        u = U + 8 * (r & 1)
        for i in range(4):
            ops.append(f"v_lshlrev_b32 v{u+2*i}, 16, v{X+4*r+i}")
            ops.append(f"v_and_b32 v{u+2*i+1}, 0xffff0000, v{X+4*r+i}")
        for i in range(4):
            ops.append(f"v_pk_fma_f32 {vr(u+2*i,2)}, {vr(u+2*i,2)}, s[{78+2*r}:{79+2*r}], s[{78+2*r}:{79+2*r}] op_sel:[0,0,1] op_sel_hi:[1,0,1]")
        for i in range(4):
            ops.append(f"v_cvt_pk_bf16_f32 v{X+4*r+i}, v{u+2*i}, v{u+2*i+1}")
        ops.append(f"ds_write_b128 v{vXW}, {vr(X+4*r,4)} offset:{r*16}")
    npre = env("K1_PRE", 2)
    issued = TOUCH
    for _ in range(npre):
        a(dma.pop(0)); issued += 1
    step_ = env("K1_STEP", 24)
    k = 0
    for j, op in enumerate(ops):
        if isinstance(op, tuple):
            a(f"s_waitcnt vmcnt({7 - op[1] + issued})")
        else:
            a(op)
        if j >= pre + env("K1_SKIP", 40) and dma:
            k += 1
            if k % step_ == 0:
                a(dma.pop(0)); issued += 1
    assert not dma
    comp = a.label("k1_comp")
    a(f"s_cmp_lt_u32 s{S_WAVE}, 4")
    a(f"s_cbranch_scc1 {comp}")
    DW = env("K1_DW", 5)
    assert 2 * NPS <= DW <= NSW - 2
    for c in range(2 * NPS, DW):
        for sg in range(3):
            a(w_instr(c, sg))
    lp = a.label("k1ld")
    a(f"s_mov_b32 s47, {NC-DW}")
    a(f"s_add_u32 s48, s63, {DW*WCH}")
    a(f"s_add_u32 s39, s63, {NSW*WCH}")
    a(f"v_mov_b32 v{vT1}, 0")
    stamp(a, FS)
    a("s_waitcnt lgkmcnt(0)")
    a(f"{lp}:")
    a(f"s_waitcnt vmcnt({(DW-1)*3})")
    a("s_barrier")
    for sg in range(3):
        a(w_instr(0, sg, 48))
    a(f"s_add_u32 s48, s48, {WCH}")
    a("s_cmp_eq_u32 s48, s39")
    a("s_cselect_b32 s48, s63, s48")
    a("s_sub_u32 s47, s47, 1")
    a("s_cmp_lg_u32 s47, 0")
    a(f"s_cbranch_scc1 {lp}")
    a(f"global_load_dword v{vZ}, v{vT1}, s[94:95] sc1")
    for c in range(NC - DW, NC):
        a(f"s_waitcnt vmcnt({(NC - 1 - c)*3 + 1})")
        a("s_barrier")
    stamp(a, FS + 2)
    a.c("the counters must have been reset before this workgroup touches them")
    lp, ok = a.label("zpoll"), a.label("zok")
    a(f"s_mov_b32 s39, {SPIN_MAX}")
    a("s_waitcnt vmcnt(0)")
    a(f"{lp}:")
    a(f"v_cmp_eq_u32 vcc, 0, v{vZ}")
    a("s_sub_u32 s39, s39, 1")
    a("s_cmp_eq_u32 s39, 0")
    a(f"s_cbranch_scc1 {ok}")
    a(f"s_cbranch_vccz {ok}")
    a(f"global_load_dword v{vZ}, v{vT1}, s[94:95] sc1")
    a("s_waitcnt vmcnt(0)")
    a(f"s_branch {lp}")
    a(f"{ok}:")
    a("s_barrier")
    a(f"s_branch {end_label}")
    a(f"{comp}:")
    R2 = Regs(V_FREE + 4)
    vA, vW0, vW = R2.alloc(), R2.alloc(), R2.alloc()
    acc = [R2.alloc(16) for _ in range(3)]
    sets = [(R2.alloc(4), [R2.alloc(4) for _ in range(3)]) for _ in range(2)]
    a("s_waitcnt lgkmcnt(0)")
    a(f"s_and_b32 s24, s{S_WAVE}, 1")
    a(f"s_lshr_b32 s25, s{S_WAVE}, 1")
    a(f"s_mul_i32 s26, s24, {XT}")
    a(f"v_lshrrev_b32 v{vT0}, 5, v0")
    a(f"v_mul_u32_u24 v{vA}, {XB_}, v{vT0}")
    a(f"v_and_b32 v{vT1}, 31, v0")
    a(f"v_lshl_add_u32 v{vA}, v{vT1}, 4, v{vA}")
    a(f"v_add_u32 v{vA}, s26, v{vA}")
    a(f"v_bfe_u32 v{vT1}, v0, 2, 2")
    a(f"v_lshl_add_u32 v{vW0}, v{vT0}, 3, v{vT1}")
    a(f"v_lshlrev_b32 v{vW0}, 7, v{vW0}")
    a(f"v_and_b32 v{vT0}, 1, v0")
    a(f"v_bfe_u32 v{vT1}, v0, 1, 1")
    a(f"v_lshl_add_u32 v{vT0}, v{vT0}, 1, v{vT1}")
    a(f"v_lshl_add_u32 v{vW0}, v{vT0}, 3, v{vW0}")
    a(f"v_bfe_u32 v{vT0}, v0, 4, 1")
    a(f"v_lshl_add_u32 v{vW0}, v{vT0}, 5, v{vW0}")
    a(f"v_bfe_u32 v{vT0}, v0, 3, 1")
    a(f"v_xor_b32 v{vT0}, s25, v{vT0}")
    a(f"v_lshl_add_u32 v{vW0}, v{vT0}, 6, v{vW0}")
    a(f"v_add_u32 v{vW0}, {W0}, v{vW0}")
    a(f"v_mov_b32 v{vW}, v{vW0}")
    for t in range(3):
        for i in range(16):
            a(f"v_mov_b32 v{acc[t]+i}, 0")
    a("s_mov_b32 s37, 0")

    def read_list(ks, par):
        xa, wfs = sets[par]
        out = [f"ds_read_b128 {vr(xa,4)}, v{vA} offset:{ks*2*XB_}"]
        for t in range(3):
            for jj in range(2):
                out.append(f"ds_read_b64_tr_b16 {vr(wfs[t]+2*jj,2)}, v{vW} offset:{t*4096 + ks*2048 + jj*512}")
        return out

    def step(par, nxt, boundary, adv=False):
        xa, wfs = sets[par]
        issued = 0
        plan = [3, 5, 7]
        if boundary:
            a("s_barrier")
        for t in range(3):
            while issued < min(plan[t], len(nxt)):
                a(nxt[issued]); issued += 1
            a(f"s_waitcnt lgkmcnt({issued + 7 - (3 + 2*t)})")
            if t == 2:
                a(f"{MFMA} {vr(acc[t],16)}, {vr(xa,4)}, {vr(wfs[t],4)}, {vr(acc[t],16)}")
            else:
                a(f"{MFMA} {vr(acc[t],16)}, {vr(wfs[t],4)}, {vr(xa,4)}, {vr(acc[t],16)}")
        if adv:
            a(f"s_add_u32 s37, s37, {WCH}")
            a(f"s_cmp_eq_u32 s37, {NSW*WCH}")
            a("s_cselect_b32 s37, 0, s37")
            a(f"v_add_u32 v{vW}, s37, v{vW0}")
            a(f"v_add_u32 v{vA}, {4*XB_}, v{vA}")

    a("s_waitcnt vmcnt(0)")
    stamp(a, FS)
    a("s_barrier")
    stamp(a, FS + 1)
    for r in read_list(0, 0):
        a(r)
    lp = a.label("k1loop")
    a(f"s_mov_b32 s35, {NC-1}")
    a(f"{lp}:")
    step(0, read_list(1, 1), False, True)
    step(1, read_list(0, 0), True)
    a("s_sub_u32 s35, s35, 1")
    a("s_cmp_lg_u32 s35, 0")
    a(f"s_cbranch_scc1 {lp}")
    step(0, read_list(1, 1), False)
    step(1, [], False)
    stamp(a, FS + 2)
    ot = sets[0][0]
    a(f"s_lshl_b32 s26, s{S_NT64}, 1")
    a("s_add_u32 s26, s26, s25")
    a("s_lshl_b32 s26, s26, 17")
    a(f"s_add_u32 s27, s{S_TT64}, s24")
    a("s_lshl_b32 s27, s27, 10")
    a("s_add_u32 s26, s26, s27")
    a(f"v_bfe_u32 v{vT0}, v0, 4, 1")
    a(f"v_lshlrev_b32 v{vT0}, 16, v{vT0}")
    a(f"v_lshrrev_b32 v{vT1}, 5, v0")
    a(f"v_lshl_add_u32 v{vT0}, v{vT1}, 8, v{vT0}")
    a(f"v_and_b32 v{vT1}, 15, v0")
    a(f"v_lshl_add_u32 v{vT0}, v{vT1}, 4, v{vT0}")
    a(f"s_mov_b32 s28, {f32bits(QSCALE):#x}")
    a("s_mov_b32 s29, s28")
    K1SC = SC
    a(f"s_lshl_b32 s{S_SIG}, s{S_NT64}, 9")
    a(f"s_add_u32 s{S_SIG}, s{S_SIG}, {FL_Q:#x}")
    for t, base in ((0, B_Q), (1, B_K), (2, B_V)):
        for hh in range(2):
            o = ot + 4 * (2 * t + hh)
            for i in range(4):
                r = acc[t] + 8 * hh + 2 * i
                if t == 0:
                    a(f"v_pk_mul_f32 {vr(r,2)}, {vr(r,2)}, s[28:29]")
                a(f"v_cvt_pk_bf16_f32 v{o+i}, v{r}, v{r+1}")
            if t < 2:
                a(f"s_add_u32 s27, s26, {WS_IT0 + base + hh*65536:#x}")
                a(f"buffer_store_dwordx4 {vr(o,4)}, v{V_L16}, s[4:7], s27 offen{K1SC}")
            else:
                a(f"s_add_u32 s27, s26, {WS_IT0 + base:#x}")
                a(f"buffer_store_dwordx4 {vr(o,4)}, v{vT0}, s[4:7], s27 offen offset:{hh*512}{K1SC}")
    a("s_barrier")
    stamp(a, FS + 3)
    a(f"s_branch {end_label}")
    return max(R.n, R2.n)


class Cfg:
    def __init__(self, **kw):
        self.__dict__.update(kw)
        for k in ("NR", "RA", "N1", "N2", "N3", "N4", "BS", "I0", "PS", "STS", "PRE1", "PRE2", "PRE3", "XB"):
            e = os.environ.get(self.name.upper() + "_" + k)
            if e:
                setattr(self, k, int(e))

def stats_ops(tmp, xc, vRstd):
    f = []
    n = 8
    while n > 1:
        n //= 2
        for p in range(n):
            f.append(f"v_add_f32 v{tmp+2*p}, v{tmp+2*p}, v{tmp+2*(p+n)}")
            f.append(f"v_add_f32 v{tmp+2*p+1}, v{tmp+2*p+1}, v{tmp+2*(p+n)+1}")
    f.append(f"v_mov_b32 v{tmp+2}, v{tmp}")
    f.append(f"v_mov_b32 v{tmp+3}, v{tmp+1}")
    f.append("s_nop 1")
    f.append(f"v_permlane32_swap_b32 v{tmp}, v{tmp+2}")
    f.append(f"v_permlane32_swap_b32 v{tmp+1}, v{tmp+3}")
    f.append(f"v_add_f32 v{tmp}, v{tmp}, v{tmp+2}")
    f.append(f"v_add_f32 v{tmp+1}, v{tmp+1}, v{tmp+3}")
    f.append(f"v_mul_f32 v{tmp}, {f32bits(-1.0/512):#x}, v{tmp}")
    f.append(f"v_mul_f32 v{tmp+1}, {f32bits(1.0/512):#x}, v{tmp+1}")
    f.append(f"v_fma_f32 v{tmp+1}, -v{tmp}, v{tmp}, v{tmp+1}")
    f.append(f"v_max_f32 v{tmp+1}, 0, v{tmp+1}")
    f.append(f"v_add_f32 v{tmp+1}, {f32bits(1e-5):#x}, v{tmp+1}")
    f.append(f"v_rsq_f32 v{vRstd}, v{tmp+1}")
    f.append(f"v_cvt_pk_bf16_f32 v{xc}, v{tmp}, v{tmp}")
    f.append(f"v_lshlrev_b32 v{tmp+2}, 16, v{xc}")
    f.append(f"v_sub_f32 v{tmp+2}, v{tmp}, v{tmp+2}")
    f.append(f"v_cvt_pk_bf16_f32 v{xc+1}, v{tmp+2}, v{tmp+2}")
    f.append(f"v_mov_b32 v{xc+2}, v{xc}")
    f.append(f"v_mov_b32 v{xc+3}, v{xc+1}")
    return f

def res_epilogue(a, g, c0, c1, tmp, end):
    SB = g.sb
    fin = a.label("final")
    a("s_lshl_b32 s26, s31, 15")
    a("s_lshl_b32 s27, s33, 11")
    a("s_add_u32 s26, s26, s27")
    a(f"s_add_u32 s26, s26, s{S_BASE}")
    a(f"s_add_u32 s26, s26, {g.OUT:#x}")
    a("s_lshl_b32 s28, s31, 12")
    a("s_lshr_b32 s29, s33, 1")
    a("s_lshl_b32 s29, s29, 9")
    a("s_add_u32 s28, s28, s29")
    for i in range(8):
        if i % 2 == 0:
            a(f"s_waitcnt lgkmcnt({3 - i//2})")
        a(f"v_pk_add_f32 {vr(c0+2*i,2)}, {vr(c0+2*i,2)}, {vr(c1+2*i,2)}")
    for i in range(8):
        a(f"v_cvt_pk_bf16_f32 v{V_RES+i}, v{c0+2*i}, v{c0+2*i+1}")
    if g.final:
        a(f"s_cmp_eq_u32 s{S_IT}, 1")
        a(f"s_cbranch_scc1 {fin}")
    a(f"buffer_store_dwordx4 {vr(V_RES,4)}, v{V_L16}, s[4:7], s26 offen{SC}")
    a(f"buffer_store_dwordx4 {vr(V_RES+4,4)}, v{V_L16}, s[4:7], s26 offen offset:1024{SC}")
    a(f"s_mov_b32 s{S_TCH}, s26")
    q = tmp
    a(f"v_pk_mul_f32 v[{q}:{q+1}], v[{c0}:{c0+1}], v[{c0}:{c0+1}]")
    for i in range(1, 8):
        a(f"v_pk_fma_f32 v[{q}:{q+1}], v[{c0+2*i}:{c0+2*i+1}], v[{c0+2*i}:{c0+2*i+1}], v[{q}:{q+1}]")
        a(f"v_pk_add_f32 v[{c0}:{c0+1}], v[{c0}:{c0+1}], v[{c0+2*i}:{c0+2*i+1}]")
    a(f"v_add_f32 v{q+2}, v{c0}, v{c0+1}")
    a(f"v_add_f32 v{q+3}, v{q}, v{q+1}")
    a("s_and_b32 s29, s33, 1")
    a("s_lshl_b32 s29, s29, 3")
    a(f"v_permlane32_swap_b32 v{q+2}, v{q+3}")
    a("s_add_u32 s28, s28, s29")
    a(f"s_add_u32 s28, s28, s{S_BASE}")
    a(f"v_add_f32 v{q+2}, v{q+2}, v{q+3}")
    a(f"s_add_u32 s28, s28, {g.STOUT:#x}")
    a(f"buffer_store_dword v{q+2}, v{V_ST}, s[4:7], s28 offen{SC}")
    a("s_barrier")
    stamp(a, SB + 3)
    if g.final:
        a(f"s_branch {end}")
        a(f"{fin}:")
        srd(a, 8, 70, 71, 2048 * 512 * 2)
        a(f"v_and_b32 v{tmp}, 31, v0")
        a(f"v_lshlrev_b32 v{tmp}, 10, v{tmp}")
        a(f"v_lshrrev_b32 v{tmp+1}, 5, v0")
        a(f"v_lshl_add_u32 v{tmp}, v{tmp+1}, 4, v{tmp}")
        a("s_lshl_b32 s26, s31, 15")
        a("s_lshl_b32 s27, s33, 6")
        a("s_add_u32 s26, s26, s27")
        a(f"buffer_store_dwordx4 {vr(V_RES,4)}, v{tmp}, s[8:11], s26 offen")
        a(f"buffer_store_dwordx4 {vr(V_RES+4,4)}, v{tmp}, s[8:11], s26 offen offset:32")
        a("s_barrier")
        stamp(a, SB + 3)

RB = 16384
VS = 32
NPRE = env('NPRE', 5)


class Stream:
    NR, NRND, NREG = 10, 29, 14
    def __init__(self, a):
        self.a = a
        self.nxt = 0
        self.vm, self.lg = [], []
        self.reg = {}
        self.free = list(range(self.NREG - NPRE))
        self.last = self.NRND - NPRE
        for i in range(NPRE):
            self.reg[self.last + i] = self.NREG - NPRE + i
        self.maxreg = self.NREG
    def setup(self):
        a = self.a
        a(f"s_and_b32 s19, s{S_WAVE}, 3")
        a("s_lshl_b32 s25, s19, 12")
        a(f"s_mul_i32 s20, s{S_NTG}, {231*1024}")
        a("s_add_u32 s20, s20, s25")
        a(f"s_add_u32 s20, s20, {WS_WGU:#x}")
        a(f"s_mul_i32 s21, s{S_NT64}, {224*1024}")
        a("s_add_u32 s21, s21, s25")
        a(f"s_add_u32 s21, s21, {WS_WD:#x}")
        for i in range(3):
            a(f"v_add_u32 v{V_FREE+i}, {i*0x10000}, v{V_L16}")
            a(f"v_add_u32 v{V_FREE+i}, s25, v{V_FREE+i}")
    def src(self, r):
        return f"s_add_u32 s27, s20, {r*RB}" if r < 15 else f"s_add_u32 s27, s21, {(r-15)*RB}"
    def wait_vm(self, pred):
        idx = [i for i, e in enumerate(self.vm) if pred(e)]
        if not idx:
            return None
        n = min(63, (len(self.vm) - 1 - idx[-1]) * 4)
        del self.vm[:idx[-1] + 1]
        return f"vmcnt({n})"
    def flush(self, limit, cap=99):
        a = self.a
        for r in sorted(self.reg)[:cap]:
            if r >= limit:
                break
            w = self.wait_vm(lambda e: e == ("s", r))
            if w:
                a("s_waitcnt " + w)
            k = self.reg.pop(r)
            for i in range(4):
                off = (r % self.NR) * RB + i * 1024
                if env("FL64", 0):
                    for hh in range(2):
                        a(f"ds_write_b64 v{V_FREE + (off >> 16)}, {vr(VS + (k*4 + i)*4 + 2*hh, 2)} offset:{(off & 0xffff) + 8*hh}")
                        if env("FLW", 1):
                            a("s_waitcnt lgkmcnt(0)")
                else:
                    a(f"ds_write_b128 v{V_FREE + (off >> 16)}, {vr(VS + (k*4 + i)*4, 4)} offset:{off & 0xffff}")
                    if env("FLW", 1):
                        a("s_waitcnt lgkmcnt(0)")
            self.lg.append((r, k))
    def fetch(self, n, limit):
        a = self.a
        while n > 0 and self.nxt < self.last:
            r = self.nxt
            if r < limit:
                a(f"s_add_u32 s26, s25, {(r % self.NR) * RB}")
                a("s_mov_b32 m0, s26")
                a(self.src(r))
                for i in range(4):
                    a(f"buffer_load_dwordx4 v{V_L16}, s[4:7], s27 offen offset:{i*1024}{SC} lds")
                self.vm.append(("d", r))
            else:
                if not self.free:
                    break
                k = self.free.pop(0)
                self.maxreg = max(self.maxreg, k + 1)
                self.reg[r] = k
                a(self.src(r))
                for i in range(4):
                    a(f"buffer_load_dwordx4 {vr(VS + (k*4 + i)*4, 4)}, v{V_L16}, s[4:7], s27 offen offset:{i*1024}{SC}")
                self.vm.append(("s", r))
            self.nxt += 1; n -= 1
    def landed(self, upto):
        assert self.nxt > min(upto, self.last - 1) and all(r > upto for r in self.reg), (upto, self.nxt, self.reg)
        w = []
        x = self.wait_vm(lambda e: e[0] == "d" and e[1] <= upto)
        if x:
            w.append(x)
        if any(r <= upto for r, _ in self.lg):
            w.append("lgkmcnt(0)")
            self.free += [k for _, k in self.lg]
            self.lg = []
        if w:
            self.a("s_waitcnt " + " ".join(w))

def gemm_phase(a, g):
    NW, NT = g.NW, g.NT
    ln = g.kind in ("qkv", "gu")
    NS = g.KST if ln else g.KST // 2
    SBY = NW * 1024 if ln else 4096
    NSW = NS + (1 if ln else 0)
    NRND = -(-NSW * SBY // RB)
    NR = min(g.NR, NRND)
    RING = NR * RB
    LB = g.LB
    SCR = LB + RING
    assert SCR + (1024 if g.kind == "qkv" else 0) + (0 if ln else 16384) <= LDS_MAX
    S = g.stream
    RA = g.RA
    staged = g.staged
    s_tt, s_nt = (S_TT128, S_NT128) if ln else (S_TT64, S_NT64)
    comp, end = a.label(g.name + "_comp"), a.label(g.name + "_end")
    SB = g.sb
    need_round = lambda st: (min(st, NSW - 1) * SBY + SBY - 1) // RB
    bars = [0]
    out_ = min(NR, g.N1 + g.N2)
    while out_ < NRND:
        out_ = min(out_ + (g.N3 if len(bars) == 1 else g.N4), NR + (bars[-1] * SBY) // RB, NRND)
        bars.append(bars[-1] + g.BS)
    for _ in range(g.XB):
        bars.append(bars[-1] + g.BS)
    a.c(f"================ phase {g.name} ================")
    a(f"s_cmp_lt_u32 s{S_WAVE}, 4")
    a(f"s_cbranch_scc1 {comp}")
    a(f"s_and_b32 s19, s{S_WAVE}, 3")
    a("s_lshl_b32 s25, s19, 12")
    a(f"s_mul_i32 s23, s{s_nt}, {g.WNT}")
    a("s_add_u32 s23, s23, s25")
    if g.WBASE:
        a(f"s_add_u32 s23, s23, {g.WBASE:#x}")
    if staged:
        for i in range(3):
            a(f"v_add_u32 v{V_FREE+i}, {i*0x10000}, v{V_L16}")
            a(f"v_add_u32 v{V_FREE+i}, s25, v{V_FREE+i}")
    stamp(a, SB)
    vm, lg = [], []
    def issue(r):
        dst = LB + (r % NR) * RB
        if r in staged:
            k = staged.index(r)
            for i in range(4):
                off = dst + i * 1024
                a(f"ds_write_b128 v{V_FREE + (off >> 16)}, {vr(VS + (k*4 + i)*4, 4)} offset:{off & 0xffff}")
            lg.append(r)
        else:
            a(f"s_add_u32 s26, s25, {dst}")
            a("s_mov_b32 m0, s26")
            a(f"s_add_u32 s27, s23, {r*RB}")
            for i in range(4):
                a(f"buffer_load_dwordx4 v{V_L16}, s[4:7], s27 offen offset:{i*1024}{SC} lds")
            vm.append(r)
    extra = [0]
    def wait_landed(upto):
        w = []
        for q, nm, cap in ((vm, "vmcnt", 63), (lg, "lgkmcnt", 15)):
            idx = [i for i, r in enumerate(q) if r <= upto]
            if idx:
                left = len(q) - 1 - idx[-1]
                w.append(f"{nm}({min(cap, left*4 + (extra[0] if q is vm else 0))})")
                del q[:idx[-1] + 1]
        if w:
            a("s_waitcnt " + " ".join(w))
    order = g.order if g.order else list(range(NRND))
    todo = list(order)
    def issue_n(n, limit):
        while n > 0 and todo and todo[0] < limit:
            issue(todo.pop(0)); n -= 1
    if staged:
        a("s_waitcnt vmcnt(0)")
    issue_n(g.N1, NR)
    a(f"s_waitcnt vmcnt({len(vm)*4})")
    a("s_barrier")
    issue_n(g.N2, NR)
    if S:
        assert not todo
        S.setup()
        S.fetch(g.PRE1, LB // RB)
        extra[0] = 4 * len(S.vm)
    stamp(a, SB + 1)
    st = []
    if g.stage_next is not None:
        n = g.stage_next
        for k, r in enumerate(n.staged):
            for i in range(4):
                t = f"s_add_u32 s27, s24, {r*RB}\n" if i == 0 else ""
                st.append(t + f"buffer_load_dwordx4 {vr(VS + (k*4 + i)*4, 4)}, v{V_L16}, s[4:7], s27 offen offset:{i*1024}{SC}")
    for j, b in enumerate(bars):
        nxt = bars[j + 1] if j + 1 < len(bars) else NSW
        up = need_round(nxt)
        assert all(r > up for r in todo), (g.name, b, up, todo)
        wait_landed(up)
        a("s_barrier")
        issue_n(g.N3 if j == 0 else g.N4, NR + (b * SBY) // RB)
    assert not todo and not vm and not lg, (g.name, todo, vm, lg)
    if st:
        a.c("fetch part of the next phase's weights into registers")
        a(f"s_mul_i32 s24, s{S_NT64}, {n.WNT}")
        a("s_add_u32 s24, s24, s25")
        a(f"s_add_u32 s24, s24, {n.WBASE:#x}")
        for t in st:
            a(t)
    if S:
        S.fetch(g.PRE2, LB // RB)
    if not ln:
        a("s_barrier")
    if S:
        S.fetch(g.PRE3, LB // RB + NR)
    a("s_barrier")
    a(f"s_branch {end}")

    a(f"{comp}:")
    R = Regs(V_FREE)
    nwin = -(-(LB + RING) // 65536)
    vW = [[R.alloc() for _ in range(nwin)] for _ in range(1 if ln else 2)]
    vRstd, vX, vY = R.alloc(), R.alloc(), R.alloc()
    acc = [R.alloc(16) for _ in range(NT)]
    sets = [[R.alloc(4) for _ in range(NT)] for _ in range(2)]
    ring = [R.alloc(4) for _ in range(RA)]
    tmp = R.alloc(16)
    xc = R.alloc(4)
    if g.kind == "qkv":
        vRs = R.alloc(16)
    if ln:
        a(f"s_add_u32 s31, s{s_tt}, s{S_WAVE}")
        a(f"s_mul_i32 s22, s31, {g.KST*1024}")
        for w in range(nwin):
            a(f"v_add_u32 v{vW[0][w]}, {w*65536}, v{V_L16}")
        for t in range(NT):
            for i in range(16):
                a(f"v_mov_b32 v{acc[t]+i}, 0")
        a("s_lshl_b32 s36, s31, 12")
        a(f"s_add_u32 s36, s36, s{S_BASE}")
        a(f"s_add_u32 s36, s36, {g.STIN:#x}")
    else:
        a(f"s_and_b32 s24, s{S_WAVE}, 1")
        a(f"s_lshr_b32 s25, s{S_WAVE}, 1")
        a(f"s_lshl_b32 s33, s{s_nt}, 1")
        a("s_add_u32 s33, s33, s25")
        a(f"s_add_u32 s31, s{s_tt}, s24")
        a(f"s_mul_i32 s22, s31, {g.KST*1024}")
        a("s_lshl_b32 s26, s25, 10")
        a("s_add_u32 s22, s22, s26")
        a("s_mul_i32 s26, s25, 3072")
        a("s_lshl_b32 s27, s25, 10")
        a("s_add_u32 s27, s27, 1024")
        for w in range(nwin):
            a(f"v_add_u32 v{vX}, {w*65536}, v{V_L16}")
            a(f"v_add_u32 v{vW[0][w]}, s26, v{vX}")
            a(f"v_add_u32 v{vW[1][w]}, s27, v{vX}")
        for i in range(8):
            a(f"v_lshlrev_b32 v{acc[0]+2*i}, 16, v{V_RES+i}")
            a(f"v_and_b32 v{acc[0]+2*i+1}, 0xffff0000, v{V_RES+i}")
        for i in range(16):
            a(f"v_mov_b32 v{acc[1]+i}, 0")
        a(f"s_lshl_b32 s26, s{S_WAVE}, 12")
        a(f"s_add_u32 s26, s26, {SCR}")
        a("s_xor_b32 s27, s26, 0x2000")
        assert SCR % 16384 == 0
        a(f"v_add_u32 v{vX}, s26, v{V_L16}")
        a(f"v_add_u32 v{vY}, s27, v{V_L16}")
    a(f"s_add_u32 s22, s22, s{S_BASE}")
    a(f"s_add_u32 s22, s22, {g.ABUF:#x}")
    AST = 1024 if ln else 2048

    cvm = []
    def load_a(st_):
        if env("NOLOAD", 0):
            return
        off = (st_ * AST) % 4096
        a(f"buffer_load_dwordx4 {vr(ring[st_ % RA],4)}, v{V_L16}, s[4:7], s22 offen offset:{off}{SC}")
        if off + AST == 4096:
            a("s_add_u32 s22, s22, 4096")
        cvm.append(st_)
    def wait_a(tag):
        if tag in cvm:
            i = cvm.index(tag)
            a(f"s_waitcnt vmcnt({len(cvm) - 1 - i})")
            del cvm[:i + 1]
    def w_reads(st_):
        out = []
        for t in range(NT):
            off = LB + (st_ * SBY + (t * 1024 if ln else 0)) % RING
            base = vW[0 if ln else t][off >> 16]
            out.append(f"ds_read_b128 {vr(sets[st_ & 1][t],4)}, v{base} offset:{off & 0xffff}")
        return out
    fill = []
    def mfma(t, xa, wf):
        if env("NOCOMP", 0):
            return
        if g.swap[t]:
            a(f"{MFMA} {vr(acc[t],16)}, {vr(xa,4)}, {vr(wf,4)}, {vr(acc[t],16)}")
        else:
            a(f"{MFMA} {vr(acc[t],16)}, {vr(wf,4)}, {vr(xa,4)}, {vr(acc[t],16)}")
        for _ in range(min(2, len(fill))):
            a(fill.pop(0))

    a(f"s_lshr_b32 s23, s{s_tt}, {g.FIN_SH}")
    a("s_lshl_b32 s23, s23, 8")
    a(f"s_add_u32 s23, s23, s{S_FL}")
    a(f"s_add_u32 s23, s23, {g.FIN:#x}")
    a("s_waitcnt vmcnt(0)")
    stamp(a, SB)
    if PT and ln:
        a("s_mov_b64 exec, 0xffff")
        a(f"buffer_load_dword v{V_PF}, v{V_L128}, s[4:7], s{S_TCH} offen sc1")
        a("s_mov_b64 exec, -1")
    a("s_barrier")
    ns2 = a.label("nopoll")
    a(f"s_cmp_lg_u32 s{S_WAVE}, 0")
    a(f"s_cbranch_scc1 {ns2}")
    handoff(a, 23, g.NEED)
    stamp(a, SB + 4)
    a(f"{ns2}:")
    a("s_barrier")
    stamp(a, SB + 1)
    nxt_a = [0]
    def more_a(n, st_):
        while n > 0 and nxt_a[0] < NS and nxt_a[0] <= st_ + RA:
            load_a(nxt_a[0]); nxt_a[0] += 1; n -= 1
    more_a(1, -1)
    for r in w_reads(0):
        a(r)
    more_a(g.I0 - 1, -1)
    if g.kind == "qkv":
        a(f"s_lshl_b32 s{S_SIG}, s{s_nt}, 8")
    else:
        a(f"s_lshr_b32 s{S_SIG}, s{s_tt}, 2")
        a(f"s_lshl_b32 s{S_SIG}, s{S_SIG}, 8")
    a(f"s_add_u32 s{S_SIG}, s{S_SIG}, s{S_FL}")
    a(f"s_add_u32 s{S_SIG}, s{S_SIG}, {g.FOUT:#x}")
    stl = [f"buffer_load_dwordx4 {vr(tmp+4*i,4)}, v{V_L16}, s[4:7], s36 offen offset:{i*1024}{SC}" for i in range(4)] if ln else []
    nfill_steps = -(-40 // (2 * NT))
    for st_ in range(NS):
        if st_ in bars and st_ > 0:
            a("s_barrier")
        if ln and st_ == NS - nfill_steps:
            assert not stl
            if "st" in cvm:
                i = len(cvm) - 1 - cvm[::-1].index("st")
                a(f"s_waitcnt vmcnt({len(cvm) - 1 - i})")
                del cvm[:i + 1]
            fill.extend(stats_ops(tmp, xc, vRstd))
        nxt = w_reads(st_ + 1) if st_ + 1 < NSW else []
        wait_a(st_)
        for t in range(NT):
            if nxt:
                a(nxt[t])
            a(f"s_waitcnt lgkmcnt({(NT if nxt else NT - 1 - t)})")
            mfma(t, ring[st_ % RA], sets[st_ & 1][t])
            if t == 0:
                more_a(g.PS - 1, st_ - 1)
        more_a(1, st_)
        if stl and st_ >= g.STS:
            a(stl.pop(0)); cvm.append("st")
    if ln:
        while fill:
            a(fill.pop(0))
        if g.kind == "qkv":
            a(f"s_lshl_b32 s26, s{S_WAVE}, 8")
            a(f"s_add_u32 s26, s26, {SCR}")
            a(f"v_add_u32 v{tmp+4}, s26, v{V_L4}")
            a(f"ds_write_b32 v{tmp+4}, v{vRstd}")
            a(f"v_lshrrev_b32 v{tmp+5}, 5, v0")
            a(f"v_lshl_add_u32 v{tmp+5}, v{tmp+5}, 4, s26")
            for q in range(4):
                a(f"ds_read_b128 {vr(vRs+4*q,4)}, v{tmp+5} offset:{q*32}")
            a("s_waitcnt lgkmcnt(5)")
        else:
            a("s_waitcnt lgkmcnt(0)")
            a("s_nop 0")
        for t in range(NT):
            mfma(t, xc, sets[NS & 1][t])
        if g.kind == "qkv":
            a("s_waitcnt lgkmcnt(0)")
    else:
        a("s_nop 11")
        for q in range(4):
            a(f"ds_write_b128 v{vX}, {vr(acc[1]+4*q,4)} offset:{q*1024}")
        a("s_waitcnt lgkmcnt(0)")
        a("s_barrier")
        for q in range(4):
            a(f"ds_read_b128 {vr(acc[1]+4*q,4)}, v{vY} offset:{q*1024}")
    EARLY = 0
    stamp(a, SB + 2)
    ot = sets[0][0]
    if g.kind == "qkv":
        a(f"s_lshl_b32 s26, s{s_nt}, 17")
        a("s_lshl_b32 s27, s31, 10")
        a("s_add_u32 s26, s26, s27")
        a(f"s_add_u32 s26, s26, s{S_BASE}")
        va = tmp + 8
        a(f"v_mul_f32 v{tmp+6}, {f32bits(QSCALE):#x}, v{vRstd}")
        a(f"v_bfe_u32 v{va}, v0, 4, 1")
        a(f"v_lshlrev_b32 v{va}, 16, v{va}")
        a(f"v_lshrrev_b32 v{va+1}, 5, v0")
        a(f"v_lshl_add_u32 v{va}, v{va+1}, 8, v{va}")
        a(f"v_and_b32 v{va+1}, 15, v0")
        a(f"v_lshl_add_u32 v{va}, v{va+1}, 4, v{va}")
        a("s_nop 1")
        for t, base, sc in ((0, B_Q, tmp + 6), (1, B_K, vRstd)):
            for hh in range(2):
                o = ot + 4 * (2 * t + hh)
                for i in range(4):
                    r = acc[t] + 8 * hh + 2 * i
                    a(f"v_mul_f32 v{r}, v{sc}, v{r}")
                    a(f"v_mul_f32 v{r+1}, v{sc}, v{r+1}")
                    a(f"v_cvt_pk_bf16_f32 v{o+i}, v{r}, v{r+1}")
                a(f"s_add_u32 s27, s26, {base + hh*65536:#x}")
                a(f"buffer_store_dwordx4 {vr(o,4)}, v{V_L16}, s[4:7], s27 offen{SC}")
        a(f"s_add_u32 s27, s26, {B_V:#x}")
        for hh in range(2):
            o = ot + 16 + 4 * hh
            for i in range(4):
                r = acc[2] + 8 * hh + 2 * i
                a(f"v_pk_mul_f32 {vr(r,2)}, {vr(vRs+8*hh+2*i,2)}, {vr(r,2)}")
                a(f"v_cvt_pk_bf16_f32 v{o+i}, v{r}, v{r+1}")
            a(f"buffer_store_dwordx4 {vr(o,4)}, v{va}, s[4:7], s27 offen offset:{hh*512}{SC}")
    elif g.kind == "gu":
        a(f"s_mul_i32 s26, s31, {112*1024}")
        a(f"s_mul_i32 s27, s{s_nt}, {7*1024}")
        a("s_add_u32 s26, s26, s27")
        a(f"s_add_u32 s26, s26, s{S_BASE}")
        a(f"s_add_u32 s26, s26, {B_H:#x}")
        a(f"v_mul_f32 v{tmp}, v{vRstd}, v{vRstd}")
        a(f"v_mov_b32 v{tmp+1}, v{tmp}")
        a("s_nop 1")
        for t in range(NT):
            o = ot + 4 * t
            for i in range(4):
                r = acc[t] + 2 * i
                a(f"v_pk_mul_f32 {vr(r,2)}, {vr(r,2)}, {vr(r+8,2)}")
            for i in range(4):
                r = acc[t] + 2 * i
                a(f"v_pk_mul_f32 {vr(r,2)}, {vr(r,2)}, {vr(tmp,2)}")
            for i in range(4):
                r = acc[t] + 2 * i
                a(f"v_cvt_pk_bf16_f32 v{o+i}, v{r}, v{r+1}")
            a(f"buffer_store_dwordx4 {vr(o,4)}, v{V_L16}, s[4:7], s26 offen offset:{(t%4)*1024}{SC}")
            if t == 3:
                a("s_add_u32 s26, s26, 4096")
    else:
        res_epilogue(a, g, acc[0], acc[1], tmp, end)
    if ln:
        a("s_barrier")
        stamp(a, SB + 3)
    a(f"{end}:")
    return R.n


def mlp_phase(a, g):
    E = lambda k, d: env("MLP_" + k, d)
    NR, RING = 10, 10 * RB
    NG, NOPS = 231, 231 + 112
    beg = [i * 1024 for i in range(NG)] + [15 * RB + (i // 2) * 4096 for i in range(112)]
    fin = [i * 1024 + 1023 for i in range(NG)] + [15 * RB + (i // 2) * 4096 + 4095 for i in range(112)]
    RAH = E("RAH", 5)
    I0, I0D = E("I0", 10), E("I0D", 14)
    sched = os.environ.get("MLP_SCHED", "0:0,20:0,40:0,60:0,88:2,100:1,114:1,130:1,146:1,162:1,178:1,194:1,210:1,226:1,240:0,252:0,264:0,276:0,288:0,300:0,330:0")
    sched = dict((int(x.split(":")[0]), int(x.split(":")[1])) for x in sched.split(","))
    bars = sorted(sched)
    S = g.stream
    comp, end = a.label("mlp_comp"), a.label("mlp_end")
    SB, SD = 17, g.sb
    a.c("================ phase gate/up + down ================")
    a(f"s_cmp_lt_u32 s{S_WAVE}, 4")
    a(f"s_cbranch_scc1 {comp}")
    stamp(a, SB)
    S.flush(NR)
    S.fetch(E("N1", 2), NR)
    a("s_barrier")
    S.fetch(E("N2", 6), NR)
    stamp(a, SB + 1)
    for j, b in enumerate(bars):
        nxt = bars[j + 1] if j + 1 < len(bars) else NOPS
        S.landed(fin[min(NOPS - 1, nxt - 1 + RAH)] // RB)
        a("s_barrier")
        lim = NR + beg[b] // RB
        S.fetch(sched[b], lim)
        S.flush(lim, E("FCAP", 1))
        a.c(f"barrier {b}: fetched {S.nxt}, staged {sorted(S.reg)}")
    assert S.nxt == S.last and not S.vm and not S.lg and not S.reg
    a("s_barrier")
    a("s_barrier")
    a(f"s_branch {end}")

    a(f"{comp}:")
    R = Regs(V_FREE)
    vW = [R.alloc() for _ in range(3)]
    vRstd = R.alloc()
    xc = R.alloc(4)
    vR2 = R.alloc(2)
    vX, vY = R.alloc(), R.alloc()
    vD = [[R.alloc() for _ in range(3)] for _ in range(2)]
    acc = [R.alloc(16) for _ in range(4)]
    NF = RAH + 2
    wf = [R.alloc(4) for _ in range(NF)]
    ring = [R.alloc(4) for _ in range(32)]
    tmp = ring[28]
    NP = len(PASSES)
    pstart = [33 * f for f in PFIRST] + [NG]
    tacc = [acc[t % 4] for t in range(7)]
    dacc = [acc[3], acc[0]]
    hreg = [34, 35, 32]
    a(f"s_add_u32 s31, s{S_TTG}, s{S_WAVE}")
    a("s_lshl_b32 s22, s31, 15")
    a(f"s_add_u32 s22, s22, s{S_BASE}")
    a(f"s_add_u32 s22, s22, {B_X1:#x}")
    a("s_lshl_b32 s36, s31, 12")
    a(f"s_add_u32 s36, s36, s{S_BASE}")
    a(f"s_add_u32 s36, s36, {B_ST1:#x}")
    a(f"s_mul_i32 s26, s31, {112*1024}")
    a(f"s_add_u32 s26, s26, s{S_BASE}")
    a(f"s_add_u32 s26, s26, {B_H:#x}")
    for p in range(NP):
        a(f"s_mul_i32 s{hreg[p]}, s{S_NTG}, {PASSES[p]*1024}")
        a(f"s_add_u32 s{hreg[p]}, s{hreg[p]}, s26")
        if p:
            a(f"s_add_u32 s{hreg[p]}, s{hreg[p]}, {PFIRST[p]*16384}")
    a("s_lshl_b32 s50, s31, 8")
    a(f"s_add_u32 s50, s50, s{S_FL}")
    a(f"s_add_u32 s50, s50, {FL_G:#x}")
    a(f"s_add_u32 s51, s50, {WS_FLAG:#x}")
    a(f"s_and_b32 s24, s{S_WAVE}, 1")
    a(f"s_lshr_b32 s25, s{S_WAVE}, 1")
    a(f"s_lshl_b32 s33, s{S_NT64}, 1")
    a("s_add_u32 s33, s33, s25")
    a(f"s_add_u32 s31, s{S_TT64}, s24")
    a("s_lshl_b32 s52, s31, 8")
    a(f"s_add_u32 s52, s52, s{S_FL}")
    a(f"s_add_u32 s52, s52, {FL_G:#x}")
    a(f"s_add_u32 s53, s52, {WS_FLAG:#x}")
    a(f"s_mul_i32 s37, s31, {112*1024}")
    a("s_lshl_b32 s26, s25, 10")
    a("s_add_u32 s37, s37, s26")
    a(f"s_add_u32 s37, s37, s{S_BASE}")
    a(f"s_add_u32 s37, s37, {B_H:#x}")
    a("s_mul_i32 s29, s25, 3072")
    a("s_lshl_b32 s30, s25, 10")
    a("s_add_u32 s30, s30, 1024")
    for w in range(3):
        a(f"v_add_u32 v{vW[w]}, {w*65536}, v{V_L16}")
        a(f"v_add_u32 v{vD[0][w]}, s29, v{vW[w]}")
        a(f"v_add_u32 v{vD[1][w]}, s30, v{vW[w]}")
    a(f"v_mov_b32 v{vY}, 0")
    a(f"s_lshr_b32 s23, s{S_TTG}, 2")
    a("s_lshl_b32 s23, s23, 8")
    a(f"s_add_u32 s23, s23, s{S_FL}")
    a(f"s_add_u32 s23, s23, {FL_O:#x}")
    cvm = []
    def wait_tag(tag):
        if tag in cvm:
            i = len(cvm) - 1 - cvm[::-1].index(tag)
            a(f"s_waitcnt vmcnt({len(cvm) - 1 - i})")
            del cvm[:i + 1]
    na, nh = [0], [0]
    def load_x():
        k = na[0]; na[0] += 1
        a(f"buffer_load_dwordx4 {vr(ring[k],4)}, v{V_L16}, s[4:7], s22 offen offset:{(k%4)*1024}{SC}")
        if k % 4 == 3:
            a("s_add_u32 s22, s22, 4096")
        cvm.append(("x", k))
    def load_h():
        k = nh[0]; nh[0] += 1
        a(f"buffer_load_dwordx4 {vr(ring[k%32],4)}, v{V_L16}, s[4:7], s37 offen offset:{(k%2)*2048}{SC}")
        if k % 2 == 1:
            a("s_add_u32 s37, s37, 4096")
        cvm.append(("h", k))
    def w_read(i):
        off = beg[i] % RING
        base = vW[off >> 16] if i < NG else vD[(i - NG) & 1][off >> 16]
        a(f"ds_read_b128 {vr(wf[i % NF],4)}, v{base} offset:{off & 0xffff}")
    def slot(i):
        for p in range(NP):
            if i < pstart[p + 1]:
                return PFIRST[p] + (i - pstart[p]) % PASSES[p], (i - pstart[p]) // PASSES[p]
        return None, (i - NG) // 2
    fill = []
    stored = set()
    def h_ops(t, packed=True):
        r = tacc[t]
        p = max(q for q in range(NP) if PFIRST[q] <= t)
        so, off = hreg[p], (t - PFIRST[p]) * 1024
        ops = [f"v_pk_mul_f32 {vr(r+2*i,2)}, {vr(r+2*i,2)}, {vr(r+8+2*i,2)}" for i in range(4)]
        ops += [f"v_pk_mul_f32 {vr(r+2*i,2)}, {vr(r+2*i,2)}, {vr(vR2,2)}" for i in range(4)]
        if not packed:
            ops = [f"v_mul_f32 v{r+i}, v{r+i}, v{r+8+i}" for i in range(8)]
            ops += [f"v_mul_f32 v{r+i}, v{vR2}, v{r+i}" for i in range(8)]
        ops += [f"v_cvt_pk_bf16_f32 v{r+8+i}, v{r+2*i}, v{r+2*i+1}" for i in range(4)]
        ops.append((f"buffer_store_dwordx4 {vr(r+8,4)}, v{V_L16}, s[4:7], s{so} offen offset:{off}{SC}", ("hs", t)))
        return ops

    a("s_waitcnt vmcnt(0)")
    stamp(a, SB)
    a("s_barrier")
    ns2 = a.label("nopoll")
    a(f"s_cmp_lg_u32 s{S_WAVE}, 0")
    a(f"s_cbranch_scc1 {ns2}")
    handoff(a, 23, 16)
    stamp(a, SB + 4)
    a(f"{ns2}:")
    a("s_barrier")
    stamp(a, SB + 1)
    if E("PRIO", 2):
        a(f"s_setprio {E('PRIO', 2)}")
    load_x()
    for i in range(RAH):
        w_read(i)
    while na[0] < I0:
        load_x()
        if na[0] == E("STP", 4):
            for q in range(4):
                a(f"buffer_load_dwordx4 {vr(tmp+4*q,4)}, v{V_L16}, s[4:7], s36 offen offset:{q*1024}{SC}")
                cvm.append("st")
    a(f"s_lshr_b32 s{S_SIG}, s{S_TT64}, 2")
    a(f"s_lshl_b32 s{S_SIG}, s{S_SIG}, 8")
    a(f"s_add_u32 s{S_SIG}, s{S_SIG}, s{S_FL}")
    a(f"s_add_u32 s{S_SIG}, s{S_SIG}, {FL_D:#x}")
    STF = (E("STP", 4) + 1) * PASSES[0]
    evs = os.environ.get("MLP_EV", {"4,3": "170:200:214,256:284:292", "3,2,2": "140:200:214,205:244:252,270:296:304",
                                    "4,2,1": "176:198:216,232:256:278,256:286:308"}.get(",".join(map(str, PASSES))))
    ev = []
    for p, x in enumerate(evs.split(",")):
        sg, ak, go = map(int, x.split(":"))
        ev.append((PFIRST[p] + PASSES[p] - 1, sg, ak, go, 8 * (PFIRST[p] + PASSES[p]), sg < NG, ak < NG))
    def emit(x):
        if isinstance(x, tuple):
            a(x[0]); cvm.append(x[1]); stored.add(x[1][1])
        else:
            a(x)
    dinit = [False]
    hlim = 0
    treg = list(range(78, 94, 2)) + [96, 98, 100, 62]
    tpos = [int(x) for x in os.environ.get("TRACE", "").split(",") if x]
    for i in range(NOPS):
        t, ks = slot(i)
        if i in tpos:
            r_ = treg[tpos.index(i)]
            a(f"s_memtime s[{r_}:{r_+1}]")
        for gi, (lt, sg, ak, go, lim_, vec, vec2) in enumerate(ev):
            if i == sg:
                a.c(f"this wave's part {gi} of H is complete")
                assert lt in stored
                wait_tag(("hs", lt))
                if vec:
                    a(f"v_mov_b32 v{vRstd}, 1")
                    a("s_mov_b64 exec, 1")
                    a(f"buffer_atomic_add v{vRstd}, v{vY}, s[4:7], s51 offen offset:{gi*4} sc1")
                    a("s_mov_b64 exec, -1")
                    cvm.append("sig")
                else:
                    a(f"s_add_u32 s54, s50, {gi*4}")
                    a("s_mov_b32 s38, 1")
                    a("s_atomic_add s38, s[14:15], s54")
                if PT:
                    a(f"s_mov_b64 exec, {(1 << (8 * PASSES[gi])) - 1 if PASSES[gi] < 4 else 0x7fffffff:#x}")
                    if PASSES[gi] == 4:
                        a("s_mov_b32 exec_lo, -1")
                    a(f"buffer_load_dword v{V_PF}, v{V_L128}, s[4:7], s{hreg[gi]} offen sc1")
                    a("s_mov_b64 exec, -1")
                    cvm.append("pt")
            if i == ak:
                if vec2:
                    a(f"buffer_load_dword v{vX}, v{vY}, s[4:7], s53 offen offset:{gi*4} sc1")
                    cvm.append("ask")
                else:
                    a(f"s_add_u32 s28, s52, {gi*4}")
                    a("s_mov_b32 s55, 0")
                    a("s_atomic_add s55, s[14:15], s28 glc")
            if i == go:
                ok = a.label("go")
                if vec2:
                    wait_tag("ask")
                    a(f"v_cmp_gt_u32 vcc, 16, v{vX}")
                    a(f"s_add_u32 s28, s52, {gi*4}")
                    a(f"s_cbranch_vccz {ok}")
                else:
                    a("s_waitcnt lgkmcnt(0)")
                    a("s_cmp_ge_u32 s55, 16")
                    a(f"s_cbranch_scc1 {ok}")
                poll(a, 28, 16)
                a(f"{ok}:")
                hlim = lim_
                if gi in (0, NP - 1) and not tpos:
                    stamp(a, SD + (0 if gi == 0 else 4))
        if i in bars and i > 0:
            a("s_barrier")
        if i == STF:
            wait_tag("st")
            fill.extend(stats_ops(tmp, xc, vRstd))
            fill.append(f"v_mul_f32 v{vR2}, v{vRstd}, v{vRstd}")
            fill.append(f"v_mov_b32 v{vR2+1}, v{vR2}")
        if i == pstart[1] and not tpos:
            stamp(a, SB + 2)
        if i == NG and not tpos:
            stamp(a, SB + 3)
        if i in pstart[1:]:
            p = pstart.index(i) - 1
            assert not fill
            need = set(tacc[q] for q in range(PFIRST[p + 1], PFIRST[p + 1] + PASSES[p + 1])) if p + 1 < NP else set(dacc)
            tiles = list(range(PFIRST[p], PFIRST[p] + PASSES[p]))
            now = [q for q in tiles if tacc[q] in need or (E("SER", 6) >> p) & 1]
            if now:
                a(f"s_nop {max(0, 11 - 3 * (tiles[-1] - now[0]))}")
                for q in now:
                    for x in h_ops(q):
                        emit(x)
            else:
                fill.extend(["s_nop 0"] * 6)
            for q in tiles:
                if q not in now:
                    fill.extend(h_ops(q, False))
        if i == NG and not tpos:
            stamp(a, SD + 1)
        if 3 in stored and not dinit[0] and not fill:
            dinit[0] = True
            assert i + 10 < NG
            fill.extend(["s_nop 0"] * 2)
            for q in range(8):
                fill.append(f"v_lshlrev_b32 v{dacc[0]+2*q}, 16, v{V_RES+q}")
                fill.append(f"v_and_b32 v{dacc[0]+2*q+1}, 0xffff0000, v{V_RES+q}")
        if t == 0 and ks < 32:
            wait_tag(("x", ks))
        if t is None and (i - NG) % 2 == 0:
            wait_tag(("h", ks))
        if i + RAH < NOPS:
            w_read(i + RAH)
        a(f"s_waitcnt lgkmcnt({min(RAH, NOPS - 1 - i)})")
        if t is not None:
            d, xa, first = tacc[t], (xc if ks == 32 else ring[ks]), ks == 0
            if first and t >= 4:
                assert t - 4 in stored
        else:
            d, xa, first = dacc[(i - NG) & 1], ring[ks % 32], i == NG + 1
            assert 4 in stored
        a(f"{MFMA} {vr(d,16)}, {vr(wf[i % NF],4)}, {vr(xa,4)}, {'0' if first else vr(d,16)}")
        for _ in range(min(E("FPS", 3), len(fill))):
            emit(fill.pop(0))
        if t == PASSES[0] - 1 and na[0] < 32:
            assert na[0] < 28 or (i > STF and not fill), i
            load_x()
        if i >= pstart[NP - 1]:
            done_steps = (i + 1 - NG) // 2 if t is None else 0
            look = I0D if t is not None else max(E("LK", 12), I0D - done_steps)
            if nh[0] < min(hlim, done_steps + look) and (t is None or nh[0] < ks):
                load_h()
    assert nh[0] == 56 and not fill
    dead = beg[bars[-1]] // RB - 1
    assert dead + NR >= 29
    SCR = (dead % NR) * RB
    a(f"s_lshl_b32 s26, s{S_WAVE}, 12")
    a(f"s_add_u32 s26, s26, {SCR}")
    a("s_xor_b32 s27, s26, 0x2000")
    a(f"v_add_u32 v{vX}, s26, v{V_L16}")
    a(f"v_add_u32 v{vY}, s27, v{V_L16}")
    a("s_nop 6")
    if E("PRIO", 2):
        a("s_setprio 0")
    for q in range(4):
        a(f"ds_write_b128 v{vX}, {vr(dacc[1]+4*q,4)} offset:{q*1024}")
    a("s_waitcnt lgkmcnt(0)")
    a("s_barrier")
    for q in range(4):
        a(f"ds_read_b128 {vr(dacc[1]+4*q,4)}, v{vY} offset:{q*1024}")
    stamp(a, SD + 2)
    for k in range(len(tpos)):
        a(f"v_writelane_b32 v{V_STAMP+1}, s{treg[k]}, {k}")
    res_epilogue(a, g, dacc[0], dacc[1], tmp, end)
    a(f"{end}:")
    return max(R.n, VS + 16 * S.maxreg)


def attn_phase(a, SB, code_end):
    U = 2
    NIT = 32 // U
    B2IT = env("ATT_B2", 1)
    B3IT = env("ATT_B3", 3)
    PRIO_IT = env("ATT_PRIO", 14)
    PFN = 4 if GMX == 4 else env('PFN', 6)
    CB = 0
    XB = CB + 4096
    KB, VB = 32768, 98304
    assert XB + 8 * 2304 <= KB
    R = Regs(V_FREE)
    vK, vV, vInc, vV0 = R.alloc(), R.alloc(), R.alloc(), R.alloc()
    t0, t1 = R.alloc(), R.alloc()
    Q = [R.alloc(4), R.alloc(4)]
    NM = [R.alloc(16), R.alloc(16)]
    O = [R.alloc(16), R.alloc(16)]
    S = [R.alloc(16), R.alloc(16)]
    P = R.alloc(8)
    KF = [R.alloc(4), R.alloc(4)]
    VF = [R.alloc(8), R.alloc(8)]
    a.c("================ phase attention ================")
    a(f"s_and_b32 s19, s{S_IDX}, 3")
    a(f"s_lshl_b32 s20, s{S_XCD}, 2")
    a("s_add_u32 s19, s19, s20")
    a(f"s_lshr_b32 s20, s{S_IDX}, 2")
    a("s_lshl_b32 s20, s20, 3")
    a(f"s_and_b32 s26, s{S_WAVE}, 3")
    a(f"s_lshr_b32 s27, s{S_WAVE}, 2")
    a("s_lshl_b32 s22, s26, 1")
    a("s_add_u32 s20, s20, s22")
    a("s_lshl_b32 s21, s19, 16")
    a(f"s_add_u32 s21, s21, s{S_BASE}")
    setup = a.label("att_setup")
    assert B_Q == 0 and B_V - B_K == 0x200000
    a("s_and_b32 s24, s26, 1")
    a("s_lshr_b32 s25, s26, 1")
    a("s_lshl_b32 s28, s24, 16")
    a(f"s_add_u32 s28, s28, {KB}")
    a("s_lshl_b32 s29, s24, 21")
    a("s_add_u32 s29, s29, s21")
    a(f"s_add_u32 s29, s29, {B_K:#x}")

    def dma(first_tile, per_wave):
        a(f"s_mul_i32 s24, s25, {per_wave*1024}")
        if first_tile:
            a(f"s_add_u32 s24, s24, {first_tile*1024}")
        n = 0
        while n < per_wave:
            a("s_add_u32 s30, s28, s24")
            a("s_mov_b32 m0, s30")
            a("s_add_u32 s31, s29, s24")
            for i in range(min(4, per_wave - n)):
                a(f"buffer_load_dwordx4 v{V_L16}, s[4:7], s31 offen offset:{i*1024}{SC} lds")
            n += 4
            if n < per_wave:
                a("s_add_u32 s24, s24, 4096")
    a(f"v_and_b32 v{t0}, 11, v0")
    a(f"v_cmp_eq_u32 vcc, 0, v{t0}")
    a(f"v_mov_b32 v{t1}, 0x3f803f80")
    a("s_lshl_b32 s30, s26, 10")
    a(f"s_add_u32 s30, s30, {CB}")
    a(f"v_cndmask_b32 v{P}, 0, v{t1}, vcc")
    a(f"v_add_u32 v{t0}, s30, v{V_L16}")
    for i in range(1, 4):
        a(f"v_mov_b32 v{P+i}, v{P}")
    a(f"ds_write_b128 v{t0}, {vr(P,4)}")
    a(f"v_lshrrev_b32 v{t0}, 5, v0")
    a(f"v_lshlrev_b32 v{t0}, 8, v{t0}")
    a(f"v_and_b32 v{t1}, 15, v0")
    a(f"v_lshl_add_u32 v{t0}, v{t1}, 4, v{t0}")
    a(f"v_and_b32 v{t1}, 16, v0")
    a(f"v_cmp_eq_u32 vcc, 0, v{t1}")
    a("s_lshl_b32 s30, s27, 15")
    a(f"s_add_u32 s30, s30, {KB}")
    a(f"v_add_u32 v{vK}, s30, v{V_L16}")
    a("s_add_u32 s31, s30, 0x10000")
    a(f"v_mov_b32 v{t1}, s31")
    a(f"v_mov_b32 v{vInc}, {CB}")
    a(f"v_cndmask_b32 v{t1}, v{vInc}, v{t1}, vcc")
    a(f"v_add_u32 v{vV}, v{t0}, v{t1}")
    a(f"v_mov_b32 v{t1}, {VB}")
    a(f"v_cndmask_b32 v{t1}, v{vInc}, v{t1}, vcc")
    a(f"v_add_u32 v{vV0}, v{t0}, v{t1}")
    a(f"v_mov_b32 v{t1}, {U*1024}")
    a(f"v_cndmask_b32 v{vInc}, 0, v{t1}, vcc")
    for q in range(2):
        for i in range(16):
            a(f"v_mov_b32 v{O[q]+i}, 0")
    for i in range(4, 8):
        a(f"v_mov_b32 v{P+i}, 0")
    for i in range(4, 8):
        a(f"v_mov_b32 v{VF[1]+i}, 0")
    a(f"ds_write_b128 v{V_L16}, {vr(VF[1]+4,4)} offset:{XB + 9216}")
    a("s_lshl_b32 s30, s26, 11")
    a(f"s_add_u32 s30, s30, {XB}")
    a(f"v_add_u32 v{t0}, s30, v{V_L16}")
    nw = a.label("nowait")
    a("s_cmp_lg_u32 s27, 0")
    a(f"s_cbranch_scc1 {nw}")
    a("s_waitcnt vmcnt(0)")
    a(f"{nw}:")
    a("s_waitcnt lgkmcnt(0)")
    stamp(a, SB)
    a("s_barrier")
    a(f"s_cmp_lg_u32 s{S_WAVE}, 0")
    a(f"s_cbranch_scc1 {setup}")
    a.c("wave 0: wait for Q/K/V of this head, then fetch the first tiles")
    a("s_lshr_b32 s23, s19, 1")
    a(f"s_cmp_eq_u32 s{S_IT}, 0")
    a("s_cselect_b32 s53, 32, 16")
    a("s_cselect_b32 s52, -2, -1")
    a("s_and_b32 s23, s23, s52")
    a("s_lshl_b32 s23, s23, 8")
    a(f"s_add_u32 s23, s23, s{S_FL}")
    a(f"s_add_u32 s23, s23, {FL_Q:#x}")
    a("s_lshl_b32 s22, s20, 10")
    a("s_add_u32 s22, s22, s21")
    a(f"s_add_u32 s31, s29, {B_V - B_K:#x}")
    handoff(a, 23, "s53")
    stamp(a, SB + 1)
    for m0v, so in ((KB, "s29"), (XB, "s22"), (XB + 4096, "s30"), (VB, "s31")):
        a(f"s_mov_b32 m0, {m0v}")
        a("s_add_u32 s30, s22, 4096")
        for i in range(4):
            a(f"buffer_load_dwordx4 v{V_L16}, s[4:7], {so} offen offset:{i*1024}{SC} lds")
    a(f"s_lshr_b32 s{S_SIG}, s{S_IDX}, 2")
    a(f"s_lshl_b32 s{S_SIG}, s{S_SIG}, 8")
    a(f"s_add_u32 s{S_SIG}, s{S_SIG}, s{S_FL}")
    assert FL_A == 0

    a(f"{setup}:")
    a("s_waitcnt vmcnt(0)")
    a("s_barrier")
    stamp(a, SB + 2)
    a(f"ds_read_b128 {vr(Q[0],4)}, v{t0}")
    a(f"ds_read_b128 {vr(Q[1],4)}, v{t0} offset:1024")
    older = a.label("older")
    a(f"s_mov_b32 s32, {NIT - B2IT}")
    a(f"s_mov_b32 s33, {NIT - B3IT}")
    a("s_mov_b32 s34, -1")
    a("s_cmp_eq_u32 s27, 0")
    a(f"s_cbranch_scc1 {older}")
    dma(4, 6)
    dma(16, 8)
    a("s_waitcnt vmcnt(8)")
    a("s_barrier")
    dma(32, 16)
    a("s_waitcnt vmcnt(0)")
    a("s_barrier")
    a("s_mov_b32 s32, -1")
    a(f"s_cmp_eq_u32 s{S_IT}, 0")
    a(f"s_cselect_b32 s33, {env('X_START', 0)}, 4")
    a(f"s_mov_b32 s34, {NIT - 1}")
    a.c("L2 prefetch (wave 4): this workgroup's share of gate/up (8 x 8 KB) and wo (2 x 8 KB)")
    if GMX == 4:
        a(f"s_mul_i32 s50, s{S_IDX}, 59136")
        a(f"s_and_b32 s23, s{S_XCD}, 1")
        a(f"s_mul_i32 s23, s23, {8*231*1024}")
    else:
        a(f"s_lshr_b32 s50, s{S_IDX}, 1")
        a(f"s_mul_i32 s50, s50, {231*1024}")
        a(f"s_and_b32 s23, s{S_IDX}, 1")
        a(f"s_mul_i32 s23, s23, {2*PFN*8192}")
    a("s_add_u32 s50, s50, s23")
    a(f"s_add_u32 s50, s50, {WS_WGU:#x}")
    a(f"s_lshl_b32 s51, s{S_IDX}, 14")
    a(f"s_add_u32 s51, s51, {WS_WO:#x}")
    a("s_setprio 1")
    a(f"{older}:")
    a(f"ds_read_b128 {vr(KF[1],4)}, v{V_L16} offset:{KB}")
    a(f"ds_read_b128 {vr(KF[0],4)}, v{vK}")
    a(f"ds_read_b128 {vr(VF[0],4)}, v{vV}")
    a(f"ds_read_b128 {vr(VF[0]+4,4)}, v{vV} offset:512")
    a("s_waitcnt lgkmcnt(0)")
    for q in range(2):
        a(f"{MFMA} {vr(S[q],16)}, {vr(KF[1],4)}, {vr(Q[q],4)}, 0")
    a("s_nop 11")
    for q, t in ((0, t0), (1, t1)):
        a(f"v_max3_f32 v{t}, v{S[q]}, v{S[q]+1}, v{S[q]+2}")
        for i in range(3, 15, 2):
            a(f"v_max3_f32 v{t}, v{t}, v{S[q]+i}, v{S[q]+i+1}")
        a(f"v_max_f32 v{t}, v{t}, v{S[q]+15}")
        a(f"v_mov_b32 v{P+q}, v{t}")
    a("s_nop 1")
    a(f"v_permlane32_swap_b32 v{t0}, v{P}")
    a(f"v_permlane32_swap_b32 v{t1}, v{P+1}")
    a("s_nop 0")
    a(f"v_max_f32 v{t0}, v{t0}, v{P}")
    a(f"v_max_f32 v{t1}, v{t1}, v{P+1}")
    for i in range(16):
        a(f"v_sub_f32 v{NM[0]+i}, 0, v{t0}")
    a(f"v_sub_f32 v{NM[1]}, 0, v{t1}")
    a(f"v_sub_f32 v{NM[1]+1}, 0, v{t1}")
    a(f"{MFMA} {vr(S[0],16)}, {vr(KF[0],4)}, {vr(Q[0],4)}, {vr(NM[0],16)}")
    for i in range(2, 16):
        a(f"v_sub_f32 v{NM[1]+i}, 0, v{t1}")
    a(f"s_mov_b32 s31, {NIT}")
    stamp(a, SB + 3)
    lp, hook, back = a.label("attn"), a.label("hook"), a.label("back")
    a(f"{lp}:")
    for u in range(U):
        for q in range(2):
            c = S[q]
            E = lambda i: a(f"v_exp_f32 v{c+i}, v{c+i}")
            C = lambda j: a(f"v_cvt_pk_bf16_f32 v{P+j}, v{c+2*j}, v{c+2*j+1}")
            E(0); E(1)
            pv = VF[(u + 1) & 1] if q == 0 else VF[u & 1]
            a(f"{MFMA} {vr(O[q^1],16)}, {vr(pv+4,4)}, {vr(P+4,4)}, {vr(O[q^1],16)}")
            E(2)
            if q == 0:
                a(f"ds_read_b128 {vr(KF[(u+1)&1],4)}, v{vK} offset:{(u+1)*1024}")
            E(3); C(0); E(4)
            if q == 0:
                a(f"ds_read_b128 {vr(VF[(u+1)&1],4)}, v{vV} offset:{(u+1)*1024}")
            E(5); C(1); E(6)
            if q == 0:
                a(f"{MFMA} {vr(S[1],16)}, {vr(KF[u&1],4)}, {vr(Q[1],4)}, {vr(NM[1],16)}")
            else:
                a("s_waitcnt lgkmcnt(0)")
                a(f"{MFMA} {vr(S[0],16)}, {vr(KF[(u+1)&1],4)}, {vr(Q[0],4)}, {vr(NM[0],16)}")
            E(7); C(2); E(8)
            if q == 0:
                a(f"ds_read_b128 {vr(VF[(u+1)&1]+4,4)}, v{vV} offset:{(u+1)*1024+512}")
            C(3); E(9); E(10); C(4); E(11)
            a(f"{MFMA} {vr(O[q],16)}, {vr(VF[u&1],4)}, {vr(P,4)}, {vr(O[q],16)}")
            E(12); C(5); E(13); E(14); E(15); C(6)
            if u == U - 1 and q == 1:
                a(f"v_add_u32 v{vK}, {U*1024}, v{vK}")
                a(f"v_add_u32 v{vV}, v{vInc}, v{vV}")
            C(7)
    a("s_sub_u32 s31, s31, 1")
    a("s_cmp_eq_u32 s31, s32")
    a(f"s_cbranch_scc1 {hook}")
    a("s_cmp_eq_u32 s31, s34")
    a(f"s_cbranch_scc1 {hook}")
    a(f"{back}:")
    a("s_cmp_lg_u32 s31, 0")
    a(f"s_cbranch_scc1 {lp}")
    a(f"{MFMA} {vr(O[1],16)}, {vr(VF[1]+4,4)}, {vr(P+4,4)}, {vr(O[1],16)}")
    stamp(a, SB + 4)
    a("s_mul_i32 s30, s26, 2304")
    a(f"s_add_u32 s30, s30, {XB}")
    a("s_lshl_b32 s31, s26, 12")
    a(f"s_add_u32 s31, s31, {XB + 12288}")
    a("s_cmp_eq_u32 s27, 0")
    a("s_cselect_b32 s28, s30, s31")
    a("s_cselect_b32 s29, s31, s30")
    a(f"v_add_u32 v{t0}, s28, v{V_L16}")
    a(f"v_add_u32 v{t1}, s29, v{V_L16}")
    a(f"v_add_u32 v{vK}, s28, v{V_L4}")
    a(f"v_add_u32 v{vV}, s29, v{V_L4}")
    a("s_add_u32 s20, s20, s27")
    a("s_nop 3")
    k1, kj = a.label("keep1"), a.label("keepj")
    a("s_cmp_eq_u32 s27, 0")
    a(f"s_cbranch_scc0 {k1}")
    a(f"ds_write_b128 v{t0}, {vr(O[1],4)}")
    a(f"ds_write_b128 v{t0}, {vr(O[1]+4,4)} offset:1024")
    a(f"ds_write_b32 v{vK}, v{O[1]+8} offset:2048")
    a(f"s_branch {kj}")
    a(f"{k1}:")
    a(f"ds_write_b128 v{t0}, {vr(O[0],4)}")
    a(f"ds_write_b128 v{t0}, {vr(O[0]+4,4)} offset:1024")
    a(f"ds_write_b32 v{vK}, v{O[0]+8} offset:2048")
    a("s_waitcnt lgkmcnt(0)")
    for i in range(9):
        a(f"v_mov_b32 v{O[0]+i}, v{O[1]+i}")
    for i in range(4):
        a(f"v_mov_b32 v{Q[0]+i}, v{Q[1]+i}")
    a(f"{kj}:")
    a("s_lshl_b32 s22, s20, 15")
    a("s_lshl_b32 s23, s19, 10")
    a("s_add_u32 s22, s22, s23")
    a(f"s_add_u32 s22, s22, s{S_BASE}")
    a(f"s_add_u32 s22, s22, {B_O:#x}")
    a("s_waitcnt vmcnt(0) lgkmcnt(0)")
    a("s_barrier")
    a(f"ds_read_b128 {vr(S[0],4)}, v{t1}")
    a(f"ds_read_b128 {vr(S[0]+4,4)}, v{t1} offset:1024")
    a(f"ds_read_b32 v{S[0]+8}, v{vV} offset:2048")
    a("s_waitcnt lgkmcnt(0)")
    OO = O[0]
    for i in range(9):
        a(f"v_add_f32 v{OO+i}, v{OO+i}, v{S[0]+i}")
    fin, fb, endl = a.label("fin"), a.label("fallback"), a.label("att_end")
    a(f"v_add_f32 v{t1}, v{OO}, v{OO+1}")
    for i in range(2, 8):
        a(f"v_add_f32 v{t1}, v{t1}, v{OO+i}")
    a(f"v_fma_f32 v{t1}, 0, v{t1}, v{OO+8}")
    a(f"v_cmp_ngt_f32 vcc, {f32bits(2.0**64):#x}, v{t1}")
    a(f"v_rcp_f32 v{t0}, v{OO+8}")
    a("s_cmp_lg_u64 vcc, 0")
    a(f"s_cbranch_scc1 {fb}")
    a(f"{fin}:")
    for i in range(8):
        a(f"v_mul_f32 v{OO+i}, v{t0}, v{OO+i}")
    for i in range(4):
        a(f"v_cvt_pk_bf16_f32 v{P+i}, v{OO+2*i}, v{OO+2*i+1}")
    a(f"buffer_store_dwordx4 {vr(P,4)}, v{V_L16}, s[4:7], s22 offen{SC}")
    a("s_barrier")
    stamp(a, SB + 5)
    a(f"s_branch {endl}")
    a(f"{hook}:")
    hp = a.label("hookp")
    a("s_cmp_eq_u32 s27, 0")
    a(f"s_cbranch_scc0 {hp}")
    a("s_barrier")
    a("s_mov_b32 s32, s33")
    a("s_mov_b32 s33, -1")
    a(f"s_add_u32 s23, s32, s{S_IT}")
    a("s_cmp_lg_u32 s23, -1")
    a(f"s_cbranch_scc1 {back}")
    a.c("residual tile of x for the first output projection")
    a(f"v_and_b32 v{V_TF}, 31, v0")
    a(f"v_lshlrev_b32 v{V_TF}, 10, v{V_TF}")
    a(f"v_lshrrev_b32 v{V_TF+1}, 5, v0")
    a(f"v_lshl_add_u32 v{V_TF}, v{V_TF+1}, 4, v{V_TF}")
    a(f"s_and_b32 s23, s{S_WAVE}, 1")
    a(f"s_add_u32 s23, s23, s{S_TT64}")
    a("s_lshl_b32 s23, s23, 15")
    a(f"s_lshl_b32 s24, s{S_NT64}, 1")
    a(f"s_lshr_b32 s25, s{S_WAVE}, 1")
    a("s_add_u32 s24, s24, s25")
    a("s_lshl_b32 s24, s24, 6")
    a("s_add_u32 s23, s23, s24")
    a(f"buffer_load_dwordx4 {vr(V_RES,4)}, v{V_TF}, s[8:11], s23 offen")
    a(f"buffer_load_dwordx4 {vr(V_RES+4,4)}, v{V_TF}, s[8:11], s23 offen offset:32")
    a(f"s_branch {back}")
    a(f"{hp}:")
    gaps = [3, 2, 2, 1, 1, 1]
    STG_IT = env("ATT_STG", 12)
    assert 1 + sum(gaps) < STG_IT < PRIO_IT
    hs = [a.label(f"hs{i}") for i in range(9)]
    for i in (0, 1, 2, 3, 6, 7, 8):
        a(f"s_cmp_eq_u32 s33, {i}")
        a(f"s_cbranch_scc1 {hs[i]}")
    HS = env("HSTAMP", 0)
    def next_step(i):
        if i - HS in (0, 1):
            stamp(a, 1 + 2 * (i - HS))
        a("s_add_u32 s33, s33, 1")
        a(f"s_sub_u32 s34, s34, {gaps[i]}")
        a(f"s_branch {back}")
    a(f"s_cmp_lg_u32 s{S_WAVE}, 4")
    a(f"s_cbranch_scc1 {hs[6]}")
    for i in range(PFN):
        a(f"buffer_load_dword v{V_PF}, v{V_L128}, s[4:7], s50 offen{SC}")
        a("s_add_u32 s50, s50, 8192")
    a(f"buffer_load_dword v{V_PF}, v{V_L128}, s[4:7], s51 offen{SC}")
    a("s_xor_b32 s51, s51, 8192")
    next_step(4)
    a(f"{hs[6]}:")
    a("s_mov_b32 s33, 7")
    a(f"s_mov_b32 s34, {NIT - STG_IT}")
    a(f"s_branch {back}")
    a(f"{hs[7]}:")
    if NPRE:
        lp7, ok7 = a.label("fpoll"), a.label("fok")
        a(f"s_cmp_lg_u32 s{S_IT}, 0")
        a(f"s_cbranch_scc1 {ok7}")
        a(f"v_mov_b32 v{V_TF}, {XB + 9216 + 8}")
        a(f"s_mov_b32 s39, {SPIN_MAX}")
        a(f"{lp7}:")
        a(f"ds_read_b32 v{V_TF+1}, v{V_TF}")
        a("s_sub_u32 s39, s39, 1")
        a("s_waitcnt lgkmcnt(0)")
        a(f"v_cmp_eq_u32 vcc, 0, v{V_TF+1}")
        a("s_cmp_eq_u32 s39, 0")
        a(f"s_cbranch_scc1 {ok7}")
        a(f"s_cbranch_vccnz {lp7}")
        a(f"{ok7}:")
        a.c("fetch the last rounds of the down weights into free registers")
        a(f"s_mul_i32 s23, s{S_NT64}, {224*1024}")
        a("s_lshl_b32 s62, s26, 12")
        a("s_add_u32 s23, s23, s62")
        a(f"s_add_u32 s23, s23, {WS_WD + (14 - NPRE)*RB:#x}")
        assert VS + (14 - NPRE) * 16 >= V_TF
        for k in range(NPRE):
            for i in range(4):
                a(f"buffer_load_dwordx4 {vr(VS + (14-NPRE+k)*16 + 4*i, 4)}, v{V_L16}, s[4:7], s23 offen offset:{i*1024}{SC}")
            a(f"s_add_u32 s23, s23, {RB}")
    a("s_mov_b32 s33, 8")
    a(f"s_mov_b32 s34, {NIT - PRIO_IT}")
    a(f"s_branch {back}")
    a(f"{hs[8]}:")
    a("s_setprio 0")
    a(f"s_branch {back}")
    F, G_, vS, vR, vC = V_TF, V_TF + 32, V_TF + 48, V_TF + 49, V_TF + 52
    CSA = XB + 10240
    CNT = XB + 9216
    a(f"{hs[0]}:")
    if 0 - HS in (0, 1):
        stamp(a, 2 * (0 - HS))
    a.c("re-tiling task: 128 rows x two 64-column strips; this wave takes 32 rows")
    l_gu, l_o, l_d, l_go = [a.label(x) for x in ("gu", "o", "d", "go")]
    a("s_cmp_ge_u32 s2, 176")
    a(f"s_cbranch_scc1 {l_d}")
    a("s_cmp_ge_u32 s2, 160")
    a(f"s_cbranch_scc1 {l_o}")
    a("s_cmp_ge_u32 s2, 48")
    a(f"s_cbranch_scc1 {l_gu}")
    srd(a, 80, 66, 67, 512 * 1536 * 2)
    srd(a, 84, 66, 67, 512 * 1536 * 2)
    a("s_and_b32 s79, s2, 3")
    a("s_lshr_b32 s54, s2, 2")
    a("s_mov_b32 s88, 3072")
    a("s_lshl_b32 s89, s54, 8")
    a("s_add_u32 s90, s89, 128")
    a("s_mov_b32 s91, 0")
    a("s_and_b32 s62, s54, 3")
    a(f"s_mul_i32 s96, s62, {4*99*1024}")
    a("s_lshr_b32 s62, s54, 2")
    a("s_lshl_b32 s62, s62, 10")
    a("s_add_u32 s96, s96, s62")
    assert WS_WQKV == 0
    a(f"s_add_u32 s97, s96, {99*1024}")
    a(f"s_add_u32 s100, s96, {2*99*1024}")
    a(f"s_add_u32 s101, s96, {3*99*1024}")
    for d in (72, 73, 74, 75):
        a(f"s_mov_b32 s{d}, 3072")
    a("s_mov_b32 s63, 1")
    a("s_mov_b32 s93, 0")
    a(f"s_branch {l_go}")
    a(f"{l_gu}:")
    srd(a, 80, 72, 73, 512 * 1792 * 2)
    srd(a, 84, 74, 75, 512 * 1792 * 2)
    a("s_sub_u32 s55, s2, 48")
    a("s_and_b32 s79, s55, 3")
    a("s_lshr_b32 s54, s55, 2")
    a("s_mov_b32 s88, 3584")
    a("s_lshl_b32 s89, s54, 7")
    a("s_mov_b32 s90, s89")
    a("s_mov_b32 s91, 1")
    a("s_lshl_b32 s55, s54, 2")
    for d, e in zip((96, 97, 100, 101), (72, 73, 74, 75)):
        a("s_mul_i32 s62, s55, 9363")
        a("s_lshr_b32 s62, s62, 16")
        a(f"s_mul_i32 s{d}, s62, {231*1024}")
        a("s_mul_i32 s62, s62, 7")
        a("s_sub_u32 s62, s55, s62")
        pass_of(a, 62, 78, e)
        a(f"s_lshl_b32 s{e}, s{e}, 10")
        a("s_lshl_b32 s78, s78, 5")
        a("s_add_u32 s62, s62, s78")
        a("s_lshl_b32 s62, s62, 10")
        a(f"s_add_u32 s{d}, s{d}, s62")
        a(f"s_add_u32 s{d}, s{d}, {WS_WGU:#x}")
        a("s_add_u32 s55, s55, 1")
    a("s_mov_b32 s63, 1")
    a("s_mov_b32 s93, 0")
    a(f"s_branch {l_go}")
    for lab, first, lo, nbytes, wnt, wbase in ((l_o, 160, 68, 512 * 512 * 2, 64 * 1024, WS_WO),
                                               (l_d, 176, 76, 1792 * 512 * 2, 224 * 1024, WS_WD)):
        a(f"{lab}:")
        srd(a, 80, lo, lo + 1, nbytes)
        srd(a, 84, lo, lo + 1, nbytes)
        a(f"s_sub_u32 s55, s2, {first}")
        a("s_lshr_b32 s79, s55, 2")
        a("s_and_b32 s54, s55, 3")
        a("s_mov_b32 s88, 1024")
        a("s_lshl_b32 s89, s54, 8")
        a("s_add_u32 s90, s89, 128")
        a("s_mov_b32 s91, 0")
        a(f"s_mul_i32 s96, s54, {2*wnt}")
        a(f"s_add_u32 s96, s96, {wbase:#x}")
        a("s_add_u32 s97, s96, 1024")
        a(f"s_add_u32 s100, s96, {wnt}")
        a(f"s_add_u32 s101, s96, {wnt+1024}")
        for d in (72, 73, 74, 75):
            a(f"s_mov_b32 s{d}, 2048")
        a(f"s_mov_b32 s93, {0 if lab == l_o else 1}")
        a("s_mov_b32 s63, 0")
        if lab == l_o:
            a(f"s_branch {l_go}")
    a(f"{l_go}:")
    a("s_lshl_b32 s62, s79, 2")
    a("s_add_u32 s62, s62, s26")
    a("s_lshl_b32 s92, s62, 1")
    for d, inc in ((76, 0), (77, 1)):
        a(f"s_add_u32 s{d}, s92, {inc}")
        a(f"s_mul_i32 s54, s{d}, 9363")
        a("s_lshr_b32 s54, s54, 16")
        a("s_mul_i32 s55, s54, 7")
        a(f"s_sub_u32 s55, s{d}, s55")
        pass_of(a, 55, 78, 49)
        a("s_mul_i32 s54, s54, s49")
        a("s_mul_i32 s78, s78, 15")
        a("s_add_u32 s54, s54, s78")
        a("s_add_u32 s54, s54, s55")
        a("s_cmp_eq_u32 s93, 0")
        a(f"s_cselect_b32 s{d}, s{d}, s54")
    a("s_lshl_b32 s62, s62, 5")
    a("s_mul_i32 s62, s62, s88")
    a("s_add_u32 s89, s89, s62")
    a("s_add_u32 s90, s90, s62")
    a("s_lshl_b32 s55, s88, 3")
    a(f"v_lshrrev_b32 v{vS}, 3, v0")
    a(f"v_mul_lo_u32 v{vS}, v{vS}, s88")
    a(f"v_and_b32 v{vR}, 7, v0")
    a(f"v_lshl_add_u32 v{vS}, v{vR}, 4, v{vS}")
    for g8 in range(4):
        for h in range(2):
            a(f"buffer_load_dwordx4 {vr(F+8*g8+4*h,4)}, v{vS}, s[{80+4*h}:{83+4*h}], s{89+h} offen")
            a(f"s_add_u32 s{89+h}, s{89+h}, s55")
    next_step(0)
    a(f"{hs[1]}:")
    if 1 - HS in (0, 1):
        stamp(a, 2 * (1 - HS))
    nost = a.label("nostore")
    a("s_cmp_ge_u32 s2, 232")
    a(f"s_cbranch_scc1 {nost}")
    a("s_lshl_b32 s62, s26, 12")
    a(f"s_add_u32 s62, s62, {XB + 12288}")
    a(f"v_add_u32 v{vS}, s62, v{V_L16}")
    a(f"v_and_b32 v{vC}, 1, v0")
    a(f"v_bfe_u32 v{vC+1}, v0, 1, 1")
    a(f"v_lshl_add_u32 v{vC}, v{vC}, 1, v{vC+1}")
    a(f"v_lshrrev_b32 v{vR}, 5, v0")
    a(f"v_bfe_u32 v{vC+1}, v0, 2, 2")
    a(f"v_lshl_add_u32 v{vR}, v{vR}, 3, v{vC+1}")
    a(f"v_lshlrev_b32 v{vR}, 7, v{vR}")
    a(f"v_lshl_add_u32 v{vR}, v{vC}, 3, v{vR}")
    a("s_cmp_eq_u32 s91, 0")
    a("s_cselect_b32 s54, 5, 11")
    a("s_cselect_b32 s55, 64, 32")
    a("s_cselect_b32 s78, 2048, 64")
    a(f"v_bfe_u32 v{vC+1}, v0, 4, 1")
    a(f"v_lshlrev_b32 v{vC+1}, s54, v{vC+1}")
    a(f"v_add3_u32 v{vR}, v{vR}, v{vC+1}, s62")
    a(f"v_add_u32 v{vR+1}, s55, v{vR}")
    a(f"v_add_u32 v{vR+2}, s78, v{vR}")
    a(f"v_add_u32 v{vC+4}, s78, v{vR+1}")
    tr_addr = [vR, vR + 1, vR + 2, vC + 4]
    dests = (96, 97, 100, 101)
    a("s_mov_b32 s49, 0x3f803f80")
    a("s_waitcnt vmcnt(0)")
    for half in range(2):
        dst = G_ if half == 0 else F
        for g8 in range(2):
            for h in range(2):
                a(f"ds_write_b128 v{vS}, {vr(F+16*half+8*g8+4*h,4)} offset:{h*2048 + g8*1024}")
        for t in range(4):
            for jj in range(2):
                a(f"ds_read_b64_tr_b16 {vr(dst+4*t+2*jj,2)}, v{tr_addr[t]} offset:{jj*512}")
        a("s_waitcnt lgkmcnt(0)")
        for t in range(4):
            a(f"s_mul_i32 s62, s{76+half}, s{72+t}")
            a(f"s_add_u32 s62, s62, s{dests[t]}")
            if not env("X_NOST", 0):
                a(f"buffer_store_dwordx4 {vr(dst+4*t,4)}, v{V_L16}, s[4:7], s62 offen{'' if env('X_PLAIN', 0) else SC}")
    a("s_cmp_eq_u32 s63, 0")
    a(f"s_cbranch_scc1 {nost}")
    if env("X_NOCS", 0):
        a(f"s_branch {nost}")
    for t in range(4):
        a(f"v_mov_b32 v{vC+t}, 0")
    for k in range(4):
        for t in range(4):
            a(f"v_dot2c_f32_bf16 v{vC+t}, s49, v{G_+4*t+k}")
        for t in range(4):
            a(f"v_dot2c_f32_bf16 v{vC+t}, s49, v{F+4*t+k}")
    a("s_lshl_b32 s62, s26, 9")
    a(f"v_add_u32 v{vS}, s62, v{V_L4}")
    a(f"v_mov_b32 v{vR}, 1")
    a(f"v_mov_b32 v{vR+1}, {CNT}")
    a(f"v_permlane32_swap_b32 v{vC}, v{vC+1}")
    a(f"v_permlane32_swap_b32 v{vC+2}, v{vC+3}")
    a("s_nop 0")
    a(f"v_add_f32 v{vC}, v{vC}, v{vC+1}")
    a(f"v_add_f32 v{vC+2}, v{vC+2}, v{vC+3}")
    a(f"ds_write_b32 v{vS}, v{vC} offset:{CSA}")
    a(f"ds_write_b32 v{vS}, v{vC+2} offset:{CSA + 256}")
    a("s_mov_b64 exec, 1")
    a(f"ds_add_rtn_u32 v{vR+2}, v{vR+1}, v{vR}")
    a("s_mov_b64 exec, -1")
    a("s_waitcnt lgkmcnt(0)")
    a(f"v_readfirstlane_b32 s62, v{vR+2}")
    a("s_nop 0")
    a("s_cmp_lg_u32 s62, 3")
    a(f"s_cbranch_scc1 {nost}")
    a.c("last of the four waves: write the column-sum pieces")
    for w in range(4):
        for p in range(2):
            a(f"ds_read_b32 v{F+16+2*w+p}, v{V_L4} offset:{CSA + w*512 + p*256}")
    for t in range(4):
        a(f"s_lshl_b32 s62, s{72+t}, 5")
        a(f"s_add_u32 s{dests[t]}, s{dests[t]}, s62")
    a("s_lshr_b32 s92, s79, 1")
    a("s_lshl_b32 s92, s92, 9")
    a("s_and_b32 s62, s79, 1")
    a("s_lshl_b32 s62, s62, 3")
    a("s_add_u32 s92, s92, s62")
    a("v_cmp_gt_u32 vcc, 32, v0")
    a(f"v_and_b32 v{vS}, 0x1ff, v{V_L16}")
    for p in range(2):
        a(f"v_mov_b32 v{vC}, s{dests[2*p]}")
        a(f"v_mov_b32 v{vC+1}, s{dests[2*p+1]}")
        a(f"v_cndmask_b32 v{vC}, v{vC+1}, v{vC}, vcc")
        a(f"v_add_u32 v{vR+p}, v{vC}, v{vS}")
    a("s_waitcnt lgkmcnt(0)")
    for p in range(2):
        c, o = F + 16 + p, F + 24 + 2 * p
        for w in range(1, 4):
            a(f"v_add_f32 v{c}, v{c}, v{c+2*w}")
        a(f"v_cvt_pk_bf16_f32 v{o}, v{c}, v{c}")
        a(f"v_lshlrev_b32 v{o}, 16, v{o}")
        a(f"v_sub_f32 v{o}, v{c}, v{o}")
        a(f"v_cvt_pk_bf16_f32 v{o}, v{c}, v{o}")
        a(f"v_mov_b32 v{o+1}, v{o}")
        a(f"buffer_store_dwordx2 {vr(o,2)}, v{vR+p}, s[4:7], s92 offen{SC}")
    a(f"{nost}:")
    next_step(1)
    a(f"{hs[2]}:")
    if 2 - HS in (0, 1):
        stamp(a, 2 * (2 - HS))
    nsig = a.label("nosig")
    a(f"v_mov_b32 v{vR}, 1")
    a(f"v_mov_b32 v{vR+1}, {CNT + 4}")
    a("s_waitcnt vmcnt(0)")
    a("s_mov_b64 exec, 1")
    a(f"ds_add_rtn_u32 v{vR+2}, v{vR+1}, v{vR}")
    a("s_mov_b64 exec, -1")
    a("s_and_b32 s23, s2, 15")
    a("s_lshl_b32 s23, s23, 8")
    a(f"s_add_u32 s23, s23, {FL_W:#x}")
    a("s_mov_b32 s38, 1")
    a("s_waitcnt lgkmcnt(0)")
    a(f"v_readfirstlane_b32 s62, v{vR+2}")
    a("s_nop 0")
    a("s_cmp_lg_u32 s62, 3")
    a(f"s_cbranch_scc1 {nsig}")
    a("s_atomic_add s38, s[14:15], s23")
    a(f"{nsig}:")
    if env("WARM", 1):
        a.c("pull the rest of the code into L2 and touch every workspace page once")
        here = a.label("here")
        a("s_getpc_b64 s[98:99]")
        a(f"{here}:")
        a("s_lshl_b32 s62, s26, 13")
        a(f"v_add_u32 v{vC}, s62, v{V_L128}")
        a(f"v_min_u32 v{vC}, {code_end} - {here}, v{vC}")
        a(f"v_lshlrev_b32 v{vC+1}, 20, v0")
        a(f"global_load_dword v{V_PF}, v{vC}, s[98:99]")
        a(f"buffer_load_dword v{V_PF}, v{vC+1}, s[4:7], 0 offen sc1")
    next_step(2)
    a(f"{hs[3]}:")
    if 3 - HS in (0, 1):
        stamp(a, 2 * (3 - HS))
    a.c("the re-tiled weights are complete once all 16 arrival counters are")
    lp0, ok0 = a.label("wpoll"), a.label("wok")
    a(f"s_cmp_lg_u32 s{S_WAVE}, 4")
    a(f"s_cbranch_scc1 {hs[6]}")
    a(f"v_and_b32 v{vS}, 15, v0")
    a(f"v_lshlrev_b32 v{vS}, 8, v{vS}")
    a(f"s_mov_b32 s23, {WS_FLAG + FL_W:#x}")
    a(f"s_mov_b32 s39, {SPIN_MAX}")
    a(f"{lp0}:")
    a(f"buffer_load_dword v{vR}, v{vS}, s[4:7], s23 offen sc1")
    a("s_sub_u32 s39, s39, 1")
    a("s_waitcnt vmcnt(0)")
    a(f"v_cmp_gt_u32 vcc, 16, v{vR}")
    a("s_cmp_eq_u32 s39, 0")
    a(f"s_cbranch_scc1 {ok0}")
    a(f"s_cbranch_vccz {ok0}")
    a("s_sleep 8")
    a(f"s_branch {lp0}")
    a(f"{ok0}:")
    a(f"v_mov_b32 v{vS}, {CNT + 8}")
    a(f"ds_write_b32 v{vS}, v{vS}")
    next_step(3)
    a(f"{fb}:")
    a(f"v_add_u32 v{vK}, {KB}, v{V_L16}")
    a(f"v_mov_b32 v{t0}, 0xff800000")
    a("s_mov_b32 s31, 64")
    lp2 = a.label("maxl")
    a(f"{lp2}:")
    a(f"ds_read_b128 {vr(KF[0],4)}, v{vK}")
    a(f"v_add_u32 v{vK}, 1024, v{vK}")
    a("s_waitcnt lgkmcnt(0)")
    a(f"{MFMA} {vr(S[0],16)}, {vr(KF[0],4)}, {vr(Q[0],4)}, 0")
    a("s_nop 15")
    for i in range(0, 16, 2):
        a(f"v_max3_f32 v{t0}, v{t0}, v{S[0]+i}, v{S[0]+i+1}")
    a("s_sub_u32 s31, s31, 1")
    a("s_cmp_lg_u32 s31, 0")
    a(f"s_cbranch_scc1 {lp2}")
    a(f"v_mov_b32 v{t1}, v{t0}")
    a("s_nop 1")
    a(f"v_permlane32_swap_b32 v{t0}, v{t1}")
    a("s_nop 1")
    a(f"v_max_f32 v{t0}, v{t0}, v{t1}")
    for i in range(16):
        a(f"v_sub_f32 v{NM[0]+i}, 0, v{t0}")
        a(f"v_mov_b32 v{OO+i}, 0")
    a(f"v_add_u32 v{vK}, {KB}, v{V_L16}")
    a(f"v_mov_b32 v{vV}, v{vV0}")
    a(f"v_lshrrev_b32 v{vInc}, {U.bit_length()-1}, v{vInc}")
    a("s_mov_b32 s31, 64")
    lp3 = a.label("pass2")
    a(f"{lp3}:")
    a(f"ds_read_b128 {vr(KF[0],4)}, v{vK}")
    a(f"ds_read_b128 {vr(VF[0],4)}, v{vV}")
    a(f"ds_read_b128 {vr(VF[0]+4,4)}, v{vV} offset:512")
    a(f"v_add_u32 v{vK}, 1024, v{vK}")
    a(f"v_add_u32 v{vV}, v{vInc}, v{vV}")
    a("s_waitcnt lgkmcnt(0)")
    a(f"{MFMA} {vr(S[0],16)}, {vr(KF[0],4)}, {vr(Q[0],4)}, {vr(NM[0],16)}")
    a("s_nop 15")
    for i in range(16):
        a(f"v_exp_f32 v{S[0]+i}, v{S[0]+i}")
    a("s_nop 0")
    for j in range(8):
        a(f"v_cvt_pk_bf16_f32 v{P+j}, v{S[0]+2*j}, v{S[0]+2*j+1}")
    a("s_nop 1")
    a(f"{MFMA} {vr(OO,16)}, {vr(VF[0],4)}, {vr(P,4)}, {vr(OO,16)}")
    a(f"{MFMA} {vr(OO,16)}, {vr(VF[0]+4,4)}, {vr(P+4,4)}, {vr(OO,16)}")
    a("s_sub_u32 s31, s31, 1")
    a("s_cmp_lg_u32 s31, 0")
    a("s_nop 7")
    a(f"s_cbranch_scc1 {lp3}")
    a("s_nop 15")
    a(f"v_rcp_f32 v{t0}, v{OO+8}")
    a("s_nop 0")
    a(f"s_branch {fin}")
    a(f"{endl}:")
    return R.n


def gen_main(a):
    name = NAME + "_kernel"
    kernel_header(a, name)
    done = a.label("done")
    a("s_cmp_ge_u32 s2, 256")
    a(f"s_cbranch_scc1 {done}")
    a(f"s_load_dwordx4 s[64:67], s[0:1], {KA_X}")
    a(f"s_load_dwordx2 s[68:69], s[0:1], {KA_WO}")
    a(f"s_load_dwordx4 s[72:75], s[0:1], {KA_WG}")
    a(f"s_load_dwordx2 s[76:77], s[0:1], {KA_WD}")
    a(f"s_load_dwordx2 s[70:71], s[0:1], {KA_OUT}")
    a(f"s_load_dwordx2 s[94:95], s[0:1], {KA_DBG}")
    a(f"s_load_dwordx2 s[12:13], s[0:1], {KA_WS}")
    if env("CTOUCH", 1):
        a.c("pull the first 8 KB of code into L2 (one 128-byte line per 8 lanes of the workgroup)")
        a("s_getpc_b64 s[98:99]")
        a(f"v_lshlrev_b32 v{V_FREE}, 4, v0")
        a(f"global_load_dword v{V_PF}, v{V_FREE}, s[98:99]")
    a("v_lshrrev_b32 v1, 6, v0")
    a("v_and_b32 v0, 63, v0")
    a(f"v_readfirstlane_b32 s{S_WAVE}, v1")
    a(f"s_and_b32 s{S_XCD}, s2, 7")
    a(f"s_lshr_b32 s{S_IDX}, s2, 3")
    a(f"s_and_b32 s{S_TT128}, s{S_IDX}, 3")
    a(f"s_lshr_b32 s19, s{S_XCD}, 1")
    a("s_lshl_b32 s19, s19, 2")
    a(f"s_add_u32 s{S_TT128}, s{S_TT128}, s19")
    a(f"s_lshl_b32 s{S_TT128}, s{S_TT128}, 2")
    a(f"s_lshr_b32 s{S_NT128}, s{S_IDX}, 2")
    a(f"s_and_b32 s19, s{S_XCD}, 1")
    a("s_lshl_b32 s19, s19, 3")
    a(f"s_add_u32 s{S_NT128}, s{S_NT128}, s19")
    a(f"s_and_b32 s{S_TT64}, s{S_IDX}, 3")
    a(f"s_lshl_b32 s19, s{S_XCD}, 2")
    a(f"s_add_u32 s{S_TT64}, s{S_TT64}, s19")
    a(f"s_lshl_b32 s{S_TT64}, s{S_TT64}, 1")
    a(f"s_lshr_b32 s{S_NT64}, s{S_IDX}, 2")
    a(f"s_mov_b32 s{S_IT}, 0")
    a(f"s_mov_b32 s{S_BASE}, {WS_IT0:#x}")
    a(f"s_mov_b32 s{S_FL}, 0")
    a(f"s_mov_b32 s{S_SIG}, 0")
    a(f"v_lshlrev_b32 v{V_L16}, 4, v0")
    a(f"v_and_b32 v{V_ST}, 31, v0")
    a(f"v_lshlrev_b32 v{V_ST}, 4, v{V_ST}")
    a(f"v_lshrrev_b32 v1, 5, v0")
    a(f"v_lshl_add_u32 v{V_ST}, v1, 2, v{V_ST}")
    a(f"v_lshlrev_b32 v{V_L4}, 2, v0")
    a(f"v_lshlrev_b32 v{V_L128}, 7, v0")
    if STAMP:
        a(f"v_mov_b32 v{V_STAMP}, 0")
        a(f"v_mov_b32 v{V_STAMP+1}, 0")
    stamp(a, 31)
    att, fin = a.label("att"), a.label("fin")
    nv = [first_phase(a, att, done)]
    a(f"{att}:")
    nv.append(attn_phase(a, 5, done))
    S = Stream(a)
    if GMX == 4:
        a(f"s_mov_b32 s{S_TTG}, s{S_TT128}")
        a(f"s_mov_b32 s{S_NTG}, s{S_NT128}")
    else:
        a(f"s_and_b32 s{S_TTG}, s{S_IDX}, 1")
        a(f"s_lshl_b32 s19, s{S_XCD}, 1")
        a(f"s_add_u32 s{S_TTG}, s{S_TTG}, s19")
        a(f"s_lshl_b32 s{S_TTG}, s{S_TTG}, 2")
        a(f"s_lshr_b32 s{S_NTG}, s{S_IDX}, 1")
    nv.append(gemm_phase(a, Cfg(name="oproj", kind="res", LB=5 * RB, XB=0, stream=S, PRE1=4, PRE2=0, PRE3=1, NW=2, NT=2, KST=32, NR=4, RA=16, N1=2, N2=2, N3=9, N4=9, BS=4, I0=8, PS=2, STS=0,
                                swap=[0, 0], ABUF=B_O, WBASE=WS_WO, WNT=64 * 1024, OUT=B_X1, STOUT=B_ST1,
                                FIN=FL_A, FIN_SH=3, NEED=32, FOUT=FL_O, final=False, sb=12,
                                staged=[], stage_next=None, order=None)))
    nv.append(mlp_phase(a, Cfg(name="down", stream=S, OUT=B_XIN + IT_STRIDE, STOUT=B_STIN + IT_STRIDE, final=True, sb=22)))
    a(f"s_cmp_eq_u32 s{S_IT}, 1")
    a(f"s_cbranch_scc1 {fin}")
    a(f"s_mov_b32 s{S_IT}, 1")
    a(f"s_add_u32 s{S_BASE}, s{S_BASE}, {IT_STRIDE:#x}")
    a(f"s_add_u32 s{S_FL}, s{S_FL}, {FL_IT:#x}")
    nv.append(gemm_phase(a, Cfg(name="qkv", kind="qkv", LB=0, XB=1, stream=None, NW=3, NT=3, KST=32, NR=7, RA=24, N1=2, N2=5, N3=9, N4=9, BS=8, I0=12, PS=1, STS=12,
                                swap=[0, 0, 1], ABUF=B_XIN, WBASE=WS_WQKV, WNT=99 * 1024, STIN=B_STIN,
                                FIN=FL_D - FL_IT + (1 << 32), FIN_SH=2, NEED=16, FOUT=FL_Q, sb=0,
                                staged=[], stage_next=None, order=None)))
    a(f"s_branch {att}")
    a(f"{fin}:")
    if STAMP:
        a("s_waitcnt vmcnt(0)")
        a(f"s_mov_b32 s{S_IT}, 1")
        stamp(a, 31)
        stamp_flush(a)
        if env("DBGOUT", 0):
            nd = a.label("nodbg")
            a("s_lshl_b32 s54, s2, 3")
            a(f"s_add_u32 s54, s54, s{S_WAVE}")
            a(f"s_cmp_lg_u32 s54, {env('DBGOUT', 0)}")
            a(f"s_cbranch_scc1 {nd}")
            idx = [31, 27, 28, 29, 30, 8, 9, 13, 18, 23, 33, 40, 41, 50, 55, 63]
            a(f"v_readlane_b32 s55, v{V_STAMP}, 31")
            for i, k in enumerate(idx):
                a(f"v_readlane_b32 s54, v{V_STAMP}, {k}")
                a("s_nop 3")
                a("s_sub_u32 s54, s54, s55")
                a(f"v_writelane_b32 v{V_FREE}, s54, {i}")
            a("s_mov_b64 exec, 0xfffe")
            a(f"global_store_dword v{V_L4}, v{V_FREE}, s[94:95]")
            a(f"{nd}:")
    a(f"{done}:")
    a("s_endpgm")
    print("phase vgprs", nv, file=sys.stderr)
    nv.append(V_TF + 58)
    assert max(nv) <= 256
    return (name, max(nv), 256, 512, LDS_MAX)


HEADER = open("cdna_kernels/" + NAME + ".s.ref").read().split("; Override launch")[0]

def main(out):
    a = Asm()
    k, v, nwg, blk, lds = gen_main(a)
    txt = HEADER
    if env("ASLIST", 0):
        txt += f"; @launch kernel={k} grid=({nwg},1,1) block=({blk},1,1) lds={lds}\n"
    else:
        txt += f"; @launch grid=({nwg},1,1) block=({blk},1,1) lds={lds}\n"
    txt += '.amdgcn_target "amdgcn-amd-amdhsa--gfx950"\n.text\n'
    txt += a.text()
    txt += '.section .rodata,"a"\n'
    txt += kernel_desc(k, v, 102)
    print(f"{k}: vgpr={v} lds={lds}", file=sys.stderr)
    open(out, "w").write(txt)

if __name__ == "__main__":
    main(sys.argv[1] if len(sys.argv) > 1 else "v2.s")
```

```python
import sys, struct, math, os
from asmlib import *

NAME = "interleave_layers__mha_block__glu_gated_bilinear__prompt"
def env(k, d):
    return int(os.environ.get(k, d))

WS_WQKV = 0x000000
WS_WO   = 0x200000
WS_WGU  = 0x300000
WS_WD   = 0x700000
WS_FLAG = 0x8C0000
FL_IT = 0xC000
FL_Q, FL_W, FL_G, FL_T = 0x0, 0x1000, 0x4000, 0x8000
FL_A, FL_O, FL_D = FL_T, FL_T + 4, FL_T + 8
WS_IT0 = 0xA00000
IT_STRIDE = 0x1400000
B_Q, B_K, B_V, B_O, B_X1, B_XIN, B_H, B_ST1, B_STIN = (
    0x0, 0x200000, 0x400000, 0x600000, 0x800000, 0xA00000, 0xC00000, 0x1300000, 0x1340000)
WS_END = WS_IT0 + 2 * IT_STRIDE
WS_STAMP = WS_END
LDS_MAX = 160 * 1024

KA_X, KA_WQKV, KA_WO, KA_BX, KA_WG, KA_WU, KA_WD, KA_OUT, KA_DBG, KA_WS = [8 * i for i in range(10)]

def f32bits(x):
    return struct.unpack("<I", struct.pack("<f", x))[0]

QSCALE = 0.25 * math.log2(math.e)
MFMA = "v_mfma_f32_32x32x16_bf16"
STAMP = os.environ.get("STAMP", "") != ""
SC = " sc1"
SPIN_MAX = 1 << 18
PASSES = [int(x) for x in os.environ.get("PASSES", "4,2,1").split(",")]
PFIRST = [sum(PASSES[:p]) for p in range(len(PASSES))]
assert sum(PASSES) == 7

def pass_of(a, si, sf, sw):
    a(f"s_mov_b32 s{sf}, 0")
    a(f"s_mov_b32 s{sw}, {PASSES[0]}")
    for p in range(1, len(PASSES)):
        a(f"s_cmp_ge_u32 s{si}, {PFIRST[p]}")
        a(f"s_cselect_b32 s{sf}, {PFIRST[p]}, s{sf}")
        a(f"s_cselect_b32 s{sw}, {PASSES[p]}, s{sw}")
GMX = env('GMX', 4)
PT = env('PT', 0)

def srd(a, d, lo, hi, nbytes):
    a(f"s_mov_b32 s{d}, s{lo}")
    a(f"s_and_b32 s{d+1}, s{hi}, 0xffff")
    a(f"s_mov_b32 s{d+2}, {nbytes:#x}")
    a(f"s_mov_b32 s{d+3}, 0x20000")

S_WAVE, S_XCD, S_IDX, S_IT, S_BASE, S_FL = 16, 17, 18, 40, 41, 42
S_TT64, S_NT64, S_TT128, S_NT128 = 43, 44, 45, 46
S_TTG, S_NTG, S_TCH = 68, 69, 47
S_ARR, S_SIG = 47, 48
LDS_CNT = LDS_MAX - 16
V_L16, V_ST, V_L4 = 2, 3, 1
V_RES = 4
V_STAMP = 12
V_PF, V_L128 = 14, 15
V_FREE = 16

def stamp(a, i):
    if STAMP:
        a("s_memrealtime s[56:57]")
        a("s_memtime s[58:59]")
        a(f"s_lshl_b32 s60, s{S_IT}, 5")
        a(f"s_add_u32 s60, s60, {i}")
        a("s_waitcnt lgkmcnt(0)")
        a("s_mov_b32 s61, m0")
        a("s_mov_b32 m0, s60")
        a("s_nop 0")
        a(f"v_writelane_b32 v{V_STAMP}, s56, m0")
        a(f"v_writelane_b32 v{V_STAMP+1}, s58, m0")
        a("s_mov_b32 m0, s61")

def stamp_flush(a, which=0):
    if STAMP:
        a("s_lshl_b32 s60, s2, 3")
        a(f"s_add_u32 s60, s60, s{S_WAVE}")
        a("s_lshl_b32 s60, s60, 9")
        a(f"s_add_u32 s60, s60, {WS_STAMP + which*0x100000:#x}")
        a(f"s_mov_b32 s6, {WS_STAMP + 0x200000:#x}")
        a(f"buffer_store_dword v{V_STAMP}, v{V_L4}, s[4:7], s60 offen")
        a(f"buffer_store_dword v{V_STAMP+1}, v{V_L4}, s[4:7], s60 offen offset:256")

def handoff(a, soff, need):
    a("s_mov_b32 s38, 1")
    a(f"s_atomic_add s38, s[14:15], s{S_SIG}")
    poll(a, soff, need)

def poll(a, soff, need):
    lp, ok = a.label("poll"), a.label("pok")
    a(f"s_mov_b32 s39, {SPIN_MAX}")
    a(f"{lp}:")
    a("s_mov_b32 s49, 0")
    a(f"s_atomic_add s49, s[14:15], s{soff} glc")
    a("s_sub_u32 s39, s39, 1")
    a("s_waitcnt lgkmcnt(0)")
    a(f"s_cmp_ge_u32 s49, {need}")
    a(f"s_cbranch_scc1 {ok}")
    if env("POLL_SLEEP", 1):
        a(f"s_sleep {env('POLL_SLEEP', 1)}")
    a("s_cmp_lg_u32 s39, 0")
    a(f"s_cbranch_scc1 {lp}")
    a(f"{ok}:")


V_TF = 176

def first_phase(a, end_label, code_end):
    XB_ = 528
    XT = 64 * XB_
    W0 = 2 * XT
    NSW, WCH, NC = 7, 12288, 16
    assert W0 + NSW * WCH <= LDS_MAX
    FS = 27
    NPS = env("K1_NPS", 2)
    R = Regs(V_FREE)
    vD, vT0, vT1, vXW = R.alloc(), R.alloc(), R.alloc(), R.alloc()
    X = R.alloc(32)
    ST = R.alloc(16)
    U = R.alloc(16)
    vD2, vZ = R.alloc(), R.alloc()
    a(f"s_lshl_b32 s19, s{S_TT64}, 15")
    a(f"s_lshl_b32 s24, s{S_WAVE}, 13")
    a("s_add_u32 s19, s19, s24")
    a("s_add_u32 s25, s19, 4096")
    a(f"s_mul_i32 s27, s{S_IDX}, 49152")
    a(f"s_mul_i32 s26, s{S_WAVE}, 6144")
    a("s_add_u32 s27, s27, s26")
    a(f"v_lshrrev_b32 v{vT0}, 3, v0")
    a(f"v_bfe_u32 v{vT1}, v0, 4, 1")
    a(f"v_lshlrev_b32 v{vT1}, 2, v{vT1}")
    a(f"v_and_b32 v{vD2}, 7, v0")
    a(f"v_xor_b32 v{vD2}, v{vD2}, v{vT1}")
    a(f"v_lshlrev_b32 v{vD2}, 4, v{vD2}")
    a(f"v_mul_u32_u24 v{vD}, 3072, v{vT0}")
    a(f"v_add_u32 v{vD}, v{vD}, v{vD2}")
    a(f"s_and_b32 s50, s{S_WAVE}, 3")
    a("s_waitcnt lgkmcnt(0)")
    srd(a, 8, 64, 65, 2048 * 512 * 2)
    srd(a, 20, 66, 67, 512 * 1536 * 2)
    srd(a, 4, 12, 13, WS_END)
    a.c("wave 7 of the first workgroups resets 64 hand-off counters each")
    NZ = 2 * FL_IT // 16384
    nz = a.label("nozero")
    a(f"s_sub_u32 s47, 7, s{S_WAVE}")
    a("s_lshl_b32 s47, s47, 8")
    a("s_add_u32 s47, s47, s2")
    a(f"s_cmp_ge_u32 s47, {NZ}")
    a(f"s_cbranch_scc1 {nz}")
    a(f"v_lshlrev_b32 v{ST}, 8, v0")
    for i in range(4):
        a(f"v_mov_b32 v{ST+4+i}, 0")
    a("s_lshl_b32 s54, s2, 14")
    a(f"s_add_u32 s54, s54, {WS_FLAG:#x}")
    a(f"buffer_store_dwordx4 {vr(ST+4,4)}, v{ST}, s[4:7], s54 offen sc1")
    a(f"{nz}:")
    for r in range(8):
        a(f"buffer_load_dwordx4 {vr(X+4*r,4)}, v{V_L16}, s[8:11], s{(19, 25)[r//4]} offen offset:{(r%4)*1024}")
    TOUCH = env("TOUCH", 1)
    if TOUCH:
        a("s_mov_b32 exec_hi, 0xffff")
        a(f"buffer_load_dword v{V_PF}, v{V_L128}, s[20:23], s27 offen")
        a("s_mov_b64 exec, -1")
    a(f"s_add_u32 s14, s12, {WS_FLAG:#x}")
    a("s_addc_u32 s15, s13, 0")
    a("s_mov_b32 s49, 0x3f803f80")
    a(f"s_lshr_b32 s55, s{S_WAVE}, 2")
    a(f"s_mul_i32 s39, s55, {XT}")
    a("s_lshl_b32 s54, s50, 7")
    a("s_add_u32 s39, s39, s54")
    a(f"v_mul_u32_u24 v{vXW}, {XB_}, v0")
    a(f"v_add_u32 v{vXW}, s39, v{vXW}")
    a(f"s_mul_i32 s62, s50, {8*3072}")
    a(f"s_lshl_b32 s54, s{S_NT64}, 7")
    a("s_add_u32 s62, s62, s54")
    a(f"s_mul_i32 s54, s55, {NPS*32*3072}")
    a("s_add_u32 s62, s62, s54")
    a("s_lshl_b32 s63, s50, 10")
    a(f"s_add_u32 s63, s63, {W0}")
    a(f"s_mul_i32 s54, s55, {NPS*WCH}")
    a("s_add_u32 s48, s63, s54")
    def w_instr(slot, seg, base=63):
        t = f"s_add_u32 s54, s{base}, {slot*WCH + seg*3072}\ns_mov_b32 m0, s54\ns_nop 0\n"
        t += f"buffer_load_dwordx4 v{vD}, s[20:23], s62 offen offset:{seg*1024} lds"
        if seg == 2:
            t += f"\ns_add_u32 s62, s62, {32*3072}"
        return t
    dma = [w_instr(c, sg, 48) for c in range(NPS) for sg in range(3)]
    ops = []
    for r in range(8):
        ops.append(f"v_mov_b32 v{ST+r}, 0")
        ops.append(f"v_mov_b32 v{ST+8+r}, 0")
    pre = len(ops)
    for r in range(8):
        ops.append(("wait", r))
        for i in range(4):
            ops.append(f"v_dot2c_f32_bf16 v{ST+r}, s49, v{X+4*r+i}")
            ops.append(f"v_dot2c_f32_bf16 v{ST+8+r}, v{X+4*r+i}, v{X+4*r+i}")
    ops.append("s_nop 2")
    for b in (ST, ST + 8):
        for r in range(4):
            ops.append(f"v_permlane32_swap_b32 v{b+r}, v{b+r+4}")
    for b in (ST, ST + 8):
        for r in range(4):
            ops.append(f"v_add_f32 v{b+r}, v{b+r}, v{b+r+4}")
    ops.append("s_nop 1")
    for b in (ST, ST + 8):
        for r in range(2):
            ops.append(f"v_permlane16_swap_b32 v{b+r}, v{b+r+2}")
    for b in (ST, ST + 8):
        for r in range(2):
            ops.append(f"v_add_f32 v{b+r}, v{b+r}, v{b+r+2}")
    for d in ("row_ror:8", "row_ror:4", "quad_perm:[2,3,0,1]", "quad_perm:[1,0,3,2]"):
        for v in (ST, ST + 1, ST + 8, ST + 9):
            ops.append(f"v_add_f32_dpp v{v}, v{v}, v{v} {d} row_mask:0xf bank_mask:0xf")
    for r in range(2):
        ops.append(f"v_mul_f32 v{ST+r}, {f32bits(-1.0/512):#x}, v{ST+r}")
        ops.append(f"v_mul_f32 v{ST+8+r}, {f32bits(1.0/512):#x}, v{ST+8+r}")
    for r in range(2):
        ops.append(f"v_fma_f32 v{ST+8+r}, -v{ST+r}, v{ST+r}, v{ST+8+r}")
    for r in range(2):
        ops.append(f"v_max_f32 v{ST+8+r}, 0, v{ST+8+r}")
    for r in range(2):
        ops.append(f"v_add_f32 v{ST+8+r}, {f32bits(1e-5):#x}, v{ST+8+r}")
    for r in range(2):
        ops.append(f"v_rsq_f32 v{ST+8+r}, v{ST+8+r}")
    ops.append("s_nop 0")
    for r in range(2):
        ops.append(f"v_mul_f32 v{ST+r}, v{ST+r}, v{ST+8+r}")
    ops.append("s_nop 0")
    for r in range(8):
        ops.append(f"v_readlane_b32 s{78+2*r}, v{ST+8+(r&1)}, {16*(r>>1)}")
        ops.append(f"v_readlane_b32 s{79+2*r}, v{ST+(r&1)}, {16*(r>>1)}")
    for r in range(8):
        u = U + 8 * (r & 1)
        for i in range(4):
            ops.append(f"v_lshlrev_b32 v{u+2*i}, 16, v{X+4*r+i}")
            ops.append(f"v_and_b32 v{u+2*i+1}, 0xffff0000, v{X+4*r+i}")
        for i in range(4):
            ops.append(f"v_pk_fma_f32 {vr(u+2*i,2)}, {vr(u+2*i,2)}, s[{78+2*r}:{79+2*r}], s[{78+2*r}:{79+2*r}] op_sel:[0,0,1] op_sel_hi:[1,0,1]")
        for i in range(4):
            ops.append(f"v_cvt_pk_bf16_f32 v{X+4*r+i}, v{u+2*i}, v{u+2*i+1}")
        ops.append(f"ds_write_b128 v{vXW}, {vr(X+4*r,4)} offset:{r*16}")
    npre = env("K1_PRE", 2)
    issued = TOUCH
    for _ in range(npre):
        a(dma.pop(0)); issued += 1
    step_ = env("K1_STEP", 24)
    k = 0
    for j, op in enumerate(ops):
        if isinstance(op, tuple):
            a(f"s_waitcnt vmcnt({7 - op[1] + issued})")
        else:
            a(op)
        if j >= pre + env("K1_SKIP", 40) and dma:
            k += 1
            if k % step_ == 0:
                a(dma.pop(0)); issued += 1
    assert not dma
    comp = a.label("k1_comp")
    a(f"s_cmp_lt_u32 s{S_WAVE}, 4")
    a(f"s_cbranch_scc1 {comp}")
    DW = env("K1_DW", 5)
    assert 2 * NPS <= DW <= NSW - 2
    for c in range(2 * NPS, DW):
        for sg in range(3):
            a(w_instr(c, sg))
    lp = a.label("k1ld")
    a(f"s_add_u32 s48, s63, {DW*WCH}")
    a(f"s_add_u32 s39, s63, {NSW*WCH}")
    a(f"v_mov_b32 v{vT1}, 0")
    stamp(a, FS)
    a("s_waitcnt lgkmcnt(0)")
    nz = a.label("noflag")
    a(f"s_cmp_ge_u32 s47, {NZ}")
    a(f"s_cbranch_scc1 {nz}")
    a("s_mov_b32 s38, 1")
    a("s_atomic_add s38, s[94:95], 0x0")
    a(f"{nz}:")
    a(f"s_mov_b32 s47, {NC-DW}")
    a(f"{lp}:")
    a(f"s_waitcnt vmcnt({(DW-1)*3})")
    a("s_barrier")
    for sg in range(3):
        a(w_instr(0, sg, 48))
    a(f"s_add_u32 s48, s48, {WCH}")
    a("s_cmp_eq_u32 s48, s39")
    a("s_cselect_b32 s48, s63, s48")
    a("s_sub_u32 s47, s47, 1")
    a("s_cmp_lg_u32 s47, 0")
    a(f"s_cbranch_scc1 {lp}")
    a(f"global_load_dword v{vZ}, v{vT1}, s[94:95] sc1")
    for c in range(NC - DW, NC):
        a(f"s_waitcnt vmcnt({(NC - 1 - c)*3 + 1})")
        a("s_barrier")
    stamp(a, FS + 2)
    a.c("the counters must have been reset before this workgroup touches them")
    lp, ok = a.label("zpoll"), a.label("zok")
    a(f"s_mov_b32 s39, {SPIN_MAX}")
    a("s_waitcnt vmcnt(0)")
    a(f"{lp}:")
    a(f"v_cmp_gt_u32 vcc, {NZ}, v{vZ}")
    a("s_sub_u32 s39, s39, 1")
    a("s_cmp_eq_u32 s39, 0")
    a(f"s_cbranch_scc1 {ok}")
    a(f"s_cbranch_vccz {ok}")
    a(f"global_load_dword v{vZ}, v{vT1}, s[94:95] sc1")
    a("s_waitcnt vmcnt(0)")
    a(f"s_branch {lp}")
    a(f"{ok}:")
    a("s_barrier")
    a(f"s_branch {end_label}")
    a(f"{comp}:")
    R2 = Regs(V_FREE + 4)
    vA, vW0, vW = R2.alloc(), R2.alloc(), R2.alloc()
    acc = [R2.alloc(16) for _ in range(3)]
    sets = [(R2.alloc(4), [R2.alloc(4) for _ in range(3)]) for _ in range(2)]
    a("s_waitcnt lgkmcnt(0)")
    a(f"s_and_b32 s24, s{S_WAVE}, 1")
    a(f"s_lshr_b32 s25, s{S_WAVE}, 1")
    a(f"s_mul_i32 s26, s24, {XT}")
    a(f"v_lshrrev_b32 v{vT0}, 5, v0")
    a(f"v_mul_u32_u24 v{vA}, {XB_}, v{vT0}")
    a(f"v_and_b32 v{vT1}, 31, v0")
    a(f"v_lshl_add_u32 v{vA}, v{vT1}, 4, v{vA}")
    a(f"v_add_u32 v{vA}, s26, v{vA}")
    a(f"v_bfe_u32 v{vT1}, v0, 2, 2")
    a(f"v_lshl_add_u32 v{vW0}, v{vT0}, 3, v{vT1}")
    a(f"v_lshlrev_b32 v{vW0}, 7, v{vW0}")
    a(f"v_and_b32 v{vT0}, 1, v0")
    a(f"v_bfe_u32 v{vT1}, v0, 1, 1")
    a(f"v_lshl_add_u32 v{vT0}, v{vT0}, 1, v{vT1}")
    a(f"v_lshl_add_u32 v{vW0}, v{vT0}, 3, v{vW0}")
    a(f"v_bfe_u32 v{vT0}, v0, 4, 1")
    a(f"v_lshl_add_u32 v{vW0}, v{vT0}, 5, v{vW0}")
    a(f"v_bfe_u32 v{vT0}, v0, 3, 1")
    a(f"v_xor_b32 v{vT0}, s25, v{vT0}")
    a(f"v_lshl_add_u32 v{vW0}, v{vT0}, 6, v{vW0}")
    a(f"v_add_u32 v{vW0}, {W0}, v{vW0}")
    a(f"v_mov_b32 v{vW}, v{vW0}")
    for t in range(3):
        for i in range(16):
            a(f"v_mov_b32 v{acc[t]+i}, 0")
    a("s_mov_b32 s37, 0")

    def read_list(ks, par):
        xa, wfs = sets[par]
        out = [f"ds_read_b128 {vr(xa,4)}, v{vA} offset:{ks*2*XB_}"]
        for t in range(3):
            for jj in range(2):
                out.append(f"ds_read_b64_tr_b16 {vr(wfs[t]+2*jj,2)}, v{vW} offset:{t*4096 + ks*2048 + jj*512}")
        return out

    def step(par, nxt, boundary, adv=False):
        xa, wfs = sets[par]
        issued = 0
        plan = [3, 5, 7]
        if boundary:
            a("s_barrier")
        for t in range(3):
            while issued < min(plan[t], len(nxt)):
                a(nxt[issued]); issued += 1
            a(f"s_waitcnt lgkmcnt({issued + 7 - (3 + 2*t)})")
            if t == 2:
                a(f"{MFMA} {vr(acc[t],16)}, {vr(xa,4)}, {vr(wfs[t],4)}, {vr(acc[t],16)}")
            else:
                a(f"{MFMA} {vr(acc[t],16)}, {vr(wfs[t],4)}, {vr(xa,4)}, {vr(acc[t],16)}")
        if adv:
            a(f"s_add_u32 s37, s37, {WCH}")
            a(f"s_cmp_eq_u32 s37, {NSW*WCH}")
            a("s_cselect_b32 s37, 0, s37")
            a(f"v_add_u32 v{vW}, s37, v{vW0}")
            a(f"v_add_u32 v{vA}, {4*XB_}, v{vA}")

    a("s_waitcnt vmcnt(0)")
    stamp(a, FS)
    a("s_barrier")
    stamp(a, FS + 1)
    for r in read_list(0, 0):
        a(r)
    lp = a.label("k1loop")
    a(f"s_mov_b32 s35, {NC-1}")
    a(f"{lp}:")
    step(0, read_list(1, 1), False, True)
    step(1, read_list(0, 0), True)
    a("s_sub_u32 s35, s35, 1")
    a("s_cmp_lg_u32 s35, 0")
    a(f"s_cbranch_scc1 {lp}")
    step(0, read_list(1, 1), False)
    step(1, [], False)
    stamp(a, FS + 2)
    ot = sets[0][0]
    a(f"s_lshl_b32 s26, s{S_NT64}, 1")
    a("s_add_u32 s26, s26, s25")
    a("s_lshl_b32 s26, s26, 17")
    a(f"s_add_u32 s27, s{S_TT64}, s24")
    a("s_lshl_b32 s27, s27, 10")
    a("s_add_u32 s26, s26, s27")
    a(f"v_bfe_u32 v{vT0}, v0, 4, 1")
    a(f"v_lshlrev_b32 v{vT0}, 16, v{vT0}")
    a(f"v_lshrrev_b32 v{vT1}, 5, v0")
    a(f"v_lshl_add_u32 v{vT0}, v{vT1}, 8, v{vT0}")
    a(f"v_and_b32 v{vT1}, 15, v0")
    a(f"v_lshl_add_u32 v{vT0}, v{vT1}, 4, v{vT0}")
    a(f"s_mov_b32 s28, {f32bits(QSCALE):#x}")
    a("s_mov_b32 s29, s28")
    K1SC = SC
    a(f"s_lshl_b32 s{S_SIG}, s{S_NT64}, 9")
    a(f"s_add_u32 s{S_SIG}, s{S_SIG}, {FL_Q:#x}")
    for t, base in ((0, B_Q), (1, B_K), (2, B_V)):
        for hh in range(2):
            o = ot + 4 * (2 * t + hh)
            for i in range(4):
                r = acc[t] + 8 * hh + 2 * i
                if t == 0:
                    a(f"v_pk_mul_f32 {vr(r,2)}, {vr(r,2)}, s[28:29]")
                a(f"v_cvt_pk_bf16_f32 v{o+i}, v{r}, v{r+1}")
            if t < 2:
                a(f"s_add_u32 s27, s26, {WS_IT0 + base + hh*65536:#x}")
                a(f"buffer_store_dwordx4 {vr(o,4)}, v{V_L16}, s[4:7], s27 offen{K1SC}")
            else:
                a(f"s_add_u32 s27, s26, {WS_IT0 + base:#x}")
                a(f"buffer_store_dwordx4 {vr(o,4)}, v{vT0}, s[4:7], s27 offen offset:{hh*512}{K1SC}")
    a("s_barrier")
    stamp(a, FS + 3)
    a(f"s_branch {end_label}")
    return max(R.n, R2.n)


class Cfg:
    def __init__(self, **kw):
        self.__dict__.update(kw)
        for k in ("NR", "RA", "N1", "N2", "N3", "N4", "BS", "I0", "PS", "STS", "PRE1", "PRE2", "PRE3", "XB"):
            e = os.environ.get(self.name.upper() + "_" + k)
            if e:
                setattr(self, k, int(e))

def stats_ops(tmp, xc, vRstd):
    f = []
    n = 8
    while n > 1:
        n //= 2
        for p in range(n):
            f.append(f"v_add_f32 v{tmp+2*p}, v{tmp+2*p}, v{tmp+2*(p+n)}")
            f.append(f"v_add_f32 v{tmp+2*p+1}, v{tmp+2*p+1}, v{tmp+2*(p+n)+1}")
    f.append(f"v_mov_b32 v{tmp+2}, v{tmp}")
    f.append(f"v_mov_b32 v{tmp+3}, v{tmp+1}")
    f.append("s_nop 1")
    f.append(f"v_permlane32_swap_b32 v{tmp}, v{tmp+2}")
    f.append(f"v_permlane32_swap_b32 v{tmp+1}, v{tmp+3}")
    f.append(f"v_add_f32 v{tmp}, v{tmp}, v{tmp+2}")
    f.append(f"v_add_f32 v{tmp+1}, v{tmp+1}, v{tmp+3}")
    f.append(f"v_mul_f32 v{tmp}, {f32bits(-1.0/512):#x}, v{tmp}")
    f.append(f"v_mul_f32 v{tmp+1}, {f32bits(1.0/512):#x}, v{tmp+1}")
    f.append(f"v_fma_f32 v{tmp+1}, -v{tmp}, v{tmp}, v{tmp+1}")
    f.append(f"v_max_f32 v{tmp+1}, 0, v{tmp+1}")
    f.append(f"v_add_f32 v{tmp+1}, {f32bits(1e-5):#x}, v{tmp+1}")
    f.append(f"v_rsq_f32 v{vRstd}, v{tmp+1}")
    f.append(f"v_cvt_pk_bf16_f32 v{xc}, v{tmp}, v{tmp}")
    f.append(f"v_lshlrev_b32 v{tmp+2}, 16, v{xc}")
    f.append(f"v_sub_f32 v{tmp+2}, v{tmp}, v{tmp+2}")
    f.append(f"v_cvt_pk_bf16_f32 v{xc+1}, v{tmp+2}, v{tmp+2}")
    f.append(f"v_mov_b32 v{xc+2}, v{xc}")
    f.append(f"v_mov_b32 v{xc+3}, v{xc+1}")
    return f

def res_epilogue(a, g, c0, c1, tmp, end):
    SB = g.sb
    fin = a.label("final")
    a("s_lshl_b32 s26, s31, 15")
    a("s_lshl_b32 s27, s33, 11")
    a("s_add_u32 s26, s26, s27")
    a(f"s_add_u32 s26, s26, s{S_BASE}")
    a(f"s_add_u32 s26, s26, {g.OUT:#x}")
    a("s_lshl_b32 s28, s31, 12")
    a("s_lshl_b32 s29, s33, 8")
    a("s_add_u32 s28, s28, s29")
    for i in range(8):
        if i % 2 == 0:
            a(f"s_waitcnt lgkmcnt({3 - i//2})")
        a(f"v_pk_add_f32 {vr(c0+2*i,2)}, {vr(c0+2*i,2)}, {vr(c1+2*i,2)}")
    for i in range(8):
        a(f"v_cvt_pk_bf16_f32 v{V_RES+i}, v{c0+2*i}, v{c0+2*i+1}")
    if g.final:
        a(f"s_cmp_eq_u32 s{S_IT}, 1")
        a(f"s_cbranch_scc1 {fin}")
    a(f"buffer_store_dwordx4 {vr(V_RES,4)}, v{V_L16}, s[4:7], s26 offen{SC}")
    a(f"buffer_store_dwordx4 {vr(V_RES+4,4)}, v{V_L16}, s[4:7], s26 offen offset:1024{SC}")
    a(f"s_mov_b32 s{S_TCH}, s26")
    q = tmp
    a(f"v_pk_mul_f32 v[{q}:{q+1}], v[{c0}:{c0+1}], v[{c0}:{c0+1}]")
    for i in range(1, 8):
        a(f"v_pk_fma_f32 v[{q}:{q+1}], v[{c0+2*i}:{c0+2*i+1}], v[{c0+2*i}:{c0+2*i+1}], v[{q}:{q+1}]")
        a(f"v_pk_add_f32 v[{c0}:{c0+1}], v[{c0}:{c0+1}], v[{c0+2*i}:{c0+2*i+1}]")
    a(f"v_add_f32 v{q+2}, v{c0}, v{c0+1}")
    a(f"v_add_f32 v{q+3}, v{q}, v{q+1}")
    a(f"s_add_u32 s28, s28, s{S_BASE}")
    a(f"s_add_u32 s28, s28, {g.STOUT:#x}")
    a(f"v_permlane32_swap_b32 v{q+2}, v{q+3}")
    a("s_nop 0")
    a(f"v_add_f32 v{q+2}, v{q+2}, v{q+3}")
    a(f"buffer_store_dword v{q+2}, v{V_ST}, s[4:7], s28 offen{SC}")
    a("s_barrier")
    stamp(a, SB + 3)
    if g.final:
        a(f"s_branch {end}")
        a(f"{fin}:")
        srd(a, 8, 70, 71, 2048 * 512 * 2)
        a(f"v_and_b32 v{tmp}, 31, v0")
        a(f"v_lshlrev_b32 v{tmp}, 10, v{tmp}")
        a(f"v_lshrrev_b32 v{tmp+1}, 5, v0")
        a(f"v_lshl_add_u32 v{tmp}, v{tmp+1}, 4, v{tmp}")
        a("s_lshl_b32 s26, s31, 15")
        a("s_lshl_b32 s27, s33, 6")
        a("s_add_u32 s26, s26, s27")
        a(f"buffer_store_dwordx4 {vr(V_RES,4)}, v{tmp}, s[8:11], s26 offen")
        a(f"buffer_store_dwordx4 {vr(V_RES+4,4)}, v{tmp}, s[8:11], s26 offen offset:32")
        a("s_barrier")
        stamp(a, SB + 3)

RB = 16384
VS = 32
NPRE = env('NPRE', 5)


class Stream:
    NR, NRND, NREG = 10, 29, 14
    def __init__(self, a):
        self.a = a
        self.nxt = 0
        self.vm, self.lg = [], []
        self.reg = {}
        self.free = list(range(self.NREG - NPRE))
        self.last = self.NRND - NPRE
        for i in range(NPRE):
            self.reg[self.last + i] = self.NREG - NPRE + i
        self.maxreg = self.NREG
    def setup(self):
        a = self.a
        a(f"s_and_b32 s19, s{S_WAVE}, 3")
        a("s_lshl_b32 s25, s19, 12")
        a(f"s_mul_i32 s20, s{S_NTG}, {231*1024}")
        a("s_add_u32 s20, s20, s25")
        a(f"s_add_u32 s20, s20, {WS_WGU:#x}")
        a(f"s_mul_i32 s21, s{S_NT64}, {224*1024}")
        a("s_add_u32 s21, s21, s25")
        a(f"s_add_u32 s21, s21, {WS_WD:#x}")
        for i in range(3):
            a(f"v_add_u32 v{V_FREE+i}, {i*0x10000}, v{V_L16}")
            a(f"v_add_u32 v{V_FREE+i}, s25, v{V_FREE+i}")
    def src(self, r):
        return f"s_add_u32 s27, s20, {r*RB}" if r < 15 else f"s_add_u32 s27, s21, {(r-15)*RB}"
    def wait_vm(self, pred):
        idx = [i for i, e in enumerate(self.vm) if pred(e)]
        if not idx:
            return None
        n = min(63, (len(self.vm) - 1 - idx[-1]) * 4)
        del self.vm[:idx[-1] + 1]
        return f"vmcnt({n})"
    def flush(self, limit, cap=99):
        a = self.a
        for r in sorted(self.reg)[:cap]:
            if r >= limit:
                break
            w = self.wait_vm(lambda e: e == ("s", r))
            if w:
                a("s_waitcnt " + w)
            k = self.reg.pop(r)
            for i in range(4):
                off = (r % self.NR) * RB + i * 1024
                if env("FL64", 0):
                    for hh in range(2):
                        a(f"ds_write_b64 v{V_FREE + (off >> 16)}, {vr(VS + (k*4 + i)*4 + 2*hh, 2)} offset:{(off & 0xffff) + 8*hh}")
                        if env("FLW", 1):
                            a("s_waitcnt lgkmcnt(0)")
                else:
                    a(f"ds_write_b128 v{V_FREE + (off >> 16)}, {vr(VS + (k*4 + i)*4, 4)} offset:{off & 0xffff}")
                    if env("FLW", 1):
                        a("s_waitcnt lgkmcnt(0)")
            self.lg.append((r, k))
    def fetch(self, n, limit):
        a = self.a
        while n > 0 and self.nxt < self.last:
            r = self.nxt
            if r < limit:
                a(f"s_add_u32 s26, s25, {(r % self.NR) * RB}")
                a("s_mov_b32 m0, s26")
                a(self.src(r))
                for i in range(4):
                    a(f"buffer_load_dwordx4 v{V_L16}, s[4:7], s27 offen offset:{i*1024}{SC} lds")
                self.vm.append(("d", r))
            else:
                if not self.free:
                    break
                k = self.free.pop(0)
                self.maxreg = max(self.maxreg, k + 1)
                self.reg[r] = k
                a(self.src(r))
                for i in range(4):
                    a(f"buffer_load_dwordx4 {vr(VS + (k*4 + i)*4, 4)}, v{V_L16}, s[4:7], s27 offen offset:{i*1024}{SC}")
                self.vm.append(("s", r))
            self.nxt += 1; n -= 1
    def landed(self, upto):
        assert self.nxt > min(upto, self.last - 1) and all(r > upto for r in self.reg), (upto, self.nxt, self.reg)
        w = []
        x = self.wait_vm(lambda e: e[0] == "d" and e[1] <= upto)
        if x:
            w.append(x)
        if any(r <= upto for r, _ in self.lg):
            w.append("lgkmcnt(0)")
            self.free += [k for _, k in self.lg]
            self.lg = []
        if w:
            self.a("s_waitcnt " + " ".join(w))

def gemm_phase(a, g):
    NW, NT = g.NW, g.NT
    ln = g.kind in ("qkv", "gu")
    NS = g.KST if ln else g.KST // 2
    SBY = NW * 1024 if ln else 4096
    NSW = NS + (1 if ln else 0)
    NRND = -(-NSW * SBY // RB)
    NR = min(g.NR, NRND)
    RING = NR * RB
    LB = g.LB
    SCR = LB + RING
    assert SCR + (1024 if g.kind == "qkv" else 0) + (0 if ln else 16384) <= LDS_MAX
    S = g.stream
    RA = g.RA
    staged = g.staged
    s_tt, s_nt = (S_TT128, S_NT128) if ln else (S_TT64, S_NT64)
    comp, end = a.label(g.name + "_comp"), a.label(g.name + "_end")
    SB = g.sb
    need_round = lambda st: (min(st, NSW - 1) * SBY + SBY - 1) // RB
    bars = [0]
    out_ = min(NR, g.N1 + g.N2)
    while out_ < NRND:
        out_ = min(out_ + (g.N3 if len(bars) == 1 else g.N4), NR + (bars[-1] * SBY) // RB, NRND)
        bars.append(bars[-1] + g.BS)
    for _ in range(g.XB):
        bars.append(bars[-1] + g.BS)
    a.c(f"================ phase {g.name} ================")
    a(f"s_cmp_lt_u32 s{S_WAVE}, 4")
    a(f"s_cbranch_scc1 {comp}")
    a(f"s_and_b32 s19, s{S_WAVE}, 3")
    a("s_lshl_b32 s25, s19, 12")
    a(f"s_mul_i32 s23, s{s_nt}, {g.WNT}")
    a("s_add_u32 s23, s23, s25")
    if g.WBASE:
        a(f"s_add_u32 s23, s23, {g.WBASE:#x}")
    if staged:
        for i in range(3):
            a(f"v_add_u32 v{V_FREE+i}, {i*0x10000}, v{V_L16}")
            a(f"v_add_u32 v{V_FREE+i}, s25, v{V_FREE+i}")
    stamp(a, SB)
    vm, lg = [], []
    def issue(r):
        dst = LB + (r % NR) * RB
        if r in staged:
            k = staged.index(r)
            for i in range(4):
                off = dst + i * 1024
                a(f"ds_write_b128 v{V_FREE + (off >> 16)}, {vr(VS + (k*4 + i)*4, 4)} offset:{off & 0xffff}")
            lg.append(r)
        else:
            a(f"s_add_u32 s26, s25, {dst}")
            a("s_mov_b32 m0, s26")
            a(f"s_add_u32 s27, s23, {r*RB}")
            for i in range(4):
                a(f"buffer_load_dwordx4 v{V_L16}, s[4:7], s27 offen offset:{i*1024}{SC} lds")
            vm.append(r)
    extra = [0]
    def wait_landed(upto):
        w = []
        for q, nm, cap in ((vm, "vmcnt", 63), (lg, "lgkmcnt", 15)):
            idx = [i for i, r in enumerate(q) if r <= upto]
            if idx:
                left = len(q) - 1 - idx[-1]
                w.append(f"{nm}({min(cap, left*4 + (extra[0] if q is vm else 0))})")
                del q[:idx[-1] + 1]
        if w:
            a("s_waitcnt " + " ".join(w))
    order = g.order if g.order else list(range(NRND))
    todo = list(order)
    def issue_n(n, limit):
        while n > 0 and todo and todo[0] < limit:
            issue(todo.pop(0)); n -= 1
    if staged:
        a("s_waitcnt vmcnt(0)")
    issue_n(g.N1, NR)
    if g.lsig:
        a(f"s_waitcnt vmcnt({len(vm)*4})")
        a("s_mov_b32 s38, 1")
        a(f"s_atomic_add s38, s[14:15], s{S_SIG}")
    issue_n(g.N2, NR)
    if S:
        assert not todo
        S.setup()
        S.fetch(g.PRE1, LB // RB)
        extra[0] = 4 * len(S.vm)
    stamp(a, SB + 1)
    st = []
    if g.stage_next is not None:
        n = g.stage_next
        for k, r in enumerate(n.staged):
            for i in range(4):
                t = f"s_add_u32 s27, s24, {r*RB}\n" if i == 0 else ""
                st.append(t + f"buffer_load_dwordx4 {vr(VS + (k*4 + i)*4, 4)}, v{V_L16}, s[4:7], s27 offen offset:{i*1024}{SC}")
    for j, b in enumerate(bars):
        nxt = bars[j + 1] if j + 1 < len(bars) else NSW
        up = need_round(nxt)
        assert all(r > up for r in todo), (g.name, b, up, todo)
        wait_landed(up)
        a("s_barrier")
        issue_n(g.N3 if j == 0 else g.N4, NR + (b * SBY) // RB)
    assert not todo and not vm and not lg, (g.name, todo, vm, lg)
    if st:
        a.c("fetch part of the next phase's weights into registers")
        a(f"s_mul_i32 s24, s{S_NT64}, {n.WNT}")
        a("s_add_u32 s24, s24, s25")
        a(f"s_add_u32 s24, s24, {n.WBASE:#x}")
        for t in st:
            a(t)
    if S:
        S.fetch(g.PRE2, LB // RB)
    if not ln:
        a("s_barrier")
    if S:
        S.fetch(g.PRE3, LB // RB + NR)
    a("s_barrier")
    a(f"s_branch {end}")

    a(f"{comp}:")
    R = Regs(V_FREE)
    nwin = -(-(LB + RING) // 65536)
    vW = [[R.alloc() for _ in range(nwin)] for _ in range(1 if ln else 2)]
    vRstd, vX, vY = R.alloc(), R.alloc(), R.alloc()
    acc = [R.alloc(16) for _ in range(NT)]
    sets = [[R.alloc(4) for _ in range(NT)] for _ in range(2)]
    ring = [R.alloc(4) for _ in range(RA)]
    tmp = R.alloc(16)
    xc = R.alloc(4)
    if g.kind == "qkv":
        vRs = R.alloc(16)
    if ln:
        a(f"s_add_u32 s31, s{s_tt}, s{S_WAVE}")
        a(f"s_mul_i32 s22, s31, {g.KST*1024}")
        for w in range(nwin):
            a(f"v_add_u32 v{vW[0][w]}, {w*65536}, v{V_L16}")
        for t in range(NT):
            for i in range(16):
                a(f"v_mov_b32 v{acc[t]+i}, 0")
        a("s_lshl_b32 s36, s31, 12")
        a(f"s_add_u32 s36, s36, s{S_BASE}")
        a(f"s_add_u32 s36, s36, {g.STIN:#x}")
    else:
        a(f"s_and_b32 s24, s{S_WAVE}, 1")
        a(f"s_lshr_b32 s25, s{S_WAVE}, 1")
        a(f"s_lshl_b32 s33, s{s_nt}, 1")
        a("s_add_u32 s33, s33, s25")
        a(f"s_add_u32 s31, s{s_tt}, s24")
        a(f"s_mul_i32 s22, s31, {g.KST*1024}")
        a("s_lshl_b32 s26, s25, 10")
        a("s_add_u32 s22, s22, s26")
        a("s_mul_i32 s26, s25, 3072")
        a("s_lshl_b32 s27, s25, 10")
        a("s_add_u32 s27, s27, 1024")
        for w in range(nwin):
            a(f"v_add_u32 v{vX}, {w*65536}, v{V_L16}")
            a(f"v_add_u32 v{vW[0][w]}, s26, v{vX}")
            a(f"v_add_u32 v{vW[1][w]}, s27, v{vX}")
        for i in range(8):
            a(f"v_lshlrev_b32 v{acc[0]+2*i}, 16, v{V_RES+i}")
            a(f"v_and_b32 v{acc[0]+2*i+1}, 0xffff0000, v{V_RES+i}")
        for i in range(16):
            a(f"v_mov_b32 v{acc[1]+i}, 0")
        a(f"s_lshl_b32 s26, s{S_WAVE}, 12")
        a(f"s_add_u32 s26, s26, {SCR}")
        a("s_xor_b32 s27, s26, 0x2000")
        assert SCR % 16384 == 0
        a(f"v_add_u32 v{vX}, s26, v{V_L16}")
        a(f"v_add_u32 v{vY}, s27, v{V_L16}")
    a(f"s_add_u32 s22, s22, s{S_BASE}")
    a(f"s_add_u32 s22, s22, {g.ABUF:#x}")
    AST = 1024 if ln else 2048

    cvm = []
    def load_a(st_):
        if env("NOLOAD", 0):
            return
        off = (st_ * AST) % 4096
        a(f"buffer_load_dwordx4 {vr(ring[st_ % RA],4)}, v{V_L16}, s[4:7], s22 offen offset:{off}{SC}")
        if off + AST == 4096:
            a("s_add_u32 s22, s22, 4096")
        cvm.append(st_)
    def wait_a(tag):
        if tag in cvm:
            i = cvm.index(tag)
            a(f"s_waitcnt vmcnt({len(cvm) - 1 - i})")
            del cvm[:i + 1]
    def w_reads(st_):
        out = []
        for t in range(NT):
            off = LB + (st_ * SBY + (t * 1024 if ln else 0)) % RING
            base = vW[0 if ln else t][off >> 16]
            out.append(f"ds_read_b128 {vr(sets[st_ & 1][t],4)}, v{base} offset:{off & 0xffff}")
        return out
    fill = []
    def mfma(t, xa, wf):
        if env("NOCOMP", 0):
            return
        if g.swap[t]:
            a(f"{MFMA} {vr(acc[t],16)}, {vr(xa,4)}, {vr(wf,4)}, {vr(acc[t],16)}")
        else:
            a(f"{MFMA} {vr(acc[t],16)}, {vr(wf,4)}, {vr(xa,4)}, {vr(acc[t],16)}")
        for _ in range(min(2, len(fill))):
            a(fill.pop(0))

    a("s_lshl_b32 s23, s31, 8")
    a(f"s_add_u32 s23, s23, s{S_FL}")
    a(f"s_add_u32 s23, s23, {g.FIN:#x}")
    a("s_waitcnt vmcnt(0)")
    stamp(a, SB)
    handoff(a, 23, g.NEED)
    stamp(a, SB + 1)
    nxt_a = [0]
    def more_a(n, st_):
        while n > 0 and nxt_a[0] < NS and nxt_a[0] <= st_ + RA:
            load_a(nxt_a[0]); nxt_a[0] += 1; n -= 1
    more_a(g.I0, -1)
    a("s_barrier")
    for r in w_reads(0):
        a(r)
    a(f"s_lshl_b32 s{S_SIG}, s{s_nt if g.kind == 'qkv' else 31}, 8")
    a(f"s_add_u32 s{S_SIG}, s{S_SIG}, s{S_FL}")
    if g.FOUT:
        a(f"s_add_u32 s{S_SIG}, s{S_SIG}, {g.FOUT:#x}")
    if ln:
        a(f"v_lshlrev_b32 v{vX}, 3, v0")
    stl = [f"buffer_load_dwordx2 {vr(tmp+2*i,2)}, v{vX}, s[4:7], s36 offen offset:{i*512}{SC}" for i in range(8)] if ln else []
    nfill_steps = -(-40 // (2 * NT))
    for st_ in range(NS):
        if st_ in bars and st_ > 0:
            a("s_barrier")
        if ln and st_ == NS - nfill_steps:
            assert not stl
            if "st" in cvm:
                i = len(cvm) - 1 - cvm[::-1].index("st")
                a(f"s_waitcnt vmcnt({len(cvm) - 1 - i})")
                del cvm[:i + 1]
            fill.extend(stats_ops(tmp, xc, vRstd))
        nxt = w_reads(st_ + 1) if st_ + 1 < NSW else []
        wait_a(st_)
        for t in range(NT):
            if nxt:
                a(nxt[t])
            a(f"s_waitcnt lgkmcnt({(NT if nxt else NT - 1 - t)})")
            mfma(t, ring[st_ % RA], sets[st_ & 1][t])
            if t == 0:
                more_a(g.PS - 1, st_ - 1)
        more_a(1, st_)
        if stl and st_ >= g.STS:
            a(stl.pop(0)); cvm.append("st")
    if ln:
        while fill:
            a(fill.pop(0))
        if g.kind == "qkv":
            a(f"s_lshl_b32 s26, s{S_WAVE}, 8")
            a(f"s_add_u32 s26, s26, {SCR}")
            a(f"v_add_u32 v{tmp+4}, s26, v{V_L4}")
            a(f"ds_write_b32 v{tmp+4}, v{vRstd}")
            a(f"v_lshrrev_b32 v{tmp+5}, 5, v0")
            a(f"v_lshl_add_u32 v{tmp+5}, v{tmp+5}, 4, s26")
            for q in range(4):
                a(f"ds_read_b128 {vr(vRs+4*q,4)}, v{tmp+5} offset:{q*32}")
            a("s_waitcnt lgkmcnt(5)")
        else:
            a("s_waitcnt lgkmcnt(0)")
            a("s_nop 0")
        for t in range(NT):
            mfma(t, xc, sets[NS & 1][t])
        if g.kind == "qkv":
            a("s_waitcnt lgkmcnt(0)")
    else:
        a("s_nop 11")
        for q in range(4):
            a(f"ds_write_b128 v{vX}, {vr(acc[1]+4*q,4)} offset:{q*1024}")
        a("s_waitcnt lgkmcnt(0)")
        a("s_barrier")
        for q in range(4):
            a(f"ds_read_b128 {vr(acc[1]+4*q,4)}, v{vY} offset:{q*1024}")
    EARLY = 0
    stamp(a, SB + 2)
    ot = sets[0][0]
    if g.kind == "qkv":
        a(f"s_lshl_b32 s26, s{s_nt}, 17")
        a("s_lshl_b32 s27, s31, 10")
        a("s_add_u32 s26, s26, s27")
        a(f"s_add_u32 s26, s26, s{S_BASE}")
        va = tmp + 8
        a(f"v_mul_f32 v{tmp+6}, {f32bits(QSCALE):#x}, v{vRstd}")
        a(f"v_bfe_u32 v{va}, v0, 4, 1")
        a(f"v_lshlrev_b32 v{va}, 16, v{va}")
        a(f"v_lshrrev_b32 v{va+1}, 5, v0")
        a(f"v_lshl_add_u32 v{va}, v{va+1}, 8, v{va}")
        a(f"v_and_b32 v{va+1}, 15, v0")
        a(f"v_lshl_add_u32 v{va}, v{va+1}, 4, v{va}")
        a("s_nop 1")
        for t, base, sc in ((0, B_Q, tmp + 6), (1, B_K, vRstd)):
            for hh in range(2):
                o = ot + 4 * (2 * t + hh)
                for i in range(4):
                    r = acc[t] + 8 * hh + 2 * i
                    a(f"v_mul_f32 v{r}, v{sc}, v{r}")
                    a(f"v_mul_f32 v{r+1}, v{sc}, v{r+1}")
                    a(f"v_cvt_pk_bf16_f32 v{o+i}, v{r}, v{r+1}")
                a(f"s_add_u32 s27, s26, {base + hh*65536:#x}")
                a(f"buffer_store_dwordx4 {vr(o,4)}, v{V_L16}, s[4:7], s27 offen{SC}")
        a(f"s_add_u32 s27, s26, {B_V:#x}")
        for hh in range(2):
            o = ot + 16 + 4 * hh
            for i in range(4):
                r = acc[2] + 8 * hh + 2 * i
                a(f"v_pk_mul_f32 {vr(r,2)}, {vr(vRs+8*hh+2*i,2)}, {vr(r,2)}")
                a(f"v_cvt_pk_bf16_f32 v{o+i}, v{r}, v{r+1}")
            a(f"buffer_store_dwordx4 {vr(o,4)}, v{va}, s[4:7], s27 offen offset:{hh*512}{SC}")
    elif g.kind == "gu":
        a(f"s_mul_i32 s26, s31, {112*1024}")
        a(f"s_mul_i32 s27, s{s_nt}, {7*1024}")
        a("s_add_u32 s26, s26, s27")
        a(f"s_add_u32 s26, s26, s{S_BASE}")
        a(f"s_add_u32 s26, s26, {B_H:#x}")
        a(f"v_mul_f32 v{tmp}, v{vRstd}, v{vRstd}")
        a(f"v_mov_b32 v{tmp+1}, v{tmp}")
        a("s_nop 1")
        for t in range(NT):
            o = ot + 4 * t
            for i in range(4):
                r = acc[t] + 2 * i
                a(f"v_pk_mul_f32 {vr(r,2)}, {vr(r,2)}, {vr(r+8,2)}")
            for i in range(4):
                r = acc[t] + 2 * i
                a(f"v_pk_mul_f32 {vr(r,2)}, {vr(r,2)}, {vr(tmp,2)}")
            for i in range(4):
                r = acc[t] + 2 * i
                a(f"v_cvt_pk_bf16_f32 v{o+i}, v{r}, v{r+1}")
            a(f"buffer_store_dwordx4 {vr(o,4)}, v{V_L16}, s[4:7], s26 offen offset:{(t%4)*1024}{SC}")
            if t == 3:
                a("s_add_u32 s26, s26, 4096")
    else:
        res_epilogue(a, g, acc[0], acc[1], tmp, end)
    if ln:
        a("s_barrier")
        stamp(a, SB + 3)
    a(f"{end}:")
    return R.n


def mlp_phase(a, g):
    E = lambda k, d: env("MLP_" + k, d)
    NR, RING = 10, 10 * RB
    NG, NOPS = 231, 231 + 112
    beg = [i * 1024 for i in range(NG)] + [15 * RB + (i // 2) * 4096 for i in range(112)]
    fin = [i * 1024 + 1023 for i in range(NG)] + [15 * RB + (i // 2) * 4096 + 4095 for i in range(112)]
    RAH = E("RAH", 5)
    I0, I0D = E("I0", 10), E("I0D", 14)
    sched = os.environ.get("MLP_SCHED", "0:0,20:0,40:0,60:0,88:2,100:1,114:1,130:1,146:1,162:1,178:1,194:1,210:1,226:1,240:0,252:0,264:0,276:0,288:0,300:0,330:0")
    sched = dict((int(x.split(":")[0]), int(x.split(":")[1])) for x in sched.split(","))
    bars = sorted(sched)
    S = g.stream
    comp, end = a.label("mlp_comp"), a.label("mlp_end")
    SB, SD = 17, g.sb
    a.c("================ phase gate/up + down ================")
    a(f"s_cmp_lt_u32 s{S_WAVE}, 4")
    a(f"s_cbranch_scc1 {comp}")
    stamp(a, SB)
    S.flush(NR)
    S.fetch(E("N1", 8), NR)
    stamp(a, SB + 1)
    for j, b in enumerate(bars):
        nxt = bars[j + 1] if j + 1 < len(bars) else NOPS
        S.landed(fin[min(NOPS - 1, nxt - 1 + RAH)] // RB)
        a("s_barrier")
        lim = NR + beg[b] // RB
        S.fetch(sched[b], lim)
        S.flush(lim, E("FCAP", 1))
        a.c(f"barrier {b}: fetched {S.nxt}, staged {sorted(S.reg)}")
    assert S.nxt == S.last and not S.vm and not S.lg and not S.reg
    a("s_barrier")
    a("s_barrier")
    a(f"s_branch {end}")

    a(f"{comp}:")
    R = Regs(V_FREE)
    vW = [R.alloc() for _ in range(3)]
    vRstd = R.alloc()
    xc = R.alloc(4)
    vR2 = R.alloc(2)
    vX, vY = R.alloc(), R.alloc()
    vD = [[R.alloc() for _ in range(3)] for _ in range(2)]
    acc = [R.alloc(16) for _ in range(4)]
    NF = RAH + 2
    wf = [R.alloc(4) for _ in range(NF)]
    ring = [R.alloc(4) for _ in range(32)]
    tmp = ring[28]
    NP = len(PASSES)
    pstart = [33 * f for f in PFIRST] + [NG]
    tacc = [acc[t % 4] for t in range(7)]
    dacc = [acc[3], acc[0]]
    hreg = [34, 35, 32]
    a(f"s_add_u32 s31, s{S_TTG}, s{S_WAVE}")
    a("s_lshl_b32 s22, s31, 15")
    a(f"s_add_u32 s22, s22, s{S_BASE}")
    a(f"s_add_u32 s22, s22, {B_X1:#x}")
    a("s_lshl_b32 s36, s31, 12")
    a(f"s_add_u32 s36, s36, s{S_BASE}")
    a(f"s_add_u32 s36, s36, {B_ST1:#x}")
    a(f"s_mul_i32 s26, s31, {112*1024}")
    a(f"s_add_u32 s26, s26, s{S_BASE}")
    a(f"s_add_u32 s26, s26, {B_H:#x}")
    for p in range(NP):
        a(f"s_mul_i32 s{hreg[p]}, s{S_NTG}, {PASSES[p]*1024}")
        a(f"s_add_u32 s{hreg[p]}, s{hreg[p]}, s26")
        if p:
            a(f"s_add_u32 s{hreg[p]}, s{hreg[p]}, {PFIRST[p]*16384}")
    a("s_lshl_b32 s50, s31, 8")
    a(f"s_add_u32 s50, s50, s{S_FL}")
    a(f"s_add_u32 s23, s50, {FL_O:#x}")
    a(f"s_add_u32 s50, s50, {FL_G:#x}")
    a(f"s_add_u32 s51, s50, {WS_FLAG:#x}")
    a(f"s_and_b32 s24, s{S_WAVE}, 1")
    a(f"s_lshr_b32 s25, s{S_WAVE}, 1")
    a(f"s_lshl_b32 s33, s{S_NT64}, 1")
    a("s_add_u32 s33, s33, s25")
    a(f"s_add_u32 s31, s{S_TT64}, s24")
    a("s_lshl_b32 s52, s31, 8")
    a(f"s_add_u32 s52, s52, s{S_FL}")
    a(f"s_add_u32 s52, s52, {FL_G:#x}")
    a(f"s_add_u32 s53, s52, {WS_FLAG:#x}")
    a(f"s_mul_i32 s37, s31, {112*1024}")
    a("s_lshl_b32 s26, s25, 10")
    a("s_add_u32 s37, s37, s26")
    a(f"s_add_u32 s37, s37, s{S_BASE}")
    a(f"s_add_u32 s37, s37, {B_H:#x}")
    a("s_mul_i32 s29, s25, 3072")
    a("s_lshl_b32 s30, s25, 10")
    a("s_add_u32 s30, s30, 1024")
    for w in range(3):
        a(f"v_add_u32 v{vW[w]}, {w*65536}, v{V_L16}")
        a(f"v_add_u32 v{vD[0][w]}, s29, v{vW[w]}")
        a(f"v_add_u32 v{vD[1][w]}, s30, v{vW[w]}")
    a(f"v_mov_b32 v{vY}, 0")
    a(f"v_lshlrev_b32 v{vX}, 3, v0")
    cvm = []
    def wait_tag(tag):
        if tag in cvm:
            i = len(cvm) - 1 - cvm[::-1].index(tag)
            a(f"s_waitcnt vmcnt({len(cvm) - 1 - i})")
            del cvm[:i + 1]
    na, nh = [0], [0]
    def load_x():
        k = na[0]; na[0] += 1
        a(f"buffer_load_dwordx4 {vr(ring[k],4)}, v{V_L16}, s[4:7], s22 offen offset:{(k%4)*1024}{SC}")
        if k % 4 == 3:
            a("s_add_u32 s22, s22, 4096")
        cvm.append(("x", k))
    def load_h():
        k = nh[0]; nh[0] += 1
        a(f"buffer_load_dwordx4 {vr(ring[k%32],4)}, v{V_L16}, s[4:7], s37 offen offset:{(k%2)*2048}{SC}")
        if k % 2 == 1:
            a("s_add_u32 s37, s37, 4096")
        cvm.append(("h", k))
    def w_read(i):
        off = beg[i] % RING
        base = vW[off >> 16] if i < NG else vD[(i - NG) & 1][off >> 16]
        a(f"ds_read_b128 {vr(wf[i % NF],4)}, v{base} offset:{off & 0xffff}")
    def slot(i):
        for p in range(NP):
            if i < pstart[p + 1]:
                return PFIRST[p] + (i - pstart[p]) % PASSES[p], (i - pstart[p]) // PASSES[p]
        return None, (i - NG) // 2
    fill = []
    stored = set()
    def h_ops(t, packed=True):
        r = tacc[t]
        p = max(q for q in range(NP) if PFIRST[q] <= t)
        so, off = hreg[p], (t - PFIRST[p]) * 1024
        ops = [f"v_pk_mul_f32 {vr(r+2*i,2)}, {vr(r+2*i,2)}, {vr(r+8+2*i,2)}" for i in range(4)]
        ops += [f"v_pk_mul_f32 {vr(r+2*i,2)}, {vr(r+2*i,2)}, {vr(vR2,2)}" for i in range(4)]
        if not packed:
            ops = [f"v_mul_f32 v{r+i}, v{r+i}, v{r+8+i}" for i in range(8)]
            ops += [f"v_mul_f32 v{r+i}, v{vR2}, v{r+i}" for i in range(8)]
        ops += [f"v_cvt_pk_bf16_f32 v{r+8+i}, v{r+2*i}, v{r+2*i+1}" for i in range(4)]
        ops.append((f"buffer_store_dwordx4 {vr(r+8,4)}, v{V_L16}, s[4:7], s{so} offen offset:{off}{SC}", ("hs", t)))
        return ops

    a("s_waitcnt vmcnt(0)")
    stamp(a, SB)
    handoff(a, 23, 16)
    stamp(a, SB + 1)
    if E("PRIO", 2):
        a(f"s_setprio {E('PRIO', 2)}")
    while na[0] < I0:
        load_x()
        if na[0] == E("STP", 4):
            a("s_barrier")
            for i in range(RAH):
                w_read(i)
            for q in range(8):
                a(f"buffer_load_dwordx2 {vr(tmp+2*q,2)}, v{vX}, s[4:7], s36 offen offset:{q*512}{SC}")
                cvm.append("st")
    a(f"s_add_u32 s{S_SIG}, s52, {FL_D - FL_G:#x}")
    STF = (E("STP", 4) + 1) * PASSES[0]
    evs = os.environ.get("MLP_EV", {"4,3": "170:200:214,256:284:292", "3,2,2": "140:200:214,205:244:252,270:296:304",
                                    "4,2,1": "176:198:216,232:256:278,256:286:308"}.get(",".join(map(str, PASSES))))
    ev = []
    for p, x in enumerate(evs.split(",")):
        sg, ak, go = map(int, x.split(":"))
        ev.append((PFIRST[p] + PASSES[p] - 1, sg, ak, go, 8 * (PFIRST[p] + PASSES[p]), sg < NG and E("VEC", 0) & 1, ak < NG and E("VEC", 0) & 2))
    def emit(x):
        if isinstance(x, tuple):
            a(x[0]); cvm.append(x[1]); stored.add(x[1][1])
        else:
            a(x)
    dinit = [False]
    hlim = 0
    treg = list(range(78, 94, 2)) + [96, 98, 100, 62]
    tpos = [int(x) for x in os.environ.get("TRACE", "").split(",") if x]
    for i in range(NOPS):
        t, ks = slot(i)
        if i in tpos:
            r_ = treg[tpos.index(i)]
            a(f"s_memtime s[{r_}:{r_+1}]")
        for gi, (lt, sg, ak, go, lim_, vec, vec2) in enumerate(ev):
            if i == sg:
                a.c(f"this wave's part {gi} of H is complete")
                assert lt in stored
                wait_tag(("hs", lt))
                if vec:
                    a(f"v_mov_b32 v{vRstd}, 1")
                    a("s_mov_b64 exec, 1")
                    a(f"buffer_atomic_add v{vRstd}, v{vY}, s[4:7], s51 offen offset:{gi*4} sc1")
                    a("s_mov_b64 exec, -1")
                    cvm.append("sig")
                else:
                    a(f"s_add_u32 s54, s50, {gi*4}")
                    a("s_mov_b32 s38, 1")
                    a("s_atomic_add s38, s[14:15], s54")
                if PT:
                    a(f"s_mov_b64 exec, {(1 << (8 * PASSES[gi])) - 1 if PASSES[gi] < 4 else 0x7fffffff:#x}")
                    if PASSES[gi] == 4:
                        a("s_mov_b32 exec_lo, -1")
                    a(f"buffer_load_dword v{V_PF}, v{V_L128}, s[4:7], s{hreg[gi]} offen sc1")
                    a("s_mov_b64 exec, -1")
                    cvm.append("pt")
            if i == ak:
                if vec2:
                    a(f"buffer_load_dword v{vX}, v{vY}, s[4:7], s53 offen offset:{gi*4} sc1")
                    cvm.append("ask")
                else:
                    a(f"s_add_u32 s28, s52, {gi*4}")
                    a("s_mov_b32 s55, 0")
                    a("s_atomic_add s55, s[14:15], s28 glc")
            if i == go:
                ok = a.label("go")
                if vec2:
                    wait_tag("ask")
                    a(f"v_cmp_gt_u32 vcc, 16, v{vX}")
                    a(f"s_add_u32 s28, s52, {gi*4}")
                    a(f"s_cbranch_vccz {ok}")
                else:
                    a("s_waitcnt lgkmcnt(0)")
                    a("s_cmp_ge_u32 s55, 16")
                    a(f"s_cbranch_scc1 {ok}")
                poll(a, 28, 16)
                a(f"{ok}:")
                hlim = lim_
                if gi in (0, NP - 1) and not tpos:
                    stamp(a, SD + (0 if gi == 0 else 4))
        if i in bars and i > 0:
            a("s_barrier")
        if i == STF:
            wait_tag("st")
            fill.extend(stats_ops(tmp, xc, vRstd))
            fill.append(f"v_mul_f32 v{vR2}, v{vRstd}, v{vRstd}")
            fill.append(f"v_mov_b32 v{vR2+1}, v{vR2}")
        if i == pstart[1] and not tpos:
            stamp(a, SB + 2)
        if i == NG and not tpos:
            stamp(a, SB + 3)
        if i in pstart[1:]:
            p = pstart.index(i) - 1
            assert not fill
            need = set(tacc[q] for q in range(PFIRST[p + 1], PFIRST[p + 1] + PASSES[p + 1])) if p + 1 < NP else set(dacc)
            tiles = list(range(PFIRST[p], PFIRST[p] + PASSES[p]))
            now = [q for q in tiles if tacc[q] in need or (E("SER", 6) >> p) & 1]
            if now:
                a(f"s_nop {max(0, 11 - 3 * (tiles[-1] - now[0]))}")
                for q in now:
                    for x in h_ops(q):
                        emit(x)
            else:
                fill.extend(["s_nop 0"] * 6)
            for q in tiles:
                if q not in now:
                    fill.extend(h_ops(q, False))
        if i == NG and not tpos:
            stamp(a, SD + 1)
        if 3 in stored and not dinit[0] and not fill:
            dinit[0] = True
            assert i + 10 < NG
            fill.extend(["s_nop 0"] * 2)
            for q in range(8):
                fill.append(f"v_lshlrev_b32 v{dacc[0]+2*q}, 16, v{V_RES+q}")
                fill.append(f"v_and_b32 v{dacc[0]+2*q+1}, 0xffff0000, v{V_RES+q}")
        if t == 0 and ks < 32:
            wait_tag(("x", ks))
        if t is None and (i - NG) % 2 == 0:
            wait_tag(("h", ks))
        if i + RAH < NOPS:
            w_read(i + RAH)
        a(f"s_waitcnt lgkmcnt({min(RAH, NOPS - 1 - i)})")
        if t is not None:
            d, xa, first = tacc[t], (xc if ks == 32 else ring[ks]), ks == 0
            if first and t >= 4:
                assert t - 4 in stored
        else:
            d, xa, first = dacc[(i - NG) & 1], ring[ks % 32], i == NG + 1
            assert 4 in stored
        a(f"{MFMA} {vr(d,16)}, {vr(wf[i % NF],4)}, {vr(xa,4)}, {'0' if first else vr(d,16)}")
        for _ in range(min(E("FPS", 3), len(fill))):
            emit(fill.pop(0))
        if t == PASSES[0] - 1 and na[0] < 32:
            assert na[0] < 28 or (i > STF and not fill), i
            load_x()
        if i >= pstart[NP - 1]:
            done_steps = (i + 1 - NG) // 2 if t is None else 0
            look = I0D if t is not None else max(E("LK", 12), I0D - done_steps)
            if nh[0] < min(hlim, done_steps + look) and (t is None or nh[0] < ks):
                load_h()
    assert nh[0] == 56 and not fill
    dead = beg[bars[-1]] // RB - 1
    assert dead + NR >= 29
    SCR = (dead % NR) * RB
    a(f"s_lshl_b32 s26, s{S_WAVE}, 12")
    a(f"s_add_u32 s26, s26, {SCR}")
    a("s_xor_b32 s27, s26, 0x2000")
    a(f"v_add_u32 v{vX}, s26, v{V_L16}")
    a(f"v_add_u32 v{vY}, s27, v{V_L16}")
    a("s_nop 6")
    if E("PRIO", 2):
        a("s_setprio 0")
    for q in range(4):
        a(f"ds_write_b128 v{vX}, {vr(dacc[1]+4*q,4)} offset:{q*1024}")
    a("s_waitcnt lgkmcnt(0)")
    a("s_barrier")
    for q in range(4):
        a(f"ds_read_b128 {vr(dacc[1]+4*q,4)}, v{vY} offset:{q*1024}")
    stamp(a, SD + 2)
    for k in range(len(tpos)):
        a(f"v_writelane_b32 v{V_STAMP+1}, s{treg[k]}, {k}")
    res_epilogue(a, g, dacc[0], dacc[1], tmp, end)
    a(f"{end}:")
    return max(R.n, VS + 16 * S.maxreg)


def attn_phase(a, SB, code_end):
    U = 2
    NIT = 32 // U
    B2IT = env("ATT_B2", 1)
    B3IT = env("ATT_B3", 3)
    PRIO_IT = env("ATT_PRIO", 14)
    PFN = 4 if GMX == 4 else env('PFN', 6)
    CB = 0
    XB = CB + 4096
    KB, VB = 32768, 98304
    assert XB + 8 * 2304 <= KB
    R = Regs(V_FREE)
    vK, vV, vInc, vV0 = R.alloc(), R.alloc(), R.alloc(), R.alloc()
    t0, t1 = R.alloc(), R.alloc()
    vPA, vPP = R.alloc(), R.alloc()
    R.alloc(); R.alloc()
    DYN = env("ATT_DYN", 0)
    Q = [R.alloc(4), R.alloc(4)]
    NM = [R.alloc(16), R.alloc(16)]
    O = [R.alloc(16), R.alloc(16)]
    S = [R.alloc(16), R.alloc(16)]
    P = R.alloc(8)
    KF = [R.alloc(4), R.alloc(4)]
    VF = [R.alloc(8), R.alloc(8)]
    a.c("================ phase attention ================")
    a(f"s_and_b32 s19, s{S_IDX}, 3")
    a(f"s_lshl_b32 s20, s{S_XCD}, 2")
    a("s_add_u32 s19, s19, s20")
    a(f"s_lshr_b32 s20, s{S_IDX}, 2")
    a("s_lshl_b32 s20, s20, 3")
    a(f"s_and_b32 s26, s{S_WAVE}, 3")
    a(f"s_lshr_b32 s27, s{S_WAVE}, 2")
    a("s_lshl_b32 s22, s26, 1")
    a("s_add_u32 s20, s20, s22")
    a("s_lshl_b32 s21, s19, 16")
    a(f"s_add_u32 s21, s21, s{S_BASE}")
    setup = a.label("att_setup")
    assert B_Q == 0 and B_V - B_K == 0x200000
    a("s_and_b32 s24, s26, 1")
    a("s_lshr_b32 s25, s26, 1")
    a("s_lshl_b32 s28, s24, 16")
    a(f"s_add_u32 s28, s28, {KB}")
    a("s_lshl_b32 s29, s24, 21")
    a("s_add_u32 s29, s29, s21")
    a(f"s_add_u32 s29, s29, {B_K:#x}")

    def dma(first_tile, per_wave):
        a(f"s_mul_i32 s24, s25, {per_wave*1024}")
        if first_tile:
            a(f"s_add_u32 s24, s24, {first_tile*1024}")
        n = 0
        while n < per_wave:
            a("s_add_u32 s30, s28, s24")
            a("s_mov_b32 m0, s30")
            a("s_add_u32 s31, s29, s24")
            for i in range(min(4, per_wave - n)):
                a(f"buffer_load_dwordx4 v{V_L16}, s[4:7], s31 offen offset:{i*1024}{SC} lds")
            n += 4
            if n < per_wave:
                a("s_add_u32 s24, s24, 4096")
    a(f"v_and_b32 v{t0}, 11, v0")
    a(f"v_cmp_eq_u32 vcc, 0, v{t0}")
    a(f"v_mov_b32 v{t1}, 0x3f803f80")
    a("s_lshl_b32 s30, s26, 10")
    a(f"s_add_u32 s30, s30, {CB}")
    a(f"v_cndmask_b32 v{P}, 0, v{t1}, vcc")
    a(f"v_add_u32 v{t0}, s30, v{V_L16}")
    for i in range(1, 4):
        a(f"v_mov_b32 v{P+i}, v{P}")
    a(f"ds_write_b128 v{t0}, {vr(P,4)}")
    a(f"v_lshrrev_b32 v{t0}, 5, v0")
    a(f"v_lshlrev_b32 v{t0}, 8, v{t0}")
    a(f"v_and_b32 v{t1}, 15, v0")
    a(f"v_lshl_add_u32 v{t0}, v{t1}, 4, v{t0}")
    a(f"v_and_b32 v{t1}, 16, v0")
    a(f"v_cmp_eq_u32 vcc, 0, v{t1}")
    a("s_lshl_b32 s30, s27, 15")
    a(f"s_add_u32 s30, s30, {KB}")
    a(f"v_add_u32 v{vK}, s30, v{V_L16}")
    a("s_add_u32 s31, s30, 0x10000")
    a(f"v_mov_b32 v{t1}, s31")
    a(f"v_mov_b32 v{vInc}, {CB}")
    a(f"v_cndmask_b32 v{t1}, v{vInc}, v{t1}, vcc")
    a(f"v_add_u32 v{vV}, v{t0}, v{t1}")
    a(f"v_mov_b32 v{t1}, {VB}")
    a(f"v_cndmask_b32 v{t1}, v{vInc}, v{t1}, vcc")
    a(f"v_add_u32 v{vV0}, v{t0}, v{t1}")
    a(f"v_mov_b32 v{t1}, {U*1024}")
    a(f"v_cndmask_b32 v{vInc}, 0, v{t1}, vcc")
    for q in range(2):
        for i in range(16):
            a(f"v_mov_b32 v{O[q]+i}, 0")
    for i in range(4, 8):
        a(f"v_mov_b32 v{P+i}, 0")
    for i in range(4, 8):
        a(f"v_mov_b32 v{VF[1]+i}, 0")
    a(f"ds_write_b128 v{V_L16}, {vr(VF[1]+4,4)} offset:{XB + 9216}")
    a("s_mul_i32 s30, s26, 2304")
    a(f"s_add_u32 s30, s30, {XB}")
    a("s_lshl_b32 s31, s26, 12")
    a(f"s_add_u32 s31, s31, {XB + 12288}")
    a("s_cmp_eq_u32 s27, 0")
    a("s_cselect_b32 s35, s30, s31")
    a("s_cselect_b32 s36, s31, s30")
    a(f"v_add_u32 v{vPA}, s35, v{V_L16}")
    a(f"v_add_u32 v{vPP}, s36, v{V_L16}")
    a(f"v_add_u32 v{vPA+2}, s35, v{V_L4}")
    a(f"v_add_u32 v{vPP+2}, s36, v{V_L4}")
    a("s_add_u32 s20, s20, s27")
    a("s_lshl_b32 s22, s20, 10")
    a("s_add_u32 s22, s22, s21")
    a("s_xor_b32 s35, s22, 1024")
    a(f"s_add_u32 s36, s21, {B_K:#x}")
    a("s_lshr_b32 s23, s19, 1")
    a(f"s_cmp_eq_u32 s{S_IT}, 0")
    a("s_cselect_b32 s53, 32, 16")
    a("s_cselect_b32 s52, -2, -1")
    a(f"s_cselect_b32 s32, {NIT - env('ATT_PRIO0', 15)}, {NIT - PRIO_IT}")
    a("s_and_b32 s23, s23, s52")
    a("s_lshl_b32 s23, s23, 8")
    a(f"s_add_u32 s23, s23, s{S_FL}")
    assert FL_Q == 0
    a(f"s_mov_b32 s34, {NIT - B2IT}")
    a(f"s_mov_b32 s33, {NIT - B3IT}")
    a("s_waitcnt vmcnt(0) lgkmcnt(0)")
    stamp(a, SB)
    a("s_barrier")
    a(f"s_cmp_lg_u32 s{S_WAVE}, 0")
    a(f"s_cbranch_scc1 {setup}")
    handoff(a, 23, "s53")
    stamp(a, SB + 1)
    a(f"{setup}:")
    a("s_barrier")

    def qk_loads():
        a(f"buffer_load_dwordx4 {vr(KF[1],4)}, v{V_L16}, s[4:7], s36 offen{SC}")
        a(f"buffer_load_dwordx4 {vr(Q[0],4)}, v{V_L16}, s[4:7], s35 offen{SC}")
        a(f"buffer_load_dwordx4 {vr(Q[1],4)}, v{V_L16}, s[4:7], s22 offen{SC}")

    def standin():
        for q in range(2):
            a(f"{MFMA} {vr(S[q],16)}, {vr(KF[1],4)}, {vr(Q[q],4)}, 0")
        a("s_nop 11")
        tt = (t0, t1)
        for q in range(2):
            a(f"v_max3_f32 v{tt[q]}, v{S[q]}, v{S[q]+1}, v{S[q]+2}")
            a(f"v_max3_f32 v{P+q}, v{S[q]+8}, v{S[q]+9}, v{S[q]+10}")
        for i in (3, 5):
            for q in range(2):
                a(f"v_max3_f32 v{tt[q]}, v{tt[q]}, v{S[q]+i}, v{S[q]+i+1}")
                a(f"v_max3_f32 v{P+q}, v{P+q}, v{S[q]+8+i}, v{S[q]+9+i}")
        for q in range(2):
            a(f"v_max3_f32 v{tt[q]}, v{tt[q]}, v{S[q]+7}, v{S[q]+15}")
        for q in range(2):
            a(f"v_max_f32 v{tt[q]}, v{tt[q]}, v{P+q}")
        for q in range(2):
            a(f"v_mov_b32 v{P+q}, v{tt[q]}")
        a("s_nop 0")
        for q in range(2):
            a(f"v_permlane32_swap_b32 v{tt[q]}, v{P+q}")
        for q in range(2):
            a(f"v_min_f32 v{NM[q]}, -v{tt[q]}, -v{P+q}")
        for q in range(2):
            a(f"v_mov_b32 v{NM[q]+1}, v{NM[q]}")
        for q in range(2):
            for i in range(2, 16, 2):
                a(f"v_pk_mov_b32 {vr(NM[q]+i,2)}, {vr(NM[q],2)}, {vr(NM[q],2)}")

    older, join = a.label("older"), a.label("join")
    a("s_cmp_eq_u32 s27, 0")
    a(f"s_cbranch_scc1 {older}")
    dma(0, 2)
    dma(4, 6)
    a("s_waitcnt vmcnt(6)")
    a("s_barrier")
    stamp(a, SB + 2)
    qk_loads()
    dma(16, 8)
    a("s_waitcnt vmcnt(11)")
    a("s_barrier")
    dma(32, 16)
    a("s_waitcnt vmcnt(24)")
    standin()
    a(f"s_cmp_eq_u32 s{S_IT}, 0")
    a(f"s_cselect_b32 s33, {env('X_START', 0)}, 4")
    a(f"s_mov_b32 s34, {NIT - 1}")
    a.c("L2 prefetch (wave 4): this workgroup's share of gate/up (8 x 8 KB) and wo (2 x 8 KB)")
    a(f"s_mul_i32 s50, s{S_IDX}, 59136")
    a(f"s_and_b32 s23, s{S_XCD}, 1")
    a(f"s_mul_i32 s23, s23, {8*231*1024}")
    a("s_add_u32 s50, s50, s23")
    a(f"s_add_u32 s50, s50, {WS_WGU:#x}")
    a(f"s_lshl_b32 s51, s{S_IDX}, 14")
    a(f"s_add_u32 s51, s51, {WS_WO:#x}")
    a("s_waitcnt vmcnt(0)")
    a("s_barrier")
    a("s_setprio 1")
    a(f"ds_read_b128 {vr(KF[0],4)}, v{vK}")
    a(f"ds_read_b128 {vr(VF[0],4)}, v{vV}")
    a(f"ds_read_b128 {vr(VF[0]+4,4)}, v{vV} offset:512")
    a("s_waitcnt lgkmcnt(0)")
    a(f"{MFMA} {vr(S[0],16)}, {vr(KF[0],4)}, {vr(Q[0],4)}, {vr(NM[0],16)}")
    a("s_nop 10")
    a(f"s_branch {join}")
    a(f"{older}:")
    qk_loads()
    a("s_waitcnt vmcnt(0)")
    standin()
    a(f"{MFMA} {vr(S[0],16)}, {vr(KF[1],4)}, {vr(Q[0],4)}, {vr(NM[0],16)}")
    a("s_barrier")
    stamp(a, SB + 2)
    a(f"ds_read_b128 {vr(VF[0],4)}, v{vV}")
    a(f"ds_read_b128 {vr(VF[0]+4,4)}, v{vV} offset:512")
    for i in range(0, 4, 2):
        a(f"v_pk_mov_b32 {vr(KF[0]+i,2)}, {vr(KF[1]+i,2)}, {vr(KF[1]+i,2)} op_sel:[0,1]")
    a("s_waitcnt lgkmcnt(0)")
    a("s_nop 5")
    a(f"{join}:")
    a(f"s_mov_b32 s31, {NIT}")
    stamp(a, SB + 3)
    lp, hook = a.label("attn"), a.label("hook")
    back = lp
    a(f"{lp}:")
    order = os.environ.get("ATT_ORD", "E0 E1 P1 RK D E2 E3 C0 E4 E5 C1 E6 W QK R0 E7 C2 E8 C3 E9 E10 C4 E11 P0 R1 S E12 C5 E13 E14 E15 C6 A C7").split()
    for u in range(U):
        for q in range(2):
            c = S[q]
            for tok in order:
                if tok[0] == "E":
                    i = int(tok[1:]); a(f"v_exp_f32 v{c+i}, v{c+i}")
                elif tok[0] == "C":
                    j = int(tok[1:]); a(f"v_cvt_pk_bf16_f32 v{P+j}, v{c+2*j}, v{c+2*j+1}")
                elif tok == "P1":
                    pv = VF[(u + 1) & 1] if q == 0 else VF[u & 1]
                    a(f"{MFMA} {vr(O[q^1],16)}, {vr(pv+4,4)}, {vr(P+4,4)}, {vr(O[q^1],16)}")
                elif tok == "P0":
                    a(f"{MFMA} {vr(O[q],16)}, {vr(VF[u&1],4)}, {vr(P,4)}, {vr(O[q],16)}")
                elif tok == "QK":
                    k_ = KF[u & 1] if q == 0 else KF[(u + 1) & 1]
                    a(f"{MFMA} {vr(S[q^1],16)}, {vr(k_,4)}, {vr(Q[q^1],4)}, {vr(NM[q^1],16)}")
                elif tok == "W":
                    if q == 1:
                        a("s_waitcnt lgkmcnt(0)")
                elif tok == "RK":
                    if q == 0:
                        a(f"ds_read_b128 {vr(KF[(u+1)&1],4)}, v{vK} offset:{(u+1)*1024}")
                elif tok == "R0":
                    if q == 0:
                        a(f"ds_read_b128 {vr(VF[(u+1)&1],4)}, v{vV} offset:{(u+1)*1024}")
                elif tok == "R1":
                    if q == 0:
                        a(f"ds_read_b128 {vr(VF[(u+1)&1]+4,4)}, v{vV} offset:{(u+1)*1024+512}")
                elif tok == "A":
                    if u == U - 1 and q == 1:
                        a(f"v_add_u32 v{vK}, {U*1024}, v{vK}")
                        a(f"v_add_u32 v{vV}, v{vInc}, v{vV}")
                elif tok == "D":
                    if 2 * u + q == env("ATT_PU", 1):
                        sk = a.label("keep")
                        a("s_cmp_lg_u32 s31, s32")
                        a(f"s_cbranch_scc1 {sk}")
                        a("s_setprio 0")
                        a(f"{sk}:")
                elif tok == "S":
                    if u == U - 1 and q == 1:
                        a("s_sub_u32 s31, s31, 1")
                        a("s_cmp_lg_u32 s31, s34")
    if "S" not in order:
        a("s_sub_u32 s31, s31, 1")
        a("s_cmp_lg_u32 s31, s34")
    a(f"s_cbranch_scc1 {lp}")
    a("s_cmp_lg_u32 s31, 0")
    a(f"s_cbranch_scc1 {hook}")
    a("s_setprio 0")
    a(f"{MFMA} {vr(O[1],16)}, {vr(VF[1]+4,4)}, {vr(P+4,4)}, {vr(O[1],16)}")
    stamp(a, SB + 4)
    a(f"ds_write_b128 v{vPA}, {vr(O[0],4)}")
    a(f"ds_write_b128 v{vPA}, {vr(O[0]+4,4)} offset:1024")
    a(f"ds_write_b32 v{vPA+2}, v{O[0]+8} offset:2048")
    a("s_lshl_b32 s22, s20, 15")
    a("s_lshl_b32 s23, s19, 10")
    a("s_add_u32 s22, s22, s23")
    a(f"s_add_u32 s22, s22, s{S_BASE}")
    a(f"s_add_u32 s22, s22, {B_O:#x}")
    a(f"s_lshl_b32 s{S_SIG}, s20, 8")
    a(f"s_add_u32 s{S_SIG}, s{S_SIG}, s{S_FL}")
    a(f"s_add_u32 s{S_SIG}, s{S_SIG}, {FL_A:#x}")
    a("s_waitcnt vmcnt(0) lgkmcnt(0)")
    a("s_barrier")
    a(f"ds_read_b32 v{S[0]+8}, v{vPP+2} offset:2048")
    a(f"ds_read_b128 {vr(S[0],4)}, v{vPP}")
    a(f"ds_read_b128 {vr(S[0]+4,4)}, v{vPP} offset:1024")
    OO = O[1]
    a("s_waitcnt lgkmcnt(2)")
    a(f"v_add_f32 v{OO+8}, v{OO+8}, v{S[0]+8}")
    a(f"v_rcp_f32 v{t0}, v{OO+8}")
    for i in range(0, 8, 2):
        if i % 4 == 0:
            a(f"s_waitcnt lgkmcnt({1 - i // 4})")
        a(f"v_pk_add_f32 {vr(OO+i,2)}, {vr(OO+i,2)}, {vr(S[0]+i,2)}")
    fin, fb, endl = a.label("fin"), a.label("fallback"), a.label("att_end")
    a(f"v_pk_add_f32 {vr(S[0],2)}, {vr(OO,2)}, {vr(OO+2,2)}")
    a(f"v_pk_add_f32 {vr(S[0]+2,2)}, {vr(OO+4,2)}, {vr(OO+6,2)}")
    a(f"v_pk_add_f32 {vr(S[0],2)}, {vr(S[0],2)}, {vr(S[0]+2,2)}")
    a(f"v_add_f32 v{t1}, v{S[0]}, v{S[0]+1}")
    a(f"v_fma_f32 v{t1}, 0, v{t1}, v{OO+8}")
    a(f"v_cmp_ngt_f32 vcc, {f32bits(2.0**64):#x}, v{t1}")
    a("s_nop 0")
    a(f"s_cbranch_vccnz {fb}")
    a(f"{fin}:")
    assert t0 % 2 == 0
    for i in range(0, 8, 2):
        a(f"v_pk_mul_f32 {vr(OO+i,2)}, {vr(OO+i,2)}, {vr(t0,2)} op_sel_hi:[1,0]")
    for i in range(4):
        a(f"v_cvt_pk_bf16_f32 v{P+i}, v{OO+2*i}, v{OO+2*i+1}")
    a(f"buffer_store_dwordx4 {vr(P,4)}, v{V_L16}, s[4:7], s22 offen{SC}")
    a("s_barrier")
    stamp(a, SB + 5)
    a(f"s_branch {endl}")
    a(f"{hook}:")
    hp = a.label("hookp")
    a("s_cmp_eq_u32 s27, 0")
    a(f"s_cbranch_scc0 {hp}")
    a("s_barrier")
    a("s_mov_b32 s34, s33")
    a("s_mov_b32 s33, 0")
    a(f"s_add_u32 s23, s34, s{S_IT}")
    a("s_cmp_lg_u32 s23, 0")
    a(f"s_cbranch_scc1 {back}")
    a.c("residual tile of x for the first output projection")
    a(f"v_and_b32 v{V_TF}, 31, v0")
    a(f"v_lshlrev_b32 v{V_TF}, 10, v{V_TF}")
    a(f"v_lshrrev_b32 v{V_TF+1}, 5, v0")
    a(f"v_lshl_add_u32 v{V_TF}, v{V_TF+1}, 4, v{V_TF}")
    a(f"s_and_b32 s23, s{S_WAVE}, 1")
    a(f"s_add_u32 s23, s23, s{S_TT64}")
    a("s_lshl_b32 s23, s23, 15")
    a(f"s_lshl_b32 s24, s{S_NT64}, 1")
    a(f"s_lshr_b32 s25, s{S_WAVE}, 1")
    a("s_add_u32 s24, s24, s25")
    a("s_lshl_b32 s24, s24, 6")
    a("s_add_u32 s23, s23, s24")
    a(f"buffer_load_dwordx4 {vr(V_RES,4)}, v{V_TF}, s[8:11], s23 offen")
    a(f"buffer_load_dwordx4 {vr(V_RES+4,4)}, v{V_TF}, s[8:11], s23 offen offset:32")
    a(f"s_branch {back}")
    a(f"{hp}:")
    gaps = [3, 2, 2, 1, 1, 1]
    STG_IT = env("ATT_STG", 12)
    assert 1 + sum(gaps) < STG_IT < PRIO_IT
    hs = [a.label(f"hs{i}") for i in range(9)]
    for i in (0, 1, 2, 3, 6, 7):
        a(f"s_cmp_eq_u32 s33, {i}")
        a(f"s_cbranch_scc1 {hs[i]}")
    HS = env("HSTAMP", 0)
    def next_step(i):
        if i - HS in (0, 1):
            stamp(a, 1 + 2 * (i - HS))
        a("s_add_u32 s33, s33, 1")
        a(f"s_sub_u32 s34, s34, {gaps[i]}")
        a(f"s_branch {back}")
    a(f"s_cmp_lg_u32 s{S_WAVE}, 4")
    a(f"s_cbranch_scc1 {hs[6]}")
    for i in range(PFN):
        a(f"buffer_load_dword v{V_PF}, v{V_L128}, s[4:7], s50 offen{SC}")
        a("s_add_u32 s50, s50, 8192")
    a(f"buffer_load_dword v{V_PF}, v{V_L128}, s[4:7], s51 offen{SC}")
    a("s_xor_b32 s51, s51, 8192")
    next_step(4)
    a(f"{hs[6]}:")
    a("s_mov_b32 s33, 7")
    a(f"s_mov_b32 s34, {NIT - STG_IT}")
    a(f"s_branch {back}")
    a(f"{hs[7]}:")
    if NPRE:
        lp7, ok7 = a.label("fpoll"), a.label("fok")
        a(f"s_cmp_lg_u32 s{S_IT}, 0")
        a(f"s_cbranch_scc1 {ok7}")
        a(f"v_mov_b32 v{V_TF}, {XB + 9216 + 8}")
        a(f"s_mov_b32 s39, {SPIN_MAX}")
        a(f"{lp7}:")
        a(f"ds_read_b32 v{V_TF+1}, v{V_TF}")
        a("s_sub_u32 s39, s39, 1")
        a("s_waitcnt lgkmcnt(0)")
        a(f"v_cmp_eq_u32 vcc, 0, v{V_TF+1}")
        a("s_cmp_eq_u32 s39, 0")
        a(f"s_cbranch_scc1 {ok7}")
        a(f"s_cbranch_vccnz {lp7}")
        a(f"{ok7}:")
        a.c("fetch the last rounds of the down weights into free registers")
        a(f"s_mul_i32 s23, s{S_NT64}, {224*1024}")
        a("s_lshl_b32 s62, s26, 12")
        a("s_add_u32 s23, s23, s62")
        a(f"s_add_u32 s23, s23, {WS_WD + (14 - NPRE)*RB:#x}")
        assert VS + (14 - NPRE) * 16 >= V_TF
        for k in range(NPRE):
            for i in range(4):
                a(f"buffer_load_dwordx4 {vr(VS + (14-NPRE+k)*16 + 4*i, 4)}, v{V_L16}, s[4:7], s23 offen offset:{i*1024}{SC}")
            a(f"s_add_u32 s23, s23, {RB}")
    a("s_mov_b32 s34, 0")
    a(f"s_branch {back}")
    F, G_, vS, vR, vC = V_TF, V_TF + 32, V_TF + 48, V_TF + 49, V_TF + 52
    CSA = XB + 10240
    CNT = XB + 9216
    a(f"{hs[0]}:")
    if 0 - HS in (0, 1):
        stamp(a, 2 * (0 - HS))
    a.c("re-tiling task: 128 rows x two 64-column strips; this wave takes 32 rows")
    l_gu, l_o, l_d, l_go = [a.label(x) for x in ("gu", "o", "d", "go")]
    a("s_cmp_ge_u32 s2, 176")
    a(f"s_cbranch_scc1 {l_d}")
    a("s_cmp_ge_u32 s2, 160")
    a(f"s_cbranch_scc1 {l_o}")
    a("s_cmp_ge_u32 s2, 48")
    a(f"s_cbranch_scc1 {l_gu}")
    srd(a, 80, 66, 67, 512 * 1536 * 2)
    srd(a, 84, 66, 67, 512 * 1536 * 2)
    a("s_and_b32 s79, s2, 3")
    a("s_lshr_b32 s54, s2, 2")
    a("s_mov_b32 s88, 3072")
    a("s_lshl_b32 s89, s54, 8")
    a("s_add_u32 s90, s89, 128")
    a("s_mov_b32 s91, 0")
    a("s_and_b32 s62, s54, 3")
    a(f"s_mul_i32 s96, s62, {4*99*1024}")
    a("s_lshr_b32 s62, s54, 2")
    a("s_lshl_b32 s62, s62, 10")
    a("s_add_u32 s96, s96, s62")
    assert WS_WQKV == 0
    a(f"s_add_u32 s97, s96, {99*1024}")
    a(f"s_add_u32 s100, s96, {2*99*1024}")
    a(f"s_add_u32 s101, s96, {3*99*1024}")
    for d in (72, 73, 74, 75):
        a(f"s_mov_b32 s{d}, 3072")
    a("s_mov_b32 s63, 1")
    a("s_mov_b32 s93, 0")
    a(f"s_branch {l_go}")
    a(f"{l_gu}:")
    srd(a, 80, 72, 73, 512 * 1792 * 2)
    srd(a, 84, 74, 75, 512 * 1792 * 2)
    a("s_sub_u32 s55, s2, 48")
    a("s_and_b32 s79, s55, 3")
    a("s_lshr_b32 s54, s55, 2")
    a("s_mov_b32 s88, 3584")
    a("s_lshl_b32 s89, s54, 7")
    a("s_mov_b32 s90, s89")
    a("s_mov_b32 s91, 1")
    a("s_lshl_b32 s55, s54, 2")
    for d, e in zip((96, 97, 100, 101), (72, 73, 74, 75)):
        a("s_mul_i32 s62, s55, 9363")
        a("s_lshr_b32 s62, s62, 16")
        a(f"s_mul_i32 s{d}, s62, {231*1024}")
        a("s_mul_i32 s62, s62, 7")
        a("s_sub_u32 s62, s55, s62")
        pass_of(a, 62, 78, e)
        a(f"s_lshl_b32 s{e}, s{e}, 10")
        a("s_lshl_b32 s78, s78, 5")
        a("s_add_u32 s62, s62, s78")
        a("s_lshl_b32 s62, s62, 10")
        a(f"s_add_u32 s{d}, s{d}, s62")
        a(f"s_add_u32 s{d}, s{d}, {WS_WGU:#x}")
        a("s_add_u32 s55, s55, 1")
    a("s_mov_b32 s63, 1")
    a("s_mov_b32 s93, 0")
    a(f"s_branch {l_go}")
    for lab, first, lo, nbytes, wnt, wbase in ((l_o, 160, 68, 512 * 512 * 2, 64 * 1024, WS_WO),
                                               (l_d, 176, 76, 1792 * 512 * 2, 224 * 1024, WS_WD)):
        a(f"{lab}:")
        srd(a, 80, lo, lo + 1, nbytes)
        srd(a, 84, lo, lo + 1, nbytes)
        a(f"s_sub_u32 s55, s2, {first}")
        a("s_lshr_b32 s79, s55, 2")
        a("s_and_b32 s54, s55, 3")
        a("s_mov_b32 s88, 1024")
        a("s_lshl_b32 s89, s54, 8")
        a("s_add_u32 s90, s89, 128")
        a("s_mov_b32 s91, 0")
        a(f"s_mul_i32 s96, s54, {2*wnt}")
        a(f"s_add_u32 s96, s96, {wbase:#x}")
        a("s_add_u32 s97, s96, 1024")
        a(f"s_add_u32 s100, s96, {wnt}")
        a(f"s_add_u32 s101, s96, {wnt+1024}")
        for d in (72, 73, 74, 75):
            a(f"s_mov_b32 s{d}, 2048")
        a(f"s_mov_b32 s93, {0 if lab == l_o else 1}")
        a("s_mov_b32 s63, 0")
        if lab == l_o:
            a(f"s_branch {l_go}")
    a(f"{l_go}:")
    a("s_lshl_b32 s62, s79, 2")
    a("s_add_u32 s62, s62, s26")
    a("s_lshl_b32 s92, s62, 1")
    for d, inc in ((76, 0), (77, 1)):
        a(f"s_add_u32 s{d}, s92, {inc}")
        a(f"s_mul_i32 s54, s{d}, 9363")
        a("s_lshr_b32 s54, s54, 16")
        a("s_mul_i32 s55, s54, 7")
        a(f"s_sub_u32 s55, s{d}, s55")
        pass_of(a, 55, 78, 49)
        a("s_mul_i32 s54, s54, s49")
        a("s_mul_i32 s78, s78, 15")
        a("s_add_u32 s54, s54, s78")
        a("s_add_u32 s54, s54, s55")
        a("s_cmp_eq_u32 s93, 0")
        a(f"s_cselect_b32 s{d}, s{d}, s54")
    a("s_lshl_b32 s62, s62, 5")
    a("s_mul_i32 s62, s62, s88")
    a("s_add_u32 s89, s89, s62")
    a("s_add_u32 s90, s90, s62")
    a("s_lshl_b32 s55, s88, 3")
    a(f"v_lshrrev_b32 v{vS}, 3, v0")
    a(f"v_mul_lo_u32 v{vS}, v{vS}, s88")
    a(f"v_and_b32 v{vR}, 7, v0")
    a(f"v_lshl_add_u32 v{vS}, v{vR}, 4, v{vS}")
    for g8 in range(4):
        for h in range(2):
            a(f"buffer_load_dwordx4 {vr(F+8*g8+4*h,4)}, v{vS}, s[{80+4*h}:{83+4*h}], s{89+h} offen")
            a(f"s_add_u32 s{89+h}, s{89+h}, s55")
    next_step(0)
    a(f"{hs[1]}:")
    if 1 - HS in (0, 1):
        stamp(a, 2 * (1 - HS))
    nost = a.label("nostore")
    a("s_cmp_ge_u32 s2, 232")
    a(f"s_cbranch_scc1 {nost}")
    a("s_lshl_b32 s62, s26, 12")
    a(f"s_add_u32 s62, s62, {XB + 12288}")
    a(f"v_add_u32 v{vS}, s62, v{V_L16}")
    a(f"v_and_b32 v{vC}, 1, v0")
    a(f"v_bfe_u32 v{vC+1}, v0, 1, 1")
    a(f"v_lshl_add_u32 v{vC}, v{vC}, 1, v{vC+1}")
    a(f"v_lshrrev_b32 v{vR}, 5, v0")
    a(f"v_bfe_u32 v{vC+1}, v0, 2, 2")
    a(f"v_lshl_add_u32 v{vR}, v{vR}, 3, v{vC+1}")
    a(f"v_lshlrev_b32 v{vR}, 7, v{vR}")
    a(f"v_lshl_add_u32 v{vR}, v{vC}, 3, v{vR}")
    a("s_cmp_eq_u32 s91, 0")
    a("s_cselect_b32 s54, 5, 11")
    a("s_cselect_b32 s55, 64, 32")
    a("s_cselect_b32 s78, 2048, 64")
    a(f"v_bfe_u32 v{vC+1}, v0, 4, 1")
    a(f"v_lshlrev_b32 v{vC+1}, s54, v{vC+1}")
    a(f"v_add3_u32 v{vR}, v{vR}, v{vC+1}, s62")
    a(f"v_add_u32 v{vR+1}, s55, v{vR}")
    a(f"v_add_u32 v{vR+2}, s78, v{vR}")
    a(f"v_add_u32 v{vC+4}, s78, v{vR+1}")
    tr_addr = [vR, vR + 1, vR + 2, vC + 4]
    dests = (96, 97, 100, 101)
    a("s_mov_b32 s49, 0x3f803f80")
    a("s_waitcnt vmcnt(0)")
    for half in range(2):
        dst = G_ if half == 0 else F
        for g8 in range(2):
            for h in range(2):
                a(f"ds_write_b128 v{vS}, {vr(F+16*half+8*g8+4*h,4)} offset:{h*2048 + g8*1024}")
        for t in range(4):
            for jj in range(2):
                a(f"ds_read_b64_tr_b16 {vr(dst+4*t+2*jj,2)}, v{tr_addr[t]} offset:{jj*512}")
        a("s_waitcnt lgkmcnt(0)")
        for t in range(4):
            a(f"s_mul_i32 s62, s{76+half}, s{72+t}")
            a(f"s_add_u32 s62, s62, s{dests[t]}")
            if not env("X_NOST", 0):
                a(f"buffer_store_dwordx4 {vr(dst+4*t,4)}, v{V_L16}, s[4:7], s62 offen{'' if env('X_PLAIN', 0) else SC}")
    a("s_cmp_eq_u32 s63, 0")
    a(f"s_cbranch_scc1 {nost}")
    if env("X_NOCS", 0):
        a(f"s_branch {nost}")
    for t in range(4):
        a(f"v_mov_b32 v{vC+t}, 0")
    for k in range(4):
        for t in range(4):
            a(f"v_dot2c_f32_bf16 v{vC+t}, s49, v{G_+4*t+k}")
        for t in range(4):
            a(f"v_dot2c_f32_bf16 v{vC+t}, s49, v{F+4*t+k}")
    a("s_lshl_b32 s62, s26, 9")
    a(f"v_add_u32 v{vS}, s62, v{V_L4}")
    a(f"v_mov_b32 v{vR}, 1")
    a(f"v_mov_b32 v{vR+1}, {CNT}")
    a(f"v_permlane32_swap_b32 v{vC}, v{vC+1}")
    a(f"v_permlane32_swap_b32 v{vC+2}, v{vC+3}")
    a("s_nop 0")
    a(f"v_add_f32 v{vC}, v{vC}, v{vC+1}")
    a(f"v_add_f32 v{vC+2}, v{vC+2}, v{vC+3}")
    a(f"ds_write_b32 v{vS}, v{vC} offset:{CSA}")
    a(f"ds_write_b32 v{vS}, v{vC+2} offset:{CSA + 256}")
    a("s_mov_b64 exec, 1")
    a(f"ds_add_rtn_u32 v{vR+2}, v{vR+1}, v{vR}")
    a("s_mov_b64 exec, -1")
    a("s_waitcnt lgkmcnt(0)")
    a(f"v_readfirstlane_b32 s62, v{vR+2}")
    a("s_nop 0")
    a("s_cmp_lg_u32 s62, 3")
    a(f"s_cbranch_scc1 {nost}")
    a.c("last of the four waves: write the column-sum pieces")
    for w in range(4):
        for p in range(2):
            a(f"ds_read_b32 v{F+16+2*w+p}, v{V_L4} offset:{CSA + w*512 + p*256}")
    for t in range(4):
        a(f"s_lshl_b32 s62, s{72+t}, 5")
        a(f"s_add_u32 s{dests[t]}, s{dests[t]}, s62")
    a("s_lshr_b32 s92, s79, 1")
    a("s_lshl_b32 s92, s92, 9")
    a("s_and_b32 s62, s79, 1")
    a("s_lshl_b32 s62, s62, 3")
    a("s_add_u32 s92, s92, s62")
    a("v_cmp_gt_u32 vcc, 32, v0")
    a(f"v_and_b32 v{vS}, 0x1ff, v{V_L16}")
    for p in range(2):
        a(f"v_mov_b32 v{vC}, s{dests[2*p]}")
        a(f"v_mov_b32 v{vC+1}, s{dests[2*p+1]}")
        a(f"v_cndmask_b32 v{vC}, v{vC+1}, v{vC}, vcc")
        a(f"v_add_u32 v{vR+p}, v{vC}, v{vS}")
    a("s_waitcnt lgkmcnt(0)")
    for p in range(2):
        c, o = F + 16 + p, F + 24 + 2 * p
        for w in range(1, 4):
            a(f"v_add_f32 v{c}, v{c}, v{c+2*w}")
        a(f"v_cvt_pk_bf16_f32 v{o}, v{c}, v{c}")
        a(f"v_lshlrev_b32 v{o}, 16, v{o}")
        a(f"v_sub_f32 v{o}, v{c}, v{o}")
        a(f"v_cvt_pk_bf16_f32 v{o}, v{c}, v{o}")
        a(f"v_mov_b32 v{o+1}, v{o}")
        a(f"buffer_store_dwordx2 {vr(o,2)}, v{vR+p}, s[4:7], s92 offen{SC}")
    a(f"{nost}:")
    next_step(1)
    a(f"{hs[2]}:")
    if 2 - HS in (0, 1):
        stamp(a, 2 * (2 - HS))
    nsig = a.label("nosig")
    a(f"v_mov_b32 v{vR}, 1")
    a(f"v_mov_b32 v{vR+1}, {CNT + 4}")
    a("s_waitcnt vmcnt(0)")
    a("s_mov_b64 exec, 1")
    a(f"ds_add_rtn_u32 v{vR+2}, v{vR+1}, v{vR}")
    a("s_mov_b64 exec, -1")
    a("s_and_b32 s23, s2, 15")
    a("s_lshl_b32 s23, s23, 8")
    a(f"s_add_u32 s23, s23, {FL_W:#x}")
    a("s_mov_b32 s38, 1")
    a("s_waitcnt lgkmcnt(0)")
    a(f"v_readfirstlane_b32 s62, v{vR+2}")
    a("s_nop 0")
    a("s_cmp_lg_u32 s62, 3")
    a(f"s_cbranch_scc1 {nsig}")
    a("s_atomic_add s38, s[14:15], s23")
    a(f"{nsig}:")
    if env("WARM", 1):
        a.c("pull the rest of the code into L2 and touch every workspace page once")
        here = a.label("here")
        a("s_getpc_b64 s[98:99]")
        a(f"{here}:")
        a("s_lshl_b32 s62, s26, 13")
        a(f"v_add_u32 v{vC}, s62, v{V_L128}")
        a(f"v_min_u32 v{vC}, {code_end} - {here}, v{vC}")
        a(f"v_lshlrev_b32 v{vC+1}, 20, v0")
        a(f"global_load_dword v{V_PF}, v{vC}, s[98:99]")
        a(f"buffer_load_dword v{V_PF}, v{vC+1}, s[4:7], 0 offen sc1")
    next_step(2)
    a(f"{hs[3]}:")
    if 3 - HS in (0, 1):
        stamp(a, 2 * (3 - HS))
    a.c("the re-tiled weights are complete once all 16 arrival counters are")
    lp0, ok0 = a.label("wpoll"), a.label("wok")
    a(f"s_cmp_lg_u32 s{S_WAVE}, 4")
    a(f"s_cbranch_scc1 {hs[6]}")
    a(f"v_and_b32 v{vS}, 15, v0")
    a(f"v_lshlrev_b32 v{vS}, 8, v{vS}")
    a(f"s_mov_b32 s23, {WS_FLAG + FL_W:#x}")
    a(f"s_mov_b32 s39, {SPIN_MAX}")
    a(f"{lp0}:")
    a(f"buffer_load_dword v{vR}, v{vS}, s[4:7], s23 offen sc1")
    a("s_sub_u32 s39, s39, 1")
    a("s_waitcnt vmcnt(0)")
    a(f"v_cmp_gt_u32 vcc, 16, v{vR}")
    a("s_cmp_eq_u32 s39, 0")
    a(f"s_cbranch_scc1 {ok0}")
    a(f"s_cbranch_vccz {ok0}")
    a("s_sleep 8")
    a(f"s_branch {lp0}")
    a(f"{ok0}:")
    a(f"v_mov_b32 v{vS}, {CNT + 8}")
    a(f"ds_write_b32 v{vS}, v{vS}")
    next_step(3)
    a(f"{fb}:")
    a(f"v_add_u32 v{vK}, {KB}, v{V_L16}")
    a(f"v_mov_b32 v{t0}, 0xff800000")
    a("s_mov_b32 s31, 64")
    lp2 = a.label("maxl")
    a(f"{lp2}:")
    a(f"ds_read_b128 {vr(KF[0],4)}, v{vK}")
    a(f"v_add_u32 v{vK}, 1024, v{vK}")
    a("s_waitcnt lgkmcnt(0)")
    a(f"{MFMA} {vr(S[0],16)}, {vr(KF[0],4)}, {vr(Q[1],4)}, 0")
    a("s_nop 15")
    for i in range(0, 16, 2):
        a(f"v_max3_f32 v{t0}, v{t0}, v{S[0]+i}, v{S[0]+i+1}")
    a("s_sub_u32 s31, s31, 1")
    a("s_cmp_lg_u32 s31, 0")
    a(f"s_cbranch_scc1 {lp2}")
    a(f"v_mov_b32 v{t1}, v{t0}")
    a("s_nop 1")
    a(f"v_permlane32_swap_b32 v{t0}, v{t1}")
    a("s_nop 1")
    a(f"v_max_f32 v{t0}, v{t0}, v{t1}")
    for i in range(16):
        a(f"v_sub_f32 v{NM[0]+i}, 0, v{t0}")
        a(f"v_mov_b32 v{OO+i}, 0")
    a(f"v_add_u32 v{vK}, {KB}, v{V_L16}")
    a(f"v_mov_b32 v{vV}, v{vV0}")
    a(f"v_lshrrev_b32 v{vInc}, {U.bit_length()-1}, v{vInc}")
    a("s_mov_b32 s31, 64")
    lp3 = a.label("pass2")
    a(f"{lp3}:")
    a(f"ds_read_b128 {vr(KF[0],4)}, v{vK}")
    a(f"ds_read_b128 {vr(VF[0],4)}, v{vV}")
    a(f"ds_read_b128 {vr(VF[0]+4,4)}, v{vV} offset:512")
    a(f"v_add_u32 v{vK}, 1024, v{vK}")
    a(f"v_add_u32 v{vV}, v{vInc}, v{vV}")
    a("s_waitcnt lgkmcnt(0)")
    a(f"{MFMA} {vr(S[0],16)}, {vr(KF[0],4)}, {vr(Q[1],4)}, {vr(NM[0],16)}")
    a("s_nop 15")
    for i in range(16):
        a(f"v_exp_f32 v{S[0]+i}, v{S[0]+i}")
    a("s_nop 0")
    for j in range(8):
        a(f"v_cvt_pk_bf16_f32 v{P+j}, v{S[0]+2*j}, v{S[0]+2*j+1}")
    a("s_nop 1")
    a(f"{MFMA} {vr(OO,16)}, {vr(VF[0],4)}, {vr(P,4)}, {vr(OO,16)}")
    a(f"{MFMA} {vr(OO,16)}, {vr(VF[0]+4,4)}, {vr(P+4,4)}, {vr(OO,16)}")
    a("s_sub_u32 s31, s31, 1")
    a("s_cmp_lg_u32 s31, 0")
    a("s_nop 7")
    a(f"s_cbranch_scc1 {lp3}")
    a("s_nop 15")
    a(f"v_rcp_f32 v{t0}, v{OO+8}")
    a("s_nop 0")
    a(f"s_branch {fin}")
    a(f"{endl}:")
    return R.n


def gen_main(a):
    name = NAME + "_kernel"
    kernel_header(a, name)
    done = a.label("done")
    a("s_cmp_ge_u32 s2, 256")
    a(f"s_cbranch_scc1 {done}")
    a(f"s_load_dwordx4 s[64:67], s[0:1], {KA_X}")
    a(f"s_load_dwordx2 s[68:69], s[0:1], {KA_WO}")
    a(f"s_load_dwordx4 s[72:75], s[0:1], {KA_WG}")
    a(f"s_load_dwordx2 s[76:77], s[0:1], {KA_WD}")
    a(f"s_load_dwordx2 s[70:71], s[0:1], {KA_OUT}")
    a(f"s_load_dwordx2 s[94:95], s[0:1], {KA_DBG}")
    a(f"s_load_dwordx2 s[12:13], s[0:1], {KA_WS}")
    if env("CTOUCH", 1):
        a.c("pull the first 8 KB of code into L2 (one 128-byte line per 8 lanes of the workgroup)")
        a("s_getpc_b64 s[98:99]")
        a(f"v_lshlrev_b32 v{V_FREE}, 4, v0")
        a(f"global_load_dword v{V_PF}, v{V_FREE}, s[98:99]")
    a("v_lshrrev_b32 v1, 6, v0")
    a("v_and_b32 v0, 63, v0")
    a(f"v_readfirstlane_b32 s{S_WAVE}, v1")
    a(f"s_and_b32 s{S_XCD}, s2, 7")
    a(f"s_lshr_b32 s{S_IDX}, s2, 3")
    a(f"s_and_b32 s{S_TT128}, s{S_IDX}, 3")
    a(f"s_lshr_b32 s19, s{S_XCD}, 1")
    a("s_lshl_b32 s19, s19, 2")
    a(f"s_add_u32 s{S_TT128}, s{S_TT128}, s19")
    a(f"s_lshl_b32 s{S_TT128}, s{S_TT128}, 2")
    a(f"s_lshr_b32 s{S_NT128}, s{S_IDX}, 2")
    a(f"s_and_b32 s19, s{S_XCD}, 1")
    a("s_lshl_b32 s19, s19, 3")
    a(f"s_add_u32 s{S_NT128}, s{S_NT128}, s19")
    a(f"s_and_b32 s{S_TT64}, s{S_IDX}, 3")
    a(f"s_lshl_b32 s19, s{S_XCD}, 2")
    a(f"s_add_u32 s{S_TT64}, s{S_TT64}, s19")
    a(f"s_lshl_b32 s{S_TT64}, s{S_TT64}, 1")
    a(f"s_lshr_b32 s{S_NT64}, s{S_IDX}, 2")
    a(f"s_mov_b32 s{S_IT}, 0")
    a(f"s_mov_b32 s{S_BASE}, {WS_IT0:#x}")
    a(f"s_mov_b32 s{S_FL}, 0")
    a(f"s_mov_b32 s{S_SIG}, 0")
    a(f"v_lshlrev_b32 v{V_L16}, 4, v0")
    a(f"v_and_b32 v{V_ST}, 31, v0")
    a(f"v_lshlrev_b32 v{V_ST}, 3, v{V_ST}")
    a(f"v_lshrrev_b32 v1, 5, v0")
    a(f"v_lshl_add_u32 v{V_ST}, v1, 2, v{V_ST}")
    a(f"v_lshlrev_b32 v{V_L4}, 2, v0")
    a(f"v_lshlrev_b32 v{V_L128}, 7, v0")
    if STAMP:
        a(f"v_mov_b32 v{V_STAMP}, 0")
        a(f"v_mov_b32 v{V_STAMP+1}, 0")
    stamp(a, 31)
    att, fin = a.label("att"), a.label("fin")
    nv = [first_phase(a, att, done)]
    a(f"{att}:")
    nv.append(attn_phase(a, 5, done))
    S = Stream(a)
    if GMX == 4:
        a(f"s_mov_b32 s{S_TTG}, s{S_TT128}")
        a(f"s_mov_b32 s{S_NTG}, s{S_NT128}")
    else:
        a(f"s_and_b32 s{S_TTG}, s{S_IDX}, 1")
        a(f"s_lshl_b32 s19, s{S_XCD}, 1")
        a(f"s_add_u32 s{S_TTG}, s{S_TTG}, s19")
        a(f"s_lshl_b32 s{S_TTG}, s{S_TTG}, 2")
        a(f"s_lshr_b32 s{S_NTG}, s{S_IDX}, 1")
    nv.append(gemm_phase(a, Cfg(name="oproj", kind="res", LB=5 * RB, XB=0, stream=S, PRE1=4, PRE2=0, PRE3=1, NW=2, NT=2, KST=32, NR=4, RA=16, N1=2, N2=2, N3=9, N4=9, BS=4, I0=8, PS=2, STS=0,
                                swap=[0, 0], ABUF=B_O, WBASE=WS_WO, WNT=64 * 1024, OUT=B_X1, STOUT=B_ST1,
                                FIN=FL_A, lsig=True, NEED=32, FOUT=FL_O, final=False, sb=12,
                                staged=[], stage_next=None, order=None)))
    nv.append(mlp_phase(a, Cfg(name="down", stream=S, OUT=B_XIN + IT_STRIDE, STOUT=B_STIN + IT_STRIDE, final=True, sb=22)))
    a(f"s_cmp_eq_u32 s{S_IT}, 1")
    a(f"s_cbranch_scc1 {fin}")
    a(f"s_mov_b32 s{S_IT}, 1")
    a(f"s_add_u32 s{S_BASE}, s{S_BASE}, {IT_STRIDE:#x}")
    a(f"s_add_u32 s{S_FL}, s{S_FL}, {FL_IT:#x}")
    nv.append(gemm_phase(a, Cfg(name="qkv", kind="qkv", LB=0, XB=1, stream=None, NW=3, NT=3, KST=32, NR=7, RA=24, N1=2, N2=5, N3=9, N4=9, BS=8, I0=12, PS=1, STS=10,
                                swap=[0, 0, 1], ABUF=B_XIN, WBASE=WS_WQKV, WNT=99 * 1024, STIN=B_STIN,
                                FIN=FL_D - FL_IT + (1 << 32), lsig=False, NEED=16, FOUT=FL_Q, sb=0,
                                staged=[], stage_next=None, order=None)))
    a(f"s_branch {att}")
    a(f"{fin}:")
    if STAMP:
        a("s_waitcnt vmcnt(0)")
        a(f"s_mov_b32 s{S_IT}, 1")
        stamp(a, 31)
        stamp_flush(a)
        if env("DBGOUT", 0):
            nd = a.label("nodbg")
            a("s_lshl_b32 s54, s2, 3")
            a(f"s_add_u32 s54, s54, s{S_WAVE}")
            a(f"s_cmp_lg_u32 s54, {env('DBGOUT', 0)}")
            a(f"s_cbranch_scc1 {nd}")
            idx = [31, 27, 28, 29, 30, 8, 9, 13, 18, 23, 33, 40, 41, 50, 55, 63]
            a(f"v_readlane_b32 s55, v{V_STAMP}, 31")
            for i, k in enumerate(idx):
                a(f"v_readlane_b32 s54, v{V_STAMP}, {k}")
                a("s_nop 3")
                a("s_sub_u32 s54, s54, s55")
                a(f"v_writelane_b32 v{V_FREE}, s54, {i}")
            a("s_mov_b64 exec, 0xfffe")
            a(f"global_store_dword v{V_L4}, v{V_FREE}, s[94:95]")
            a(f"{nd}:")
    a(f"{done}:")
    a("s_endpgm")
    print("phase vgprs", nv, file=sys.stderr)
    nv.append(V_TF + 58)
    assert max(nv) <= 256
    return (name, max(nv), 256, 512, LDS_MAX)


HEADER = open("cdna_kernels/" + NAME + ".s.ref").read().split("; Override launch")[0]

def main(out):
    a = Asm()
    k, v, nwg, blk, lds = gen_main(a)
    txt = HEADER
    if env("ASLIST", 0):
        txt += f"; @launch kernel={k} grid=({nwg},1,1) block=({blk},1,1) lds={lds}\n"
    else:
        txt += f"; @launch grid=({nwg},1,1) block=({blk},1,1) lds={lds}\n"
    txt += '.amdgcn_target "amdgcn-amd-amdhsa--gfx950"\n.text\n'
    txt += a.text()
    txt += '.section .rodata,"a"\n'
    txt += kernel_desc(k, v, 102)
    print(f"{k}: vgpr={v} lds={lds}", file=sys.stderr)
    open(out, "w").write(txt)

if __name__ == "__main__":
    main(sys.argv[1] if len(sys.argv) > 1 else "v2.s")
```

```python
import sys, struct, math, os
from asmlib import *

NAME = "interleave_layers__mha_block__glu_gated_bilinear__prompt"
def env(k, d):
    return int(os.environ.get(k, d))

WS_WQKV = 0x000000
WS_WO   = 0x200000
WS_WGU  = 0x300000
WS_WD   = 0x700000
WS_FLAG = 0x8C0000
FL_IT = 0xC000
FL_Q, FL_W, FL_G, FL_T = 0x0, 0x1000, 0x4000, 0x8000
FL_A, FL_O, FL_D = FL_T, FL_T + 4, FL_T + 8
WS_IT0 = 0xA00000
IT_STRIDE = 0x1400000
B_Q, B_K, B_V, B_O, B_X1, B_XIN, B_H, B_ST1, B_STIN = (
    0x0, 0x200000, 0x400000, 0x600000, 0x800000, 0xA00000, 0xC00000, 0x1300000, 0x1340000)
WS_END = WS_IT0 + 2 * IT_STRIDE
WS_STAMP = WS_END
LDS_MAX = 160 * 1024

KA_X, KA_WQKV, KA_WO, KA_BX, KA_WG, KA_WU, KA_WD, KA_OUT, KA_DBG, KA_WS = [8 * i for i in range(10)]

def f32bits(x):
    return struct.unpack("<I", struct.pack("<f", x))[0]

QSCALE = 0.25 * math.log2(math.e)
MFMA = "v_mfma_f32_32x32x16_bf16"
STAMP = os.environ.get("STAMP", "") != ""
SC = " sc1"
SPIN_MAX = 1 << 18
PASSES = [int(x) for x in os.environ.get("PASSES", "4,2,1").split(",")]
PFIRST = [sum(PASSES[:p]) for p in range(len(PASSES))]
assert sum(PASSES) == 7

def pass_of(a, si, sf, sw):
    a(f"s_mov_b32 s{sf}, 0")
    a(f"s_mov_b32 s{sw}, {PASSES[0]}")
    for p in range(1, len(PASSES)):
        a(f"s_cmp_ge_u32 s{si}, {PFIRST[p]}")
        a(f"s_cselect_b32 s{sf}, {PFIRST[p]}, s{sf}")
        a(f"s_cselect_b32 s{sw}, {PASSES[p]}, s{sw}")
GMX = env('GMX', 4)
PT = env('PT', 0)

def srd(a, d, lo, hi, nbytes):
    a(f"s_mov_b32 s{d}, s{lo}")
    a(f"s_and_b32 s{d+1}, s{hi}, 0xffff")
    a(f"s_mov_b32 s{d+2}, {nbytes:#x}")
    a(f"s_mov_b32 s{d+3}, 0x20000")

S_WAVE, S_XCD, S_IDX, S_IT, S_BASE, S_FL = 16, 17, 18, 40, 41, 42
S_TT64, S_NT64, S_TT128, S_NT128 = 43, 44, 45, 46
S_TTG, S_NTG, S_TCH = 68, 69, 47
S_ARR, S_SIG = 47, 48
LDS_CNT = LDS_MAX - 16
V_L16, V_ST, V_L4 = 2, 3, 1
V_RES = 4
V_STAMP = 12
V_PF, V_L128 = 14, 15
V_FREE = 16

def stamp(a, i):
    if STAMP:
        a("s_memrealtime s[56:57]")
        a("s_memtime s[58:59]")
        a(f"s_lshl_b32 s60, s{S_IT}, 5")
        a(f"s_add_u32 s60, s60, {i}")
        a("s_waitcnt lgkmcnt(0)")
        a("s_mov_b32 s61, m0")
        a("s_mov_b32 m0, s60")
        a("s_nop 0")
        a(f"v_writelane_b32 v{V_STAMP}, s56, m0")
        a(f"v_writelane_b32 v{V_STAMP+1}, s58, m0")
        a("s_mov_b32 m0, s61")

def stamp_flush(a, which=0):
    if STAMP:
        a("s_lshl_b32 s60, s2, 3")
        a(f"s_add_u32 s60, s60, s{S_WAVE}")
        a("s_lshl_b32 s60, s60, 9")
        a(f"s_add_u32 s60, s60, {WS_STAMP + which*0x100000:#x}")
        a(f"s_mov_b32 s6, {WS_STAMP + 0x200000:#x}")
        a(f"buffer_store_dword v{V_STAMP}, v{V_L4}, s[4:7], s60 offen")
        a(f"buffer_store_dword v{V_STAMP+1}, v{V_L4}, s[4:7], s60 offen offset:256")

def handoff(a, soff, need):
    a("s_mov_b32 s38, 1")
    a(f"s_atomic_add s38, s[14:15], s{S_SIG}")
    poll(a, soff, need)

def poll(a, soff, need):
    lp, ok = a.label("poll"), a.label("pok")
    a(f"s_mov_b32 s39, {SPIN_MAX}")
    a(f"{lp}:")
    a("s_mov_b32 s49, 0")
    a(f"s_atomic_add s49, s[14:15], s{soff} glc")
    a("s_sub_u32 s39, s39, 1")
    a("s_waitcnt lgkmcnt(0)")
    a(f"s_cmp_ge_u32 s49, {need}")
    a(f"s_cbranch_scc1 {ok}")
    if env("POLL_SLEEP", 1):
        a(f"s_sleep {env('POLL_SLEEP', 1)}")
    a("s_cmp_lg_u32 s39, 0")
    a(f"s_cbranch_scc1 {lp}")
    a(f"{ok}:")


V_TF = 176

def first_phase(a, end_label, code_end):
    XB_ = 528
    XT = 64 * XB_
    W0 = 2 * XT
    NSW, WCH, NC = 7, 12288, 16
    assert W0 + NSW * WCH <= LDS_MAX
    FS = 27
    NPS = env("K1_NPS", 2)
    R = Regs(V_FREE)
    vD, vT0, vT1, vXW = R.alloc(), R.alloc(), R.alloc(), R.alloc()
    X = R.alloc(32)
    ST = R.alloc(16)
    U = R.alloc(16)
    vD2, vZ = R.alloc(), R.alloc()
    assert X == V_FREE + 4
    a(f"v_lshrrev_b32 v{vT0}, 3, v0")
    a(f"v_bfe_u32 v{vT1}, v0, 4, 1")
    a(f"v_lshlrev_b32 v{vT1}, 2, v{vT1}")
    a(f"v_and_b32 v{vD2}, 7, v0")
    a(f"v_xor_b32 v{vD2}, v{vD2}, v{vT1}")
    a(f"v_lshlrev_b32 v{vD2}, 4, v{vD2}")
    a(f"v_mul_u32_u24 v{vD}, 3072, v{vT0}")
    a(f"v_add_u32 v{vD}, v{vD}, v{vD2}")
    a(f"s_and_b32 s50, s{S_WAVE}, 3")
    a("s_waitcnt lgkmcnt(0)")
    srd(a, 8, 64, 65, 2048 * 512 * 2)
    srd(a, 4, 12, 13, WS_END)
    a.c("wave 7 of the first workgroups resets 64 hand-off counters each")
    NZ = 2 * FL_IT // 16384
    nz = a.label("nozero")
    a(f"s_sub_u32 s47, 7, s{S_WAVE}")
    a("s_lshl_b32 s47, s47, 8")
    a("s_add_u32 s47, s47, s2")
    a(f"s_cmp_ge_u32 s47, {NZ}")
    a(f"s_cbranch_scc1 {nz}")
    a(f"v_lshlrev_b32 v{ST}, 8, v0")
    for i in range(4):
        a(f"v_mov_b32 v{ST+4+i}, 0")
    a("s_lshl_b32 s54, s2, 14")
    a(f"s_add_u32 s54, s54, {WS_FLAG:#x}")
    a(f"buffer_store_dwordx4 {vr(ST+4,4)}, v{ST}, s[4:7], s54 offen sc1")
    a(f"{nz}:")
    TOUCH = env("TOUCH", 1)
    a(f"s_add_u32 s14, s12, {WS_FLAG:#x}")
    a("s_addc_u32 s15, s13, 0")
    a("s_mov_b32 s49, 0x3f803f80")
    a(f"s_lshr_b32 s55, s{S_WAVE}, 2")
    a(f"s_mul_i32 s39, s55, {XT}")
    a("s_lshl_b32 s54, s50, 7")
    a("s_add_u32 s39, s39, s54")
    a(f"v_mul_u32_u24 v{vXW}, {XB_}, v0")
    a(f"v_add_u32 v{vXW}, s39, v{vXW}")
    a(f"s_mul_i32 s62, s50, {8*3072}")
    a(f"s_lshl_b32 s54, s{S_NT64}, 7")
    a("s_add_u32 s62, s62, s54")
    a(f"s_mul_i32 s54, s55, {NPS*32*3072}")
    a("s_add_u32 s62, s62, s54")
    a("s_lshl_b32 s63, s50, 10")
    a(f"s_add_u32 s63, s63, {W0}")
    a(f"s_mul_i32 s54, s55, {NPS*WCH}")
    a("s_add_u32 s48, s63, s54")
    def w_instr(slot, seg, base=63):
        t = f"s_add_u32 s54, s{base}, {slot*WCH + seg*3072}\ns_mov_b32 m0, s54\ns_nop 0\n"
        t += f"buffer_load_dwordx4 v{vD}, s[20:23], s62 offen offset:{seg*1024} lds"
        if seg == 2:
            t += f"\ns_add_u32 s62, s62, {32*3072}"
        return t
    dma = [w_instr(c, sg, 48) for c in range(NPS) for sg in range(3)]
    ops = []
    for r in range(8):
        ops.append(f"v_mov_b32 v{ST+r}, 0")
        ops.append(f"v_mov_b32 v{ST+8+r}, 0")
    pre = len(ops)
    for r in range(8):
        ops.append(("wait", r))
        for i in range(4):
            ops.append(f"v_dot2c_f32_bf16 v{ST+r}, s49, v{X+4*r+i}")
            ops.append(f"v_dot2c_f32_bf16 v{ST+8+r}, v{X+4*r+i}, v{X+4*r+i}")
    ops.append("s_nop 2")
    for b in (ST, ST + 8):
        for r in range(4):
            ops.append(f"v_permlane32_swap_b32 v{b+r}, v{b+r+4}")
    for b in (ST, ST + 8):
        for r in range(4):
            ops.append(f"v_add_f32 v{b+r}, v{b+r}, v{b+r+4}")
    ops.append("s_nop 1")
    for b in (ST, ST + 8):
        for r in range(2):
            ops.append(f"v_permlane16_swap_b32 v{b+r}, v{b+r+2}")
    for b in (ST, ST + 8):
        for r in range(2):
            ops.append(f"v_add_f32 v{b+r}, v{b+r}, v{b+r+2}")
    for d in ("row_ror:8", "row_ror:4", "quad_perm:[2,3,0,1]", "quad_perm:[1,0,3,2]"):
        for v in (ST, ST + 1, ST + 8, ST + 9):
            ops.append(f"v_add_f32_dpp v{v}, v{v}, v{v} {d} row_mask:0xf bank_mask:0xf")
    for r in range(2):
        ops.append(f"v_mul_f32 v{ST+r}, {f32bits(-1.0/512):#x}, v{ST+r}")
        ops.append(f"v_mul_f32 v{ST+8+r}, {f32bits(1.0/512):#x}, v{ST+8+r}")
    for r in range(2):
        ops.append(f"v_fma_f32 v{ST+8+r}, -v{ST+r}, v{ST+r}, v{ST+8+r}")
    for r in range(2):
        ops.append(f"v_max_f32 v{ST+8+r}, 0, v{ST+8+r}")
    for r in range(2):
        ops.append(f"v_add_f32 v{ST+8+r}, {f32bits(1e-5):#x}, v{ST+8+r}")
    for r in range(2):
        ops.append(f"v_rsq_f32 v{ST+8+r}, v{ST+8+r}")
    ops.append("s_nop 0")
    for r in range(2):
        ops.append(f"v_mul_f32 v{ST+r}, v{ST+r}, v{ST+8+r}")
    ops.append("s_nop 0")
    for r in range(8):
        ops.append(f"v_readlane_b32 s{78+2*r}, v{ST+8+(r&1)}, {16*(r>>1)}")
        ops.append(f"v_readlane_b32 s{79+2*r}, v{ST+(r&1)}, {16*(r>>1)}")
    for r in range(8):
        u = U + 8 * (r & 1)
        for i in range(4):
            ops.append(f"v_lshlrev_b32 v{u+2*i}, 16, v{X+4*r+i}")
            ops.append(f"v_and_b32 v{u+2*i+1}, 0xffff0000, v{X+4*r+i}")
        for i in range(4):
            ops.append(f"v_pk_fma_f32 {vr(u+2*i,2)}, {vr(u+2*i,2)}, s[{78+2*r}:{79+2*r}], s[{78+2*r}:{79+2*r}] op_sel:[0,0,1] op_sel_hi:[1,0,1]")
        for i in range(4):
            ops.append(f"v_cvt_pk_bf16_f32 v{X+4*r+i}, v{u+2*i}, v{u+2*i+1}")
        ops.append(f"ds_write_b128 v{vXW}, {vr(X+4*r,4)} offset:{r*16}")
    npre = env("K1_PRE", 2)
    issued = TOUCH
    for _ in range(npre):
        a(dma.pop(0)); issued += 1
    step_ = env("K1_STEP", 24)
    k = 0
    for j, op in enumerate(ops):
        if isinstance(op, tuple):
            a(f"s_waitcnt vmcnt({7 - op[1] + issued})")
        else:
            a(op)
        if j >= pre + env("K1_SKIP", 40) and dma:
            k += 1
            if k % step_ == 0:
                a(dma.pop(0)); issued += 1
    assert not dma
    comp = a.label("k1_comp")
    a(f"s_cmp_lt_u32 s{S_WAVE}, 4")
    a(f"s_cbranch_scc1 {comp}")
    DW = env("K1_DW", 5)
    assert 2 * NPS <= DW <= NSW - 2
    for c in range(2 * NPS, DW):
        for sg in range(3):
            a(w_instr(c, sg))
    lp = a.label("k1ld")
    a(f"s_add_u32 s48, s63, {DW*WCH}")
    a(f"s_add_u32 s39, s63, {NSW*WCH}")
    a(f"v_mov_b32 v{vT1}, 0")
    stamp(a, FS)
    a("s_waitcnt lgkmcnt(0)")
    nz = a.label("noflag")
    a(f"s_cmp_ge_u32 s47, {NZ}")
    a(f"s_cbranch_scc1 {nz}")
    a(f"s_waitcnt vmcnt({(DW - NPS)*3})")
    a("s_mov_b32 s38, 1")
    a("s_atomic_add s38, s[94:95], 0x0")
    a(f"{nz}:")
    a(f"s_mov_b32 s47, {NC-DW}")
    a(f"{lp}:")
    a(f"s_waitcnt vmcnt({(DW-1)*3})")
    a("s_barrier")
    for sg in range(3):
        a(w_instr(0, sg, 48))
    a(f"s_add_u32 s48, s48, {WCH}")
    a("s_cmp_eq_u32 s48, s39")
    a("s_cselect_b32 s48, s63, s48")
    a("s_sub_u32 s47, s47, 1")
    a("s_cmp_lg_u32 s47, 0")
    a(f"s_cbranch_scc1 {lp}")
    a(f"global_load_dword v{vZ}, v{vT1}, s[94:95] sc1")
    for c in range(NC - DW, NC):
        a(f"s_waitcnt vmcnt({(NC - 1 - c)*3 + 1})")
        a("s_barrier")
    stamp(a, FS + 2)
    a.c("the counters must have been reset before this workgroup touches them")
    lp, ok = a.label("zpoll"), a.label("zok")
    a(f"s_mov_b32 s39, {SPIN_MAX}")
    a("s_waitcnt vmcnt(0)")
    a(f"{lp}:")
    a(f"v_cmp_gt_u32 vcc, {NZ}, v{vZ}")
    a("s_sub_u32 s39, s39, 1")
    a("s_cmp_eq_u32 s39, 0")
    a(f"s_cbranch_scc1 {ok}")
    a(f"s_cbranch_vccz {ok}")
    a(f"global_load_dword v{vZ}, v{vT1}, s[94:95] sc1")
    a("s_waitcnt vmcnt(0)")
    a(f"s_branch {lp}")
    a(f"{ok}:")
    a("s_barrier")
    a(f"s_branch {end_label}")
    a(f"{comp}:")
    R2 = Regs(V_FREE + 4)
    vA, vW0, vW = R2.alloc(), R2.alloc(), R2.alloc()
    acc = [R2.alloc(16) for _ in range(3)]
    sets = [(R2.alloc(4), [R2.alloc(4) for _ in range(3)]) for _ in range(2)]
    a("s_waitcnt lgkmcnt(0)")
    a(f"s_and_b32 s24, s{S_WAVE}, 1")
    a(f"s_lshr_b32 s25, s{S_WAVE}, 1")
    a(f"s_mul_i32 s26, s24, {XT}")
    a(f"v_lshrrev_b32 v{vT0}, 5, v0")
    a(f"v_mul_u32_u24 v{vA}, {XB_}, v{vT0}")
    a(f"v_and_b32 v{vT1}, 31, v0")
    a(f"v_lshl_add_u32 v{vA}, v{vT1}, 4, v{vA}")
    a(f"v_add_u32 v{vA}, s26, v{vA}")
    a(f"v_bfe_u32 v{vT1}, v0, 2, 2")
    a(f"v_lshl_add_u32 v{vW0}, v{vT0}, 3, v{vT1}")
    a(f"v_lshlrev_b32 v{vW0}, 7, v{vW0}")
    a(f"v_and_b32 v{vT0}, 1, v0")
    a(f"v_bfe_u32 v{vT1}, v0, 1, 1")
    a(f"v_lshl_add_u32 v{vT0}, v{vT0}, 1, v{vT1}")
    a(f"v_lshl_add_u32 v{vW0}, v{vT0}, 3, v{vW0}")
    a(f"v_bfe_u32 v{vT0}, v0, 4, 1")
    a(f"v_lshl_add_u32 v{vW0}, v{vT0}, 5, v{vW0}")
    a(f"v_bfe_u32 v{vT0}, v0, 3, 1")
    a(f"v_xor_b32 v{vT0}, s25, v{vT0}")
    a(f"v_lshl_add_u32 v{vW0}, v{vT0}, 6, v{vW0}")
    a(f"v_add_u32 v{vW0}, {W0}, v{vW0}")
    a(f"v_mov_b32 v{vW}, v{vW0}")
    for t in range(3):
        for i in range(16):
            a(f"v_mov_b32 v{acc[t]+i}, 0")
    a("s_mov_b32 s37, 0")

    def read_list(ks, par):
        xa, wfs = sets[par]
        out = [f"ds_read_b128 {vr(xa,4)}, v{vA} offset:{ks*2*XB_}"]
        for t in range(3):
            for jj in range(2):
                out.append(f"ds_read_b64_tr_b16 {vr(wfs[t]+2*jj,2)}, v{vW} offset:{t*4096 + ks*2048 + jj*512}")
        return out

    def step(par, nxt, boundary, adv=False):
        xa, wfs = sets[par]
        issued = 0
        plan = [3, 5, 7]
        if boundary:
            a("s_barrier")
        for t in range(3):
            while issued < min(plan[t], len(nxt)):
                a(nxt[issued]); issued += 1
            a(f"s_waitcnt lgkmcnt({issued + 7 - (3 + 2*t)})")
            if t == 2:
                a(f"{MFMA} {vr(acc[t],16)}, {vr(xa,4)}, {vr(wfs[t],4)}, {vr(acc[t],16)}")
            else:
                a(f"{MFMA} {vr(acc[t],16)}, {vr(wfs[t],4)}, {vr(xa,4)}, {vr(acc[t],16)}")
        if adv:
            a(f"s_add_u32 s37, s37, {WCH}")
            a(f"s_cmp_eq_u32 s37, {NSW*WCH}")
            a("s_cselect_b32 s37, 0, s37")
            a(f"v_add_u32 v{vW}, s37, v{vW0}")
            a(f"v_add_u32 v{vA}, {4*XB_}, v{vA}")

    a("s_waitcnt vmcnt(0)")
    stamp(a, FS)
    a("s_barrier")
    stamp(a, FS + 1)
    for r in read_list(0, 0):
        a(r)
    lp = a.label("k1loop")
    a(f"s_mov_b32 s35, {NC-1}")
    a(f"{lp}:")
    step(0, read_list(1, 1), False, True)
    step(1, read_list(0, 0), True)
    a("s_sub_u32 s35, s35, 1")
    a("s_cmp_lg_u32 s35, 0")
    a(f"s_cbranch_scc1 {lp}")
    step(0, read_list(1, 1), False)
    step(1, [], False)
    stamp(a, FS + 2)
    ot = sets[0][0]
    a(f"s_lshl_b32 s26, s{S_NT64}, 1")
    a("s_add_u32 s26, s26, s25")
    a("s_lshl_b32 s26, s26, 17")
    a(f"s_add_u32 s27, s{S_TT64}, s24")
    a("s_lshl_b32 s27, s27, 10")
    a("s_add_u32 s26, s26, s27")
    a(f"v_bfe_u32 v{vT0}, v0, 4, 1")
    a(f"v_lshlrev_b32 v{vT0}, 16, v{vT0}")
    a(f"v_lshrrev_b32 v{vT1}, 5, v0")
    a(f"v_lshl_add_u32 v{vT0}, v{vT1}, 8, v{vT0}")
    a(f"v_and_b32 v{vT1}, 15, v0")
    a(f"v_lshl_add_u32 v{vT0}, v{vT1}, 4, v{vT0}")
    a(f"s_mov_b32 s28, {f32bits(QSCALE):#x}")
    a("s_mov_b32 s29, s28")
    K1SC = SC
    a(f"s_lshl_b32 s{S_SIG}, s{S_NT64}, 9")
    a(f"s_add_u32 s{S_SIG}, s{S_SIG}, {FL_Q:#x}")
    for t, base in ((0, B_Q), (1, B_K), (2, B_V)):
        for hh in range(2):
            o = ot + 4 * (2 * t + hh)
            for i in range(4):
                r = acc[t] + 8 * hh + 2 * i
                if t == 0:
                    a(f"v_pk_mul_f32 {vr(r,2)}, {vr(r,2)}, s[28:29]")
                a(f"v_cvt_pk_bf16_f32 v{o+i}, v{r}, v{r+1}")
            if t < 2:
                a(f"s_add_u32 s27, s26, {WS_IT0 + base + hh*65536:#x}")
                a(f"buffer_store_dwordx4 {vr(o,4)}, v{V_L16}, s[4:7], s27 offen{K1SC}")
            else:
                a(f"s_add_u32 s27, s26, {WS_IT0 + base:#x}")
                a(f"buffer_store_dwordx4 {vr(o,4)}, v{vT0}, s[4:7], s27 offen offset:{hh*512}{K1SC}")
    a("s_barrier")
    stamp(a, FS + 3)
    a(f"s_branch {end_label}")
    return max(R.n, R2.n)


class Cfg:
    def __init__(self, **kw):
        self.__dict__.update(kw)
        for k in ("NR", "RA", "N1", "N2", "N3", "N4", "BS", "I0", "PS", "STS", "PRE1", "PRE2", "PRE3", "XB"):
            e = os.environ.get(self.name.upper() + "_" + k)
            if e:
                setattr(self, k, int(e))

def stats_ops(tmp, xc, vRstd):
    f = []
    n = 8
    while n > 1:
        n //= 2
        for p in range(n):
            f.append(f"v_add_f32 v{tmp+2*p}, v{tmp+2*p}, v{tmp+2*(p+n)}")
            f.append(f"v_add_f32 v{tmp+2*p+1}, v{tmp+2*p+1}, v{tmp+2*(p+n)+1}")
    f.append(f"v_mov_b32 v{tmp+2}, v{tmp}")
    f.append(f"v_mov_b32 v{tmp+3}, v{tmp+1}")
    f.append("s_nop 1")
    f.append(f"v_permlane32_swap_b32 v{tmp}, v{tmp+2}")
    f.append(f"v_permlane32_swap_b32 v{tmp+1}, v{tmp+3}")
    f.append(f"v_add_f32 v{tmp}, v{tmp}, v{tmp+2}")
    f.append(f"v_add_f32 v{tmp+1}, v{tmp+1}, v{tmp+3}")
    f.append(f"v_mul_f32 v{tmp}, {f32bits(-1.0/512):#x}, v{tmp}")
    f.append(f"v_mul_f32 v{tmp+1}, {f32bits(1.0/512):#x}, v{tmp+1}")
    f.append(f"v_fma_f32 v{tmp+1}, -v{tmp}, v{tmp}, v{tmp+1}")
    f.append(f"v_max_f32 v{tmp+1}, 0, v{tmp+1}")
    f.append(f"v_add_f32 v{tmp+1}, {f32bits(1e-5):#x}, v{tmp+1}")
    f.append(f"v_rsq_f32 v{vRstd}, v{tmp+1}")
    f.append(f"v_cvt_pk_bf16_f32 v{xc}, v{tmp}, v{tmp}")
    f.append(f"v_lshlrev_b32 v{tmp+2}, 16, v{xc}")
    f.append(f"v_sub_f32 v{tmp+2}, v{tmp}, v{tmp+2}")
    f.append(f"v_cvt_pk_bf16_f32 v{xc+1}, v{tmp+2}, v{tmp+2}")
    f.append(f"v_mov_b32 v{xc+2}, v{xc}")
    f.append(f"v_mov_b32 v{xc+3}, v{xc+1}")
    return f

def res_epilogue(a, g, c0, c1, tmp, end):
    SB = g.sb
    fin = a.label("final")
    a("s_lshl_b32 s26, s31, 15")
    a("s_lshl_b32 s27, s33, 11")
    a("s_add_u32 s26, s26, s27")
    a(f"s_add_u32 s26, s26, s{S_BASE}")
    a(f"s_add_u32 s26, s26, {g.OUT:#x}")
    a("s_lshl_b32 s28, s31, 12")
    a("s_lshl_b32 s29, s33, 8")
    a("s_add_u32 s28, s28, s29")
    for i in range(8):
        if i % 2 == 0:
            a(f"s_waitcnt lgkmcnt({3 - i//2})")
        a(f"v_pk_add_f32 {vr(c0+2*i,2)}, {vr(c0+2*i,2)}, {vr(c1+2*i,2)}")
    for i in range(8):
        a(f"v_cvt_pk_bf16_f32 v{V_RES+i}, v{c0+2*i}, v{c0+2*i+1}")
    if g.final:
        a(f"s_cmp_eq_u32 s{S_IT}, 1")
        a(f"s_cbranch_scc1 {fin}")
    a(f"buffer_store_dwordx4 {vr(V_RES,4)}, v{V_L16}, s[4:7], s26 offen{SC}")
    a(f"buffer_store_dwordx4 {vr(V_RES+4,4)}, v{V_L16}, s[4:7], s26 offen offset:1024{SC}")
    a(f"s_mov_b32 s{S_TCH}, s26")
    q = tmp
    a(f"v_pk_mul_f32 v[{q}:{q+1}], v[{c0}:{c0+1}], v[{c0}:{c0+1}]")
    for i in range(1, 8):
        a(f"v_pk_fma_f32 v[{q}:{q+1}], v[{c0+2*i}:{c0+2*i+1}], v[{c0+2*i}:{c0+2*i+1}], v[{q}:{q+1}]")
        a(f"v_pk_add_f32 v[{c0}:{c0+1}], v[{c0}:{c0+1}], v[{c0+2*i}:{c0+2*i+1}]")
    a(f"v_add_f32 v{q+2}, v{c0}, v{c0+1}")
    a(f"v_add_f32 v{q+3}, v{q}, v{q+1}")
    a(f"s_add_u32 s28, s28, s{S_BASE}")
    a(f"s_add_u32 s28, s28, {g.STOUT:#x}")
    a(f"v_permlane32_swap_b32 v{q+2}, v{q+3}")
    a("s_nop 0")
    a(f"v_add_f32 v{q+2}, v{q+2}, v{q+3}")
    a(f"buffer_store_dword v{q+2}, v{V_ST}, s[4:7], s28 offen{SC}")
    a("s_barrier")
    stamp(a, SB + 3)
    if g.final:
        a(f"s_branch {end}")
        a(f"{fin}:")
        srd(a, 8, 70, 71, 2048 * 512 * 2)
        a(f"v_and_b32 v{tmp}, 31, v0")
        a(f"v_lshlrev_b32 v{tmp}, 10, v{tmp}")
        a(f"v_lshrrev_b32 v{tmp+1}, 5, v0")
        a(f"v_lshl_add_u32 v{tmp}, v{tmp+1}, 4, v{tmp}")
        a("s_lshl_b32 s26, s31, 15")
        a("s_lshl_b32 s27, s33, 6")
        a("s_add_u32 s26, s26, s27")
        a(f"buffer_store_dwordx4 {vr(V_RES,4)}, v{tmp}, s[8:11], s26 offen")
        a(f"buffer_store_dwordx4 {vr(V_RES+4,4)}, v{tmp}, s[8:11], s26 offen offset:32")
        a("s_barrier")
        stamp(a, SB + 3)

RB = 16384
VS = 32
NPRE = env('NPRE', 5)


class Stream:
    NR, NRND, NREG = 10, 29, 14
    def __init__(self, a):
        self.a = a
        self.nxt = 0
        self.vm, self.lg = [], []
        self.reg = {}
        self.free = list(range(self.NREG - NPRE))
        self.last = self.NRND - NPRE
        for i in range(NPRE):
            self.reg[self.last + i] = self.NREG - NPRE + i
        self.maxreg = self.NREG
    def setup(self):
        a = self.a
        a(f"s_and_b32 s19, s{S_WAVE}, 3")
        a("s_lshl_b32 s25, s19, 12")
        a(f"s_mul_i32 s20, s{S_NTG}, {231*1024}")
        a("s_add_u32 s20, s20, s25")
        a(f"s_add_u32 s20, s20, {WS_WGU:#x}")
        a(f"s_mul_i32 s21, s{S_NT64}, {224*1024}")
        a("s_add_u32 s21, s21, s25")
        a(f"s_add_u32 s21, s21, {WS_WD:#x}")
        for i in range(3):
            a(f"v_add_u32 v{V_FREE+i}, {i*0x10000}, v{V_L16}")
            a(f"v_add_u32 v{V_FREE+i}, s25, v{V_FREE+i}")
    def src(self, r):
        return f"s_add_u32 s27, s20, {r*RB}" if r < 15 else f"s_add_u32 s27, s21, {(r-15)*RB}"
    def wait_vm(self, pred):
        idx = [i for i, e in enumerate(self.vm) if pred(e)]
        if not idx:
            return None
        n = min(63, (len(self.vm) - 1 - idx[-1]) * 4)
        del self.vm[:idx[-1] + 1]
        return f"vmcnt({n})"
    def flush(self, limit, cap=99):
        a = self.a
        for r in sorted(self.reg)[:cap]:
            if r >= limit:
                break
            w = self.wait_vm(lambda e: e == ("s", r))
            if w:
                a("s_waitcnt " + w)
            k = self.reg.pop(r)
            for i in range(4):
                off = (r % self.NR) * RB + i * 1024
                if env("FL64", 0):
                    for hh in range(2):
                        a(f"ds_write_b64 v{V_FREE + (off >> 16)}, {vr(VS + (k*4 + i)*4 + 2*hh, 2)} offset:{(off & 0xffff) + 8*hh}")
                        if env("FLW", 1):
                            a("s_waitcnt lgkmcnt(0)")
                else:
                    a(f"ds_write_b128 v{V_FREE + (off >> 16)}, {vr(VS + (k*4 + i)*4, 4)} offset:{off & 0xffff}")
                    if env("FLW", 1):
                        a("s_waitcnt lgkmcnt(0)")
            self.lg.append((r, k))
    def fetch(self, n, limit):
        a = self.a
        while n > 0 and self.nxt < self.last:
            r = self.nxt
            if r < limit:
                a(f"s_add_u32 s26, s25, {(r % self.NR) * RB}")
                a("s_mov_b32 m0, s26")
                a(self.src(r))
                for i in range(4):
                    a(f"buffer_load_dwordx4 v{V_L16}, s[4:7], s27 offen offset:{i*1024}{SC} lds")
                self.vm.append(("d", r))
            else:
                if not self.free:
                    break
                k = self.free.pop(0)
                self.maxreg = max(self.maxreg, k + 1)
                self.reg[r] = k
                a(self.src(r))
                for i in range(4):
                    a(f"buffer_load_dwordx4 {vr(VS + (k*4 + i)*4, 4)}, v{V_L16}, s[4:7], s27 offen offset:{i*1024}{SC}")
                self.vm.append(("s", r))
            self.nxt += 1; n -= 1
    def landed(self, upto):
        assert self.nxt > min(upto, self.last - 1) and all(r > upto for r in self.reg), (upto, self.nxt, self.reg)
        w = []
        x = self.wait_vm(lambda e: e[0] == "d" and e[1] <= upto)
        if x:
            w.append(x)
        if any(r <= upto for r, _ in self.lg):
            w.append("lgkmcnt(0)")
            self.free += [k for _, k in self.lg]
            self.lg = []
        if w:
            self.a("s_waitcnt " + " ".join(w))

def gemm_phase(a, g):
    NW, NT = g.NW, g.NT
    ln = g.kind in ("qkv", "gu")
    NS = g.KST if ln else g.KST // 2
    SBY = NW * 1024 if ln else 4096
    NSW = NS + (1 if ln else 0)
    NRND = -(-NSW * SBY // RB)
    NR = min(g.NR, NRND)
    RING = NR * RB
    LB = g.LB
    SCR = LB + RING
    assert SCR + (1024 if g.kind == "qkv" else 0) + (0 if ln else 16384) <= LDS_MAX
    S = g.stream
    RA = g.RA
    staged = g.staged
    s_tt, s_nt = (S_TT128, S_NT128) if ln else (S_TT64, S_NT64)
    comp, end = a.label(g.name + "_comp"), a.label(g.name + "_end")
    SB = g.sb
    need_round = lambda st: (min(st, NSW - 1) * SBY + SBY - 1) // RB
    bars = [0]
    out_ = min(NR, g.N1 + g.N2)
    while out_ < NRND:
        out_ = min(out_ + (g.N3 if len(bars) == 1 else g.N4), NR + (bars[-1] * SBY) // RB, NRND)
        bars.append(bars[-1] + g.BS)
    for _ in range(g.XB):
        bars.append(bars[-1] + g.BS)
    a.c(f"================ phase {g.name} ================")
    a(f"s_cmp_lt_u32 s{S_WAVE}, 4")
    a(f"s_cbranch_scc1 {comp}")
    a(f"s_and_b32 s19, s{S_WAVE}, 3")
    a("s_lshl_b32 s25, s19, 12")
    a(f"s_mul_i32 s23, s{s_nt}, {g.WNT}")
    a("s_add_u32 s23, s23, s25")
    if g.WBASE:
        a(f"s_add_u32 s23, s23, {g.WBASE:#x}")
    if staged:
        for i in range(3):
            a(f"v_add_u32 v{V_FREE+i}, {i*0x10000}, v{V_L16}")
            a(f"v_add_u32 v{V_FREE+i}, s25, v{V_FREE+i}")
    stamp(a, SB)
    vm, lg = [], []
    def issue(r):
        dst = LB + (r % NR) * RB
        if r in staged:
            k = staged.index(r)
            for i in range(4):
                off = dst + i * 1024
                a(f"ds_write_b128 v{V_FREE + (off >> 16)}, {vr(VS + (k*4 + i)*4, 4)} offset:{off & 0xffff}")
            lg.append(r)
        else:
            a(f"s_add_u32 s26, s25, {dst}")
            a("s_mov_b32 m0, s26")
            a(f"s_add_u32 s27, s23, {r*RB}")
            for i in range(4):
                a(f"buffer_load_dwordx4 v{V_L16}, s[4:7], s27 offen offset:{i*1024}{SC} lds")
            vm.append(r)
    extra = [0]
    def wait_landed(upto):
        w = []
        for q, nm, cap in ((vm, "vmcnt", 63), (lg, "lgkmcnt", 15)):
            idx = [i for i, r in enumerate(q) if r <= upto]
            if idx:
                left = len(q) - 1 - idx[-1]
                w.append(f"{nm}({min(cap, left*4 + (extra[0] if q is vm else 0))})")
                del q[:idx[-1] + 1]
        if w:
            a("s_waitcnt " + " ".join(w))
    order = g.order if g.order else list(range(NRND))
    todo = list(order)
    def issue_n(n, limit):
        while n > 0 and todo and todo[0] < limit:
            issue(todo.pop(0)); n -= 1
    if staged:
        a("s_waitcnt vmcnt(0)")
    issue_n(g.N1, NR)
    if g.lsig:
        a(f"s_waitcnt vmcnt({len(vm)*4})")
        a("s_mov_b32 s38, 1")
        a(f"s_atomic_add s38, s[14:15], s{S_SIG}")
    issue_n(g.N2, NR)
    if S:
        assert not todo
        S.setup()
        S.fetch(g.PRE1, LB // RB)
        extra[0] = 4 * len(S.vm)
    stamp(a, SB + 1)
    st = []
    if g.stage_next is not None:
        n = g.stage_next
        for k, r in enumerate(n.staged):
            for i in range(4):
                t = f"s_add_u32 s27, s24, {r*RB}\n" if i == 0 else ""
                st.append(t + f"buffer_load_dwordx4 {vr(VS + (k*4 + i)*4, 4)}, v{V_L16}, s[4:7], s27 offen offset:{i*1024}{SC}")
    for j, b in enumerate(bars):
        nxt = bars[j + 1] if j + 1 < len(bars) else NSW
        up = need_round(nxt)
        assert all(r > up for r in todo), (g.name, b, up, todo)
        wait_landed(up)
        a("s_barrier")
        issue_n(g.N3 if j == 0 else g.N4, NR + (b * SBY) // RB)
    assert not todo and not vm and not lg, (g.name, todo, vm, lg)
    if st:
        a.c("fetch part of the next phase's weights into registers")
        a(f"s_mul_i32 s24, s{S_NT64}, {n.WNT}")
        a("s_add_u32 s24, s24, s25")
        a(f"s_add_u32 s24, s24, {n.WBASE:#x}")
        for t in st:
            a(t)
    if S:
        S.fetch(g.PRE2, LB // RB)
    if not ln:
        a("s_barrier")
    if S:
        S.fetch(g.PRE3, LB // RB + NR)
    a("s_barrier")
    a(f"s_branch {end}")

    a(f"{comp}:")
    R = Regs(V_FREE)
    nwin = -(-(LB + RING) // 65536)
    vW = [[R.alloc() for _ in range(nwin)] for _ in range(1 if ln else 2)]
    vRstd, vX, vY = R.alloc(), R.alloc(), R.alloc()
    acc = [R.alloc(16) for _ in range(NT)]
    sets = [[R.alloc(4) for _ in range(NT)] for _ in range(2)]
    ring = [R.alloc(4) for _ in range(RA)]
    tmp = R.alloc(16)
    xc = R.alloc(4)
    if g.kind == "qkv":
        vRs = R.alloc(16)
    if ln:
        a(f"s_add_u32 s31, s{s_tt}, s{S_WAVE}")
        a(f"s_mul_i32 s22, s31, {g.KST*1024}")
        for w in range(nwin):
            a(f"v_add_u32 v{vW[0][w]}, {w*65536}, v{V_L16}")
        for t in range(NT):
            for i in range(16):
                a(f"v_mov_b32 v{acc[t]+i}, 0")
        a("s_lshl_b32 s36, s31, 12")
        a(f"s_add_u32 s36, s36, s{S_BASE}")
        a(f"s_add_u32 s36, s36, {g.STIN:#x}")
    else:
        a(f"s_and_b32 s24, s{S_WAVE}, 1")
        a(f"s_lshr_b32 s25, s{S_WAVE}, 1")
        a(f"s_lshl_b32 s33, s{s_nt}, 1")
        a("s_add_u32 s33, s33, s25")
        a(f"s_add_u32 s31, s{s_tt}, s24")
        a(f"s_mul_i32 s22, s31, {g.KST*1024}")
        a("s_lshl_b32 s26, s25, 10")
        a("s_add_u32 s22, s22, s26")
        a("s_mul_i32 s26, s25, 3072")
        a("s_lshl_b32 s27, s25, 10")
        a("s_add_u32 s27, s27, 1024")
        for w in range(nwin):
            a(f"v_add_u32 v{vX}, {w*65536}, v{V_L16}")
            a(f"v_add_u32 v{vW[0][w]}, s26, v{vX}")
            a(f"v_add_u32 v{vW[1][w]}, s27, v{vX}")
        for i in range(8):
            a(f"v_lshlrev_b32 v{acc[0]+2*i}, 16, v{V_RES+i}")
            a(f"v_and_b32 v{acc[0]+2*i+1}, 0xffff0000, v{V_RES+i}")
        for i in range(16):
            a(f"v_mov_b32 v{acc[1]+i}, 0")
        a(f"s_lshl_b32 s26, s{S_WAVE}, 12")
        a(f"s_add_u32 s26, s26, {SCR}")
        a("s_xor_b32 s27, s26, 0x2000")
        assert SCR % 16384 == 0
        a(f"v_add_u32 v{vX}, s26, v{V_L16}")
        a(f"v_add_u32 v{vY}, s27, v{V_L16}")
    a(f"s_add_u32 s22, s22, s{S_BASE}")
    a(f"s_add_u32 s22, s22, {g.ABUF:#x}")
    AST = 1024 if ln else 2048

    cvm = []
    def load_a(st_):
        if env("NOLOAD", 0):
            return
        off = (st_ * AST) % 4096
        a(f"buffer_load_dwordx4 {vr(ring[st_ % RA],4)}, v{V_L16}, s[4:7], s22 offen offset:{off}{SC}")
        if off + AST == 4096:
            a("s_add_u32 s22, s22, 4096")
        cvm.append(st_)
    def wait_a(tag):
        if tag in cvm:
            i = cvm.index(tag)
            a(f"s_waitcnt vmcnt({len(cvm) - 1 - i})")
            del cvm[:i + 1]
    def w_reads(st_):
        out = []
        for t in range(NT):
            off = LB + (st_ * SBY + (t * 1024 if ln else 0)) % RING
            base = vW[0 if ln else t][off >> 16]
            out.append(f"ds_read_b128 {vr(sets[st_ & 1][t],4)}, v{base} offset:{off & 0xffff}")
        return out
    fill = []
    def mfma(t, xa, wf):
        if env("NOCOMP", 0):
            return
        if g.swap[t]:
            a(f"{MFMA} {vr(acc[t],16)}, {vr(xa,4)}, {vr(wf,4)}, {vr(acc[t],16)}")
        else:
            a(f"{MFMA} {vr(acc[t],16)}, {vr(wf,4)}, {vr(xa,4)}, {vr(acc[t],16)}")
        for _ in range(min(2, len(fill))):
            a(fill.pop(0))

    a("s_lshl_b32 s23, s31, 8")
    a(f"s_add_u32 s23, s23, s{S_FL}")
    a(f"s_add_u32 s23, s23, {g.FIN:#x}")
    a("s_waitcnt vmcnt(0)")
    stamp(a, SB)
    handoff(a, 23, g.NEED)
    stamp(a, SB + 1)
    nxt_a = [0]
    def more_a(n, st_):
        while n > 0 and nxt_a[0] < NS and nxt_a[0] <= st_ + RA:
            load_a(nxt_a[0]); nxt_a[0] += 1; n -= 1
    more_a(g.I0, -1)
    a("s_barrier")
    for r in w_reads(0):
        a(r)
    a(f"s_lshl_b32 s{S_SIG}, s{s_nt if g.kind == 'qkv' else 31}, 8")
    a(f"s_add_u32 s{S_SIG}, s{S_SIG}, s{S_FL}")
    if g.FOUT:
        a(f"s_add_u32 s{S_SIG}, s{S_SIG}, {g.FOUT:#x}")
    if ln:
        a(f"v_lshlrev_b32 v{vX}, 3, v0")
    stl = [f"buffer_load_dwordx2 {vr(tmp+2*i,2)}, v{vX}, s[4:7], s36 offen offset:{i*512}{SC}" for i in range(8)] if ln else []
    nfill_steps = -(-40 // (2 * NT))
    for st_ in range(NS):
        if st_ in bars and st_ > 0:
            a("s_barrier")
        if ln and st_ == NS - nfill_steps:
            assert not stl
            if "st" in cvm:
                i = len(cvm) - 1 - cvm[::-1].index("st")
                a(f"s_waitcnt vmcnt({len(cvm) - 1 - i})")
                del cvm[:i + 1]
            fill.extend(stats_ops(tmp, xc, vRstd))
        nxt = w_reads(st_ + 1) if st_ + 1 < NSW else []
        wait_a(st_)
        for t in range(NT):
            if nxt:
                a(nxt[t])
            a(f"s_waitcnt lgkmcnt({(NT if nxt else NT - 1 - t)})")
            mfma(t, ring[st_ % RA], sets[st_ & 1][t])
            if t == 0:
                more_a(g.PS - 1, st_ - 1)
        more_a(1, st_)
        if stl and st_ >= g.STS:
            a(stl.pop(0)); cvm.append("st")
    if ln:
        while fill:
            a(fill.pop(0))
        if g.kind == "qkv":
            a(f"s_lshl_b32 s26, s{S_WAVE}, 8")
            a(f"s_add_u32 s26, s26, {SCR}")
            a(f"v_add_u32 v{tmp+4}, s26, v{V_L4}")
            a(f"ds_write_b32 v{tmp+4}, v{vRstd}")
            a(f"v_lshrrev_b32 v{tmp+5}, 5, v0")
            a(f"v_lshl_add_u32 v{tmp+5}, v{tmp+5}, 4, s26")
            for q in range(4):
                a(f"ds_read_b128 {vr(vRs+4*q,4)}, v{tmp+5} offset:{q*32}")
            a("s_waitcnt lgkmcnt(5)")
        else:
            a("s_waitcnt lgkmcnt(0)")
            a("s_nop 0")
        for t in range(NT):
            mfma(t, xc, sets[NS & 1][t])
        if g.kind == "qkv":
            a("s_waitcnt lgkmcnt(0)")
    else:
        a("s_nop 11")
        for q in range(4):
            a(f"ds_write_b128 v{vX}, {vr(acc[1]+4*q,4)} offset:{q*1024}")
        a("s_waitcnt lgkmcnt(0)")
        a("s_barrier")
        for q in range(4):
            a(f"ds_read_b128 {vr(acc[1]+4*q,4)}, v{vY} offset:{q*1024}")
    EARLY = 0
    stamp(a, SB + 2)
    ot = sets[0][0]
    if g.kind == "qkv":
        a(f"s_lshl_b32 s26, s{s_nt}, 17")
        a("s_lshl_b32 s27, s31, 10")
        a("s_add_u32 s26, s26, s27")
        a(f"s_add_u32 s26, s26, s{S_BASE}")
        va = tmp + 8
        a(f"v_mul_f32 v{tmp+6}, {f32bits(QSCALE):#x}, v{vRstd}")
        a(f"v_bfe_u32 v{va}, v0, 4, 1")
        a(f"v_lshlrev_b32 v{va}, 16, v{va}")
        a(f"v_lshrrev_b32 v{va+1}, 5, v0")
        a(f"v_lshl_add_u32 v{va}, v{va+1}, 8, v{va}")
        a(f"v_and_b32 v{va+1}, 15, v0")
        a(f"v_lshl_add_u32 v{va}, v{va+1}, 4, v{va}")
        a("s_nop 1")
        for t, base, sc in ((0, B_Q, tmp + 6), (1, B_K, vRstd)):
            for hh in range(2):
                o = ot + 4 * (2 * t + hh)
                for i in range(4):
                    r = acc[t] + 8 * hh + 2 * i
                    a(f"v_mul_f32 v{r}, v{sc}, v{r}")
                    a(f"v_mul_f32 v{r+1}, v{sc}, v{r+1}")
                    a(f"v_cvt_pk_bf16_f32 v{o+i}, v{r}, v{r+1}")
                a(f"s_add_u32 s27, s26, {base + hh*65536:#x}")
                a(f"buffer_store_dwordx4 {vr(o,4)}, v{V_L16}, s[4:7], s27 offen{SC}")
        a(f"s_add_u32 s27, s26, {B_V:#x}")
        for hh in range(2):
            o = ot + 16 + 4 * hh
            for i in range(4):
                r = acc[2] + 8 * hh + 2 * i
                a(f"v_pk_mul_f32 {vr(r,2)}, {vr(vRs+8*hh+2*i,2)}, {vr(r,2)}")
                a(f"v_cvt_pk_bf16_f32 v{o+i}, v{r}, v{r+1}")
            a(f"buffer_store_dwordx4 {vr(o,4)}, v{va}, s[4:7], s27 offen offset:{hh*512}{SC}")
    elif g.kind == "gu":
        a(f"s_mul_i32 s26, s31, {112*1024}")
        a(f"s_mul_i32 s27, s{s_nt}, {7*1024}")
        a("s_add_u32 s26, s26, s27")
        a(f"s_add_u32 s26, s26, s{S_BASE}")
        a(f"s_add_u32 s26, s26, {B_H:#x}")
        a(f"v_mul_f32 v{tmp}, v{vRstd}, v{vRstd}")
        a(f"v_mov_b32 v{tmp+1}, v{tmp}")
        a("s_nop 1")
        for t in range(NT):
            o = ot + 4 * t
            for i in range(4):
                r = acc[t] + 2 * i
                a(f"v_pk_mul_f32 {vr(r,2)}, {vr(r,2)}, {vr(r+8,2)}")
            for i in range(4):
                r = acc[t] + 2 * i
                a(f"v_pk_mul_f32 {vr(r,2)}, {vr(r,2)}, {vr(tmp,2)}")
            for i in range(4):
                r = acc[t] + 2 * i
                a(f"v_cvt_pk_bf16_f32 v{o+i}, v{r}, v{r+1}")
            a(f"buffer_store_dwordx4 {vr(o,4)}, v{V_L16}, s[4:7], s26 offen offset:{(t%4)*1024}{SC}")
            if t == 3:
                a("s_add_u32 s26, s26, 4096")
    else:
        res_epilogue(a, g, acc[0], acc[1], tmp, end)
    if ln:
        a("s_barrier")
        stamp(a, SB + 3)
    a(f"{end}:")
    return R.n


def mlp_phase(a, g):
    E = lambda k, d: env("MLP_" + k, d)
    NR, RING = 10, 10 * RB
    NG, NOPS = 231, 231 + 112
    beg = [i * 1024 for i in range(NG)] + [15 * RB + (i // 2) * 4096 for i in range(112)]
    fin = [i * 1024 + 1023 for i in range(NG)] + [15 * RB + (i // 2) * 4096 + 4095 for i in range(112)]
    RAH = E("RAH", 5)
    I0, I0D = E("I0", 10), E("I0D", 14)
    sched = os.environ.get("MLP_SCHED", "0:0,20:0,40:0,60:0,88:2,100:1,114:1,130:1,146:1,162:1,178:1,194:1,210:1,226:1,240:0,252:0,264:0,276:0,288:0,300:0,330:0")
    sched = dict((int(x.split(":")[0]), int(x.split(":")[1])) for x in sched.split(","))
    bars = sorted(sched)
    S = g.stream
    comp, end = a.label("mlp_comp"), a.label("mlp_end")
    SB, SD = 17, g.sb
    a.c("================ phase gate/up + down ================")
    a(f"s_cmp_lt_u32 s{S_WAVE}, 4")
    a(f"s_cbranch_scc1 {comp}")
    stamp(a, SB)
    S.flush(NR)
    S.fetch(E("N1", 8), NR)
    stamp(a, SB + 1)
    for j, b in enumerate(bars):
        nxt = bars[j + 1] if j + 1 < len(bars) else NOPS
        S.landed(fin[min(NOPS - 1, nxt - 1 + RAH)] // RB)
        a("s_barrier")
        lim = NR + beg[b] // RB
        S.fetch(sched[b], lim)
        S.flush(lim, E("FCAP", 1))
        a.c(f"barrier {b}: fetched {S.nxt}, staged {sorted(S.reg)}")
    assert S.nxt == S.last and not S.vm and not S.lg and not S.reg
    a("s_barrier")
    a("s_barrier")
    a(f"s_branch {end}")

    a(f"{comp}:")
    R = Regs(V_FREE)
    vW = [R.alloc() for _ in range(3)]
    vRstd = R.alloc()
    xc = R.alloc(4)
    vR2 = R.alloc(2)
    vX, vY = R.alloc(), R.alloc()
    vD = [[R.alloc() for _ in range(3)] for _ in range(2)]
    acc = [R.alloc(16) for _ in range(4)]
    NF = RAH + 2
    wf = [R.alloc(4) for _ in range(NF)]
    ring = [R.alloc(4) for _ in range(32)]
    tmp = ring[28]
    NP = len(PASSES)
    pstart = [33 * f for f in PFIRST] + [NG]
    tacc = [acc[t % 4] for t in range(7)]
    dacc = [acc[3], acc[0]]
    hreg = [34, 35, 32]
    a(f"s_add_u32 s31, s{S_TTG}, s{S_WAVE}")
    a("s_lshl_b32 s22, s31, 15")
    a(f"s_add_u32 s22, s22, s{S_BASE}")
    a(f"s_add_u32 s22, s22, {B_X1:#x}")
    a("s_lshl_b32 s36, s31, 12")
    a(f"s_add_u32 s36, s36, s{S_BASE}")
    a(f"s_add_u32 s36, s36, {B_ST1:#x}")
    a(f"s_mul_i32 s26, s31, {112*1024}")
    a(f"s_add_u32 s26, s26, s{S_BASE}")
    a(f"s_add_u32 s26, s26, {B_H:#x}")
    for p in range(NP):
        a(f"s_mul_i32 s{hreg[p]}, s{S_NTG}, {PASSES[p]*1024}")
        a(f"s_add_u32 s{hreg[p]}, s{hreg[p]}, s26")
        if p:
            a(f"s_add_u32 s{hreg[p]}, s{hreg[p]}, {PFIRST[p]*16384}")
    a("s_lshl_b32 s50, s31, 8")
    a(f"s_add_u32 s50, s50, s{S_FL}")
    a(f"s_add_u32 s23, s50, {FL_O:#x}")
    a(f"s_add_u32 s50, s50, {FL_G:#x}")
    a(f"s_add_u32 s51, s50, {WS_FLAG:#x}")
    a(f"s_and_b32 s24, s{S_WAVE}, 1")
    a(f"s_lshr_b32 s25, s{S_WAVE}, 1")
    a(f"s_lshl_b32 s33, s{S_NT64}, 1")
    a("s_add_u32 s33, s33, s25")
    a(f"s_add_u32 s31, s{S_TT64}, s24")
    a("s_lshl_b32 s52, s31, 8")
    a(f"s_add_u32 s52, s52, s{S_FL}")
    a(f"s_add_u32 s52, s52, {FL_G:#x}")
    a(f"s_add_u32 s53, s52, {WS_FLAG:#x}")
    a(f"s_mul_i32 s37, s31, {112*1024}")
    a("s_lshl_b32 s26, s25, 10")
    a("s_add_u32 s37, s37, s26")
    a(f"s_add_u32 s37, s37, s{S_BASE}")
    a(f"s_add_u32 s37, s37, {B_H:#x}")
    a("s_mul_i32 s29, s25, 3072")
    a("s_lshl_b32 s30, s25, 10")
    a("s_add_u32 s30, s30, 1024")
    for w in range(3):
        a(f"v_add_u32 v{vW[w]}, {w*65536}, v{V_L16}")
        a(f"v_add_u32 v{vD[0][w]}, s29, v{vW[w]}")
        a(f"v_add_u32 v{vD[1][w]}, s30, v{vW[w]}")
    a(f"v_mov_b32 v{vY}, 0")
    a(f"v_lshlrev_b32 v{vX}, 3, v0")
    cvm = []
    def wait_tag(tag):
        if tag in cvm:
            i = len(cvm) - 1 - cvm[::-1].index(tag)
            a(f"s_waitcnt vmcnt({len(cvm) - 1 - i})")
            del cvm[:i + 1]
    na, nh = [0], [0]
    def load_x():
        k = na[0]; na[0] += 1
        a(f"buffer_load_dwordx4 {vr(ring[k],4)}, v{V_L16}, s[4:7], s22 offen offset:{(k%4)*1024}{SC}")
        if k % 4 == 3:
            a("s_add_u32 s22, s22, 4096")
        cvm.append(("x", k))
    def load_h():
        k = nh[0]; nh[0] += 1
        a(f"buffer_load_dwordx4 {vr(ring[k%32],4)}, v{V_L16}, s[4:7], s37 offen offset:{(k%2)*2048}{SC}")
        if k % 2 == 1:
            a("s_add_u32 s37, s37, 4096")
        cvm.append(("h", k))
    def w_read(i):
        off = beg[i] % RING
        base = vW[off >> 16] if i < NG else vD[(i - NG) & 1][off >> 16]
        a(f"ds_read_b128 {vr(wf[i % NF],4)}, v{base} offset:{off & 0xffff}")
    def slot(i):
        for p in range(NP):
            if i < pstart[p + 1]:
                return PFIRST[p] + (i - pstart[p]) % PASSES[p], (i - pstart[p]) // PASSES[p]
        return None, (i - NG) // 2
    fill = []
    stored = set()
    def h_ops(t, packed=True):
        r = tacc[t]
        p = max(q for q in range(NP) if PFIRST[q] <= t)
        so, off = hreg[p], (t - PFIRST[p]) * 1024
        ops = [f"v_pk_mul_f32 {vr(r+2*i,2)}, {vr(r+2*i,2)}, {vr(r+8+2*i,2)}" for i in range(4)]
        ops += [f"v_pk_mul_f32 {vr(r+2*i,2)}, {vr(r+2*i,2)}, {vr(vR2,2)}" for i in range(4)]
        if not packed:
            ops = [f"v_mul_f32 v{r+i}, v{r+i}, v{r+8+i}" for i in range(8)]
            ops += [f"v_mul_f32 v{r+i}, v{vR2}, v{r+i}" for i in range(8)]
        ops += [f"v_cvt_pk_bf16_f32 v{r+8+i}, v{r+2*i}, v{r+2*i+1}" for i in range(4)]
        ops.append((f"buffer_store_dwordx4 {vr(r+8,4)}, v{V_L16}, s[4:7], s{so} offen offset:{off}{SC}", ("hs", t)))
        return ops

    a("s_waitcnt vmcnt(0)")
    stamp(a, SB)
    handoff(a, 23, 16)
    stamp(a, SB + 1)
    if E("PRIO", 2):
        a(f"s_setprio {E('PRIO', 2)}")
    while na[0] < I0:
        load_x()
        if na[0] == E("STP", 4):
            a("s_barrier")
            for i in range(RAH):
                w_read(i)
            for q in range(8):
                a(f"buffer_load_dwordx2 {vr(tmp+2*q,2)}, v{vX}, s[4:7], s36 offen offset:{q*512}{SC}")
                cvm.append("st")
    a(f"s_add_u32 s{S_SIG}, s52, {FL_D - FL_G:#x}")
    STF = (E("STP", 4) + 1) * PASSES[0]
    evs = os.environ.get("MLP_EV", {"4,3": "170:200:214,256:284:292", "3,2,2": "140:200:214,205:244:252,270:296:304",
                                    "4,2,1": "176:198:216,232:256:278,256:286:308"}.get(",".join(map(str, PASSES))))
    ev = []
    for p, x in enumerate(evs.split(",")):
        sg, ak, go = map(int, x.split(":"))
        ev.append((PFIRST[p] + PASSES[p] - 1, sg, ak, go, 8 * (PFIRST[p] + PASSES[p]), sg < NG and E("VEC", 0) & 1, ak < NG and E("VEC", 0) & 2))
    def emit(x):
        if isinstance(x, tuple):
            a(x[0]); cvm.append(x[1]); stored.add(x[1][1])
        else:
            a(x)
    dinit = [False]
    hlim = 0
    treg = list(range(78, 94, 2)) + [96, 98, 100, 62]
    tpos = [int(x) for x in os.environ.get("TRACE", "").split(",") if x]
    for i in range(NOPS):
        t, ks = slot(i)
        if i in tpos:
            r_ = treg[tpos.index(i)]
            a(f"s_memtime s[{r_}:{r_+1}]")
        for gi, (lt, sg, ak, go, lim_, vec, vec2) in enumerate(ev):
            if i == sg:
                a.c(f"this wave's part {gi} of H is complete")
                assert lt in stored
                wait_tag(("hs", lt))
                if vec:
                    a(f"v_mov_b32 v{vRstd}, 1")
                    a("s_mov_b64 exec, 1")
                    a(f"buffer_atomic_add v{vRstd}, v{vY}, s[4:7], s51 offen offset:{gi*4} sc1")
                    a("s_mov_b64 exec, -1")
                    cvm.append("sig")
                else:
                    a(f"s_add_u32 s54, s50, {gi*4}")
                    a("s_mov_b32 s38, 1")
                    a("s_atomic_add s38, s[14:15], s54")
                if PT:
                    a(f"s_mov_b64 exec, {(1 << (8 * PASSES[gi])) - 1 if PASSES[gi] < 4 else 0x7fffffff:#x}")
                    if PASSES[gi] == 4:
                        a("s_mov_b32 exec_lo, -1")
                    a(f"buffer_load_dword v{V_PF}, v{V_L128}, s[4:7], s{hreg[gi]} offen sc1")
                    a("s_mov_b64 exec, -1")
                    cvm.append("pt")
            if i == ak:
                if vec2:
                    a(f"buffer_load_dword v{vX}, v{vY}, s[4:7], s53 offen offset:{gi*4} sc1")
                    cvm.append("ask")
                else:
                    a(f"s_add_u32 s28, s52, {gi*4}")
                    a("s_mov_b32 s55, 0")
                    a("s_atomic_add s55, s[14:15], s28 glc")
            if i == go:
                ok = a.label("go")
                if vec2:
                    wait_tag("ask")
                    a(f"v_cmp_gt_u32 vcc, 16, v{vX}")
                    a(f"s_add_u32 s28, s52, {gi*4}")
                    a(f"s_cbranch_vccz {ok}")
                else:
                    a("s_waitcnt lgkmcnt(0)")
                    a("s_cmp_ge_u32 s55, 16")
                    a(f"s_cbranch_scc1 {ok}")
                poll(a, 28, 16)
                a(f"{ok}:")
                hlim = lim_
                if gi in (0, NP - 1) and not tpos:
                    stamp(a, SD + (0 if gi == 0 else 4))
        if i in bars and i > 0:
            a("s_barrier")
        if i == STF:
            wait_tag("st")
            fill.extend(stats_ops(tmp, xc, vRstd))
            fill.append(f"v_mul_f32 v{vR2}, v{vRstd}, v{vRstd}")
            fill.append(f"v_mov_b32 v{vR2+1}, v{vR2}")
        if i == pstart[1] and not tpos:
            stamp(a, SB + 2)
        if i == NG and not tpos:
            stamp(a, SB + 3)
        if i in pstart[1:]:
            p = pstart.index(i) - 1
            assert not fill
            need = set(tacc[q] for q in range(PFIRST[p + 1], PFIRST[p + 1] + PASSES[p + 1])) if p + 1 < NP else set(dacc)
            tiles = list(range(PFIRST[p], PFIRST[p] + PASSES[p]))
            now = [q for q in tiles if tacc[q] in need or (E("SER", 6) >> p) & 1]
            if now:
                a(f"s_nop {max(0, 11 - 3 * (tiles[-1] - now[0]))}")
                for q in now:
                    for x in h_ops(q):
                        emit(x)
            else:
                fill.extend(["s_nop 0"] * 6)
            for q in tiles:
                if q not in now:
                    fill.extend(h_ops(q, False))
        if i == NG and not tpos:
            stamp(a, SD + 1)
        if 3 in stored and not dinit[0] and not fill:
            dinit[0] = True
            assert i + 10 < NG
            fill.extend(["s_nop 0"] * 2)
            for q in range(8):
                fill.append(f"v_lshlrev_b32 v{dacc[0]+2*q}, 16, v{V_RES+q}")
                fill.append(f"v_and_b32 v{dacc[0]+2*q+1}, 0xffff0000, v{V_RES+q}")
        if t == 0 and ks < 32:
            wait_tag(("x", ks))
        if t is None and (i - NG) % 2 == 0:
            wait_tag(("h", ks))
        if i + RAH < NOPS:
            w_read(i + RAH)
        a(f"s_waitcnt lgkmcnt({min(RAH, NOPS - 1 - i)})")
        if t is not None:
            d, xa, first = tacc[t], (xc if ks == 32 else ring[ks]), ks == 0
            if first and t >= 4:
                assert t - 4 in stored
        else:
            d, xa, first = dacc[(i - NG) & 1], ring[ks % 32], i == NG + 1
            assert 4 in stored
        a(f"{MFMA} {vr(d,16)}, {vr(wf[i % NF],4)}, {vr(xa,4)}, {'0' if first else vr(d,16)}")
        for _ in range(min(E("FPS", 3), len(fill))):
            emit(fill.pop(0))
        if t == PASSES[0] - 1 and na[0] < 32:
            assert na[0] < 28 or (i > STF and not fill), i
            load_x()
        if i >= pstart[NP - 1]:
            done_steps = (i + 1 - NG) // 2 if t is None else 0
            look = I0D if t is not None else max(E("LK", 12), I0D - done_steps)
            if nh[0] < min(hlim, done_steps + look) and (t is None or nh[0] < ks):
                load_h()
    assert nh[0] == 56 and not fill
    dead = beg[bars[-1]] // RB - 1
    assert dead + NR >= 29
    SCR = (dead % NR) * RB
    a(f"s_lshl_b32 s26, s{S_WAVE}, 12")
    a(f"s_add_u32 s26, s26, {SCR}")
    a("s_xor_b32 s27, s26, 0x2000")
    a(f"v_add_u32 v{vX}, s26, v{V_L16}")
    a(f"v_add_u32 v{vY}, s27, v{V_L16}")
    a("s_nop 6")
    if E("PRIO", 2):
        a("s_setprio 0")
    for q in range(4):
        a(f"ds_write_b128 v{vX}, {vr(dacc[1]+4*q,4)} offset:{q*1024}")
    a("s_waitcnt lgkmcnt(0)")
    a("s_barrier")
    for q in range(4):
        a(f"ds_read_b128 {vr(dacc[1]+4*q,4)}, v{vY} offset:{q*1024}")
    stamp(a, SD + 2)
    for k in range(len(tpos)):
        a(f"v_writelane_b32 v{V_STAMP+1}, s{treg[k]}, {k}")
    res_epilogue(a, g, dacc[0], dacc[1], tmp, end)
    a(f"{end}:")
    return max(R.n, VS + 16 * S.maxreg)


def attn_phase(a, SB, code_end):
    U = 2
    NIT = 32 // U
    B2IT = env("ATT_B2", 1)
    B3IT = env("ATT_B3", 3)
    PRIO_IT = env("ATT_PRIO", 14)
    PFN = 4 if GMX == 4 else env('PFN', 6)
    CB = 0
    XB = CB + 4096
    KB, VB = 32768, 98304
    assert XB + 8 * 2304 <= KB
    R = Regs(V_FREE)
    vK, vV, vInc, vV0 = R.alloc(), R.alloc(), R.alloc(), R.alloc()
    t0, t1 = R.alloc(), R.alloc()
    vPA, vPP = R.alloc(), R.alloc()
    R.alloc(); R.alloc()
    DYN = env("ATT_DYN", 0)
    Q = [R.alloc(4), R.alloc(4)]
    NM = [R.alloc(16), R.alloc(16)]
    O = [R.alloc(16), R.alloc(16)]
    S = [R.alloc(16), R.alloc(16)]
    P = R.alloc(8)
    KF = [R.alloc(4), R.alloc(4)]
    VF = [R.alloc(8), R.alloc(8)]
    a.c("================ phase attention ================")
    a(f"s_and_b32 s19, s{S_IDX}, 3")
    a(f"s_lshl_b32 s20, s{S_XCD}, 2")
    a("s_add_u32 s19, s19, s20")
    a(f"s_lshr_b32 s20, s{S_IDX}, 2")
    a("s_lshl_b32 s20, s20, 3")
    a(f"s_and_b32 s26, s{S_WAVE}, 3")
    a(f"s_lshr_b32 s27, s{S_WAVE}, 2")
    a("s_lshl_b32 s22, s26, 1")
    a("s_add_u32 s20, s20, s22")
    a("s_lshl_b32 s21, s19, 16")
    a(f"s_add_u32 s21, s21, s{S_BASE}")
    setup = a.label("att_setup")
    assert B_Q == 0 and B_V - B_K == 0x200000
    a("s_and_b32 s24, s26, 1")
    a("s_lshr_b32 s25, s26, 1")
    a("s_lshl_b32 s28, s24, 16")
    a(f"s_add_u32 s28, s28, {KB}")
    a("s_lshl_b32 s29, s24, 21")
    a("s_add_u32 s29, s29, s21")
    a(f"s_add_u32 s29, s29, {B_K:#x}")

    def dma(first_tile, per_wave):
        a(f"s_mul_i32 s24, s25, {per_wave*1024}")
        if first_tile:
            a(f"s_add_u32 s24, s24, {first_tile*1024}")
        n = 0
        while n < per_wave:
            a("s_add_u32 s30, s28, s24")
            a("s_mov_b32 m0, s30")
            a("s_add_u32 s31, s29, s24")
            for i in range(min(4, per_wave - n)):
                a(f"buffer_load_dwordx4 v{V_L16}, s[4:7], s31 offen offset:{i*1024}{SC} lds")
            n += 4
            if n < per_wave:
                a("s_add_u32 s24, s24, 4096")
    a(f"v_and_b32 v{t0}, 11, v0")
    a(f"v_cmp_eq_u32 vcc, 0, v{t0}")
    a(f"v_mov_b32 v{t1}, 0x3f803f80")
    a("s_lshl_b32 s30, s26, 10")
    a(f"s_add_u32 s30, s30, {CB}")
    a(f"v_cndmask_b32 v{P}, 0, v{t1}, vcc")
    a(f"v_add_u32 v{t0}, s30, v{V_L16}")
    for i in range(1, 4):
        a(f"v_mov_b32 v{P+i}, v{P}")
    a(f"ds_write_b128 v{t0}, {vr(P,4)}")
    a(f"v_lshrrev_b32 v{t0}, 5, v0")
    a(f"v_lshlrev_b32 v{t0}, 8, v{t0}")
    a(f"v_and_b32 v{t1}, 15, v0")
    a(f"v_lshl_add_u32 v{t0}, v{t1}, 4, v{t0}")
    a(f"v_and_b32 v{t1}, 16, v0")
    a(f"v_cmp_eq_u32 vcc, 0, v{t1}")
    a("s_lshl_b32 s30, s27, 15")
    a(f"s_add_u32 s30, s30, {KB}")
    a(f"v_add_u32 v{vK}, s30, v{V_L16}")
    a("s_add_u32 s31, s30, 0x10000")
    a(f"v_mov_b32 v{t1}, s31")
    a(f"v_mov_b32 v{vInc}, {CB}")
    a(f"v_cndmask_b32 v{t1}, v{vInc}, v{t1}, vcc")
    a(f"v_add_u32 v{vV}, v{t0}, v{t1}")
    a(f"v_mov_b32 v{t1}, {VB}")
    a(f"v_cndmask_b32 v{t1}, v{vInc}, v{t1}, vcc")
    a(f"v_add_u32 v{vV0}, v{t0}, v{t1}")
    a(f"v_mov_b32 v{t1}, {U*1024}")
    a(f"v_cndmask_b32 v{vInc}, 0, v{t1}, vcc")
    for q in range(2):
        for i in range(16):
            a(f"v_mov_b32 v{O[q]+i}, 0")
    for i in range(4, 8):
        a(f"v_mov_b32 v{P+i}, 0")
    for i in range(4, 8):
        a(f"v_mov_b32 v{VF[1]+i}, 0")
    a(f"ds_write_b128 v{V_L16}, {vr(VF[1]+4,4)} offset:{XB + 9216}")
    a("s_mul_i32 s30, s26, 2304")
    a(f"s_add_u32 s30, s30, {XB}")
    a("s_lshl_b32 s31, s26, 12")
    a(f"s_add_u32 s31, s31, {XB + 12288}")
    a("s_cmp_eq_u32 s27, 0")
    a("s_cselect_b32 s35, s30, s31")
    a("s_cselect_b32 s36, s31, s30")
    a(f"v_add_u32 v{vPA}, s35, v{V_L16}")
    a(f"v_add_u32 v{vPP}, s36, v{V_L16}")
    a(f"v_add_u32 v{vPA+2}, s35, v{V_L4}")
    a(f"v_add_u32 v{vPP+2}, s36, v{V_L4}")
    a("s_add_u32 s20, s20, s27")
    a("s_lshl_b32 s22, s20, 10")
    a("s_add_u32 s22, s22, s21")
    a("s_xor_b32 s35, s22, 1024")
    a(f"s_add_u32 s36, s21, {B_K:#x}")
    a("s_lshr_b32 s23, s19, 1")
    a(f"s_cmp_eq_u32 s{S_IT}, 0")
    a("s_cselect_b32 s53, 32, 16")
    a("s_cselect_b32 s52, -2, -1")
    a(f"s_cselect_b32 s32, {NIT - env('ATT_PRIO0', 15)}, {NIT - PRIO_IT}")
    a("s_and_b32 s23, s23, s52")
    a("s_lshl_b32 s23, s23, 8")
    a(f"s_add_u32 s23, s23, s{S_FL}")
    assert FL_Q == 0
    a(f"s_mov_b32 s34, {NIT - B2IT}")
    a(f"s_mov_b32 s33, {NIT - B3IT}")
    a("s_waitcnt vmcnt(0) lgkmcnt(0)")
    stamp(a, SB)
    a("s_barrier")
    a(f"s_cmp_lg_u32 s{S_WAVE}, 0")
    a(f"s_cbranch_scc1 {setup}")
    handoff(a, 23, "s53")
    stamp(a, SB + 1)
    a(f"{setup}:")
    a("s_barrier")

    def qk_loads():
        a(f"buffer_load_dwordx4 {vr(KF[1],4)}, v{V_L16}, s[4:7], s36 offen{SC}")
        a(f"buffer_load_dwordx4 {vr(Q[0],4)}, v{V_L16}, s[4:7], s35 offen{SC}")
        a(f"buffer_load_dwordx4 {vr(Q[1],4)}, v{V_L16}, s[4:7], s22 offen{SC}")

    def standin():
        for q in range(2):
            a(f"{MFMA} {vr(S[q],16)}, {vr(KF[1],4)}, {vr(Q[q],4)}, 0")
        a("s_nop 11")
        tt = (t0, t1)
        for q in range(2):
            a(f"v_max3_f32 v{tt[q]}, v{S[q]}, v{S[q]+1}, v{S[q]+2}")
            a(f"v_max3_f32 v{P+q}, v{S[q]+8}, v{S[q]+9}, v{S[q]+10}")
        for i in (3, 5):
            for q in range(2):
                a(f"v_max3_f32 v{tt[q]}, v{tt[q]}, v{S[q]+i}, v{S[q]+i+1}")
                a(f"v_max3_f32 v{P+q}, v{P+q}, v{S[q]+8+i}, v{S[q]+9+i}")
        for q in range(2):
            a(f"v_max3_f32 v{tt[q]}, v{tt[q]}, v{S[q]+7}, v{S[q]+15}")
        for q in range(2):
            a(f"v_max_f32 v{tt[q]}, v{tt[q]}, v{P+q}")
        for q in range(2):
            a(f"v_mov_b32 v{P+q}, v{tt[q]}")
        a("s_nop 0")
        for q in range(2):
            a(f"v_permlane32_swap_b32 v{tt[q]}, v{P+q}")
        for q in range(2):
            a(f"v_min_f32 v{NM[q]}, -v{tt[q]}, -v{P+q}")
        for q in range(2):
            a(f"v_mov_b32 v{NM[q]+1}, v{NM[q]}")
        for q in range(2):
            for i in range(2, 16, 2):
                a(f"v_pk_mov_b32 {vr(NM[q]+i,2)}, {vr(NM[q],2)}, {vr(NM[q],2)}")

    older, join = a.label("older"), a.label("join")
    a("s_cmp_eq_u32 s27, 0")
    a(f"s_cbranch_scc1 {older}")
    dma(0, 2)
    dma(4, 6)
    a("s_waitcnt vmcnt(6)")
    a("s_barrier")
    stamp(a, SB + 2)
    qk_loads()
    dma(16, 8)
    a("s_waitcnt vmcnt(11)")
    a("s_barrier")
    dma(32, 16)
    a("s_waitcnt vmcnt(24)")
    standin()
    a(f"s_cmp_eq_u32 s{S_IT}, 0")
    a(f"s_cselect_b32 s33, {env('X_START', 0)}, 4")
    a(f"s_mov_b32 s34, {NIT - 1}")
    a.c("L2 prefetch (wave 4): this workgroup's share of gate/up (8 x 8 KB) and wo (2 x 8 KB)")
    a(f"s_mul_i32 s50, s{S_IDX}, 59136")
    a(f"s_and_b32 s23, s{S_XCD}, 1")
    a(f"s_mul_i32 s23, s23, {8*231*1024}")
    a("s_add_u32 s50, s50, s23")
    a(f"s_add_u32 s50, s50, {WS_WGU:#x}")
    a(f"s_lshl_b32 s51, s{S_IDX}, 14")
    a(f"s_add_u32 s51, s51, {WS_WO:#x}")
    a("s_waitcnt vmcnt(0)")
    a("s_barrier")
    a("s_setprio 1")
    a(f"ds_read_b128 {vr(KF[0],4)}, v{vK}")
    a(f"ds_read_b128 {vr(VF[0],4)}, v{vV}")
    a(f"ds_read_b128 {vr(VF[0]+4,4)}, v{vV} offset:512")
    a("s_waitcnt lgkmcnt(0)")
    a(f"{MFMA} {vr(S[0],16)}, {vr(KF[0],4)}, {vr(Q[0],4)}, {vr(NM[0],16)}")
    a("s_nop 10")
    a(f"s_branch {join}")
    a(f"{older}:")
    qk_loads()
    a("s_waitcnt vmcnt(0)")
    standin()
    a(f"{MFMA} {vr(S[0],16)}, {vr(KF[1],4)}, {vr(Q[0],4)}, {vr(NM[0],16)}")
    a("s_barrier")
    stamp(a, SB + 2)
    a(f"ds_read_b128 {vr(VF[0],4)}, v{vV}")
    a(f"ds_read_b128 {vr(VF[0]+4,4)}, v{vV} offset:512")
    for i in range(0, 4, 2):
        a(f"v_pk_mov_b32 {vr(KF[0]+i,2)}, {vr(KF[1]+i,2)}, {vr(KF[1]+i,2)} op_sel:[0,1]")
    a("s_waitcnt lgkmcnt(0)")
    a("s_nop 5")
    a(f"{join}:")
    a(f"s_mov_b32 s31, {NIT}")
    stamp(a, SB + 3)
    lp, hook = a.label("attn"), a.label("hook")
    back = lp
    a(f"{lp}:")
    order = os.environ.get("ATT_ORD", "E0 E1 P1 RK D E2 E3 C0 E4 E5 C1 E6 W QK R0 E7 C2 E8 C3 E9 E10 C4 E11 P0 R1 S E12 C5 E13 E14 E15 C6 A C7").split()
    for u in range(U):
        for q in range(2):
            c = S[q]
            for tok in order:
                if tok[0] == "E":
                    i = int(tok[1:]); a(f"v_exp_f32 v{c+i}, v{c+i}")
                elif tok[0] == "C":
                    j = int(tok[1:]); a(f"v_cvt_pk_bf16_f32 v{P+j}, v{c+2*j}, v{c+2*j+1}")
                elif tok == "P1":
                    pv = VF[(u + 1) & 1] if q == 0 else VF[u & 1]
                    a(f"{MFMA} {vr(O[q^1],16)}, {vr(pv+4,4)}, {vr(P+4,4)}, {vr(O[q^1],16)}")
                elif tok == "P0":
                    a(f"{MFMA} {vr(O[q],16)}, {vr(VF[u&1],4)}, {vr(P,4)}, {vr(O[q],16)}")
                elif tok == "QK":
                    k_ = KF[u & 1] if q == 0 else KF[(u + 1) & 1]
                    a(f"{MFMA} {vr(S[q^1],16)}, {vr(k_,4)}, {vr(Q[q^1],4)}, {vr(NM[q^1],16)}")
                elif tok == "W":
                    if q == 1:
                        a("s_waitcnt lgkmcnt(0)")
                elif tok == "RK":
                    if q == 0:
                        a(f"ds_read_b128 {vr(KF[(u+1)&1],4)}, v{vK} offset:{(u+1)*1024}")
                elif tok == "R0":
                    if q == 0:
                        a(f"ds_read_b128 {vr(VF[(u+1)&1],4)}, v{vV} offset:{(u+1)*1024}")
                elif tok == "R1":
                    if q == 0:
                        a(f"ds_read_b128 {vr(VF[(u+1)&1]+4,4)}, v{vV} offset:{(u+1)*1024+512}")
                elif tok == "A":
                    if u == U - 1 and q == 1:
                        a(f"v_add_u32 v{vK}, {U*1024}, v{vK}")
                        a(f"v_add_u32 v{vV}, v{vInc}, v{vV}")
                elif tok == "D":
                    if 2 * u + q == env("ATT_PU", 1):
                        sk = a.label("keep")
                        a("s_cmp_lg_u32 s31, s32")
                        a(f"s_cbranch_scc1 {sk}")
                        a("s_setprio 0")
                        a(f"{sk}:")
                elif tok == "S":
                    if u == U - 1 and q == 1:
                        a("s_sub_u32 s31, s31, 1")
                        a("s_cmp_lg_u32 s31, s34")
    if "S" not in order:
        a("s_sub_u32 s31, s31, 1")
        a("s_cmp_lg_u32 s31, s34")
    a(f"s_cbranch_scc1 {lp}")
    a("s_cmp_lg_u32 s31, 0")
    a(f"s_cbranch_scc1 {hook}")
    a("s_setprio 0")
    a(f"{MFMA} {vr(O[1],16)}, {vr(VF[1]+4,4)}, {vr(P+4,4)}, {vr(O[1],16)}")
    stamp(a, SB + 4)
    a(f"ds_write_b128 v{vPA}, {vr(O[0],4)}")
    a(f"ds_write_b128 v{vPA}, {vr(O[0]+4,4)} offset:1024")
    a(f"ds_write_b32 v{vPA+2}, v{O[0]+8} offset:2048")
    a("s_lshl_b32 s22, s20, 15")
    a("s_lshl_b32 s23, s19, 10")
    a("s_add_u32 s22, s22, s23")
    a(f"s_add_u32 s22, s22, s{S_BASE}")
    a(f"s_add_u32 s22, s22, {B_O:#x}")
    a(f"s_lshl_b32 s{S_SIG}, s20, 8")
    a(f"s_add_u32 s{S_SIG}, s{S_SIG}, s{S_FL}")
    a(f"s_add_u32 s{S_SIG}, s{S_SIG}, {FL_A:#x}")
    a("s_waitcnt vmcnt(0) lgkmcnt(0)")
    a("s_barrier")
    a(f"ds_read_b32 v{S[0]+8}, v{vPP+2} offset:2048")
    a(f"ds_read_b128 {vr(S[0],4)}, v{vPP}")
    a(f"ds_read_b128 {vr(S[0]+4,4)}, v{vPP} offset:1024")
    OO = O[1]
    a("s_waitcnt lgkmcnt(2)")
    a(f"v_add_f32 v{OO+8}, v{OO+8}, v{S[0]+8}")
    a(f"v_rcp_f32 v{t0}, v{OO+8}")
    for i in range(0, 8, 2):
        if i % 4 == 0:
            a(f"s_waitcnt lgkmcnt({1 - i // 4})")
        a(f"v_pk_add_f32 {vr(OO+i,2)}, {vr(OO+i,2)}, {vr(S[0]+i,2)}")
    fin, fb, endl = a.label("fin"), a.label("fallback"), a.label("att_end")
    a(f"v_pk_add_f32 {vr(S[0],2)}, {vr(OO,2)}, {vr(OO+2,2)}")
    a(f"v_pk_add_f32 {vr(S[0]+2,2)}, {vr(OO+4,2)}, {vr(OO+6,2)}")
    a(f"v_pk_add_f32 {vr(S[0],2)}, {vr(S[0],2)}, {vr(S[0]+2,2)}")
    a(f"v_add_f32 v{t1}, v{S[0]}, v{S[0]+1}")
    a(f"v_fma_f32 v{t1}, 0, v{t1}, v{OO+8}")
    a(f"v_cmp_ngt_f32 vcc, {f32bits(2.0**64):#x}, v{t1}")
    a("s_nop 0")
    a(f"s_cbranch_vccnz {fb}")
    a(f"{fin}:")
    assert t0 % 2 == 0
    for i in range(0, 8, 2):
        a(f"v_pk_mul_f32 {vr(OO+i,2)}, {vr(OO+i,2)}, {vr(t0,2)} op_sel_hi:[1,0]")
    for i in range(4):
        a(f"v_cvt_pk_bf16_f32 v{P+i}, v{OO+2*i}, v{OO+2*i+1}")
    a(f"buffer_store_dwordx4 {vr(P,4)}, v{V_L16}, s[4:7], s22 offen{SC}")
    a("s_barrier")
    stamp(a, SB + 5)
    a(f"s_branch {endl}")
    a(f"{hook}:")
    hp = a.label("hookp")
    a("s_cmp_eq_u32 s27, 0")
    a(f"s_cbranch_scc0 {hp}")
    a("s_barrier")
    a("s_mov_b32 s34, s33")
    a("s_mov_b32 s33, 0")
    a(f"s_add_u32 s23, s34, s{S_IT}")
    a("s_cmp_lg_u32 s23, 0")
    a(f"s_cbranch_scc1 {back}")
    a.c("residual tile of x for the first output projection")
    a(f"v_and_b32 v{V_TF}, 31, v0")
    a(f"v_lshlrev_b32 v{V_TF}, 10, v{V_TF}")
    a(f"v_lshrrev_b32 v{V_TF+1}, 5, v0")
    a(f"v_lshl_add_u32 v{V_TF}, v{V_TF+1}, 4, v{V_TF}")
    a(f"s_and_b32 s23, s{S_WAVE}, 1")
    a(f"s_add_u32 s23, s23, s{S_TT64}")
    a("s_lshl_b32 s23, s23, 15")
    a(f"s_lshl_b32 s24, s{S_NT64}, 1")
    a(f"s_lshr_b32 s25, s{S_WAVE}, 1")
    a("s_add_u32 s24, s24, s25")
    a("s_lshl_b32 s24, s24, 6")
    a("s_add_u32 s23, s23, s24")
    a(f"buffer_load_dwordx4 {vr(V_RES,4)}, v{V_TF}, s[8:11], s23 offen")
    a(f"buffer_load_dwordx4 {vr(V_RES+4,4)}, v{V_TF}, s[8:11], s23 offen offset:32")
    a(f"s_branch {back}")
    a(f"{hp}:")
    gaps = [3, 2, 2, 1, 1, 1]
    STG_IT = env("ATT_STG", 12)
    assert 1 + sum(gaps) < STG_IT < PRIO_IT
    hs = [a.label(f"hs{i}") for i in range(9)]
    for i in (0, 1, 2, 3, 6, 7):
        a(f"s_cmp_eq_u32 s33, {i}")
        a(f"s_cbranch_scc1 {hs[i]}")
    HS = env("HSTAMP", 0)
    def next_step(i):
        if i - HS in (0, 1):
            stamp(a, 1 + 2 * (i - HS))
        a("s_add_u32 s33, s33, 1")
        a(f"s_sub_u32 s34, s34, {gaps[i]}")
        a(f"s_branch {back}")
    a(f"s_cmp_lg_u32 s{S_WAVE}, 4")
    a(f"s_cbranch_scc1 {hs[6]}")
    for i in range(PFN):
        a(f"buffer_load_dword v{V_PF}, v{V_L128}, s[4:7], s50 offen{SC}")
        a("s_add_u32 s50, s50, 8192")
    a(f"buffer_load_dword v{V_PF}, v{V_L128}, s[4:7], s51 offen{SC}")
    a("s_xor_b32 s51, s51, 8192")
    next_step(4)
    a(f"{hs[6]}:")
    a("s_mov_b32 s33, 7")
    a(f"s_mov_b32 s34, {NIT - STG_IT}")
    a(f"s_branch {back}")
    a(f"{hs[7]}:")
    if NPRE:
        lp7, ok7 = a.label("fpoll"), a.label("fok")
        a(f"s_cmp_lg_u32 s{S_IT}, 0")
        a(f"s_cbranch_scc1 {ok7}")
        a(f"v_mov_b32 v{V_TF}, {XB + 9216 + 8}")
        a(f"s_mov_b32 s39, {SPIN_MAX}")
        a(f"{lp7}:")
        a(f"ds_read_b32 v{V_TF+1}, v{V_TF}")
        a("s_sub_u32 s39, s39, 1")
        a("s_waitcnt lgkmcnt(0)")
        a(f"v_cmp_eq_u32 vcc, 0, v{V_TF+1}")
        a("s_cmp_eq_u32 s39, 0")
        a(f"s_cbranch_scc1 {ok7}")
        a(f"s_cbranch_vccnz {lp7}")
        a(f"{ok7}:")
        a.c("fetch the last rounds of the down weights into free registers")
        a(f"s_mul_i32 s23, s{S_NT64}, {224*1024}")
        a("s_lshl_b32 s62, s26, 12")
        a("s_add_u32 s23, s23, s62")
        a(f"s_add_u32 s23, s23, {WS_WD + (14 - NPRE)*RB:#x}")
        assert VS + (14 - NPRE) * 16 >= V_TF
        for k in range(NPRE):
            for i in range(4):
                a(f"buffer_load_dwordx4 {vr(VS + (14-NPRE+k)*16 + 4*i, 4)}, v{V_L16}, s[4:7], s23 offen offset:{i*1024}{SC}")
            a(f"s_add_u32 s23, s23, {RB}")
    a("s_mov_b32 s34, 0")
    a(f"s_branch {back}")
    F, G_, vS, vR, vC = V_TF, V_TF + 32, V_TF + 48, V_TF + 49, V_TF + 52
    CSA = XB + 10240
    CNT = XB + 9216
    a(f"{hs[0]}:")
    if 0 - HS in (0, 1):
        stamp(a, 2 * (0 - HS))
    a.c("re-tiling task: 128 rows x two 64-column strips; this wave takes 32 rows")
    l_gu, l_o, l_d, l_go = [a.label(x) for x in ("gu", "o", "d", "go")]
    a("s_cmp_ge_u32 s2, 176")
    a(f"s_cbranch_scc1 {l_d}")
    a("s_cmp_ge_u32 s2, 160")
    a(f"s_cbranch_scc1 {l_o}")
    a("s_cmp_ge_u32 s2, 48")
    a(f"s_cbranch_scc1 {l_gu}")
    srd(a, 80, 66, 67, 512 * 1536 * 2)
    srd(a, 84, 66, 67, 512 * 1536 * 2)
    a("s_and_b32 s79, s2, 3")
    a("s_lshr_b32 s54, s2, 2")
    a("s_mov_b32 s88, 3072")
    a("s_lshl_b32 s89, s54, 8")
    a("s_add_u32 s90, s89, 128")
    a("s_mov_b32 s91, 0")
    a("s_and_b32 s62, s54, 3")
    a(f"s_mul_i32 s96, s62, {4*99*1024}")
    a("s_lshr_b32 s62, s54, 2")
    a("s_lshl_b32 s62, s62, 10")
    a("s_add_u32 s96, s96, s62")
    assert WS_WQKV == 0
    a(f"s_add_u32 s97, s96, {99*1024}")
    a(f"s_add_u32 s100, s96, {2*99*1024}")
    a(f"s_add_u32 s101, s96, {3*99*1024}")
    for d in (72, 73, 74, 75):
        a(f"s_mov_b32 s{d}, 3072")
    a("s_mov_b32 s63, 1")
    a("s_mov_b32 s93, 0")
    a(f"s_branch {l_go}")
    a(f"{l_gu}:")
    srd(a, 80, 72, 73, 512 * 1792 * 2)
    srd(a, 84, 74, 75, 512 * 1792 * 2)
    a("s_sub_u32 s55, s2, 48")
    a("s_and_b32 s79, s55, 3")
    a("s_lshr_b32 s54, s55, 2")
    a("s_mov_b32 s88, 3584")
    a("s_lshl_b32 s89, s54, 7")
    a("s_mov_b32 s90, s89")
    a("s_mov_b32 s91, 1")
    a("s_lshl_b32 s55, s54, 2")
    for d, e in zip((96, 97, 100, 101), (72, 73, 74, 75)):
        a("s_mul_i32 s62, s55, 9363")
        a("s_lshr_b32 s62, s62, 16")
        a(f"s_mul_i32 s{d}, s62, {231*1024}")
        a("s_mul_i32 s62, s62, 7")
        a("s_sub_u32 s62, s55, s62")
        pass_of(a, 62, 78, e)
        a(f"s_lshl_b32 s{e}, s{e}, 10")
        a("s_lshl_b32 s78, s78, 5")
        a("s_add_u32 s62, s62, s78")
        a("s_lshl_b32 s62, s62, 10")
        a(f"s_add_u32 s{d}, s{d}, s62")
        a(f"s_add_u32 s{d}, s{d}, {WS_WGU:#x}")
        a("s_add_u32 s55, s55, 1")
    a("s_mov_b32 s63, 1")
    a("s_mov_b32 s93, 0")
    a(f"s_branch {l_go}")
    for lab, first, lo, nbytes, wnt, wbase in ((l_o, 160, 68, 512 * 512 * 2, 64 * 1024, WS_WO),
                                               (l_d, 176, 76, 1792 * 512 * 2, 224 * 1024, WS_WD)):
        a(f"{lab}:")
        srd(a, 80, lo, lo + 1, nbytes)
        srd(a, 84, lo, lo + 1, nbytes)
        a(f"s_sub_u32 s55, s2, {first}")
        a("s_lshr_b32 s79, s55, 2")
        a("s_and_b32 s54, s55, 3")
        a("s_mov_b32 s88, 1024")
        a("s_lshl_b32 s89, s54, 8")
        a("s_add_u32 s90, s89, 128")
        a("s_mov_b32 s91, 0")
        a(f"s_mul_i32 s96, s54, {2*wnt}")
        a(f"s_add_u32 s96, s96, {wbase:#x}")
        a("s_add_u32 s97, s96, 1024")
        a(f"s_add_u32 s100, s96, {wnt}")
        a(f"s_add_u32 s101, s96, {wnt+1024}")
        for d in (72, 73, 74, 75):
            a(f"s_mov_b32 s{d}, 2048")
        a(f"s_mov_b32 s93, {0 if lab == l_o else 1}")
        a("s_mov_b32 s63, 0")
        if lab == l_o:
            a(f"s_branch {l_go}")
    a(f"{l_go}:")
    a("s_lshl_b32 s62, s79, 2")
    a("s_add_u32 s62, s62, s26")
    a("s_lshl_b32 s92, s62, 1")
    for d, inc in ((76, 0), (77, 1)):
        a(f"s_add_u32 s{d}, s92, {inc}")
        a(f"s_mul_i32 s54, s{d}, 9363")
        a("s_lshr_b32 s54, s54, 16")
        a("s_mul_i32 s55, s54, 7")
        a(f"s_sub_u32 s55, s{d}, s55")
        pass_of(a, 55, 78, 49)
        a("s_mul_i32 s54, s54, s49")
        a("s_mul_i32 s78, s78, 15")
        a("s_add_u32 s54, s54, s78")
        a("s_add_u32 s54, s54, s55")
        a("s_cmp_eq_u32 s93, 0")
        a(f"s_cselect_b32 s{d}, s{d}, s54")
    a("s_lshl_b32 s62, s62, 5")
    a("s_mul_i32 s62, s62, s88")
    a("s_add_u32 s89, s89, s62")
    a("s_add_u32 s90, s90, s62")
    a("s_lshl_b32 s55, s88, 3")
    a(f"v_lshrrev_b32 v{vS}, 3, v0")
    a(f"v_mul_lo_u32 v{vS}, v{vS}, s88")
    a(f"v_and_b32 v{vR}, 7, v0")
    a(f"v_lshl_add_u32 v{vS}, v{vR}, 4, v{vS}")
    for g8 in range(4):
        for h in range(2):
            a(f"buffer_load_dwordx4 {vr(F+8*g8+4*h,4)}, v{vS}, s[{80+4*h}:{83+4*h}], s{89+h} offen")
            a(f"s_add_u32 s{89+h}, s{89+h}, s55")
    next_step(0)
    a(f"{hs[1]}:")
    if 1 - HS in (0, 1):
        stamp(a, 2 * (1 - HS))
    nost = a.label("nostore")
    a("s_cmp_ge_u32 s2, 232")
    a(f"s_cbranch_scc1 {nost}")
    a("s_lshl_b32 s62, s26, 12")
    a(f"s_add_u32 s62, s62, {XB + 12288}")
    a(f"v_add_u32 v{vS}, s62, v{V_L16}")
    a(f"v_and_b32 v{vC}, 1, v0")
    a(f"v_bfe_u32 v{vC+1}, v0, 1, 1")
    a(f"v_lshl_add_u32 v{vC}, v{vC}, 1, v{vC+1}")
    a(f"v_lshrrev_b32 v{vR}, 5, v0")
    a(f"v_bfe_u32 v{vC+1}, v0, 2, 2")
    a(f"v_lshl_add_u32 v{vR}, v{vR}, 3, v{vC+1}")
    a(f"v_lshlrev_b32 v{vR}, 7, v{vR}")
    a(f"v_lshl_add_u32 v{vR}, v{vC}, 3, v{vR}")
    a("s_cmp_eq_u32 s91, 0")
    a("s_cselect_b32 s54, 5, 11")
    a("s_cselect_b32 s55, 64, 32")
    a("s_cselect_b32 s78, 2048, 64")
    a(f"v_bfe_u32 v{vC+1}, v0, 4, 1")
    a(f"v_lshlrev_b32 v{vC+1}, s54, v{vC+1}")
    a(f"v_add3_u32 v{vR}, v{vR}, v{vC+1}, s62")
    a(f"v_add_u32 v{vR+1}, s55, v{vR}")
    a(f"v_add_u32 v{vR+2}, s78, v{vR}")
    a(f"v_add_u32 v{vC+4}, s78, v{vR+1}")
    tr_addr = [vR, vR + 1, vR + 2, vC + 4]
    dests = (96, 97, 100, 101)
    a("s_mov_b32 s49, 0x3f803f80")
    a("s_waitcnt vmcnt(0)")
    for half in range(2):
        dst = G_ if half == 0 else F
        for g8 in range(2):
            for h in range(2):
                a(f"ds_write_b128 v{vS}, {vr(F+16*half+8*g8+4*h,4)} offset:{h*2048 + g8*1024}")
        for t in range(4):
            for jj in range(2):
                a(f"ds_read_b64_tr_b16 {vr(dst+4*t+2*jj,2)}, v{tr_addr[t]} offset:{jj*512}")
        a("s_waitcnt lgkmcnt(0)")
        for t in range(4):
            a(f"s_mul_i32 s62, s{76+half}, s{72+t}")
            a(f"s_add_u32 s62, s62, s{dests[t]}")
            if not env("X_NOST", 0):
                a(f"buffer_store_dwordx4 {vr(dst+4*t,4)}, v{V_L16}, s[4:7], s62 offen{'' if env('X_PLAIN', 0) else SC}")
    a("s_cmp_eq_u32 s63, 0")
    a(f"s_cbranch_scc1 {nost}")
    if env("X_NOCS", 0):
        a(f"s_branch {nost}")
    for t in range(4):
        a(f"v_mov_b32 v{vC+t}, 0")
    for k in range(4):
        for t in range(4):
            a(f"v_dot2c_f32_bf16 v{vC+t}, s49, v{G_+4*t+k}")
        for t in range(4):
            a(f"v_dot2c_f32_bf16 v{vC+t}, s49, v{F+4*t+k}")
    a("s_lshl_b32 s62, s26, 9")
    a(f"v_add_u32 v{vS}, s62, v{V_L4}")
    a(f"v_mov_b32 v{vR}, 1")
    a(f"v_mov_b32 v{vR+1}, {CNT}")
    a(f"v_permlane32_swap_b32 v{vC}, v{vC+1}")
    a(f"v_permlane32_swap_b32 v{vC+2}, v{vC+3}")
    a("s_nop 0")
    a(f"v_add_f32 v{vC}, v{vC}, v{vC+1}")
    a(f"v_add_f32 v{vC+2}, v{vC+2}, v{vC+3}")
    a(f"ds_write_b32 v{vS}, v{vC} offset:{CSA}")
    a(f"ds_write_b32 v{vS}, v{vC+2} offset:{CSA + 256}")
    a("s_mov_b64 exec, 1")
    a(f"ds_add_rtn_u32 v{vR+2}, v{vR+1}, v{vR}")
    a("s_mov_b64 exec, -1")
    a("s_waitcnt lgkmcnt(0)")
    a(f"v_readfirstlane_b32 s62, v{vR+2}")
    a("s_nop 0")
    a("s_cmp_lg_u32 s62, 3")
    a(f"s_cbranch_scc1 {nost}")
    a.c("last of the four waves: write the column-sum pieces")
    for w in range(4):
        for p in range(2):
            a(f"ds_read_b32 v{F+16+2*w+p}, v{V_L4} offset:{CSA + w*512 + p*256}")
    for t in range(4):
        a(f"s_lshl_b32 s62, s{72+t}, 5")
        a(f"s_add_u32 s{dests[t]}, s{dests[t]}, s62")
    a("s_lshr_b32 s92, s79, 1")
    a("s_lshl_b32 s92, s92, 9")
    a("s_and_b32 s62, s79, 1")
    a("s_lshl_b32 s62, s62, 3")
    a("s_add_u32 s92, s92, s62")
    a("v_cmp_gt_u32 vcc, 32, v0")
    a(f"v_and_b32 v{vS}, 0x1ff, v{V_L16}")
    for p in range(2):
        a(f"v_mov_b32 v{vC}, s{dests[2*p]}")
        a(f"v_mov_b32 v{vC+1}, s{dests[2*p+1]}")
        a(f"v_cndmask_b32 v{vC}, v{vC+1}, v{vC}, vcc")
        a(f"v_add_u32 v{vR+p}, v{vC}, v{vS}")
    a("s_waitcnt lgkmcnt(0)")
    for p in range(2):
        c, o = F + 16 + p, F + 24 + 2 * p
        for w in range(1, 4):
            a(f"v_add_f32 v{c}, v{c}, v{c+2*w}")
        a(f"v_cvt_pk_bf16_f32 v{o}, v{c}, v{c}")
        a(f"v_lshlrev_b32 v{o}, 16, v{o}")
        a(f"v_sub_f32 v{o}, v{c}, v{o}")
        a(f"v_cvt_pk_bf16_f32 v{o}, v{c}, v{o}")
        a(f"v_mov_b32 v{o+1}, v{o}")
        a(f"buffer_store_dwordx2 {vr(o,2)}, v{vR+p}, s[4:7], s92 offen{SC}")
    a(f"{nost}:")
    next_step(1)
    a(f"{hs[2]}:")
    if 2 - HS in (0, 1):
        stamp(a, 2 * (2 - HS))
    nsig = a.label("nosig")
    a(f"v_mov_b32 v{vR}, 1")
    a(f"v_mov_b32 v{vR+1}, {CNT + 4}")
    a("s_waitcnt vmcnt(0)")
    a("s_mov_b64 exec, 1")
    a(f"ds_add_rtn_u32 v{vR+2}, v{vR+1}, v{vR}")
    a("s_mov_b64 exec, -1")
    a("s_and_b32 s23, s2, 15")
    a("s_lshl_b32 s23, s23, 8")
    a(f"s_add_u32 s23, s23, {FL_W:#x}")
    a("s_mov_b32 s38, 1")
    a("s_waitcnt lgkmcnt(0)")
    a(f"v_readfirstlane_b32 s62, v{vR+2}")
    a("s_nop 0")
    a("s_cmp_lg_u32 s62, 3")
    a(f"s_cbranch_scc1 {nsig}")
    a("s_atomic_add s38, s[14:15], s23")
    a(f"{nsig}:")
    if env("WARM", 1):
        a.c("pull the rest of the code into L2 and touch every workspace page once")
        here = a.label("here")
        a("s_getpc_b64 s[98:99]")
        a(f"{here}:")
        a("s_lshl_b32 s62, s26, 13")
        a(f"v_add_u32 v{vC}, s62, v{V_L128}")
        a(f"v_min_u32 v{vC}, {code_end} - {here}, v{vC}")
        a(f"v_lshlrev_b32 v{vC+1}, 20, v0")
        a(f"global_load_dword v{V_PF}, v{vC}, s[98:99]")
        a(f"buffer_load_dword v{V_PF}, v{vC+1}, s[4:7], 0 offen sc1")
    next_step(2)
    a(f"{hs[3]}:")
    if 3 - HS in (0, 1):
        stamp(a, 2 * (3 - HS))
    a.c("the re-tiled weights are complete once all 16 arrival counters are")
    lp0, ok0 = a.label("wpoll"), a.label("wok")
    a(f"s_cmp_lg_u32 s{S_WAVE}, 4")
    a(f"s_cbranch_scc1 {hs[6]}")
    a(f"v_and_b32 v{vS}, 15, v0")
    a(f"v_lshlrev_b32 v{vS}, 8, v{vS}")
    a(f"s_mov_b32 s23, {WS_FLAG + FL_W:#x}")
    a(f"s_mov_b32 s39, {SPIN_MAX}")
    a(f"{lp0}:")
    a(f"buffer_load_dword v{vR}, v{vS}, s[4:7], s23 offen sc1")
    a("s_sub_u32 s39, s39, 1")
    a("s_waitcnt vmcnt(0)")
    a(f"v_cmp_gt_u32 vcc, 16, v{vR}")
    a("s_cmp_eq_u32 s39, 0")
    a(f"s_cbranch_scc1 {ok0}")
    a(f"s_cbranch_vccz {ok0}")
    a("s_sleep 8")
    a(f"s_branch {lp0}")
    a(f"{ok0}:")
    a(f"v_mov_b32 v{vS}, {CNT + 8}")
    a(f"ds_write_b32 v{vS}, v{vS}")
    next_step(3)
    a(f"{fb}:")
    a(f"v_add_u32 v{vK}, {KB}, v{V_L16}")
    a(f"v_mov_b32 v{t0}, 0xff800000")
    a("s_mov_b32 s31, 64")
    lp2 = a.label("maxl")
    a(f"{lp2}:")
    a(f"ds_read_b128 {vr(KF[0],4)}, v{vK}")
    a(f"v_add_u32 v{vK}, 1024, v{vK}")
    a("s_waitcnt lgkmcnt(0)")
    a(f"{MFMA} {vr(S[0],16)}, {vr(KF[0],4)}, {vr(Q[1],4)}, 0")
    a("s_nop 15")
    for i in range(0, 16, 2):
        a(f"v_max3_f32 v{t0}, v{t0}, v{S[0]+i}, v{S[0]+i+1}")
    a("s_sub_u32 s31, s31, 1")
    a("s_cmp_lg_u32 s31, 0")
    a(f"s_cbranch_scc1 {lp2}")
    a(f"v_mov_b32 v{t1}, v{t0}")
    a("s_nop 1")
    a(f"v_permlane32_swap_b32 v{t0}, v{t1}")
    a("s_nop 1")
    a(f"v_max_f32 v{t0}, v{t0}, v{t1}")
    for i in range(16):
        a(f"v_sub_f32 v{NM[0]+i}, 0, v{t0}")
        a(f"v_mov_b32 v{OO+i}, 0")
    a(f"v_add_u32 v{vK}, {KB}, v{V_L16}")
    a(f"v_mov_b32 v{vV}, v{vV0}")
    a(f"v_lshrrev_b32 v{vInc}, {U.bit_length()-1}, v{vInc}")
    a("s_mov_b32 s31, 64")
    lp3 = a.label("pass2")
    a(f"{lp3}:")
    a(f"ds_read_b128 {vr(KF[0],4)}, v{vK}")
    a(f"ds_read_b128 {vr(VF[0],4)}, v{vV}")
    a(f"ds_read_b128 {vr(VF[0]+4,4)}, v{vV} offset:512")
    a(f"v_add_u32 v{vK}, 1024, v{vK}")
    a(f"v_add_u32 v{vV}, v{vInc}, v{vV}")
    a("s_waitcnt lgkmcnt(0)")
    a(f"{MFMA} {vr(S[0],16)}, {vr(KF[0],4)}, {vr(Q[1],4)}, {vr(NM[0],16)}")
    a("s_nop 15")
    for i in range(16):
        a(f"v_exp_f32 v{S[0]+i}, v{S[0]+i}")
    a("s_nop 0")
    for j in range(8):
        a(f"v_cvt_pk_bf16_f32 v{P+j}, v{S[0]+2*j}, v{S[0]+2*j+1}")
    a("s_nop 1")
    a(f"{MFMA} {vr(OO,16)}, {vr(VF[0],4)}, {vr(P,4)}, {vr(OO,16)}")
    a(f"{MFMA} {vr(OO,16)}, {vr(VF[0]+4,4)}, {vr(P+4,4)}, {vr(OO,16)}")
    a("s_sub_u32 s31, s31, 1")
    a("s_cmp_lg_u32 s31, 0")
    a("s_nop 7")
    a(f"s_cbranch_scc1 {lp3}")
    a("s_nop 15")
    a(f"v_rcp_f32 v{t0}, v{OO+8}")
    a("s_nop 0")
    a(f"s_branch {fin}")
    a(f"{endl}:")
    return R.n


def gen_main(a):
    name = NAME + "_kernel"
    kernel_header(a, name)
    done = a.label("done")
    a("s_cmp_ge_u32 s2, 256")
    a(f"s_cbranch_scc1 {done}")
    a(f"s_load_dwordx4 s[64:67], s[0:1], {KA_X}")
    a.c("pull the first 8 KB of code into L2 (one 128-byte line per 8 lanes of the workgroup)")
    a("s_getpc_b64 s[98:99]")
    a(f"v_lshlrev_b32 v{V_FREE}, 4, v0")
    a(f"global_load_dword v{V_PF}, v{V_FREE}, s[98:99]")
    a(f"s_and_b32 s{S_XCD}, s2, 7")
    a("s_bfe_u32 s19, s2, 0x20003")
    a(f"s_lshl2_add_u32 s19, s{S_XCD}, s19")
    a("v_lshrrev_b32 v1, 6, v0")
    a("v_and_b32 v0, 63, v0")
    a(f"v_lshlrev_b32 v{V_L16}, 4, v0")
    a(f"v_lshl_add_u32 v{V_FREE}, s19, 3, v1")
    a(f"v_lshl_add_u32 v{V_FREE}, v{V_FREE}, 13, v{V_L16}")
    a("s_waitcnt lgkmcnt(0)")
    a("s_add_u32 s20, s64, 4096")
    a("s_addc_u32 s21, s65, 0")
    for r in range(8):
        a(f"global_load_dwordx4 {vr(V_FREE+4+4*r,4)}, v{V_FREE}, s[20:21] offset:{r*1024-4096}")
    a(f"s_load_dwordx2 s[68:69], s[0:1], {KA_WO}")
    a(f"s_load_dwordx4 s[72:75], s[0:1], {KA_WG}")
    a(f"s_load_dwordx2 s[76:77], s[0:1], {KA_WD}")
    a(f"s_load_dwordx2 s[70:71], s[0:1], {KA_OUT}")
    a(f"s_load_dwordx2 s[94:95], s[0:1], {KA_DBG}")
    a(f"s_load_dwordx2 s[12:13], s[0:1], {KA_WS}")
    a(f"v_readfirstlane_b32 s{S_WAVE}, v1")
    a(f"v_lshlrev_b32 v{V_L128}, 7, v0")
    a(f"s_lshr_b32 s{S_IDX}, s2, 3")
    srd(a, 20, 66, 67, 512 * 1536 * 2)
    if env("TOUCH", 1):
        a.c("cooperative first touch of wqkv: 6 KB per wave")
        a(f"s_lshl3_add_u32 s27, s{S_IDX}, s{S_WAVE}")
        a("s_mul_i32 s27, s27, 6144")
        a("s_mov_b32 exec_hi, 0xffff")
        a(f"buffer_load_dword v{V_PF}, v{V_L128}, s[20:23], s27 offen")
        a("s_mov_b64 exec, -1")
    a(f"s_and_b32 s{S_TT128}, s{S_IDX}, 3")
    a(f"s_lshr_b32 s19, s{S_XCD}, 1")
    a("s_lshl_b32 s19, s19, 2")
    a(f"s_add_u32 s{S_TT128}, s{S_TT128}, s19")
    a(f"s_lshl_b32 s{S_TT128}, s{S_TT128}, 2")
    a(f"s_lshr_b32 s{S_NT128}, s{S_IDX}, 2")
    a(f"s_and_b32 s19, s{S_XCD}, 1")
    a("s_lshl_b32 s19, s19, 3")
    a(f"s_add_u32 s{S_NT128}, s{S_NT128}, s19")
    a(f"s_and_b32 s{S_TT64}, s{S_IDX}, 3")
    a(f"s_lshl_b32 s19, s{S_XCD}, 2")
    a(f"s_add_u32 s{S_TT64}, s{S_TT64}, s19")
    a(f"s_lshl_b32 s{S_TT64}, s{S_TT64}, 1")
    a(f"s_lshr_b32 s{S_NT64}, s{S_IDX}, 2")
    a(f"s_mov_b32 s{S_IT}, 0")
    a(f"s_mov_b32 s{S_BASE}, {WS_IT0:#x}")
    a(f"s_mov_b32 s{S_FL}, 0")
    a(f"s_mov_b32 s{S_SIG}, 0")
    a(f"v_and_b32 v{V_ST}, 31, v0")
    a(f"v_lshlrev_b32 v{V_ST}, 3, v{V_ST}")
    a(f"v_lshrrev_b32 v1, 5, v0")
    a(f"v_lshl_add_u32 v{V_ST}, v1, 2, v{V_ST}")
    a(f"v_lshlrev_b32 v{V_L4}, 2, v0")
    if STAMP:
        a(f"v_mov_b32 v{V_STAMP}, 0")
        a(f"v_mov_b32 v{V_STAMP+1}, 0")
    stamp(a, 31)
    att, fin = a.label("att"), a.label("fin")
    nv = [first_phase(a, att, done)]
    a(f"{att}:")
    nv.append(attn_phase(a, 5, done))
    S = Stream(a)
    if GMX == 4:
        a(f"s_mov_b32 s{S_TTG}, s{S_TT128}")
        a(f"s_mov_b32 s{S_NTG}, s{S_NT128}")
    else:
        a(f"s_and_b32 s{S_TTG}, s{S_IDX}, 1")
        a(f"s_lshl_b32 s19, s{S_XCD}, 1")
        a(f"s_add_u32 s{S_TTG}, s{S_TTG}, s19")
        a(f"s_lshl_b32 s{S_TTG}, s{S_TTG}, 2")
        a(f"s_lshr_b32 s{S_NTG}, s{S_IDX}, 1")
    nv.append(gemm_phase(a, Cfg(name="oproj", kind="res", LB=5 * RB, XB=0, stream=S, PRE1=4, PRE2=0, PRE3=1, NW=2, NT=2, KST=32, NR=4, RA=16, N1=2, N2=2, N3=9, N4=9, BS=4, I0=8, PS=2, STS=0,
                                swap=[0, 0], ABUF=B_O, WBASE=WS_WO, WNT=64 * 1024, OUT=B_X1, STOUT=B_ST1,
                                FIN=FL_A, lsig=True, NEED=32, FOUT=FL_O, final=False, sb=12,
                                staged=[], stage_next=None, order=None)))
    nv.append(mlp_phase(a, Cfg(name="down", stream=S, OUT=B_XIN + IT_STRIDE, STOUT=B_STIN + IT_STRIDE, final=True, sb=22)))
    a(f"s_cmp_eq_u32 s{S_IT}, 1")
    a(f"s_cbranch_scc1 {fin}")
    a(f"s_mov_b32 s{S_IT}, 1")
    a(f"s_add_u32 s{S_BASE}, s{S_BASE}, {IT_STRIDE:#x}")
    a(f"s_add_u32 s{S_FL}, s{S_FL}, {FL_IT:#x}")
    nv.append(gemm_phase(a, Cfg(name="qkv", kind="qkv", LB=0, XB=1, stream=None, NW=3, NT=3, KST=32, NR=7, RA=24, N1=2, N2=5, N3=9, N4=9, BS=8, I0=12, PS=1, STS=10,
                                swap=[0, 0, 1], ABUF=B_XIN, WBASE=WS_WQKV, WNT=99 * 1024, STIN=B_STIN,
                                FIN=FL_D - FL_IT + (1 << 32), lsig=False, NEED=16, FOUT=FL_Q, sb=0,
                                staged=[], stage_next=None, order=None)))
    a(f"s_branch {att}")
    a(f"{fin}:")
    if STAMP:
        a("s_waitcnt vmcnt(0)")
        a(f"s_mov_b32 s{S_IT}, 1")
        stamp(a, 31)
        stamp_flush(a)
        if env("DBGOUT", 0):
            nd = a.label("nodbg")
            a("s_lshl_b32 s54, s2, 3")
            a(f"s_add_u32 s54, s54, s{S_WAVE}")
            a(f"s_cmp_lg_u32 s54, {env('DBGOUT', 0)}")
            a(f"s_cbranch_scc1 {nd}")
            idx = [31, 27, 28, 29, 30, 8, 9, 13, 18, 23, 33, 40, 41, 50, 55, 63]
            a(f"v_readlane_b32 s55, v{V_STAMP}, 31")
            for i, k in enumerate(idx):
                a(f"v_readlane_b32 s54, v{V_STAMP}, {k}")
                a("s_nop 3")
                a("s_sub_u32 s54, s54, s55")
                a(f"v_writelane_b32 v{V_FREE}, s54, {i}")
            a("s_mov_b64 exec, 0xfffe")
            a(f"global_store_dword v{V_L4}, v{V_FREE}, s[94:95]")
            a(f"{nd}:")
    a(f"{done}:")
    a("s_endpgm")
    print("phase vgprs", nv, file=sys.stderr)
    nv.append(V_TF + 58)
    assert max(nv) <= 256
    return (name, max(nv), 256, 512, LDS_MAX)


HEADER = open("cdna_kernels/" + NAME + ".s.ref").read().split("; Override launch")[0]

def main(out):
    a = Asm()
    k, v, nwg, blk, lds = gen_main(a)
    txt = HEADER
    if env("ASLIST", 0):
        txt += f"; @launch kernel={k} grid=({nwg},1,1) block=({blk},1,1) lds={lds}\n"
    else:
        txt += f"; @launch grid=({nwg},1,1) block=({blk},1,1) lds={lds}\n"
    txt += '.amdgcn_target "amdgcn-amd-amdhsa--gfx950"\n.text\n'
    txt += a.text()
    txt += '.section .rodata,"a"\n'
    txt += kernel_desc(k, v, 102)
    print(f"{k}: vgpr={v} lds={lds}", file=sys.stderr)
    open(out, "w").write(txt)

if __name__ == "__main__":
    main(sys.argv[1] if len(sys.argv) > 1 else "v2.s")
```

```python
import sys, struct, math, os
from asmlib import *

NAME = "interleave_layers__mha_block__glu_gated_bilinear__prompt"
def env(k, d):
    return int(os.environ.get(k, d))

WS_WQKV = 0x000000
WS_WO   = 0x200000
WS_WGU  = 0x300000
WS_WD   = 0x700000
WS_FLAG = 0x8C0000
FL_IT = 0xC000
FL_Q, FL_W, FL_G, FL_T = 0x0, 0x1000, 0x4000, 0x8000
FL_A, FL_O, FL_D = FL_T, FL_T + 4, FL_T + 8
WS_IT0 = 0xA00000
IT_STRIDE = 0x1400000
B_Q, B_K, B_V, B_O, B_X1, B_XIN, B_H, B_ST1, B_STIN = (
    0x0, 0x200000, 0x400000, 0x600000, 0x800000, 0xA00000, 0xC00000, 0x1300000, 0x1340000)
WS_END = WS_IT0 + 2 * IT_STRIDE
WS_STAMP = WS_END
LDS_MAX = 160 * 1024

KA_X, KA_WQKV, KA_WO, KA_BX, KA_WG, KA_WU, KA_WD, KA_OUT, KA_DBG, KA_WS = [8 * i for i in range(10)]

def f32bits(x):
    return struct.unpack("<I", struct.pack("<f", x))[0]

QSCALE = 0.25 * math.log2(math.e)
MFMA = "v_mfma_f32_32x32x16_bf16"
SMF = "v_smfmac_f32_32x32x32_bf16"
STAMP = os.environ.get("STAMP", "") != ""
SC = " sc1"
SPIN_MAX = 1 << 18
PASSES = [int(x) for x in os.environ.get("PASSES", "4,2,1").split(",")]
PFIRST = [sum(PASSES[:p]) for p in range(len(PASSES))]
assert sum(PASSES) == 7

def pass_of(a, si, sf, sw):
    a(f"s_mov_b32 s{sf}, 0")
    a(f"s_mov_b32 s{sw}, {PASSES[0]}")
    for p in range(1, len(PASSES)):
        a(f"s_cmp_ge_u32 s{si}, {PFIRST[p]}")
        a(f"s_cselect_b32 s{sf}, {PFIRST[p]}, s{sf}")
        a(f"s_cselect_b32 s{sw}, {PASSES[p]}, s{sw}")
GMX = env('GMX', 4)
PT = env('PT', 0)

def srd(a, d, lo, hi, nbytes):
    a(f"s_mov_b32 s{d}, s{lo}")
    a(f"s_and_b32 s{d+1}, s{hi}, 0xffff")
    a(f"s_mov_b32 s{d+2}, {nbytes:#x}")
    a(f"s_mov_b32 s{d+3}, 0x20000")

S_WAVE, S_XCD, S_IDX, S_IT, S_BASE, S_FL = 16, 17, 18, 40, 41, 42
S_TT64, S_NT64, S_TT128, S_NT128 = 43, 44, 45, 46
S_TTG, S_NTG, S_TCH = 68, 69, 47
S_ARR, S_SIG = 47, 48
LDS_CNT = LDS_MAX - 16
V_L16, V_ST, V_L4 = 2, 3, 1
V_RES = 4
V_STAMP = 12
V_PF, V_L128 = 14, 15
V_FREE = 16

def stamp(a, i):
    if STAMP:
        a("s_memrealtime s[56:57]")
        a("s_memtime s[58:59]")
        a(f"s_lshl_b32 s60, s{S_IT}, 5")
        a(f"s_add_u32 s60, s60, {i}")
        a("s_waitcnt lgkmcnt(0)")
        a("s_mov_b32 s61, m0")
        a("s_mov_b32 m0, s60")
        a("s_nop 0")
        a(f"v_writelane_b32 v{V_STAMP}, s56, m0")
        a(f"v_writelane_b32 v{V_STAMP+1}, s58, m0")
        a("s_mov_b32 m0, s61")

def stamp_flush(a, which=0):
    if STAMP:
        a("s_lshl_b32 s60, s2, 3")
        a(f"s_add_u32 s60, s60, s{S_WAVE}")
        a("s_lshl_b32 s60, s60, 9")
        a(f"s_add_u32 s60, s60, {WS_STAMP + which*0x100000:#x}")
        a(f"s_mov_b32 s6, {WS_STAMP + 0x200000:#x}")
        a(f"buffer_store_dword v{V_STAMP}, v{V_L4}, s[4:7], s60 offen")
        a(f"buffer_store_dword v{V_STAMP+1}, v{V_L4}, s[4:7], s60 offen offset:256")

def handoff(a, soff, need):
    a("s_mov_b32 s38, 1")
    a(f"s_atomic_add s38, s[14:15], s{S_SIG}")
    if env("PD", 0):
        a("s_waitcnt lgkmcnt(0)")
    poll(a, soff, need)

def poll(a, soff, need):
    lp, ok = a.label("poll"), a.label("pok")
    a(f"s_mov_b32 s39, {SPIN_MAX}")
    a(f"{lp}:")
    a("s_mov_b32 s49, 0")
    a(f"s_atomic_add s49, s[14:15], s{soff} glc")
    a("s_sub_u32 s39, s39, 1")
    a("s_waitcnt lgkmcnt(0)")
    a(f"s_cmp_ge_u32 s49, {need}")
    a(f"s_cbranch_scc1 {ok}")
    if env("POLL_SLEEP", 1):
        a(f"s_sleep {env('POLL_SLEEP', 1)}")
    a("s_cmp_lg_u32 s39, 0")
    a(f"s_cbranch_scc1 {lp}")
    a(f"{ok}:")


V_TF = 176

def first_phase(a, end_label, code_end):
    XB_ = 528
    XT = 64 * XB_
    W0 = 2 * XT
    NSW, WCH, NC = 7, 12288, 16
    assert W0 + NSW * WCH <= LDS_MAX
    FS = 27
    NPS = env("K1_NPS", 2)
    R = Regs(V_FREE)
    vD, vT0, vT1, vXW = R.alloc(), R.alloc(), R.alloc(), R.alloc()
    X = R.alloc(32)
    ST = R.alloc(16)
    U = R.alloc(16)
    vD2, vZ = R.alloc(), R.alloc()
    assert X == V_FREE + 4
    a(f"v_lshrrev_b32 v{vT0}, 3, v0")
    a(f"v_bfe_u32 v{vT1}, v0, 4, 1")
    a(f"v_lshlrev_b32 v{vT1}, 2, v{vT1}")
    a(f"v_and_b32 v{vD2}, 7, v0")
    a(f"v_xor_b32 v{vD2}, v{vD2}, v{vT1}")
    a(f"v_lshlrev_b32 v{vD2}, 4, v{vD2}")
    a(f"v_mul_u32_u24 v{vD}, 3072, v{vT0}")
    a(f"v_add_u32 v{vD}, v{vD}, v{vD2}")
    a(f"s_and_b32 s50, s{S_WAVE}, 3")
    a("s_waitcnt lgkmcnt(0)")
    srd(a, 8, 64, 65, 2048 * 512 * 2)
    srd(a, 4, 12, 13, WS_END)
    a.c("wave 7 of the first workgroups resets 64 hand-off counters each")
    NZ = 2 * FL_IT // 16384
    nz = a.label("nozero")
    a(f"s_sub_u32 s47, 7, s{S_WAVE}")
    a("s_lshl_b32 s47, s47, 8")
    a("s_add_u32 s47, s47, s2")
    a(f"s_cmp_ge_u32 s47, {NZ}")
    a(f"s_cbranch_scc1 {nz}")
    a(f"v_lshlrev_b32 v{ST}, 8, v0")
    for i in range(4):
        a(f"v_mov_b32 v{ST+4+i}, 0")
    a("s_lshl_b32 s54, s2, 14")
    a(f"s_add_u32 s54, s54, {WS_FLAG:#x}")
    a(f"buffer_store_dwordx4 {vr(ST+4,4)}, v{ST}, s[4:7], s54 offen sc1")
    a(f"{nz}:")
    TOUCH = env("TOUCH", 1)
    a(f"s_add_u32 s14, s12, {WS_FLAG:#x}")
    a("s_addc_u32 s15, s13, 0")
    a("s_mov_b32 s49, 0x3f803f80")
    a(f"s_lshr_b32 s55, s{S_WAVE}, 2")
    a(f"s_mul_i32 s39, s55, {XT}")
    a("s_lshl_b32 s54, s50, 7")
    a("s_add_u32 s39, s39, s54")
    a(f"v_mul_u32_u24 v{vXW}, {XB_}, v0")
    a(f"v_add_u32 v{vXW}, s39, v{vXW}")
    a(f"s_mul_i32 s62, s50, {8*3072}")
    a(f"s_lshl_b32 s54, s{S_NT64}, 7")
    a("s_add_u32 s62, s62, s54")
    a(f"s_mul_i32 s54, s55, {NPS*32*3072}")
    a("s_add_u32 s62, s62, s54")
    a("s_lshl_b32 s63, s50, 10")
    a(f"s_add_u32 s63, s63, {W0}")
    a(f"s_mul_i32 s54, s55, {NPS*WCH}")
    a("s_add_u32 s48, s63, s54")
    def w_instr(slot, seg, base=63):
        t = f"s_add_u32 s54, s{base}, {slot*WCH + seg*3072}\ns_mov_b32 m0, s54\ns_nop 0\n"
        t += f"buffer_load_dwordx4 v{vD}, s[20:23], s62 offen offset:{seg*1024} lds"
        if seg == 2:
            t += f"\ns_add_u32 s62, s62, {32*3072}"
        return t
    dma = [w_instr(c, sg, 48) for c in range(NPS) for sg in range(3)]
    ops = []
    for r in range(8):
        ops.append(f"v_mov_b32 v{ST+r}, 0")
        ops.append(f"v_mov_b32 v{ST+8+r}, 0")
    pre = len(ops)
    for r in range(8):
        ops.append(("wait", r))
        for i in range(4):
            ops.append(f"v_dot2c_f32_bf16 v{ST+r}, s49, v{X+4*r+i}")
            ops.append(f"v_dot2c_f32_bf16 v{ST+8+r}, v{X+4*r+i}, v{X+4*r+i}")
    ops.append("s_nop 2")
    for b in (ST, ST + 8):
        for r in range(4):
            ops.append(f"v_permlane32_swap_b32 v{b+r}, v{b+r+4}")
    for b in (ST, ST + 8):
        for r in range(4):
            ops.append(f"v_add_f32 v{b+r}, v{b+r}, v{b+r+4}")
    ops.append("s_nop 1")
    for b in (ST, ST + 8):
        for r in range(2):
            ops.append(f"v_permlane16_swap_b32 v{b+r}, v{b+r+2}")
    for b in (ST, ST + 8):
        for r in range(2):
            ops.append(f"v_add_f32 v{b+r}, v{b+r}, v{b+r+2}")
    for d in ("row_ror:8", "row_ror:4", "quad_perm:[2,3,0,1]", "quad_perm:[1,0,3,2]"):
        for v in (ST, ST + 1, ST + 8, ST + 9):
            ops.append(f"v_add_f32_dpp v{v}, v{v}, v{v} {d} row_mask:0xf bank_mask:0xf")
    for r in range(2):
        ops.append(f"v_mul_f32 v{ST+r}, {f32bits(-1.0/512):#x}, v{ST+r}")
        ops.append(f"v_mul_f32 v{ST+8+r}, {f32bits(1.0/512):#x}, v{ST+8+r}")
    for r in range(2):
        ops.append(f"v_fma_f32 v{ST+8+r}, -v{ST+r}, v{ST+r}, v{ST+8+r}")
    for r in range(2):
        ops.append(f"v_max_f32 v{ST+8+r}, 0, v{ST+8+r}")
    for r in range(2):
        ops.append(f"v_add_f32 v{ST+8+r}, {f32bits(1e-5):#x}, v{ST+8+r}")
    for r in range(2):
        ops.append(f"v_rsq_f32 v{ST+8+r}, v{ST+8+r}")
    ops.append("s_nop 0")
    for r in range(2):
        ops.append(f"v_mul_f32 v{ST+r}, v{ST+r}, v{ST+8+r}")
    ops.append("s_nop 0")
    for r in range(8):
        ops.append(f"v_readlane_b32 s{78+2*r}, v{ST+8+(r&1)}, {16*(r>>1)}")
        ops.append(f"v_readlane_b32 s{79+2*r}, v{ST+(r&1)}, {16*(r>>1)}")
    for r in range(8):
        u = U + 8 * (r & 1)
        for i in range(4):
            ops.append(f"v_lshlrev_b32 v{u+2*i}, 16, v{X+4*r+i}")
            ops.append(f"v_and_b32 v{u+2*i+1}, 0xffff0000, v{X+4*r+i}")
        for i in range(4):
            ops.append(f"v_pk_fma_f32 {vr(u+2*i,2)}, {vr(u+2*i,2)}, s[{78+2*r}:{79+2*r}], s[{78+2*r}:{79+2*r}] op_sel:[0,0,1] op_sel_hi:[1,0,1]")
        for i in range(4):
            ops.append(f"v_cvt_pk_bf16_f32 v{X+4*r+i}, v{u+2*i}, v{u+2*i+1}")
        ops.append(f"ds_write_b128 v{vXW}, {vr(X+4*r,4)} offset:{r*16}")
    npre = env("K1_PRE", 2)
    issued = TOUCH
    for _ in range(npre):
        a(dma.pop(0)); issued += 1
    step_ = env("K1_STEP", 24)
    k = 0
    for j, op in enumerate(ops):
        if isinstance(op, tuple):
            a(f"s_waitcnt vmcnt({7 - op[1] + issued})")
        else:
            a(op)
        if j >= pre + env("K1_SKIP", 40) and dma:
            k += 1
            if k % step_ == 0:
                a(dma.pop(0)); issued += 1
    assert not dma
    comp = a.label("k1_comp")
    a(f"s_cmp_lt_u32 s{S_WAVE}, 4")
    a(f"s_cbranch_scc1 {comp}")
    DW = env("K1_DW", 5)
    assert 2 * NPS <= DW <= NSW - 2
    for c in range(2 * NPS, DW):
        for sg in range(3):
            a(w_instr(c, sg))
    lp = a.label("k1ld")
    a(f"s_add_u32 s48, s63, {DW*WCH}")
    a(f"s_add_u32 s39, s63, {NSW*WCH}")
    a(f"v_mov_b32 v{vT1}, 0")
    stamp(a, FS)
    a("s_waitcnt lgkmcnt(0)")
    nz = a.label("noflag")
    a(f"s_cmp_ge_u32 s47, {NZ}")
    a(f"s_cbranch_scc1 {nz}")
    a(f"s_waitcnt vmcnt({(DW - NPS)*3})")
    a("s_mov_b32 s38, 1")
    a("s_atomic_add s38, s[94:95], 0x0")
    a(f"{nz}:")
    a(f"s_mov_b32 s47, {NC-DW}")
    a(f"{lp}:")
    a(f"s_waitcnt vmcnt({(DW-1)*3})")
    a("s_barrier")
    for sg in range(3):
        a(w_instr(0, sg, 48))
    a(f"s_add_u32 s48, s48, {WCH}")
    a("s_cmp_eq_u32 s48, s39")
    a("s_cselect_b32 s48, s63, s48")
    a("s_sub_u32 s47, s47, 1")
    a("s_cmp_lg_u32 s47, 0")
    a(f"s_cbranch_scc1 {lp}")
    a(f"global_load_dword v{vZ}, v{vT1}, s[94:95] sc1")
    for c in range(NC - DW, NC):
        a(f"s_waitcnt vmcnt({(NC - 1 - c)*3 + 1})")
        a("s_barrier")
    stamp(a, FS + 2)
    a.c("the counters must have been reset before this workgroup touches them")
    lp, ok = a.label("zpoll"), a.label("zok")
    a(f"s_mov_b32 s39, {SPIN_MAX}")
    a("s_waitcnt vmcnt(0)")
    a(f"{lp}:")
    a(f"v_cmp_gt_u32 vcc, {NZ}, v{vZ}")
    a("s_sub_u32 s39, s39, 1")
    a("s_cmp_eq_u32 s39, 0")
    a(f"s_cbranch_scc1 {ok}")
    a(f"s_cbranch_vccz {ok}")
    a(f"global_load_dword v{vZ}, v{vT1}, s[94:95] sc1")
    a("s_waitcnt vmcnt(0)")
    a(f"s_branch {lp}")
    a(f"{ok}:")
    a("s_barrier")
    a(f"s_branch {end_label}")
    a(f"{comp}:")
    R2 = Regs(V_FREE + 4)
    vA, vW0, vW = R2.alloc(), R2.alloc(), R2.alloc()
    acc = [R2.alloc(16) for _ in range(3)]
    sets = [(R2.alloc(4), [R2.alloc(4) for _ in range(3)]) for _ in range(2)]
    a("s_waitcnt lgkmcnt(0)")
    a(f"s_and_b32 s24, s{S_WAVE}, 1")
    a(f"s_lshr_b32 s25, s{S_WAVE}, 1")
    a(f"s_mul_i32 s26, s24, {XT}")
    a(f"v_lshrrev_b32 v{vT0}, 5, v0")
    a(f"v_mul_u32_u24 v{vA}, {XB_}, v{vT0}")
    a(f"v_and_b32 v{vT1}, 31, v0")
    a(f"v_lshl_add_u32 v{vA}, v{vT1}, 4, v{vA}")
    a(f"v_add_u32 v{vA}, s26, v{vA}")
    a(f"v_bfe_u32 v{vT1}, v0, 2, 2")
    a(f"v_lshl_add_u32 v{vW0}, v{vT0}, 3, v{vT1}")
    a(f"v_lshlrev_b32 v{vW0}, 7, v{vW0}")
    a(f"v_and_b32 v{vT0}, 1, v0")
    a(f"v_bfe_u32 v{vT1}, v0, 1, 1")
    a(f"v_lshl_add_u32 v{vT0}, v{vT0}, 1, v{vT1}")
    a(f"v_lshl_add_u32 v{vW0}, v{vT0}, 3, v{vW0}")
    a(f"v_bfe_u32 v{vT0}, v0, 4, 1")
    a(f"v_lshl_add_u32 v{vW0}, v{vT0}, 5, v{vW0}")
    a(f"v_bfe_u32 v{vT0}, v0, 3, 1")
    a(f"v_xor_b32 v{vT0}, s25, v{vT0}")
    a(f"v_lshl_add_u32 v{vW0}, v{vT0}, 6, v{vW0}")
    a(f"v_add_u32 v{vW0}, {W0}, v{vW0}")
    a(f"v_mov_b32 v{vW}, v{vW0}")
    for t in range(3):
        for i in range(16):
            a(f"v_mov_b32 v{acc[t]+i}, 0")
    a("s_mov_b32 s37, 0")

    def read_list(ks, par):
        xa, wfs = sets[par]
        out = [f"ds_read_b128 {vr(xa,4)}, v{vA} offset:{ks*2*XB_}"]
        for t in range(3):
            for jj in range(2):
                out.append(f"ds_read_b64_tr_b16 {vr(wfs[t]+2*jj,2)}, v{vW} offset:{t*4096 + ks*2048 + jj*512}")
        return out

    def step(par, nxt, boundary, adv=False):
        xa, wfs = sets[par]
        issued = 0
        plan = [3, 5, 7]
        if boundary:
            a("s_barrier")
        for t in range(3):
            while issued < min(plan[t], len(nxt)):
                a(nxt[issued]); issued += 1
            a(f"s_waitcnt lgkmcnt({issued + 7 - (3 + 2*t)})")
            if t == 2:
                a(f"{MFMA} {vr(acc[t],16)}, {vr(xa,4)}, {vr(wfs[t],4)}, {vr(acc[t],16)}")
            else:
                a(f"{MFMA} {vr(acc[t],16)}, {vr(wfs[t],4)}, {vr(xa,4)}, {vr(acc[t],16)}")
        if adv:
            a(f"s_add_u32 s37, s37, {WCH}")
            a(f"s_cmp_eq_u32 s37, {NSW*WCH}")
            a("s_cselect_b32 s37, 0, s37")
            a(f"v_add_u32 v{vW}, s37, v{vW0}")
            a(f"v_add_u32 v{vA}, {4*XB_}, v{vA}")

    a("s_waitcnt vmcnt(0)")
    stamp(a, FS)
    a("s_barrier")
    stamp(a, FS + 1)
    for r in read_list(0, 0):
        a(r)
    lp = a.label("k1loop")
    a(f"s_mov_b32 s35, {NC-1}")
    a(f"{lp}:")
    step(0, read_list(1, 1), False, True)
    step(1, read_list(0, 0), True)
    a("s_sub_u32 s35, s35, 1")
    a("s_cmp_lg_u32 s35, 0")
    a(f"s_cbranch_scc1 {lp}")
    step(0, read_list(1, 1), False)
    step(1, [], False)
    stamp(a, FS + 2)
    ot = sets[0][0]
    a(f"s_lshl_b32 s26, s{S_NT64}, 1")
    a("s_add_u32 s26, s26, s25")
    a("s_lshl_b32 s26, s26, 17")
    a(f"s_add_u32 s27, s{S_TT64}, s24")
    a("s_lshl_b32 s27, s27, 10")
    a("s_add_u32 s26, s26, s27")
    a(f"v_bfe_u32 v{vT0}, v0, 4, 1")
    a(f"v_lshlrev_b32 v{vT0}, 16, v{vT0}")
    a(f"v_lshrrev_b32 v{vT1}, 5, v0")
    a(f"v_lshl_add_u32 v{vT0}, v{vT1}, 8, v{vT0}")
    a(f"v_and_b32 v{vT1}, 15, v0")
    a(f"v_lshl_add_u32 v{vT0}, v{vT1}, 4, v{vT0}")
    a(f"s_mov_b32 s28, {f32bits(QSCALE):#x}")
    a("s_mov_b32 s29, s28")
    K1SC = SC
    a(f"s_lshl_b32 s{S_SIG}, s{S_NT64}, 9")
    a(f"s_add_u32 s{S_SIG}, s{S_SIG}, {FL_Q:#x}")
    for t, base in ((0, B_Q), (1, B_K), (2, B_V)):
        for hh in range(2):
            o = ot + 4 * (2 * t + hh)
            for i in range(4):
                r = acc[t] + 8 * hh + 2 * i
                if t == 0:
                    a(f"v_pk_mul_f32 {vr(r,2)}, {vr(r,2)}, s[28:29]")
                a(f"v_cvt_pk_bf16_f32 v{o+i}, v{r}, v{r+1}")
            if t < 2:
                a(f"s_add_u32 s27, s26, {WS_IT0 + base + hh*65536:#x}")
                a(f"buffer_store_dwordx4 {vr(o,4)}, v{V_L16}, s[4:7], s27 offen{K1SC}")
            else:
                a(f"s_add_u32 s27, s26, {WS_IT0 + base:#x}")
                a(f"buffer_store_dwordx4 {vr(o,4)}, v{vT0}, s[4:7], s27 offen offset:{hh*512}{K1SC}")
    a("s_barrier")
    stamp(a, FS + 3)
    a(f"s_branch {end_label}")
    return max(R.n, R2.n)


class Cfg:
    def __init__(self, **kw):
        self.__dict__.update(kw)
        for k in ("NR", "RA", "N1", "N2", "N3", "N4", "BS", "I0", "PS", "STS", "PRE1", "PRE2", "PRE3", "XB"):
            e = os.environ.get(self.name.upper() + "_" + k)
            if e:
                setattr(self, k, int(e))

def stats_ops(tmp, xc, vRstd):
    f = []
    n = 8
    while n > 1:
        n //= 2
        for p in range(n):
            f.append(f"v_add_f32 v{tmp+2*p}, v{tmp+2*p}, v{tmp+2*(p+n)}")
            f.append(f"v_add_f32 v{tmp+2*p+1}, v{tmp+2*p+1}, v{tmp+2*(p+n)+1}")
    f.append(f"v_mov_b32 v{tmp+2}, v{tmp}")
    f.append(f"v_mov_b32 v{tmp+3}, v{tmp+1}")
    f.append("s_nop 1")
    f.append(f"v_permlane32_swap_b32 v{tmp}, v{tmp+2}")
    f.append(f"v_permlane32_swap_b32 v{tmp+1}, v{tmp+3}")
    f.append(f"v_add_f32 v{tmp}, v{tmp}, v{tmp+2}")
    f.append(f"v_add_f32 v{tmp+1}, v{tmp+1}, v{tmp+3}")
    f.append(f"v_mul_f32 v{tmp}, {f32bits(-1.0/512):#x}, v{tmp}")
    f.append(f"v_mul_f32 v{tmp+1}, {f32bits(1.0/512):#x}, v{tmp+1}")
    f.append(f"v_fma_f32 v{tmp+1}, -v{tmp}, v{tmp}, v{tmp+1}")
    f.append(f"v_max_f32 v{tmp+1}, 0, v{tmp+1}")
    f.append(f"v_add_f32 v{tmp+1}, {f32bits(1e-5):#x}, v{tmp+1}")
    f.append(f"v_rsq_f32 v{vRstd}, v{tmp+1}")
    f.append(f"v_cvt_pk_bf16_f32 v{xc}, v{tmp}, v{tmp}")
    f.append(f"v_lshlrev_b32 v{tmp+2}, 16, v{xc}")
    f.append(f"v_sub_f32 v{tmp+2}, v{tmp}, v{tmp+2}")
    f.append(f"v_cvt_pk_bf16_f32 v{xc+1}, v{tmp+2}, v{tmp+2}")
    f.append(f"v_mov_b32 v{xc+2}, v{xc}")
    f.append(f"v_mov_b32 v{xc+3}, v{xc+1}")
    return f

def res_epilogue(a, g, c0, c1, tmp, end):
    SB = g.sb
    fin = a.label("final")
    a("s_lshl_b32 s26, s31, 15")
    a("s_lshl_b32 s27, s33, 11")
    a("s_add_u32 s26, s26, s27")
    a(f"s_add_u32 s26, s26, s{S_BASE}")
    a(f"s_add_u32 s26, s26, {g.OUT:#x}")
    a("s_lshl_b32 s28, s31, 12")
    a("s_lshl_b32 s29, s33, 8")
    a("s_add_u32 s28, s28, s29")
    for i in range(8):
        if i % 2 == 0:
            a(f"s_waitcnt lgkmcnt({3 - i//2})")
        a(f"v_pk_add_f32 {vr(c0+2*i,2)}, {vr(c0+2*i,2)}, {vr(c1+2*i,2)}")
    for i in range(8):
        a(f"v_cvt_pk_bf16_f32 v{V_RES+i}, v{c0+2*i}, v{c0+2*i+1}")
    if g.final:
        a(f"s_cmp_eq_u32 s{S_IT}, 1")
        a(f"s_cbranch_scc1 {fin}")
    a(f"buffer_store_dwordx4 {vr(V_RES,4)}, v{V_L16}, s[4:7], s26 offen{SC}")
    a(f"buffer_store_dwordx4 {vr(V_RES+4,4)}, v{V_L16}, s[4:7], s26 offen offset:1024{SC}")
    a(f"s_mov_b32 s{S_TCH}, s26")
    q = tmp
    a(f"v_pk_mul_f32 v[{q}:{q+1}], v[{c0}:{c0+1}], v[{c0}:{c0+1}]")
    for i in range(1, 8):
        a(f"v_pk_fma_f32 v[{q}:{q+1}], v[{c0+2*i}:{c0+2*i+1}], v[{c0+2*i}:{c0+2*i+1}], v[{q}:{q+1}]")
        a(f"v_pk_add_f32 v[{c0}:{c0+1}], v[{c0}:{c0+1}], v[{c0+2*i}:{c0+2*i+1}]")
    a(f"v_add_f32 v{q+2}, v{c0}, v{c0+1}")
    a(f"v_add_f32 v{q+3}, v{q}, v{q+1}")
    a(f"s_add_u32 s28, s28, s{S_BASE}")
    a(f"s_add_u32 s28, s28, {g.STOUT:#x}")
    a(f"v_permlane32_swap_b32 v{q+2}, v{q+3}")
    a("s_nop 0")
    a(f"v_add_f32 v{q+2}, v{q+2}, v{q+3}")
    a(f"buffer_store_dword v{q+2}, v{V_ST}, s[4:7], s28 offen{SC}")
    a("s_barrier")
    stamp(a, SB + 3)
    if g.final:
        a(f"s_branch {end}")
        a(f"{fin}:")
        srd(a, 8, 70, 71, 2048 * 512 * 2)
        a(f"v_and_b32 v{tmp}, 31, v0")
        a(f"v_lshlrev_b32 v{tmp}, 10, v{tmp}")
        a(f"v_lshrrev_b32 v{tmp+1}, 5, v0")
        a(f"v_lshl_add_u32 v{tmp}, v{tmp+1}, 4, v{tmp}")
        a("s_lshl_b32 s26, s31, 15")
        a("s_lshl_b32 s27, s33, 6")
        a("s_add_u32 s26, s26, s27")
        a(f"buffer_store_dwordx4 {vr(V_RES,4)}, v{tmp}, s[8:11], s26 offen")
        a(f"buffer_store_dwordx4 {vr(V_RES+4,4)}, v{tmp}, s[8:11], s26 offen offset:32")
        a("s_barrier")
        stamp(a, SB + 3)

RB = 16384
VS = 32
NPRE = env('NPRE', 5)


class Stream:
    NR, NRND, NREG = 10, 29, 14
    def __init__(self, a):
        self.a = a
        self.nxt = 0
        self.vm, self.lg = [], []
        self.reg = {}
        self.free = list(range(self.NREG - NPRE))
        self.last = self.NRND - NPRE
        for i in range(NPRE):
            self.reg[self.last + i] = self.NREG - NPRE + i
        self.maxreg = self.NREG
    def setup(self):
        a = self.a
        a(f"s_and_b32 s19, s{S_WAVE}, 3")
        a("s_lshl_b32 s25, s19, 12")
        a(f"s_mul_i32 s20, s{S_NTG}, {231*1024}")
        a("s_add_u32 s20, s20, s25")
        a(f"s_add_u32 s20, s20, {WS_WGU:#x}")
        a(f"s_mul_i32 s21, s{S_NT64}, {224*1024}")
        a("s_add_u32 s21, s21, s25")
        a(f"s_add_u32 s21, s21, {WS_WD:#x}")
        for i in range(3):
            a(f"v_add_u32 v{V_FREE+i}, {i*0x10000}, v{V_L16}")
            a(f"v_add_u32 v{V_FREE+i}, s25, v{V_FREE+i}")
    def src(self, r):
        return f"s_add_u32 s27, s20, {r*RB}" if r < 15 else f"s_add_u32 s27, s21, {(r-15)*RB}"
    def wait_vm(self, pred):
        idx = [i for i, e in enumerate(self.vm) if pred(e)]
        if not idx:
            return None
        n = min(63, (len(self.vm) - 1 - idx[-1]) * 4)
        del self.vm[:idx[-1] + 1]
        return f"vmcnt({n})"
    def flush(self, limit, cap=99):
        a = self.a
        for r in sorted(self.reg)[:cap]:
            if r >= limit:
                break
            w = self.wait_vm(lambda e: e == ("s", r))
            if w:
                a("s_waitcnt " + w)
            k = self.reg.pop(r)
            for i in range(4):
                off = (r % self.NR) * RB + i * 1024
                if env("FL64", 0):
                    for hh in range(2):
                        a(f"ds_write_b64 v{V_FREE + (off >> 16)}, {vr(VS + (k*4 + i)*4 + 2*hh, 2)} offset:{(off & 0xffff) + 8*hh}")
                        if env("FLW", 1):
                            a("s_waitcnt lgkmcnt(0)")
                else:
                    a(f"ds_write_b128 v{V_FREE + (off >> 16)}, {vr(VS + (k*4 + i)*4, 4)} offset:{off & 0xffff}")
                    if env("FLW", 1):
                        a("s_waitcnt lgkmcnt(0)")
            self.lg.append((r, k))
    def fetch(self, n, limit):
        a = self.a
        while n > 0 and self.nxt < self.last:
            r = self.nxt
            if r < limit:
                a(f"s_add_u32 s26, s25, {(r % self.NR) * RB}")
                a("s_mov_b32 m0, s26")
                a(self.src(r))
                for i in range(4):
                    a(f"buffer_load_dwordx4 v{V_L16}, s[4:7], s27 offen offset:{i*1024}{SC} lds")
                self.vm.append(("d", r))
            else:
                if not self.free:
                    break
                k = self.free.pop(0)
                self.maxreg = max(self.maxreg, k + 1)
                self.reg[r] = k
                a(self.src(r))
                for i in range(4):
                    a(f"buffer_load_dwordx4 {vr(VS + (k*4 + i)*4, 4)}, v{V_L16}, s[4:7], s27 offen offset:{i*1024}{SC}")
                self.vm.append(("s", r))
            self.nxt += 1; n -= 1
    def landed(self, upto):
        assert self.nxt > min(upto, self.last - 1) and all(r > upto for r in self.reg), (upto, self.nxt, self.reg)
        w = []
        x = self.wait_vm(lambda e: e[0] == "d" and e[1] <= upto)
        if x:
            w.append(x)
        if any(r <= upto for r, _ in self.lg):
            w.append("lgkmcnt(0)")
            self.free += [k for _, k in self.lg]
            self.lg = []
        if w:
            self.a("s_waitcnt " + " ".join(w))

def gemm_phase(a, g):
    NW, NT = g.NW, g.NT
    ln = g.kind in ("qkv", "gu")
    NS = g.KST if ln else g.KST // 2
    SBY = NW * 1024 if ln else 4096
    NSW = NS + (1 if ln else 0)
    NRND = -(-NSW * SBY // RB)
    NR = min(g.NR, NRND)
    RING = NR * RB
    LB = g.LB
    SCR = LB + RING
    assert SCR + (1024 if g.kind == "qkv" else 0) + (0 if ln else 16384) <= LDS_MAX
    S = g.stream
    RA = g.RA
    staged = g.staged
    s_tt, s_nt = (S_TT128, S_NT128) if ln else (S_TT64, S_NT64)
    comp, end = a.label(g.name + "_comp"), a.label(g.name + "_end")
    SB = g.sb
    need_round = lambda st: (min(st, NSW - 1) * SBY + SBY - 1) // RB
    bars = [0]
    out_ = min(NR, g.N1 + g.N2)
    while out_ < NRND:
        out_ = min(out_ + (g.N3 if len(bars) == 1 else g.N4), NR + (bars[-1] * SBY) // RB, NRND)
        bars.append(bars[-1] + g.BS)
    for _ in range(g.XB):
        bars.append(bars[-1] + g.BS)
    a.c(f"================ phase {g.name} ================")
    a(f"s_cmp_lt_u32 s{S_WAVE}, 4")
    a(f"s_cbranch_scc1 {comp}")
    a(f"s_and_b32 s19, s{S_WAVE}, 3")
    a("s_lshl_b32 s25, s19, 12")
    a(f"s_mul_i32 s23, s{s_nt}, {g.WNT}")
    a("s_add_u32 s23, s23, s25")
    if g.WBASE:
        a(f"s_add_u32 s23, s23, {g.WBASE:#x}")
    if staged:
        for i in range(3):
            a(f"v_add_u32 v{V_FREE+i}, {i*0x10000}, v{V_L16}")
            a(f"v_add_u32 v{V_FREE+i}, s25, v{V_FREE+i}")
    stamp(a, SB)
    vm, lg = [], []
    def issue(r):
        dst = LB + (r % NR) * RB
        if r in staged:
            k = staged.index(r)
            for i in range(4):
                off = dst + i * 1024
                a(f"ds_write_b128 v{V_FREE + (off >> 16)}, {vr(VS + (k*4 + i)*4, 4)} offset:{off & 0xffff}")
            lg.append(r)
        else:
            a(f"s_add_u32 s26, s25, {dst}")
            a("s_mov_b32 m0, s26")
            a(f"s_add_u32 s27, s23, {r*RB}")
            for i in range(4):
                a(f"buffer_load_dwordx4 v{V_L16}, s[4:7], s27 offen offset:{i*1024}{SC} lds")
            vm.append(r)
    extra = [0]
    def wait_landed(upto):
        w = []
        for q, nm, cap in ((vm, "vmcnt", 63), (lg, "lgkmcnt", 15)):
            idx = [i for i, r in enumerate(q) if r <= upto]
            if idx:
                left = len(q) - 1 - idx[-1]
                w.append(f"{nm}({min(cap, left*4 + (extra[0] if q is vm else 0))})")
                del q[:idx[-1] + 1]
        if w:
            a("s_waitcnt " + " ".join(w))
    order = g.order if g.order else list(range(NRND))
    todo = list(order)
    def issue_n(n, limit):
        while n > 0 and todo and todo[0] < limit:
            issue(todo.pop(0)); n -= 1
    if staged:
        a("s_waitcnt vmcnt(0)")
    issue_n(g.N1, NR)
    if g.lsig:
        a(f"s_waitcnt vmcnt({len(vm)*4})")
        a("s_mov_b32 s38, 1")
        a(f"s_atomic_add s38, s[14:15], s{S_SIG}")
    issue_n(g.N2, NR)
    if S:
        assert not todo
        S.setup()
        S.fetch(g.PRE1, LB // RB)
        extra[0] = 4 * len(S.vm)
    stamp(a, SB + 1)
    st = []
    if g.stage_next is not None:
        n = g.stage_next
        for k, r in enumerate(n.staged):
            for i in range(4):
                t = f"s_add_u32 s27, s24, {r*RB}\n" if i == 0 else ""
                st.append(t + f"buffer_load_dwordx4 {vr(VS + (k*4 + i)*4, 4)}, v{V_L16}, s[4:7], s27 offen offset:{i*1024}{SC}")
    for j, b in enumerate(bars):
        nxt = bars[j + 1] if j + 1 < len(bars) else NSW
        up = need_round(nxt)
        assert all(r > up for r in todo), (g.name, b, up, todo)
        wait_landed(up)
        a("s_barrier")
        issue_n(g.N3 if j == 0 else g.N4, NR + (b * SBY) // RB)
    assert not todo and not vm and not lg, (g.name, todo, vm, lg)
    if st:
        a.c("fetch part of the next phase's weights into registers")
        a(f"s_mul_i32 s24, s{S_NT64}, {n.WNT}")
        a("s_add_u32 s24, s24, s25")
        a(f"s_add_u32 s24, s24, {n.WBASE:#x}")
        for t in st:
            a(t)
    if S:
        S.fetch(g.PRE2, LB // RB)
    if not ln:
        a("s_barrier")
    if S:
        S.fetch(g.PRE3, LB // RB + NR)
    a("s_barrier")
    a(f"s_branch {end}")

    a(f"{comp}:")
    R = Regs(V_FREE)
    nwin = -(-(LB + RING) // 65536)
    vW = [[R.alloc() for _ in range(nwin)] for _ in range(1 if ln else 2)]
    vRstd, vX, vY = R.alloc(), R.alloc(), R.alloc()
    acc = [R.alloc(16) for _ in range(NT)]
    sets = [[R.alloc(4) for _ in range(NT)] for _ in range(2)]
    ring = [R.alloc(4) for _ in range(RA)]
    tmp = R.alloc(16)
    xc = R.alloc(4)
    if g.kind == "qkv":
        vRs = R.alloc(16)
    if ln:
        a(f"s_add_u32 s31, s{s_tt}, s{S_WAVE}")
        a(f"s_mul_i32 s22, s31, {g.KST*1024}")
        for w in range(nwin):
            a(f"v_add_u32 v{vW[0][w]}, {w*65536}, v{V_L16}")
        for t in range(NT):
            for i in range(16):
                a(f"v_mov_b32 v{acc[t]+i}, 0")
        a("s_lshl_b32 s36, s31, 12")
        a(f"s_add_u32 s36, s36, s{S_BASE}")
        a(f"s_add_u32 s36, s36, {g.STIN:#x}")
    else:
        a(f"s_and_b32 s24, s{S_WAVE}, 1")
        a(f"s_lshr_b32 s25, s{S_WAVE}, 1")
        a(f"s_lshl_b32 s33, s{s_nt}, 1")
        a("s_add_u32 s33, s33, s25")
        a(f"s_add_u32 s31, s{s_tt}, s24")
        a(f"s_mul_i32 s22, s31, {g.KST*1024}")
        a("s_lshl_b32 s26, s25, 10")
        a("s_add_u32 s22, s22, s26")
        a("s_mul_i32 s26, s25, 3072")
        a("s_lshl_b32 s27, s25, 10")
        a("s_add_u32 s27, s27, 1024")
        for w in range(nwin):
            a(f"v_add_u32 v{vX}, {w*65536}, v{V_L16}")
            a(f"v_add_u32 v{vW[0][w]}, s26, v{vX}")
            a(f"v_add_u32 v{vW[1][w]}, s27, v{vX}")
        for i in range(8):
            a(f"v_lshlrev_b32 v{acc[0]+2*i}, 16, v{V_RES+i}")
            a(f"v_and_b32 v{acc[0]+2*i+1}, 0xffff0000, v{V_RES+i}")
        for i in range(16):
            a(f"v_mov_b32 v{acc[1]+i}, 0")
        a(f"s_lshl_b32 s26, s{S_WAVE}, 12")
        a(f"s_add_u32 s26, s26, {SCR}")
        a("s_xor_b32 s27, s26, 0x2000")
        assert SCR % 16384 == 0
        a(f"v_add_u32 v{vX}, s26, v{V_L16}")
        a(f"v_add_u32 v{vY}, s27, v{V_L16}")
    a(f"s_add_u32 s22, s22, s{S_BASE}")
    a(f"s_add_u32 s22, s22, {g.ABUF:#x}")
    AST = 1024 if ln else 2048

    cvm = []
    def load_a(st_):
        if env("NOLOAD", 0):
            return
        off = (st_ * AST) % 4096
        a(f"buffer_load_dwordx4 {vr(ring[st_ % RA],4)}, v{V_L16}, s[4:7], s22 offen offset:{off}{SC}")
        if off + AST == 4096:
            a("s_add_u32 s22, s22, 4096")
        cvm.append(st_)
    def wait_a(tag):
        if tag in cvm:
            i = cvm.index(tag)
            a(f"s_waitcnt vmcnt({len(cvm) - 1 - i})")
            del cvm[:i + 1]
    def w_reads(st_):
        out = []
        for t in range(NT):
            off = LB + (st_ * SBY + (t * 1024 if ln else 0)) % RING
            base = vW[0 if ln else t][off >> 16]
            out.append(f"ds_read_b128 {vr(sets[st_ & 1][t],4)}, v{base} offset:{off & 0xffff}")
        return out
    fill = []
    def mfma(t, xa, wf):
        if env("NOCOMP", 0):
            return
        if g.swap[t]:
            a(f"{MFMA} {vr(acc[t],16)}, {vr(xa,4)}, {vr(wf,4)}, {vr(acc[t],16)}")
        else:
            a(f"{MFMA} {vr(acc[t],16)}, {vr(wf,4)}, {vr(xa,4)}, {vr(acc[t],16)}")
        for _ in range(min(2, len(fill))):
            a(fill.pop(0))

    a("s_lshl_b32 s23, s31, 8")
    a(f"s_add_u32 s23, s23, s{S_FL}")
    a(f"s_add_u32 s23, s23, {g.FIN:#x}")
    a("s_waitcnt vmcnt(0)")
    stamp(a, SB)
    handoff(a, 23, g.NEED)
    stamp(a, SB + 1)
    nxt_a = [0]
    def more_a(n, st_):
        while n > 0 and nxt_a[0] < NS and nxt_a[0] <= st_ + RA:
            load_a(nxt_a[0]); nxt_a[0] += 1; n -= 1
    more_a(g.I0, -1)
    a("s_barrier")
    for r in w_reads(0):
        a(r)
    a(f"s_lshl_b32 s{S_SIG}, s{s_nt if g.kind == 'qkv' else 31}, 8")
    a(f"s_add_u32 s{S_SIG}, s{S_SIG}, s{S_FL}")
    if g.FOUT:
        a(f"s_add_u32 s{S_SIG}, s{S_SIG}, {g.FOUT:#x}")
    if ln:
        a(f"v_lshlrev_b32 v{vX}, 3, v0")
    stl = [f"buffer_load_dwordx2 {vr(tmp+2*i,2)}, v{vX}, s[4:7], s36 offen offset:{i*512}{SC}" for i in range(8)] if ln else []
    nfill_steps = -(-40 // (2 * NT))
    for st_ in range(NS):
        if st_ in bars and st_ > 0:
            a("s_barrier")
        if ln and st_ == NS - nfill_steps:
            assert not stl
            if "st" in cvm:
                i = len(cvm) - 1 - cvm[::-1].index("st")
                a(f"s_waitcnt vmcnt({len(cvm) - 1 - i})")
                del cvm[:i + 1]
            fill.extend(stats_ops(tmp, xc, vRstd))
        nxt = w_reads(st_ + 1) if st_ + 1 < NSW else []
        wait_a(st_)
        for t in range(NT):
            if nxt:
                a(nxt[t])
            a(f"s_waitcnt lgkmcnt({(NT if nxt else NT - 1 - t)})")
            mfma(t, ring[st_ % RA], sets[st_ & 1][t])
            if t == 0:
                more_a(g.PS - 1, st_ - 1)
        more_a(1, st_)
        if stl and st_ >= g.STS:
            a(stl.pop(0)); cvm.append("st")
    if ln:
        while fill:
            a(fill.pop(0))
        if g.kind == "qkv":
            a(f"s_lshl_b32 s26, s{S_WAVE}, 8")
            a(f"s_add_u32 s26, s26, {SCR}")
            a(f"v_add_u32 v{tmp+4}, s26, v{V_L4}")
            a(f"ds_write_b32 v{tmp+4}, v{vRstd}")
            a(f"v_lshrrev_b32 v{tmp+5}, 5, v0")
            a(f"v_lshl_add_u32 v{tmp+5}, v{tmp+5}, 4, s26")
            for q in range(4):
                a(f"ds_read_b128 {vr(vRs+4*q,4)}, v{tmp+5} offset:{q*32}")
            a("s_waitcnt lgkmcnt(5)")
        else:
            a("s_waitcnt lgkmcnt(0)")
            a("s_nop 0")
        for t in range(NT):
            mfma(t, xc, sets[NS & 1][t])
        if g.kind == "qkv":
            a("s_waitcnt lgkmcnt(0)")
    else:
        a("s_nop 11")
        for q in range(4):
            a(f"ds_write_b128 v{vX}, {vr(acc[1]+4*q,4)} offset:{q*1024}")
        a("s_waitcnt lgkmcnt(0)")
        a("s_barrier")
        for q in range(4):
            a(f"ds_read_b128 {vr(acc[1]+4*q,4)}, v{vY} offset:{q*1024}")
    EARLY = 0
    stamp(a, SB + 2)
    ot = sets[0][0]
    if g.kind == "qkv":
        a(f"s_lshl_b32 s26, s{s_nt}, 17")
        a("s_lshl_b32 s27, s31, 10")
        a("s_add_u32 s26, s26, s27")
        a(f"s_add_u32 s26, s26, s{S_BASE}")
        va = tmp + 8
        a(f"v_mul_f32 v{tmp+6}, {f32bits(QSCALE):#x}, v{vRstd}")
        a(f"v_bfe_u32 v{va}, v0, 4, 1")
        a(f"v_lshlrev_b32 v{va}, 16, v{va}")
        a(f"v_lshrrev_b32 v{va+1}, 5, v0")
        a(f"v_lshl_add_u32 v{va}, v{va+1}, 8, v{va}")
        a(f"v_and_b32 v{va+1}, 15, v0")
        a(f"v_lshl_add_u32 v{va}, v{va+1}, 4, v{va}")
        a("s_nop 1")
        for t, base, sc in ((0, B_Q, tmp + 6), (1, B_K, vRstd)):
            for hh in range(2):
                o = ot + 4 * (2 * t + hh)
                for i in range(4):
                    r = acc[t] + 8 * hh + 2 * i
                    a(f"v_mul_f32 v{r}, v{sc}, v{r}")
                    a(f"v_mul_f32 v{r+1}, v{sc}, v{r+1}")
                    a(f"v_cvt_pk_bf16_f32 v{o+i}, v{r}, v{r+1}")
                a(f"s_add_u32 s27, s26, {base + hh*65536:#x}")
                a(f"buffer_store_dwordx4 {vr(o,4)}, v{V_L16}, s[4:7], s27 offen{SC}")
        a(f"s_add_u32 s27, s26, {B_V:#x}")
        for hh in range(2):
            o = ot + 16 + 4 * hh
            for i in range(4):
                r = acc[2] + 8 * hh + 2 * i
                a(f"v_pk_mul_f32 {vr(r,2)}, {vr(vRs+8*hh+2*i,2)}, {vr(r,2)}")
                a(f"v_cvt_pk_bf16_f32 v{o+i}, v{r}, v{r+1}")
            a(f"buffer_store_dwordx4 {vr(o,4)}, v{va}, s[4:7], s27 offen offset:{hh*512}{SC}")
    elif g.kind == "gu":
        a(f"s_mul_i32 s26, s31, {112*1024}")
        a(f"s_mul_i32 s27, s{s_nt}, {7*1024}")
        a("s_add_u32 s26, s26, s27")
        a(f"s_add_u32 s26, s26, s{S_BASE}")
        a(f"s_add_u32 s26, s26, {B_H:#x}")
        a(f"v_mul_f32 v{tmp}, v{vRstd}, v{vRstd}")
        a(f"v_mov_b32 v{tmp+1}, v{tmp}")
        a("s_nop 1")
        for t in range(NT):
            o = ot + 4 * t
            for i in range(4):
                r = acc[t] + 2 * i
                a(f"v_pk_mul_f32 {vr(r,2)}, {vr(r,2)}, {vr(r+8,2)}")
            for i in range(4):
                r = acc[t] + 2 * i
                a(f"v_pk_mul_f32 {vr(r,2)}, {vr(r,2)}, {vr(tmp,2)}")
            for i in range(4):
                r = acc[t] + 2 * i
                a(f"v_cvt_pk_bf16_f32 v{o+i}, v{r}, v{r+1}")
            a(f"buffer_store_dwordx4 {vr(o,4)}, v{V_L16}, s[4:7], s26 offen offset:{(t%4)*1024}{SC}")
            if t == 3:
                a("s_add_u32 s26, s26, 4096")
    else:
        res_epilogue(a, g, acc[0], acc[1], tmp, end)
    if ln:
        a("s_barrier")
        stamp(a, SB + 3)
    a(f"{end}:")
    return R.n


def mlp_phase(a, g):
    E = lambda k, d: env("MLP_" + k, d)
    NR, RING = 10, 10 * RB
    NG, NOPS = 231, 231 + 112
    beg = [i * 1024 for i in range(NG)] + [15 * RB + (i // 2) * 4096 for i in range(112)]
    fin = [i * 1024 + 1023 for i in range(NG)] + [15 * RB + (i // 2) * 4096 + 4095 for i in range(112)]
    RAH = E("RAH", 5)
    I0, I0D = E("I0", 10), E("I0D", 14)
    sched = os.environ.get("MLP_SCHED", "0:0,20:0,40:0,60:0,88:2,100:1,114:1,130:1,146:1,162:1,178:1,194:1,210:1,226:1,240:0,252:0,264:0,276:0,288:0,300:0,330:0")
    sched = dict((int(x.split(":")[0]), int(x.split(":")[1])) for x in sched.split(","))
    bars = sorted(sched)
    S = g.stream
    comp, end = a.label("mlp_comp"), a.label("mlp_end")
    SB, SD = 17, g.sb
    a.c("================ phase gate/up + down ================")
    a(f"s_cmp_lt_u32 s{S_WAVE}, 4")
    a(f"s_cbranch_scc1 {comp}")
    stamp(a, SB)
    S.flush(NR)
    S.fetch(E("N1", 8), NR)
    stamp(a, SB + 1)
    for j, b in enumerate(bars):
        nxt = bars[j + 1] if j + 1 < len(bars) else NOPS
        S.landed(fin[min(NOPS - 1, nxt - 1 + RAH)] // RB)
        a("s_barrier")
        lim = NR + beg[b] // RB
        S.fetch(sched[b], lim)
        S.flush(lim, E("FCAP", 1))
        a.c(f"barrier {b}: fetched {S.nxt}, staged {sorted(S.reg)}")
    assert S.nxt == S.last and not S.vm and not S.lg and not S.reg
    a("s_barrier")
    a("s_barrier")
    a(f"s_branch {end}")

    a(f"{comp}:")
    R = Regs(V_FREE)
    vW = [R.alloc() for _ in range(3)]
    vRstd = R.alloc()
    xc = R.alloc(4)
    vR2 = R.alloc(2)
    vX, vY = R.alloc(), R.alloc()
    vD = [[R.alloc() for _ in range(3)] for _ in range(2)]
    acc = [R.alloc(16) for _ in range(4)]
    NF = RAH + 2
    wf = [R.alloc(4) for _ in range(NF)]
    ring = [R.alloc(4) for _ in range(32)]
    tmp = ring[28]
    NP = len(PASSES)
    pstart = [33 * f for f in PFIRST] + [NG]
    tacc = [acc[t % 4] for t in range(7)]
    dacc = [acc[3], acc[0]]
    hreg = [34, 35, 32]
    a(f"s_add_u32 s31, s{S_TTG}, s{S_WAVE}")
    a("s_lshl_b32 s22, s31, 15")
    a(f"s_add_u32 s22, s22, s{S_BASE}")
    a(f"s_add_u32 s22, s22, {B_X1:#x}")
    a("s_lshl_b32 s36, s31, 12")
    a(f"s_add_u32 s36, s36, s{S_BASE}")
    a(f"s_add_u32 s36, s36, {B_ST1:#x}")
    a(f"s_mul_i32 s26, s31, {112*1024}")
    a(f"s_add_u32 s26, s26, s{S_BASE}")
    a(f"s_add_u32 s26, s26, {B_H:#x}")
    for p in range(NP):
        a(f"s_mul_i32 s{hreg[p]}, s{S_NTG}, {PASSES[p]*1024}")
        a(f"s_add_u32 s{hreg[p]}, s{hreg[p]}, s26")
        if p:
            a(f"s_add_u32 s{hreg[p]}, s{hreg[p]}, {PFIRST[p]*16384}")
    a("s_lshl_b32 s50, s31, 8")
    a(f"s_add_u32 s50, s50, s{S_FL}")
    a(f"s_add_u32 s23, s50, {FL_O:#x}")
    a(f"s_add_u32 s50, s50, {FL_G:#x}")
    a(f"s_add_u32 s51, s50, {WS_FLAG:#x}")
    a(f"s_and_b32 s24, s{S_WAVE}, 1")
    a(f"s_lshr_b32 s25, s{S_WAVE}, 1")
    a(f"s_lshl_b32 s33, s{S_NT64}, 1")
    a("s_add_u32 s33, s33, s25")
    a(f"s_add_u32 s31, s{S_TT64}, s24")
    a("s_lshl_b32 s52, s31, 8")
    a(f"s_add_u32 s52, s52, s{S_FL}")
    a(f"s_add_u32 s52, s52, {FL_G:#x}")
    a(f"s_add_u32 s53, s52, {WS_FLAG:#x}")
    a(f"s_mul_i32 s37, s31, {112*1024}")
    a("s_lshl_b32 s26, s25, 10")
    a("s_add_u32 s37, s37, s26")
    a(f"s_add_u32 s37, s37, s{S_BASE}")
    a(f"s_add_u32 s37, s37, {B_H:#x}")
    a("s_mul_i32 s29, s25, 3072")
    a("s_lshl_b32 s30, s25, 10")
    a("s_add_u32 s30, s30, 1024")
    for w in range(3):
        a(f"v_add_u32 v{vW[w]}, {w*65536}, v{V_L16}")
        a(f"v_add_u32 v{vD[0][w]}, s29, v{vW[w]}")
        a(f"v_add_u32 v{vD[1][w]}, s30, v{vW[w]}")
    a(f"v_mov_b32 v{vY}, 0")
    a(f"v_lshlrev_b32 v{vX}, 3, v0")
    cvm = []
    def wait_tag(tag):
        if tag in cvm:
            i = len(cvm) - 1 - cvm[::-1].index(tag)
            a(f"s_waitcnt vmcnt({len(cvm) - 1 - i})")
            del cvm[:i + 1]
    na, nh = [0], [0]
    def load_x():
        k = na[0]; na[0] += 1
        a(f"buffer_load_dwordx4 {vr(ring[k],4)}, v{V_L16}, s[4:7], s22 offen offset:{(k%4)*1024}{SC}")
        if k % 4 == 3:
            a("s_add_u32 s22, s22, 4096")
        cvm.append(("x", k))
    def load_h():
        k = nh[0]; nh[0] += 1
        a(f"buffer_load_dwordx4 {vr(ring[k%32],4)}, v{V_L16}, s[4:7], s37 offen offset:{(k%2)*2048}{SC}")
        if k % 2 == 1:
            a("s_add_u32 s37, s37, 4096")
        cvm.append(("h", k))
    def w_read(i):
        off = beg[i] % RING
        base = vW[off >> 16] if i < NG else vD[(i - NG) & 1][off >> 16]
        a(f"ds_read_b128 {vr(wf[i % NF],4)}, v{base} offset:{off & 0xffff}")
    def slot(i):
        for p in range(NP):
            if i < pstart[p + 1]:
                return PFIRST[p] + (i - pstart[p]) % PASSES[p], (i - pstart[p]) // PASSES[p]
        return None, (i - NG) // 2
    fill = []
    stored = set()
    def h_ops(t, packed=True):
        r = tacc[t]
        p = max(q for q in range(NP) if PFIRST[q] <= t)
        so, off = hreg[p], (t - PFIRST[p]) * 1024
        ops = [f"v_pk_mul_f32 {vr(r+2*i,2)}, {vr(r+2*i,2)}, {vr(r+8+2*i,2)}" for i in range(4)]
        ops += [f"v_pk_mul_f32 {vr(r+2*i,2)}, {vr(r+2*i,2)}, {vr(vR2,2)}" for i in range(4)]
        if not packed:
            ops = [f"v_mul_f32 v{r+i}, v{r+i}, v{r+8+i}" for i in range(8)]
            ops += [f"v_mul_f32 v{r+i}, v{vR2}, v{r+i}" for i in range(8)]
        ops += [f"v_cvt_pk_bf16_f32 v{r+8+i}, v{r+2*i}, v{r+2*i+1}" for i in range(4)]
        ops.append((f"buffer_store_dwordx4 {vr(r+8,4)}, v{V_L16}, s[4:7], s{so} offen offset:{off}{SC}", ("hs", t)))
        return ops

    a("s_waitcnt vmcnt(0)")
    stamp(a, SB)
    handoff(a, 23, 16)
    stamp(a, SB + 1)
    if E("PRIO", 2):
        a(f"s_setprio {E('PRIO', 2)}")
    while na[0] < I0:
        load_x()
        if na[0] == E("STP", 4):
            a("s_barrier")
            for i in range(RAH):
                w_read(i)
            for q in range(8):
                a(f"buffer_load_dwordx2 {vr(tmp+2*q,2)}, v{vX}, s[4:7], s36 offen offset:{q*512}{SC}")
                cvm.append("st")
    a(f"s_add_u32 s{S_SIG}, s52, {FL_D - FL_G:#x}")
    STF = (E("STP", 4) + 1) * PASSES[0]
    evs = os.environ.get("MLP_EV", {"4,3": "170:200:214,256:284:292", "3,2,2": "140:200:214,205:244:252,270:296:304",
                                    "4,2,1": "176:198:216,232:256:278,256:286:308"}.get(",".join(map(str, PASSES))))
    ev = []
    for p, x in enumerate(evs.split(",")):
        sg, ak, go = map(int, x.split(":"))
        ev.append((PFIRST[p] + PASSES[p] - 1, sg, ak, go, 8 * (PFIRST[p] + PASSES[p]), sg < NG and E("VEC", 0) & 1, ak < NG and E("VEC", 0) & 2))
    def emit(x):
        if isinstance(x, tuple):
            a(x[0]); cvm.append(x[1]); stored.add(x[1][1])
        else:
            a(x)
    dinit = [False]
    hlim = 0
    treg = list(range(78, 94, 2)) + [96, 98, 100, 62]
    tpos = [int(x) for x in os.environ.get("TRACE", "").split(",") if x]
    for i in range(NOPS):
        t, ks = slot(i)
        if i in tpos:
            r_ = treg[tpos.index(i)]
            a(f"s_memtime s[{r_}:{r_+1}]")
        for gi, (lt, sg, ak, go, lim_, vec, vec2) in enumerate(ev):
            if i == sg:
                a.c(f"this wave's part {gi} of H is complete")
                assert lt in stored
                wait_tag(("hs", lt))
                if vec:
                    a(f"v_mov_b32 v{vRstd}, 1")
                    a("s_mov_b64 exec, 1")
                    a(f"buffer_atomic_add v{vRstd}, v{vY}, s[4:7], s51 offen offset:{gi*4} sc1")
                    a("s_mov_b64 exec, -1")
                    cvm.append("sig")
                else:
                    a(f"s_add_u32 s54, s50, {gi*4}")
                    a("s_mov_b32 s38, 1")
                    a("s_atomic_add s38, s[14:15], s54")
                if PT:
                    a(f"s_mov_b64 exec, {(1 << (8 * PASSES[gi])) - 1 if PASSES[gi] < 4 else 0x7fffffff:#x}")
                    if PASSES[gi] == 4:
                        a("s_mov_b32 exec_lo, -1")
                    a(f"buffer_load_dword v{V_PF}, v{V_L128}, s[4:7], s{hreg[gi]} offen sc1")
                    a("s_mov_b64 exec, -1")
                    cvm.append("pt")
            if i == ak:
                if vec2:
                    a(f"buffer_load_dword v{vX}, v{vY}, s[4:7], s53 offen offset:{gi*4} sc1")
                    cvm.append("ask")
                else:
                    a(f"s_add_u32 s28, s52, {gi*4}")
                    a("s_mov_b32 s55, 0")
                    a("s_atomic_add s55, s[14:15], s28 glc")
            if i == go:
                ok = a.label("go")
                if vec2:
                    wait_tag("ask")
                    a(f"v_cmp_gt_u32 vcc, 16, v{vX}")
                    a(f"s_add_u32 s28, s52, {gi*4}")
                    a(f"s_cbranch_vccz {ok}")
                else:
                    a("s_waitcnt lgkmcnt(0)")
                    a("s_cmp_ge_u32 s55, 16")
                    a(f"s_cbranch_scc1 {ok}")
                poll(a, 28, 16)
                a(f"{ok}:")
                hlim = lim_
                if gi in (0, NP - 1) and not tpos:
                    stamp(a, SD + (0 if gi == 0 else 4))
        if i in bars and i > 0:
            a("s_barrier")
        if i == STF:
            wait_tag("st")
            fill.extend(stats_ops(tmp, xc, vRstd))
            fill.append(f"v_mul_f32 v{vR2}, v{vRstd}, v{vRstd}")
            fill.append(f"v_mov_b32 v{vR2+1}, v{vR2}")
        if i == pstart[1] and not tpos:
            stamp(a, SB + 2)
        if i == NG and not tpos:
            stamp(a, SB + 3)
        if i in pstart[1:]:
            p = pstart.index(i) - 1
            assert not fill
            need = set(tacc[q] for q in range(PFIRST[p + 1], PFIRST[p + 1] + PASSES[p + 1])) if p + 1 < NP else set(dacc)
            tiles = list(range(PFIRST[p], PFIRST[p] + PASSES[p]))
            now = [q for q in tiles if tacc[q] in need or (E("SER", 6) >> p) & 1]
            if now:
                a(f"s_nop {max(0, 11 - 3 * (tiles[-1] - now[0]))}")
                for q in now:
                    for x in h_ops(q):
                        emit(x)
            else:
                fill.extend(["s_nop 0"] * 6)
            for q in tiles:
                if q not in now:
                    fill.extend(h_ops(q, False))
        if i == NG and not tpos:
            stamp(a, SD + 1)
        if 3 in stored and not dinit[0] and not fill:
            dinit[0] = True
            assert i + 10 < NG
            fill.extend(["s_nop 0"] * 2)
            for q in range(8):
                fill.append(f"v_lshlrev_b32 v{dacc[0]+2*q}, 16, v{V_RES+q}")
                fill.append(f"v_and_b32 v{dacc[0]+2*q+1}, 0xffff0000, v{V_RES+q}")
        if t == 0 and ks < 32:
            wait_tag(("x", ks))
        if t is None and (i - NG) % 2 == 0:
            wait_tag(("h", ks))
        if i + RAH < NOPS:
            w_read(i + RAH)
        a(f"s_waitcnt lgkmcnt({min(RAH, NOPS - 1 - i)})")
        if t is not None:
            d, xa, first = tacc[t], (xc if ks == 32 else ring[ks]), ks == 0
            if first and t >= 4:
                assert t - 4 in stored
        else:
            d, xa, first = dacc[(i - NG) & 1], ring[ks % 32], i == NG + 1
            assert 4 in stored
        a(f"{MFMA} {vr(d,16)}, {vr(wf[i % NF],4)}, {vr(xa,4)}, {'0' if first else vr(d,16)}")
        for _ in range(min(E("FPS", 3), len(fill))):
            emit(fill.pop(0))
        if t == PASSES[0] - 1 and na[0] < 32:
            assert na[0] < 28 or (i > STF and not fill), i
            load_x()
        if i >= pstart[NP - 1]:
            done_steps = (i + 1 - NG) // 2 if t is None else 0
            look = I0D if t is not None else max(E("LK", 12), I0D - done_steps)
            if nh[0] < min(hlim, done_steps + look) and (t is None or nh[0] < ks):
                load_h()
    assert nh[0] == 56 and not fill
    dead = beg[bars[-1]] // RB - 1
    assert dead + NR >= 29
    SCR = (dead % NR) * RB
    a(f"s_lshl_b32 s26, s{S_WAVE}, 12")
    a(f"s_add_u32 s26, s26, {SCR}")
    a("s_xor_b32 s27, s26, 0x2000")
    a(f"v_add_u32 v{vX}, s26, v{V_L16}")
    a(f"v_add_u32 v{vY}, s27, v{V_L16}")
    a("s_nop 6")
    if E("PRIO", 2):
        a("s_setprio 0")
    for q in range(4):
        a(f"ds_write_b128 v{vX}, {vr(dacc[1]+4*q,4)} offset:{q*1024}")
    a("s_waitcnt lgkmcnt(0)")
    a("s_barrier")
    for q in range(4):
        a(f"ds_read_b128 {vr(dacc[1]+4*q,4)}, v{vY} offset:{q*1024}")
    stamp(a, SD + 2)
    for k in range(len(tpos)):
        a(f"v_writelane_b32 v{V_STAMP+1}, s{treg[k]}, {k}")
    res_epilogue(a, g, dacc[0], dacc[1], tmp, end)
    a(f"{end}:")
    return max(R.n, VS + 16 * S.maxreg)


def attn_phase(a, SB, code_end):
    U = 2
    NIT = 32 // U
    B2IT = env("ATT_B2", 1)
    B3IT = env("ATT_B3", 3)
    PRIO_IT = env("ATT_PRIO", 14)
    PFN = 4 if GMX == 4 else env('PFN', 6)
    CB = 0
    XB = CB + 4096
    KB, VB = 32768, 98304
    assert XB + 8 * 2304 <= KB
    R = Regs(V_FREE)
    vK, vV, vInc, vV0 = R.alloc(), R.alloc(), R.alloc(), R.alloc()
    t0, t1 = R.alloc(), R.alloc()
    vPA, vPP = R.alloc(), R.alloc()
    R.alloc(); R.alloc()
    vIx, vKp = R.alloc(), R.alloc()
    DYN = env("ATT_DYN", 0)
    Q = [R.alloc(4), R.alloc(4)]
    NM = [R.alloc(16), R.alloc(16)]
    O = [R.alloc(16), R.alloc(16)]
    S = [R.alloc(16), R.alloc(16)]
    P = R.alloc(8)
    KF = [R.alloc(4), R.alloc(4)]
    VF = [R.alloc(8), R.alloc(8)]
    a.c("================ phase attention ================")
    a(f"s_and_b32 s19, s{S_IDX}, 3")
    a(f"s_lshl_b32 s20, s{S_XCD}, 2")
    a("s_add_u32 s19, s19, s20")
    a(f"s_lshr_b32 s20, s{S_IDX}, 2")
    a("s_lshl_b32 s20, s20, 3")
    a(f"s_and_b32 s26, s{S_WAVE}, 3")
    a(f"s_lshr_b32 s27, s{S_WAVE}, 2")
    a("s_lshl_b32 s22, s26, 1")
    a("s_add_u32 s20, s20, s22")
    a("s_lshl_b32 s21, s19, 16")
    a(f"s_add_u32 s21, s21, s{S_BASE}")
    setup = a.label("att_setup")
    assert B_Q == 0 and B_V - B_K == 0x200000
    a("s_and_b32 s24, s26, 1")
    a("s_lshr_b32 s25, s26, 1")
    a("s_lshl_b32 s28, s24, 16")
    a(f"s_add_u32 s28, s28, {KB}")
    a("s_lshl_b32 s29, s24, 21")
    a("s_add_u32 s29, s29, s21")
    a(f"s_add_u32 s29, s29, {B_K:#x}")

    def dma(first_tile, per_wave):
        a(f"s_mul_i32 s24, s25, {per_wave*1024}")
        if first_tile:
            a(f"s_add_u32 s24, s24, {first_tile*1024}")
        n = 0
        while n < per_wave:
            a("s_add_u32 s30, s28, s24")
            a("s_mov_b32 m0, s30")
            a("s_add_u32 s31, s29, s24")
            for i in range(min(4, per_wave - n)):
                a(f"buffer_load_dwordx4 v{V_L16}, s[4:7], s31 offen offset:{i*1024}{SC} lds")
            n += 4
            if n < per_wave:
                a("s_add_u32 s24, s24, 4096")
    a(f"v_and_b32 v{t0}, 11, v0")
    a(f"v_cmp_eq_u32 vcc, 0, v{t0}")
    a(f"v_mov_b32 v{t1}, 0x3f803f80")
    a("s_lshl_b32 s30, s26, 10")
    a(f"s_add_u32 s30, s30, {CB}")
    a(f"v_cndmask_b32 v{P}, 0, v{t1}, vcc")
    a(f"v_add_u32 v{t0}, s30, v{V_L16}")
    for i in range(1, 4):
        a(f"v_mov_b32 v{P+i}, v{P}")
    a(f"ds_write_b128 v{t0}, {vr(P,4)}")
    a(f"v_lshrrev_b32 v{t0}, 5, v0")
    a(f"v_lshlrev_b32 v{t0}, 8, v{t0}")
    a(f"v_and_b32 v{t1}, 15, v0")
    a(f"v_lshl_add_u32 v{t0}, v{t1}, 4, v{t0}")
    a(f"v_and_b32 v{t1}, 16, v0")
    a(f"v_cmp_eq_u32 vcc, 0, v{t1}")
    a("s_lshl_b32 s30, s27, 15")
    a(f"s_add_u32 s30, s30, {KB}")
    a(f"v_and_b32 v{vKp}, 0x33, v0")
    a(f"v_bfe_u32 v{vIx}, v0, 2, 1")
    a(f"v_lshl_or_b32 v{vKp}, v{vIx}, 3, v{vKp}")
    a(f"v_bfe_u32 v{vIx}, v0, 3, 1")
    a(f"v_lshl_or_b32 v{vKp}, v{vIx}, 2, v{vKp}")
    a(f"v_lshlrev_b32 v{vKp}, 4, v{vKp}")
    a(f"v_mov_b32 v{vIx}, 0xdddddddd")
    a(f"v_add_u32 v{vK}, s30, v{vKp}")
    a("s_add_u32 s31, s30, 0x10000")
    a(f"v_mov_b32 v{t1}, s31")
    a(f"v_mov_b32 v{vInc}, {CB}")
    a(f"v_cndmask_b32 v{t1}, v{vInc}, v{t1}, vcc")
    a(f"v_add_u32 v{vV}, v{t0}, v{t1}")
    a(f"v_mov_b32 v{t1}, {VB}")
    a(f"v_cndmask_b32 v{t1}, v{vInc}, v{t1}, vcc")
    a(f"v_add_u32 v{vV0}, v{t0}, v{t1}")
    a(f"v_mov_b32 v{t1}, {U*1024}")
    a(f"v_cndmask_b32 v{vInc}, 0, v{t1}, vcc")
    for q in range(2):
        for i in range(16):
            a(f"v_mov_b32 v{O[q]+i}, 0")
    for i in range(4, 8):
        a(f"v_mov_b32 v{VF[1]+i}, 0")
    a(f"ds_write_b128 v{V_L16}, {vr(VF[1]+4,4)} offset:{XB + 9216}")
    a("s_mul_i32 s30, s26, 2304")
    a(f"s_add_u32 s30, s30, {XB}")
    a("s_lshl_b32 s31, s26, 12")
    a(f"s_add_u32 s31, s31, {XB + 12288}")
    a("s_cmp_eq_u32 s27, 0")
    a("s_cselect_b32 s35, s30, s31")
    a("s_cselect_b32 s36, s31, s30")
    a(f"v_add_u32 v{vPA}, s35, v{V_L16}")
    a(f"v_add_u32 v{vPP}, s36, v{V_L16}")
    a(f"v_add_u32 v{vPA+2}, s35, v{V_L4}")
    a(f"v_add_u32 v{vPP+2}, s36, v{V_L4}")
    a("s_add_u32 s20, s20, s27")
    a("s_lshl_b32 s22, s20, 10")
    a("s_add_u32 s22, s22, s21")
    a("s_xor_b32 s35, s22, 1024")
    a(f"s_add_u32 s36, s21, {B_K:#x}")
    a("s_lshr_b32 s23, s19, 1")
    a(f"s_cmp_eq_u32 s{S_IT}, 0")
    a("s_cselect_b32 s53, 32, 16")
    a("s_cselect_b32 s52, -2, -1")
    a(f"s_cselect_b32 s32, {NIT - env('ATT_PRIO0', 15)}, {NIT - PRIO_IT}")
    a("s_and_b32 s23, s23, s52")
    a("s_lshl_b32 s23, s23, 8")
    a(f"s_add_u32 s23, s23, s{S_FL}")
    assert FL_Q == 0
    a(f"s_mov_b32 s34, {NIT - B2IT}")
    a(f"s_mov_b32 s33, {NIT - B3IT}")
    a("s_waitcnt vmcnt(0) lgkmcnt(0)")
    stamp(a, SB)
    a("s_barrier")
    a(f"s_cmp_lg_u32 s{S_WAVE}, 0")
    a(f"s_cbranch_scc1 {setup}")
    handoff(a, 23, "s53")
    stamp(a, SB + 1)
    a(f"{setup}:")
    a("s_barrier")

    def qk_loads():
        a(f"buffer_load_dwordx4 {vr(KF[1],4)}, v{vKp}, s[4:7], s36 offen{SC}")
        a(f"buffer_load_dwordx4 {vr(Q[0],4)}, v{V_L16}, s[4:7], s35 offen{SC}")
        a(f"buffer_load_dwordx4 {vr(Q[1],4)}, v{V_L16}, s[4:7], s22 offen{SC}")

    def standin():
        for q in range(2):
            a(f"{MFMA} {vr(S[q],16)}, {vr(KF[1],4)}, {vr(Q[q],4)}, 0")
        a("s_nop 11")
        tt = (t0, t1)
        for q in range(2):
            a(f"v_max3_f32 v{tt[q]}, v{S[q]}, v{S[q]+1}, v{S[q]+2}")
            a(f"v_max3_f32 v{P+q}, v{S[q]+8}, v{S[q]+9}, v{S[q]+10}")
        for i in (3, 5):
            for q in range(2):
                a(f"v_max3_f32 v{tt[q]}, v{tt[q]}, v{S[q]+i}, v{S[q]+i+1}")
                a(f"v_max3_f32 v{P+q}, v{P+q}, v{S[q]+8+i}, v{S[q]+9+i}")
        for q in range(2):
            a(f"v_max3_f32 v{tt[q]}, v{tt[q]}, v{S[q]+7}, v{S[q]+15}")
        for q in range(2):
            a(f"v_max_f32 v{tt[q]}, v{tt[q]}, v{P+q}")
        for q in range(2):
            a(f"v_mov_b32 v{P+q}, v{tt[q]}")
        a("s_nop 0")
        for q in range(2):
            a(f"v_permlane32_swap_b32 v{tt[q]}, v{P+q}")
        for q in range(2):
            a(f"v_min_f32 v{NM[q]}, -v{tt[q]}, -v{P+q}")
        for q in range(2):
            a(f"v_mov_b32 v{NM[q]+1}, v{NM[q]}")
        for q in range(2):
            for i in range(2, 16, 2):
                a(f"v_pk_mov_b32 {vr(NM[q]+i,2)}, {vr(NM[q],2)}, {vr(NM[q],2)}")

    older, join = a.label("older"), a.label("join")
    a("s_cmp_eq_u32 s27, 0")
    a(f"s_cbranch_scc1 {older}")
    dma(0, 2)
    dma(4, 6)
    a("s_waitcnt vmcnt(6)")
    a("s_barrier")
    stamp(a, SB + 2)
    qk_loads()
    dma(16, 8)
    a("s_waitcnt vmcnt(11)")
    a("s_barrier")
    dma(32, 16)
    a("s_waitcnt vmcnt(24)")
    standin()
    F, G_, vS, vR, vC = V_TF, V_TF + 32, V_TF + 48, V_TF + 49, V_TF + 52
    CSA = XB + 10240
    CNT = XB + 9216
    a.c("L2 prefetch: this wave's share of gate/up (2 x 8 KB) and wo (8 KB)")
    a(f"s_mul_i32 s50, s{S_IDX}, 59136")
    a(f"s_and_b32 s23, s{S_XCD}, 1")
    a(f"s_mul_i32 s23, s23, {8*231*1024}")
    a("s_add_u32 s50, s50, s23")
    a("s_lshl_b32 s23, s26, 14")
    a("s_add_u32 s50, s50, s23")
    a(f"s_add_u32 s50, s50, {WS_WGU:#x}")
    a(f"s_lshl_b32 s51, s{S_IDX}, 14")
    a("s_and_b32 s23, s26, 1")
    a("s_lshl_b32 s23, s23, 13")
    a("s_add_u32 s51, s51, s23")
    a(f"s_add_u32 s51, s51, {WS_WO:#x}")
    a(f"s_mov_b32 s39, {SPIN_MAX}")
    second, both = a.label("second"), a.label("both")
    a(f"s_cmp_lg_u32 s{S_IT}, 0")
    a(f"s_cbranch_scc1 {second}")
    a.c("re-tiling task: 128 rows x two 64-column strips; this wave takes 32 rows")
    l_gu, l_o, l_d, l_go = [a.label(x) for x in ("gu", "o", "d", "go")]
    a("s_cmp_ge_u32 s2, 176")
    a(f"s_cbranch_scc1 {l_d}")
    a("s_cmp_ge_u32 s2, 160")
    a(f"s_cbranch_scc1 {l_o}")
    a("s_cmp_ge_u32 s2, 48")
    a(f"s_cbranch_scc1 {l_gu}")
    srd(a, 80, 66, 67, 512 * 1536 * 2)
    srd(a, 84, 66, 67, 512 * 1536 * 2)
    a("s_and_b32 s79, s2, 3")
    a("s_lshr_b32 s54, s2, 2")
    a("s_mov_b32 s88, 3072")
    a("s_lshl_b32 s89, s54, 8")
    a("s_add_u32 s90, s89, 128")
    a("s_mov_b32 s91, 0")
    a("s_and_b32 s62, s54, 3")
    a(f"s_mul_i32 s96, s62, {4*99*1024}")
    a("s_lshr_b32 s62, s54, 2")
    a("s_lshl_b32 s62, s62, 10")
    a("s_add_u32 s96, s96, s62")
    assert WS_WQKV == 0
    a(f"s_add_u32 s97, s96, {99*1024}")
    a(f"s_add_u32 s100, s96, {2*99*1024}")
    a(f"s_add_u32 s101, s96, {3*99*1024}")
    for d in (72, 73, 74, 75):
        a(f"s_mov_b32 s{d}, 3072")
    a("s_mov_b32 s63, 1")
    a("s_mov_b32 s93, 0")
    a(f"s_branch {l_go}")
    a(f"{l_gu}:")
    srd(a, 80, 72, 73, 512 * 1792 * 2)
    srd(a, 84, 74, 75, 512 * 1792 * 2)
    a("s_sub_u32 s55, s2, 48")
    a("s_and_b32 s79, s55, 3")
    a("s_lshr_b32 s54, s55, 2")
    a("s_mov_b32 s88, 3584")
    a("s_lshl_b32 s89, s54, 7")
    a("s_mov_b32 s90, s89")
    a("s_mov_b32 s91, 1")
    a("s_lshl_b32 s55, s54, 2")
    for d, e in zip((96, 97, 100, 101), (72, 73, 74, 75)):
        a("s_mul_i32 s62, s55, 9363")
        a("s_lshr_b32 s62, s62, 16")
        a(f"s_mul_i32 s{d}, s62, {231*1024}")
        a("s_mul_i32 s62, s62, 7")
        a("s_sub_u32 s62, s55, s62")
        pass_of(a, 62, 78, e)
        a(f"s_lshl_b32 s{e}, s{e}, 10")
        a("s_lshl_b32 s78, s78, 5")
        a("s_add_u32 s62, s62, s78")
        a("s_lshl_b32 s62, s62, 10")
        a(f"s_add_u32 s{d}, s{d}, s62")
        a(f"s_add_u32 s{d}, s{d}, {WS_WGU:#x}")
        a("s_add_u32 s55, s55, 1")
    a("s_mov_b32 s63, 1")
    a("s_mov_b32 s93, 0")
    a(f"s_branch {l_go}")
    for lab, first, lo, nbytes, wnt, wbase in ((l_o, 160, 68, 512 * 512 * 2, 64 * 1024, WS_WO),
                                               (l_d, 176, 76, 1792 * 512 * 2, 224 * 1024, WS_WD)):
        a(f"{lab}:")
        srd(a, 80, lo, lo + 1, nbytes)
        srd(a, 84, lo, lo + 1, nbytes)
        a(f"s_sub_u32 s55, s2, {first}")
        a("s_lshr_b32 s79, s55, 2")
        a("s_and_b32 s54, s55, 3")
        a("s_mov_b32 s88, 1024")
        a("s_lshl_b32 s89, s54, 8")
        a("s_add_u32 s90, s89, 128")
        a("s_mov_b32 s91, 0")
        a(f"s_mul_i32 s96, s54, {2*wnt}")
        a(f"s_add_u32 s96, s96, {wbase:#x}")
        a("s_add_u32 s97, s96, 1024")
        a(f"s_add_u32 s100, s96, {wnt}")
        a(f"s_add_u32 s101, s96, {wnt+1024}")
        for d in (72, 73, 74, 75):
            a(f"s_mov_b32 s{d}, 2048")
        a(f"s_mov_b32 s93, {0 if lab == l_o else 1}")
        a("s_mov_b32 s63, 0")
        if lab == l_o:
            a(f"s_branch {l_go}")
    a(f"{l_go}:")
    a("s_lshl_b32 s62, s79, 2")
    a("s_add_u32 s62, s62, s26")
    a("s_lshl_b32 s92, s62, 1")
    for d, inc in ((76, 0), (77, 1)):
        a(f"s_add_u32 s{d}, s92, {inc}")
        a(f"s_mul_i32 s54, s{d}, 9363")
        a("s_lshr_b32 s54, s54, 16")
        a("s_mul_i32 s55, s54, 7")
        a(f"s_sub_u32 s55, s{d}, s55")
        pass_of(a, 55, 78, 49)
        a("s_mul_i32 s54, s54, s49")
        a("s_mul_i32 s78, s78, 15")
        a("s_add_u32 s54, s54, s78")
        a("s_add_u32 s54, s54, s55")
        a("s_cmp_eq_u32 s93, 0")
        a(f"s_cselect_b32 s{d}, s{d}, s54")
    a("s_lshl_b32 s62, s62, 5")
    a("s_mul_i32 s62, s62, s88")
    a("s_add_u32 s89, s89, s62")
    a("s_add_u32 s90, s90, s62")
    a("s_lshl_b32 s55, s88, 3")
    a(f"v_lshrrev_b32 v{vS}, 3, v0")
    a(f"v_mul_lo_u32 v{vS}, v{vS}, s88")
    a(f"v_and_b32 v{vR}, 7, v0")
    a(f"v_lshl_add_u32 v{vS}, v{vR}, 4, v{vS}")
    for g8 in range(4):
        for h in range(2):
            a(f"buffer_load_dwordx4 {vr(F+8*g8+4*h,4)}, v{vS}, s[{80+4*h}:{83+4*h}], s{89+h} offen")
            a(f"s_add_u32 s{89+h}, s{89+h}, s55")
    a("s_mov_b32 s33, 1")
    a(f"s_mov_b32 s34, {NIT - env('ATT_G0', 4)}")
    a("s_waitcnt vmcnt(8)")
    a(f"s_branch {both}")
    a(f"{second}:")
    a("s_mov_b32 s33, 6")
    a(f"s_mov_b32 s34, {NIT - 1}")
    a("s_waitcnt vmcnt(0)")
    a(f"{both}:")
    a("s_barrier")
    a("s_setprio 1")
    a(f"ds_read_b128 {vr(KF[0],4)}, v{vK}")
    a(f"ds_read_b128 {vr(VF[0],4)}, v{vV}")
    a(f"ds_read_b128 {vr(VF[0]+4,4)}, v{vV} offset:512")
    a("s_waitcnt lgkmcnt(0)")
    a(f"{MFMA} {vr(S[0],16)}, {vr(KF[0],4)}, {vr(Q[0],4)}, {vr(NM[0],16)}")
    a("s_nop 10")
    a(f"s_branch {join}")
    a(f"{older}:")
    qk_loads()
    a("s_waitcnt vmcnt(0)")
    standin()
    a(f"{MFMA} {vr(S[0],16)}, {vr(KF[1],4)}, {vr(Q[0],4)}, {vr(NM[0],16)}")
    a("s_barrier")
    stamp(a, SB + 2)
    a(f"ds_read_b128 {vr(VF[0],4)}, v{vV}")
    a(f"ds_read_b128 {vr(VF[0]+4,4)}, v{vV} offset:512")
    for i in range(0, 4, 2):
        a(f"v_pk_mov_b32 {vr(KF[0]+i,2)}, {vr(KF[1]+i,2)}, {vr(KF[1]+i,2)} op_sel:[0,1]")
    a("s_waitcnt lgkmcnt(0)")
    a("s_nop 5")
    a(f"{join}:")
    a(f"s_mov_b32 s31, {NIT}")
    stamp(a, SB + 3)
    lp, hook, back, hp, exitc = [a.label(x) for x in ("attn", "hook", "back", "hookp", "exitc")]
    a(f"{lp}:")
    order = os.environ.get("ATT_ORD", "E0 E1 P1 RK D E2 E3 E4 W QK R0 E5 E6 E7 E8 E9 E10 P0 R1 S E11 E12 E13 A E14 E15").split()
    for u in range(U):
        for q in range(2):
            c = S[q]
            for tok in order:
                if tok[0] == "E":
                    i = int(tok[1:]); a(f"v_exp_f32 v{c+i}, v{c+i}")
                elif tok[0] == "C":
                    j = int(tok[1:]); a(f"v_cvt_pk_bf16_f32 v{P+j}, v{c+2*j}, v{c+2*j+1}")
                elif tok == "P1":
                    pv = VF[(u + 1) & 1] if q == 0 else VF[u & 1]
                    a(f"{SMF} {vr(O[q^1],16)}, {vr(pv+4,4)}, {vr(S[q^1]+8,8)}, v{vIx}")
                elif tok == "P0":
                    a(f"{SMF} {vr(O[q],16)}, {vr(VF[u&1],4)}, {vr(S[q],8)}, v{vIx}")
                elif tok == "QK":
                    k_ = KF[u & 1] if q == 0 else KF[(u + 1) & 1]
                    a(f"{MFMA} {vr(S[q^1],16)}, {vr(k_,4)}, {vr(Q[q^1],4)}, {vr(NM[q^1],16)}")
                elif tok == "W":
                    if q == 1:
                        a("s_waitcnt lgkmcnt(0)")
                elif tok == "RK":
                    if q == 0:
                        a(f"ds_read_b128 {vr(KF[(u+1)&1],4)}, v{vK} offset:{(u+1)*1024}")
                elif tok == "R0":
                    if q == 0:
                        a(f"ds_read_b128 {vr(VF[(u+1)&1],4)}, v{vV} offset:{(u+1)*1024}")
                elif tok == "R1":
                    if q == 0:
                        a(f"ds_read_b128 {vr(VF[(u+1)&1]+4,4)}, v{vV} offset:{(u+1)*1024+512}")
                elif tok == "A":
                    if u == U - 1 and q == 1:
                        a(f"v_add_u32 v{vK}, {U*1024}, v{vK}")
                        a(f"v_add_u32 v{vV}, v{vInc}, v{vV}")
                elif tok == "D":
                    if 2 * u + q == env("ATT_PU", 1):
                        sk = a.label("keep")
                        a("s_cmp_lg_u32 s31, s32")
                        a(f"s_cbranch_scc1 {sk}")
                        a("s_setprio 0")
                        a(f"{sk}:")
                elif tok == "S":
                    if u == U - 1 and q == 1:
                        a("s_sub_u32 s31, s31, 1")
                        a("s_cmp_lg_u32 s31, s34")
    if "S" not in order:
        a("s_sub_u32 s31, s31, 1")
        a("s_cmp_lg_u32 s31, s34")
    a(f"s_cbranch_scc1 {lp}")
    a("s_cmp_lg_u32 s31, 0")
    a(f"s_cbranch_scc1 {hook}")
    a(f"{exitc}:")
    a("s_cmp_lg_u32 s33, 0")
    a(f"s_cbranch_scc1 {hp}")
    a("s_setprio 0")
    a(f"{SMF} {vr(O[1],16)}, {vr(VF[1]+4,4)}, {vr(S[1]+8,8)}, v{vIx}")
    stamp(a, SB + 4)
    a(f"ds_write_b128 v{vPA}, {vr(O[0],4)}")
    a(f"ds_write_b128 v{vPA}, {vr(O[0]+4,4)} offset:1024")
    a(f"ds_write_b32 v{vPA+2}, v{O[0]+8} offset:2048")
    a("s_lshl_b32 s22, s20, 15")
    a("s_lshl_b32 s23, s19, 10")
    a("s_add_u32 s22, s22, s23")
    a(f"s_add_u32 s22, s22, s{S_BASE}")
    a(f"s_add_u32 s22, s22, {B_O:#x}")
    a(f"s_lshl_b32 s{S_SIG}, s20, 8")
    a(f"s_add_u32 s{S_SIG}, s{S_SIG}, s{S_FL}")
    a(f"s_add_u32 s{S_SIG}, s{S_SIG}, {FL_A:#x}")
    a("s_waitcnt vmcnt(0) lgkmcnt(0)")
    a("s_barrier")
    a(f"ds_read_b32 v{S[0]+8}, v{vPP+2} offset:2048")
    a(f"ds_read_b128 {vr(S[0],4)}, v{vPP}")
    a(f"ds_read_b128 {vr(S[0]+4,4)}, v{vPP} offset:1024")
    OO = O[1]
    a("s_waitcnt lgkmcnt(2)")
    a(f"v_add_f32 v{OO+8}, v{OO+8}, v{S[0]+8}")
    a(f"v_rcp_f32 v{t0}, v{OO+8}")
    for i in range(0, 8, 2):
        if i % 4 == 0:
            a(f"s_waitcnt lgkmcnt({1 - i // 4})")
        a(f"v_pk_add_f32 {vr(OO+i,2)}, {vr(OO+i,2)}, {vr(S[0]+i,2)}")
    fin, fb, endl = a.label("fin"), a.label("fallback"), a.label("att_end")
    a(f"v_pk_add_f32 {vr(S[0],2)}, {vr(OO,2)}, {vr(OO+2,2)}")
    a(f"v_pk_add_f32 {vr(S[0]+2,2)}, {vr(OO+4,2)}, {vr(OO+6,2)}")
    a(f"v_pk_add_f32 {vr(S[0],2)}, {vr(S[0],2)}, {vr(S[0]+2,2)}")
    a(f"v_add_f32 v{t1}, v{S[0]}, v{S[0]+1}")
    a(f"v_fma_f32 v{t1}, 0, v{t1}, v{OO+8}")
    a(f"v_cmp_ngt_f32 vcc, {f32bits(2.0**64):#x}, v{t1}")
    a("s_nop 0")
    a(f"s_cbranch_vccnz {fb}")
    a(f"{fin}:")
    assert t0 % 2 == 0
    for i in range(0, 8, 2):
        a(f"v_pk_mul_f32 {vr(OO+i,2)}, {vr(OO+i,2)}, {vr(t0,2)} op_sel_hi:[1,0]")
    for i in range(4):
        a(f"v_cvt_pk_bf16_f32 v{P+i}, v{OO+2*i}, v{OO+2*i+1}")
    a(f"buffer_store_dwordx4 {vr(P,4)}, v{V_L16}, s[4:7], s22 offen{SC}")
    a("s_barrier")
    stamp(a, SB + 5)
    a(f"s_branch {endl}")
    a(f"{back}:")
    a("s_cmp_lg_u32 s31, 0")
    a(f"s_cbranch_scc1 {lp}")
    a("s_sub_u32 s39, s39, 1")
    a("s_cmp_eq_u32 s39, 0")
    a("s_cselect_b32 s33, 0, s33")
    a(f"s_branch {exitc}")
    a(f"{hook}:")
    a("s_cmp_eq_u32 s27, 0")
    a(f"s_cbranch_scc0 {hp}")
    a("s_barrier")
    a("s_mov_b32 s34, s33")
    a("s_mov_b32 s33, 0")
    a(f"s_add_u32 s23, s34, s{S_IT}")
    a("s_cmp_lg_u32 s23, 0")
    a(f"s_cbranch_scc1 {back}")
    a.c("residual tile of x for the first output projection")
    a(f"v_and_b32 v{V_TF}, 31, v0")
    a(f"v_lshlrev_b32 v{V_TF}, 10, v{V_TF}")
    a(f"v_lshrrev_b32 v{V_TF+1}, 5, v0")
    a(f"v_lshl_add_u32 v{V_TF}, v{V_TF+1}, 4, v{V_TF}")
    a(f"s_and_b32 s23, s{S_WAVE}, 1")
    a(f"s_add_u32 s23, s23, s{S_TT64}")
    a("s_lshl_b32 s23, s23, 15")
    a(f"s_lshl_b32 s24, s{S_NT64}, 1")
    a(f"s_lshr_b32 s25, s{S_WAVE}, 1")
    a("s_add_u32 s24, s24, s25")
    a("s_lshl_b32 s24, s24, 6")
    a("s_add_u32 s23, s23, s24")
    a(f"buffer_load_dwordx4 {vr(V_RES,4)}, v{V_TF}, s[8:11], s23 offen")
    a(f"buffer_load_dwordx4 {vr(V_RES+4,4)}, v{V_TF}, s[8:11], s23 offen offset:32")
    a(f"s_branch {back}")
    a(f"{hp}:")
    hs = [a.label(f"hs{i}") for i in range(8)]
    for i in (1, 2, 3, 4, 5, 6):
        a(f"s_cmp_eq_u32 s33, {i}")
        a(f"s_cbranch_scc1 {hs[i]}")
    HS = -9
    def goto(step, gap):
        a(f"s_mov_b32 s33, {step}")
        a(f"s_max_u32 s34, s34, {gap}")
        a(f"s_sub_u32 s34, s34, {gap}")
        a(f"s_branch {back}")
    def next_step(i):
        goto(i + 1, env(f"ATT_G{i}", 3))
    a.c("fetch the last rounds of the down weights into free registers")
    a(f"s_mul_i32 s23, s{S_NT64}, {224*1024}")
    a("s_lshl_b32 s62, s26, 12")
    a("s_add_u32 s23, s23, s62")
    a(f"s_add_u32 s23, s23, {WS_WD + (14 - NPRE)*RB:#x}")
    assert VS + (14 - NPRE) * 16 >= V_TF
    for k in range(NPRE):
        for i in range(4):
            a(f"buffer_load_dwordx4 {vr(VS + (14-NPRE+k)*16 + 4*i, 4)}, v{V_L16}, s[4:7], s23 offen offset:{i*1024}{SC}")
        a(f"s_add_u32 s23, s23, {RB}")
    a("s_mov_b32 s33, 0")
    a("s_mov_b32 s34, 0")
    a(f"s_branch {back}")
    a(f"{hs[1]}:")
    if 1 - HS in (0, 1):
        stamp(a, 2 * (1 - HS))
    nost = a.label("nostore")
    a("s_cmp_ge_u32 s2, 232")
    a(f"s_cbranch_scc1 {nost}")
    a("s_lshl_b32 s62, s26, 12")
    a(f"s_add_u32 s62, s62, {XB + 12288}")
    a(f"v_add_u32 v{vS}, s62, v{V_L16}")
    a(f"v_and_b32 v{vC}, 1, v0")
    a(f"v_bfe_u32 v{vC+1}, v0, 1, 1")
    a(f"v_lshl_add_u32 v{vC}, v{vC}, 1, v{vC+1}")
    a(f"v_lshrrev_b32 v{vR}, 5, v0")
    a(f"v_bfe_u32 v{vC+1}, v0, 2, 2")
    a(f"v_lshl_add_u32 v{vR}, v{vR}, 3, v{vC+1}")
    a(f"v_lshlrev_b32 v{vR}, 7, v{vR}")
    a(f"v_lshl_add_u32 v{vR}, v{vC}, 3, v{vR}")
    a("s_cmp_eq_u32 s91, 0")
    a("s_cselect_b32 s54, 5, 11")
    a("s_cselect_b32 s55, 64, 32")
    a("s_cselect_b32 s78, 2048, 64")
    a(f"v_bfe_u32 v{vC+1}, v0, 4, 1")
    a(f"v_lshlrev_b32 v{vC+1}, s54, v{vC+1}")
    a(f"v_add3_u32 v{vR}, v{vR}, v{vC+1}, s62")
    a(f"v_add_u32 v{vR+1}, s55, v{vR}")
    a(f"v_add_u32 v{vR+2}, s78, v{vR}")
    a(f"v_add_u32 v{vC+4}, s78, v{vR+1}")
    tr_addr = [vR, vR + 1, vR + 2, vC + 4]
    dests = (96, 97, 100, 101)
    a("s_mov_b32 s49, 0x3f803f80")
    a("s_waitcnt vmcnt(0)")
    for half in range(2):
        dst = G_ if half == 0 else F
        for g8 in range(2):
            for h in range(2):
                a(f"ds_write_b128 v{vS}, {vr(F+16*half+8*g8+4*h,4)} offset:{h*2048 + g8*1024}")
        for t in range(4):
            for jj in range(2):
                a(f"ds_read_b64_tr_b16 {vr(dst+4*t+2*jj,2)}, v{tr_addr[t]} offset:{jj*512}")
        a("s_waitcnt lgkmcnt(0)")
        for t in range(4):
            a(f"s_mul_i32 s62, s{76+half}, s{72+t}")
            a(f"s_add_u32 s62, s62, s{dests[t]}")
            if not env("X_NOST", 0):
                a(f"buffer_store_dwordx4 {vr(dst+4*t,4)}, v{V_L16}, s[4:7], s62 offen{'' if env('X_PLAIN', 0) else SC}")
    a("s_cmp_eq_u32 s63, 0")
    a(f"s_cbranch_scc1 {nost}")
    if env("X_NOCS", 0):
        a(f"s_branch {nost}")
    for t in range(4):
        a(f"v_mov_b32 v{vC+t}, 0")
    for k in range(4):
        for t in range(4):
            a(f"v_dot2c_f32_bf16 v{vC+t}, s49, v{G_+4*t+k}")
        for t in range(4):
            a(f"v_dot2c_f32_bf16 v{vC+t}, s49, v{F+4*t+k}")
    a("s_lshl_b32 s62, s26, 9")
    a(f"v_add_u32 v{vS}, s62, v{V_L4}")
    a(f"v_mov_b32 v{vR}, 1")
    a(f"v_mov_b32 v{vR+1}, {CNT}")
    a(f"v_permlane32_swap_b32 v{vC}, v{vC+1}")
    a(f"v_permlane32_swap_b32 v{vC+2}, v{vC+3}")
    a("s_nop 0")
    a(f"v_add_f32 v{vC}, v{vC}, v{vC+1}")
    a(f"v_add_f32 v{vC+2}, v{vC+2}, v{vC+3}")
    a(f"ds_write_b32 v{vS}, v{vC} offset:{CSA}")
    a(f"ds_write_b32 v{vS}, v{vC+2} offset:{CSA + 256}")
    a("s_mov_b64 exec, 1")
    a(f"ds_add_rtn_u32 v{vR+2}, v{vR+1}, v{vR}")
    a("s_mov_b64 exec, -1")
    a("s_waitcnt lgkmcnt(0)")
    a(f"v_readfirstlane_b32 s62, v{vR+2}")
    a("s_nop 0")
    a("s_cmp_lg_u32 s62, 3")
    a(f"s_cbranch_scc1 {nost}")
    a.c("last of the four waves: write the column-sum pieces")
    for w in range(4):
        for p in range(2):
            a(f"ds_read_b32 v{F+16+2*w+p}, v{V_L4} offset:{CSA + w*512 + p*256}")
    for t in range(4):
        a(f"s_lshl_b32 s62, s{72+t}, 5")
        a(f"s_add_u32 s{dests[t]}, s{dests[t]}, s62")
    a("s_lshr_b32 s92, s79, 1")
    a("s_lshl_b32 s92, s92, 9")
    a("s_and_b32 s62, s79, 1")
    a("s_lshl_b32 s62, s62, 3")
    a("s_add_u32 s92, s92, s62")
    a("v_cmp_gt_u32 vcc, 32, v0")
    a(f"v_and_b32 v{vS}, 0x1ff, v{V_L16}")
    for p in range(2):
        a(f"v_mov_b32 v{vC}, s{dests[2*p]}")
        a(f"v_mov_b32 v{vC+1}, s{dests[2*p+1]}")
        a(f"v_cndmask_b32 v{vC}, v{vC+1}, v{vC}, vcc")
        a(f"v_add_u32 v{vR+p}, v{vC}, v{vS}")
    a("s_waitcnt lgkmcnt(0)")
    for p in range(2):
        c, o = F + 16 + p, F + 24 + 2 * p
        for w in range(1, 4):
            a(f"v_add_f32 v{c}, v{c}, v{c+2*w}")
        a(f"v_cvt_pk_bf16_f32 v{o}, v{c}, v{c}")
        a(f"v_lshlrev_b32 v{o}, 16, v{o}")
        a(f"v_sub_f32 v{o}, v{c}, v{o}")
        a(f"v_cvt_pk_bf16_f32 v{o}, v{c}, v{o}")
        a(f"v_mov_b32 v{o+1}, v{o}")
        a(f"buffer_store_dwordx2 {vr(o,2)}, v{vR+p}, s[4:7], s92 offen{SC}")
    a(f"{nost}:")
    next_step(1)
    a(f"{hs[2]}:")
    if 2 - HS in (0, 1):
        stamp(a, 2 * (2 - HS))
    nsig = a.label("nosig")
    a(f"v_mov_b32 v{vR}, 1")
    a(f"v_mov_b32 v{vR+1}, {CNT + 4}")
    a("s_waitcnt vmcnt(0)")
    a("s_mov_b64 exec, 1")
    a(f"ds_add_rtn_u32 v{vR+2}, v{vR+1}, v{vR}")
    a("s_mov_b64 exec, -1")
    a("s_and_b32 s23, s2, 15")
    a("s_lshl_b32 s23, s23, 8")
    a(f"s_add_u32 s23, s23, {FL_W:#x}")
    a("s_mov_b32 s38, 1")
    a("s_waitcnt lgkmcnt(0)")
    a(f"v_readfirstlane_b32 s62, v{vR+2}")
    a("s_nop 0")
    a("s_cmp_lg_u32 s62, 3")
    a(f"s_cbranch_scc1 {nsig}")
    a("s_atomic_add s38, s[14:15], s23")
    a(f"{nsig}:")
    if env("WARM", 1):
        a.c("pull the rest of the code into L2 and touch every workspace page once")
        here = a.label("here")
        a("s_getpc_b64 s[98:99]")
        a(f"{here}:")
        a("s_lshl_b32 s62, s26, 13")
        a(f"v_add_u32 v{vC}, s62, v{V_L128}")
        a(f"v_min_u32 v{vC}, {code_end} - {here}, v{vC}")
        a(f"v_lshlrev_b32 v{vC+1}, 20, v0")
        a(f"global_load_dword v{V_PF}, v{vC}, s[98:99]")
        a(f"buffer_load_dword v{V_PF}, v{vC+1}, s[4:7], 0 offen sc1")
    next_step(2)
    a(f"{hs[3]}:")
    a.c("the re-tiled weights are complete once all 16 arrival counters are")
    a(f"s_cmp_lg_u32 s{S_WAVE}, 4")
    a(f"s_cbranch_scc1 {hs[5]}")
    ask = a.label("ask")
    a(f"{ask}:")
    a(f"v_and_b32 v{vS}, 15, v0")
    a(f"v_lshlrev_b32 v{vS}, 8, v{vS}")
    a(f"s_mov_b32 s23, {WS_FLAG + FL_W:#x}")
    a(f"buffer_load_dword v{vR}, v{vS}, s[4:7], s23 offen sc1")
    goto(4, 1)
    a(f"{hs[4]}:")
    a("s_waitcnt vmcnt(0)")
    a(f"v_cmp_gt_u32 vcc, 16, v{vR}")
    a(f"v_mov_b32 v{vS}, {CNT + 8}")
    a(f"s_cbranch_vccnz {ask}")
    a(f"ds_write_b32 v{vS}, v{vS}")
    a(f"s_branch {hs[6]}")
    a(f"{hs[5]}:")
    a(f"v_mov_b32 v{vS}, {CNT + 8}")
    a(f"ds_read_b32 v{vR}, v{vS}")
    a("s_waitcnt lgkmcnt(0)")
    a(f"v_cmp_eq_u32 vcc, 0, v{vR}")
    a("s_nop 0")
    a(f"s_cbranch_vccz {hs[6]}")
    goto(5, 1)
    a(f"{hs[6]}:")
    a("s_add_u32 s23, s50, 8192")
    a(f"buffer_load_dword v{V_PF}, v{V_L128}, s[4:7], s51 offen{SC}")
    a(f"buffer_load_dword v{V_PF}, v{V_L128}, s[4:7], s50 offen{SC}")
    a(f"buffer_load_dword v{V_PF}, v{V_L128}, s[4:7], s23 offen{SC}")
    goto(7, env("ATT_G6", 2))
    a(f"{fb}:")
    a(f"v_add_u32 v{vK}, {KB}, v{V_L16}")
    a(f"v_mov_b32 v{t0}, 0xff800000")
    a("s_mov_b32 s31, 64")
    lp2 = a.label("maxl")
    a(f"{lp2}:")
    a(f"ds_read_b128 {vr(KF[0],4)}, v{vK}")
    a(f"v_add_u32 v{vK}, 1024, v{vK}")
    a("s_waitcnt lgkmcnt(0)")
    a(f"{MFMA} {vr(S[0],16)}, {vr(KF[0],4)}, {vr(Q[1],4)}, 0")
    a("s_nop 15")
    for i in range(0, 16, 2):
        a(f"v_max3_f32 v{t0}, v{t0}, v{S[0]+i}, v{S[0]+i+1}")
    a("s_sub_u32 s31, s31, 1")
    a("s_cmp_lg_u32 s31, 0")
    a(f"s_cbranch_scc1 {lp2}")
    a(f"v_mov_b32 v{t1}, v{t0}")
    a("s_nop 1")
    a(f"v_permlane32_swap_b32 v{t0}, v{t1}")
    a("s_nop 1")
    a(f"v_max_f32 v{t0}, v{t0}, v{t1}")
    for i in range(16):
        a(f"v_sub_f32 v{NM[0]+i}, 0, v{t0}")
        a(f"v_mov_b32 v{OO+i}, 0")
    a(f"v_add_u32 v{vK}, {KB}, v{V_L16}")
    a(f"v_mov_b32 v{vV}, v{vV0}")
    a(f"v_lshrrev_b32 v{vInc}, {U.bit_length()-1}, v{vInc}")
    a("s_mov_b32 s31, 64")
    lp3 = a.label("pass2")
    a(f"{lp3}:")
    a(f"ds_read_b128 {vr(KF[0],4)}, v{vK}")
    a(f"ds_read_b128 {vr(VF[0],4)}, v{vV}")
    a(f"ds_read_b128 {vr(VF[0]+4,4)}, v{vV} offset:512")
    a(f"v_add_u32 v{vK}, 1024, v{vK}")
    a(f"v_add_u32 v{vV}, v{vInc}, v{vV}")
    a("s_waitcnt lgkmcnt(0)")
    a(f"{MFMA} {vr(S[0],16)}, {vr(KF[0],4)}, {vr(Q[1],4)}, {vr(NM[0],16)}")
    a("s_nop 15")
    for i in range(16):
        a(f"v_exp_f32 v{S[0]+i}, v{S[0]+i}")
    a("s_nop 0")
    for j in range(8):
        a(f"v_cvt_pk_bf16_f32 v{P+j}, v{S[0]+2*j}, v{S[0]+2*j+1}")
    a("s_nop 1")
    a(f"{MFMA} {vr(OO,16)}, {vr(VF[0],4)}, {vr(P,4)}, {vr(OO,16)}")
    a(f"{MFMA} {vr(OO,16)}, {vr(VF[0]+4,4)}, {vr(P+4,4)}, {vr(OO,16)}")
    a("s_sub_u32 s31, s31, 1")
    a("s_cmp_lg_u32 s31, 0")
    a("s_nop 7")
    a(f"s_cbranch_scc1 {lp3}")
    a("s_nop 15")
    a(f"v_rcp_f32 v{t0}, v{OO+8}")
    a("s_nop 0")
    a(f"s_branch {fin}")
    a(f"{endl}:")
    return R.n


def gen_main(a):
    name = NAME + "_kernel"
    kernel_header(a, name)
    done = a.label("done")
    a("s_cmp_ge_u32 s2, 256")
    a(f"s_cbranch_scc1 {done}")
    a(f"s_load_dwordx4 s[64:67], s[0:1], {KA_X}")
    a.c("pull the first 8 KB of code into L2 (one 128-byte line per 8 lanes of the workgroup)")
    a("s_getpc_b64 s[98:99]")
    a(f"v_lshlrev_b32 v{V_FREE}, 4, v0")
    a(f"global_load_dword v{V_PF}, v{V_FREE}, s[98:99]")
    a(f"s_and_b32 s{S_XCD}, s2, 7")
    a("s_bfe_u32 s19, s2, 0x20003")
    a(f"s_lshl2_add_u32 s19, s{S_XCD}, s19")
    a("v_lshrrev_b32 v1, 6, v0")
    a("v_and_b32 v0, 63, v0")
    a(f"v_lshlrev_b32 v{V_L16}, 4, v0")
    a(f"v_lshl_add_u32 v{V_FREE}, s19, 3, v1")
    a(f"v_lshl_add_u32 v{V_FREE}, v{V_FREE}, 13, v{V_L16}")
    a("s_waitcnt lgkmcnt(0)")
    a("s_add_u32 s20, s64, 4096")
    a("s_addc_u32 s21, s65, 0")
    for r in range(8):
        a(f"global_load_dwordx4 {vr(V_FREE+4+4*r,4)}, v{V_FREE}, s[20:21] offset:{r*1024-4096}")
    a(f"s_load_dwordx2 s[68:69], s[0:1], {KA_WO}")
    a(f"s_load_dwordx4 s[72:75], s[0:1], {KA_WG}")
    a(f"s_load_dwordx2 s[76:77], s[0:1], {KA_WD}")
    a(f"s_load_dwordx2 s[70:71], s[0:1], {KA_OUT}")
    a(f"s_load_dwordx2 s[94:95], s[0:1], {KA_DBG}")
    a(f"s_load_dwordx2 s[12:13], s[0:1], {KA_WS}")
    a(f"v_readfirstlane_b32 s{S_WAVE}, v1")
    a(f"v_lshlrev_b32 v{V_L128}, 7, v0")
    a(f"s_lshr_b32 s{S_IDX}, s2, 3")
    srd(a, 20, 66, 67, 512 * 1536 * 2)
    if env("TOUCH", 1):
        a.c("cooperative first touch of wqkv: 6 KB per wave")
        a(f"s_lshl3_add_u32 s27, s{S_IDX}, s{S_WAVE}")
        a("s_mul_i32 s27, s27, 6144")
        a("s_mov_b32 exec_hi, 0xffff")
        a(f"buffer_load_dword v{V_PF}, v{V_L128}, s[20:23], s27 offen")
        a("s_mov_b64 exec, -1")
    a(f"s_and_b32 s{S_TT128}, s{S_IDX}, 3")
    a(f"s_lshr_b32 s19, s{S_XCD}, 1")
    a("s_lshl_b32 s19, s19, 2")
    a(f"s_add_u32 s{S_TT128}, s{S_TT128}, s19")
    a(f"s_lshl_b32 s{S_TT128}, s{S_TT128}, 2")
    a(f"s_lshr_b32 s{S_NT128}, s{S_IDX}, 2")
    a(f"s_and_b32 s19, s{S_XCD}, 1")
    a("s_lshl_b32 s19, s19, 3")
    a(f"s_add_u32 s{S_NT128}, s{S_NT128}, s19")
    a(f"s_and_b32 s{S_TT64}, s{S_IDX}, 3")
    a(f"s_lshl_b32 s19, s{S_XCD}, 2")
    a(f"s_add_u32 s{S_TT64}, s{S_TT64}, s19")
    a(f"s_lshl_b32 s{S_TT64}, s{S_TT64}, 1")
    a(f"s_lshr_b32 s{S_NT64}, s{S_IDX}, 2")
    a(f"s_mov_b32 s{S_IT}, 0")
    a(f"s_mov_b32 s{S_BASE}, {WS_IT0:#x}")
    a(f"s_mov_b32 s{S_FL}, 0")
    a(f"s_mov_b32 s{S_SIG}, 0")
    a(f"v_and_b32 v{V_ST}, 31, v0")
    a(f"v_lshlrev_b32 v{V_ST}, 3, v{V_ST}")
    a(f"v_lshrrev_b32 v1, 5, v0")
    a(f"v_lshl_add_u32 v{V_ST}, v1, 2, v{V_ST}")
    a(f"v_lshlrev_b32 v{V_L4}, 2, v0")
    if STAMP:
        a(f"v_mov_b32 v{V_STAMP}, 0")
        a(f"v_mov_b32 v{V_STAMP+1}, 0")
    stamp(a, 31)
    att, fin = a.label("att"), a.label("fin")
    nv = [first_phase(a, att, done)]
    a(f"{att}:")
    nv.append(attn_phase(a, 5, done))
    S = Stream(a)
    if GMX == 4:
        a(f"s_mov_b32 s{S_TTG}, s{S_TT128}")
        a(f"s_mov_b32 s{S_NTG}, s{S_NT128}")
    else:
        a(f"s_and_b32 s{S_TTG}, s{S_IDX}, 1")
        a(f"s_lshl_b32 s19, s{S_XCD}, 1")
        a(f"s_add_u32 s{S_TTG}, s{S_TTG}, s19")
        a(f"s_lshl_b32 s{S_TTG}, s{S_TTG}, 2")
        a(f"s_lshr_b32 s{S_NTG}, s{S_IDX}, 1")
    nv.append(gemm_phase(a, Cfg(name="oproj", kind="res", LB=5 * RB, XB=0, stream=S, PRE1=4, PRE2=0, PRE3=1, NW=2, NT=2, KST=32, NR=4, RA=16, N1=2, N2=2, N3=9, N4=9, BS=4, I0=8, PS=2, STS=0,
                                swap=[0, 0], ABUF=B_O, WBASE=WS_WO, WNT=64 * 1024, OUT=B_X1, STOUT=B_ST1,
                                FIN=FL_A, lsig=True, NEED=32, FOUT=FL_O, final=False, sb=12,
                                staged=[], stage_next=None, order=None)))
    nv.append(mlp_phase(a, Cfg(name="down", stream=S, OUT=B_XIN + IT_STRIDE, STOUT=B_STIN + IT_STRIDE, final=True, sb=22)))
    a(f"s_cmp_eq_u32 s{S_IT}, 1")
    a(f"s_cbranch_scc1 {fin}")
    a(f"s_mov_b32 s{S_IT}, 1")
    a(f"s_add_u32 s{S_BASE}, s{S_BASE}, {IT_STRIDE:#x}")
    a(f"s_add_u32 s{S_FL}, s{S_FL}, {FL_IT:#x}")
    nv.append(gemm_phase(a, Cfg(name="qkv", kind="qkv", LB=0, XB=1, stream=None, NW=3, NT=3, KST=32, NR=7, RA=24, N1=2, N2=5, N3=9, N4=9, BS=8, I0=12, PS=1, STS=10,
                                swap=[0, 0, 1], ABUF=B_XIN, WBASE=WS_WQKV, WNT=99 * 1024, STIN=B_STIN,
                                FIN=FL_D - FL_IT + (1 << 32), lsig=False, NEED=16, FOUT=FL_Q, sb=0,
                                staged=[], stage_next=None, order=None)))
    a(f"s_branch {att}")
    a(f"{fin}:")
    if STAMP:
        a("s_waitcnt vmcnt(0)")
        a(f"s_mov_b32 s{S_IT}, 1")
        stamp(a, 31)
        stamp_flush(a)
        if env("DBGOUT", 0):
            nd = a.label("nodbg")
            a("s_lshl_b32 s54, s2, 3")
            a(f"s_add_u32 s54, s54, s{S_WAVE}")
            a(f"s_cmp_lg_u32 s54, {env('DBGOUT', 0)}")
            a(f"s_cbranch_scc1 {nd}")
            idx = [31, 27, 28, 29, 30, 8, 9, 13, 18, 23, 33, 40, 41, 50, 55, 63]
            a(f"v_readlane_b32 s55, v{V_STAMP}, 31")
            for i, k in enumerate(idx):
                a(f"v_readlane_b32 s54, v{V_STAMP}, {k}")
                a("s_nop 3")
                a("s_sub_u32 s54, s54, s55")
                a(f"v_writelane_b32 v{V_FREE}, s54, {i}")
            a("s_mov_b64 exec, 0xfffe")
            a(f"global_store_dword v{V_L4}, v{V_FREE}, s[94:95]")
            a(f"{nd}:")
    a(f"{done}:")
    a("s_endpgm")
    print("phase vgprs", nv, file=sys.stderr)
    nv.append(V_TF + 58)
    assert max(nv) <= 256
    return (name, max(nv), 256, 512, LDS_MAX)


HEADER = open("cdna_kernels/" + NAME + ".s.ref").read().split("; Override launch")[0]

def main(out):
    a = Asm()
    k, v, nwg, blk, lds = gen_main(a)
    txt = HEADER
    if env("ASLIST", 0):
        txt += f"; @launch kernel={k} grid=({nwg},1,1) block=({blk},1,1) lds={lds}\n"
    else:
        txt += f"; @launch grid=({nwg},1,1) block=({blk},1,1) lds={lds}\n"
    txt += '.amdgcn_target "amdgcn-amd-amdhsa--gfx950"\n.text\n'
    txt += a.text()
    txt += '.section .rodata,"a"\n'
    txt += kernel_desc(k, v, 102)
    print(f"{k}: vgpr={v} lds={lds}", file=sys.stderr)
    open(out, "w").write(txt)

if __name__ == "__main__":
    main(sys.argv[1] if len(sys.argv) > 1 else "v2.s")
```

```python
import sys, struct, math, os
from asmlib import *

NAME = "interleave_layers__mha_block__glu_gated_bilinear__prompt"
def env(k, d):
    return int(os.environ.get(k, d))

WS_WQKV = 0x000000
WS_WO   = 0x200000
WS_WGU  = 0x300000
WS_WD   = 0x700000
WS_FLAG = 0x8C0000
FL_IT = 0xC000
FL_Q, FL_W, FL_G, FL_T = 0x0, 0x1000, 0x4000, 0x8000
FL_A, FL_O, FL_D = FL_T, FL_T + 4, FL_T + 8
WS_IT0 = 0xA00000
IT_STRIDE = 0x1400000
B_Q, B_K, B_V, B_O, B_X1, B_XIN, B_H, B_ST1, B_STIN = (
    0x0, 0x200000, 0x400000, 0x600000, 0x800000, 0xA00000, 0xC00000, 0x1300000, 0x1340000)
WS_END = WS_IT0 + 2 * IT_STRIDE
WS_STAMP = WS_END
LDS_MAX = 160 * 1024

KA_X, KA_WQKV, KA_WO, KA_BX, KA_WG, KA_WU, KA_WD, KA_OUT, KA_DBG, KA_WS = [8 * i for i in range(10)]

def f32bits(x):
    return struct.unpack("<I", struct.pack("<f", x))[0]

QSCALE = 0.25 * math.log2(math.e)
MFMA = "v_mfma_f32_32x32x16_bf16"
SMF = "v_smfmac_f32_32x32x32_bf16"
STAMP = os.environ.get("STAMP", "") != ""
SC = " sc1"
SPIN_MAX = 1 << 18
PASSES = [int(x) for x in os.environ.get("PASSES", "4,2,1").split(",")]
PFIRST = [sum(PASSES[:p]) for p in range(len(PASSES))]
assert sum(PASSES) == 7

def pass_of(a, si, sf, sw):
    a(f"s_mov_b32 s{sf}, 0")
    a(f"s_mov_b32 s{sw}, {PASSES[0]}")
    for p in range(1, len(PASSES)):
        a(f"s_cmp_ge_u32 s{si}, {PFIRST[p]}")
        a(f"s_cselect_b32 s{sf}, {PFIRST[p]}, s{sf}")
        a(f"s_cselect_b32 s{sw}, {PASSES[p]}, s{sw}")
GMX = env('GMX', 4)
PT = env('PT', 0)

def srd(a, d, lo, hi, nbytes):
    a(f"s_mov_b32 s{d}, s{lo}")
    a(f"s_and_b32 s{d+1}, s{hi}, 0xffff")
    a(f"s_mov_b32 s{d+2}, {nbytes:#x}")
    a(f"s_mov_b32 s{d+3}, 0x20000")

S_WAVE, S_XCD, S_IDX, S_IT, S_BASE, S_FL = 16, 17, 18, 40, 41, 42
S_TT64, S_NT64, S_TT128, S_NT128 = 43, 44, 45, 46
S_TTG, S_NTG, S_TCH = 68, 69, 47
S_ARR, S_SIG = 47, 48
LDS_CNT = LDS_MAX - 16
V_L16, V_ST, V_L4 = 2, 3, 1
V_RES = 4
V_STAMP = 12
V_PF, V_L128 = 14, 15
V_FREE = 16

def stamp(a, i):
    if STAMP:
        a("s_memrealtime s[56:57]")
        a("s_memtime s[58:59]")
        a(f"s_lshl_b32 s60, s{S_IT}, 5")
        a(f"s_add_u32 s60, s60, {i}")
        a("s_waitcnt lgkmcnt(0)")
        a("s_mov_b32 s61, m0")
        a("s_mov_b32 m0, s60")
        a("s_nop 0")
        a(f"v_writelane_b32 v{V_STAMP}, s56, m0")
        a(f"v_writelane_b32 v{V_STAMP+1}, s58, m0")
        a("s_mov_b32 m0, s61")

def stamp_flush(a, which=0):
    if STAMP:
        a("s_lshl_b32 s60, s2, 3")
        a(f"s_add_u32 s60, s60, s{S_WAVE}")
        a("s_lshl_b32 s60, s60, 9")
        a(f"s_add_u32 s60, s60, {WS_STAMP + which*0x100000:#x}")
        a(f"s_mov_b32 s6, {WS_STAMP + 0x200000:#x}")
        a(f"buffer_store_dword v{V_STAMP}, v{V_L4}, s[4:7], s60 offen")
        a(f"buffer_store_dword v{V_STAMP+1}, v{V_L4}, s[4:7], s60 offen offset:256")

def handoff(a, soff, need):
    a("s_mov_b32 s38, 1")
    a(f"s_atomic_add s38, s[14:15], s{S_SIG}")
    if env("PD", 0):
        a("s_waitcnt lgkmcnt(0)")
    poll(a, soff, need)

def poll(a, soff, need):
    lp, ok = a.label("poll"), a.label("pok")
    a(f"s_mov_b32 s39, {SPIN_MAX}")
    a(f"{lp}:")
    a("s_mov_b32 s49, 0")
    a(f"s_atomic_add s49, s[14:15], s{soff} glc")
    a("s_sub_u32 s39, s39, 1")
    a("s_waitcnt lgkmcnt(0)")
    a(f"s_cmp_ge_u32 s49, {need}")
    a(f"s_cbranch_scc1 {ok}")
    if env("POLL_SLEEP", 1):
        a(f"s_sleep {env('POLL_SLEEP', 1)}")
    a("s_cmp_lg_u32 s39, 0")
    a(f"s_cbranch_scc1 {lp}")
    a(f"{ok}:")


V_TF = 176

def first_phase(a, end_label, code_end):
    XB_ = 528
    XT = 64 * XB_
    W0 = 2 * XT
    NSW, WCH, NC = 7, 12288, 16
    assert W0 + NSW * WCH <= LDS_MAX
    FS = 27
    NPS = env("K1_NPS", 2)
    R = Regs(V_FREE)
    vD, vT0, vT1, vXW = R.alloc(), R.alloc(), R.alloc(), R.alloc()
    X = R.alloc(32)
    ST = R.alloc(16)
    U = R.alloc(16)
    vD2, vZ = R.alloc(), R.alloc()
    assert X == V_FREE + 4
    a(f"v_lshrrev_b32 v{vT0}, 3, v0")
    a(f"v_bfe_u32 v{vT1}, v0, 4, 1")
    a(f"v_lshlrev_b32 v{vT1}, 2, v{vT1}")
    a(f"v_and_b32 v{vD2}, 7, v0")
    a(f"v_xor_b32 v{vD2}, v{vD2}, v{vT1}")
    a(f"v_lshlrev_b32 v{vD2}, 4, v{vD2}")
    a(f"v_mul_u32_u24 v{vD}, 3072, v{vT0}")
    a(f"v_add_u32 v{vD}, v{vD}, v{vD2}")
    a(f"s_and_b32 s50, s{S_WAVE}, 3")
    a("s_waitcnt lgkmcnt(0)")
    srd(a, 8, 64, 65, 2048 * 512 * 2)
    srd(a, 4, 12, 13, WS_END)
    a.c("wave 7 of the first workgroups resets 64 hand-off counters each")
    NZ = 2 * FL_IT // 16384
    nz = a.label("nozero")
    a(f"s_sub_u32 s47, 7, s{S_WAVE}")
    a("s_lshl_b32 s47, s47, 8")
    a("s_add_u32 s47, s47, s2")
    a(f"s_cmp_ge_u32 s47, {NZ}")
    a(f"s_cbranch_scc1 {nz}")
    a(f"v_lshlrev_b32 v{ST}, 8, v0")
    for i in range(4):
        a(f"v_mov_b32 v{ST+4+i}, 0")
    a("s_lshl_b32 s54, s2, 14")
    a(f"s_add_u32 s54, s54, {WS_FLAG:#x}")
    a(f"buffer_store_dwordx4 {vr(ST+4,4)}, v{ST}, s[4:7], s54 offen sc1")
    a(f"{nz}:")
    TOUCH = env("TOUCH", 1)
    a(f"s_add_u32 s14, s12, {WS_FLAG:#x}")
    a("s_addc_u32 s15, s13, 0")
    a("s_mov_b32 s49, 0x3f803f80")
    a(f"s_lshr_b32 s55, s{S_WAVE}, 2")
    a(f"s_mul_i32 s39, s55, {XT}")
    a("s_lshl_b32 s54, s50, 7")
    a("s_add_u32 s39, s39, s54")
    a(f"v_mul_u32_u24 v{vXW}, {XB_}, v0")
    a(f"v_add_u32 v{vXW}, s39, v{vXW}")
    a(f"s_mul_i32 s62, s50, {8*3072}")
    a(f"s_lshl_b32 s54, s{S_NT64}, 7")
    a("s_add_u32 s62, s62, s54")
    a(f"s_mul_i32 s54, s55, {NPS*32*3072}")
    a("s_add_u32 s62, s62, s54")
    a("s_lshl_b32 s63, s50, 10")
    a(f"s_add_u32 s63, s63, {W0}")
    a(f"s_mul_i32 s54, s55, {NPS*WCH}")
    a("s_add_u32 s48, s63, s54")
    def w_instr(slot, seg, base=63):
        t = f"s_add_u32 s54, s{base}, {slot*WCH + seg*3072}\ns_mov_b32 m0, s54\ns_nop 0\n"
        t += f"buffer_load_dwordx4 v{vD}, s[20:23], s62 offen offset:{seg*1024} lds"
        if seg == 2:
            t += f"\ns_add_u32 s62, s62, {32*3072}"
        return t
    dma = [w_instr(c, sg, 48) for c in range(NPS) for sg in range(3)]
    ops = []
    for r in range(8):
        ops.append(f"v_mov_b32 v{ST+r}, 0")
        ops.append(f"v_mov_b32 v{ST+8+r}, 0")
    pre = len(ops)
    for r in range(8):
        ops.append(("wait", r))
        for i in range(4):
            ops.append(f"v_dot2c_f32_bf16 v{ST+r}, s49, v{X+4*r+i}")
            ops.append(f"v_dot2c_f32_bf16 v{ST+8+r}, v{X+4*r+i}, v{X+4*r+i}")
    ops.append("s_nop 2")
    for b in (ST, ST + 8):
        for r in range(4):
            ops.append(f"v_permlane32_swap_b32 v{b+r}, v{b+r+4}")
    for b in (ST, ST + 8):
        for r in range(4):
            ops.append(f"v_add_f32 v{b+r}, v{b+r}, v{b+r+4}")
    ops.append("s_nop 1")
    for b in (ST, ST + 8):
        for r in range(2):
            ops.append(f"v_permlane16_swap_b32 v{b+r}, v{b+r+2}")
    for b in (ST, ST + 8):
        for r in range(2):
            ops.append(f"v_add_f32 v{b+r}, v{b+r}, v{b+r+2}")
    for d in ("row_ror:8", "row_ror:4", "quad_perm:[2,3,0,1]", "quad_perm:[1,0,3,2]"):
        for v in (ST, ST + 1, ST + 8, ST + 9):
            ops.append(f"v_add_f32_dpp v{v}, v{v}, v{v} {d} row_mask:0xf bank_mask:0xf")
    for r in range(2):
        ops.append(f"v_mul_f32 v{ST+r}, {f32bits(-1.0/512):#x}, v{ST+r}")
        ops.append(f"v_mul_f32 v{ST+8+r}, {f32bits(1.0/512):#x}, v{ST+8+r}")
    for r in range(2):
        ops.append(f"v_fma_f32 v{ST+8+r}, -v{ST+r}, v{ST+r}, v{ST+8+r}")
    for r in range(2):
        ops.append(f"v_max_f32 v{ST+8+r}, 0, v{ST+8+r}")
    for r in range(2):
        ops.append(f"v_add_f32 v{ST+8+r}, {f32bits(1e-5):#x}, v{ST+8+r}")
    for r in range(2):
        ops.append(f"v_rsq_f32 v{ST+8+r}, v{ST+8+r}")
    ops.append("s_nop 0")
    for r in range(2):
        ops.append(f"v_mul_f32 v{ST+r}, v{ST+r}, v{ST+8+r}")
    ops.append("s_nop 0")
    for r in range(8):
        ops.append(f"v_readlane_b32 s{78+2*r}, v{ST+8+(r&1)}, {16*(r>>1)}")
        ops.append(f"v_readlane_b32 s{79+2*r}, v{ST+(r&1)}, {16*(r>>1)}")
    for r in range(8):
        u = U + 8 * (r & 1)
        for i in range(4):
            ops.append(f"v_lshlrev_b32 v{u+2*i}, 16, v{X+4*r+i}")
            ops.append(f"v_and_b32 v{u+2*i+1}, 0xffff0000, v{X+4*r+i}")
        for i in range(4):
            ops.append(f"v_pk_fma_f32 {vr(u+2*i,2)}, {vr(u+2*i,2)}, s[{78+2*r}:{79+2*r}], s[{78+2*r}:{79+2*r}] op_sel:[0,0,1] op_sel_hi:[1,0,1]")
        for i in range(4):
            ops.append(f"v_cvt_pk_bf16_f32 v{X+4*r+i}, v{u+2*i}, v{u+2*i+1}")
        ops.append(f"ds_write_b128 v{vXW}, {vr(X+4*r,4)} offset:{r*16}")
    npre = env("K1_PRE", 2)
    issued = TOUCH
    for _ in range(npre):
        a(dma.pop(0)); issued += 1
    step_ = env("K1_STEP", 24)
    k = 0
    for j, op in enumerate(ops):
        if isinstance(op, tuple):
            a(f"s_waitcnt vmcnt({7 - op[1] + issued})")
        else:
            a(op)
        if j >= pre + env("K1_SKIP", 40) and dma:
            k += 1
            if k % step_ == 0:
                a(dma.pop(0)); issued += 1
    assert not dma
    comp = a.label("k1_comp")
    a(f"s_cmp_lt_u32 s{S_WAVE}, 4")
    a(f"s_cbranch_scc1 {comp}")
    DW = env("K1_DW", 5)
    assert 2 * NPS <= DW <= NSW - 2
    for c in range(2 * NPS, DW):
        for sg in range(3):
            a(w_instr(c, sg))
    lp = a.label("k1ld")
    a(f"s_add_u32 s48, s63, {DW*WCH}")
    a(f"s_add_u32 s39, s63, {NSW*WCH}")
    a(f"v_mov_b32 v{vT1}, 0")
    stamp(a, FS)
    a("s_waitcnt lgkmcnt(0)")
    nz = a.label("noflag")
    a(f"s_cmp_ge_u32 s47, {NZ}")
    a(f"s_cbranch_scc1 {nz}")
    a(f"s_waitcnt vmcnt({(DW - NPS)*3})")
    a("s_mov_b32 s38, 1")
    a("s_atomic_add s38, s[94:95], 0x0")
    a(f"{nz}:")
    a(f"s_mov_b32 s47, {NC-DW}")
    a(f"{lp}:")
    a(f"s_waitcnt vmcnt({(DW-1)*3})")
    a("s_barrier")
    for sg in range(3):
        a(w_instr(0, sg, 48))
    a(f"s_add_u32 s48, s48, {WCH}")
    a("s_cmp_eq_u32 s48, s39")
    a("s_cselect_b32 s48, s63, s48")
    a("s_sub_u32 s47, s47, 1")
    a("s_cmp_lg_u32 s47, 0")
    a(f"s_cbranch_scc1 {lp}")
    a(f"global_load_dword v{vZ}, v{vT1}, s[94:95] sc1")
    for c in range(NC - DW, NC):
        a(f"s_waitcnt vmcnt({(NC - 1 - c)*3 + 1})")
        a("s_barrier")
    stamp(a, FS + 2)
    a.c("the counters must have been reset before this workgroup touches them")
    lp, ok = a.label("zpoll"), a.label("zok")
    a(f"s_mov_b32 s39, {SPIN_MAX}")
    a("s_waitcnt vmcnt(0)")
    a(f"{lp}:")
    a(f"v_cmp_gt_u32 vcc, {NZ}, v{vZ}")
    a("s_sub_u32 s39, s39, 1")
    a("s_cmp_eq_u32 s39, 0")
    a(f"s_cbranch_scc1 {ok}")
    a(f"s_cbranch_vccz {ok}")
    a(f"global_load_dword v{vZ}, v{vT1}, s[94:95] sc1")
    a("s_waitcnt vmcnt(0)")
    a(f"s_branch {lp}")
    a(f"{ok}:")
    a("s_barrier")
    a(f"s_branch {end_label}")
    a(f"{comp}:")
    R2 = Regs(V_FREE + 4)
    vA, vW0, vW = R2.alloc(), R2.alloc(), R2.alloc()
    acc = [R2.alloc(16) for _ in range(3)]
    sets = [(R2.alloc(4), [R2.alloc(4) for _ in range(3)]) for _ in range(2)]
    a("s_waitcnt lgkmcnt(0)")
    a(f"s_and_b32 s24, s{S_WAVE}, 1")
    a(f"s_lshr_b32 s25, s{S_WAVE}, 1")
    a(f"s_mul_i32 s26, s24, {XT}")
    a(f"v_lshrrev_b32 v{vT0}, 5, v0")
    a(f"v_mul_u32_u24 v{vA}, {XB_}, v{vT0}")
    a(f"v_and_b32 v{vT1}, 31, v0")
    a(f"v_lshl_add_u32 v{vA}, v{vT1}, 4, v{vA}")
    a(f"v_add_u32 v{vA}, s26, v{vA}")
    a(f"v_bfe_u32 v{vT1}, v0, 2, 2")
    a(f"v_lshl_add_u32 v{vW0}, v{vT0}, 3, v{vT1}")
    a(f"v_lshlrev_b32 v{vW0}, 7, v{vW0}")
    a(f"v_and_b32 v{vT0}, 1, v0")
    a(f"v_bfe_u32 v{vT1}, v0, 1, 1")
    a(f"v_lshl_add_u32 v{vT0}, v{vT0}, 1, v{vT1}")
    a(f"v_lshl_add_u32 v{vW0}, v{vT0}, 3, v{vW0}")
    a(f"v_bfe_u32 v{vT0}, v0, 4, 1")
    a(f"v_lshl_add_u32 v{vW0}, v{vT0}, 5, v{vW0}")
    a(f"v_bfe_u32 v{vT0}, v0, 3, 1")
    a(f"v_xor_b32 v{vT0}, s25, v{vT0}")
    a(f"v_lshl_add_u32 v{vW0}, v{vT0}, 6, v{vW0}")
    a(f"v_add_u32 v{vW0}, {W0}, v{vW0}")
    a(f"v_mov_b32 v{vW}, v{vW0}")
    for t in range(3):
        for i in range(16):
            a(f"v_mov_b32 v{acc[t]+i}, 0")
    a("s_mov_b32 s37, 0")

    def read_list(ks, par):
        xa, wfs = sets[par]
        out = [f"ds_read_b128 {vr(xa,4)}, v{vA} offset:{ks*2*XB_}"]
        for t in range(3):
            for jj in range(2):
                out.append(f"ds_read_b64_tr_b16 {vr(wfs[t]+2*jj,2)}, v{vW} offset:{t*4096 + ks*2048 + jj*512}")
        return out

    def step(par, nxt, boundary, adv=False):
        xa, wfs = sets[par]
        issued = 0
        plan = [3, 5, 7]
        if boundary:
            a("s_barrier")
        for t in range(3):
            while issued < min(plan[t], len(nxt)):
                a(nxt[issued]); issued += 1
            a(f"s_waitcnt lgkmcnt({issued + 7 - (3 + 2*t)})")
            if t == 2:
                a(f"{MFMA} {vr(acc[t],16)}, {vr(xa,4)}, {vr(wfs[t],4)}, {vr(acc[t],16)}")
            else:
                a(f"{MFMA} {vr(acc[t],16)}, {vr(wfs[t],4)}, {vr(xa,4)}, {vr(acc[t],16)}")
        if adv:
            a(f"s_add_u32 s37, s37, {WCH}")
            a(f"s_cmp_eq_u32 s37, {NSW*WCH}")
            a("s_cselect_b32 s37, 0, s37")
            a(f"v_add_u32 v{vW}, s37, v{vW0}")
            a(f"v_add_u32 v{vA}, {4*XB_}, v{vA}")

    a("s_waitcnt vmcnt(0)")
    stamp(a, FS)
    a("s_barrier")
    stamp(a, FS + 1)
    for r in read_list(0, 0):
        a(r)
    lp = a.label("k1loop")
    a(f"s_mov_b32 s35, {NC-1}")
    a(f"{lp}:")
    step(0, read_list(1, 1), False, True)
    step(1, read_list(0, 0), True)
    a("s_sub_u32 s35, s35, 1")
    a("s_cmp_lg_u32 s35, 0")
    a(f"s_cbranch_scc1 {lp}")
    step(0, read_list(1, 1), False)
    step(1, [], False)
    stamp(a, FS + 2)
    ot = sets[0][0]
    a(f"s_lshl_b32 s26, s{S_NT64}, 1")
    a("s_add_u32 s26, s26, s25")
    a("s_lshl_b32 s26, s26, 17")
    a(f"s_add_u32 s27, s{S_TT64}, s24")
    a("s_lshl_b32 s27, s27, 10")
    a("s_add_u32 s26, s26, s27")
    a(f"v_bfe_u32 v{vT0}, v0, 4, 1")
    a(f"v_lshlrev_b32 v{vT0}, 16, v{vT0}")
    a(f"v_lshrrev_b32 v{vT1}, 5, v0")
    a(f"v_lshl_add_u32 v{vT0}, v{vT1}, 8, v{vT0}")
    a(f"v_and_b32 v{vT1}, 15, v0")
    a(f"v_lshl_add_u32 v{vT0}, v{vT1}, 4, v{vT0}")
    a(f"s_mov_b32 s28, {f32bits(QSCALE):#x}")
    a("s_mov_b32 s29, s28")
    K1SC = SC
    a(f"s_lshl_b32 s{S_SIG}, s{S_NT64}, 9")
    a(f"s_add_u32 s{S_SIG}, s{S_SIG}, {FL_Q:#x}")
    for t, base in ((0, B_Q), (1, B_K), (2, B_V)):
        for hh in range(2):
            o = ot + 4 * (2 * t + hh)
            for i in range(4):
                r = acc[t] + 8 * hh + 2 * i
                if t == 0:
                    a(f"v_pk_mul_f32 {vr(r,2)}, {vr(r,2)}, s[28:29]")
                a(f"v_cvt_pk_bf16_f32 v{o+i}, v{r}, v{r+1}")
            if t < 2:
                a(f"s_add_u32 s27, s26, {WS_IT0 + base + hh*65536:#x}")
                a(f"buffer_store_dwordx4 {vr(o,4)}, v{V_L16}, s[4:7], s27 offen{K1SC}")
            else:
                a(f"s_add_u32 s27, s26, {WS_IT0 + base:#x}")
                a(f"buffer_store_dwordx4 {vr(o,4)}, v{vT0}, s[4:7], s27 offen offset:{hh*512}{K1SC}")
    a("s_barrier")
    stamp(a, FS + 3)
    a(f"s_branch {end_label}")
    return max(R.n, R2.n)


class Cfg:
    def __init__(self, **kw):
        self.__dict__.update(kw)
        for k in ("NR", "RA", "N1", "N2", "N3", "N4", "BS", "I0", "PS", "STS", "PRE1", "PRE2", "PRE3", "XB"):
            e = os.environ.get(self.name.upper() + "_" + k)
            if e:
                setattr(self, k, int(e))

def stats_ops(tmp, xc, vRstd):
    f = []
    n = 8
    while n > 1:
        n //= 2
        for p in range(n):
            f.append(f"v_add_f32 v{tmp+2*p}, v{tmp+2*p}, v{tmp+2*(p+n)}")
            f.append(f"v_add_f32 v{tmp+2*p+1}, v{tmp+2*p+1}, v{tmp+2*(p+n)+1}")
    f.append(f"v_mov_b32 v{tmp+2}, v{tmp}")
    f.append(f"v_mov_b32 v{tmp+3}, v{tmp+1}")
    f.append("s_nop 1")
    f.append(f"v_permlane32_swap_b32 v{tmp}, v{tmp+2}")
    f.append(f"v_permlane32_swap_b32 v{tmp+1}, v{tmp+3}")
    f.append(f"v_add_f32 v{tmp}, v{tmp}, v{tmp+2}")
    f.append(f"v_add_f32 v{tmp+1}, v{tmp+1}, v{tmp+3}")
    f.append(f"v_mul_f32 v{tmp}, {f32bits(-1.0/512):#x}, v{tmp}")
    f.append(f"v_mul_f32 v{tmp+1}, {f32bits(1.0/512):#x}, v{tmp+1}")
    f.append(f"v_fma_f32 v{tmp+1}, -v{tmp}, v{tmp}, v{tmp+1}")
    f.append(f"v_max_f32 v{tmp+1}, 0, v{tmp+1}")
    f.append(f"v_add_f32 v{tmp+1}, {f32bits(1e-5):#x}, v{tmp+1}")
    f.append(f"v_rsq_f32 v{vRstd}, v{tmp+1}")
    f.append(f"v_cvt_pk_bf16_f32 v{xc}, v{tmp}, v{tmp}")
    f.append(f"v_lshlrev_b32 v{tmp+2}, 16, v{xc}")
    f.append(f"v_sub_f32 v{tmp+2}, v{tmp}, v{tmp+2}")
    f.append(f"v_cvt_pk_bf16_f32 v{xc+1}, v{tmp+2}, v{tmp+2}")
    f.append(f"v_mov_b32 v{xc+2}, v{xc}")
    f.append(f"v_mov_b32 v{xc+3}, v{xc+1}")
    return f

def res_epilogue(a, g, c0, c1, tmp, end):
    SB = g.sb
    fin = a.label("final")
    a("s_lshl_b32 s26, s31, 15")
    a("s_lshl_b32 s27, s33, 11")
    a("s_add_u32 s26, s26, s27")
    a(f"s_add_u32 s26, s26, s{S_BASE}")
    a(f"s_add_u32 s26, s26, {g.OUT:#x}")
    a("s_lshl_b32 s28, s31, 12")
    a("s_lshl_b32 s29, s33, 8")
    a("s_add_u32 s28, s28, s29")
    for i in range(8):
        if i % 2 == 0:
            a(f"s_waitcnt lgkmcnt({3 - i//2})")
        a(f"v_pk_add_f32 {vr(c0+2*i,2)}, {vr(c0+2*i,2)}, {vr(c1+2*i,2)}")
    for i in range(8):
        a(f"v_cvt_pk_bf16_f32 v{V_RES+i}, v{c0+2*i}, v{c0+2*i+1}")
    if g.final:
        a(f"s_cmp_eq_u32 s{S_IT}, 1")
        a(f"s_cbranch_scc1 {fin}")
    a(f"buffer_store_dwordx4 {vr(V_RES,4)}, v{V_L16}, s[4:7], s26 offen{SC}")
    a(f"buffer_store_dwordx4 {vr(V_RES+4,4)}, v{V_L16}, s[4:7], s26 offen offset:1024{SC}")
    a(f"s_mov_b32 s{S_TCH}, s26")
    q = tmp
    a(f"v_pk_mul_f32 v[{q}:{q+1}], v[{c0}:{c0+1}], v[{c0}:{c0+1}]")
    for i in range(1, 8):
        a(f"v_pk_fma_f32 v[{q}:{q+1}], v[{c0+2*i}:{c0+2*i+1}], v[{c0+2*i}:{c0+2*i+1}], v[{q}:{q+1}]")
        a(f"v_pk_add_f32 v[{c0}:{c0+1}], v[{c0}:{c0+1}], v[{c0+2*i}:{c0+2*i+1}]")
    a(f"v_add_f32 v{q+2}, v{c0}, v{c0+1}")
    a(f"v_add_f32 v{q+3}, v{q}, v{q+1}")
    a(f"s_add_u32 s28, s28, s{S_BASE}")
    a(f"s_add_u32 s28, s28, {g.STOUT:#x}")
    a(f"v_permlane32_swap_b32 v{q+2}, v{q+3}")
    a("s_nop 0")
    a(f"v_add_f32 v{q+2}, v{q+2}, v{q+3}")
    a(f"buffer_store_dword v{q+2}, v{V_ST}, s[4:7], s28 offen{SC}")
    a("s_barrier")
    stamp(a, SB + 3)
    if g.final:
        a(f"s_branch {end}")
        a(f"{fin}:")
        srd(a, 8, 70, 71, 2048 * 512 * 2)
        a(f"v_and_b32 v{tmp}, 31, v0")
        a(f"v_lshlrev_b32 v{tmp}, 10, v{tmp}")
        a(f"v_lshrrev_b32 v{tmp+1}, 5, v0")
        a(f"v_lshl_add_u32 v{tmp}, v{tmp+1}, 4, v{tmp}")
        a("s_lshl_b32 s26, s31, 15")
        a("s_lshl_b32 s27, s33, 6")
        a("s_add_u32 s26, s26, s27")
        a(f"buffer_store_dwordx4 {vr(V_RES,4)}, v{tmp}, s[8:11], s26 offen")
        a(f"buffer_store_dwordx4 {vr(V_RES+4,4)}, v{tmp}, s[8:11], s26 offen offset:32")
        a("s_barrier")
        stamp(a, SB + 3)

RB = 16384
VS = 32
NPRE = env('NPRE', 5)


class Stream:
    NR, NRND, NREG = 10, 29, 14
    def __init__(self, a):
        self.a = a
        self.nxt = 0
        self.vm, self.lg = [], []
        self.reg = {}
        self.free = list(range(self.NREG - NPRE))
        self.last = self.NRND - NPRE
        for i in range(NPRE):
            self.reg[self.last + i] = self.NREG - NPRE + i
        self.maxreg = self.NREG
    def setup(self):
        a = self.a
        a(f"s_and_b32 s19, s{S_WAVE}, 3")
        a("s_lshl_b32 s25, s19, 12")
        a(f"s_mul_i32 s20, s{S_NTG}, {231*1024}")
        a("s_add_u32 s20, s20, s25")
        a(f"s_add_u32 s20, s20, {WS_WGU:#x}")
        a(f"s_mul_i32 s21, s{S_NT64}, {224*1024}")
        a("s_add_u32 s21, s21, s25")
        a(f"s_add_u32 s21, s21, {WS_WD:#x}")
        for i in range(3):
            a(f"v_add_u32 v{V_FREE+i}, {i*0x10000}, v{V_L16}")
            a(f"v_add_u32 v{V_FREE+i}, s25, v{V_FREE+i}")
    def src(self, r):
        return f"s_add_u32 s27, s20, {r*RB}" if r < 15 else f"s_add_u32 s27, s21, {(r-15)*RB}"
    def wait_vm(self, pred):
        idx = [i for i, e in enumerate(self.vm) if pred(e)]
        if not idx:
            return None
        n = min(63, (len(self.vm) - 1 - idx[-1]) * 4)
        del self.vm[:idx[-1] + 1]
        return f"vmcnt({n})"
    def flush(self, limit, cap=99):
        a = self.a
        for r in sorted(self.reg)[:cap]:
            if r >= limit:
                break
            w = self.wait_vm(lambda e: e == ("s", r))
            if w:
                a("s_waitcnt " + w)
            k = self.reg.pop(r)
            for i in range(4):
                off = (r % self.NR) * RB + i * 1024
                if env("X_NOFL", 0) and r >= 24:
                    pass
                elif env("FL64", 0):
                    for hh in range(2):
                        a(f"ds_write_b64 v{V_FREE + (off >> 16)}, {vr(VS + (k*4 + i)*4 + 2*hh, 2)} offset:{(off & 0xffff) + 8*hh}")
                        if env("FLW", 1):
                            a("s_waitcnt lgkmcnt(0)")
                else:
                    a(f"ds_write_b128 v{V_FREE + (off >> 16)}, {vr(VS + (k*4 + i)*4, 4)} offset:{off & 0xffff}")
                    if env("FLW", 1):
                        a("s_waitcnt lgkmcnt(0)")
            self.lg.append((r, k))
    def fetch(self, n, limit):
        a = self.a
        while n > 0 and self.nxt < self.last:
            r = self.nxt
            if r < limit:
                a(f"s_add_u32 s26, s25, {(r % self.NR) * RB}")
                a("s_mov_b32 m0, s26")
                a(self.src(r))
                for i in range(4):
                    a(f"buffer_load_dwordx4 v{V_L16}, s[4:7], s27 offen offset:{i*1024}{SC} lds")
                self.vm.append(("d", r))
            else:
                if not self.free:
                    break
                k = self.free.pop(0)
                self.maxreg = max(self.maxreg, k + 1)
                self.reg[r] = k
                a(self.src(r))
                for i in range(4):
                    a(f"buffer_load_dwordx4 {vr(VS + (k*4 + i)*4, 4)}, v{V_L16}, s[4:7], s27 offen offset:{i*1024}{SC}")
                self.vm.append(("s", r))
            self.nxt += 1; n -= 1
    def landed(self, upto):
        assert self.nxt > min(upto, self.last - 1) and all(r > upto for r in self.reg), (upto, self.nxt, self.reg)
        w = []
        x = self.wait_vm(lambda e: e[0] == "d" and e[1] <= upto)
        if x:
            w.append(x)
        if any(r <= upto for r, _ in self.lg):
            w.append("lgkmcnt(0)")
            self.free += [k for _, k in self.lg]
            self.lg = []
        if w:
            self.a("s_waitcnt " + " ".join(w))

def gemm_phase(a, g):
    NW, NT = g.NW, g.NT
    ln = g.kind in ("qkv", "gu")
    NS = g.KST if ln else g.KST // 2
    SBY = NW * 1024 if ln else 4096
    NSW = NS + (1 if ln else 0)
    NRND = -(-NSW * SBY // RB)
    NR = min(g.NR, NRND)
    RING = NR * RB
    LB = g.LB
    SCR = LB + RING
    assert SCR + (1024 if g.kind == "qkv" else 0) + (0 if ln else 16384) <= LDS_MAX
    S = g.stream
    RA = g.RA
    staged = g.staged
    s_tt, s_nt = (S_TT128, S_NT128) if ln else (S_TT64, S_NT64)
    comp, end = a.label(g.name + "_comp"), a.label(g.name + "_end")
    SB = g.sb
    need_round = lambda st: (min(st, NSW - 1) * SBY + SBY - 1) // RB
    bars = [0]
    out_ = min(NR, g.N1 + g.N2)
    while out_ < NRND:
        out_ = min(out_ + (g.N3 if len(bars) == 1 else g.N4), NR + (bars[-1] * SBY) // RB, NRND)
        bars.append(bars[-1] + g.BS)
    for _ in range(g.XB):
        bars.append(bars[-1] + g.BS)
    a.c(f"================ phase {g.name} ================")
    a(f"s_cmp_lt_u32 s{S_WAVE}, 4")
    a(f"s_cbranch_scc1 {comp}")
    a(f"s_and_b32 s19, s{S_WAVE}, 3")
    a("s_lshl_b32 s25, s19, 12")
    a(f"s_mul_i32 s23, s{s_nt}, {g.WNT}")
    a("s_add_u32 s23, s23, s25")
    if g.WBASE:
        a(f"s_add_u32 s23, s23, {g.WBASE:#x}")
    if staged:
        for i in range(3):
            a(f"v_add_u32 v{V_FREE+i}, {i*0x10000}, v{V_L16}")
            a(f"v_add_u32 v{V_FREE+i}, s25, v{V_FREE+i}")
    stamp(a, SB)
    vm, lg = [], []
    def issue(r):
        dst = LB + (r % NR) * RB
        if r in staged:
            k = staged.index(r)
            for i in range(4):
                off = dst + i * 1024
                a(f"ds_write_b128 v{V_FREE + (off >> 16)}, {vr(VS + (k*4 + i)*4, 4)} offset:{off & 0xffff}")
            lg.append(r)
        else:
            a(f"s_add_u32 s26, s25, {dst}")
            a("s_mov_b32 m0, s26")
            a(f"s_add_u32 s27, s23, {r*RB}")
            for i in range(4):
                a(f"buffer_load_dwordx4 v{V_L16}, s[4:7], s27 offen offset:{i*1024}{SC} lds")
            vm.append(r)
    extra = [0]
    def wait_landed(upto):
        w = []
        for q, nm, cap in ((vm, "vmcnt", 63), (lg, "lgkmcnt", 15)):
            idx = [i for i, r in enumerate(q) if r <= upto]
            if idx:
                left = len(q) - 1 - idx[-1]
                w.append(f"{nm}({min(cap, left*4 + (extra[0] if q is vm else 0))})")
                del q[:idx[-1] + 1]
        if w:
            a("s_waitcnt " + " ".join(w))
    order = g.order if g.order else list(range(NRND))
    todo = list(order)
    def issue_n(n, limit):
        while n > 0 and todo and todo[0] < limit:
            issue(todo.pop(0)); n -= 1
    if staged:
        a("s_waitcnt vmcnt(0)")
    issue_n(g.N1, NR)
    if g.lsig:
        a(f"s_waitcnt vmcnt({len(vm)*4})")
        a("s_mov_b32 s38, 1")
        a(f"s_atomic_add s38, s[14:15], s{S_SIG}")
    issue_n(g.N2, NR)
    if S:
        assert not todo
        S.setup()
        S.fetch(g.PRE1, LB // RB)
        extra[0] = 4 * len(S.vm)
    stamp(a, SB + 1)
    st = []
    if g.stage_next is not None:
        n = g.stage_next
        for k, r in enumerate(n.staged):
            for i in range(4):
                t = f"s_add_u32 s27, s24, {r*RB}\n" if i == 0 else ""
                st.append(t + f"buffer_load_dwordx4 {vr(VS + (k*4 + i)*4, 4)}, v{V_L16}, s[4:7], s27 offen offset:{i*1024}{SC}")
    for j, b in enumerate(bars):
        nxt = bars[j + 1] if j + 1 < len(bars) else NSW
        up = need_round(nxt)
        assert all(r > up for r in todo), (g.name, b, up, todo)
        wait_landed(up)
        a("s_barrier")
        issue_n(g.N3 if j == 0 else g.N4, NR + (b * SBY) // RB)
    assert not todo and not vm and not lg, (g.name, todo, vm, lg)
    if st:
        a.c("fetch part of the next phase's weights into registers")
        a(f"s_mul_i32 s24, s{S_NT64}, {n.WNT}")
        a("s_add_u32 s24, s24, s25")
        a(f"s_add_u32 s24, s24, {n.WBASE:#x}")
        for t in st:
            a(t)
    if S:
        S.fetch(g.PRE2, LB // RB)
    if not ln:
        a("s_barrier")
    if S:
        S.fetch(g.PRE3, LB // RB + NR)
    a("s_barrier")
    a(f"s_branch {end}")

    a(f"{comp}:")
    R = Regs(V_FREE)
    nwin = -(-(LB + RING) // 65536)
    vW = [[R.alloc() for _ in range(nwin)] for _ in range(1 if ln else 2)]
    vRstd, vX, vY = R.alloc(), R.alloc(), R.alloc()
    acc = [R.alloc(16) for _ in range(NT)]
    sets = [[R.alloc(4) for _ in range(NT)] for _ in range(2)]
    ring = [R.alloc(4) for _ in range(RA)]
    tmp = R.alloc(16)
    xc = R.alloc(4)
    if g.kind == "qkv":
        vRs = R.alloc(16)
    if ln:
        a(f"s_add_u32 s31, s{s_tt}, s{S_WAVE}")
        a(f"s_mul_i32 s22, s31, {g.KST*1024}")
        for w in range(nwin):
            a(f"v_add_u32 v{vW[0][w]}, {w*65536}, v{V_L16}")
        for t in range(NT):
            for i in range(16):
                a(f"v_mov_b32 v{acc[t]+i}, 0")
        a("s_lshl_b32 s36, s31, 12")
        a(f"s_add_u32 s36, s36, s{S_BASE}")
        a(f"s_add_u32 s36, s36, {g.STIN:#x}")
    else:
        a(f"s_and_b32 s24, s{S_WAVE}, 1")
        a(f"s_lshr_b32 s25, s{S_WAVE}, 1")
        a(f"s_lshl_b32 s33, s{s_nt}, 1")
        a("s_add_u32 s33, s33, s25")
        a(f"s_add_u32 s31, s{s_tt}, s24")
        a(f"s_mul_i32 s22, s31, {g.KST*1024}")
        a("s_lshl_b32 s26, s25, 10")
        a("s_add_u32 s22, s22, s26")
        a("s_mul_i32 s26, s25, 3072")
        a("s_lshl_b32 s27, s25, 10")
        a("s_add_u32 s27, s27, 1024")
        for w in range(nwin):
            a(f"v_add_u32 v{vX}, {w*65536}, v{V_L16}")
            a(f"v_add_u32 v{vW[0][w]}, s26, v{vX}")
            a(f"v_add_u32 v{vW[1][w]}, s27, v{vX}")
        for i in range(8):
            a(f"v_lshlrev_b32 v{acc[0]+2*i}, 16, v{V_RES+i}")
            a(f"v_and_b32 v{acc[0]+2*i+1}, 0xffff0000, v{V_RES+i}")
        for i in range(16):
            a(f"v_mov_b32 v{acc[1]+i}, 0")
        a(f"s_lshl_b32 s26, s{S_WAVE}, 12")
        a(f"s_add_u32 s26, s26, {SCR}")
        a("s_xor_b32 s27, s26, 0x2000")
        assert SCR % 16384 == 0
        a(f"v_add_u32 v{vX}, s26, v{V_L16}")
        a(f"v_add_u32 v{vY}, s27, v{V_L16}")
    a(f"s_add_u32 s22, s22, s{S_BASE}")
    a(f"s_add_u32 s22, s22, {g.ABUF:#x}")
    AST = 1024 if ln else 2048

    cvm = []
    def load_a(st_):
        if env("NOLOAD", 0):
            return
        off = (st_ * AST) % 4096
        a(f"buffer_load_dwordx4 {vr(ring[st_ % RA],4)}, v{V_L16}, s[4:7], s22 offen offset:{off}{SC}")
        if off + AST == 4096:
            a("s_add_u32 s22, s22, 4096")
        cvm.append(st_)
    def wait_a(tag):
        if tag in cvm:
            i = cvm.index(tag)
            a(f"s_waitcnt vmcnt({len(cvm) - 1 - i})")
            del cvm[:i + 1]
    def w_reads(st_):
        out = []
        for t in range(NT):
            off = LB + (st_ * SBY + (t * 1024 if ln else 0)) % RING
            base = vW[0 if ln else t][off >> 16]
            out.append(f"ds_read_b128 {vr(sets[st_ & 1][t],4)}, v{base} offset:{off & 0xffff}")
        return out
    fill = []
    def mfma(t, xa, wf):
        if env("NOCOMP", 0):
            return
        if g.swap[t]:
            a(f"{MFMA} {vr(acc[t],16)}, {vr(xa,4)}, {vr(wf,4)}, {vr(acc[t],16)}")
        else:
            a(f"{MFMA} {vr(acc[t],16)}, {vr(wf,4)}, {vr(xa,4)}, {vr(acc[t],16)}")
        for _ in range(min(2, len(fill))):
            a(fill.pop(0))

    a("s_lshl_b32 s23, s31, 8")
    a(f"s_add_u32 s23, s23, s{S_FL}")
    a(f"s_add_u32 s23, s23, {g.FIN:#x}")
    a("s_waitcnt vmcnt(0)")
    stamp(a, SB)
    handoff(a, 23, g.NEED)
    stamp(a, SB + 1)
    nxt_a = [0]
    def more_a(n, st_):
        while n > 0 and nxt_a[0] < NS and nxt_a[0] <= st_ + RA:
            load_a(nxt_a[0]); nxt_a[0] += 1; n -= 1
    more_a(g.I0, -1)
    a("s_barrier")
    for r in w_reads(0):
        a(r)
    a(f"s_lshl_b32 s{S_SIG}, s{s_nt if g.kind == 'qkv' else 31}, 8")
    a(f"s_add_u32 s{S_SIG}, s{S_SIG}, s{S_FL}")
    if g.FOUT:
        a(f"s_add_u32 s{S_SIG}, s{S_SIG}, {g.FOUT:#x}")
    if ln:
        a(f"v_lshlrev_b32 v{vX}, 3, v0")
    stl = [f"buffer_load_dwordx2 {vr(tmp+2*i,2)}, v{vX}, s[4:7], s36 offen offset:{i*512}{SC}" for i in range(8)] if ln else []
    nfill_steps = -(-40 // (2 * NT))
    for st_ in range(NS):
        if st_ in bars and st_ > 0:
            a("s_barrier")
        if ln and st_ == NS - nfill_steps:
            assert not stl
            if "st" in cvm:
                i = len(cvm) - 1 - cvm[::-1].index("st")
                a(f"s_waitcnt vmcnt({len(cvm) - 1 - i})")
                del cvm[:i + 1]
            fill.extend(stats_ops(tmp, xc, vRstd))
        nxt = w_reads(st_ + 1) if st_ + 1 < NSW else []
        wait_a(st_)
        for t in range(NT):
            if nxt:
                a(nxt[t])
            a(f"s_waitcnt lgkmcnt({(NT if nxt else NT - 1 - t)})")
            mfma(t, ring[st_ % RA], sets[st_ & 1][t])
            if t == 0:
                more_a(g.PS - 1, st_ - 1)
        more_a(1, st_)
        if stl and st_ >= g.STS:
            a(stl.pop(0)); cvm.append("st")
    if ln:
        while fill:
            a(fill.pop(0))
        if g.kind == "qkv":
            a(f"s_lshl_b32 s26, s{S_WAVE}, 8")
            a(f"s_add_u32 s26, s26, {SCR}")
            a(f"v_add_u32 v{tmp+4}, s26, v{V_L4}")
            a(f"ds_write_b32 v{tmp+4}, v{vRstd}")
            a(f"v_lshrrev_b32 v{tmp+5}, 5, v0")
            a(f"v_lshl_add_u32 v{tmp+5}, v{tmp+5}, 4, s26")
            for q in range(4):
                a(f"ds_read_b128 {vr(vRs+4*q,4)}, v{tmp+5} offset:{q*32}")
            a("s_waitcnt lgkmcnt(5)")
        else:
            a("s_waitcnt lgkmcnt(0)")
            a("s_nop 0")
        for t in range(NT):
            mfma(t, xc, sets[NS & 1][t])
        if g.kind == "qkv":
            a("s_waitcnt lgkmcnt(0)")
    else:
        a("s_nop 11")
        for q in range(4):
            a(f"ds_write_b128 v{vX}, {vr(acc[1]+4*q,4)} offset:{q*1024}")
        a("s_waitcnt lgkmcnt(0)")
        a("s_barrier")
        for q in range(4):
            a(f"ds_read_b128 {vr(acc[1]+4*q,4)}, v{vY} offset:{q*1024}")
    EARLY = 0
    stamp(a, SB + 2)
    ot = sets[0][0]
    if g.kind == "qkv":
        a(f"s_lshl_b32 s26, s{s_nt}, 17")
        a("s_lshl_b32 s27, s31, 10")
        a("s_add_u32 s26, s26, s27")
        a(f"s_add_u32 s26, s26, s{S_BASE}")
        va = tmp + 8
        a(f"v_mul_f32 v{tmp+6}, {f32bits(QSCALE):#x}, v{vRstd}")
        a(f"v_bfe_u32 v{va}, v0, 4, 1")
        a(f"v_lshlrev_b32 v{va}, 16, v{va}")
        a(f"v_lshrrev_b32 v{va+1}, 5, v0")
        a(f"v_lshl_add_u32 v{va}, v{va+1}, 8, v{va}")
        a(f"v_and_b32 v{va+1}, 15, v0")
        a(f"v_lshl_add_u32 v{va}, v{va+1}, 4, v{va}")
        a("s_nop 1")
        for t, base, sc in ((0, B_Q, tmp + 6), (1, B_K, vRstd)):
            for hh in range(2):
                o = ot + 4 * (2 * t + hh)
                for i in range(4):
                    r = acc[t] + 8 * hh + 2 * i
                    a(f"v_mul_f32 v{r}, v{sc}, v{r}")
                    a(f"v_mul_f32 v{r+1}, v{sc}, v{r+1}")
                    a(f"v_cvt_pk_bf16_f32 v{o+i}, v{r}, v{r+1}")
                a(f"s_add_u32 s27, s26, {base + hh*65536:#x}")
                a(f"buffer_store_dwordx4 {vr(o,4)}, v{V_L16}, s[4:7], s27 offen{SC}")
        a(f"s_add_u32 s27, s26, {B_V:#x}")
        for hh in range(2):
            o = ot + 16 + 4 * hh
            for i in range(4):
                r = acc[2] + 8 * hh + 2 * i
                a(f"v_pk_mul_f32 {vr(r,2)}, {vr(vRs+8*hh+2*i,2)}, {vr(r,2)}")
                a(f"v_cvt_pk_bf16_f32 v{o+i}, v{r}, v{r+1}")
            a(f"buffer_store_dwordx4 {vr(o,4)}, v{va}, s[4:7], s27 offen offset:{hh*512}{SC}")
    elif g.kind == "gu":
        a(f"s_mul_i32 s26, s31, {112*1024}")
        a(f"s_mul_i32 s27, s{s_nt}, {7*1024}")
        a("s_add_u32 s26, s26, s27")
        a(f"s_add_u32 s26, s26, s{S_BASE}")
        a(f"s_add_u32 s26, s26, {B_H:#x}")
        a(f"v_mul_f32 v{tmp}, v{vRstd}, v{vRstd}")
        a(f"v_mov_b32 v{tmp+1}, v{tmp}")
        a("s_nop 1")
        for t in range(NT):
            o = ot + 4 * t
            for i in range(4):
                r = acc[t] + 2 * i
                a(f"v_pk_mul_f32 {vr(r,2)}, {vr(r,2)}, {vr(r+8,2)}")
            for i in range(4):
                r = acc[t] + 2 * i
                a(f"v_pk_mul_f32 {vr(r,2)}, {vr(r,2)}, {vr(tmp,2)}")
            for i in range(4):
                r = acc[t] + 2 * i
                a(f"v_cvt_pk_bf16_f32 v{o+i}, v{r}, v{r+1}")
            a(f"buffer_store_dwordx4 {vr(o,4)}, v{V_L16}, s[4:7], s26 offen offset:{(t%4)*1024}{SC}")
            if t == 3:
                a("s_add_u32 s26, s26, 4096")
    else:
        res_epilogue(a, g, acc[0], acc[1], tmp, end)
    if ln:
        a("s_barrier")
        stamp(a, SB + 3)
    a(f"{end}:")
    return R.n


def mlp_phase(a, g):
    E = lambda k, d: env("MLP_" + k, d)
    NR, RING = 10, 10 * RB
    NG, NOPS = 231, 231 + 112
    beg = [i * 1024 for i in range(NG)] + [15 * RB + (i // 2) * 4096 for i in range(112)]
    fin = [i * 1024 + 1023 for i in range(NG)] + [15 * RB + (i // 2) * 4096 + 4095 for i in range(112)]
    RAH = E("RAH", 5)
    I0, I0D = E("I0", 10), E("I0D", 14)
    sched = os.environ.get("MLP_SCHED", "0:0,20:0,40:0,60:0,88:2,100:1,114:1,130:1,146:1,162:1,178:1,194:1,210:1,226:1,240:0,252:0,264:0,276:0,288:0,300:0,330:0")
    sched = dict((int(x.split(":")[0]), int(x.split(":")[1])) for x in sched.split(","))
    bars = sorted(sched)
    S = g.stream
    comp, end = a.label("mlp_comp"), a.label("mlp_end")
    SB, SD = 17, g.sb
    a.c("================ phase gate/up + down ================")
    a(f"s_cmp_lt_u32 s{S_WAVE}, 4")
    a(f"s_cbranch_scc1 {comp}")
    stamp(a, SB)
    S.flush(NR)
    S.fetch(E("N1", 8), NR)
    stamp(a, SB + 1)
    for j, b in enumerate(bars):
        nxt = bars[j + 1] if j + 1 < len(bars) else NOPS
        S.landed(fin[min(NOPS - 1, nxt - 1 + RAH)] // RB)
        a("s_barrier")
        lim = NR + beg[b] // RB
        S.fetch(sched[b], lim)
        S.flush(lim, E("FCAP", 1))
        a.c(f"barrier {b}: fetched {S.nxt}, staged {sorted(S.reg)}")
    assert S.nxt == S.last and not S.vm and not S.lg and not S.reg
    a("s_barrier")
    a("s_barrier")
    a(f"s_branch {end}")

    a(f"{comp}:")
    R = Regs(V_FREE)
    vW = [R.alloc() for _ in range(3)]
    vRstd = R.alloc()
    xc = R.alloc(4)
    vR2 = R.alloc(2)
    vX, vY = R.alloc(), R.alloc()
    vD = [[R.alloc() for _ in range(3)] for _ in range(2)]
    acc = [R.alloc(16) for _ in range(4)]
    NF = RAH + 2
    wf = [R.alloc(4) for _ in range(NF)]
    ring = [R.alloc(4) for _ in range(32)]
    tmp = ring[28]
    NP = len(PASSES)
    pstart = [33 * f for f in PFIRST] + [NG]
    tacc = [acc[t % 4] for t in range(7)]
    dacc = [acc[3], acc[0]]
    hreg = [34, 35, 32]
    a(f"s_add_u32 s31, s{S_TTG}, s{S_WAVE}")
    a("s_lshl_b32 s22, s31, 15")
    a(f"s_add_u32 s22, s22, s{S_BASE}")
    a(f"s_add_u32 s22, s22, {B_X1:#x}")
    a("s_lshl_b32 s36, s31, 12")
    a(f"s_add_u32 s36, s36, s{S_BASE}")
    a(f"s_add_u32 s36, s36, {B_ST1:#x}")
    a(f"s_mul_i32 s26, s31, {112*1024}")
    a(f"s_add_u32 s26, s26, s{S_BASE}")
    a(f"s_add_u32 s26, s26, {B_H:#x}")
    for p in range(NP):
        a(f"s_mul_i32 s{hreg[p]}, s{S_NTG}, {PASSES[p]*1024}")
        a(f"s_add_u32 s{hreg[p]}, s{hreg[p]}, s26")
        if p:
            a(f"s_add_u32 s{hreg[p]}, s{hreg[p]}, {PFIRST[p]*16384}")
    a("s_lshl_b32 s50, s31, 8")
    a(f"s_add_u32 s50, s50, s{S_FL}")
    a(f"s_add_u32 s23, s50, {FL_O:#x}")
    a(f"s_add_u32 s50, s50, {FL_G:#x}")
    a(f"s_add_u32 s51, s50, {WS_FLAG:#x}")
    a(f"s_and_b32 s24, s{S_WAVE}, 1")
    a(f"s_lshr_b32 s25, s{S_WAVE}, 1")
    a(f"s_lshl_b32 s33, s{S_NT64}, 1")
    a("s_add_u32 s33, s33, s25")
    a(f"s_add_u32 s31, s{S_TT64}, s24")
    a("s_lshl_b32 s52, s31, 8")
    a(f"s_add_u32 s52, s52, s{S_FL}")
    a(f"s_add_u32 s52, s52, {FL_G:#x}")
    a(f"s_add_u32 s53, s52, {WS_FLAG:#x}")
    a(f"s_mul_i32 s37, s31, {112*1024}")
    a("s_lshl_b32 s26, s25, 10")
    a("s_add_u32 s37, s37, s26")
    a(f"s_add_u32 s37, s37, s{S_BASE}")
    a(f"s_add_u32 s37, s37, {B_H:#x}")
    a("s_mul_i32 s29, s25, 3072")
    a("s_lshl_b32 s30, s25, 10")
    a("s_add_u32 s30, s30, 1024")
    for w in range(3):
        a(f"v_add_u32 v{vW[w]}, {w*65536}, v{V_L16}")
        a(f"v_add_u32 v{vD[0][w]}, s29, v{vW[w]}")
        a(f"v_add_u32 v{vD[1][w]}, s30, v{vW[w]}")
    a(f"v_mov_b32 v{vY}, 0")
    a(f"v_lshlrev_b32 v{vX}, 3, v0")
    cvm = []
    def wait_tag(tag):
        if tag in cvm:
            i = len(cvm) - 1 - cvm[::-1].index(tag)
            a(f"s_waitcnt vmcnt({len(cvm) - 1 - i})")
            del cvm[:i + 1]
    na, nh = [0], [0]
    def load_x():
        k = na[0]; na[0] += 1
        a(f"buffer_load_dwordx4 {vr(ring[k],4)}, v{V_L16}, s[4:7], s22 offen offset:{(k%4)*1024}{SC}")
        if k % 4 == 3:
            a("s_add_u32 s22, s22, 4096")
        cvm.append(("x", k))
    def load_h():
        k = nh[0]; nh[0] += 1
        if env("X_NOH", 0):
            return
        a(f"buffer_load_dwordx4 {vr(ring[k%32],4)}, v{V_L16}, s[4:7], s37 offen offset:{(k%2)*2048}{SC}")
        if k % 2 == 1:
            a("s_add_u32 s37, s37, 4096")
        cvm.append(("h", k))
    def w_read(i):
        off = beg[i] % RING
        base = vW[off >> 16] if i < NG else vD[(i - NG) & 1][off >> 16]
        a(f"ds_read_b128 {vr(wf[i % NF],4)}, v{base} offset:{off & 0xffff}")
    def slot(i):
        for p in range(NP):
            if i < pstart[p + 1]:
                return PFIRST[p] + (i - pstart[p]) % PASSES[p], (i - pstart[p]) // PASSES[p]
        return None, (i - NG) // 2
    fill = []
    stored = set()
    def h_ops(t, packed=True):
        r = tacc[t]
        p = max(q for q in range(NP) if PFIRST[q] <= t)
        so, off = hreg[p], (t - PFIRST[p]) * 1024
        ops = [f"v_pk_mul_f32 {vr(r+2*i,2)}, {vr(r+2*i,2)}, {vr(r+8+2*i,2)}" for i in range(4)]
        ops += [f"v_pk_mul_f32 {vr(r+2*i,2)}, {vr(r+2*i,2)}, {vr(vR2,2)}" for i in range(4)]
        if not packed:
            ops = [f"v_mul_f32 v{r+i}, v{r+i}, v{r+8+i}" for i in range(8)]
            ops += [f"v_mul_f32 v{r+i}, v{vR2}, v{r+i}" for i in range(8)]
        ops += [f"v_cvt_pk_bf16_f32 v{r+8+i}, v{r+2*i}, v{r+2*i+1}" for i in range(4)]
        ops.append((f"buffer_store_dwordx4 {vr(r+8,4)}, v{V_L16}, s[4:7], s{so} offen offset:{off}{SC}", ("hs", t)))
        return ops

    a("s_waitcnt vmcnt(0)")
    stamp(a, SB)
    handoff(a, 23, 16)
    stamp(a, SB + 1)
    if E("PRIO", 2):
        a(f"s_setprio {E('PRIO', 2)}")
    while na[0] < I0:
        load_x()
        if na[0] == E("STP", 4):
            a("s_barrier")
            for i in range(RAH):
                w_read(i)
            for q in range(8):
                a(f"buffer_load_dwordx2 {vr(tmp+2*q,2)}, v{vX}, s[4:7], s36 offen offset:{q*512}{SC}")
                cvm.append("st")
    a(f"s_add_u32 s{S_SIG}, s52, {FL_D - FL_G:#x}")
    STF = (E("STP", 4) + 1) * PASSES[0]
    evs = os.environ.get("MLP_EV", {"4,3": "170:200:214,256:284:292", "3,2,2": "140:200:214,205:244:252,270:296:304",
                                    "4,2,1": "176:198:216,232:256:278,256:286:308"}.get(",".join(map(str, PASSES))))
    ev = []
    for p, x in enumerate(evs.split(",")):
        sg, ak, go = map(int, x.split(":"))
        ev.append((PFIRST[p] + PASSES[p] - 1, sg, ak, go, 8 * (PFIRST[p] + PASSES[p]), sg < NG and E("VEC", 0) & 1, ak < NG and E("VEC", 0) & 2))
    def emit(x):
        if isinstance(x, tuple):
            a(x[0]); cvm.append(x[1]); stored.add(x[1][1])
        else:
            a(x)
    dinit = [False]
    hlim = 0
    treg = list(range(78, 94, 2)) + [96, 98, 100, 62]
    tpos = [int(x) for x in os.environ.get("TRACE", "").split(",") if x]
    for i in range(NOPS):
        t, ks = slot(i)
        if i in tpos:
            r_ = treg[tpos.index(i)]
            a(f"s_memtime s[{r_}:{r_+1}]")
        for gi, (lt, sg, ak, go, lim_, vec, vec2) in enumerate(ev):
            if i == sg:
                a.c(f"this wave's part {gi} of H is complete")
                assert lt in stored
                wait_tag(("hs", lt))
                if vec:
                    a(f"v_mov_b32 v{vRstd}, 1")
                    a("s_mov_b64 exec, 1")
                    a(f"buffer_atomic_add v{vRstd}, v{vY}, s[4:7], s51 offen offset:{gi*4} sc1")
                    a("s_mov_b64 exec, -1")
                    cvm.append("sig")
                else:
                    a(f"s_add_u32 s54, s50, {gi*4}")
                    a("s_mov_b32 s38, 1")
                    a("s_atomic_add s38, s[14:15], s54")
                if PT:
                    a(f"s_mov_b64 exec, {(1 << (8 * PASSES[gi])) - 1 if PASSES[gi] < 4 else 0x7fffffff:#x}")
                    if PASSES[gi] == 4:
                        a("s_mov_b32 exec_lo, -1")
                    a(f"buffer_load_dword v{V_PF}, v{V_L128}, s[4:7], s{hreg[gi]} offen sc1")
                    a("s_mov_b64 exec, -1")
                    cvm.append("pt")
            if i == ak:
                if vec2:
                    a(f"buffer_load_dword v{vX}, v{vY}, s[4:7], s53 offen offset:{gi*4} sc1")
                    cvm.append("ask")
                else:
                    a(f"s_add_u32 s28, s52, {gi*4}")
                    a("s_mov_b32 s55, 0")
                    a("s_atomic_add s55, s[14:15], s28 glc")
            if i == go:
                ok = a.label("go")
                if vec2:
                    wait_tag("ask")
                    a(f"v_cmp_gt_u32 vcc, 16, v{vX}")
                    a(f"s_add_u32 s28, s52, {gi*4}")
                    a(f"s_cbranch_vccz {ok}")
                else:
                    a("s_waitcnt lgkmcnt(0)")
                    a("s_cmp_ge_u32 s55, 16")
                    a(f"s_cbranch_scc1 {ok}")
                poll(a, 28, 16)
                a(f"{ok}:")
                hlim = lim_
                if gi in (0, NP - 1) and not tpos:
                    stamp(a, SD + (0 if gi == 0 else 4))
        if i in bars and i > 0:
            a("s_barrier")
        if i == STF:
            wait_tag("st")
            fill.extend(stats_ops(tmp, xc, vRstd))
            fill.append(f"v_mul_f32 v{vR2}, v{vRstd}, v{vRstd}")
            fill.append(f"v_mov_b32 v{vR2+1}, v{vR2}")
        if i == pstart[1] and not tpos:
            stamp(a, SB + 2)
        if i == NG and not tpos:
            stamp(a, SB + 3)
        if i in pstart[1:]:
            p = pstart.index(i) - 1
            assert not fill
            need = set(tacc[q] for q in range(PFIRST[p + 1], PFIRST[p + 1] + PASSES[p + 1])) if p + 1 < NP else set(dacc)
            tiles = list(range(PFIRST[p], PFIRST[p] + PASSES[p]))
            now = [q for q in tiles if tacc[q] in need or (E("SER", 6) >> p) & 1]
            if now:
                a(f"s_nop {max(0, 11 - 3 * (tiles[-1] - now[0]))}")
                for q in now:
                    for x in h_ops(q):
                        emit(x)
            else:
                fill.extend(["s_nop 0"] * 6)
            for q in tiles:
                if q not in now:
                    fill.extend(h_ops(q, False))
        if i == NG and not tpos:
            stamp(a, SD + 1)
        if 3 in stored and not dinit[0] and not fill:
            dinit[0] = True
            assert i + 10 < NG
            fill.extend(["s_nop 0"] * 2)
            for q in range(8):
                fill.append(f"v_lshlrev_b32 v{dacc[0]+2*q}, 16, v{V_RES+q}")
                fill.append(f"v_and_b32 v{dacc[0]+2*q+1}, 0xffff0000, v{V_RES+q}")
        if t == 0 and ks < 32:
            wait_tag(("x", ks))
        if t is None and (i - NG) % 2 == 0:
            wait_tag(("h", ks))
        if i + RAH < NOPS:
            w_read(i + RAH)
        a(f"s_waitcnt lgkmcnt({min(RAH, NOPS - 1 - i)})")
        if t is not None:
            d, xa, first = tacc[t], (xc if ks == 32 else ring[ks]), ks == 0
            if first and t >= 4:
                assert t - 4 in stored
        else:
            d, xa, first = dacc[(i - NG) & 1], ring[ks % 32], i == NG + 1
            assert 4 in stored
        a(f"{MFMA} {vr(d,16)}, {vr(wf[i % NF],4)}, {vr(xa,4)}, {'0' if first else vr(d,16)}")
        for _ in range(min(E("FPS", 3), len(fill))):
            emit(fill.pop(0))
        if t == PASSES[0] - 1 and na[0] < 32:
            assert na[0] < 28 or (i > STF and not fill), i
            load_x()
        if i >= pstart[NP - 1]:
            done_steps = (i + 1 - NG) // 2 if t is None else 0
            look = I0D if t is not None else max(E("LK", 12), I0D - done_steps)
            if nh[0] < min(hlim, done_steps + look) and (t is None or nh[0] < ks):
                load_h()
    assert nh[0] == 56 and not fill
    dead = beg[bars[-1]] // RB - 1
    assert dead + NR >= 29
    SCR = (dead % NR) * RB
    a(f"s_lshl_b32 s26, s{S_WAVE}, 12")
    a(f"s_add_u32 s26, s26, {SCR}")
    a("s_xor_b32 s27, s26, 0x2000")
    a(f"v_add_u32 v{vX}, s26, v{V_L16}")
    a(f"v_add_u32 v{vY}, s27, v{V_L16}")
    a("s_nop 6")
    if E("PRIO", 2):
        a("s_setprio 0")
    for q in range(4):
        a(f"ds_write_b128 v{vX}, {vr(dacc[1]+4*q,4)} offset:{q*1024}")
    a("s_waitcnt lgkmcnt(0)")
    a("s_barrier")
    for q in range(4):
        a(f"ds_read_b128 {vr(dacc[1]+4*q,4)}, v{vY} offset:{q*1024}")
    stamp(a, SD + 2)
    for k in range(len(tpos)):
        a(f"v_writelane_b32 v{V_STAMP+1}, s{treg[k]}, {k}")
    res_epilogue(a, g, dacc[0], dacc[1], tmp, end)
    a(f"{end}:")
    return max(R.n, VS + 16 * S.maxreg)


def attn_phase(a, SB, code_end):
    U = 2
    NIT = 32 // U
    B2IT = env("ATT_B2", 1)
    B3IT = env("ATT_B3", 3)
    PRIO_IT = env("ATT_PRIO", 14)
    PFN = 4 if GMX == 4 else env('PFN', 6)
    CB = 0
    XB = CB + 4096
    KB, VB = 32768, 98304
    assert XB + 8 * 2304 <= KB
    R = Regs(V_FREE)
    vK, vV, vInc, vV0 = R.alloc(), R.alloc(), R.alloc(), R.alloc()
    t0, t1 = R.alloc(), R.alloc()
    vPA, vPP = R.alloc(), R.alloc()
    R.alloc(); R.alloc()
    vIx, vKp = R.alloc(), R.alloc()
    DYN = env("ATT_DYN", 0)
    Q = [R.alloc(4), R.alloc(4)]
    NM = [R.alloc(16), R.alloc(16)]
    O = [R.alloc(16), R.alloc(16)]
    S = [R.alloc(16), R.alloc(16)]
    P = R.alloc(8)
    KF = [R.alloc(4), R.alloc(4)]
    VF = [R.alloc(8), R.alloc(8)]
    a.c("================ phase attention ================")
    a(f"s_and_b32 s19, s{S_IDX}, 3")
    a(f"s_lshl_b32 s20, s{S_XCD}, 2")
    a("s_add_u32 s19, s19, s20")
    a(f"s_lshr_b32 s20, s{S_IDX}, 2")
    a("s_lshl_b32 s20, s20, 3")
    a(f"s_and_b32 s26, s{S_WAVE}, 3")
    a(f"s_lshr_b32 s27, s{S_WAVE}, 2")
    a("s_lshl_b32 s22, s26, 1")
    a("s_add_u32 s20, s20, s22")
    a("s_lshl_b32 s21, s19, 16")
    a(f"s_add_u32 s21, s21, s{S_BASE}")
    setup = a.label("att_setup")
    assert B_Q == 0 and B_V - B_K == 0x200000
    a("s_and_b32 s24, s26, 1")
    a("s_lshr_b32 s25, s26, 1")
    a("s_lshl_b32 s28, s24, 16")
    a(f"s_add_u32 s28, s28, {KB}")
    a("s_lshl_b32 s29, s24, 21")
    a("s_add_u32 s29, s29, s21")
    a(f"s_add_u32 s29, s29, {B_K:#x}")

    def dma(first_tile, per_wave):
        a(f"s_mul_i32 s24, s25, {per_wave*1024}")
        if first_tile:
            a(f"s_add_u32 s24, s24, {first_tile*1024}")
        n = 0
        while n < per_wave:
            a("s_add_u32 s30, s28, s24")
            a("s_mov_b32 m0, s30")
            a("s_add_u32 s31, s29, s24")
            for i in range(min(4, per_wave - n)):
                a(f"buffer_load_dwordx4 v{V_L16}, s[4:7], s31 offen offset:{i*1024}{SC} lds")
            n += 4
            if n < per_wave:
                a("s_add_u32 s24, s24, 4096")
    a(f"v_and_b32 v{t0}, 11, v0")
    a(f"v_cmp_eq_u32 vcc, 0, v{t0}")
    a(f"v_mov_b32 v{t1}, 0x3f803f80")
    a("s_lshl_b32 s30, s26, 10")
    a(f"s_add_u32 s30, s30, {CB}")
    a(f"v_cndmask_b32 v{P}, 0, v{t1}, vcc")
    a(f"v_add_u32 v{t0}, s30, v{V_L16}")
    for i in range(1, 4):
        a(f"v_mov_b32 v{P+i}, v{P}")
    a(f"ds_write_b128 v{t0}, {vr(P,4)}")
    a(f"v_lshrrev_b32 v{t0}, 5, v0")
    a(f"v_lshlrev_b32 v{t0}, 8, v{t0}")
    a(f"v_and_b32 v{t1}, 15, v0")
    a(f"v_lshl_add_u32 v{t0}, v{t1}, 4, v{t0}")
    a(f"v_and_b32 v{t1}, 16, v0")
    a(f"v_cmp_eq_u32 vcc, 0, v{t1}")
    a("s_lshl_b32 s30, s27, 15")
    a(f"s_add_u32 s30, s30, {KB}")
    a(f"v_and_b32 v{vKp}, 0x33, v0")
    a(f"v_bfe_u32 v{vIx}, v0, 2, 1")
    a(f"v_lshl_or_b32 v{vKp}, v{vIx}, 3, v{vKp}")
    a(f"v_bfe_u32 v{vIx}, v0, 3, 1")
    a(f"v_lshl_or_b32 v{vKp}, v{vIx}, 2, v{vKp}")
    a(f"v_lshlrev_b32 v{vKp}, 4, v{vKp}")
    a(f"v_mov_b32 v{vIx}, 0xdddddddd")
    a(f"v_add_u32 v{vK}, s30, v{vKp}")
    a("s_add_u32 s31, s30, 0x10000")
    a(f"v_mov_b32 v{t1}, s31")
    a(f"v_mov_b32 v{vInc}, {CB}")
    a(f"v_cndmask_b32 v{t1}, v{vInc}, v{t1}, vcc")
    a(f"v_add_u32 v{vV}, v{t0}, v{t1}")
    a(f"v_mov_b32 v{t1}, {VB}")
    a(f"v_cndmask_b32 v{t1}, v{vInc}, v{t1}, vcc")
    a(f"v_add_u32 v{vV0}, v{t0}, v{t1}")
    a(f"v_mov_b32 v{t1}, {U*1024}")
    a(f"v_cndmask_b32 v{vInc}, 0, v{t1}, vcc")
    for q in range(2):
        for i in range(16):
            a(f"v_mov_b32 v{O[q]+i}, 0")
    for i in range(4, 8):
        a(f"v_mov_b32 v{VF[1]+i}, 0")
    a(f"ds_write_b128 v{V_L16}, {vr(VF[1]+4,4)} offset:{XB + 9216}")
    a("s_mul_i32 s30, s26, 2304")
    a(f"s_add_u32 s30, s30, {XB}")
    a("s_lshl_b32 s31, s26, 12")
    a(f"s_add_u32 s31, s31, {XB + 12288}")
    a("s_cmp_eq_u32 s27, 0")
    a("s_cselect_b32 s35, s30, s31")
    a("s_cselect_b32 s36, s31, s30")
    a(f"v_add_u32 v{vPA}, s35, v{V_L16}")
    a(f"v_add_u32 v{vPP}, s36, v{V_L16}")
    a(f"v_add_u32 v{vPA+2}, s35, v{V_L4}")
    a(f"v_add_u32 v{vPP+2}, s36, v{V_L4}")
    a("s_add_u32 s20, s20, s27")
    a("s_lshl_b32 s22, s20, 10")
    a("s_add_u32 s22, s22, s21")
    a("s_xor_b32 s35, s22, 1024")
    a(f"s_add_u32 s36, s21, {B_K:#x}")
    a("s_lshr_b32 s23, s19, 1")
    a(f"s_cmp_eq_u32 s{S_IT}, 0")
    a("s_cselect_b32 s53, 32, 16")
    a("s_cselect_b32 s52, -2, -1")
    a(f"s_cselect_b32 s32, {NIT - env('ATT_PRIO0', 15)}, {NIT - PRIO_IT}")
    a("s_and_b32 s23, s23, s52")
    a("s_lshl_b32 s23, s23, 8")
    a(f"s_add_u32 s23, s23, s{S_FL}")
    assert FL_Q == 0
    a(f"s_mov_b32 s34, {NIT - B2IT}")
    a(f"s_mov_b32 s33, {NIT - B3IT}")
    a("s_waitcnt vmcnt(0) lgkmcnt(0)")
    stamp(a, SB)
    a("s_barrier")
    a(f"s_cmp_lg_u32 s{S_WAVE}, 0")
    a(f"s_cbranch_scc1 {setup}")
    handoff(a, 23, "s53")
    stamp(a, SB + 1)
    a(f"{setup}:")
    a("s_barrier")

    def qk_loads():
        a(f"buffer_load_dwordx4 {vr(KF[1],4)}, v{vKp}, s[4:7], s36 offen{SC}")
        a(f"buffer_load_dwordx4 {vr(Q[0],4)}, v{V_L16}, s[4:7], s35 offen{SC}")
        a(f"buffer_load_dwordx4 {vr(Q[1],4)}, v{V_L16}, s[4:7], s22 offen{SC}")

    def standin():
        for q in range(2):
            a(f"{MFMA} {vr(S[q],16)}, {vr(KF[1],4)}, {vr(Q[q],4)}, 0")
        a("s_nop 11")
        tt = (t0, t1)
        for q in range(2):
            a(f"v_max3_f32 v{tt[q]}, v{S[q]}, v{S[q]+1}, v{S[q]+2}")
            a(f"v_max3_f32 v{P+q}, v{S[q]+8}, v{S[q]+9}, v{S[q]+10}")
        for i in (3, 5):
            for q in range(2):
                a(f"v_max3_f32 v{tt[q]}, v{tt[q]}, v{S[q]+i}, v{S[q]+i+1}")
                a(f"v_max3_f32 v{P+q}, v{P+q}, v{S[q]+8+i}, v{S[q]+9+i}")
        for q in range(2):
            a(f"v_max3_f32 v{tt[q]}, v{tt[q]}, v{S[q]+7}, v{S[q]+15}")
        for q in range(2):
            a(f"v_max_f32 v{tt[q]}, v{tt[q]}, v{P+q}")
        for q in range(2):
            a(f"v_mov_b32 v{P+q}, v{tt[q]}")
        a("s_nop 0")
        for q in range(2):
            a(f"v_permlane32_swap_b32 v{tt[q]}, v{P+q}")
        for q in range(2):
            a(f"v_min_f32 v{NM[q]}, -v{tt[q]}, -v{P+q}")
        for q in range(2):
            a(f"v_mov_b32 v{NM[q]+1}, v{NM[q]}")
        for q in range(2):
            for i in range(2, 16, 2):
                a(f"v_pk_mov_b32 {vr(NM[q]+i,2)}, {vr(NM[q],2)}, {vr(NM[q],2)}")

    older, join = a.label("older"), a.label("join")
    a("s_cmp_eq_u32 s27, 0")
    a(f"s_cbranch_scc1 {older}")
    dma(0, 2)
    dma(4, 6)
    a("s_waitcnt vmcnt(6)")
    a("s_barrier")
    stamp(a, SB + 2)
    qk_loads()
    dma(16, 8)
    a("s_waitcnt vmcnt(11)")
    a("s_barrier")
    dma(32, 16)
    a("s_waitcnt vmcnt(24)")
    standin()
    F, G_, vS, vR, vC = V_TF, V_TF + 32, V_TF + 48, V_TF + 49, V_TF + 52
    CSA = XB + 10240
    CNT = XB + 9216
    a.c("L2 prefetch: this wave's share of gate/up (2 x 8 KB) and wo (8 KB)")
    a(f"s_mul_i32 s50, s{S_IDX}, 59136")
    a(f"s_and_b32 s23, s{S_XCD}, 1")
    a(f"s_mul_i32 s23, s23, {8*231*1024}")
    a("s_add_u32 s50, s50, s23")
    a("s_lshl_b32 s23, s26, 14")
    a("s_add_u32 s50, s50, s23")
    a(f"s_add_u32 s50, s50, {WS_WGU:#x}")
    a(f"s_lshl_b32 s51, s{S_IDX}, 14")
    a("s_and_b32 s23, s26, 1")
    a("s_lshl_b32 s23, s23, 13")
    a("s_add_u32 s51, s51, s23")
    a(f"s_add_u32 s51, s51, {WS_WO:#x}")
    a(f"s_mov_b32 s39, {SPIN_MAX}")
    second, both = a.label("second"), a.label("both")
    a(f"s_cmp_lg_u32 s{S_IT}, 0")
    a(f"s_cbranch_scc1 {second}")
    a.c("re-tiling task: 128 rows x two 64-column strips; this wave takes 32 rows")
    l_gu, l_o, l_d, l_go = [a.label(x) for x in ("gu", "o", "d", "go")]
    a("s_cmp_ge_u32 s2, 176")
    a(f"s_cbranch_scc1 {l_d}")
    a("s_cmp_ge_u32 s2, 160")
    a(f"s_cbranch_scc1 {l_o}")
    a("s_cmp_ge_u32 s2, 48")
    a(f"s_cbranch_scc1 {l_gu}")
    srd(a, 80, 66, 67, 512 * 1536 * 2)
    srd(a, 84, 66, 67, 512 * 1536 * 2)
    a("s_and_b32 s79, s2, 3")
    a("s_lshr_b32 s54, s2, 2")
    a("s_mov_b32 s88, 3072")
    a("s_lshl_b32 s89, s54, 8")
    a("s_add_u32 s90, s89, 128")
    a("s_mov_b32 s91, 0")
    a("s_and_b32 s62, s54, 3")
    a(f"s_mul_i32 s96, s62, {4*99*1024}")
    a("s_lshr_b32 s62, s54, 2")
    a("s_lshl_b32 s62, s62, 10")
    a("s_add_u32 s96, s96, s62")
    assert WS_WQKV == 0
    a(f"s_add_u32 s97, s96, {99*1024}")
    a(f"s_add_u32 s100, s96, {2*99*1024}")
    a(f"s_add_u32 s101, s96, {3*99*1024}")
    for d in (72, 73, 74, 75):
        a(f"s_mov_b32 s{d}, 3072")
    a("s_mov_b32 s63, 1")
    a("s_mov_b32 s93, 0")
    a(f"s_branch {l_go}")
    a(f"{l_gu}:")
    srd(a, 80, 72, 73, 512 * 1792 * 2)
    srd(a, 84, 74, 75, 512 * 1792 * 2)
    a("s_sub_u32 s55, s2, 48")
    a("s_and_b32 s79, s55, 3")
    a("s_lshr_b32 s54, s55, 2")
    a("s_mov_b32 s88, 3584")
    a("s_lshl_b32 s89, s54, 7")
    a("s_mov_b32 s90, s89")
    a("s_mov_b32 s91, 1")
    a("s_lshl_b32 s55, s54, 2")
    for d, e in zip((96, 97, 100, 101), (72, 73, 74, 75)):
        a("s_mul_i32 s62, s55, 9363")
        a("s_lshr_b32 s62, s62, 16")
        a(f"s_mul_i32 s{d}, s62, {231*1024}")
        a("s_mul_i32 s62, s62, 7")
        a("s_sub_u32 s62, s55, s62")
        pass_of(a, 62, 78, e)
        a(f"s_lshl_b32 s{e}, s{e}, 10")
        a("s_lshl_b32 s78, s78, 5")
        a("s_add_u32 s62, s62, s78")
        a("s_lshl_b32 s62, s62, 10")
        a(f"s_add_u32 s{d}, s{d}, s62")
        a(f"s_add_u32 s{d}, s{d}, {WS_WGU:#x}")
        a("s_add_u32 s55, s55, 1")
    a("s_mov_b32 s63, 1")
    a("s_mov_b32 s93, 0")
    a(f"s_branch {l_go}")
    for lab, first, lo, nbytes, wnt, wbase in ((l_o, 160, 68, 512 * 512 * 2, 64 * 1024, WS_WO),
                                               (l_d, 176, 76, 1792 * 512 * 2, 224 * 1024, WS_WD)):
        a(f"{lab}:")
        srd(a, 80, lo, lo + 1, nbytes)
        srd(a, 84, lo, lo + 1, nbytes)
        a(f"s_sub_u32 s55, s2, {first}")
        a("s_lshr_b32 s79, s55, 2")
        a("s_and_b32 s54, s55, 3")
        a("s_mov_b32 s88, 1024")
        a("s_lshl_b32 s89, s54, 8")
        a("s_add_u32 s90, s89, 128")
        a("s_mov_b32 s91, 0")
        a(f"s_mul_i32 s96, s54, {2*wnt}")
        a(f"s_add_u32 s96, s96, {wbase:#x}")
        a("s_add_u32 s97, s96, 1024")
        a(f"s_add_u32 s100, s96, {wnt}")
        a(f"s_add_u32 s101, s96, {wnt+1024}")
        for d in (72, 73, 74, 75):
            a(f"s_mov_b32 s{d}, 2048")
        a(f"s_mov_b32 s93, {0 if lab == l_o else 1}")
        a("s_mov_b32 s63, 0")
        if lab == l_o:
            a(f"s_branch {l_go}")
    a(f"{l_go}:")
    a("s_lshl_b32 s62, s79, 2")
    a("s_add_u32 s62, s62, s26")
    a("s_lshl_b32 s92, s62, 1")
    for d, inc in ((76, 0), (77, 1)):
        a(f"s_add_u32 s{d}, s92, {inc}")
        a(f"s_mul_i32 s54, s{d}, 9363")
        a("s_lshr_b32 s54, s54, 16")
        a("s_mul_i32 s55, s54, 7")
        a(f"s_sub_u32 s55, s{d}, s55")
        pass_of(a, 55, 78, 49)
        a("s_mul_i32 s54, s54, s49")
        a("s_mul_i32 s78, s78, 15")
        a("s_add_u32 s54, s54, s78")
        a("s_add_u32 s54, s54, s55")
        a("s_cmp_eq_u32 s93, 0")
        a(f"s_cselect_b32 s{d}, s{d}, s54")
    a("s_lshl_b32 s62, s62, 5")
    a("s_mul_i32 s62, s62, s88")
    a("s_add_u32 s89, s89, s62")
    a("s_add_u32 s90, s90, s62")
    a("s_lshl_b32 s55, s88, 3")
    a(f"v_lshrrev_b32 v{vS}, 3, v0")
    a(f"v_mul_lo_u32 v{vS}, v{vS}, s88")
    a(f"v_and_b32 v{vR}, 7, v0")
    a(f"v_lshl_add_u32 v{vS}, v{vR}, 4, v{vS}")
    for g8 in range(4):
        for h in range(2):
            a(f"buffer_load_dwordx4 {vr(F+8*g8+4*h,4)}, v{vS}, s[{80+4*h}:{83+4*h}], s{89+h} offen")
            a(f"s_add_u32 s{89+h}, s{89+h}, s55")
    a("s_mov_b32 s33, 1")
    a(f"s_mov_b32 s34, {NIT - env('ATT_G0', 4)}")
    a("s_waitcnt vmcnt(8)")
    a(f"s_branch {both}")
    a(f"{second}:")
    a("s_mov_b32 s33, 6")
    a(f"s_mov_b32 s34, {NIT - 1}")
    a("s_waitcnt vmcnt(0)")
    a(f"{both}:")
    a("s_barrier")
    a("s_setprio 1")
    a(f"ds_read_b128 {vr(KF[0],4)}, v{vK}")
    a(f"ds_read_b128 {vr(VF[0],4)}, v{vV}")
    a(f"ds_read_b128 {vr(VF[0]+4,4)}, v{vV} offset:512")
    a("s_waitcnt lgkmcnt(0)")
    a(f"{MFMA} {vr(S[0],16)}, {vr(KF[0],4)}, {vr(Q[0],4)}, {vr(NM[0],16)}")
    a("s_nop 10")
    a(f"s_branch {join}")
    a(f"{older}:")
    qk_loads()
    a("s_waitcnt vmcnt(0)")
    standin()
    a(f"{MFMA} {vr(S[0],16)}, {vr(KF[1],4)}, {vr(Q[0],4)}, {vr(NM[0],16)}")
    a("s_barrier")
    stamp(a, SB + 2)
    a(f"ds_read_b128 {vr(VF[0],4)}, v{vV}")
    a(f"ds_read_b128 {vr(VF[0]+4,4)}, v{vV} offset:512")
    for i in range(0, 4, 2):
        a(f"v_pk_mov_b32 {vr(KF[0]+i,2)}, {vr(KF[1]+i,2)}, {vr(KF[1]+i,2)} op_sel:[0,1]")
    a("s_waitcnt lgkmcnt(0)")
    a("s_nop 5")
    a(f"{join}:")
    a(f"s_mov_b32 s31, {NIT}")
    stamp(a, SB + 3)
    lp, hook, back, hp, exitc = [a.label(x) for x in ("attn", "hook", "back", "hookp", "exitc")]
    a(f"{lp}:")
    order = os.environ.get("ATT_ORD", "E0 E1 P1 RK D E2 E3 E4 W QK R0 E5 E6 E7 E8 E9 E10 P0 R1 S E11 E12 E13 A E14 E15").split()
    for u in range(U):
        for q in range(2):
            c = S[q]
            for tok in order:
                if tok[0] == "E":
                    i = int(tok[1:]); a(f"v_exp_f32 v{c+i}, v{c+i}")
                elif tok[0] == "C":
                    j = int(tok[1:]); a(f"v_cvt_pk_bf16_f32 v{P+j}, v{c+2*j}, v{c+2*j+1}")
                elif tok == "P1":
                    pv = VF[(u + 1) & 1] if q == 0 else VF[u & 1]
                    a(f"{SMF} {vr(O[q^1],16)}, {vr(pv+4,4)}, {vr(S[q^1]+8,8)}, v{vIx}")
                elif tok == "P0":
                    a(f"{SMF} {vr(O[q],16)}, {vr(VF[u&1],4)}, {vr(S[q],8)}, v{vIx}")
                elif tok == "QK":
                    k_ = KF[u & 1] if q == 0 else KF[(u + 1) & 1]
                    a(f"{MFMA} {vr(S[q^1],16)}, {vr(k_,4)}, {vr(Q[q^1],4)}, {vr(NM[q^1],16)}")
                elif tok == "W":
                    if q == 1:
                        a("s_waitcnt lgkmcnt(0)")
                elif tok == "RK":
                    if q == 0:
                        a(f"ds_read_b128 {vr(KF[(u+1)&1],4)}, v{vK} offset:{(u+1)*1024}")
                elif tok == "R0":
                    if q == 0:
                        a(f"ds_read_b128 {vr(VF[(u+1)&1],4)}, v{vV} offset:{(u+1)*1024}")
                elif tok == "R1":
                    if q == 0:
                        a(f"ds_read_b128 {vr(VF[(u+1)&1]+4,4)}, v{vV} offset:{(u+1)*1024+512}")
                elif tok == "A":
                    if u == U - 1 and q == 1:
                        a(f"v_add_u32 v{vK}, {U*1024}, v{vK}")
                        a(f"v_add_u32 v{vV}, v{vInc}, v{vV}")
                elif tok == "D":
                    if 2 * u + q == env("ATT_PU", 1):
                        sk = a.label("keep")
                        a("s_cmp_lg_u32 s31, s32")
                        a(f"s_cbranch_scc1 {sk}")
                        a("s_setprio 0")
                        a(f"{sk}:")
                elif tok == "S":
                    if u == U - 1 and q == 1:
                        a("s_sub_u32 s31, s31, 1")
                        a("s_cmp_lg_u32 s31, s34")
    if "S" not in order:
        a("s_sub_u32 s31, s31, 1")
        a("s_cmp_lg_u32 s31, s34")
    a(f"s_cbranch_scc1 {lp}")
    a("s_cmp_lg_u32 s31, 0")
    a(f"s_cbranch_scc1 {hook}")
    a(f"{exitc}:")
    a("s_cmp_lg_u32 s33, 0")
    a(f"s_cbranch_scc1 {hp}")
    a("s_setprio 0")
    a(f"{SMF} {vr(O[1],16)}, {vr(VF[1]+4,4)}, {vr(S[1]+8,8)}, v{vIx}")
    stamp(a, SB + 4)
    a(f"ds_write_b128 v{vPA}, {vr(O[0],4)}")
    a(f"ds_write_b128 v{vPA}, {vr(O[0]+4,4)} offset:1024")
    a(f"ds_write_b32 v{vPA+2}, v{O[0]+8} offset:2048")
    a("s_lshl_b32 s22, s20, 15")
    a("s_lshl_b32 s23, s19, 10")
    a("s_add_u32 s22, s22, s23")
    a(f"s_add_u32 s22, s22, s{S_BASE}")
    a(f"s_add_u32 s22, s22, {B_O:#x}")
    a(f"s_lshl_b32 s{S_SIG}, s20, 8")
    a(f"s_add_u32 s{S_SIG}, s{S_SIG}, s{S_FL}")
    a(f"s_add_u32 s{S_SIG}, s{S_SIG}, {FL_A:#x}")
    a("s_waitcnt vmcnt(0) lgkmcnt(0)")
    a("s_barrier")
    a(f"ds_read_b32 v{S[0]+8}, v{vPP+2} offset:2048")
    a(f"ds_read_b128 {vr(S[0],4)}, v{vPP}")
    a(f"ds_read_b128 {vr(S[0]+4,4)}, v{vPP} offset:1024")
    OO = O[1]
    a("s_waitcnt lgkmcnt(2)")
    a(f"v_add_f32 v{OO+8}, v{OO+8}, v{S[0]+8}")
    a(f"v_rcp_f32 v{t0}, v{OO+8}")
    for i in range(0, 8, 2):
        if i % 4 == 0:
            a(f"s_waitcnt lgkmcnt({1 - i // 4})")
        a(f"v_pk_add_f32 {vr(OO+i,2)}, {vr(OO+i,2)}, {vr(S[0]+i,2)}")
    fin, fb, endl = a.label("fin"), a.label("fallback"), a.label("att_end")
    a(f"v_pk_add_f32 {vr(S[0],2)}, {vr(OO,2)}, {vr(OO+2,2)}")
    a(f"v_pk_add_f32 {vr(S[0]+2,2)}, {vr(OO+4,2)}, {vr(OO+6,2)}")
    a(f"v_pk_add_f32 {vr(S[0],2)}, {vr(S[0],2)}, {vr(S[0]+2,2)}")
    a(f"v_add_f32 v{t1}, v{S[0]}, v{S[0]+1}")
    a(f"v_fma_f32 v{t1}, 0, v{t1}, v{OO+8}")
    a(f"v_cmp_ngt_f32 vcc, {f32bits(2.0**64):#x}, v{t1}")
    a("s_nop 0")
    a(f"s_cbranch_vccnz {fb}")
    a(f"{fin}:")
    assert t0 % 2 == 0
    for i in range(0, 8, 2):
        a(f"v_pk_mul_f32 {vr(OO+i,2)}, {vr(OO+i,2)}, {vr(t0,2)} op_sel_hi:[1,0]")
    for i in range(4):
        a(f"v_cvt_pk_bf16_f32 v{P+i}, v{OO+2*i}, v{OO+2*i+1}")
    a(f"buffer_store_dwordx4 {vr(P,4)}, v{V_L16}, s[4:7], s22 offen{SC}")
    a("s_barrier")
    stamp(a, SB + 5)
    a(f"s_branch {endl}")
    a(f"{back}:")
    a("s_cmp_lg_u32 s31, 0")
    a(f"s_cbranch_scc1 {lp}")
    a("s_sub_u32 s39, s39, 1")
    a("s_cmp_eq_u32 s39, 0")
    a("s_cselect_b32 s33, 0, s33")
    a(f"s_branch {exitc}")
    a(f"{hook}:")
    a("s_cmp_eq_u32 s27, 0")
    a(f"s_cbranch_scc0 {hp}")
    a("s_barrier")
    a("s_mov_b32 s34, s33")
    a("s_mov_b32 s33, 0")
    a(f"s_add_u32 s23, s34, s{S_IT}")
    a("s_cmp_lg_u32 s23, 0")
    a(f"s_cbranch_scc1 {back}")
    a.c("residual tile of x for the first output projection")
    a(f"v_and_b32 v{V_TF}, 31, v0")
    a(f"v_lshlrev_b32 v{V_TF}, 10, v{V_TF}")
    a(f"v_lshrrev_b32 v{V_TF+1}, 5, v0")
    a(f"v_lshl_add_u32 v{V_TF}, v{V_TF+1}, 4, v{V_TF}")
    a(f"s_and_b32 s23, s{S_WAVE}, 1")
    a(f"s_add_u32 s23, s23, s{S_TT64}")
    a("s_lshl_b32 s23, s23, 15")
    a(f"s_lshl_b32 s24, s{S_NT64}, 1")
    a(f"s_lshr_b32 s25, s{S_WAVE}, 1")
    a("s_add_u32 s24, s24, s25")
    a("s_lshl_b32 s24, s24, 6")
    a("s_add_u32 s23, s23, s24")
    a(f"buffer_load_dwordx4 {vr(V_RES,4)}, v{V_TF}, s[8:11], s23 offen")
    a(f"buffer_load_dwordx4 {vr(V_RES+4,4)}, v{V_TF}, s[8:11], s23 offen offset:32")
    a(f"s_branch {back}")
    a(f"{hp}:")
    hs = [a.label(f"hs{i}") for i in range(8)]
    for i in (1, 2, 3, 4, 5, 6):
        a(f"s_cmp_eq_u32 s33, {i}")
        a(f"s_cbranch_scc1 {hs[i]}")
    HS = -9
    def goto(step, gap):
        a(f"s_mov_b32 s33, {step}")
        a(f"s_max_u32 s34, s34, {gap}")
        a(f"s_sub_u32 s34, s34, {gap}")
        a(f"s_branch {back}")
    def next_step(i):
        goto(i + 1, env(f"ATT_G{i}", 3))
    a.c("fetch the last rounds of the down weights into free registers")
    a(f"s_mul_i32 s23, s{S_NT64}, {224*1024}")
    a("s_lshl_b32 s62, s26, 12")
    a("s_add_u32 s23, s23, s62")
    a(f"s_add_u32 s23, s23, {WS_WD + (14 - NPRE)*RB:#x}")
    assert VS + (14 - NPRE) * 16 >= V_TF
    for k in range(NPRE):
        for i in range(4):
            a(f"buffer_load_dwordx4 {vr(VS + (14-NPRE+k)*16 + 4*i, 4)}, v{V_L16}, s[4:7], s23 offen offset:{i*1024}{SC}")
        a(f"s_add_u32 s23, s23, {RB}")
    a("s_mov_b32 s33, 0")
    a("s_mov_b32 s34, 0")
    a(f"s_branch {back}")
    a(f"{hs[1]}:")
    if 1 - HS in (0, 1):
        stamp(a, 2 * (1 - HS))
    nost = a.label("nostore")
    a("s_cmp_ge_u32 s2, 232")
    a(f"s_cbranch_scc1 {nost}")
    a("s_lshl_b32 s62, s26, 12")
    a(f"s_add_u32 s62, s62, {XB + 12288}")
    a(f"v_add_u32 v{vS}, s62, v{V_L16}")
    a(f"v_and_b32 v{vC}, 1, v0")
    a(f"v_bfe_u32 v{vC+1}, v0, 1, 1")
    a(f"v_lshl_add_u32 v{vC}, v{vC}, 1, v{vC+1}")
    a(f"v_lshrrev_b32 v{vR}, 5, v0")
    a(f"v_bfe_u32 v{vC+1}, v0, 2, 2")
    a(f"v_lshl_add_u32 v{vR}, v{vR}, 3, v{vC+1}")
    a(f"v_lshlrev_b32 v{vR}, 7, v{vR}")
    a(f"v_lshl_add_u32 v{vR}, v{vC}, 3, v{vR}")
    a("s_cmp_eq_u32 s91, 0")
    a("s_cselect_b32 s54, 5, 11")
    a("s_cselect_b32 s55, 64, 32")
    a("s_cselect_b32 s78, 2048, 64")
    a(f"v_bfe_u32 v{vC+1}, v0, 4, 1")
    a(f"v_lshlrev_b32 v{vC+1}, s54, v{vC+1}")
    a(f"v_add3_u32 v{vR}, v{vR}, v{vC+1}, s62")
    a(f"v_add_u32 v{vR+1}, s55, v{vR}")
    a(f"v_add_u32 v{vR+2}, s78, v{vR}")
    a(f"v_add_u32 v{vC+4}, s78, v{vR+1}")
    tr_addr = [vR, vR + 1, vR + 2, vC + 4]
    dests = (96, 97, 100, 101)
    a("s_mov_b32 s49, 0x3f803f80")
    a("s_waitcnt vmcnt(0)")
    for half in range(2):
        dst = G_ if half == 0 else F
        for g8 in range(2):
            for h in range(2):
                a(f"ds_write_b128 v{vS}, {vr(F+16*half+8*g8+4*h,4)} offset:{h*2048 + g8*1024}")
        for t in range(4):
            for jj in range(2):
                a(f"ds_read_b64_tr_b16 {vr(dst+4*t+2*jj,2)}, v{tr_addr[t]} offset:{jj*512}")
        a("s_waitcnt lgkmcnt(0)")
        for t in range(4):
            a(f"s_mul_i32 s62, s{76+half}, s{72+t}")
            a(f"s_add_u32 s62, s62, s{dests[t]}")
            if not env("X_NOST", 0):
                a(f"buffer_store_dwordx4 {vr(dst+4*t,4)}, v{V_L16}, s[4:7], s62 offen{'' if env('X_PLAIN', 0) else SC}")
    a("s_cmp_eq_u32 s63, 0")
    a(f"s_cbranch_scc1 {nost}")
    if env("X_NOCS", 0):
        a(f"s_branch {nost}")
    for t in range(4):
        a(f"v_mov_b32 v{vC+t}, 0")
    for k in range(4):
        for t in range(4):
            a(f"v_dot2c_f32_bf16 v{vC+t}, s49, v{G_+4*t+k}")
        for t in range(4):
            a(f"v_dot2c_f32_bf16 v{vC+t}, s49, v{F+4*t+k}")
    a("s_lshl_b32 s62, s26, 9")
    a(f"v_add_u32 v{vS}, s62, v{V_L4}")
    a(f"v_mov_b32 v{vR}, 1")
    a(f"v_mov_b32 v{vR+1}, {CNT}")
    a(f"v_permlane32_swap_b32 v{vC}, v{vC+1}")
    a(f"v_permlane32_swap_b32 v{vC+2}, v{vC+3}")
    a("s_nop 0")
    a(f"v_add_f32 v{vC}, v{vC}, v{vC+1}")
    a(f"v_add_f32 v{vC+2}, v{vC+2}, v{vC+3}")
    a(f"ds_write_b32 v{vS}, v{vC} offset:{CSA}")
    a(f"ds_write_b32 v{vS}, v{vC+2} offset:{CSA + 256}")
    a("s_mov_b64 exec, 1")
    a(f"ds_add_rtn_u32 v{vR+2}, v{vR+1}, v{vR}")
    a("s_mov_b64 exec, -1")
    a("s_waitcnt lgkmcnt(0)")
    a(f"v_readfirstlane_b32 s62, v{vR+2}")
    a("s_nop 0")
    a("s_cmp_lg_u32 s62, 3")
    a(f"s_cbranch_scc1 {nost}")
    a.c("last of the four waves: write the column-sum pieces")
    for w in range(4):
        for p in range(2):
            a(f"ds_read_b32 v{F+16+2*w+p}, v{V_L4} offset:{CSA + w*512 + p*256}")
    for t in range(4):
        a(f"s_lshl_b32 s62, s{72+t}, 5")
        a(f"s_add_u32 s{dests[t]}, s{dests[t]}, s62")
    a("s_lshr_b32 s92, s79, 1")
    a("s_lshl_b32 s92, s92, 9")
    a("s_and_b32 s62, s79, 1")
    a("s_lshl_b32 s62, s62, 3")
    a("s_add_u32 s92, s92, s62")
    a("v_cmp_gt_u32 vcc, 32, v0")
    a(f"v_and_b32 v{vS}, 0x1ff, v{V_L16}")
    for p in range(2):
        a(f"v_mov_b32 v{vC}, s{dests[2*p]}")
        a(f"v_mov_b32 v{vC+1}, s{dests[2*p+1]}")
        a(f"v_cndmask_b32 v{vC}, v{vC+1}, v{vC}, vcc")
        a(f"v_add_u32 v{vR+p}, v{vC}, v{vS}")
    a("s_waitcnt lgkmcnt(0)")
    for p in range(2):
        c, o = F + 16 + p, F + 24 + 2 * p
        for w in range(1, 4):
            a(f"v_add_f32 v{c}, v{c}, v{c+2*w}")
        a(f"v_cvt_pk_bf16_f32 v{o}, v{c}, v{c}")
        a(f"v_lshlrev_b32 v{o}, 16, v{o}")
        a(f"v_sub_f32 v{o}, v{c}, v{o}")
        a(f"v_cvt_pk_bf16_f32 v{o}, v{c}, v{o}")
        a(f"v_mov_b32 v{o+1}, v{o}")
        a(f"buffer_store_dwordx2 {vr(o,2)}, v{vR+p}, s[4:7], s92 offen{SC}")
    a(f"{nost}:")
    next_step(1)
    a(f"{hs[2]}:")
    if 2 - HS in (0, 1):
        stamp(a, 2 * (2 - HS))
    nsig = a.label("nosig")
    a(f"v_mov_b32 v{vR}, 1")
    a(f"v_mov_b32 v{vR+1}, {CNT + 4}")
    a("s_waitcnt vmcnt(0)")
    a("s_mov_b64 exec, 1")
    a(f"ds_add_rtn_u32 v{vR+2}, v{vR+1}, v{vR}")
    a("s_mov_b64 exec, -1")
    a("s_and_b32 s23, s2, 15")
    a("s_lshl_b32 s23, s23, 8")
    a(f"s_add_u32 s23, s23, {FL_W:#x}")
    a("s_mov_b32 s38, 1")
    a("s_waitcnt lgkmcnt(0)")
    a(f"v_readfirstlane_b32 s62, v{vR+2}")
    a("s_nop 0")
    a("s_cmp_lg_u32 s62, 3")
    a(f"s_cbranch_scc1 {nsig}")
    a("s_atomic_add s38, s[14:15], s23")
    a(f"{nsig}:")
    if env("WARM", 1):
        a.c("pull the rest of the code into L2 and touch every workspace page once")
        here = a.label("here")
        a("s_getpc_b64 s[98:99]")
        a(f"{here}:")
        a("s_lshl_b32 s62, s26, 13")
        a(f"v_add_u32 v{vC}, s62, v{V_L128}")
        a(f"v_min_u32 v{vC}, {code_end} - {here}, v{vC}")
        a(f"v_lshlrev_b32 v{vC+1}, 20, v0")
        a(f"global_load_dword v{V_PF}, v{vC}, s[98:99]")
        a(f"buffer_load_dword v{V_PF}, v{vC+1}, s[4:7], 0 offen sc1")
    next_step(2)
    a(f"{hs[3]}:")
    a.c("the re-tiled weights are complete once all 16 arrival counters are")
    a(f"s_cmp_lg_u32 s{S_WAVE}, 4")
    a(f"s_cbranch_scc1 {hs[5]}")
    ask = a.label("ask")
    a(f"{ask}:")
    a(f"v_and_b32 v{vS}, 15, v0")
    a(f"v_lshlrev_b32 v{vS}, 8, v{vS}")
    a(f"s_mov_b32 s23, {WS_FLAG + FL_W:#x}")
    a(f"buffer_load_dword v{vR}, v{vS}, s[4:7], s23 offen sc1")
    goto(4, 1)
    a(f"{hs[4]}:")
    a("s_waitcnt vmcnt(0)")
    a(f"v_cmp_gt_u32 vcc, 16, v{vR}")
    a(f"v_mov_b32 v{vS}, {CNT + 8}")
    a(f"s_cbranch_vccnz {ask}")
    a(f"ds_write_b32 v{vS}, v{vS}")
    a(f"s_branch {hs[6]}")
    a(f"{hs[5]}:")
    a(f"v_mov_b32 v{vS}, {CNT + 8}")
    a(f"ds_read_b32 v{vR}, v{vS}")
    a("s_waitcnt lgkmcnt(0)")
    a(f"v_cmp_eq_u32 vcc, 0, v{vR}")
    a("s_nop 0")
    a(f"s_cbranch_vccz {hs[6]}")
    goto(5, 1)
    a(f"{hs[6]}:")
    a("s_add_u32 s23, s50, 8192")
    a(f"buffer_load_dword v{V_PF}, v{V_L128}, s[4:7], s51 offen{SC}")
    a(f"buffer_load_dword v{V_PF}, v{V_L128}, s[4:7], s50 offen{SC}")
    a(f"buffer_load_dword v{V_PF}, v{V_L128}, s[4:7], s23 offen{SC}")
    goto(7, env("ATT_G6", 2))
    a(f"{fb}:")
    a(f"v_add_u32 v{vK}, {KB}, v{V_L16}")
    a(f"v_mov_b32 v{t0}, 0xff800000")
    a("s_mov_b32 s31, 64")
    lp2 = a.label("maxl")
    a(f"{lp2}:")
    a(f"ds_read_b128 {vr(KF[0],4)}, v{vK}")
    a(f"v_add_u32 v{vK}, 1024, v{vK}")
    a("s_waitcnt lgkmcnt(0)")
    a(f"{MFMA} {vr(S[0],16)}, {vr(KF[0],4)}, {vr(Q[1],4)}, 0")
    a("s_nop 15")
    for i in range(0, 16, 2):
        a(f"v_max3_f32 v{t0}, v{t0}, v{S[0]+i}, v{S[0]+i+1}")
    a("s_sub_u32 s31, s31, 1")
    a("s_cmp_lg_u32 s31, 0")
    a(f"s_cbranch_scc1 {lp2}")
    a(f"v_mov_b32 v{t1}, v{t0}")
    a("s_nop 1")
    a(f"v_permlane32_swap_b32 v{t0}, v{t1}")
    a("s_nop 1")
    a(f"v_max_f32 v{t0}, v{t0}, v{t1}")
    for i in range(16):
        a(f"v_sub_f32 v{NM[0]+i}, 0, v{t0}")
        a(f"v_mov_b32 v{OO+i}, 0")
    a(f"v_add_u32 v{vK}, {KB}, v{V_L16}")
    a(f"v_mov_b32 v{vV}, v{vV0}")
    a(f"v_lshrrev_b32 v{vInc}, {U.bit_length()-1}, v{vInc}")
    a("s_mov_b32 s31, 64")
    lp3 = a.label("pass2")
    a(f"{lp3}:")
    a(f"ds_read_b128 {vr(KF[0],4)}, v{vK}")
    a(f"ds_read_b128 {vr(VF[0],4)}, v{vV}")
    a(f"ds_read_b128 {vr(VF[0]+4,4)}, v{vV} offset:512")
    a(f"v_add_u32 v{vK}, 1024, v{vK}")
    a(f"v_add_u32 v{vV}, v{vInc}, v{vV}")
    a("s_waitcnt lgkmcnt(0)")
    a(f"{MFMA} {vr(S[0],16)}, {vr(KF[0],4)}, {vr(Q[1],4)}, {vr(NM[0],16)}")
    a("s_nop 15")
    for i in range(16):
        a(f"v_exp_f32 v{S[0]+i}, v{S[0]+i}")
    a("s_nop 0")
    for j in range(8):
        a(f"v_cvt_pk_bf16_f32 v{P+j}, v{S[0]+2*j}, v{S[0]+2*j+1}")
    a("s_nop 1")
    a(f"{MFMA} {vr(OO,16)}, {vr(VF[0],4)}, {vr(P,4)}, {vr(OO,16)}")
    a(f"{MFMA} {vr(OO,16)}, {vr(VF[0]+4,4)}, {vr(P+4,4)}, {vr(OO,16)}")
    a("s_sub_u32 s31, s31, 1")
    a("s_cmp_lg_u32 s31, 0")
    a("s_nop 7")
    a(f"s_cbranch_scc1 {lp3}")
    a("s_nop 15")
    a(f"v_rcp_f32 v{t0}, v{OO+8}")
    a("s_nop 0")
    a(f"s_branch {fin}")
    a(f"{endl}:")
    return R.n


def gen_main(a):
    name = NAME + "_kernel"
    kernel_header(a, name)
    done = a.label("done")
    a("s_cmp_ge_u32 s2, 256")
    a(f"s_cbranch_scc1 {done}")
    a(f"s_load_dwordx4 s[64:67], s[0:1], {KA_X}")
    a.c("pull the first 8 KB of code into L2 (one 128-byte line per 8 lanes of the workgroup)")
    a("s_getpc_b64 s[98:99]")
    a(f"v_lshlrev_b32 v{V_FREE}, 4, v0")
    a(f"global_load_dword v{V_PF}, v{V_FREE}, s[98:99]")
    a(f"s_and_b32 s{S_XCD}, s2, 7")
    a("s_bfe_u32 s19, s2, 0x20003")
    a(f"s_lshl2_add_u32 s19, s{S_XCD}, s19")
    a("v_lshrrev_b32 v1, 6, v0")
    a("v_and_b32 v0, 63, v0")
    a(f"v_lshlrev_b32 v{V_L16}, 4, v0")
    a(f"v_lshl_add_u32 v{V_FREE}, s19, 3, v1")
    a(f"v_lshl_add_u32 v{V_FREE}, v{V_FREE}, 13, v{V_L16}")
    a("s_waitcnt lgkmcnt(0)")
    a("s_add_u32 s20, s64, 4096")
    a("s_addc_u32 s21, s65, 0")
    for r in range(8):
        a(f"global_load_dwordx4 {vr(V_FREE+4+4*r,4)}, v{V_FREE}, s[20:21] offset:{r*1024-4096}")
    a(f"s_load_dwordx2 s[68:69], s[0:1], {KA_WO}")
    a(f"s_load_dwordx4 s[72:75], s[0:1], {KA_WG}")
    a(f"s_load_dwordx2 s[76:77], s[0:1], {KA_WD}")
    a(f"s_load_dwordx2 s[70:71], s[0:1], {KA_OUT}")
    a(f"s_load_dwordx2 s[94:95], s[0:1], {KA_DBG}")
    a(f"s_load_dwordx2 s[12:13], s[0:1], {KA_WS}")
    a(f"v_readfirstlane_b32 s{S_WAVE}, v1")
    a(f"v_lshlrev_b32 v{V_L128}, 7, v0")
    a(f"s_lshr_b32 s{S_IDX}, s2, 3")
    srd(a, 20, 66, 67, 512 * 1536 * 2)
    if env("TOUCH", 1):
        a.c("cooperative first touch of wqkv: 6 KB per wave")
        a(f"s_lshl3_add_u32 s27, s{S_IDX}, s{S_WAVE}")
        a("s_mul_i32 s27, s27, 6144")
        a("s_mov_b32 exec_hi, 0xffff")
        a(f"buffer_load_dword v{V_PF}, v{V_L128}, s[20:23], s27 offen")
        a("s_mov_b64 exec, -1")
    a(f"s_and_b32 s{S_TT128}, s{S_IDX}, 3")
    a(f"s_lshr_b32 s19, s{S_XCD}, 1")
    a("s_lshl_b32 s19, s19, 2")
    a(f"s_add_u32 s{S_TT128}, s{S_TT128}, s19")
    a(f"s_lshl_b32 s{S_TT128}, s{S_TT128}, 2")
    a(f"s_lshr_b32 s{S_NT128}, s{S_IDX}, 2")
    a(f"s_and_b32 s19, s{S_XCD}, 1")
    a("s_lshl_b32 s19, s19, 3")
    a(f"s_add_u32 s{S_NT128}, s{S_NT128}, s19")
    a(f"s_and_b32 s{S_TT64}, s{S_IDX}, 3")
    a(f"s_lshl_b32 s19, s{S_XCD}, 2")
    a(f"s_add_u32 s{S_TT64}, s{S_TT64}, s19")
    a(f"s_lshl_b32 s{S_TT64}, s{S_TT64}, 1")
    a(f"s_lshr_b32 s{S_NT64}, s{S_IDX}, 2")
    a(f"s_mov_b32 s{S_IT}, 0")
    a(f"s_mov_b32 s{S_BASE}, {WS_IT0:#x}")
    a(f"s_mov_b32 s{S_FL}, 0")
    a(f"s_mov_b32 s{S_SIG}, 0")
    a(f"v_and_b32 v{V_ST}, 31, v0")
    a(f"v_lshlrev_b32 v{V_ST}, 3, v{V_ST}")
    a(f"v_lshrrev_b32 v1, 5, v0")
    a(f"v_lshl_add_u32 v{V_ST}, v1, 2, v{V_ST}")
    a(f"v_lshlrev_b32 v{V_L4}, 2, v0")
    if STAMP:
        a(f"v_mov_b32 v{V_STAMP}, 0")
        a(f"v_mov_b32 v{V_STAMP+1}, 0")
    stamp(a, 31)
    att, fin = a.label("att"), a.label("fin")
    nv = [first_phase(a, att, done)]
    a(f"{att}:")
    nv.append(attn_phase(a, 5, done))
    S = Stream(a)
    if GMX == 4:
        a(f"s_mov_b32 s{S_TTG}, s{S_TT128}")
        a(f"s_mov_b32 s{S_NTG}, s{S_NT128}")
    else:
        a(f"s_and_b32 s{S_TTG}, s{S_IDX}, 1")
        a(f"s_lshl_b32 s19, s{S_XCD}, 1")
        a(f"s_add_u32 s{S_TTG}, s{S_TTG}, s19")
        a(f"s_lshl_b32 s{S_TTG}, s{S_TTG}, 2")
        a(f"s_lshr_b32 s{S_NTG}, s{S_IDX}, 1")
    nv.append(gemm_phase(a, Cfg(name="oproj", kind="res", LB=5 * RB, XB=0, stream=S, PRE1=4, PRE2=0, PRE3=1, NW=2, NT=2, KST=32, NR=4, RA=16, N1=2, N2=2, N3=9, N4=9, BS=4, I0=8, PS=2, STS=0,
                                swap=[0, 0], ABUF=B_O, WBASE=WS_WO, WNT=64 * 1024, OUT=B_X1, STOUT=B_ST1,
                                FIN=FL_A, lsig=True, NEED=32, FOUT=FL_O, final=False, sb=12,
                                staged=[], stage_next=None, order=None)))
    nv.append(mlp_phase(a, Cfg(name="down", stream=S, OUT=B_XIN + IT_STRIDE, STOUT=B_STIN + IT_STRIDE, final=True, sb=22)))
    a(f"s_cmp_eq_u32 s{S_IT}, 1")
    a(f"s_cbranch_scc1 {fin}")
    a(f"s_mov_b32 s{S_IT}, 1")
    a(f"s_add_u32 s{S_BASE}, s{S_BASE}, {IT_STRIDE:#x}")
    a(f"s_add_u32 s{S_FL}, s{S_FL}, {FL_IT:#x}")
    nv.append(gemm_phase(a, Cfg(name="qkv", kind="qkv", LB=0, XB=1, stream=None, NW=3, NT=3, KST=32, NR=7, RA=24, N1=2, N2=5, N3=9, N4=9, BS=8, I0=12, PS=1, STS=10,
                                swap=[0, 0, 1], ABUF=B_XIN, WBASE=WS_WQKV, WNT=99 * 1024, STIN=B_STIN,
                                FIN=FL_D - FL_IT + (1 << 32), lsig=False, NEED=16, FOUT=FL_Q, sb=0,
                                staged=[], stage_next=None, order=None)))
    a(f"s_branch {att}")
    a(f"{fin}:")
    if STAMP:
        a("s_waitcnt vmcnt(0)")
        a(f"s_mov_b32 s{S_IT}, 1")
        stamp(a, 31)
        stamp_flush(a)
        if env("DBGOUT", 0):
            nd = a.label("nodbg")
            a("s_lshl_b32 s54, s2, 3")
            a(f"s_add_u32 s54, s54, s{S_WAVE}")
            a(f"s_cmp_lg_u32 s54, {env('DBGOUT', 0)}")
            a(f"s_cbranch_scc1 {nd}")
            idx = [31, 27, 28, 29, 30, 8, 9, 13, 18, 23, 33, 40, 41, 50, 55, 63]
            a(f"v_readlane_b32 s55, v{V_STAMP}, 31")
            for i, k in enumerate(idx):
                a(f"v_readlane_b32 s54, v{V_STAMP}, {k}")
                a("s_nop 3")
                a("s_sub_u32 s54, s54, s55")
                a(f"v_writelane_b32 v{V_FREE}, s54, {i}")
            a("s_mov_b64 exec, 0xfffe")
            a(f"global_store_dword v{V_L4}, v{V_FREE}, s[94:95]")
            a(f"{nd}:")
    a(f"{done}:")
    a("s_endpgm")
    print("phase vgprs", nv, file=sys.stderr)
    nv.append(V_TF + 58)
    assert max(nv) <= 256
    return (name, max(nv), 256, 512, LDS_MAX)


HEADER = open("cdna_kernels/" + NAME + ".s.ref").read().split("; Override launch")[0]

def main(out):
    a = Asm()
    k, v, nwg, blk, lds = gen_main(a)
    txt = HEADER
    if env("ASLIST", 0):
        txt += f"; @launch kernel={k} grid=({nwg},1,1) block=({blk},1,1) lds={lds}\n"
    else:
        txt += f"; @launch grid=({nwg},1,1) block=({blk},1,1) lds={lds}\n"
    txt += '.amdgcn_target "amdgcn-amd-amdhsa--gfx950"\n.text\n'
    txt += a.text()
    txt += '.section .rodata,"a"\n'
    txt += kernel_desc(k, v, 102)
    print(f"{k}: vgpr={v} lds={lds}", file=sys.stderr)
    open(out, "w").write(txt)

if __name__ == "__main__":
    main(sys.argv[1] if len(sys.argv) > 1 else "v2.s")
```

```python
import sys, struct, math, os
from asmlib import *

NAME = "interleave_layers__mha_block__glu_gated_bilinear__prompt"
def env(k, d):
    return int(os.environ.get(k, d))

WS_WQKV = 0x000000
WS_WO   = 0x200000
WS_WGU  = 0x300000
WS_WD   = 0x700000
WS_FLAG = 0x8C0000
FL_IT = 0xC000
FL_Q, FL_W, FL_G, FL_T = 0x0, 0x1000, 0x4000, 0x8000
FL_A, FL_O, FL_D = FL_T, FL_T + 4, FL_T + 8
WS_IT0 = 0xA00000
IT_STRIDE = 0x1400000
B_Q, B_K, B_V, B_O, B_X1, B_XIN, B_H, B_ST1, B_STIN = (
    0x0, 0x200000, 0x400000, 0x600000, 0x800000, 0xA00000, 0xC00000, 0x1300000, 0x1340000)
WS_END = WS_IT0 + 2 * IT_STRIDE
WS_STAMP = WS_END
LDS_MAX = 160 * 1024

KA_X, KA_WQKV, KA_WO, KA_BX, KA_WG, KA_WU, KA_WD, KA_OUT, KA_DBG, KA_WS = [8 * i for i in range(10)]

def f32bits(x):
    return struct.unpack("<I", struct.pack("<f", x))[0]

QSCALE = 0.25 * math.log2(math.e)
MFMA = "v_mfma_f32_32x32x16_bf16"
SMF = "v_smfmac_f32_32x32x32_bf16"
M16 = "v_mfma_f32_16x16x32_bf16"
WNT_Q, WNT_G = 102 * 1024, 238 * 1024
STAMP = os.environ.get("STAMP", "") != ""
SC = " sc1"
SPIN_MAX = 1 << 18
PASSES = [int(x) for x in os.environ.get("PASSES", "4,2,1").split(",")]
PFIRST = [sum(PASSES[:p]) for p in range(len(PASSES))]
assert sum(PASSES) == 7

def pass_of(a, si, sf, sw):
    a(f"s_mov_b32 s{sf}, 0")
    a(f"s_mov_b32 s{sw}, {PASSES[0]}")
    for p in range(1, len(PASSES)):
        a(f"s_cmp_ge_u32 s{si}, {PFIRST[p]}")
        a(f"s_cselect_b32 s{sf}, {PFIRST[p]}, s{sf}")
        a(f"s_cselect_b32 s{sw}, {PASSES[p]}, s{sw}")
GMX = env('GMX', 4)
PT = env('PT', 0)

def srd(a, d, lo, hi, nbytes):
    a(f"s_mov_b32 s{d}, s{lo}")
    a(f"s_and_b32 s{d+1}, s{hi}, 0xffff")
    a(f"s_mov_b32 s{d+2}, {nbytes:#x}")
    a(f"s_mov_b32 s{d+3}, 0x20000")

S_WAVE, S_XCD, S_IDX, S_IT, S_BASE, S_FL = 16, 17, 18, 40, 41, 42
S_TT64, S_NT64, S_TT128, S_NT128 = 43, 44, 45, 46
S_TTG, S_NTG, S_TCH = 68, 69, 47
S_ARR, S_SIG = 47, 48
LDS_CNT = LDS_MAX - 16
V_L16, V_ST, V_L4 = 2, 3, 1
V_RES = 4
V_STAMP = 12
V_P16 = 15
V_PF, V_L128 = 14, 15
V_FREE = 16

def stamp(a, i):
    if STAMP:
        a("s_memrealtime s[56:57]")
        a("s_memtime s[58:59]")
        a(f"s_lshl_b32 s60, s{S_IT}, 5")
        a(f"s_add_u32 s60, s60, {i}")
        a("s_waitcnt lgkmcnt(0)")
        a("s_mov_b32 s61, m0")
        a("s_mov_b32 m0, s60")
        a("s_nop 0")
        a(f"v_writelane_b32 v{V_STAMP}, s56, m0")
        a(f"v_writelane_b32 v{V_STAMP+1}, s58, m0")
        a("s_mov_b32 m0, s61")

def stamp_flush(a, which=0):
    if STAMP:
        a("s_lshl_b32 s60, s2, 3")
        a(f"s_add_u32 s60, s60, s{S_WAVE}")
        a("s_lshl_b32 s60, s60, 9")
        a(f"s_add_u32 s60, s60, {WS_STAMP + which*0x100000:#x}")
        a(f"s_mov_b32 s6, {WS_STAMP + 0x200000:#x}")
        a(f"buffer_store_dword v{V_STAMP}, v{V_L4}, s[4:7], s60 offen")
        a(f"buffer_store_dword v{V_STAMP+1}, v{V_L4}, s[4:7], s60 offen offset:256")

def handoff(a, soff, need):
    a("s_mov_b32 s38, 1")
    a(f"s_atomic_add s38, s[14:15], s{S_SIG}")
    if env("PD", 0):
        a("s_waitcnt lgkmcnt(0)")
    poll(a, soff, need)

def poll(a, soff, need):
    lp, ok = a.label("poll"), a.label("pok")
    a(f"s_mov_b32 s39, {SPIN_MAX}")
    a(f"{lp}:")
    a("s_mov_b32 s49, 0")
    a(f"s_atomic_add s49, s[14:15], s{soff} glc")
    a("s_sub_u32 s39, s39, 1")
    a("s_waitcnt lgkmcnt(0)")
    a(f"s_cmp_ge_u32 s49, {need}")
    a(f"s_cbranch_scc1 {ok}")
    if env("POLL_SLEEP", 1):
        a(f"s_sleep {env('POLL_SLEEP', 1)}")
    a("s_cmp_lg_u32 s39, 0")
    a(f"s_cbranch_scc1 {lp}")
    a(f"{ok}:")


V_TF = 176

def first_phase(a, end_label, code_end):
    XB_ = 528
    XT = 64 * XB_
    W0 = 2 * XT
    NSW, WCH, NC = 7, 12288, 16
    assert W0 + NSW * WCH <= LDS_MAX
    FS = 27
    NPS = env("K1_NPS", 2)
    R = Regs(V_FREE)
    vD, vT0, vT1, vXW = R.alloc(), R.alloc(), R.alloc(), R.alloc()
    X = R.alloc(32)
    ST = R.alloc(16)
    U = R.alloc(16)
    vD2, vZ = R.alloc(), R.alloc()
    assert X == V_FREE + 4
    a(f"v_lshrrev_b32 v{vT0}, 3, v0")
    a(f"v_bfe_u32 v{vT1}, v0, 4, 1")
    a(f"v_lshlrev_b32 v{vT1}, 2, v{vT1}")
    a(f"v_and_b32 v{vD2}, 7, v0")
    a(f"v_xor_b32 v{vD2}, v{vD2}, v{vT1}")
    a(f"v_lshlrev_b32 v{vD2}, 4, v{vD2}")
    a(f"v_mul_u32_u24 v{vD}, 3072, v{vT0}")
    a(f"v_add_u32 v{vD}, v{vD}, v{vD2}")
    a(f"s_and_b32 s50, s{S_WAVE}, 3")
    a("s_waitcnt lgkmcnt(0)")
    srd(a, 8, 64, 65, 2048 * 512 * 2)
    srd(a, 4, 12, 13, WS_END)
    a.c("wave 7 of the first workgroups resets 64 hand-off counters each")
    NZ = 2 * FL_IT // 16384
    nz = a.label("nozero")
    a(f"s_sub_u32 s47, 7, s{S_WAVE}")
    a("s_lshl_b32 s47, s47, 8")
    a("s_add_u32 s47, s47, s2")
    a(f"s_cmp_ge_u32 s47, {NZ}")
    a(f"s_cbranch_scc1 {nz}")
    a(f"v_lshlrev_b32 v{ST}, 8, v0")
    for i in range(4):
        a(f"v_mov_b32 v{ST+4+i}, 0")
    a("s_lshl_b32 s54, s2, 14")
    a(f"s_add_u32 s54, s54, {WS_FLAG:#x}")
    a(f"buffer_store_dwordx4 {vr(ST+4,4)}, v{ST}, s[4:7], s54 offen sc1")
    a(f"{nz}:")
    TOUCH = env("TOUCH", 1)
    a(f"s_add_u32 s14, s12, {WS_FLAG:#x}")
    a("s_addc_u32 s15, s13, 0")
    a("s_mov_b32 s49, 0x3f803f80")
    a(f"s_lshr_b32 s55, s{S_WAVE}, 2")
    a(f"s_mul_i32 s39, s55, {XT}")
    a("s_lshl_b32 s54, s50, 7")
    a("s_add_u32 s39, s39, s54")
    a(f"v_mul_u32_u24 v{vXW}, {XB_}, v0")
    a(f"v_add_u32 v{vXW}, s39, v{vXW}")
    a(f"s_mul_i32 s62, s50, {8*3072}")
    a(f"s_lshl_b32 s54, s{S_NT64}, 7")
    a("s_add_u32 s62, s62, s54")
    a(f"s_mul_i32 s54, s55, {NPS*32*3072}")
    a("s_add_u32 s62, s62, s54")
    a("s_lshl_b32 s63, s50, 10")
    a(f"s_add_u32 s63, s63, {W0}")
    a(f"s_mul_i32 s54, s55, {NPS*WCH}")
    a("s_add_u32 s48, s63, s54")
    def w_instr(slot, seg, base=63):
        t = f"s_add_u32 s54, s{base}, {slot*WCH + seg*3072}\ns_mov_b32 m0, s54\ns_nop 0\n"
        t += f"buffer_load_dwordx4 v{vD}, s[20:23], s62 offen offset:{seg*1024} lds"
        if seg == 2:
            t += f"\ns_add_u32 s62, s62, {32*3072}"
        return t
    dma = [w_instr(c, sg, 48) for c in range(NPS) for sg in range(3)]
    ops = []
    for r in range(8):
        ops.append(f"v_mov_b32 v{ST+r}, 0")
        ops.append(f"v_mov_b32 v{ST+8+r}, 0")
    pre = len(ops)
    for r in range(8):
        ops.append(("wait", r))
        for i in range(4):
            ops.append(f"v_dot2c_f32_bf16 v{ST+r}, s49, v{X+4*r+i}")
            ops.append(f"v_dot2c_f32_bf16 v{ST+8+r}, v{X+4*r+i}, v{X+4*r+i}")
    ops.append("s_nop 2")
    for b in (ST, ST + 8):
        for r in range(4):
            ops.append(f"v_permlane32_swap_b32 v{b+r}, v{b+r+4}")
    for b in (ST, ST + 8):
        for r in range(4):
            ops.append(f"v_add_f32 v{b+r}, v{b+r}, v{b+r+4}")
    ops.append("s_nop 1")
    for b in (ST, ST + 8):
        for r in range(2):
            ops.append(f"v_permlane16_swap_b32 v{b+r}, v{b+r+2}")
    for b in (ST, ST + 8):
        for r in range(2):
            ops.append(f"v_add_f32 v{b+r}, v{b+r}, v{b+r+2}")
    for d in ("row_ror:8", "row_ror:4", "quad_perm:[2,3,0,1]", "quad_perm:[1,0,3,2]"):
        for v in (ST, ST + 1, ST + 8, ST + 9):
            ops.append(f"v_add_f32_dpp v{v}, v{v}, v{v} {d} row_mask:0xf bank_mask:0xf")
    for r in range(2):
        ops.append(f"v_mul_f32 v{ST+r}, {f32bits(-1.0/512):#x}, v{ST+r}")
        ops.append(f"v_mul_f32 v{ST+8+r}, {f32bits(1.0/512):#x}, v{ST+8+r}")
    for r in range(2):
        ops.append(f"v_fma_f32 v{ST+8+r}, -v{ST+r}, v{ST+r}, v{ST+8+r}")
    for r in range(2):
        ops.append(f"v_max_f32 v{ST+8+r}, 0, v{ST+8+r}")
    for r in range(2):
        ops.append(f"v_add_f32 v{ST+8+r}, {f32bits(1e-5):#x}, v{ST+8+r}")
    for r in range(2):
        ops.append(f"v_rsq_f32 v{ST+8+r}, v{ST+8+r}")
    ops.append("s_nop 0")
    for r in range(2):
        ops.append(f"v_mul_f32 v{ST+r}, v{ST+r}, v{ST+8+r}")
    ops.append("s_nop 0")
    for r in range(8):
        ops.append(f"v_readlane_b32 s{78+2*r}, v{ST+8+(r&1)}, {16*(r>>1)}")
        ops.append(f"v_readlane_b32 s{79+2*r}, v{ST+(r&1)}, {16*(r>>1)}")
    for r in range(8):
        u = U + 8 * (r & 1)
        for i in range(4):
            ops.append(f"v_lshlrev_b32 v{u+2*i}, 16, v{X+4*r+i}")
            ops.append(f"v_and_b32 v{u+2*i+1}, 0xffff0000, v{X+4*r+i}")
        for i in range(4):
            ops.append(f"v_pk_fma_f32 {vr(u+2*i,2)}, {vr(u+2*i,2)}, s[{78+2*r}:{79+2*r}], s[{78+2*r}:{79+2*r}] op_sel:[0,0,1] op_sel_hi:[1,0,1]")
        for i in range(4):
            ops.append(f"v_cvt_pk_bf16_f32 v{X+4*r+i}, v{u+2*i}, v{u+2*i+1}")
        ops.append(f"ds_write_b128 v{vXW}, {vr(X+4*r,4)} offset:{r*16}")
    npre = env("K1_PRE", 2)
    issued = TOUCH
    for _ in range(npre):
        a(dma.pop(0)); issued += 1
    step_ = env("K1_STEP", 24)
    k = 0
    for j, op in enumerate(ops):
        if isinstance(op, tuple):
            a(f"s_waitcnt vmcnt({7 - op[1] + issued})")
        else:
            a(op)
        if j >= pre + env("K1_SKIP", 40) and dma:
            k += 1
            if k % step_ == 0:
                a(dma.pop(0)); issued += 1
    assert not dma
    comp = a.label("k1_comp")
    a(f"s_cmp_lt_u32 s{S_WAVE}, 4")
    a(f"s_cbranch_scc1 {comp}")
    DW = env("K1_DW", 5)
    assert 2 * NPS <= DW <= NSW - 2
    for c in range(2 * NPS, DW):
        for sg in range(3):
            a(w_instr(c, sg))
    lp = a.label("k1ld")
    a(f"s_add_u32 s48, s63, {DW*WCH}")
    a(f"s_add_u32 s39, s63, {NSW*WCH}")
    a(f"v_mov_b32 v{vT1}, 0")
    stamp(a, FS)
    a("s_waitcnt lgkmcnt(0)")
    nz = a.label("noflag")
    a(f"s_cmp_ge_u32 s47, {NZ}")
    a(f"s_cbranch_scc1 {nz}")
    a(f"s_waitcnt vmcnt({(DW - NPS)*3})")
    a("s_mov_b32 s38, 1")
    a("s_atomic_add s38, s[94:95], 0x0")
    a(f"{nz}:")
    a(f"s_mov_b32 s47, {NC-DW}")
    a(f"{lp}:")
    a(f"s_waitcnt vmcnt({(DW-1)*3})")
    a("s_barrier")
    for sg in range(3):
        a(w_instr(0, sg, 48))
    a(f"s_add_u32 s48, s48, {WCH}")
    a("s_cmp_eq_u32 s48, s39")
    a("s_cselect_b32 s48, s63, s48")
    a("s_sub_u32 s47, s47, 1")
    a("s_cmp_lg_u32 s47, 0")
    a(f"s_cbranch_scc1 {lp}")
    a(f"global_load_dword v{vZ}, v{vT1}, s[94:95] sc1")
    for c in range(NC - DW, NC):
        a(f"s_waitcnt vmcnt({(NC - 1 - c)*3 + 1})")
        a("s_barrier")
    stamp(a, FS + 2)
    a.c("the counters must have been reset before this workgroup touches them")
    lp, ok = a.label("zpoll"), a.label("zok")
    a(f"s_mov_b32 s39, {SPIN_MAX}")
    a("s_waitcnt vmcnt(0)")
    a(f"{lp}:")
    a(f"v_cmp_gt_u32 vcc, {NZ}, v{vZ}")
    a("s_sub_u32 s39, s39, 1")
    a("s_cmp_eq_u32 s39, 0")
    a(f"s_cbranch_scc1 {ok}")
    a(f"s_cbranch_vccz {ok}")
    a(f"global_load_dword v{vZ}, v{vT1}, s[94:95] sc1")
    a("s_waitcnt vmcnt(0)")
    a(f"s_branch {lp}")
    a(f"{ok}:")
    a("s_barrier")
    a(f"s_branch {end_label}")
    a(f"{comp}:")
    R2 = Regs(V_FREE + 4)
    vA, vW0, vW = R2.alloc(), R2.alloc(), R2.alloc()
    acc = [R2.alloc(16) for _ in range(3)]
    sets = [(R2.alloc(4), [R2.alloc(4) for _ in range(3)]) for _ in range(2)]
    a("s_waitcnt lgkmcnt(0)")
    a(f"s_and_b32 s24, s{S_WAVE}, 1")
    a(f"s_lshr_b32 s25, s{S_WAVE}, 1")
    a(f"s_mul_i32 s26, s24, {XT}")
    a(f"v_lshrrev_b32 v{vT0}, 5, v0")
    a(f"v_mul_u32_u24 v{vA}, {XB_}, v{vT0}")
    a(f"v_and_b32 v{vT1}, 31, v0")
    a(f"v_lshl_add_u32 v{vA}, v{vT1}, 4, v{vA}")
    a(f"v_add_u32 v{vA}, s26, v{vA}")
    a(f"v_bfe_u32 v{vT1}, v0, 2, 2")
    a(f"v_lshl_add_u32 v{vW0}, v{vT0}, 3, v{vT1}")
    a(f"v_lshlrev_b32 v{vW0}, 7, v{vW0}")
    a(f"v_and_b32 v{vT0}, 1, v0")
    a(f"v_bfe_u32 v{vT1}, v0, 1, 1")
    a(f"v_lshl_add_u32 v{vT0}, v{vT0}, 1, v{vT1}")
    a(f"v_lshl_add_u32 v{vW0}, v{vT0}, 3, v{vW0}")
    a(f"v_bfe_u32 v{vT0}, v0, 4, 1")
    a(f"v_lshl_add_u32 v{vW0}, v{vT0}, 5, v{vW0}")
    a(f"v_bfe_u32 v{vT0}, v0, 3, 1")
    a(f"v_xor_b32 v{vT0}, s25, v{vT0}")
    a(f"v_lshl_add_u32 v{vW0}, v{vT0}, 6, v{vW0}")
    a(f"v_add_u32 v{vW0}, {W0}, v{vW0}")
    a(f"v_mov_b32 v{vW}, v{vW0}")
    for t in range(3):
        for i in range(16):
            a(f"v_mov_b32 v{acc[t]+i}, 0")
    a("s_mov_b32 s37, 0")

    def read_list(ks, par):
        xa, wfs = sets[par]
        out = [f"ds_read_b128 {vr(xa,4)}, v{vA} offset:{ks*2*XB_}"]
        for t in range(3):
            for jj in range(2):
                out.append(f"ds_read_b64_tr_b16 {vr(wfs[t]+2*jj,2)}, v{vW} offset:{t*4096 + ks*2048 + jj*512}")
        return out

    def step(par, nxt, boundary, adv=False):
        xa, wfs = sets[par]
        issued = 0
        plan = [3, 5, 7]
        if boundary:
            a("s_barrier")
        for t in range(3):
            while issued < min(plan[t], len(nxt)):
                a(nxt[issued]); issued += 1
            a(f"s_waitcnt lgkmcnt({issued + 7 - (3 + 2*t)})")
            if t == 2:
                a(f"{MFMA} {vr(acc[t],16)}, {vr(xa,4)}, {vr(wfs[t],4)}, {vr(acc[t],16)}")
            else:
                a(f"{MFMA} {vr(acc[t],16)}, {vr(wfs[t],4)}, {vr(xa,4)}, {vr(acc[t],16)}")
        if adv:
            a(f"s_add_u32 s37, s37, {WCH}")
            a(f"s_cmp_eq_u32 s37, {NSW*WCH}")
            a("s_cselect_b32 s37, 0, s37")
            a(f"v_add_u32 v{vW}, s37, v{vW0}")
            a(f"v_add_u32 v{vA}, {4*XB_}, v{vA}")

    a("s_waitcnt vmcnt(0)")
    stamp(a, FS)
    a("s_barrier")
    stamp(a, FS + 1)
    for r in read_list(0, 0):
        a(r)
    lp = a.label("k1loop")
    a(f"s_mov_b32 s35, {NC-1}")
    a(f"{lp}:")
    step(0, read_list(1, 1), False, True)
    step(1, read_list(0, 0), True)
    a("s_sub_u32 s35, s35, 1")
    a("s_cmp_lg_u32 s35, 0")
    a(f"s_cbranch_scc1 {lp}")
    step(0, read_list(1, 1), False)
    step(1, [], False)
    stamp(a, FS + 2)
    ot = sets[0][0]
    a(f"s_lshl_b32 s26, s{S_NT64}, 1")
    a("s_add_u32 s26, s26, s25")
    a("s_lshl_b32 s26, s26, 17")
    a(f"s_add_u32 s27, s{S_TT64}, s24")
    a("s_lshl_b32 s27, s27, 10")
    a("s_add_u32 s26, s26, s27")
    a(f"v_bfe_u32 v{vT0}, v0, 4, 1")
    a(f"v_lshlrev_b32 v{vT0}, 16, v{vT0}")
    a(f"v_lshrrev_b32 v{vT1}, 5, v0")
    a(f"v_lshl_add_u32 v{vT0}, v{vT1}, 8, v{vT0}")
    a(f"v_and_b32 v{vT1}, 15, v0")
    a(f"v_lshl_add_u32 v{vT0}, v{vT1}, 4, v{vT0}")
    a(f"s_mov_b32 s28, {f32bits(QSCALE):#x}")
    a("s_mov_b32 s29, s28")
    K1SC = SC
    a(f"v_lshrrev_b32 v{V_P16}, 4, v0")
    a(f"v_lshlrev_b32 v{V_P16}, 9, v{V_P16}")
    a(f"v_lshl_add_u32 v{V_P16}, v{vT1}, 4, v{V_P16}")
    a(f"s_lshl_b32 s{S_SIG}, s{S_NT64}, 9")
    a(f"s_add_u32 s{S_SIG}, s{S_SIG}, {FL_Q:#x}")
    for t, base in ((0, B_Q), (1, B_K), (2, B_V)):
        for hh in range(2):
            o = ot + 4 * (2 * t + hh)
            for i in range(4):
                r = acc[t] + 8 * hh + 2 * i
                if t == 0:
                    a(f"v_pk_mul_f32 {vr(r,2)}, {vr(r,2)}, s[28:29]")
                a(f"v_cvt_pk_bf16_f32 v{o+i}, v{r}, v{r+1}")
            if t < 2:
                a(f"s_add_u32 s27, s26, {WS_IT0 + base + hh*65536:#x}")
                a(f"buffer_store_dwordx4 {vr(o,4)}, v{V_L16}, s[4:7], s27 offen{K1SC}")
            else:
                a(f"s_add_u32 s27, s26, {WS_IT0 + base:#x}")
                a(f"buffer_store_dwordx4 {vr(o,4)}, v{vT0}, s[4:7], s27 offen offset:{hh*512}{K1SC}")
    a("s_barrier")
    stamp(a, FS + 3)
    a(f"s_branch {end_label}")
    return max(R.n, R2.n)


class Cfg:
    def __init__(self, **kw):
        self.__dict__.update(kw)
        for k in ("NR", "RA", "N1", "N2", "N3", "N4", "BS", "I0", "PS", "STS", "PRE1", "PRE2", "PRE3", "XB", "LP"):
            e = os.environ.get(self.name.upper() + "_" + k)
            if e:
                setattr(self, k, int(e))

def stats_ops(tmp, xc, vR, square):
    f = []
    for i in range(8):
        f.append(f"v_add_f32 v{tmp+i}, v{tmp+i}, v{tmp+8+i}")
    for i in range(4):
        f.append(f"v_add_f32 v{tmp+i}, v{tmp+i}, v{tmp+4+i}")
    f.append(f"v_mov_b32 v{xc+4}, 0")
    f.append(f"v_mov_b32 v{xc+5}, 0")
    f.append(f"v_permlane32_swap_b32 v{tmp}, v{tmp+2}")
    f.append(f"v_permlane32_swap_b32 v{tmp+1}, v{tmp+3}")
    f.append(f"v_add_f32 v{tmp}, v{tmp}, v{tmp+2}")
    f.append(f"v_add_f32 v{tmp+1}, v{tmp+1}, v{tmp+3}")
    f.append(f"v_mov_b32 v{tmp+2}, v{tmp}")
    f.append(f"v_mov_b32 v{tmp+3}, v{tmp+1}")
    f.append("s_nop 1")
    f.append(f"v_permlane16_swap_b32 v{tmp}, v{tmp+2}")
    f.append(f"v_permlane16_swap_b32 v{tmp+1}, v{tmp+3}")
    f.append(f"v_add_f32 v{tmp}, v{tmp}, v{tmp+2}")
    f.append(f"v_add_f32 v{tmp+1}, v{tmp+1}, v{tmp+3}")
    f.append(f"v_mul_f32 v{tmp}, {f32bits(-1.0/512):#x}, v{tmp}")
    f.append(f"v_mul_f32 v{tmp+1}, {f32bits(1.0/512):#x}, v{tmp+1}")
    f.append(f"v_fma_f32 v{tmp+1}, -v{tmp}, v{tmp}, v{tmp+1}")
    f.append(f"v_max_f32 v{tmp+1}, 0, v{tmp+1}")
    f.append(f"v_add_f32 v{tmp+1}, {f32bits(1e-5):#x}, v{tmp+1}")
    f.append(f"{'v_rcp_f32' if square else 'v_rsq_f32'} v{vR}, v{tmp+1}")
    f.append(f"v_cvt_pk_bf16_f32 v{xc}, v{tmp}, v{tmp}")
    f.append(f"v_lshlrev_b32 v{tmp+2}, 16, v{xc}")
    f.append(f"v_sub_f32 v{tmp+2}, v{tmp}, v{tmp+2}")
    f.append(f"v_cvt_pk_bf16_f32 v{xc+1}, v{tmp+2}, v{tmp+2}")
    f.append(f"v_mov_b32 v{tmp+4}, v{vR}")
    f.append(f"v_mov_b32 v{vR+1}, v{vR}")
    f.append(f"v_mov_b32 v{xc+2}, v{xc}")
    f.append(f"v_mov_b32 v{xc+3}, v{xc+1}")
    f.append(f"v_permlane32_swap_b32 v{vR}, v{vR+1}")
    f.append(f"v_permlane32_swap_b32 v{xc}, v{xc+2}")
    f.append(f"v_permlane32_swap_b32 v{xc+1}, v{xc+3}")
    return f

def res_init(c0):
    f = []
    for th in range(2):
        for fh in range(2):
            for c in range(2):
                d, r = c0 + 8 * fh + 4 * th + 2 * c, V_RES + 4 * th + 2 * fh + c
                f.append(f"v_lshlrev_b32 v{d}, 16, v{r}")
                f.append(f"v_and_b32 v{d+1}, 0xffff0000, v{r}")
    return f

def row_offset(a, v, vt):
    a(f"v_and_b32 v{v}, 15, v0")
    a(f"v_lshlrev_b32 v{v}, 10, v{v}")
    a(f"v_and_b32 v{vt}, 48, v0")
    a(f"v_add_u32 v{v}, v{v}, v{vt}")

def res_epilogue(a, g, c0, c1, tmp, end):
    SB = g.sb
    fin = a.label("final")
    a("s_lshl_b32 s26, s31, 15")
    a("s_lshl_b32 s27, s33, 11")
    a("s_add_u32 s26, s26, s27")
    a(f"s_add_u32 s26, s26, s{S_BASE}")
    a(f"s_add_u32 s26, s26, {g.OUT:#x}")
    a("s_lshl_b32 s28, s31, 12")
    a("s_lshl_b32 s29, s33, 8")
    a("s_add_u32 s28, s28, s29")
    for i in range(8):
        if i % 2 == 0:
            a(f"s_waitcnt lgkmcnt({3 - i//2})")
        a(f"v_pk_add_f32 {vr(c0+2*i,2)}, {vr(c0+2*i,2)}, {vr(c1+2*i,2)}")
    for th in range(2):
        for fh in range(2):
            for c in range(2):
                d = c0 + 8 * fh + 4 * th + 2 * c
                a(f"v_cvt_pk_bf16_f32 v{V_RES + 4*th + 2*fh + c}, v{d}, v{d+1}")
    if g.final:
        a(f"s_cmp_eq_u32 s{S_IT}, 1")
        a(f"s_cbranch_scc1 {fin}")
    a(f"buffer_store_dwordx4 {vr(V_RES,4)}, v{V_P16}, s[4:7], s26 offen{SC}")
    a(f"buffer_store_dwordx4 {vr(V_RES+4,4)}, v{V_P16}, s[4:7], s26 offen offset:256{SC}")
    q = tmp
    for th in range(2):
        a(f"v_pk_mul_f32 {vr(q+2*th,2)}, {vr(c0+4*th,2)}, {vr(c0+4*th,2)}")
    for o in (2, 8, 10):
        for th in range(2):
            r = c0 + 4 * th + o
            a(f"v_pk_fma_f32 {vr(q+2*th,2)}, {vr(r,2)}, {vr(r,2)}, {vr(q+2*th,2)}")
            a(f"v_pk_add_f32 {vr(c0+4*th,2)}, {vr(c0+4*th,2)}, {vr(r,2)}")
    for th in range(2):
        a(f"v_add_f32 v{q+4+th}, v{c0+4*th}, v{c0+4*th+1}")
    for th in range(2):
        a(f"v_add_f32 v{q+6+th}, v{q+2*th}, v{q+2*th+1}")
    a(f"v_permlane32_swap_b32 v{q+4}, v{q+5}")
    a(f"s_add_u32 s28, s28, s{S_BASE}")
    a(f"v_permlane32_swap_b32 v{q+6}, v{q+7}")
    a(f"v_add_f32 v{q+4}, v{q+4}, v{q+5}")
    a(f"v_add_f32 v{q+6}, v{q+6}, v{q+7}")
    a(f"s_add_u32 s28, s28, {g.STOUT:#x}")
    a("s_nop 0")
    a(f"v_permlane16_swap_b32 v{q+4}, v{q+6}")
    a("s_nop 0")
    a(f"v_add_f32 v{q+4}, v{q+4}, v{q+6}")
    a(f"buffer_store_dword v{q+4}, v{V_ST}, s[4:7], s28 offen{SC}")
    a("s_barrier")
    stamp(a, SB + 3)
    if g.final:
        a(f"s_branch {end}")
        a(f"{fin}:")
        srd(a, 8, 70, 71, 2048 * 512 * 2)
        row_offset(a, tmp, tmp + 1)
        a("s_lshl_b32 s26, s31, 15")
        a("s_lshl_b32 s27, s33, 6")
        a("s_add_u32 s26, s26, s27")
        a("s_add_u32 s27, s26, 16384")
        a(f"buffer_store_dwordx4 {vr(V_RES,4)}, v{tmp}, s[8:11], s26 offen")
        a(f"buffer_store_dwordx4 {vr(V_RES+4,4)}, v{tmp}, s[8:11], s27 offen")
        a("s_barrier")
        stamp(a, SB + 3)

RB = 16384
VS = 32
NPRE = env('NPRE', 5)


class Stream:
    NR, NRND, NREG = 10, 29, 14
    def __init__(self, a):
        self.a = a
        self.nxt = 0
        self.vm, self.lg = [], []
        self.reg = {}
        self.free = list(range(self.NREG - NPRE))
        self.last = self.NRND - NPRE
        for i in range(NPRE):
            self.reg[self.last + i] = self.NREG - NPRE + i
        self.maxreg = self.NREG
    def setup(self):
        a = self.a
        a(f"s_and_b32 s19, s{S_WAVE}, 3")
        a("s_lshl_b32 s25, s19, 12")
        a(f"s_mul_i32 s20, s{S_NTG}, {WNT_G}")
        a("s_add_u32 s20, s20, s25")
        a(f"s_add_u32 s20, s20, {WS_WGU:#x}")
        a(f"s_mul_i32 s21, s{S_NT64}, {224*1024}")
        a("s_add_u32 s21, s21, s25")
        a(f"s_add_u32 s21, s21, {WS_WD:#x}")
        for i in range(3):
            a(f"v_add_u32 v{V_FREE+i}, {i*0x10000}, v{V_L16}")
            a(f"v_add_u32 v{V_FREE+i}, s25, v{V_FREE+i}")
    def src(self, r):
        return f"s_add_u32 s27, s20, {r*RB}" if r < 15 else f"s_add_u32 s27, s21, {(r-15)*RB}"
    def wait_vm(self, pred):
        idx = [i for i, e in enumerate(self.vm) if pred(e)]
        if not idx:
            return None
        n = min(63, (len(self.vm) - 1 - idx[-1]) * 4)
        del self.vm[:idx[-1] + 1]
        return f"vmcnt({n})"
    def flush(self, limit, cap=99):
        a = self.a
        for r in sorted(self.reg)[:cap]:
            if r >= limit:
                break
            w = self.wait_vm(lambda e: e == ("s", r))
            if w:
                a("s_waitcnt " + w)
            k = self.reg.pop(r)
            for i in range(4):
                off = (r % self.NR) * RB + i * 1024
                if env("X_NOFL", 0) and r >= 24:
                    pass
                elif env("FL64", 0):
                    for hh in range(2):
                        a(f"ds_write_b64 v{V_FREE + (off >> 16)}, {vr(VS + (k*4 + i)*4 + 2*hh, 2)} offset:{(off & 0xffff) + 8*hh}")
                        if env("FLW", 1):
                            a("s_waitcnt lgkmcnt(0)")
                else:
                    a(f"ds_write_b128 v{V_FREE + (off >> 16)}, {vr(VS + (k*4 + i)*4, 4)} offset:{off & 0xffff}")
                    if env("FLW", 1):
                        a("s_waitcnt lgkmcnt(0)")
            self.lg.append((r, k))
    def fetch(self, n, limit):
        a = self.a
        while n > 0 and self.nxt < self.last:
            r = self.nxt
            if r < limit:
                a(f"s_add_u32 s26, s25, {(r % self.NR) * RB}")
                a("s_mov_b32 m0, s26")
                a(self.src(r))
                for i in range(4):
                    a(f"buffer_load_dwordx4 v{V_L16}, s[4:7], s27 offen offset:{i*1024}{SC} lds")
                self.vm.append(("d", r))
            else:
                if not self.free:
                    break
                k = self.free.pop(0)
                self.maxreg = max(self.maxreg, k + 1)
                self.reg[r] = k
                a(self.src(r))
                for i in range(4):
                    a(f"buffer_load_dwordx4 {vr(VS + (k*4 + i)*4, 4)}, v{V_L16}, s[4:7], s27 offen offset:{i*1024}{SC}")
                self.vm.append(("s", r))
            self.nxt += 1; n -= 1
    def landed(self, upto):
        assert self.nxt > min(upto, self.last - 1) and all(r > upto for r in self.reg), (upto, self.nxt, self.reg)
        w = []
        x = self.wait_vm(lambda e: e[0] == "d" and e[1] <= upto)
        if x:
            w.append(x)
        if any(r <= upto for r, _ in self.lg):
            w.append("lgkmcnt(0)")
            self.free += [k for _, k in self.lg]
            self.lg = []
        if w:
            self.a("s_waitcnt " + " ".join(w))

def gemm_phase(a, g):
    ln = g.kind == "qkv"
    NT = 3 if ln else 2
    NS = 16 if ln else 8
    SPS = 2 * NT
    NSL = (NS + (1 if ln else 0)) * SPS
    beg = [i * 1024 if ln else (i // 4) * 8192 for i in range(NSL)]
    fin_ = [i * 1024 + 1023 if ln else (i // 4) * 8192 + 8191 for i in range(NSL)]
    NRND = fin_[-1] // RB + 1
    LB = g.LB
    SCR = LB + NRND * RB
    assert SCR + (1024 if ln else 16384) <= LDS_MAX
    S = g.stream
    RAH = 6
    s_tt, s_nt = (S_TT128, S_NT128) if ln else (S_TT64, S_NT64)
    comp, end = a.label(g.name + "_comp"), a.label(g.name + "_end")
    SB = g.sb
    bars = [0] + ([g.BS] if g.BS else [])
    a.c(f"================ phase {g.name} ================")
    a(f"s_cmp_lt_u32 s{S_WAVE}, 4")
    a(f"s_cbranch_scc1 {comp}")
    a(f"s_and_b32 s19, s{S_WAVE}, 3")
    a("s_lshl_b32 s25, s19, 12")
    a(f"s_mul_i32 s23, s{s_nt}, {g.WNT}")
    a("s_add_u32 s23, s23, s25")
    if g.WBASE:
        a(f"s_add_u32 s23, s23, {g.WBASE:#x}")
    stamp(a, SB)
    for r in range(NRND):
        a(f"s_add_u32 s26, s25, {LB + r*RB}")
        a("s_mov_b32 m0, s26")
        a(f"s_add_u32 s27, s23, {r*RB}")
        for i in range(4):
            a(f"buffer_load_dwordx4 v{V_L16}, s[4:7], s27 offen offset:{i*1024}{SC} lds")
        if g.lsig and r == g.N1 - 1:
            a(f"s_waitcnt vmcnt({g.N1*4})")
            a("s_mov_b32 s38, 1")
            a(f"s_atomic_add s38, s[14:15], s{S_SIG}")
    extra = 0
    if S:
        S.setup()
        S.fetch(g.PRE1, LB // RB)
        extra = 4 * len(S.vm)
    stamp(a, SB + 1)
    for j, b in enumerate(bars):
        nxt = bars[j + 1] if j + 1 < len(bars) else NSL
        up = fin_[min(NSL - 1, nxt - 1 + RAH)] // RB
        a(f"s_waitcnt vmcnt({(NRND - 1 - up)*4 + extra})")
        a("s_barrier")
    if not ln:
        a("s_barrier")
    if S:
        S.fetch(g.PRE3, LB // RB + NRND)
    a("s_barrier")
    a(f"s_branch {end}")

    a(f"{comp}:")
    R = Regs(V_FREE)
    nwin = -(-SCR // 65536)
    vW = [[R.alloc() for _ in range(nwin)] for _ in range(1 if ln else 2)]
    vX, vY = R.alloc(), R.alloc()
    vR = R.alloc(2)
    xc = R.alloc(6, 2)
    acc = [R.alloc(16) for _ in range(NT)]
    NF = RAH + 2
    wf = [R.alloc(4) for _ in range(NF)]
    RA = min(2 * NS, g.RA)
    ring = [R.alloc(4) for _ in range(RA)]
    tmp = R.alloc(16)
    if ln:
        a(f"s_add_u32 s31, s{s_tt}, s{S_WAVE}")
        a("s_lshl_b32 s22, s31, 15")
        for w in range(nwin):
            a(f"v_add_u32 v{vW[0][w]}, {w*65536}, v{V_L16}")
        a("s_lshl_b32 s36, s31, 12")
        a(f"s_add_u32 s36, s36, s{S_BASE}")
        a(f"s_add_u32 s36, s36, {g.STIN:#x}")
        a(f"s_lshl_b32 s26, s{S_WAVE}, 8")
        a(f"s_add_u32 s26, s26, {SCR}")
        a(f"v_add_u32 v{vX}, s26, v{V_L4}")
        a(f"v_and_b32 v{vY}, 48, v0")
        a(f"v_add_u32 v{vY}, s26, v{vY}")
    else:
        a(f"s_and_b32 s24, s{S_WAVE}, 1")
        a(f"s_lshr_b32 s25, s{S_WAVE}, 1")
        a(f"s_lshl_b32 s33, s{s_nt}, 1")
        a("s_add_u32 s33, s33, s25")
        a(f"s_add_u32 s31, s{s_tt}, s24")
        a("s_lshl_b32 s22, s31, 15")
        a("s_lshl_b32 s27, s25, 11")
        a("s_add_u32 s22, s22, s27")
        a("s_mul_i32 s26, s25, 6144")
        a("s_add_u32 s27, s27, 2048")
        for w in range(nwin):
            a(f"v_add_u32 v{vX}, {w*65536}, v{V_L16}")
            a(f"v_add_u32 v{vW[0][w]}, s26, v{vX}")
            a(f"v_add_u32 v{vW[1][w]}, s27, v{vX}")
        for x in res_init(acc[0]):
            a(x)
        a(f"s_lshl_b32 s26, s{S_WAVE}, 12")
        a(f"s_add_u32 s26, s26, {SCR}")
        a("s_xor_b32 s27, s26, 0x2000")
        assert SCR % 16384 == 0
        a(f"v_add_u32 v{vX}, s26, v{V_L16}")
        a(f"v_add_u32 v{vY}, s27, v{V_L16}")
    a(f"s_add_u32 s22, s22, s{S_BASE}")
    a(f"s_add_u32 s22, s22, {g.ABUF:#x}")
    AST = 2048 if ln else 4096

    cvm, na = [], [0]
    def load_a():
        k = na[0]; na[0] += 1
        off = ((k // 2) * AST) % 4096
        a(f"buffer_load_dwordx4 {vr(ring[k % RA],4)}, v{V_P16}, s[4:7], s22 offen offset:{off + (k%2)*256}{SC}")
        if k % 2 == 1 and off + AST == 4096:
            a("s_add_u32 s22, s22, 4096")
        cvm.append(k)
    def wait_tag(tag):
        if tag in cvm:
            i = len(cvm) - 1 - cvm[::-1].index(tag)
            a(f"s_waitcnt vmcnt({len(cvm) - 1 - i})")
            del cvm[:i + 1]
    def w_read(i):
        off = LB + beg[i] + (0 if ln else (i % 2) * 1024)
        base = vW[0 if ln else (i // 2) % 2][off >> 16]
        a(f"ds_read_b128 {vr(wf[i % NF],4)}, v{base} offset:{off & 0xffff}")

    a("s_lshl_b32 s23, s31, 8")
    a(f"s_add_u32 s23, s23, s{S_FL}")
    a(f"s_add_u32 s23, s23, {g.FIN:#x}")
    a("s_waitcnt vmcnt(0)")
    stamp(a, SB)
    handoff(a, 23, g.NEED)
    stamp(a, SB + 1)
    while na[0] < g.I0:
        load_a()
    a("s_barrier")
    for i in range(RAH):
        w_read(i)
    a(f"s_lshl_b32 s{S_SIG}, s{s_nt if ln else 31}, 8")
    a(f"s_add_u32 s{S_SIG}, s{S_SIG}, s{S_FL}")
    if g.FOUT:
        a(f"s_add_u32 s{S_SIG}, s{S_SIG}, {g.FOUT:#x}")
    stl = [f"buffer_load_dwordx4 {vr(tmp+4*i,4)}, v{V_L16}, s[4:7], s36 offen offset:{i*1024}{SC}" for i in range(4)] if ln else []
    fill = []
    vRs = tmp + 8
    for i in range(NSL):
        st_, t, fh = i // SPS, (i % SPS) // 2, i % 2
        if i in bars and i > 0:
            a("s_barrier")
        if ln and i == NS * SPS - 26:
            assert not stl
            wait_tag("st")
            fill.extend(stats_ops(tmp, xc, vR, False))
        if ln and i == NS * SPS:
            assert not fill
        if i % 2 == 0:
            a(f"s_waitcnt lgkmcnt({max(0, min(i - 1 + RAH, NSL - 1) - (i + 1))})")
        for th in range(2):
            if th == 1 and i + RAH < NSL:
                w_read(i + RAH)
            if i % SPS == 0 and st_ < NS:
                wait_tag(2 * st_ + 1)
            xa = ring[(2 * st_ + th) % RA] if st_ < NS else xc + 2 * th
            d = acc[t] + 8 * fh + 4 * th
            c = "0" if st_ == 0 and (ln or t == 1) else vr(d, 4)
            if ln and t == 2:
                a(f"{M16} {vr(d,4)}, {vr(xa,4)}, {vr(wf[i % NF],4)}, {c}")
            else:
                a(f"{M16} {vr(d,4)}, {vr(wf[i % NF],4)}, {vr(xa,4)}, {c}")
            if fill:
                a(fill.pop(0))
        if (i + 1) % g.LP == 0 and na[0] < 2 * NS and na[0] < 2 * ((i + 1) // SPS) + RA:
            load_a()
        if stl and i >= g.STS and i % SPS == 1:
            a(stl.pop(0)); cvm.append("st")
    assert na[0] == 2 * NS
    if ln:
        a(f"ds_write_b32 v{vX}, v{tmp+4}")
        for th in range(2):
            a(f"ds_read_b128 {vr(vRs+4*th,4)}, v{vY} offset:{th*128}")
    else:
        a("s_nop 7")
        for q in range(4):
            a(f"ds_write_b128 v{vX}, {vr(acc[1]+4*q,4)} offset:{q*1024}")
        a("s_waitcnt lgkmcnt(0)")
        a("s_barrier")
        for q in range(4):
            a(f"ds_read_b128 {vr(acc[1]+4*q,4)}, v{vY} offset:{q*1024}")
    stamp(a, SB + 2)
    if ln:
        ot = ring[0]
        a(f"s_lshl_b32 s26, s{s_nt}, 17")
        a("s_lshl_b32 s27, s31, 10")
        a("s_add_u32 s26, s26, s27")
        a(f"s_add_u32 s26, s26, s{S_BASE}")
        a(f"v_mul_f32 v{tmp}, {f32bits(QSCALE):#x}, v{vR}")
        a(f"v_mul_f32 v{tmp+1}, {f32bits(QSCALE):#x}, v{vR+1}")
        a(f"v_lshrrev_b32 v{tmp+2}, 5, v0")
        a(f"v_and_b32 v{tmp+3}, 0x3ff, v{V_P16}")
        a(f"v_lshl_add_u32 v{tmp+2}, v{tmp+2}, 16, v{tmp+3}")
        for t, base, sc in ((0, B_Q, tmp), (1, B_K, vR)):
            a(f"s_add_u32 s27, s26, {base:#x}")
            for th in range(2):
                o = ot + 4 * (2 * t + th)
                for fh in range(2):
                    for c in range(2):
                        r = acc[t] + 8 * fh + 4 * th + 2 * c
                        a(f"v_pk_mul_f32 {vr(r,2)}, {vr(r,2)}, {vr(sc,2)} op_sel:[0,{th}] op_sel_hi:[1,{th}]")
                for fh in range(2):
                    for c in range(2):
                        r = acc[t] + 8 * fh + 4 * th + 2 * c
                        a(f"v_cvt_pk_bf16_f32 v{o+2*fh+c}, v{r}, v{r+1}")
                a(f"buffer_store_dwordx4 {vr(o,4)}, v{tmp+2}, s[4:7], s27 offen offset:{th*256}{SC}")
        a("s_waitcnt lgkmcnt(0)")
        for fh in range(2):
            o = ot + 16 + 4 * fh
            a(f"s_add_u32 s27, s26, {B_V + fh*65536:#x}")
            for c in range(4):
                r = acc[2] + 8 * fh + 2 * c
                a(f"v_pk_mul_f32 {vr(r,2)}, {vr(vRs+2*c,2)}, {vr(r,2)}")
            for c in range(4):
                r = acc[2] + 8 * fh + 2 * c
                a(f"v_cvt_pk_bf16_f32 v{o+c}, v{r}, v{r+1}")
            a(f"buffer_store_dwordx4 {vr(o,4)}, v{V_L16}, s[4:7], s27 offen{SC}")
        a("s_barrier")
        stamp(a, SB + 3)
    else:
        res_epilogue(a, g, acc[0], acc[1], tmp, end)
    a(f"{end}:")
    return R.n


def mlp_phase(a, g):
    E = lambda k, d: env("MLP_" + k, d)
    NR, RING = 10, 10 * RB
    NG, NOPS = 238, 238 + 112
    beg = [i * 1024 for i in range(NG)] + [15 * RB + (i // 4) * 8192 for i in range(112)]
    fin = [i * 1024 + 1023 for i in range(NG)] + [15 * RB + (i // 4) * 8192 + 8191 for i in range(112)]
    RAH = E("RAH", 6)
    I0, I0D = E("I0", 10), E("I0D", 16)
    sched = os.environ.get("MLP_SCHED", "0:0,20:0,40:0,60:0,88:2,100:1,114:1,130:1,146:1,162:1,178:1,194:1,210:1,226:1,246:0,258:0,270:0,282:0,294:0,306:0,336:0")
    sched = dict((int(x.split(":")[0]), int(x.split(":")[1])) for x in sched.split(","))
    bars = sorted(sched)
    S = g.stream
    comp, end = a.label("mlp_comp"), a.label("mlp_end")
    SB, SD = 17, g.sb
    a.c("================ phase gate/up + down ================")
    a(f"s_cmp_lt_u32 s{S_WAVE}, 4")
    a(f"s_cbranch_scc1 {comp}")
    stamp(a, SB)
    S.flush(NR)
    S.fetch(E("N1", 8), NR)
    stamp(a, SB + 1)
    for j, b in enumerate(bars):
        nxt = bars[j + 1] if j + 1 < len(bars) else NOPS
        S.landed(fin[min(NOPS - 1, nxt - 1 + RAH)] // RB)
        a("s_barrier")
        lim = NR + beg[b] // RB
        S.fetch(sched[b], lim)
        S.flush(lim, E("FCAP", 1))
        a.c(f"barrier {b}: fetched {S.nxt}, staged {sorted(S.reg)}")
    assert S.nxt == S.last and not S.vm and not S.lg and not S.reg
    a("s_barrier")
    a("s_barrier")
    a(f"s_branch {end}")

    a(f"{comp}:")
    R = Regs(V_FREE)
    vW = [R.alloc() for _ in range(3)]
    xc = R.alloc(6, 2)
    vR2 = R.alloc(2)
    vX, vY = R.alloc(), R.alloc()
    vD = [[R.alloc() for _ in range(3)] for _ in range(2)]
    acc = [R.alloc(16) for _ in range(4)]
    NF = RAH + 1
    wf = [R.alloc(4) for _ in range(NF)]
    ring = [R.alloc(4) for _ in range(32)]
    tmp = ring[28]
    NP = len(PASSES)
    pstart = [34 * f for f in PFIRST] + [NG]
    tacc = [acc[t % 4] for t in range(7)]
    dacc = [acc[3], acc[0]]
    hreg = [34, 35, 32, 51]
    a(f"s_add_u32 s31, s{S_TTG}, s{S_WAVE}")
    a("s_lshl_b32 s22, s31, 15")
    a(f"s_add_u32 s22, s22, s{S_BASE}")
    a(f"s_add_u32 s22, s22, {B_X1:#x}")
    a("s_lshl_b32 s36, s31, 12")
    a(f"s_add_u32 s36, s36, s{S_BASE}")
    a(f"s_add_u32 s36, s36, {B_ST1:#x}")
    a(f"s_mul_i32 s26, s31, {112*1024}")
    a(f"s_add_u32 s26, s26, s{S_BASE}")
    a(f"s_add_u32 s26, s26, {B_H:#x}")
    for p in range(NP):
        a(f"s_mul_i32 s{hreg[p]}, s{S_NTG}, {PASSES[p]*1024}")
        a(f"s_add_u32 s{hreg[p]}, s{hreg[p]}, s26")
        if p:
            a(f"s_add_u32 s{hreg[p]}, s{hreg[p]}, {PFIRST[p]*16384}")
    a("s_lshl_b32 s50, s31, 8")
    a(f"s_add_u32 s50, s50, s{S_FL}")
    a(f"s_add_u32 s23, s50, {FL_O:#x}")
    a(f"s_add_u32 s50, s50, {FL_G:#x}")
    a(f"s_and_b32 s24, s{S_WAVE}, 1")
    a(f"s_lshr_b32 s25, s{S_WAVE}, 1")
    a(f"s_lshl_b32 s33, s{S_NT64}, 1")
    a("s_add_u32 s33, s33, s25")
    a(f"s_add_u32 s31, s{S_TT64}, s24")
    a("s_lshl_b32 s52, s31, 8")
    a(f"s_add_u32 s52, s52, s{S_FL}")
    a(f"s_add_u32 s52, s52, {FL_G:#x}")
    a(f"s_mul_i32 s37, s31, {112*1024}")
    a("s_lshl_b32 s30, s25, 11")
    a("s_add_u32 s37, s37, s30")
    a(f"s_add_u32 s37, s37, s{S_BASE}")
    a(f"s_add_u32 s37, s37, {B_H:#x}")
    a("s_mul_i32 s29, s25, 6144")
    a("s_add_u32 s30, s30, 2048")
    for w in range(3):
        a(f"v_add_u32 v{vW[w]}, {w*65536}, v{V_L16}")
        a(f"v_add_u32 v{vD[0][w]}, s29, v{vW[w]}")
        a(f"v_add_u32 v{vD[1][w]}, s30, v{vW[w]}")
    a(f"v_lshrrev_b32 v{vY}, 5, v0")
    a(f"v_and_b32 v{vX}, 0x3ff, v{V_P16}")
    a(f"v_lshl_add_u32 v{vX}, v{vY}, 8, v{vX}")
    cvm = []
    def wait_tag(tag):
        if tag in cvm:
            i = len(cvm) - 1 - cvm[::-1].index(tag)
            a(f"s_waitcnt vmcnt({len(cvm) - 1 - i})")
            del cvm[:i + 1]
    na, nh = [0], [0]
    def load_x():
        k = na[0]; na[0] += 1
        a(f"buffer_load_dwordx4 {vr(ring[k],4)}, v{V_P16}, s[4:7], s22 offen offset:{(k%4//2)*2048 + (k%2)*256}{SC}")
        if k % 4 == 3:
            a("s_add_u32 s22, s22, 4096")
        cvm.append(("x", k))
    def load_h():
        k = nh[0]; nh[0] += 1
        if env("X_NOH", 0):
            return
        a(f"buffer_load_dwordx4 {vr(ring[k%32],4)}, v{V_P16}, s[4:7], s37 offen offset:{(k%2)*256}{SC}")
        if k % 2 == 1:
            a("s_add_u32 s37, s37, 4096")
        cvm.append(("h", k))
    def w_read(i):
        off = beg[i] % RING + (0 if i < NG else (i - NG) % 2 * 1024)
        base = vW[off >> 16] if i < NG else vD[(i - NG) // 2 % 2][off >> 16]
        a(f"ds_read_b128 {vr(wf[i % NF],4)}, v{base} offset:{off & 0xffff}")
    def slot(i):
        for p in range(NP):
            if i < pstart[p + 1]:
                return PFIRST[p] + (i - pstart[p]) // 2 % PASSES[p], (i - pstart[p]) // (2 * PASSES[p])
        return None, (i - NG) // 4
    fill = []
    stored = set()
    def h_ops(t, packed=True):
        r = tacc[t]
        p = max(q for q in range(NP) if PFIRST[q] <= t)
        so, off = hreg[p], (t - PFIRST[p]) * 1024
        ops = [f"v_pk_mul_f32 {vr(r+2*i,2)}, {vr(r+2*i,2)}, {vr(r+8+2*i,2)}" for i in range(4)]
        ops += [f"v_pk_mul_f32 {vr(r+2*i,2)}, {vr(r+2*i,2)}, {vr(vR2,2)} op_sel:[0,{i//2}] op_sel_hi:[1,{i//2}]" for i in range(4)]
        if not packed:
            ops = [f"v_mul_f32 v{r+i}, v{r+i}, v{r+8+i}" for i in range(8)]
            ops += [f"v_mul_f32 v{r+i}, v{vR2 + i//4}, v{r+i}" for i in range(8)]
        ops += [f"v_cvt_pk_bf16_f32 v{r+8+i}, v{r+2*i}, v{r+2*i+1}" for i in (0, 2, 1, 3)]
        ops += [f"v_permlane32_swap_b32 v{r+8}, v{r+10}", "s_nop 0", f"v_permlane32_swap_b32 v{r+9}, v{r+11}"]
        ops.append((f"buffer_store_dwordx4 {vr(r+8,4)}, v{vX}, s[4:7], s{so} offen offset:{off}{SC}", ("hs", t)))
        return ops

    a("s_waitcnt vmcnt(0)")
    stamp(a, SB)
    handoff(a, 23, 16)
    stamp(a, SB + 1)
    if E("PRIO", 2):
        a(f"s_setprio {E('PRIO', 2)}")
    while na[0] < I0:
        load_x()
        if na[0] == E("STP", 4):
            a("s_barrier")
            for i in range(RAH):
                w_read(i)
            for q in range(4):
                a(f"buffer_load_dwordx4 {vr(tmp+4*q,4)}, v{V_L16}, s[4:7], s36 offen offset:{q*1024}{SC}")
                cvm.append("st")
    a(f"s_add_u32 s{S_SIG}, s52, {FL_D - FL_G:#x}")
    STF = (E("STP", 4) + 1) * PASSES[0]
    evs = os.environ.get("MLP_EV", "170:196:218,240:264:286,262:292:314")
    ev = []
    for p, x in enumerate(evs.split(",")):
        sg, ak, go = map(int, x.split(":"))
        ev.append((PFIRST[p] + PASSES[p] - 1, sg, ak, go, 8 * (PFIRST[p] + PASSES[p])))
    def emit(x):
        if isinstance(x, tuple):
            a(x[0]); cvm.append(x[1]); stored.add(x[1][1])
        else:
            a(x)
    dinit = [False]
    hlim = 0
    treg = list(range(78, 94, 2)) + [96, 98, 100, 62]
    tpos = [int(x) for x in os.environ.get("TRACE", "").split(",") if x]
    for i in range(NOPS):
        t, ks = slot(i)
        if i in tpos:
            r_ = treg[tpos.index(i)]
            a(f"s_memtime s[{r_}:{r_+1}]")
        for gi, (lt, sg, ak, go, lim_) in enumerate(ev):
            if i == sg:
                a.c(f"this wave's part {gi} of H is complete")
                assert lt in stored
                wait_tag(("hs", lt))
                a(f"s_add_u32 s54, s50, {gi*4}")
                a("s_mov_b32 s38, 1")
                a("s_atomic_add s38, s[14:15], s54")
            if i == ak:
                a(f"s_add_u32 s28, s52, {gi*4}")
                a("s_mov_b32 s55, 0")
                a("s_atomic_add s55, s[14:15], s28 glc")
            if i == go:
                ok = a.label("go")
                a("s_waitcnt lgkmcnt(0)")
                a("s_cmp_ge_u32 s55, 16")
                a(f"s_cbranch_scc1 {ok}")
                poll(a, 28, 16)
                a(f"{ok}:")
                hlim = lim_
                if gi in (0, NP - 1) and not tpos:
                    stamp(a, SD + (0 if gi == 0 else 4))
        if i in bars and i > 0:
            a("s_barrier")
        if i == STF:
            wait_tag("st")
            fill.extend(stats_ops(tmp, xc, vR2, True))
        if i == pstart[1] and not tpos:
            stamp(a, SB + 2)
        if i == NG and not tpos:
            stamp(a, SB + 3)
        if i in pstart[1:]:
            p = pstart.index(i) - 1
            assert not fill
            need = set(tacc[q] for q in range(PFIRST[p + 1], PFIRST[p + 1] + PASSES[p + 1])) if p + 1 < NP else set(dacc)
            tiles = list(range(PFIRST[p], PFIRST[p] + PASSES[p]))
            now = [q for q in tiles if tacc[q] in need or (E("SER", 15) >> p) & 1]
            if now:
                if tiles[-1] == now[0]:
                    a("s_nop 7")
                for q in now:
                    for x in h_ops(q):
                        emit(x)
            else:
                fill.extend(["s_nop 0"] * 6)
            for q in tiles:
                if q not in now:
                    fill.extend(h_ops(q, False))
        if i == NG and not tpos:
            stamp(a, SD + 1)
        if 3 in stored and not dinit[0] and not fill:
            dinit[0] = True
            assert i + 10 < NG
            fill.extend(["s_nop 0"] * 2)
            fill.extend(res_init(dacc[0]))
        WE = E("WE", 2)
        if i % WE == 0:
            a(f"s_waitcnt lgkmcnt({max(0, min(i - 1 + RAH, NOPS - 1) - (i + WE - 1))})")
        fh = i % 2
        for th in range(2):
            if th == 1 and i + RAH < NOPS:
                w_read(i + RAH)
            if t == 0 and fh == 0 and ks < 16:
                wait_tag(("x", 2 * ks + 1))
            if t is None and (i - NG) % 4 == 0:
                wait_tag(("h", 2 * ks + 1))
            if t is not None:
                d, xa, first = tacc[t], (xc + 2 * th if ks == 16 else ring[2 * ks + th]), ks == 0
                if first and t >= 4:
                    assert t - 4 in stored
            else:
                d, xa, first = dacc[(i - NG) // 2 % 2], ring[(2 * ks + th) % 32], i - NG in (2, 3)
                assert 4 in stored
            d += 8 * fh + 4 * th
            a(f"{M16} {vr(d,4)}, {vr(wf[i % NF],4)}, {vr(xa,4)}, {'0' if first else vr(d,4)}")
            for _ in range(min(E("FPS", 1), len(fill))):
                if th == 1 or i % 2 == 1 or E("FALL", 1):
                    emit(fill.pop(0))
        if (i + 1) % PASSES[0] == 0 and na[0] < 32:
            assert na[0] < 28 or (i > STF and not fill), i
            load_x()
        if i >= pstart[NP - 1]:
            done = 2 * ((i + 1 - NG) // 4) if t is None else 0
            half = (i + 1 - NG) // 2 if t is None else 0
            look = I0D if t is not None else max(E("LK", 12), I0D - half)
            assert look <= 30
            if nh[0] < min(hlim, half + look) and (t is None or nh[0] < 2 * ks):
                load_h()
    assert nh[0] == 56 and not fill
    dead = beg[bars[-1]] // RB - 1
    assert dead + NR >= 29
    SCR = (dead % NR) * RB
    a(f"s_lshl_b32 s26, s{S_WAVE}, 12")
    a(f"s_add_u32 s26, s26, {SCR}")
    a("s_xor_b32 s27, s26, 0x2000")
    a(f"v_add_u32 v{vX}, s26, v{V_L16}")
    a(f"v_add_u32 v{vY}, s27, v{V_L16}")
    a("s_nop 2")
    if E("PRIO", 2):
        a("s_setprio 0")
    for q in range(4):
        a(f"ds_write_b128 v{vX}, {vr(dacc[1]+4*q,4)} offset:{q*1024}")
    a("s_waitcnt lgkmcnt(0)")
    a("s_barrier")
    for q in range(4):
        a(f"ds_read_b128 {vr(dacc[1]+4*q,4)}, v{vY} offset:{q*1024}")
    stamp(a, SD + 2)
    for k in range(len(tpos)):
        a(f"v_writelane_b32 v{V_STAMP+1}, s{treg[k]}, {k}")
    res_epilogue(a, g, dacc[0], dacc[1], tmp, end)
    a(f"{end}:")
    return max(R.n, VS + 16 * S.maxreg)


def attn_phase(a, SB, code_end):
    U = 2
    NIT = 32 // U
    B2IT = env("ATT_B2", 1)
    B3IT = env("ATT_B3", 3)
    PRIO_IT = env("ATT_PRIO", 14)
    PFN = 4 if GMX == 4 else env('PFN', 6)
    CB = 0
    XB = CB + 4096
    KB, VB = 32768, 98304
    assert XB + 8 * 2304 <= KB
    R = Regs(V_FREE)
    vK, vV, vInc, vV0 = R.alloc(), R.alloc(), R.alloc(), R.alloc()
    t0, t1 = R.alloc(), R.alloc()
    vPA, vPP = R.alloc(), R.alloc()
    R.alloc(); R.alloc()
    vIx, vKp = R.alloc(), R.alloc()
    DYN = env("ATT_DYN", 0)
    Q = [R.alloc(4), R.alloc(4)]
    NM = [R.alloc(16), R.alloc(16)]
    O = [R.alloc(16), R.alloc(16)]
    S = [R.alloc(16), R.alloc(16)]
    P = R.alloc(8)
    KF = [R.alloc(4), R.alloc(4)]
    VF = [R.alloc(8), R.alloc(8)]
    a.c("================ phase attention ================")
    a(f"s_and_b32 s19, s{S_IDX}, 3")
    a(f"s_lshl_b32 s20, s{S_XCD}, 2")
    a("s_add_u32 s19, s19, s20")
    a(f"s_lshr_b32 s20, s{S_IDX}, 2")
    a("s_lshl_b32 s20, s20, 3")
    a(f"s_and_b32 s26, s{S_WAVE}, 3")
    a(f"s_lshr_b32 s27, s{S_WAVE}, 2")
    a("s_lshl_b32 s22, s26, 1")
    a("s_add_u32 s20, s20, s22")
    a("s_lshl_b32 s21, s19, 16")
    a(f"s_add_u32 s21, s21, s{S_BASE}")
    setup = a.label("att_setup")
    assert B_Q == 0 and B_V - B_K == 0x200000
    a("s_and_b32 s24, s26, 1")
    a("s_lshr_b32 s25, s26, 1")
    a("s_lshl_b32 s28, s24, 16")
    a(f"s_add_u32 s28, s28, {KB}")
    a("s_lshl_b32 s29, s24, 21")
    a("s_add_u32 s29, s29, s21")
    a(f"s_add_u32 s29, s29, {B_K:#x}")

    def dma(first_tile, per_wave):
        a(f"s_mul_i32 s24, s25, {per_wave*1024}")
        if first_tile:
            a(f"s_add_u32 s24, s24, {first_tile*1024}")
        n = 0
        while n < per_wave:
            a("s_add_u32 s30, s28, s24")
            a("s_mov_b32 m0, s30")
            a("s_add_u32 s31, s29, s24")
            for i in range(min(4, per_wave - n)):
                a(f"buffer_load_dwordx4 v{V_L16}, s[4:7], s31 offen offset:{i*1024}{SC} lds")
            n += 4
            if n < per_wave:
                a("s_add_u32 s24, s24, 4096")
    a(f"v_and_b32 v{t0}, 11, v0")
    a(f"v_cmp_eq_u32 vcc, 0, v{t0}")
    a(f"v_mov_b32 v{t1}, 0x3f803f80")
    a("s_lshl_b32 s30, s26, 10")
    a(f"s_add_u32 s30, s30, {CB}")
    a(f"v_cndmask_b32 v{P}, 0, v{t1}, vcc")
    a(f"v_add_u32 v{t0}, s30, v{V_L16}")
    for i in range(1, 4):
        a(f"v_mov_b32 v{P+i}, v{P}")
    a(f"ds_write_b128 v{t0}, {vr(P,4)}")
    a(f"v_lshrrev_b32 v{t0}, 5, v0")
    a(f"v_lshlrev_b32 v{t0}, 8, v{t0}")
    a(f"v_and_b32 v{t1}, 15, v0")
    a(f"v_lshl_add_u32 v{t0}, v{t1}, 4, v{t0}")
    a(f"v_and_b32 v{t1}, 16, v0")
    a(f"v_cmp_eq_u32 vcc, 0, v{t1}")
    a("s_lshl_b32 s30, s27, 15")
    a(f"s_add_u32 s30, s30, {KB}")
    kp1, kpj = a.label("kp1"), a.label("kpj")
    a(f"s_cmp_lg_u32 s{S_IT}, 0")
    a(f"s_cbranch_scc1 {kp1}")
    a(f"v_and_b32 v{vKp}, 0x33, v0")
    a(f"v_bfe_u32 v{vIx}, v0, 2, 1")
    a(f"v_lshl_or_b32 v{vKp}, v{vIx}, 3, v{vKp}")
    a(f"v_bfe_u32 v{vIx}, v0, 3, 1")
    a(f"v_lshl_or_b32 v{vKp}, v{vIx}, 2, v{vKp}")
    a(f"s_branch {kpj}")
    a(f"{kp1}:")
    a(f"v_and_b32 v{vKp}, 0x23, v0")
    a(f"v_bfe_u32 v{vIx}, v0, 2, 1")
    a(f"v_lshl_or_b32 v{vKp}, v{vIx}, 4, v{vKp}")
    a(f"v_bfe_u32 v{vIx}, v0, 3, 2")
    a(f"v_lshl_or_b32 v{vKp}, v{vIx}, 2, v{vKp}")
    a(f"{kpj}:")
    a(f"v_lshlrev_b32 v{vKp}, 4, v{vKp}")
    a(f"v_mov_b32 v{vIx}, 0xdddddddd")
    a(f"v_add_u32 v{vK}, s30, v{vKp}")
    a("s_add_u32 s31, s30, 0x10000")
    a(f"v_mov_b32 v{t1}, s31")
    a(f"v_mov_b32 v{vInc}, {CB}")
    a(f"v_cndmask_b32 v{t1}, v{vInc}, v{t1}, vcc")
    a(f"v_add_u32 v{vV}, v{t0}, v{t1}")
    a(f"v_mov_b32 v{t1}, {VB}")
    a(f"v_cndmask_b32 v{t1}, v{vInc}, v{t1}, vcc")
    a(f"v_add_u32 v{vV0}, v{t0}, v{t1}")
    a(f"v_mov_b32 v{t1}, {U*1024}")
    a(f"v_cndmask_b32 v{vInc}, 0, v{t1}, vcc")
    for q in range(2):
        for i in range(16):
            a(f"v_mov_b32 v{O[q]+i}, 0")
    for i in range(4, 8):
        a(f"v_mov_b32 v{VF[1]+i}, 0")
    a(f"ds_write_b128 v{V_L16}, {vr(VF[1]+4,4)} offset:{XB + 9216}")
    a("s_mul_i32 s30, s26, 2304")
    a(f"s_add_u32 s30, s30, {XB}")
    a("s_lshl_b32 s31, s26, 12")
    a(f"s_add_u32 s31, s31, {XB + 12288}")
    a("s_cmp_eq_u32 s27, 0")
    a("s_cselect_b32 s35, s30, s31")
    a("s_cselect_b32 s36, s31, s30")
    a(f"v_add_u32 v{vPA}, s35, v{V_L16}")
    a(f"v_add_u32 v{vPP}, s36, v{V_L16}")
    a(f"v_add_u32 v{vPA+2}, s35, v{V_L4}")
    a(f"v_add_u32 v{vPP+2}, s36, v{V_L4}")
    a("s_add_u32 s20, s20, s27")
    a("s_lshl_b32 s22, s20, 10")
    a("s_add_u32 s22, s22, s21")
    a("s_xor_b32 s35, s22, 1024")
    a(f"s_add_u32 s36, s21, {B_K:#x}")
    a("s_lshr_b32 s23, s19, 1")
    a(f"s_cmp_eq_u32 s{S_IT}, 0")
    a("s_cselect_b32 s53, 32, 16")
    a("s_cselect_b32 s52, -2, -1")
    a(f"s_cselect_b32 s32, {NIT - env('ATT_PRIO0', 16)}, {NIT - PRIO_IT}")
    a("s_and_b32 s23, s23, s52")
    a("s_lshl_b32 s23, s23, 8")
    a(f"s_add_u32 s23, s23, s{S_FL}")
    assert FL_Q == 0
    a(f"s_mov_b32 s34, {NIT - B2IT}")
    a(f"s_mov_b32 s33, {NIT - B3IT}")
    a("s_waitcnt vmcnt(0) lgkmcnt(0)")
    stamp(a, SB)
    a("s_barrier")
    a(f"s_cmp_lg_u32 s{S_WAVE}, 0")
    a(f"s_cbranch_scc1 {setup}")
    handoff(a, 23, "s53")
    stamp(a, SB + 1)
    a(f"{setup}:")
    a("s_barrier")

    def qk_loads():
        a(f"buffer_load_dwordx4 {vr(KF[1],4)}, v{vKp}, s[4:7], s36 offen{SC}")
        a(f"buffer_load_dwordx4 {vr(Q[0],4)}, v{V_L16}, s[4:7], s35 offen{SC}")
        a(f"buffer_load_dwordx4 {vr(Q[1],4)}, v{V_L16}, s[4:7], s22 offen{SC}")

    def standin():
        for q in range(2):
            a(f"{MFMA} {vr(S[q],16)}, {vr(KF[1],4)}, {vr(Q[q],4)}, 0")
        a("s_nop 11")
        tt = (t0, t1)
        for q in range(2):
            a(f"v_max3_f32 v{tt[q]}, v{S[q]}, v{S[q]+1}, v{S[q]+2}")
            a(f"v_max3_f32 v{P+q}, v{S[q]+8}, v{S[q]+9}, v{S[q]+10}")
        for i in (3, 5):
            for q in range(2):
                a(f"v_max3_f32 v{tt[q]}, v{tt[q]}, v{S[q]+i}, v{S[q]+i+1}")
                a(f"v_max3_f32 v{P+q}, v{P+q}, v{S[q]+8+i}, v{S[q]+9+i}")
        for q in range(2):
            a(f"v_max3_f32 v{tt[q]}, v{tt[q]}, v{S[q]+7}, v{S[q]+15}")
        for q in range(2):
            a(f"v_max_f32 v{tt[q]}, v{tt[q]}, v{P+q}")
        for q in range(2):
            a(f"v_mov_b32 v{P+q}, v{tt[q]}")
        a("s_nop 0")
        for q in range(2):
            a(f"v_permlane32_swap_b32 v{tt[q]}, v{P+q}")
        for q in range(2):
            a(f"v_min_f32 v{NM[q]}, -v{tt[q]}, -v{P+q}")
        for q in range(2):
            a(f"v_mov_b32 v{NM[q]+1}, v{NM[q]}")
        for q in range(2):
            for i in range(2, 16, 2):
                a(f"v_pk_mov_b32 {vr(NM[q]+i,2)}, {vr(NM[q],2)}, {vr(NM[q],2)}")

    older, join = a.label("older"), a.label("join")
    a("s_cmp_eq_u32 s27, 0")
    a(f"s_cbranch_scc1 {older}")
    dma(0, 2)
    dma(4, 6)
    a("s_waitcnt vmcnt(6)")
    a("s_barrier")
    stamp(a, SB + 2)
    qk_loads()
    dma(16, 8)
    a("s_waitcnt vmcnt(11)")
    a("s_barrier")
    dma(32, 16)
    a("s_waitcnt vmcnt(24)")
    standin()
    F, G_, vS, vR, vC = V_TF, V_TF + 32, V_TF + 48, V_TF + 49, V_TF + 52
    CSA = XB + 10240
    CNT = XB + 9216
    a.c("L2 prefetch: this wave's share of gate/up (2 x 8 KB) and wo (8 KB)")
    a(f"s_mul_i32 s50, s{S_IDX}, {WNT_G // 4}")
    a(f"s_and_b32 s23, s{S_XCD}, 1")
    a(f"s_mul_i32 s23, s23, {8*WNT_G}")
    a("s_add_u32 s50, s50, s23")
    a("s_lshl_b32 s23, s26, 14")
    a("s_add_u32 s50, s50, s23")
    a(f"s_add_u32 s50, s50, {WS_WGU:#x}")
    a(f"s_lshl_b32 s51, s{S_IDX}, 14")
    a("s_and_b32 s23, s26, 1")
    a("s_lshl_b32 s23, s23, 13")
    a("s_add_u32 s51, s51, s23")
    a(f"s_add_u32 s51, s51, {WS_WO:#x}")
    a(f"s_mov_b32 s39, {SPIN_MAX}")
    second, both = a.label("second"), a.label("both")
    a(f"s_cmp_lg_u32 s{S_IT}, 0")
    a(f"s_cbranch_scc1 {second}")
    a.c("re-tiling task: 128 rows x two 64-column strips; this wave takes 32 rows")
    def by_type(fq, fg, fo, fd):
        l_gu, l_o, l_d, l_go = [a.label(x) for x in ("gu", "o", "d", "go")]
        a("s_cmp_ge_u32 s2, 176")
        a(f"s_cbranch_scc1 {l_d}")
        a("s_cmp_ge_u32 s2, 160")
        a(f"s_cbranch_scc1 {l_o}")
        a("s_cmp_ge_u32 s2, 48")
        a(f"s_cbranch_scc1 {l_gu}")
        fq()
        a(f"s_branch {l_go}")
        a(f"{l_gu}:")
        fg()
        a(f"s_branch {l_go}")
        a(f"{l_o}:")
        fo()
        a(f"s_branch {l_go}")
        a(f"{l_d}:")
        fd()
        a(f"{l_go}:")
    def src(lo0, lo1, nbytes, first, stride, kq_low):
        def f():
            srd(a, 80, lo0, lo0 + 1, nbytes)
            srd(a, 84, lo1, lo1 + 1, nbytes)
            a(f"s_sub_u32 s55, s2, {first}")
            a(f"s_and_b32 s{79 if kq_low else 91}, s55, 3")
            a(f"s_lshr_b32 s{91 if kq_low else 79}, s55, 2")
            a(f"s_mov_b32 s88, {stride}")
            a(f"s_lshl_b32 s89, s91, {8 if lo0 == lo1 else 7}")
            a(f"s_add_u32 s90, s89, {128 if lo0 == lo1 else 0}")
        return f
    by_type(src(66, 66, 512 * 1536 * 2, 0, 3072, True), src(72, 74, 512 * 1792 * 2, 48, 3584, True),
            src(68, 68, 512 * 512 * 2, 160, 1024, False), src(76, 76, 1792 * 512 * 2, 176, 1024, False))
    a("s_lshl2_add_u32 s92, s79, s26")
    a("s_lshl_b32 s62, s92, 5")
    a("s_mul_i32 s62, s62, s88")
    a("s_add_u32 s89, s89, s62")
    a("s_add_u32 s90, s90, s62")
    a("s_lshl_b32 s55, s88, 3")
    a(f"v_lshrrev_b32 v{vS}, 3, v0")
    a(f"v_mul_lo_u32 v{vS}, v{vS}, s88")
    a(f"v_and_b32 v{vR}, 7, v0")
    a(f"v_lshl_add_u32 v{vS}, v{vR}, 4, v{vS}")
    for g8 in range(4):
        for h in range(2):
            a(f"buffer_load_dwordx4 {vr(F+16*h+4*g8,4)}, v{vS}, s[{80+4*h}:{83+4*h}], s{89+h} offen")
            a(f"s_add_u32 s{89+h}, s{89+h}, s55")
    a("s_mov_b32 s33, 1")
    a(f"s_mov_b32 s34, {NIT - env('ATT_G0', 4)}")
    a("s_waitcnt vmcnt(8)")
    a(f"s_branch {both}")
    a(f"{second}:")
    a("s_mov_b32 s33, 6")
    a(f"s_mov_b32 s34, {NIT - 1}")
    a("s_waitcnt vmcnt(0)")
    a(f"{both}:")
    a("s_barrier")
    a("s_setprio 1")
    a(f"ds_read_b128 {vr(KF[0],4)}, v{vK}")
    a(f"ds_read_b128 {vr(VF[0],4)}, v{vV}")
    a(f"ds_read_b128 {vr(VF[0]+4,4)}, v{vV} offset:512")
    a("s_waitcnt lgkmcnt(0)")
    a(f"{MFMA} {vr(S[0],16)}, {vr(KF[0],4)}, {vr(Q[0],4)}, {vr(NM[0],16)}")
    a("s_nop 10")
    a(f"s_branch {join}")
    a(f"{older}:")
    qk_loads()
    a("s_waitcnt vmcnt(0)")
    standin()
    a(f"{MFMA} {vr(S[0],16)}, {vr(KF[1],4)}, {vr(Q[0],4)}, {vr(NM[0],16)}")
    a("s_barrier")
    stamp(a, SB + 2)
    a(f"ds_read_b128 {vr(VF[0],4)}, v{vV}")
    a(f"ds_read_b128 {vr(VF[0]+4,4)}, v{vV} offset:512")
    for i in range(0, 4, 2):
        a(f"v_pk_mov_b32 {vr(KF[0]+i,2)}, {vr(KF[1]+i,2)}, {vr(KF[1]+i,2)} op_sel:[0,1]")
    a("s_waitcnt lgkmcnt(0)")
    a("s_nop 5")
    a(f"{join}:")
    a(f"s_mov_b32 s31, {NIT}")
    stamp(a, SB + 3)
    lp, hook, back, hp, exitc = [a.label(x) for x in ("attn", "hook", "back", "hookp", "exitc")]
    a(f"{lp}:")
    order = os.environ.get("ATT_ORD", "E0 E1 P1 RK D E2 E3 E4 W QK R0 E5 E6 E7 E8 E9 E10 P0 R1 S E11 E12 E13 A E14 E15").split()
    for u in range(U):
        for q in range(2):
            c = S[q]
            for tok in order:
                if tok[0] == "E":
                    i = int(tok[1:]); a(f"v_exp_f32 v{c+i}, v{c+i}")
                elif tok[0] == "C":
                    j = int(tok[1:]); a(f"v_cvt_pk_bf16_f32 v{P+j}, v{c+2*j}, v{c+2*j+1}")
                elif tok == "P1":
                    pv = VF[(u + 1) & 1] if q == 0 else VF[u & 1]
                    a(f"{SMF} {vr(O[q^1],16)}, {vr(pv+4,4)}, {vr(S[q^1]+8,8)}, v{vIx}")
                elif tok == "P0":
                    a(f"{SMF} {vr(O[q],16)}, {vr(VF[u&1],4)}, {vr(S[q],8)}, v{vIx}")
                elif tok == "QK":
                    k_ = KF[u & 1] if q == 0 else KF[(u + 1) & 1]
                    a(f"{MFMA} {vr(S[q^1],16)}, {vr(k_,4)}, {vr(Q[q^1],4)}, {vr(NM[q^1],16)}")
                elif tok == "W":
                    if q == 1:
                        a("s_waitcnt lgkmcnt(0)")
                elif tok == "RK":
                    if q == 0:
                        a(f"ds_read_b128 {vr(KF[(u+1)&1],4)}, v{vK} offset:{(u+1)*1024}")
                elif tok == "R0":
                    if q == 0:
                        a(f"ds_read_b128 {vr(VF[(u+1)&1],4)}, v{vV} offset:{(u+1)*1024}")
                elif tok == "R1":
                    if q == 0:
                        a(f"ds_read_b128 {vr(VF[(u+1)&1]+4,4)}, v{vV} offset:{(u+1)*1024+512}")
                elif tok == "A":
                    if u == U - 1 and q == 1:
                        a(f"v_add_u32 v{vK}, {U*1024}, v{vK}")
                        a(f"v_add_u32 v{vV}, v{vInc}, v{vV}")
                elif tok == "D":
                    if 2 * u + q == env("ATT_PU", 1):
                        sk = a.label("keep")
                        a("s_cmp_lg_u32 s31, s32")
                        a(f"s_cbranch_scc1 {sk}")
                        a("s_setprio 0")
                        a(f"{sk}:")
                elif tok == "S":
                    if u == U - 1 and q == 1:
                        a("s_sub_u32 s31, s31, 1")
                        a("s_cmp_lg_u32 s31, s34")
    if "S" not in order:
        a("s_sub_u32 s31, s31, 1")
        a("s_cmp_lg_u32 s31, s34")
    a(f"s_cbranch_scc1 {lp}")
    a("s_cmp_lg_u32 s31, 0")
    a(f"s_cbranch_scc1 {hook}")
    a(f"{exitc}:")
    a("s_cmp_lg_u32 s33, 0")
    a(f"s_cbranch_scc1 {hp}")
    a("s_setprio 0")
    a(f"{SMF} {vr(O[1],16)}, {vr(VF[1]+4,4)}, {vr(S[1]+8,8)}, v{vIx}")
    stamp(a, SB + 4)
    a(f"ds_write_b128 v{vPA}, {vr(O[0],4)}")
    a(f"ds_write_b128 v{vPA}, {vr(O[0]+4,4)} offset:1024")
    a(f"ds_write_b32 v{vPA+2}, v{O[0]+8} offset:2048")
    a("s_lshl_b32 s22, s20, 15")
    a("s_lshl_b32 s23, s19, 10")
    a("s_add_u32 s22, s22, s23")
    a(f"s_add_u32 s22, s22, s{S_BASE}")
    a(f"s_add_u32 s22, s22, {B_O:#x}")
    a(f"s_lshl_b32 s{S_SIG}, s20, 8")
    a(f"s_add_u32 s{S_SIG}, s{S_SIG}, s{S_FL}")
    a(f"s_add_u32 s{S_SIG}, s{S_SIG}, {FL_A:#x}")
    a("s_waitcnt vmcnt(0) lgkmcnt(0)")
    a("s_barrier")
    a(f"ds_read_b32 v{S[0]+8}, v{vPP+2} offset:2048")
    a(f"ds_read_b128 {vr(S[0],4)}, v{vPP}")
    a(f"ds_read_b128 {vr(S[0]+4,4)}, v{vPP} offset:1024")
    OO = O[1]
    a("s_waitcnt lgkmcnt(2)")
    a(f"v_add_f32 v{OO+8}, v{OO+8}, v{S[0]+8}")
    a(f"v_rcp_f32 v{t0}, v{OO+8}")
    for i in range(0, 8, 2):
        if i % 4 == 0:
            a(f"s_waitcnt lgkmcnt({1 - i // 4})")
        a(f"v_pk_add_f32 {vr(OO+i,2)}, {vr(OO+i,2)}, {vr(S[0]+i,2)}")
    fin, fb, endl = a.label("fin"), a.label("fallback"), a.label("att_end")
    a(f"v_pk_add_f32 {vr(S[0],2)}, {vr(OO,2)}, {vr(OO+2,2)}")
    a(f"v_pk_add_f32 {vr(S[0]+2,2)}, {vr(OO+4,2)}, {vr(OO+6,2)}")
    a(f"v_pk_add_f32 {vr(S[0],2)}, {vr(S[0],2)}, {vr(S[0]+2,2)}")
    a(f"v_add_f32 v{t1}, v{S[0]}, v{S[0]+1}")
    a(f"v_fma_f32 v{t1}, 0, v{t1}, v{OO+8}")
    a(f"v_cmp_ngt_f32 vcc, {f32bits(2.0**64):#x}, v{t1}")
    a("s_nop 0")
    a(f"s_cbranch_vccnz {fb}")
    a(f"{fin}:")
    assert t0 % 2 == 0
    for i in range(0, 8, 2):
        a(f"v_pk_mul_f32 {vr(OO+i,2)}, {vr(OO+i,2)}, {vr(t0,2)} op_sel_hi:[1,0]")
    for i in range(4):
        a(f"v_cvt_pk_bf16_f32 v{P+i}, v{OO+2*i}, v{OO+2*i+1}")
    a(f"buffer_store_dwordx4 {vr(P,4)}, v{V_L16}, s[4:7], s22 offen{SC}")
    a("s_barrier")
    stamp(a, SB + 5)
    a(f"s_branch {endl}")
    a(f"{back}:")
    a("s_cmp_lg_u32 s31, 0")
    a(f"s_cbranch_scc1 {lp}")
    a("s_sub_u32 s39, s39, 1")
    a("s_cmp_eq_u32 s39, 0")
    a("s_cselect_b32 s33, 0, s33")
    a(f"s_branch {exitc}")
    a(f"{hook}:")
    a("s_cmp_eq_u32 s27, 0")
    a(f"s_cbranch_scc0 {hp}")
    a("s_barrier")
    a("s_mov_b32 s34, s33")
    a("s_mov_b32 s33, 0")
    a(f"s_add_u32 s23, s34, s{S_IT}")
    a("s_cmp_lg_u32 s23, 0")
    a(f"s_cbranch_scc1 {back}")
    a.c("residual tile of x for the first output projection")
    row_offset(a, V_TF, V_TF + 1)
    a(f"s_and_b32 s23, s{S_WAVE}, 1")
    a(f"s_add_u32 s23, s23, s{S_TT64}")
    a("s_lshl_b32 s23, s23, 15")
    a(f"s_lshl_b32 s24, s{S_NT64}, 1")
    a(f"s_lshr_b32 s25, s{S_WAVE}, 1")
    a("s_add_u32 s24, s24, s25")
    a("s_lshl_b32 s24, s24, 6")
    a("s_add_u32 s23, s23, s24")
    a(f"buffer_load_dwordx4 {vr(V_RES,4)}, v{V_TF}, s[8:11], s23 offen")
    a("s_add_u32 s24, s23, 16384")
    a(f"buffer_load_dwordx4 {vr(V_RES+4,4)}, v{V_TF}, s[8:11], s24 offen")
    a(f"s_branch {back}")
    a(f"{hp}:")
    hs = [a.label(f"hs{i}") for i in range(8)]
    for i in (1, 2, 3, 4, 5, 6):
        a(f"s_cmp_eq_u32 s33, {i}")
        a(f"s_cbranch_scc1 {hs[i]}")
    HS = -9
    def goto(step, gap):
        a(f"s_mov_b32 s33, {step}")
        a(f"s_max_u32 s34, s34, {gap}")
        a(f"s_sub_u32 s34, s34, {gap}")
        a(f"s_branch {back}")
    def next_step(i):
        goto(i + 1, env(f"ATT_G{i}", 3))
    a.c("fetch the last rounds of the down weights into free registers")
    a(f"s_mul_i32 s23, s{S_NT64}, {224*1024}")
    a("s_lshl_b32 s62, s26, 12")
    a("s_add_u32 s23, s23, s62")
    a(f"s_add_u32 s23, s23, {WS_WD + (14 - NPRE)*RB:#x}")
    assert VS + (14 - NPRE) * 16 >= V_TF
    for k in range(NPRE):
        for i in range(4):
            a(f"buffer_load_dwordx4 {vr(VS + (14-NPRE+k)*16 + 4*i, 4)}, v{V_L16}, s[4:7], s23 offen offset:{i*1024}{SC}")
        a(f"s_add_u32 s23, s23, {RB}")
    a("s_mov_b32 s33, 0")
    a("s_mov_b32 s34, 0")
    a(f"s_branch {back}")
    a(f"{hs[1]}:")
    nost = a.label("nostore")
    a("s_cmp_ge_u32 s2, 232")
    a(f"s_cbranch_scc1 {nost}")
    dests, strides = (96, 97, 100, 101), (80, 81, 82, 83)
    vO = vC + 8
    a(f"v_mov_b32 v{vO}, v{V_L16}")
    def plain(d1, delta, stride, cs):
        a("s_add_u32 s97, s96, 1024")
        a(f"s_add_u32 s100, s96, {d1}")
        a(f"s_add_u32 s101, s96, {d1 + 1024}")
        a(f"s_mov_b32 s93, {delta}")
        for e in strides:
            a(f"s_mov_b32 s{e}, {stride}")
        a(f"s_mov_b32 s63, {cs}")
    def dq():
        a("s_and_b32 s62, s91, 3")
        a(f"s_mul_i32 s96, s62, {4*WNT_Q}")
        a("s_lshr_b32 s62, s91, 2")
        a("s_lshr_b32 s78, s62, 1")
        a("s_lshl_b32 s62, s62, 11")
        a("s_add_u32 s96, s96, s62")
        assert WS_WQKV == 0
        plain(WNT_Q, 2 * WNT_Q, 6144, 1)
    def dg():
        a("s_lshl_b32 s55, s91, 2")
        for d, e in zip(dests, strides):
            a("s_mul_i32 s62, s55, 9363")
            a("s_lshr_b32 s62, s62, 16")
            a(f"s_mul_i32 s{d}, s62, {WNT_G}")
            a("s_mul_i32 s62, s62, 7")
            a("s_sub_u32 s62, s55, s62")
            pass_of(a, 62, 78, e)
            a(f"s_lshl_b32 s{e}, s{e}, 11")
            a("s_lshl4_add_u32 s62, s78, s62")
            a("s_lshl_b32 s62, s62, 11")
            a(f"s_add_u32 s{d}, s{d}, s62")
            a(f"s_add_u32 s{d}, s{d}, {WS_WGU:#x}")
            a("s_add_u32 s55, s55, 1")
        a("s_mov_b32 s93, 1024")
        a("s_mov_b32 s63, 1")
        a("s_mov_b32 s78, 1")
    def do():
        a("s_lshl_b32 s96, s91, 17")
        a(f"s_add_u32 s96, s96, {WS_WO:#x}")
        plain(2048, 64 * 1024, 4096, 0)
        a("s_mov_b32 s78, 0")
    def dd():
        a(f"s_mul_i32 s96, s91, {2*224*1024}")
        a(f"s_add_u32 s96, s96, {WS_WD:#x}")
        plain(2048, 224 * 1024, 0, 0)
        for d, inc in ((84, 0), (85, 1)):
            a("s_lshl_b32 s62, s92, 1")
            a(f"s_add_u32 s62, s62, {inc}")
            a("s_mul_i32 s54, s62, 9363")
            a("s_lshr_b32 s54, s54, 16")
            a("s_mul_i32 s55, s54, 7")
            a("s_sub_u32 s55, s62, s55")
            pass_of(a, 55, 78, 49)
            a("s_mul_i32 s54, s54, s49")
            a("s_mul_i32 s78, s78, 15")
            a("s_add_u32 s54, s54, s78")
            a("s_add_u32 s54, s54, s55")
            a("s_lshr_b32 s55, s54, 1")
            a("s_lshl_b32 s55, s55, 12")
            a("s_and_b32 s54, s54, 1")
            a("s_lshl_b32 s54, s54, 9")
            a(f"s_add_u32 s{d}, s54, s55")
        a("v_cmp_gt_u32 vcc, 32, v0")
        a(f"v_mov_b32 v{vC}, s84")
        a(f"v_mov_b32 v{vC+1}, s85")
        a(f"v_cndmask_b32 v{vC}, v{vC+1}, v{vC}, vcc")
        a(f"v_and_b32 v{vO}, 0x1ff, v{V_L16}")
        a(f"v_add_u32 v{vO}, v{vO}, v{vC}")
        a("s_mov_b32 s78, 0")
    by_type(dq, dg, do, dd)
    a("s_lshl_b32 s62, s26, 12")
    a(f"s_add_u32 s62, s62, {XB + 12288}")
    a(f"v_add_u32 v{vS}, s62, v{V_L16}")
    a(f"v_and_b32 v{vC}, 1, v0")
    a(f"v_bfe_u32 v{vC+1}, v0, 1, 1")
    a(f"v_lshl_add_u32 v{vC}, v{vC}, 1, v{vC+1}")
    a(f"v_and_b32 v{vC+1}, 3, v0")
    a(f"v_lshlrev_b32 v{vC+1}, 1, v{vC+1}")
    a("s_cmp_eq_u32 s78, 0")
    a("s_cselect_b64 vcc, -1, 0")
    a("s_cselect_b32 s55, 8, 32")
    a(f"v_lshrrev_b32 v{vR}, 4, v0")
    a(f"v_cndmask_b32 v{vC}, v{vC}, v{vC+1}, vcc")
    a(f"v_bfe_u32 v{vC+1}, v0, 2, 2")
    a(f"v_lshl_add_u32 v{vR}, v{vR}, 3, v{vC+1}")
    a(f"v_lshlrev_b32 v{vR}, 7, v{vR}")
    a(f"v_lshl_add_u32 v{vR}, v{vC}, 3, v{vR}")
    a(f"v_add_u32 v{vR}, s62, v{vR}")
    a(f"v_add_u32 v{vR+1}, s55, v{vR}")
    a("s_mov_b32 s49, 0x3f803f80")
    a("s_waitcnt vmcnt(0)")
    for h in range(2):
        dst = G_ if h == 0 else F
        for g8 in range(4):
            a(f"ds_write_b128 v{vS}, {vr(F+16*h+4*g8,4)} offset:{g8*1024}")
        for e in range(4):
            for jj in range(2):
                a(f"ds_read_b64_tr_b16 {vr(dst+4*e+2*jj,2)}, v{vR + (e&1)} offset:{(e>>1)*64 + jj*512}")
        a("s_waitcnt lgkmcnt(0)")
        for e in range(4):
            a(f"s_mul_i32 s62, s92, s{strides[e]}")
            a(f"s_add_u32 s62, s62, s{dests[e]}")
            if h:
                a("s_add_u32 s62, s62, s93")
            a(f"buffer_store_dwordx4 {vr(dst+4*e,4)}, v{vO}, s[4:7], s62 offen{SC}")
    a("s_cmp_eq_u32 s63, 0")
    a(f"s_cbranch_scc1 {nost}")
    for k in range(4):
        for h in range(2):
            for e in range(4):
                c, x = vC + 4 * h + e, (G_ if h == 0 else F) + 4 * e + k
                if k == 0:
                    a(f"v_dot2_f32_bf16 v{c}, v{x}, s49, 0")
                else:
                    a(f"v_dot2_f32_bf16 v{c}, v{x}, s49, v{c}")
    a("s_lshl_b32 s62, s26, 9")
    a(f"v_add_u32 v{vS}, s62, v{V_L4}")
    a(f"v_mov_b32 v{vR}, 1")
    a(f"v_mov_b32 v{vR+1}, {CNT}")
    for h in range(2):
        for e in range(2):
            a(f"v_permlane32_swap_b32 v{vC+4*h+e}, v{vC+4*h+e+2}")
    for h in range(2):
        for e in range(2):
            a(f"v_add_f32 v{vC+4*h+e}, v{vC+4*h+e}, v{vC+4*h+e+2}")
    a("s_nop 0")
    for h in range(2):
        a(f"v_permlane16_swap_b32 v{vC+4*h}, v{vC+4*h+1}")
    for h in range(2):
        a(f"v_add_f32 v{vC+4*h}, v{vC+4*h}, v{vC+4*h+1}")
    for h in range(2):
        a(f"ds_write_b32 v{vS}, v{vC+4*h} offset:{CSA + h*256}")
    a("s_mov_b64 exec, 1")
    a(f"ds_add_rtn_u32 v{vR+2}, v{vR+1}, v{vR}")
    a("s_mov_b64 exec, -1")
    a("s_waitcnt lgkmcnt(0)")
    a(f"v_readfirstlane_b32 s62, v{vR+2}")
    a("s_nop 0")
    a("s_cmp_lg_u32 s62, 3")
    a(f"s_cbranch_scc1 {nost}")
    a.c("last of the four waves: write the column-sum pieces")
    for w in range(4):
        for h in range(2):
            a(f"ds_read_b32 v{F+16+2*w+h}, v{V_L4} offset:{CSA + w*512 + h*256}")
    a(f"v_and_b32 v{vS}, 0xff, v{V_L16}")
    for e in range(4):
        a(f"s_lshl4_add_u32 s62, s{strides[e]}, s{dests[e]}")
        a(f"s_mov_b32 exec_lo, {(0xffff << (16*e)) & 0xffffffff if e < 2 else 0:#x}")
        a(f"s_mov_b32 exec_hi, {(0xffff << (16*(e-2))) if e >= 2 else 0:#x}")
        a(f"v_add_u32 v{vS}, s62, v{vS}")
    a("s_mov_b64 exec, -1")
    a("s_lshl_b32 s92, s79, 8")
    a("s_add_u32 s62, s92, s93")
    a("s_waitcnt lgkmcnt(0)")
    for h in range(2):
        c, o = F + 16 + h, F + 24 + 4 * h
        for w in range(1, 4):
            a(f"v_add_f32 v{c}, v{c}, v{c+2*w}")
        a(f"v_cvt_pk_bf16_f32 v{o}, v{c}, v{c}")
        a(f"v_lshlrev_b32 v{o}, 16, v{o}")
        a(f"v_sub_f32 v{o}, v{c}, v{o}")
        a(f"v_cvt_pk_bf16_f32 v{o}, v{c}, v{o}")
        a(f"v_mov_b32 v{o+1}, v{o}")
        a(f"v_mov_b32 v{o+2}, 0")
        a(f"v_mov_b32 v{o+3}, 0")
        a(f"buffer_store_dwordx4 {vr(o,4)}, v{vS}, s[4:7], s{(92, 62)[h]} offen{SC}")
    a(f"{nost}:")
    next_step(1)
    a(f"{hs[2]}:")
    if 2 - HS in (0, 1):
        stamp(a, 2 * (2 - HS))
    nsig = a.label("nosig")
    a(f"v_mov_b32 v{vR}, 1")
    a(f"v_mov_b32 v{vR+1}, {CNT + 4}")
    a("s_waitcnt vmcnt(0)")
    a("s_mov_b64 exec, 1")
    a(f"ds_add_rtn_u32 v{vR+2}, v{vR+1}, v{vR}")
    a("s_mov_b64 exec, -1")
    a("s_and_b32 s23, s2, 15")
    a("s_lshl_b32 s23, s23, 8")
    a(f"s_add_u32 s23, s23, {FL_W:#x}")
    a("s_mov_b32 s38, 1")
    a("s_waitcnt lgkmcnt(0)")
    a(f"v_readfirstlane_b32 s62, v{vR+2}")
    a("s_nop 0")
    a("s_cmp_lg_u32 s62, 3")
    a(f"s_cbranch_scc1 {nsig}")
    a("s_atomic_add s38, s[14:15], s23")
    a(f"{nsig}:")
    if env("WARM", 1):
        a.c("pull the rest of the code into L2 and touch every workspace page once")
        here = a.label("here")
        a("s_getpc_b64 s[98:99]")
        a(f"{here}:")
        a("s_lshl_b32 s62, s26, 13")
        a(f"v_add_u32 v{vC}, s62, v{V_L128}")
        a(f"v_min_u32 v{vC}, {code_end} - {here}, v{vC}")
        a(f"v_lshlrev_b32 v{vC+1}, 20, v0")
        a(f"global_load_dword v{V_PF}, v{vC}, s[98:99]")
        a(f"buffer_load_dword v{V_PF}, v{vC+1}, s[4:7], 0 offen sc1")
    next_step(2)
    a(f"{hs[3]}:")
    a.c("the re-tiled weights are complete once all 16 arrival counters are")
    a(f"s_cmp_lg_u32 s{S_WAVE}, 4")
    a(f"s_cbranch_scc1 {hs[5]}")
    ask = a.label("ask")
    a(f"{ask}:")
    a(f"v_and_b32 v{vS}, 15, v0")
    a(f"v_lshlrev_b32 v{vS}, 8, v{vS}")
    a(f"s_mov_b32 s23, {WS_FLAG + FL_W:#x}")
    a(f"buffer_load_dword v{vR}, v{vS}, s[4:7], s23 offen sc1")
    goto(4, 1)
    a(f"{hs[4]}:")
    a("s_waitcnt vmcnt(0)")
    a(f"v_cmp_gt_u32 vcc, 16, v{vR}")
    a(f"v_mov_b32 v{vS}, {CNT + 8}")
    a(f"s_cbranch_vccnz {ask}")
    a(f"ds_write_b32 v{vS}, v{vS}")
    a(f"s_branch {hs[6]}")
    a(f"{hs[5]}:")
    a(f"v_mov_b32 v{vS}, {CNT + 8}")
    a(f"ds_read_b32 v{vR}, v{vS}")
    a("s_waitcnt lgkmcnt(0)")
    a(f"v_cmp_eq_u32 vcc, 0, v{vR}")
    a("s_nop 0")
    a(f"s_cbranch_vccz {hs[6]}")
    goto(5, 1)
    a(f"{hs[6]}:")
    a("s_add_u32 s23, s50, 8192")
    a(f"buffer_load_dword v{V_PF}, v{V_L128}, s[4:7], s51 offen{SC}")
    a(f"buffer_load_dword v{V_PF}, v{V_L128}, s[4:7], s50 offen{SC}")
    a(f"buffer_load_dword v{V_PF}, v{V_L128}, s[4:7], s23 offen{SC}")
    goto(7, env("ATT_G6", 2))
    a(f"{fb}:")
    a(f"v_add_u32 v{vK}, {KB}, v{vKp}")
    a(f"v_mov_b32 v{t0}, 0xff800000")
    a("s_mov_b32 s31, 64")
    lp2 = a.label("maxl")
    a(f"{lp2}:")
    a(f"ds_read_b128 {vr(KF[0],4)}, v{vK}")
    a(f"v_add_u32 v{vK}, 1024, v{vK}")
    a("s_waitcnt lgkmcnt(0)")
    a(f"{MFMA} {vr(S[0],16)}, {vr(KF[0],4)}, {vr(Q[1],4)}, 0")
    a("s_nop 15")
    for i in range(0, 16, 2):
        a(f"v_max3_f32 v{t0}, v{t0}, v{S[0]+i}, v{S[0]+i+1}")
    a("s_sub_u32 s31, s31, 1")
    a("s_cmp_lg_u32 s31, 0")
    a(f"s_cbranch_scc1 {lp2}")
    a(f"v_mov_b32 v{t1}, v{t0}")
    a("s_nop 1")
    a(f"v_permlane32_swap_b32 v{t0}, v{t1}")
    a("s_nop 1")
    a(f"v_max_f32 v{t0}, v{t0}, v{t1}")
    for i in range(16):
        a(f"v_sub_f32 v{NM[0]+i}, 0, v{t0}")
        a(f"v_mov_b32 v{OO+i}, 0")
    a(f"v_add_u32 v{vK}, {KB}, v{vKp}")
    a(f"v_mov_b32 v{vV}, v{vV0}")
    a(f"v_lshrrev_b32 v{vInc}, {U.bit_length()-1}, v{vInc}")
    a("s_mov_b32 s31, 64")
    lp3 = a.label("pass2")
    a(f"{lp3}:")
    a(f"ds_read_b128 {vr(KF[0],4)}, v{vK}")
    a(f"ds_read_b128 {vr(VF[0],4)}, v{vV}")
    a(f"ds_read_b128 {vr(VF[0]+4,4)}, v{vV} offset:512")
    a(f"v_add_u32 v{vK}, 1024, v{vK}")
    a(f"v_add_u32 v{vV}, v{vInc}, v{vV}")
    a("s_waitcnt lgkmcnt(0)")
    a(f"{MFMA} {vr(S[0],16)}, {vr(KF[0],4)}, {vr(Q[1],4)}, {vr(NM[0],16)}")
    a("s_nop 15")
    for i in range(16):
        a(f"v_exp_f32 v{S[0]+i}, v{S[0]+i}")
    a("s_nop 2")
    a(f"{SMF} {vr(OO,16)}, {vr(VF[0],4)}, {vr(S[0],8)}, v{vIx}")
    a(f"{SMF} {vr(OO,16)}, {vr(VF[0]+4,4)}, {vr(S[0]+8,8)}, v{vIx}")
    a("s_sub_u32 s31, s31, 1")
    a("s_cmp_lg_u32 s31, 0")
    a("s_nop 7")
    a(f"s_cbranch_scc1 {lp3}")
    a("s_nop 15")
    a(f"v_rcp_f32 v{t0}, v{OO+8}")
    a("s_nop 0")
    a(f"s_branch {fin}")
    a(f"{endl}:")
    return R.n


def gen_main(a):
    name = NAME + "_kernel"
    kernel_header(a, name)
    done = a.label("done")
    a("s_cmp_ge_u32 s2, 256")
    a(f"s_cbranch_scc1 {done}")
    a(f"s_load_dwordx4 s[64:67], s[0:1], {KA_X}")
    a.c("pull the first 8 KB of code into L2 (one 128-byte line per 8 lanes of the workgroup)")
    a("s_getpc_b64 s[98:99]")
    a(f"v_lshlrev_b32 v{V_FREE}, 4, v0")
    a(f"global_load_dword v{V_PF}, v{V_FREE}, s[98:99]")
    a(f"s_and_b32 s{S_XCD}, s2, 7")
    a("s_bfe_u32 s19, s2, 0x20003")
    a(f"s_lshl2_add_u32 s19, s{S_XCD}, s19")
    a("v_lshrrev_b32 v1, 6, v0")
    a("v_and_b32 v0, 63, v0")
    a(f"v_lshlrev_b32 v{V_L16}, 4, v0")
    a(f"v_lshl_add_u32 v{V_FREE}, s19, 3, v1")
    a(f"v_lshl_add_u32 v{V_FREE}, v{V_FREE}, 13, v{V_L16}")
    a("s_waitcnt lgkmcnt(0)")
    a("s_add_u32 s20, s64, 4096")
    a("s_addc_u32 s21, s65, 0")
    for r in range(8):
        a(f"global_load_dwordx4 {vr(V_FREE+4+4*r,4)}, v{V_FREE}, s[20:21] offset:{r*1024-4096}")
    a(f"s_load_dwordx2 s[68:69], s[0:1], {KA_WO}")
    a(f"s_load_dwordx4 s[72:75], s[0:1], {KA_WG}")
    a(f"s_load_dwordx2 s[76:77], s[0:1], {KA_WD}")
    a(f"s_load_dwordx2 s[70:71], s[0:1], {KA_OUT}")
    a(f"s_load_dwordx2 s[94:95], s[0:1], {KA_DBG}")
    a(f"s_load_dwordx2 s[12:13], s[0:1], {KA_WS}")
    a(f"v_readfirstlane_b32 s{S_WAVE}, v1")
    a(f"v_lshlrev_b32 v{V_L128}, 7, v0")
    a(f"s_lshr_b32 s{S_IDX}, s2, 3")
    srd(a, 20, 66, 67, 512 * 1536 * 2)
    if env("TOUCH", 1):
        a.c("cooperative first touch of wqkv: 6 KB per wave")
        a(f"s_lshl3_add_u32 s27, s{S_IDX}, s{S_WAVE}")
        a("s_mul_i32 s27, s27, 6144")
        a("s_mov_b32 exec_hi, 0xffff")
        a(f"buffer_load_dword v{V_PF}, v{V_L128}, s[20:23], s27 offen")
        a("s_mov_b64 exec, -1")
    a(f"s_and_b32 s{S_TT128}, s{S_IDX}, 3")
    a(f"s_lshr_b32 s19, s{S_XCD}, 1")
    a("s_lshl_b32 s19, s19, 2")
    a(f"s_add_u32 s{S_TT128}, s{S_TT128}, s19")
    a(f"s_lshl_b32 s{S_TT128}, s{S_TT128}, 2")
    a(f"s_lshr_b32 s{S_NT128}, s{S_IDX}, 2")
    a(f"s_and_b32 s19, s{S_XCD}, 1")
    a("s_lshl_b32 s19, s19, 3")
    a(f"s_add_u32 s{S_NT128}, s{S_NT128}, s19")
    a(f"s_and_b32 s{S_TT64}, s{S_IDX}, 3")
    a(f"s_lshl_b32 s19, s{S_XCD}, 2")
    a(f"s_add_u32 s{S_TT64}, s{S_TT64}, s19")
    a(f"s_lshl_b32 s{S_TT64}, s{S_TT64}, 1")
    a(f"s_lshr_b32 s{S_NT64}, s{S_IDX}, 2")
    a(f"s_mov_b32 s{S_IT}, 0")
    a(f"s_mov_b32 s{S_BASE}, {WS_IT0:#x}")
    a(f"s_mov_b32 s{S_FL}, 0")
    a(f"s_mov_b32 s{S_SIG}, 0")
    a(f"v_and_b32 v{V_ST}, 15, v0")
    a(f"v_lshlrev_b32 v{V_ST}, 4, v{V_ST}")
    a(f"v_lshrrev_b32 v1, 4, v0")
    a(f"v_lshl_add_u32 v{V_ST}, v1, 2, v{V_ST}")
    a(f"v_lshlrev_b32 v{V_L4}, 2, v0")
    if STAMP:
        a(f"v_mov_b32 v{V_STAMP}, 0")
        a(f"v_mov_b32 v{V_STAMP+1}, 0")
    stamp(a, 31)
    att, fin = a.label("att"), a.label("fin")
    nv = [first_phase(a, att, done)]
    a(f"{att}:")
    nv.append(attn_phase(a, 5, done))
    S = Stream(a)
    if GMX == 4:
        a(f"s_mov_b32 s{S_TTG}, s{S_TT128}")
        a(f"s_mov_b32 s{S_NTG}, s{S_NT128}")
    else:
        a(f"s_and_b32 s{S_TTG}, s{S_IDX}, 1")
        a(f"s_lshl_b32 s19, s{S_XCD}, 1")
        a(f"s_add_u32 s{S_TTG}, s{S_TTG}, s19")
        a(f"s_lshl_b32 s{S_TTG}, s{S_TTG}, 2")
        a(f"s_lshr_b32 s{S_NTG}, s{S_IDX}, 1")
    nv.append(gemm_phase(a, Cfg(name="oproj", kind="res", LB=5 * RB, stream=S, PRE1=4, PRE3=1, RA=16, N1=2, BS=0, I0=8, LP=1,
                                STS=0, ABUF=B_O, WBASE=WS_WO, WNT=64 * 1024, OUT=B_X1, STOUT=B_ST1,
                                FIN=FL_A, lsig=True, NEED=32, FOUT=FL_O, final=False, sb=12)))
    nv.append(mlp_phase(a, Cfg(name="down", stream=S, OUT=B_XIN + IT_STRIDE, STOUT=B_STIN + IT_STRIDE, final=True, sb=22)))
    a(f"s_cmp_eq_u32 s{S_IT}, 1")
    a(f"s_cbranch_scc1 {fin}")
    a(f"s_mov_b32 s{S_IT}, 1")
    a(f"s_add_u32 s{S_BASE}, s{S_BASE}, {IT_STRIDE:#x}")
    a(f"s_add_u32 s{S_FL}, s{S_FL}, {FL_IT:#x}")
    nv.append(gemm_phase(a, Cfg(name="qkv", kind="qkv", LB=0, stream=None, RA=24, N1=2, BS=24, I0=12, LP=3, STS=30,
                                ABUF=B_XIN, WBASE=WS_WQKV, WNT=WNT_Q, STIN=B_STIN,
                                FIN=FL_D - FL_IT + (1 << 32), lsig=False, NEED=16, FOUT=FL_Q, sb=0)))
    a(f"s_branch {att}")
    a(f"{fin}:")
    if STAMP:
        a("s_waitcnt vmcnt(0)")
        a(f"s_mov_b32 s{S_IT}, 1")
        stamp(a, 31)
        stamp_flush(a)
        if env("DBGOUT", 0):
            nd = a.label("nodbg")
            a("s_lshl_b32 s54, s2, 3")
            a(f"s_add_u32 s54, s54, s{S_WAVE}")
            a(f"s_cmp_lg_u32 s54, {env('DBGOUT', 0)}")
            a(f"s_cbranch_scc1 {nd}")
            idx = [31, 27, 28, 29, 30, 8, 9, 13, 18, 23, 33, 40, 41, 50, 55, 63]
            a(f"v_readlane_b32 s55, v{V_STAMP}, 31")
            for i, k in enumerate(idx):
                a(f"v_readlane_b32 s54, v{V_STAMP}, {k}")
                a("s_nop 3")
                a("s_sub_u32 s54, s54, s55")
                a(f"v_writelane_b32 v{V_FREE}, s54, {i}")
            a("s_mov_b64 exec, 0xfffe")
            a(f"global_store_dword v{V_L4}, v{V_FREE}, s[94:95]")
            a(f"{nd}:")
    a(f"{done}:")
    a("s_endpgm")
    print("phase vgprs", nv, file=sys.stderr)
    nv.append(V_TF + 62)
    assert max(nv) <= 256
    return (name, max(nv), 256, 512, LDS_MAX)


HEADER = open("cdna_kernels/" + NAME + ".s.ref").read().split("; Override launch")[0]

def main(out):
    a = Asm()
    k, v, nwg, blk, lds = gen_main(a)
    txt = HEADER
    if env("ASLIST", 0):
        txt += f"; @launch kernel={k} grid=({nwg},1,1) block=({blk},1,1) lds={lds}\n"
    else:
        txt += f"; @launch grid=({nwg},1,1) block=({blk},1,1) lds={lds}\n"
    txt += '.amdgcn_target "amdgcn-amd-amdhsa--gfx950"\n.text\n'
    txt += a.text()
    txt += '.section .rodata,"a"\n'
    txt += kernel_desc(k, v, 102)
    print(f"{k}: vgpr={v} lds={lds}", file=sys.stderr)
    open(out, "w").write(txt)

if __name__ == "__main__":
    main(sys.argv[1] if len(sys.argv) > 1 else "v2.s")
```

```python
import sys, struct, math, os
from asmlib import *

NAME = "interleave_layers__mha_block__glu_gated_bilinear__prompt"
def env(k, d):
    return int(os.environ.get(k, d))

WS_WQKV = 0x000000
WS_WO   = 0x200000
WS_WGU  = 0x300000
WS_WD   = 0x700000
WS_FLAG = 0x8C0000
FL_IT = 0xC000
FL_Q, FL_W, FL_G, FL_T = 0x0, 0x1000, 0x4000, 0x8000
FL_A, FL_O, FL_D = FL_T, FL_T + 4, FL_T + 8
WS_IT0 = 0xA00000
IT_STRIDE = 0x1400000
B_Q, B_K, B_V, B_O, B_X1, B_XIN, B_H, B_ST1, B_STIN = (
    0x0, 0x200000, 0x400000, 0x600000, 0x800000, 0xA00000, 0xC00000, 0x1300000, 0x1340000)
WS_END = WS_IT0 + 2 * IT_STRIDE
WS_STAMP = WS_END
LDS_MAX = 160 * 1024

KA_X, KA_WQKV, KA_WO, KA_BX, KA_WG, KA_WU, KA_WD, KA_OUT, KA_DBG, KA_WS = [8 * i for i in range(10)]

def f32bits(x):
    return struct.unpack("<I", struct.pack("<f", x))[0]

QSCALE = 0.25 * math.log2(math.e)
MFMA = "v_mfma_f32_32x32x16_bf16"
SMF = "v_smfmac_f32_32x32x32_bf16"
M16 = "v_mfma_f32_16x16x32_bf16"
WNT_Q, WNT_G = 102 * 1024, 238 * 1024
STAMP = os.environ.get("STAMP", "") != ""
SC = " sc1"
SPIN_MAX = 1 << 18
PASSES = [int(x) for x in os.environ.get("PASSES", "4,2,1").split(",")]
PFIRST = [sum(PASSES[:p]) for p in range(len(PASSES))]
assert sum(PASSES) == 7

def pass_of(a, si, sf, sw):
    a(f"s_mov_b32 s{sf}, 0")
    a(f"s_mov_b32 s{sw}, {PASSES[0]}")
    for p in range(1, len(PASSES)):
        a(f"s_cmp_ge_u32 s{si}, {PFIRST[p]}")
        a(f"s_cselect_b32 s{sf}, {PFIRST[p]}, s{sf}")
        a(f"s_cselect_b32 s{sw}, {PASSES[p]}, s{sw}")
GMX = env('GMX', 4)
PT = env('PT', 0)

def srd(a, d, lo, hi, nbytes):
    a(f"s_mov_b32 s{d}, s{lo}")
    a(f"s_and_b32 s{d+1}, s{hi}, 0xffff")
    a(f"s_mov_b32 s{d+2}, {nbytes:#x}")
    a(f"s_mov_b32 s{d+3}, 0x20000")

S_WAVE, S_XCD, S_IDX, S_IT, S_BASE, S_FL = 16, 17, 18, 40, 41, 42
S_TT64, S_NT64, S_TT128, S_NT128 = 43, 44, 45, 46
S_TTG, S_NTG, S_TCH = 68, 69, 47
S_ARR, S_SIG = 47, 48
LDS_CNT = LDS_MAX - 16
V_L16, V_ST, V_L4 = 2, 3, 1
V_RES = 4
V_STAMP = 12
V_P16 = 15
V_PF, V_L128 = 14, 15
V_FREE = 16

def stamp(a, i):
    if STAMP:
        a("s_memrealtime s[56:57]")
        a("s_memtime s[58:59]")
        a(f"s_lshl_b32 s60, s{S_IT}, 5")
        a(f"s_add_u32 s60, s60, {i}")
        a("s_waitcnt lgkmcnt(0)")
        a("s_mov_b32 s61, m0")
        a("s_mov_b32 m0, s60")
        a("s_nop 0")
        a(f"v_writelane_b32 v{V_STAMP}, s56, m0")
        a(f"v_writelane_b32 v{V_STAMP+1}, s58, m0")
        a("s_mov_b32 m0, s61")

def stamp_flush(a, which=0):
    if STAMP:
        a("s_lshl_b32 s60, s2, 3")
        a(f"s_add_u32 s60, s60, s{S_WAVE}")
        a("s_lshl_b32 s60, s60, 9")
        a(f"s_add_u32 s60, s60, {WS_STAMP + which*0x100000:#x}")
        a(f"s_mov_b32 s6, {WS_STAMP + 0x200000:#x}")
        a(f"buffer_store_dword v{V_STAMP}, v{V_L4}, s[4:7], s60 offen")
        a(f"buffer_store_dword v{V_STAMP+1}, v{V_L4}, s[4:7], s60 offen offset:256")

def handoff(a, soff, need):
    a("s_mov_b32 s38, 1")
    a(f"s_atomic_add s38, s[14:15], s{S_SIG}")
    if env("PD", 0):
        a("s_waitcnt lgkmcnt(0)")
    poll(a, soff, need)

def poll(a, soff, need):
    lp, ok = a.label("poll"), a.label("pok")
    a(f"s_mov_b32 s39, {SPIN_MAX}")
    a(f"{lp}:")
    a("s_mov_b32 s49, 0")
    a(f"s_atomic_add s49, s[14:15], s{soff} glc")
    a("s_sub_u32 s39, s39, 1")
    a("s_waitcnt lgkmcnt(0)")
    a(f"s_cmp_ge_u32 s49, {need}")
    a(f"s_cbranch_scc1 {ok}")
    if env("POLL_SLEEP", 1):
        a(f"s_sleep {env('POLL_SLEEP', 1)}")
    a("s_cmp_lg_u32 s39, 0")
    a(f"s_cbranch_scc1 {lp}")
    a(f"{ok}:")


V_TF = 176

def first_phase(a, end_label, code_end):
    XB_ = 528
    XT = 64 * XB_
    W0 = 2 * XT
    NSW, WCH, NC = 7, 12288, 16
    assert W0 + NSW * WCH <= LDS_MAX
    FS = 27
    NPS = env("K1_NPS", 2)
    R = Regs(V_FREE)
    vD, vT0, vT1, vXW = R.alloc(), R.alloc(), R.alloc(), R.alloc()
    X = R.alloc(32)
    ST = R.alloc(16)
    U = R.alloc(16)
    vD2, vZ = R.alloc(), R.alloc()
    assert X == V_FREE + 4
    a(f"v_lshrrev_b32 v{vT0}, 3, v0")
    a(f"v_bfe_u32 v{vT1}, v0, 4, 1")
    a(f"v_lshlrev_b32 v{vT1}, 2, v{vT1}")
    a(f"v_and_b32 v{vD2}, 7, v0")
    a(f"v_xor_b32 v{vD2}, v{vD2}, v{vT1}")
    a(f"v_lshlrev_b32 v{vD2}, 4, v{vD2}")
    a(f"v_mul_u32_u24 v{vD}, 3072, v{vT0}")
    a(f"v_add_u32 v{vD}, v{vD}, v{vD2}")
    a(f"s_and_b32 s50, s{S_WAVE}, 3")
    a("s_waitcnt lgkmcnt(0)")
    srd(a, 8, 64, 65, 2048 * 512 * 2)
    srd(a, 4, 12, 13, WS_END)
    a.c("wave 7 of the first workgroups resets 64 hand-off counters each")
    NZ = 2 * FL_IT // 16384
    nz = a.label("nozero")
    a(f"s_sub_u32 s47, 7, s{S_WAVE}")
    a("s_lshl_b32 s47, s47, 8")
    a("s_add_u32 s47, s47, s2")
    a(f"s_cmp_ge_u32 s47, {NZ}")
    a(f"s_cbranch_scc1 {nz}")
    a(f"v_lshlrev_b32 v{ST}, 8, v0")
    for i in range(4):
        a(f"v_mov_b32 v{ST+4+i}, 0")
    a("s_lshl_b32 s54, s2, 14")
    a(f"s_add_u32 s54, s54, {WS_FLAG:#x}")
    a(f"buffer_store_dwordx4 {vr(ST+4,4)}, v{ST}, s[4:7], s54 offen sc1")
    a(f"{nz}:")
    TOUCH = env("TOUCH", 1)
    a(f"s_add_u32 s14, s12, {WS_FLAG:#x}")
    a("s_addc_u32 s15, s13, 0")
    a("s_mov_b32 s49, 0x3f803f80")
    a(f"s_lshr_b32 s55, s{S_WAVE}, 2")
    a(f"s_mul_i32 s39, s55, {XT}")
    a("s_lshl_b32 s54, s50, 7")
    a("s_add_u32 s39, s39, s54")
    a(f"v_mul_u32_u24 v{vXW}, {XB_}, v0")
    a(f"v_add_u32 v{vXW}, s39, v{vXW}")
    a(f"s_mul_i32 s62, s50, {8*3072}")
    a(f"s_lshl_b32 s54, s{S_NT64}, 7")
    a("s_add_u32 s62, s62, s54")
    a(f"s_mul_i32 s54, s55, {NPS*32*3072}")
    a("s_add_u32 s62, s62, s54")
    a("s_lshl_b32 s63, s50, 10")
    a(f"s_add_u32 s63, s63, {W0}")
    a(f"s_mul_i32 s54, s55, {NPS*WCH}")
    a("s_add_u32 s48, s63, s54")
    def w_instr(slot, seg, base=63):
        t = f"s_add_u32 s54, s{base}, {slot*WCH + seg*3072}\ns_mov_b32 m0, s54\ns_nop 0\n"
        t += f"buffer_load_dwordx4 v{vD}, s[20:23], s62 offen offset:{seg*1024} lds"
        if seg == 2:
            t += f"\ns_add_u32 s62, s62, {32*3072}"
        return t
    dma = [w_instr(c, sg, 48) for c in range(NPS) for sg in range(3)]
    ops = []
    pre = len(ops)
    for r in range(8):
        ops.append(("wait", r))
        for i in range(4):
            ops.append(f"v_dot2_f32_bf16 v{ST+r}, v{X+4*r+i}, s49, {'0' if i == 0 else 'v' + str(ST+r)}")
            ops.append(f"v_dot2_f32_bf16 v{ST+8+r}, v{X+4*r+i}, v{X+4*r+i}, {'0' if i == 0 else 'v' + str(ST+8+r)}")
    ops.append("s_nop 2")
    for b in (ST, ST + 8):
        for r in range(4):
            ops.append(f"v_permlane32_swap_b32 v{b+r}, v{b+r+4}")
    for b in (ST, ST + 8):
        for r in range(4):
            ops.append(f"v_add_f32 v{b+r}, v{b+r}, v{b+r+4}")
    ops.append("s_nop 1")
    for b in (ST, ST + 8):
        for r in range(2):
            ops.append(f"v_permlane16_swap_b32 v{b+r}, v{b+r+2}")
    for b in (ST, ST + 8):
        for r in range(2):
            ops.append(f"v_add_f32 v{b+r}, v{b+r}, v{b+r+2}")
    for d in ("row_ror:8", "row_ror:4", "quad_perm:[2,3,0,1]", "quad_perm:[1,0,3,2]"):
        for v in (ST, ST + 1, ST + 8, ST + 9):
            ops.append(f"v_add_f32_dpp v{v}, v{v}, v{v} {d} row_mask:0xf bank_mask:0xf")
    for r in range(2):
        ops.append(f"v_mul_f32 v{ST+r}, {f32bits(-1.0/512):#x}, v{ST+r}")
        ops.append(f"v_mul_f32 v{ST+8+r}, {f32bits(1.0/512):#x}, v{ST+8+r}")
    for r in range(2):
        ops.append(f"v_fma_f32 v{ST+8+r}, -v{ST+r}, v{ST+r}, v{ST+8+r}")
    for r in range(2):
        ops.append(f"v_max_f32 v{ST+8+r}, 0, v{ST+8+r}")
    for r in range(2):
        ops.append(f"v_add_f32 v{ST+8+r}, {f32bits(1e-5):#x}, v{ST+8+r}")
    for r in range(2):
        ops.append(f"v_rsq_f32 v{ST+8+r}, v{ST+8+r}")
    ops.append("s_nop 0")
    for r in range(2):
        ops.append(f"v_mul_f32 v{ST+r}, v{ST+r}, v{ST+8+r}")
    ops.append("s_nop 0")
    for r in range(8):
        ops.append(f"v_readlane_b32 s{78+2*r}, v{ST+8+(r&1)}, {16*(r>>1)}")
        ops.append(f"v_readlane_b32 s{79+2*r}, v{ST+(r&1)}, {16*(r>>1)}")
    for r in range(8):
        u = U + 8 * (r & 1)
        for i in range(4):
            ops.append(f"v_lshlrev_b32 v{u+2*i}, 16, v{X+4*r+i}")
            ops.append(f"v_and_b32 v{u+2*i+1}, 0xffff0000, v{X+4*r+i}")
        for i in range(4):
            ops.append(f"v_pk_fma_f32 {vr(u+2*i,2)}, {vr(u+2*i,2)}, s[{78+2*r}:{79+2*r}], s[{78+2*r}:{79+2*r}] op_sel:[0,0,1] op_sel_hi:[1,0,1]")
        for i in range(4):
            ops.append(f"v_cvt_pk_bf16_f32 v{X+4*r+i}, v{u+2*i}, v{u+2*i+1}")
        ops.append(f"ds_write_b128 v{vXW}, {vr(X+4*r,4)} offset:{r*16}")
    npre = env("K1_PRE", 2)
    issued = TOUCH
    for _ in range(npre):
        a(dma.pop(0)); issued += 1
    step_ = env("K1_STEP", 24)
    k = 0
    for j, op in enumerate(ops):
        if isinstance(op, tuple):
            a(f"s_waitcnt vmcnt({7 - op[1] + issued})")
        else:
            a(op)
        if j >= pre + env("K1_SKIP", 40) and dma:
            k += 1
            if k % step_ == 0:
                a(dma.pop(0)); issued += 1
    assert not dma
    comp = a.label("k1_comp")
    a(f"s_cmp_lt_u32 s{S_WAVE}, 4")
    a(f"s_cbranch_scc1 {comp}")
    DW = env("K1_DW", 5)
    assert 2 * NPS <= DW <= NSW - 2
    for c in range(2 * NPS, DW):
        for sg in range(3):
            a(w_instr(c, sg))
    lp = a.label("k1ld")
    a(f"s_add_u32 s48, s63, {DW*WCH}")
    a(f"s_add_u32 s39, s63, {NSW*WCH}")
    a(f"v_mov_b32 v{vT1}, 0")
    stamp(a, FS)
    a("s_waitcnt lgkmcnt(0)")
    nz = a.label("noflag")
    a(f"s_cmp_ge_u32 s47, {NZ}")
    a(f"s_cbranch_scc1 {nz}")
    a(f"s_waitcnt vmcnt({(DW - NPS)*3})")
    a("s_mov_b32 s38, 1")
    a("s_atomic_add s38, s[94:95], 0x0")
    a(f"{nz}:")
    a(f"s_mov_b32 s47, {NC-DW}")
    a(f"{lp}:")
    a(f"s_waitcnt vmcnt({(DW-1)*3})")
    a("s_barrier")
    for sg in range(3):
        a(w_instr(0, sg, 48))
    a(f"s_add_u32 s48, s48, {WCH}")
    a("s_cmp_eq_u32 s48, s39")
    a("s_cselect_b32 s48, s63, s48")
    a("s_sub_u32 s47, s47, 1")
    a("s_cmp_lg_u32 s47, 0")
    a(f"s_cbranch_scc1 {lp}")
    a(f"global_load_dword v{vZ}, v{vT1}, s[94:95] sc1")
    for c in range(NC - DW, NC):
        a(f"s_waitcnt vmcnt({(NC - 1 - c)*3 + 1})")
        a("s_barrier")
    stamp(a, FS + 2)
    a.c("the counters must have been reset before this workgroup touches them")
    lp, ok = a.label("zpoll"), a.label("zok")
    a(f"s_mov_b32 s39, {SPIN_MAX}")
    a("s_waitcnt vmcnt(0)")
    a(f"{lp}:")
    a(f"v_cmp_gt_u32 vcc, {NZ}, v{vZ}")
    a("s_sub_u32 s39, s39, 1")
    a("s_cmp_eq_u32 s39, 0")
    a(f"s_cbranch_scc1 {ok}")
    a(f"s_cbranch_vccz {ok}")
    a(f"global_load_dword v{vZ}, v{vT1}, s[94:95] sc1")
    a("s_waitcnt vmcnt(0)")
    a(f"s_branch {lp}")
    a(f"{ok}:")
    a("s_barrier")
    a(f"s_branch {end_label}")
    a(f"{comp}:")
    R2 = Regs(V_FREE + 4)
    vA, vW0, vW = R2.alloc(), R2.alloc(), R2.alloc()
    acc = [R2.alloc(16) for _ in range(3)]
    sets = [(R2.alloc(4), [R2.alloc(4) for _ in range(3)]) for _ in range(2)]
    a("s_waitcnt lgkmcnt(0)")
    a(f"s_and_b32 s24, s{S_WAVE}, 1")
    a(f"s_lshr_b32 s25, s{S_WAVE}, 1")
    a(f"s_mul_i32 s26, s24, {XT}")
    a(f"v_lshrrev_b32 v{vT0}, 5, v0")
    a(f"v_mul_u32_u24 v{vA}, {XB_}, v{vT0}")
    a(f"v_and_b32 v{vT1}, 31, v0")
    a(f"v_lshl_add_u32 v{vA}, v{vT1}, 4, v{vA}")
    a(f"v_add_u32 v{vA}, s26, v{vA}")
    a(f"v_bfe_u32 v{vT1}, v0, 2, 2")
    a(f"v_lshl_add_u32 v{vW0}, v{vT0}, 3, v{vT1}")
    a(f"v_lshlrev_b32 v{vW0}, 7, v{vW0}")
    a(f"v_and_b32 v{vT0}, 1, v0")
    a(f"v_bfe_u32 v{vT1}, v0, 1, 1")
    a(f"v_lshl_add_u32 v{vT0}, v{vT0}, 1, v{vT1}")
    a(f"v_lshl_add_u32 v{vW0}, v{vT0}, 3, v{vW0}")
    a(f"v_bfe_u32 v{vT0}, v0, 4, 1")
    a(f"v_lshl_add_u32 v{vW0}, v{vT0}, 5, v{vW0}")
    a(f"v_bfe_u32 v{vT0}, v0, 3, 1")
    a(f"v_xor_b32 v{vT0}, s25, v{vT0}")
    a(f"v_lshl_add_u32 v{vW0}, v{vT0}, 6, v{vW0}")
    a(f"v_add_u32 v{vW0}, {W0}, v{vW0}")
    a(f"v_mov_b32 v{vW}, v{vW0}")
    for t in range(3):
        for i in range(16):
            a(f"v_mov_b32 v{acc[t]+i}, 0")
    a("s_mov_b32 s37, 0")

    def read_list(ks, par):
        xa, wfs = sets[par]
        out = [f"ds_read_b128 {vr(xa,4)}, v{vA} offset:{ks*2*XB_}"]
        for t in range(3):
            for jj in range(2):
                out.append(f"ds_read_b64_tr_b16 {vr(wfs[t]+2*jj,2)}, v{vW} offset:{t*4096 + ks*2048 + jj*512}")
        return out

    def step(par, nxt, boundary, adv=False):
        xa, wfs = sets[par]
        issued = 0
        plan = [3, 5, 7]
        if boundary:
            a("s_barrier")
        for t in range(3):
            while issued < min(plan[t], len(nxt)):
                a(nxt[issued]); issued += 1
            a(f"s_waitcnt lgkmcnt({issued + 7 - (3 + 2*t)})")
            if t == 2:
                a(f"{MFMA} {vr(acc[t],16)}, {vr(xa,4)}, {vr(wfs[t],4)}, {vr(acc[t],16)}")
            else:
                a(f"{MFMA} {vr(acc[t],16)}, {vr(wfs[t],4)}, {vr(xa,4)}, {vr(acc[t],16)}")
        if adv:
            a(f"s_add_u32 s37, s37, {WCH}")
            a(f"s_cmp_eq_u32 s37, {NSW*WCH}")
            a("s_cselect_b32 s37, 0, s37")
            a(f"v_add_u32 v{vW}, s37, v{vW0}")
            a(f"v_add_u32 v{vA}, {4*XB_}, v{vA}")

    a("s_waitcnt vmcnt(0)")
    stamp(a, FS)
    a("s_barrier")
    stamp(a, FS + 1)
    for r in read_list(0, 0):
        a(r)
    lp = a.label("k1loop")
    a(f"s_mov_b32 s35, {NC-1}")
    a(f"{lp}:")
    step(0, read_list(1, 1), False, True)
    step(1, read_list(0, 0), True)
    a("s_sub_u32 s35, s35, 1")
    a("s_cmp_lg_u32 s35, 0")
    a(f"s_cbranch_scc1 {lp}")
    step(0, read_list(1, 1), False)
    step(1, [], False)
    stamp(a, FS + 2)
    ot = sets[0][0]
    a(f"s_lshl_b32 s26, s{S_NT64}, 1")
    a("s_add_u32 s26, s26, s25")
    a("s_lshl_b32 s26, s26, 17")
    a(f"s_add_u32 s27, s{S_TT64}, s24")
    a("s_lshl_b32 s27, s27, 10")
    a("s_add_u32 s26, s26, s27")
    a(f"v_bfe_u32 v{vT0}, v0, 4, 1")
    a(f"v_lshlrev_b32 v{vT0}, 16, v{vT0}")
    a(f"v_lshrrev_b32 v{vT1}, 5, v0")
    a(f"v_lshl_add_u32 v{vT0}, v{vT1}, 8, v{vT0}")
    a(f"v_and_b32 v{vT1}, 15, v0")
    a(f"v_lshl_add_u32 v{vT0}, v{vT1}, 4, v{vT0}")
    a(f"s_mov_b32 s28, {f32bits(QSCALE):#x}")
    a("s_mov_b32 s29, s28")
    K1SC = SC
    a(f"v_lshrrev_b32 v{V_P16}, 4, v0")
    a(f"v_lshlrev_b32 v{V_P16}, 9, v{V_P16}")
    a(f"v_lshl_add_u32 v{V_P16}, v{vT1}, 4, v{V_P16}")
    a(f"s_lshl_b32 s{S_SIG}, s{S_NT64}, 9")
    a(f"s_add_u32 s{S_SIG}, s{S_SIG}, {FL_Q:#x}")
    for t, base in ((0, B_Q), (1, B_K), (2, B_V)):
        for hh in range(2):
            o = ot + 4 * (2 * t + hh)
            for i in range(4):
                r = acc[t] + 8 * hh + 2 * i
                if t == 0:
                    a(f"v_pk_mul_f32 {vr(r,2)}, {vr(r,2)}, s[28:29]")
                a(f"v_cvt_pk_bf16_f32 v{o+i}, v{r}, v{r+1}")
            if t < 2:
                a(f"s_add_u32 s27, s26, {WS_IT0 + base + hh*65536:#x}")
                a(f"buffer_store_dwordx4 {vr(o,4)}, v{V_L16}, s[4:7], s27 offen{K1SC}")
            else:
                a(f"s_add_u32 s27, s26, {WS_IT0 + base:#x}")
                a(f"buffer_store_dwordx4 {vr(o,4)}, v{vT0}, s[4:7], s27 offen offset:{hh*512}{K1SC}")
    a("s_barrier")
    stamp(a, FS + 3)
    a(f"s_branch {end_label}")
    return max(R.n, R2.n)


class Cfg:
    def __init__(self, **kw):
        self.__dict__.update(kw)
        for k in ("NR", "RA", "N1", "N2", "N3", "N4", "BS", "I0", "PS", "STS", "PRE1", "PRE2", "PRE3", "XB", "LP"):
            e = os.environ.get(self.name.upper() + "_" + k)
            if e:
                setattr(self, k, int(e))

def stats_ops(tmp, xc, vR, square):
    f = []
    for i in range(8):
        f.append(f"v_add_f32 v{tmp+i}, v{tmp+i}, v{tmp+8+i}")
    for i in range(4):
        f.append(f"v_add_f32 v{tmp+i}, v{tmp+i}, v{tmp+4+i}")
    f.append(f"v_mov_b32 v{xc+4}, 0")
    f.append(f"v_mov_b32 v{xc+5}, 0")
    f.append(f"v_permlane32_swap_b32 v{tmp}, v{tmp+2}")
    f.append(f"v_permlane32_swap_b32 v{tmp+1}, v{tmp+3}")
    f.append(f"v_add_f32 v{tmp}, v{tmp}, v{tmp+2}")
    f.append(f"v_add_f32 v{tmp+1}, v{tmp+1}, v{tmp+3}")
    f.append(f"v_mov_b32 v{tmp+2}, v{tmp}")
    f.append(f"v_mov_b32 v{tmp+3}, v{tmp+1}")
    f.append("s_nop 1")
    f.append(f"v_permlane16_swap_b32 v{tmp}, v{tmp+2}")
    f.append(f"v_permlane16_swap_b32 v{tmp+1}, v{tmp+3}")
    f.append(f"v_add_f32 v{tmp}, v{tmp}, v{tmp+2}")
    f.append(f"v_add_f32 v{tmp+1}, v{tmp+1}, v{tmp+3}")
    f.append(f"v_mul_f32 v{tmp}, {f32bits(-1.0/512):#x}, v{tmp}")
    f.append(f"v_mul_f32 v{tmp+1}, {f32bits(1.0/512):#x}, v{tmp+1}")
    f.append(f"v_fma_f32 v{tmp+1}, -v{tmp}, v{tmp}, v{tmp+1}")
    f.append(f"v_max_f32 v{tmp+1}, 0, v{tmp+1}")
    f.append(f"v_add_f32 v{tmp+1}, {f32bits(1e-5):#x}, v{tmp+1}")
    f.append(f"{'v_rcp_f32' if square else 'v_rsq_f32'} v{vR}, v{tmp+1}")
    f.append(f"v_cvt_pk_bf16_f32 v{xc}, v{tmp}, v{tmp}")
    f.append(f"v_lshlrev_b32 v{tmp+2}, 16, v{xc}")
    f.append(f"v_sub_f32 v{tmp+2}, v{tmp}, v{tmp+2}")
    f.append(f"v_cvt_pk_bf16_f32 v{xc+1}, v{tmp+2}, v{tmp+2}")
    f.append(f"v_mov_b32 v{tmp+4}, v{vR}")
    f.append(f"v_mov_b32 v{vR+1}, v{vR}")
    f.append(f"v_mov_b32 v{xc+2}, v{xc}")
    f.append(f"v_mov_b32 v{xc+3}, v{xc+1}")
    f.append(f"v_permlane32_swap_b32 v{vR}, v{vR+1}")
    f.append(f"v_permlane32_swap_b32 v{xc}, v{xc+2}")
    f.append(f"v_permlane32_swap_b32 v{xc+1}, v{xc+3}")
    return f

def res_init(c0):
    f = []
    for th in range(2):
        for fh in range(2):
            for c in range(2):
                d, r = c0 + 8 * fh + 4 * th + 2 * c, V_RES + 4 * th + 2 * fh + c
                f.append(f"v_lshlrev_b32 v{d}, 16, v{r}")
                f.append(f"v_and_b32 v{d+1}, 0xffff0000, v{r}")
    return f

def row_offset(a, v, vt):
    a(f"v_and_b32 v{v}, 15, v0")
    a(f"v_lshlrev_b32 v{v}, 10, v{v}")
    a(f"v_and_b32 v{vt}, 48, v0")
    a(f"v_add_u32 v{v}, v{v}, v{vt}")

def res_epilogue(a, g, c0, c1, tmp, end):
    SB = g.sb
    fin = a.label("final")
    a("s_lshl_b32 s26, s31, 15")
    a("s_lshl_b32 s27, s33, 11")
    a("s_add_u32 s26, s26, s27")
    a(f"s_add_u32 s26, s26, s{S_BASE}")
    a(f"s_add_u32 s26, s26, {g.OUT:#x}")
    a("s_lshl_b32 s28, s31, 12")
    a("s_lshl_b32 s29, s33, 8")
    a("s_add_u32 s28, s28, s29")
    for i in range(8):
        if i == 0:
            a("s_waitcnt lgkmcnt(0)")
        a(f"v_pk_add_f32 {vr(c0+2*i,2)}, {vr(c0+2*i,2)}, {vr(c1+2*i,2)}")
    for th in range(2):
        for fh in range(2):
            for c in range(2):
                d = c0 + 8 * fh + 4 * th + 2 * c
                a(f"v_cvt_pk_bf16_f32 v{V_RES + 4*th + 2*fh + c}, v{d}, v{d+1}")
    if g.final:
        a(f"s_cmp_eq_u32 s{S_IT}, 1")
        a(f"s_cbranch_scc1 {fin}")
    a(f"buffer_store_dwordx4 {vr(V_RES,4)}, v{V_P16}, s[4:7], s26 offen{SC}")
    a(f"buffer_store_dwordx4 {vr(V_RES+4,4)}, v{V_P16}, s[4:7], s26 offen offset:256{SC}")
    q = tmp
    for th in range(2):
        a(f"v_pk_mul_f32 {vr(q+2*th,2)}, {vr(c0+4*th,2)}, {vr(c0+4*th,2)}")
    for o in (2, 8, 10):
        for th in range(2):
            r = c0 + 4 * th + o
            a(f"v_pk_fma_f32 {vr(q+2*th,2)}, {vr(r,2)}, {vr(r,2)}, {vr(q+2*th,2)}")
            a(f"v_pk_add_f32 {vr(c0+4*th,2)}, {vr(c0+4*th,2)}, {vr(r,2)}")
    for th in range(2):
        a(f"v_add_f32 v{q+4+th}, v{c0+4*th}, v{c0+4*th+1}")
    for th in range(2):
        a(f"v_add_f32 v{q+6+th}, v{q+2*th}, v{q+2*th+1}")
    a(f"v_permlane32_swap_b32 v{q+4}, v{q+5}")
    a(f"s_add_u32 s28, s28, s{S_BASE}")
    a(f"v_permlane32_swap_b32 v{q+6}, v{q+7}")
    a(f"v_add_f32 v{q+4}, v{q+4}, v{q+5}")
    a(f"v_add_f32 v{q+6}, v{q+6}, v{q+7}")
    a(f"s_add_u32 s28, s28, {g.STOUT:#x}")
    a("s_nop 0")
    a(f"v_permlane16_swap_b32 v{q+4}, v{q+6}")
    a("s_nop 0")
    a(f"v_add_f32 v{q+4}, v{q+4}, v{q+6}")
    a(f"buffer_store_dword v{q+4}, v{V_ST}, s[4:7], s28 offen{SC}")
    a("s_barrier")
    stamp(a, SB + 3)
    if g.final:
        a(f"s_branch {end}")
        a(f"{fin}:")
        srd(a, 8, 70, 71, 2048 * 512 * 2)
        row_offset(a, tmp, tmp + 1)
        a("s_lshl_b32 s26, s31, 15")
        a("s_lshl_b32 s27, s33, 6")
        a("s_add_u32 s26, s26, s27")
        a("s_add_u32 s27, s26, 16384")
        FS_ = ["", " sc1", " nt", " sc0 sc1"][env("FINST", 0)]
        a(f"buffer_store_dwordx4 {vr(V_RES,4)}, v{tmp}, s[8:11], s26 offen{FS_}")
        a(f"buffer_store_dwordx4 {vr(V_RES+4,4)}, v{tmp}, s[8:11], s27 offen{FS_}")
        a("s_barrier")
        stamp(a, SB + 3)

class Lgkm:
    def __init__(self, a):
        self.a, self.q = a, []
    def op(self, text, tag):
        self.a(text); self.q.append(tag)
    def wait(self, tag):
        if tag in self.q:
            i = len(self.q) - 1 - self.q[::-1].index(tag)
            self.a(f"s_waitcnt lgkmcnt({min(15, len(self.q) - 1 - i)})")
            del self.q[:i + 1]

def down_order(nsteps, tail):
    o = [(st, t, fh) for st in range(nsteps - tail) for t in range(2) for fh in range(2)]
    for t in (1, 0):
        o += [(st, t, fh) for st in range(nsteps - tail, nsteps) for fh in range(2)]
    return o

RB = 16384
VS = 32
NPRE = env('NPRE', 5)


class Stream:
    NR, NRND, NREG = 10, 29, 14
    def __init__(self, a):
        self.a = a
        self.nxt = 0
        self.vm, self.lg = [], []
        self.reg = {}
        self.free = list(range(self.NREG - NPRE))
        self.last = self.NRND - NPRE
        for i in range(NPRE):
            self.reg[self.last + i] = self.NREG - NPRE + i
        self.maxreg = self.NREG
    def setup(self):
        a = self.a
        a(f"s_and_b32 s19, s{S_WAVE}, 3")
        a("s_lshl_b32 s25, s19, 12")
        a(f"s_mul_i32 s20, s{S_NTG}, {WNT_G}")
        a("s_add_u32 s20, s20, s25")
        a(f"s_add_u32 s20, s20, {WS_WGU:#x}")
        a(f"s_mul_i32 s21, s{S_NT64}, {224*1024}")
        a("s_add_u32 s21, s21, s25")
        a(f"s_add_u32 s21, s21, {WS_WD:#x}")
        for i in range(3):
            a(f"v_add_u32 v{V_FREE+i}, {i*0x10000}, v{V_L16}")
            a(f"v_add_u32 v{V_FREE+i}, s25, v{V_FREE+i}")
    def src(self, r):
        return f"s_add_u32 s27, s20, {r*RB}" if r < 15 else f"s_add_u32 s27, s21, {(r-15)*RB}"
    def wait_vm(self, pred):
        idx = [i for i, e in enumerate(self.vm) if pred(e)]
        if not idx:
            return None
        n = min(63, (len(self.vm) - 1 - idx[-1]) * 4)
        del self.vm[:idx[-1] + 1]
        return f"vmcnt({n})"
    def flush(self, limit, cap=99):
        a = self.a
        for r in sorted(self.reg)[:cap]:
            if r >= limit:
                break
            w = self.wait_vm(lambda e: e == ("s", r))
            if w:
                a("s_waitcnt " + w)
            k = self.reg.pop(r)
            for i in range(4):
                off = (r % self.NR) * RB + i * 1024
                if env("X_NOFL", 0) and r >= 24:
                    pass
                elif env("FL64", 0):
                    for hh in range(2):
                        a(f"ds_write_b64 v{V_FREE + (off >> 16)}, {vr(VS + (k*4 + i)*4 + 2*hh, 2)} offset:{(off & 0xffff) + 8*hh}")
                        if env("FLW", 1):
                            a("s_waitcnt lgkmcnt(0)")
                else:
                    a(f"ds_write_b128 v{V_FREE + (off >> 16)}, {vr(VS + (k*4 + i)*4, 4)} offset:{off & 0xffff}")
                    if env("FLW", 1):
                        a("s_waitcnt lgkmcnt(0)")
            self.lg.append((r, k))
    def fetch(self, n, limit):
        a = self.a
        while n > 0 and self.nxt < self.last:
            r = self.nxt
            if r < limit:
                a(f"s_add_u32 s26, s25, {(r % self.NR) * RB}")
                a("s_mov_b32 m0, s26")
                a(self.src(r))
                for i in range(4):
                    a(f"buffer_load_dwordx4 v{V_L16}, s[4:7], s27 offen offset:{i*1024}{SC} lds")
                self.vm.append(("d", r))
            else:
                if not self.free:
                    break
                k = self.free.pop(0)
                self.maxreg = max(self.maxreg, k + 1)
                self.reg[r] = k
                a(self.src(r))
                for i in range(4):
                    a(f"buffer_load_dwordx4 {vr(VS + (k*4 + i)*4, 4)}, v{V_L16}, s[4:7], s27 offen offset:{i*1024}{SC}")
                self.vm.append(("s", r))
            self.nxt += 1; n -= 1
    def landed(self, upto):
        assert self.nxt > min(upto, self.last - 1) and all(r > upto for r in self.reg), (upto, self.nxt, self.reg)
        w = []
        x = self.wait_vm(lambda e: e[0] == "d" and e[1] <= upto)
        if x:
            w.append(x)
        if any(r <= upto for r, _ in self.lg):
            w.append("lgkmcnt(0)")
            self.free += [k for _, k in self.lg]
            self.lg = []
        if w:
            self.a("s_waitcnt " + " ".join(w))

def gemm_phase(a, g):
    ln = g.kind == "qkv"
    NT = 3 if ln else 2
    NS = 16 if ln else 8
    SPS = 2 * NT
    NSL = (NS + (1 if ln else 0)) * SPS
    TAIL = env("XTAIL", 4)
    order = [(i // SPS, (i % SPS) // 2, i % 2) for i in range(NSL)] if ln else down_order(NS, TAIL)
    fin_ = [i * 1024 + 1023 if ln else 65535 for i in range(NSL)]
    NRND = fin_[-1] // RB + 1
    LB = g.LB
    SCR = LB + NRND * RB
    assert SCR + (1024 if ln else 16384) <= LDS_MAX
    S = g.stream
    RAH = 6
    s_tt, s_nt = (S_TT128, S_NT128) if ln else (S_TT64, S_NT64)
    comp, end = a.label(g.name + "_comp"), a.label(g.name + "_end")
    SB = g.sb
    bars = [0] + ([g.BS] if g.BS else [])
    a.c(f"================ phase {g.name} ================")
    a(f"s_cmp_lt_u32 s{S_WAVE}, 4")
    a(f"s_cbranch_scc1 {comp}")
    a(f"s_and_b32 s19, s{S_WAVE}, 3")
    a("s_lshl_b32 s25, s19, 12")
    a(f"s_mul_i32 s23, s{s_nt}, {g.WNT}")
    a("s_add_u32 s23, s23, s25")
    if g.WBASE:
        a(f"s_add_u32 s23, s23, {g.WBASE:#x}")
    stamp(a, SB)
    for r in range(NRND):
        a(f"s_add_u32 s26, s25, {LB + r*RB}")
        a("s_mov_b32 m0, s26")
        a(f"s_add_u32 s27, s23, {r*RB}")
        for i in range(4):
            a(f"buffer_load_dwordx4 v{V_L16}, s[4:7], s27 offen offset:{i*1024}{SC} lds")
        if g.lsig and r == g.N1 - 1:
            a(f"s_waitcnt vmcnt({g.N1*4})")
            a("s_mov_b32 s38, 1")
            a(f"s_atomic_add s38, s[14:15], s{S_SIG}")
    extra = 0
    if S:
        S.setup()
        S.fetch(g.PRE1, LB // RB)
        extra = 4 * len(S.vm)
    stamp(a, SB + 1)
    for j, b in enumerate(bars):
        nxt = bars[j + 1] if j + 1 < len(bars) else NSL
        up = fin_[min(NSL - 1, nxt - 1 + RAH)] // RB
        a(f"s_waitcnt vmcnt({(NRND - 1 - up)*4 + extra})")
        a("s_barrier")
    if not ln:
        a("s_barrier")
    if S:
        S.fetch(g.PRE3, LB // RB + NRND)
    a("s_barrier")
    a(f"s_branch {end}")

    a(f"{comp}:")
    R = Regs(V_FREE)
    nwin = -(-SCR // 65536)
    vW = [[R.alloc() for _ in range(nwin)] for _ in range(1 if ln else 2)]
    vX, vY = R.alloc(), R.alloc()
    vR = R.alloc(2)
    xc = R.alloc(6, 2)
    acc = [R.alloc(16) for _ in range(NT)]
    NF = RAH + 2
    wf = [R.alloc(4) for _ in range(NF)]
    RA = min(2 * NS, g.RA)
    ring = [R.alloc(4) for _ in range(RA)]
    tmp = R.alloc(16)
    if ln:
        a(f"s_add_u32 s31, s{s_tt}, s{S_WAVE}")
        a("s_lshl_b32 s22, s31, 15")
        for w in range(nwin):
            a(f"v_add_u32 v{vW[0][w]}, {w*65536}, v{V_L16}")
        a("s_lshl_b32 s36, s31, 12")
        a(f"s_add_u32 s36, s36, s{S_BASE}")
        a(f"s_add_u32 s36, s36, {g.STIN:#x}")
        a(f"s_lshl_b32 s26, s{S_WAVE}, 8")
        a(f"s_add_u32 s26, s26, {SCR}")
        a(f"v_add_u32 v{vX}, s26, v{V_L4}")
        a(f"v_and_b32 v{vY}, 48, v0")
        a(f"v_add_u32 v{vY}, s26, v{vY}")
    else:
        a(f"s_and_b32 s24, s{S_WAVE}, 1")
        a(f"s_lshr_b32 s25, s{S_WAVE}, 1")
        a(f"s_lshl_b32 s33, s{s_nt}, 1")
        a("s_add_u32 s33, s33, s25")
        a(f"s_add_u32 s31, s{s_tt}, s24")
        a("s_lshl_b32 s22, s31, 15")
        a("s_lshl_b32 s27, s25, 11")
        a("s_add_u32 s22, s22, s27")
        a("s_mul_i32 s26, s25, 6144")
        a("s_add_u32 s27, s27, 2048")
        for w in range(nwin):
            a(f"v_add_u32 v{vX}, {w*65536}, v{V_L16}")
            a(f"v_add_u32 v{vW[0][w]}, s26, v{vX}")
            a(f"v_add_u32 v{vW[1][w]}, s27, v{vX}")
        for x in res_init(acc[0]):
            a(x)
        a(f"s_lshl_b32 s26, s{S_WAVE}, 12")
        a(f"s_add_u32 s26, s26, {SCR}")
        a("s_xor_b32 s27, s26, 0x2000")
        assert SCR % 16384 == 0
        a(f"v_add_u32 v{vX}, s26, v{V_L16}")
        a(f"v_add_u32 v{vY}, s27, v{V_L16}")
    a(f"s_add_u32 s22, s22, s{S_BASE}")
    a(f"s_add_u32 s22, s22, {g.ABUF:#x}")
    AST = 2048 if ln else 4096

    cvm, na = [], [0]
    L = Lgkm(a)
    def load_a():
        k = na[0]; na[0] += 1
        off = ((k // 2) * AST) % 4096
        a(f"buffer_load_dwordx4 {vr(ring[k % RA],4)}, v{V_P16}, s[4:7], s22 offen offset:{off + (k%2)*256}{SC}")
        if k % 2 == 1 and off + AST == 4096:
            a("s_add_u32 s22, s22, 4096")
        cvm.append(k)
    def wait_tag(tag):
        if tag in cvm:
            i = len(cvm) - 1 - cvm[::-1].index(tag)
            a(f"s_waitcnt vmcnt({len(cvm) - 1 - i})")
            del cvm[:i + 1]
    def w_read(i):
        st_, t, fh = order[i]
        off = LB + (i * 1024 if ln else st_ * 8192 + fh * 1024)
        base = vW[0 if ln else t][off >> 16]
        L.op(f"ds_read_b128 {vr(wf[i % NF],4)}, v{base} offset:{off & 0xffff}", i)

    a("s_lshl_b32 s23, s31, 8")
    a(f"s_add_u32 s23, s23, s{S_FL}")
    a(f"s_add_u32 s23, s23, {g.FIN:#x}")
    a("s_waitcnt vmcnt(0)")
    stamp(a, SB)
    handoff(a, 23, g.NEED)
    stamp(a, SB + 1)
    while na[0] < g.I0:
        load_a()
    a("s_barrier")
    for i in range(RAH):
        w_read(i)
    a(f"s_lshl_b32 s{S_SIG}, s{s_nt if ln else 31}, 8")
    a(f"s_add_u32 s{S_SIG}, s{S_SIG}, s{S_FL}")
    if g.FOUT:
        a(f"s_add_u32 s{S_SIG}, s{S_SIG}, {g.FOUT:#x}")
    stl = [f"buffer_load_dwordx4 {vr(tmp+4*i,4)}, v{V_L16}, s[4:7], s36 offen offset:{i*1024}{SC}" for i in range(4)] if ln else []
    fill = []
    vRs = tmp + 8
    for i in range(NSL):
        st_, t, fh = order[i]
        if i in bars and i > 0:
            a("s_barrier")
        if ln and i == NS * SPS - 26:
            assert not stl
            wait_tag("st")
            fill.extend(stats_ops(tmp, xc, vR, False))
        if ln and i == NS * SPS:
            assert not fill
        if i % 2 == 0:
            L.wait(i + 1)
        if not ln and i == NSL - 2:
            L.wait("xw")
            a("s_barrier")
            for q in range(4):
                L.op(f"ds_read_b128 {vr(acc[1]+4*q,4)}, v{vY} offset:{q*1024}", "xr")
        for th in range(2):
            if th == 1 and i + RAH < NSL:
                w_read(i + RAH)
            if st_ < NS:
                wait_tag(2 * st_ + 1)
            xa = ring[(2 * st_ + th) % RA] if st_ < NS else xc + 2 * th
            d = acc[t] + 8 * fh + 4 * th
            c = "0" if st_ == 0 and (ln or t == 1) else vr(d, 4)
            if ln and t == 2:
                a(f"{M16} {vr(d,4)}, {vr(xa,4)}, {vr(wf[i % NF],4)}, {c}")
            else:
                a(f"{M16} {vr(d,4)}, {vr(wf[i % NF],4)}, {vr(xa,4)}, {c}")
            if fill:
                a(fill.pop(0))
            j = i - (NSL - 2 * TAIL) - 2
            if not ln and 0 <= j < 2:
                q = 2 * j + th
                L.op(f"ds_write_b128 v{vX}, {vr(acc[1]+4*q,4)} offset:{q*1024}", "xw")
        if (i + 1) % g.LP == 0 and na[0] < 2 * NS and na[0] < 2 * ((i + 1) // SPS) + RA:
            load_a()
        if stl and i >= g.STS and i % SPS == 1:
            a(stl.pop(0)); cvm.append("st")
    assert na[0] == 2 * NS
    if ln:
        a(f"ds_write_b32 v{vX}, v{tmp+4}")
        for th in range(2):
            a(f"ds_read_b128 {vr(vRs+4*th,4)}, v{vY} offset:{th*128}")
    stamp(a, SB + 2)
    if ln:
        ot = ring[0]
        a(f"s_lshl_b32 s26, s{s_nt}, 17")
        a("s_lshl_b32 s27, s31, 10")
        a("s_add_u32 s26, s26, s27")
        a(f"s_add_u32 s26, s26, s{S_BASE}")
        a(f"v_mul_f32 v{tmp}, {f32bits(QSCALE):#x}, v{vR}")
        a(f"v_mul_f32 v{tmp+1}, {f32bits(QSCALE):#x}, v{vR+1}")
        a(f"v_lshrrev_b32 v{tmp+2}, 5, v0")
        a(f"v_and_b32 v{tmp+3}, 0x3ff, v{V_P16}")
        a(f"v_lshl_add_u32 v{tmp+2}, v{tmp+2}, 16, v{tmp+3}")
        for t, base, sc in ((0, B_Q, tmp), (1, B_K, vR)):
            a(f"s_add_u32 s27, s26, {base:#x}")
            for th in range(2):
                o = ot + 4 * (2 * t + th)
                for fh in range(2):
                    for c in range(2):
                        r = acc[t] + 8 * fh + 4 * th + 2 * c
                        a(f"v_pk_mul_f32 {vr(r,2)}, {vr(r,2)}, {vr(sc,2)} op_sel:[0,{th}] op_sel_hi:[1,{th}]")
                for fh in range(2):
                    for c in range(2):
                        r = acc[t] + 8 * fh + 4 * th + 2 * c
                        a(f"v_cvt_pk_bf16_f32 v{o+2*fh+c}, v{r}, v{r+1}")
                a(f"buffer_store_dwordx4 {vr(o,4)}, v{tmp+2}, s[4:7], s27 offen offset:{th*256}{SC}")
        a("s_waitcnt lgkmcnt(0)")
        for fh in range(2):
            o = ot + 16 + 4 * fh
            a(f"s_add_u32 s27, s26, {B_V + fh*65536:#x}")
            for c in range(4):
                r = acc[2] + 8 * fh + 2 * c
                a(f"v_pk_mul_f32 {vr(r,2)}, {vr(vRs+2*c,2)}, {vr(r,2)}")
            for c in range(4):
                r = acc[2] + 8 * fh + 2 * c
                a(f"v_cvt_pk_bf16_f32 v{o+c}, v{r}, v{r+1}")
            a(f"buffer_store_dwordx4 {vr(o,4)}, v{V_L16}, s[4:7], s27 offen{SC}")
        a("s_barrier")
        stamp(a, SB + 3)
    else:
        res_epilogue(a, g, acc[0], acc[1], tmp, end)
    a(f"{end}:")
    return R.n


def mlp_phase(a, g):
    E = lambda k, d: env("MLP_" + k, d)
    NR, RING = 10, 10 * RB
    NG, NOPS = 238, 238 + 112
    TAIL = env("XTAIL", 4)
    dord = down_order(28, TAIL)
    beg = [i * 1024 for i in range(NG)] + [15 * RB + min(x[0] for x in dord[i:]) * 8192 for i in range(112)]
    fin = [i * 1024 + 1023 for i in range(NG)] + [15 * RB + max(x[0] for x in dord[:i + 1]) * 8192 + 8191 for i in range(112)]
    RAH = E("RAH", 6)
    I0, I0D = E("I0", 10), E("I0D", 16)
    sched = os.environ.get("MLP_SCHED", "0:0,20:0,40:0,60:0,88:2,100:1,114:1,130:1,146:1,162:1,178:1,194:1,210:1,226:1,246:0,258:0,270:0,282:0,294:0,306:0,326:0")
    sched = dict((int(x.split(":")[0]), int(x.split(":")[1])) for x in sched.split(","))
    bars = sorted(sched)
    S = g.stream
    comp, end = a.label("mlp_comp"), a.label("mlp_end")
    SB, SD = 17, g.sb
    a.c("================ phase gate/up + down ================")
    a(f"s_cmp_lt_u32 s{S_WAVE}, 4")
    a(f"s_cbranch_scc1 {comp}")
    stamp(a, SB)
    S.flush(NR)
    S.fetch(E("N1", 8), NR)
    stamp(a, SB + 1)
    for j, b in enumerate(bars):
        nxt = bars[j + 1] if j + 1 < len(bars) else NOPS
        S.landed(fin[min(NOPS - 1, nxt - 1 + RAH)] // RB)
        a("s_barrier")
        lim = NR + beg[b] // RB
        S.fetch(sched[b], lim)
        S.flush(lim, E("FCAP", 1))
        a.c(f"barrier {b}: fetched {S.nxt}, staged {sorted(S.reg)}")
    assert S.nxt == S.last and not S.vm and not S.lg and not S.reg
    a("s_barrier")
    a("s_barrier")
    a(f"s_branch {end}")

    a(f"{comp}:")
    R = Regs(V_FREE)
    vW = [R.alloc() for _ in range(3)]
    xc = R.alloc(6, 2)
    vR2 = R.alloc(2)
    vX, vY = R.alloc(), R.alloc()
    vD = [[R.alloc() for _ in range(3)] for _ in range(2)]
    acc = [R.alloc(16) for _ in range(4)]
    NF = RAH + 1
    wf = [R.alloc(4) for _ in range(NF)]
    ring = [R.alloc(4) for _ in range(32)]
    tmp = ring[28]
    NP = len(PASSES)
    pstart = [34 * f for f in PFIRST] + [NG]
    tacc = [acc[t % 4] for t in range(7)]
    dacc = [acc[3], acc[0]]
    hreg = [34, 35, 32, 51]
    a(f"s_add_u32 s31, s{S_TTG}, s{S_WAVE}")
    a("s_lshl_b32 s22, s31, 15")
    a(f"s_add_u32 s22, s22, s{S_BASE}")
    a(f"s_add_u32 s22, s22, {B_X1:#x}")
    a("s_lshl_b32 s36, s31, 12")
    a(f"s_add_u32 s36, s36, s{S_BASE}")
    a(f"s_add_u32 s36, s36, {B_ST1:#x}")
    a(f"s_mul_i32 s26, s31, {112*1024}")
    a(f"s_add_u32 s26, s26, s{S_BASE}")
    a(f"s_add_u32 s26, s26, {B_H:#x}")
    for p in range(NP):
        a(f"s_mul_i32 s{hreg[p]}, s{S_NTG}, {PASSES[p]*1024}")
        a(f"s_add_u32 s{hreg[p]}, s{hreg[p]}, s26")
        if p:
            a(f"s_add_u32 s{hreg[p]}, s{hreg[p]}, {PFIRST[p]*16384}")
    a("s_lshl_b32 s50, s31, 8")
    a(f"s_add_u32 s50, s50, s{S_FL}")
    a(f"s_add_u32 s23, s50, {FL_O:#x}")
    a(f"s_add_u32 s50, s50, {FL_G:#x}")
    a(f"s_and_b32 s24, s{S_WAVE}, 1")
    a(f"s_lshr_b32 s25, s{S_WAVE}, 1")
    a(f"s_lshl_b32 s33, s{S_NT64}, 1")
    a("s_add_u32 s33, s33, s25")
    a(f"s_add_u32 s31, s{S_TT64}, s24")
    a("s_lshl_b32 s52, s31, 8")
    a(f"s_add_u32 s52, s52, s{S_FL}")
    a(f"s_add_u32 s52, s52, {FL_G:#x}")
    a(f"s_mul_i32 s37, s31, {112*1024}")
    a("s_lshl_b32 s30, s25, 11")
    a("s_add_u32 s37, s37, s30")
    a(f"s_add_u32 s37, s37, s{S_BASE}")
    a(f"s_add_u32 s37, s37, {B_H:#x}")
    a("s_mul_i32 s29, s25, 6144")
    a("s_add_u32 s30, s30, 2048")
    for w in range(3):
        a(f"v_add_u32 v{vW[w]}, {w*65536}, v{V_L16}")
        a(f"v_add_u32 v{vD[0][w]}, s29, v{vW[w]}")
        a(f"v_add_u32 v{vD[1][w]}, s30, v{vW[w]}")
    a(f"v_lshrrev_b32 v{vY}, 5, v0")
    a(f"v_and_b32 v{vX}, 0x3ff, v{V_P16}")
    a(f"v_lshl_add_u32 v{vX}, v{vY}, 8, v{vX}")
    cvm = []
    L = Lgkm(a)
    def wait_tag(tag):
        if tag in cvm:
            i = len(cvm) - 1 - cvm[::-1].index(tag)
            a(f"s_waitcnt vmcnt({len(cvm) - 1 - i})")
            del cvm[:i + 1]
    na, nh = [0], [0]
    def load_x():
        k = na[0]; na[0] += 1
        a(f"buffer_load_dwordx4 {vr(ring[k],4)}, v{V_P16}, s[4:7], s22 offen offset:{(k%4//2)*2048 + (k%2)*256}{SC}")
        if k % 4 == 3:
            a("s_add_u32 s22, s22, 4096")
        cvm.append(("x", k))
    def load_h():
        k = nh[0]; nh[0] += 1
        if env("X_NOH", 0):
            return
        a(f"buffer_load_dwordx4 {vr(ring[k%32],4)}, v{V_P16}, s[4:7], s37 offen offset:{(k%2)*256}{SC}")
        if k % 2 == 1:
            a("s_add_u32 s37, s37, 4096")
        cvm.append(("h", k))
    def w_read(i):
        if i < NG:
            off = beg[i] % RING
            base = vW[off >> 16]
        else:
            st_, t_, fh_ = dord[i - NG]
            off = (15 * RB + st_ * 8192) % RING + fh_ * 1024
            base = vD[t_][off >> 16]
        L.op(f"ds_read_b128 {vr(wf[i % NF],4)}, v{base} offset:{off & 0xffff}", i)
    def slot(i):
        for p in range(NP):
            if i < pstart[p + 1]:
                return PFIRST[p] + (i - pstart[p]) // 2 % PASSES[p], (i - pstart[p]) // (2 * PASSES[p])
        return None, dord[i - NG][0]
    fill = []
    stored = set()
    def h_ops(t, packed=True):
        r = tacc[t]
        p = max(q for q in range(NP) if PFIRST[q] <= t)
        so, off = hreg[p], (t - PFIRST[p]) * 1024
        ops = [f"v_pk_mul_f32 {vr(r+2*i,2)}, {vr(r+2*i,2)}, {vr(r+8+2*i,2)}" for i in range(4)]
        ops += [f"v_pk_mul_f32 {vr(r+2*i,2)}, {vr(r+2*i,2)}, {vr(vR2,2)} op_sel:[0,{i//2}] op_sel_hi:[1,{i//2}]" for i in range(4)]
        if not packed:
            ops = [f"v_mul_f32 v{r+i}, v{r+i}, v{r+8+i}" for i in range(8)]
            ops += [f"v_mul_f32 v{r+i}, v{vR2 + i//4}, v{r+i}" for i in range(8)]
        ops += [f"v_cvt_pk_bf16_f32 v{r+8+i}, v{r+2*i}, v{r+2*i+1}" for i in (0, 2, 1, 3)]
        ops += [f"v_permlane32_swap_b32 v{r+8}, v{r+10}", "s_nop 0", f"v_permlane32_swap_b32 v{r+9}, v{r+11}"]
        ops.append((f"buffer_store_dwordx4 {vr(r+8,4)}, v{vX}, s[4:7], s{so} offen offset:{off}{SC}", ("hs", t)))
        return ops

    a("s_waitcnt vmcnt(0)")
    stamp(a, SB)
    handoff(a, 23, 16)
    stamp(a, SB + 1)
    if E("PRIO", 2):
        a(f"s_setprio {E('PRIO', 2)}")
    while na[0] < I0:
        load_x()
        if na[0] == E("STP", 4):
            a("s_barrier")
            for i in range(RAH):
                w_read(i)
            for q in range(4):
                a(f"buffer_load_dwordx4 {vr(tmp+4*q,4)}, v{V_L16}, s[4:7], s36 offen offset:{q*1024}{SC}")
                cvm.append("st")
    a(f"s_add_u32 s{S_SIG}, s52, {FL_D - FL_G:#x}")
    STF = (E("STP", 4) + 1) * PASSES[0]
    evs = os.environ.get("MLP_EV", "170:196:218,240:264:286,260:288:310")
    ev = []
    for p, x in enumerate(evs.split(",")):
        sg, ak, go = map(int, x.split(":"))
        ev.append((PFIRST[p] + PASSES[p] - 1, sg, ak, go, 8 * (PFIRST[p] + PASSES[p])))
    def emit(x):
        if isinstance(x, tuple):
            a(x[0]); cvm.append(x[1]); stored.add(x[1][1])
        else:
            a(x)
    dinit = [False]
    hlim = 0
    treg = list(range(78, 94, 2)) + [96, 98, 100, 62]
    tpos = [int(x) for x in os.environ.get("TRACE", "").split(",") if x]
    for i in range(NOPS):
        t, ks = slot(i)
        if i in tpos:
            r_ = treg[tpos.index(i)]
            a(f"s_memtime s[{r_}:{r_+1}]")
        for gi, (lt, sg, ak, go, lim_) in enumerate(ev):
            if i == sg:
                a.c(f"this wave's part {gi} of H is complete")
                assert lt in stored
                wait_tag(("hs", lt))
                a(f"s_add_u32 s54, s50, {gi*4}")
                a("s_mov_b32 s38, 1")
                a("s_atomic_add s38, s[14:15], s54")
            if i == ak:
                a(f"s_add_u32 s28, s52, {gi*4}")
                a("s_mov_b32 s55, 0")
                a("s_atomic_add s55, s[14:15], s28 glc")
            if i == go:
                ok = a.label("go")
                a("s_waitcnt lgkmcnt(0)")
                a("s_cmp_ge_u32 s55, 16")
                a(f"s_cbranch_scc1 {ok}")
                poll(a, 28, 16)
                a(f"{ok}:")
                hlim = lim_
                if gi in (0, NP - 1) and not tpos:
                    stamp(a, SD + (0 if gi == 0 else 4))
        if i in bars and i > 0:
            a("s_barrier")
        if i == STF:
            wait_tag("st")
            fill.extend(stats_ops(tmp, xc, vR2, True))
        if i == pstart[1] and not tpos:
            stamp(a, SB + 2)
        if i == NG and not tpos:
            stamp(a, SB + 3)
        if i in pstart[1:]:
            p = pstart.index(i) - 1
            assert not fill
            need = set(tacc[q] for q in range(PFIRST[p + 1], PFIRST[p + 1] + PASSES[p + 1])) if p + 1 < NP else set(dacc)
            tiles = list(range(PFIRST[p], PFIRST[p] + PASSES[p]))
            now = [q for q in tiles if tacc[q] in need or (E("SER", 15) >> p) & 1]
            if now:
                if tiles[-1] == now[0]:
                    a("s_nop 7")
                for q in now:
                    for x in h_ops(q):
                        emit(x)
            else:
                fill.extend(["s_nop 0"] * 6)
            for q in tiles:
                if q not in now:
                    fill.extend(h_ops(q, False))
        if i == NG and not tpos:
            stamp(a, SD + 1)
        if 3 in stored and not dinit[0] and not fill:
            dinit[0] = True
            assert i + 10 < NG
            fill.extend(["s_nop 0"] * 2)
            fill.extend(res_init(dacc[0]))
        if i % 2 == 0:
            L.wait(i + 1)
        if i == NOPS - 4 * TAIL:
            dead = beg[bars[-1]] // RB - 1
            assert dead + NR >= 29 and bars[-1] < i and 6 in stored
            SCR = (dead % NR) * RB
            fill.append(f"s_lshl_b32 s26, s{S_WAVE}, 12")
            fill.append(f"s_add_u32 s26, s26, {SCR}")
            fill.append("s_xor_b32 s27, s26, 0x2000")
            fill.append(f"v_add_u32 v{vX}, s26, v{V_L16}")
            fill.append(f"v_add_u32 v{vY}, s27, v{V_L16}")
        if i == NOPS - 2:
            L.wait("xw")
            a("s_barrier")
            for q in range(4):
                L.op(f"ds_read_b128 {vr(dacc[1]+4*q,4)}, v{vY} offset:{q*1024}", "xr")
        fh = i % 2
        for th in range(2):
            if th == 1 and i + RAH < NOPS:
                w_read(i + RAH)
            if t == 0 and fh == 0 and ks < 16:
                wait_tag(("x", 2 * ks + 1))
            if t is None:
                assert nh[0] > 2 * ks + 1
                wait_tag(("h", 2 * ks + 1))
            if t is not None:
                d, xa, first = tacc[t], (xc + 2 * th if ks == 16 else ring[2 * ks + th]), ks == 0
                if first and t >= 4:
                    assert t - 4 in stored
            else:
                d, xa, first = dacc[dord[i - NG][1]], ring[(2 * ks + th) % 32], i - NG in (2, 3)
                assert 4 in stored
            d += 8 * fh + 4 * th
            a(f"{M16} {vr(d,4)}, {vr(wf[i % NF],4)}, {vr(xa,4)}, {'0' if first else vr(d,4)}")
            for _ in range(min(E("FPS", 1), len(fill))):
                emit(fill.pop(0))
            j = i - (NOPS - 2 * TAIL) - 2
            if 0 <= j < 2:
                q = 2 * j + th
                L.op(f"ds_write_b128 v{vX}, {vr(dacc[1]+4*q,4)} offset:{q*1024}", "xw")
        if (i + 1) % PASSES[0] == 0 and na[0] < 32:
            assert na[0] < 28 or (i > STF and not fill), i
            load_x()
        if i >= pstart[NP - 1]:
            done = 2 * ((i + 1 - NG) // 4) if t is None else 0
            half = (i + 1 - NG) // 2 if t is None else 0
            look = I0D if t is not None else max(E("LK", 12), I0D - half)
            assert look <= 30
            if nh[0] < min(hlim, half + look) and (t is None or nh[0] < 2 * ks):
                load_h()
    assert nh[0] == 56 and not fill
    if E("PRIO", 2):
        a("s_setprio 0")
    stamp(a, SD + 2)
    for k in range(len(tpos)):
        a(f"v_writelane_b32 v{V_STAMP+1}, s{treg[k]}, {k}")
    res_epilogue(a, g, dacc[0], dacc[1], tmp, end)
    a(f"{end}:")
    return max(R.n, VS + 16 * S.maxreg)


def attn_phase(a, SB, code_end):
    U = 2
    NIT = 32 // U
    B2IT = env("ATT_B2", 1)
    B3IT = env("ATT_B3", 3)
    PRIO_IT = env("ATT_PRIO", 14)
    PFN = 4 if GMX == 4 else env('PFN', 6)
    CB = 0
    XB = CB + 4096
    KB, VB = 32768, 98304
    assert XB + 8 * 2304 <= KB
    R = Regs(V_FREE)
    vK, vV, vInc, vV0 = R.alloc(), R.alloc(), R.alloc(), R.alloc()
    t0, t1 = R.alloc(), R.alloc()
    vPA, vPP = R.alloc(), R.alloc()
    R.alloc(); R.alloc()
    vIx, vKp = R.alloc(), R.alloc()
    DYN = env("ATT_DYN", 0)
    Q = [R.alloc(4), R.alloc(4)]
    NM = [R.alloc(16), R.alloc(16)]
    O = [R.alloc(16), R.alloc(16)]
    S = [R.alloc(16), R.alloc(16)]
    P = R.alloc(8)
    KF = [R.alloc(4), R.alloc(4)]
    VF = [R.alloc(8), R.alloc(8)]
    a.c("================ phase attention ================")
    a(f"s_and_b32 s19, s{S_IDX}, 3")
    a(f"s_lshl_b32 s20, s{S_XCD}, 2")
    a("s_add_u32 s19, s19, s20")
    a(f"s_lshr_b32 s20, s{S_IDX}, 2")
    a("s_lshl_b32 s20, s20, 3")
    a(f"s_and_b32 s26, s{S_WAVE}, 3")
    a(f"s_lshr_b32 s27, s{S_WAVE}, 2")
    a("s_lshl_b32 s22, s26, 1")
    a("s_add_u32 s20, s20, s22")
    a("s_lshl_b32 s21, s19, 16")
    a(f"s_add_u32 s21, s21, s{S_BASE}")
    setup = a.label("att_setup")
    assert B_Q == 0 and B_V - B_K == 0x200000
    a("s_and_b32 s24, s26, 1")
    a("s_lshr_b32 s25, s26, 1")
    a("s_lshl_b32 s28, s24, 16")
    a(f"s_add_u32 s28, s28, {KB}")
    a("s_lshl_b32 s29, s24, 21")
    a("s_add_u32 s29, s29, s21")
    a(f"s_add_u32 s29, s29, {B_K:#x}")

    def dma(first_tile, per_wave):
        a(f"s_mul_i32 s24, s25, {per_wave*1024}")
        if first_tile:
            a(f"s_add_u32 s24, s24, {first_tile*1024}")
        n = 0
        while n < per_wave:
            a("s_add_u32 s30, s28, s24")
            a("s_mov_b32 m0, s30")
            a("s_add_u32 s31, s29, s24")
            for i in range(min(4, per_wave - n)):
                a(f"buffer_load_dwordx4 v{V_L16}, s[4:7], s31 offen offset:{i*1024}{SC} lds")
            n += 4
            if n < per_wave:
                a("s_add_u32 s24, s24, 4096")
    a(f"v_and_b32 v{t0}, 11, v0")
    a(f"v_cmp_eq_u32 vcc, 0, v{t0}")
    a(f"v_mov_b32 v{t1}, 0x3f803f80")
    a("s_lshl_b32 s30, s26, 10")
    a(f"s_add_u32 s30, s30, {CB}")
    a(f"v_cndmask_b32 v{P}, 0, v{t1}, vcc")
    a(f"v_add_u32 v{t0}, s30, v{V_L16}")
    for i in range(1, 4):
        a(f"v_mov_b32 v{P+i}, v{P}")
    a(f"ds_write_b128 v{t0}, {vr(P,4)}")
    a(f"v_lshrrev_b32 v{t0}, 5, v0")
    a(f"v_lshlrev_b32 v{t0}, 8, v{t0}")
    a(f"v_and_b32 v{t1}, 15, v0")
    a(f"v_lshl_add_u32 v{t0}, v{t1}, 4, v{t0}")
    a(f"v_and_b32 v{t1}, 16, v0")
    a(f"v_cmp_eq_u32 vcc, 0, v{t1}")
    a("s_lshl_b32 s30, s27, 15")
    a(f"s_add_u32 s30, s30, {KB}")
    kp1, kpj = a.label("kp1"), a.label("kpj")
    a(f"s_cmp_lg_u32 s{S_IT}, 0")
    a(f"s_cbranch_scc1 {kp1}")
    a(f"v_and_b32 v{vKp}, 0x33, v0")
    a(f"v_bfe_u32 v{vIx}, v0, 2, 1")
    a(f"v_lshl_or_b32 v{vKp}, v{vIx}, 3, v{vKp}")
    a(f"v_bfe_u32 v{vIx}, v0, 3, 1")
    a(f"v_lshl_or_b32 v{vKp}, v{vIx}, 2, v{vKp}")
    a(f"s_branch {kpj}")
    a(f"{kp1}:")
    a(f"v_and_b32 v{vKp}, 0x23, v0")
    a(f"v_bfe_u32 v{vIx}, v0, 2, 1")
    a(f"v_lshl_or_b32 v{vKp}, v{vIx}, 4, v{vKp}")
    a(f"v_bfe_u32 v{vIx}, v0, 3, 2")
    a(f"v_lshl_or_b32 v{vKp}, v{vIx}, 2, v{vKp}")
    a(f"{kpj}:")
    a(f"v_lshlrev_b32 v{vKp}, 4, v{vKp}")
    a(f"v_mov_b32 v{vIx}, 0xdddddddd")
    a(f"v_add_u32 v{vK}, s30, v{vKp}")
    a("s_add_u32 s31, s30, 0x10000")
    a(f"v_mov_b32 v{t1}, s31")
    a(f"v_mov_b32 v{vInc}, {CB}")
    a(f"v_cndmask_b32 v{t1}, v{vInc}, v{t1}, vcc")
    a(f"v_add_u32 v{vV}, v{t0}, v{t1}")
    a(f"v_mov_b32 v{t1}, {VB}")
    a(f"v_cndmask_b32 v{t1}, v{vInc}, v{t1}, vcc")
    a(f"v_add_u32 v{vV0}, v{t0}, v{t1}")
    a(f"v_mov_b32 v{t1}, {U*1024}")
    a(f"v_cndmask_b32 v{vInc}, 0, v{t1}, vcc")
    for q in range(2):
        for i in range(16):
            a(f"v_mov_b32 v{O[q]+i}, 0")
    for i in range(4, 8):
        a(f"v_mov_b32 v{VF[1]+i}, 0")
    a(f"ds_write_b128 v{V_L16}, {vr(VF[1]+4,4)} offset:{XB + 9216}")
    a("s_mul_i32 s30, s26, 2304")
    a(f"s_add_u32 s30, s30, {XB}")
    a("s_lshl_b32 s31, s26, 12")
    a(f"s_add_u32 s31, s31, {XB + 12288}")
    a("s_cmp_eq_u32 s27, 0")
    a("s_cselect_b32 s35, s30, s31")
    a("s_cselect_b32 s36, s31, s30")
    a(f"v_add_u32 v{vPA}, s35, v{V_L16}")
    a(f"v_add_u32 v{vPP}, s36, v{V_L16}")
    a(f"v_add_u32 v{vPA+2}, s35, v{V_L4}")
    a(f"v_add_u32 v{vPP+2}, s36, v{V_L4}")
    a("s_add_u32 s20, s20, s27")
    a("s_lshl_b32 s22, s20, 10")
    a("s_add_u32 s22, s22, s21")
    a("s_xor_b32 s35, s22, 1024")
    a(f"s_add_u32 s36, s21, {B_K:#x}")
    a("s_lshr_b32 s23, s19, 1")
    a(f"s_cmp_eq_u32 s{S_IT}, 0")
    a("s_cselect_b32 s53, 32, 16")
    a("s_cselect_b32 s52, -2, -1")
    a(f"s_cselect_b32 s32, {NIT - env('ATT_PRIO0', 16)}, {NIT - PRIO_IT}")
    a("s_and_b32 s23, s23, s52")
    a("s_lshl_b32 s23, s23, 8")
    a(f"s_add_u32 s23, s23, s{S_FL}")
    assert FL_Q == 0
    a(f"s_mov_b32 s34, {NIT - B2IT}")
    a(f"s_mov_b32 s33, {NIT - B3IT}")
    a("s_waitcnt vmcnt(0) lgkmcnt(0)")
    stamp(a, SB)
    a("s_barrier")
    a(f"s_cmp_lg_u32 s{S_WAVE}, 0")
    a(f"s_cbranch_scc1 {setup}")
    handoff(a, 23, "s53")
    stamp(a, SB + 1)
    a(f"{setup}:")
    a("s_barrier")

    def qk_loads():
        a(f"buffer_load_dwordx4 {vr(KF[1],4)}, v{vKp}, s[4:7], s36 offen{SC}")
        a(f"buffer_load_dwordx4 {vr(Q[0],4)}, v{V_L16}, s[4:7], s35 offen{SC}")
        a(f"buffer_load_dwordx4 {vr(Q[1],4)}, v{V_L16}, s[4:7], s22 offen{SC}")

    def standin():
        for q in range(2):
            a(f"{MFMA} {vr(S[q],16)}, {vr(KF[1],4)}, {vr(Q[q],4)}, 0")
        a("s_nop 11")
        tt = (t0, t1)
        for q in range(2):
            a(f"v_max3_f32 v{tt[q]}, v{S[q]}, v{S[q]+1}, v{S[q]+2}")
            a(f"v_max3_f32 v{P+q}, v{S[q]+8}, v{S[q]+9}, v{S[q]+10}")
        for i in (3, 5):
            for q in range(2):
                a(f"v_max3_f32 v{tt[q]}, v{tt[q]}, v{S[q]+i}, v{S[q]+i+1}")
                a(f"v_max3_f32 v{P+q}, v{P+q}, v{S[q]+8+i}, v{S[q]+9+i}")
        for q in range(2):
            a(f"v_max3_f32 v{tt[q]}, v{tt[q]}, v{S[q]+7}, v{S[q]+15}")
        for q in range(2):
            a(f"v_max_f32 v{tt[q]}, v{tt[q]}, v{P+q}")
        for q in range(2):
            a(f"v_mov_b32 v{P+q}, v{tt[q]}")
        a("s_nop 0")
        for q in range(2):
            a(f"v_permlane32_swap_b32 v{tt[q]}, v{P+q}")
        for q in range(2):
            a(f"v_min_f32 v{NM[q]}, -v{tt[q]}, -v{P+q}")
        for q in range(2):
            a(f"v_mov_b32 v{NM[q]+1}, v{NM[q]}")
        for q in range(2):
            for i in range(2, 16, 2):
                a(f"v_pk_mov_b32 {vr(NM[q]+i,2)}, {vr(NM[q],2)}, {vr(NM[q],2)}")

    older, join = a.label("older"), a.label("join")
    a("s_cmp_eq_u32 s27, 0")
    a(f"s_cbranch_scc1 {older}")
    dma(0, 2)
    dma(4, 6)
    a("s_waitcnt vmcnt(6)")
    a("s_barrier")
    stamp(a, SB + 2)
    qk_loads()
    dma(16, 8)
    a("s_waitcnt vmcnt(11)")
    a("s_barrier")
    dma(32, 16)
    a("s_waitcnt vmcnt(24)")
    standin()
    F, G_, vS, vR, vC = V_TF, V_TF + 32, V_TF + 48, V_TF + 49, V_TF + 52
    CSA = XB + 10240
    CNT = XB + 9216
    a.c("L2 prefetch: this wave's share of gate/up (2 x 8 KB) and wo (8 KB)")
    a(f"s_mul_i32 s50, s{S_IDX}, {WNT_G // 4}")
    a(f"s_and_b32 s23, s{S_XCD}, 1")
    a(f"s_mul_i32 s23, s23, {8*WNT_G}")
    a("s_add_u32 s50, s50, s23")
    a("s_lshl_b32 s23, s26, 14")
    a("s_add_u32 s50, s50, s23")
    a(f"s_add_u32 s50, s50, {WS_WGU:#x}")
    a(f"s_lshl_b32 s51, s{S_IDX}, 14")
    a("s_and_b32 s23, s26, 1")
    a("s_lshl_b32 s23, s23, 13")
    a("s_add_u32 s51, s51, s23")
    a(f"s_add_u32 s51, s51, {WS_WO:#x}")
    a(f"s_mov_b32 s39, {SPIN_MAX}")
    second, both = a.label("second"), a.label("both")
    a(f"s_cmp_lg_u32 s{S_IT}, 0")
    a(f"s_cbranch_scc1 {second}")
    a.c("re-tiling task: 128 rows x two 64-column strips; this wave takes 32 rows")
    def by_type(fq, fg, fo, fd):
        l_gu, l_o, l_d, l_go = [a.label(x) for x in ("gu", "o", "d", "go")]
        a("s_cmp_ge_u32 s2, 176")
        a(f"s_cbranch_scc1 {l_d}")
        a("s_cmp_ge_u32 s2, 160")
        a(f"s_cbranch_scc1 {l_o}")
        a("s_cmp_ge_u32 s2, 48")
        a(f"s_cbranch_scc1 {l_gu}")
        fq()
        a(f"s_branch {l_go}")
        a(f"{l_gu}:")
        fg()
        a(f"s_branch {l_go}")
        a(f"{l_o}:")
        fo()
        a(f"s_branch {l_go}")
        a(f"{l_d}:")
        fd()
        a(f"{l_go}:")
    def src(lo0, lo1, nbytes, first, stride, kq_low):
        def f():
            srd(a, 80, lo0, lo0 + 1, nbytes)
            srd(a, 84, lo1, lo1 + 1, nbytes)
            a(f"s_sub_u32 s55, s2, {first}")
            a(f"s_and_b32 s{79 if kq_low else 91}, s55, 3")
            a(f"s_lshr_b32 s{91 if kq_low else 79}, s55, 2")
            a(f"s_mov_b32 s88, {stride}")
            a(f"s_lshl_b32 s89, s91, {8 if lo0 == lo1 else 7}")
            a(f"s_add_u32 s90, s89, {128 if lo0 == lo1 else 0}")
        return f
    by_type(src(66, 66, 512 * 1536 * 2, 0, 3072, True), src(72, 74, 512 * 1792 * 2, 48, 3584, True),
            src(68, 68, 512 * 512 * 2, 160, 1024, False), src(76, 76, 1792 * 512 * 2, 176, 1024, False))
    a("s_lshl2_add_u32 s92, s79, s26")
    a("s_lshl_b32 s62, s92, 5")
    a("s_mul_i32 s62, s62, s88")
    a("s_add_u32 s89, s89, s62")
    a("s_add_u32 s90, s90, s62")
    a("s_lshl_b32 s55, s88, 3")
    a(f"v_lshrrev_b32 v{vS}, 3, v0")
    a(f"v_mul_lo_u32 v{vS}, v{vS}, s88")
    a(f"v_and_b32 v{vR}, 7, v0")
    a(f"v_lshl_add_u32 v{vS}, v{vR}, 4, v{vS}")
    for g8 in range(4):
        for h in range(2):
            a(f"buffer_load_dwordx4 {vr(F+16*h+4*g8,4)}, v{vS}, s[{80+4*h}:{83+4*h}], s{89+h} offen")
            a(f"s_add_u32 s{89+h}, s{89+h}, s55")
    a("s_mov_b32 s33, 1")
    a(f"s_mov_b32 s34, {NIT - env('ATT_G0', 4)}")
    a("s_waitcnt vmcnt(8)")
    a(f"s_branch {both}")
    a(f"{second}:")
    a("s_mov_b32 s33, 6")
    a(f"s_mov_b32 s34, {NIT - 1}")
    a("s_waitcnt vmcnt(0)")
    a(f"{both}:")
    a("s_barrier")
    a("s_setprio 1")
    a(f"ds_read_b128 {vr(KF[0],4)}, v{vK}")
    a(f"ds_read_b128 {vr(VF[0],4)}, v{vV}")
    a(f"ds_read_b128 {vr(VF[0]+4,4)}, v{vV} offset:512")
    a("s_waitcnt lgkmcnt(0)")
    a(f"{MFMA} {vr(S[0],16)}, {vr(KF[0],4)}, {vr(Q[0],4)}, {vr(NM[0],16)}")
    a("s_nop 10")
    a(f"s_branch {join}")
    a(f"{older}:")
    qk_loads()
    a("s_waitcnt vmcnt(0)")
    standin()
    a(f"{MFMA} {vr(S[0],16)}, {vr(KF[1],4)}, {vr(Q[0],4)}, {vr(NM[0],16)}")
    a("s_barrier")
    stamp(a, SB + 2)
    a(f"ds_read_b128 {vr(VF[0],4)}, v{vV}")
    a(f"ds_read_b128 {vr(VF[0]+4,4)}, v{vV} offset:512")
    for i in range(0, 4, 2):
        a(f"v_pk_mov_b32 {vr(KF[0]+i,2)}, {vr(KF[1]+i,2)}, {vr(KF[1]+i,2)} op_sel:[0,1]")
    a("s_waitcnt lgkmcnt(0)")
    a("s_nop 5")
    a(f"{join}:")
    a(f"s_mov_b32 s31, {NIT}")
    stamp(a, SB + 3)
    lp, hook, back, hp, exitc = [a.label(x) for x in ("attn", "hook", "back", "hookp", "exitc")]
    a(f"{lp}:")
    order = os.environ.get("ATT_ORD", "E0 E1 P1 RK D E2 E3 E4 W QK R0 E5 E6 E7 E8 E9 E10 P0 R1 S E11 E12 E13 A E14 E15").split()
    for u in range(U):
        for q in range(2):
            c = S[q]
            for tok in order:
                if tok[0] == "E":
                    i = int(tok[1:]); a(f"v_exp_f32 v{c+i}, v{c+i}")
                elif tok[0] == "C":
                    j = int(tok[1:]); a(f"v_cvt_pk_bf16_f32 v{P+j}, v{c+2*j}, v{c+2*j+1}")
                elif tok == "P1":
                    pv = VF[(u + 1) & 1] if q == 0 else VF[u & 1]
                    a(f"{SMF} {vr(O[q^1],16)}, {vr(pv+4,4)}, {vr(S[q^1]+8,8)}, v{vIx}")
                elif tok == "P0":
                    a(f"{SMF} {vr(O[q],16)}, {vr(VF[u&1],4)}, {vr(S[q],8)}, v{vIx}")
                elif tok == "QK":
                    k_ = KF[u & 1] if q == 0 else KF[(u + 1) & 1]
                    a(f"{MFMA} {vr(S[q^1],16)}, {vr(k_,4)}, {vr(Q[q^1],4)}, {vr(NM[q^1],16)}")
                elif tok == "W":
                    if q == 1:
                        a("s_waitcnt lgkmcnt(0)")
                elif tok == "RK":
                    if q == 0:
                        a(f"ds_read_b128 {vr(KF[(u+1)&1],4)}, v{vK} offset:{(u+1)*1024}")
                elif tok == "R0":
                    if q == 0:
                        a(f"ds_read_b128 {vr(VF[(u+1)&1],4)}, v{vV} offset:{(u+1)*1024}")
                elif tok == "R1":
                    if q == 0:
                        a(f"ds_read_b128 {vr(VF[(u+1)&1]+4,4)}, v{vV} offset:{(u+1)*1024+512}")
                elif tok == "A":
                    if u == U - 1 and q == 1:
                        a(f"v_add_u32 v{vK}, {U*1024}, v{vK}")
                        a(f"v_add_u32 v{vV}, v{vInc}, v{vV}")
                elif tok == "D":
                    if 2 * u + q == env("ATT_PU", 1):
                        sk = a.label("keep")
                        a("s_cmp_lg_u32 s31, s32")
                        a(f"s_cbranch_scc1 {sk}")
                        a("s_setprio 0")
                        a(f"{sk}:")
                elif tok == "S":
                    if u == U - 1 and q == 1:
                        a("s_sub_u32 s31, s31, 1")
                        a("s_cmp_lg_u32 s31, s34")
    if "S" not in order:
        a("s_sub_u32 s31, s31, 1")
        a("s_cmp_lg_u32 s31, s34")
    a(f"s_cbranch_scc1 {lp}")
    a("s_cmp_lg_u32 s31, 0")
    a(f"s_cbranch_scc1 {hook}")
    a(f"{exitc}:")
    a("s_cmp_lg_u32 s33, 0")
    a(f"s_cbranch_scc1 {hp}")
    a("s_setprio 0")
    a(f"{SMF} {vr(O[1],16)}, {vr(VF[1]+4,4)}, {vr(S[1]+8,8)}, v{vIx}")
    stamp(a, SB + 4)
    a(f"ds_write_b128 v{vPA}, {vr(O[0],4)}")
    a(f"ds_write_b128 v{vPA}, {vr(O[0]+4,4)} offset:1024")
    a(f"ds_write_b32 v{vPA+2}, v{O[0]+8} offset:2048")
    a("s_lshl_b32 s22, s20, 15")
    a("s_lshl_b32 s23, s19, 10")
    a("s_add_u32 s22, s22, s23")
    a(f"s_add_u32 s22, s22, s{S_BASE}")
    a(f"s_add_u32 s22, s22, {B_O:#x}")
    a(f"s_lshl_b32 s{S_SIG}, s20, 8")
    a(f"s_add_u32 s{S_SIG}, s{S_SIG}, s{S_FL}")
    a(f"s_add_u32 s{S_SIG}, s{S_SIG}, {FL_A:#x}")
    a("s_waitcnt vmcnt(0) lgkmcnt(0)")
    a("s_barrier")
    a(f"ds_read_b32 v{S[0]+8}, v{vPP+2} offset:2048")
    a(f"ds_read_b128 {vr(S[0],4)}, v{vPP}")
    a(f"ds_read_b128 {vr(S[0]+4,4)}, v{vPP} offset:1024")
    OO = O[1]
    a("s_waitcnt lgkmcnt(2)")
    a(f"v_add_f32 v{OO+8}, v{OO+8}, v{S[0]+8}")
    a(f"v_rcp_f32 v{t0}, v{OO+8}")
    for i in range(0, 8, 2):
        if i % 4 == 0:
            a(f"s_waitcnt lgkmcnt({1 - i // 4})")
        a(f"v_pk_add_f32 {vr(OO+i,2)}, {vr(OO+i,2)}, {vr(S[0]+i,2)}")
    fin, fb, endl = a.label("fin"), a.label("fallback"), a.label("att_end")
    a(f"v_pk_add_f32 {vr(S[0],2)}, {vr(OO,2)}, {vr(OO+2,2)}")
    a(f"v_pk_add_f32 {vr(S[0]+2,2)}, {vr(OO+4,2)}, {vr(OO+6,2)}")
    a(f"v_pk_add_f32 {vr(S[0],2)}, {vr(S[0],2)}, {vr(S[0]+2,2)}")
    a(f"v_add_f32 v{t1}, v{S[0]}, v{S[0]+1}")
    a(f"v_fma_f32 v{t1}, 0, v{t1}, v{OO+8}")
    a(f"v_cmp_ngt_f32 vcc, {f32bits(2.0**64):#x}, v{t1}")
    a("s_nop 0")
    a(f"s_cbranch_vccnz {fb}")
    a(f"{fin}:")
    assert t0 % 2 == 0
    for i in range(0, 8, 2):
        a(f"v_pk_mul_f32 {vr(OO+i,2)}, {vr(OO+i,2)}, {vr(t0,2)} op_sel_hi:[1,0]")
    for i in range(4):
        a(f"v_cvt_pk_bf16_f32 v{P+i}, v{OO+2*i}, v{OO+2*i+1}")
    a(f"buffer_store_dwordx4 {vr(P,4)}, v{V_L16}, s[4:7], s22 offen{SC}")
    a("s_barrier")
    stamp(a, SB + 5)
    a(f"s_branch {endl}")
    a(f"{back}:")
    a("s_cmp_lg_u32 s31, 0")
    a(f"s_cbranch_scc1 {lp}")
    a("s_sub_u32 s39, s39, 1")
    a("s_cmp_eq_u32 s39, 0")
    a("s_cselect_b32 s33, 0, s33")
    a(f"s_branch {exitc}")
    a(f"{hook}:")
    a("s_cmp_eq_u32 s27, 0")
    a(f"s_cbranch_scc0 {hp}")
    a("s_barrier")
    a("s_mov_b32 s34, s33")
    a("s_mov_b32 s33, 0")
    a(f"s_add_u32 s23, s34, s{S_IT}")
    a("s_cmp_lg_u32 s23, 0")
    a(f"s_cbranch_scc1 {back}")
    a.c("residual tile of x for the first output projection")
    row_offset(a, V_TF, V_TF + 1)
    a(f"s_and_b32 s23, s{S_WAVE}, 1")
    a(f"s_add_u32 s23, s23, s{S_TT64}")
    a("s_lshl_b32 s23, s23, 15")
    a(f"s_lshl_b32 s24, s{S_NT64}, 1")
    a(f"s_lshr_b32 s25, s{S_WAVE}, 1")
    a("s_add_u32 s24, s24, s25")
    a("s_lshl_b32 s24, s24, 6")
    a("s_add_u32 s23, s23, s24")
    a(f"buffer_load_dwordx4 {vr(V_RES,4)}, v{V_TF}, s[8:11], s23 offen")
    a("s_add_u32 s24, s23, 16384")
    a(f"buffer_load_dwordx4 {vr(V_RES+4,4)}, v{V_TF}, s[8:11], s24 offen")
    a(f"s_branch {back}")
    a(f"{hp}:")
    hs = [a.label(f"hs{i}") for i in range(8)]
    for i in (1, 2, 3, 4, 5, 6):
        a(f"s_cmp_eq_u32 s33, {i}")
        a(f"s_cbranch_scc1 {hs[i]}")
    HS = -9
    def goto(step, gap):
        a(f"s_mov_b32 s33, {step}")
        a(f"s_max_u32 s34, s34, {gap}")
        a(f"s_sub_u32 s34, s34, {gap}")
        a(f"s_branch {back}")
    def next_step(i):
        goto(i + 1, env(f"ATT_G{i}", 3))
    a.c("fetch the last rounds of the down weights into free registers")
    a(f"s_mul_i32 s23, s{S_NT64}, {224*1024}")
    a("s_lshl_b32 s62, s26, 12")
    a("s_add_u32 s23, s23, s62")
    a(f"s_add_u32 s23, s23, {WS_WD + (14 - NPRE)*RB:#x}")
    assert VS + (14 - NPRE) * 16 >= V_TF
    for k in range(NPRE):
        for i in range(4):
            a(f"buffer_load_dwordx4 {vr(VS + (14-NPRE+k)*16 + 4*i, 4)}, v{V_L16}, s[4:7], s23 offen offset:{i*1024}{SC}")
        a(f"s_add_u32 s23, s23, {RB}")
    a("s_mov_b32 s33, 0")
    a("s_mov_b32 s34, 0")
    a(f"s_branch {back}")
    a(f"{hs[1]}:")
    nost = a.label("nostore")
    a("s_cmp_ge_u32 s2, 232")
    a(f"s_cbranch_scc1 {nost}")
    dests, strides = (96, 97, 100, 101), (80, 81, 82, 83)
    vO = vC + 8
    a(f"v_mov_b32 v{vO}, v{V_L16}")
    def plain(d1, delta, stride, cs):
        a("s_add_u32 s97, s96, 1024")
        a(f"s_add_u32 s100, s96, {d1}")
        a(f"s_add_u32 s101, s96, {d1 + 1024}")
        a(f"s_mov_b32 s93, {delta}")
        for e in strides:
            a(f"s_mov_b32 s{e}, {stride}")
        a(f"s_mov_b32 s63, {cs}")
    def dq():
        a("s_and_b32 s62, s91, 3")
        a(f"s_mul_i32 s96, s62, {4*WNT_Q}")
        a("s_lshr_b32 s62, s91, 2")
        a("s_lshr_b32 s78, s62, 1")
        a("s_lshl_b32 s62, s62, 11")
        a("s_add_u32 s96, s96, s62")
        assert WS_WQKV == 0
        plain(WNT_Q, 2 * WNT_Q, 6144, 1)
    def dg():
        a("s_lshl_b32 s55, s91, 2")
        for d, e in zip(dests, strides):
            a("s_mul_i32 s62, s55, 9363")
            a("s_lshr_b32 s62, s62, 16")
            a(f"s_mul_i32 s{d}, s62, {WNT_G}")
            a("s_mul_i32 s62, s62, 7")
            a("s_sub_u32 s62, s55, s62")
            pass_of(a, 62, 78, e)
            a(f"s_lshl_b32 s{e}, s{e}, 11")
            a("s_lshl4_add_u32 s62, s78, s62")
            a("s_lshl_b32 s62, s62, 11")
            a(f"s_add_u32 s{d}, s{d}, s62")
            a(f"s_add_u32 s{d}, s{d}, {WS_WGU:#x}")
            a("s_add_u32 s55, s55, 1")
        a("s_mov_b32 s93, 1024")
        a("s_mov_b32 s63, 1")
        a("s_mov_b32 s78, 1")
    def do():
        a("s_lshl_b32 s96, s91, 17")
        a(f"s_add_u32 s96, s96, {WS_WO:#x}")
        plain(2048, 64 * 1024, 4096, 0)
        a("s_mov_b32 s78, 0")
    def dd():
        a(f"s_mul_i32 s96, s91, {2*224*1024}")
        a(f"s_add_u32 s96, s96, {WS_WD:#x}")
        plain(2048, 224 * 1024, 0, 0)
        for d, inc in ((84, 0), (85, 1)):
            a("s_lshl_b32 s62, s92, 1")
            a(f"s_add_u32 s62, s62, {inc}")
            a("s_mul_i32 s54, s62, 9363")
            a("s_lshr_b32 s54, s54, 16")
            a("s_mul_i32 s55, s54, 7")
            a("s_sub_u32 s55, s62, s55")
            pass_of(a, 55, 78, 49)
            a("s_mul_i32 s54, s54, s49")
            a("s_mul_i32 s78, s78, 15")
            a("s_add_u32 s54, s54, s78")
            a("s_add_u32 s54, s54, s55")
            a("s_lshr_b32 s55, s54, 1")
            a("s_lshl_b32 s55, s55, 12")
            a("s_and_b32 s54, s54, 1")
            a("s_lshl_b32 s54, s54, 9")
            a(f"s_add_u32 s{d}, s54, s55")
        a("v_cmp_gt_u32 vcc, 32, v0")
        a(f"v_mov_b32 v{vC}, s84")
        a(f"v_mov_b32 v{vC+1}, s85")
        a(f"v_cndmask_b32 v{vC}, v{vC+1}, v{vC}, vcc")
        a(f"v_and_b32 v{vO}, 0x1ff, v{V_L16}")
        a(f"v_add_u32 v{vO}, v{vO}, v{vC}")
        a("s_mov_b32 s78, 0")
    by_type(dq, dg, do, dd)
    a("s_lshl_b32 s62, s26, 12")
    a(f"s_add_u32 s62, s62, {XB + 12288}")
    a(f"v_add_u32 v{vS}, s62, v{V_L16}")
    a(f"v_and_b32 v{vC}, 1, v0")
    a(f"v_bfe_u32 v{vC+1}, v0, 1, 1")
    a(f"v_lshl_add_u32 v{vC}, v{vC}, 1, v{vC+1}")
    a(f"v_and_b32 v{vC+1}, 3, v0")
    a(f"v_lshlrev_b32 v{vC+1}, 1, v{vC+1}")
    a("s_cmp_eq_u32 s78, 0")
    a("s_cselect_b64 vcc, -1, 0")
    a("s_cselect_b32 s55, 8, 32")
    a(f"v_lshrrev_b32 v{vR}, 4, v0")
    a(f"v_cndmask_b32 v{vC}, v{vC}, v{vC+1}, vcc")
    a(f"v_bfe_u32 v{vC+1}, v0, 2, 2")
    a(f"v_lshl_add_u32 v{vR}, v{vR}, 3, v{vC+1}")
    a(f"v_lshlrev_b32 v{vR}, 7, v{vR}")
    a(f"v_lshl_add_u32 v{vR}, v{vC}, 3, v{vR}")
    a(f"v_add_u32 v{vR}, s62, v{vR}")
    a(f"v_add_u32 v{vR+1}, s55, v{vR}")
    a("s_mov_b32 s49, 0x3f803f80")
    a("s_waitcnt vmcnt(0)")
    for h in range(2):
        dst = G_ if h == 0 else F
        for g8 in range(4):
            a(f"ds_write_b128 v{vS}, {vr(F+16*h+4*g8,4)} offset:{g8*1024}")
        for e in range(4):
            for jj in range(2):
                a(f"ds_read_b64_tr_b16 {vr(dst+4*e+2*jj,2)}, v{vR + (e&1)} offset:{(e>>1)*64 + jj*512}")
        a("s_waitcnt lgkmcnt(0)")
        for e in range(4):
            a(f"s_mul_i32 s62, s92, s{strides[e]}")
            a(f"s_add_u32 s62, s62, s{dests[e]}")
            if h:
                a("s_add_u32 s62, s62, s93")
            a(f"buffer_store_dwordx4 {vr(dst+4*e,4)}, v{vO}, s[4:7], s62 offen{SC}")
    a("s_cmp_eq_u32 s63, 0")
    a(f"s_cbranch_scc1 {nost}")
    for k in range(4):
        for h in range(2):
            for e in range(4):
                c, x = vC + 4 * h + e, (G_ if h == 0 else F) + 4 * e + k
                if k == 0:
                    a(f"v_dot2_f32_bf16 v{c}, v{x}, s49, 0")
                else:
                    a(f"v_dot2_f32_bf16 v{c}, v{x}, s49, v{c}")
    a("s_lshl_b32 s62, s26, 9")
    a(f"v_add_u32 v{vS}, s62, v{V_L4}")
    a(f"v_mov_b32 v{vR}, 1")
    a(f"v_mov_b32 v{vR+1}, {CNT}")
    for h in range(2):
        for e in range(2):
            a(f"v_permlane32_swap_b32 v{vC+4*h+e}, v{vC+4*h+e+2}")
    for h in range(2):
        for e in range(2):
            a(f"v_add_f32 v{vC+4*h+e}, v{vC+4*h+e}, v{vC+4*h+e+2}")
    a("s_nop 0")
    for h in range(2):
        a(f"v_permlane16_swap_b32 v{vC+4*h}, v{vC+4*h+1}")
    for h in range(2):
        a(f"v_add_f32 v{vC+4*h}, v{vC+4*h}, v{vC+4*h+1}")
    for h in range(2):
        a(f"ds_write_b32 v{vS}, v{vC+4*h} offset:{CSA + h*256}")
    a("s_mov_b64 exec, 1")
    a(f"ds_add_rtn_u32 v{vR+2}, v{vR+1}, v{vR}")
    a("s_mov_b64 exec, -1")
    a("s_waitcnt lgkmcnt(0)")
    a(f"v_readfirstlane_b32 s62, v{vR+2}")
    a("s_nop 0")
    a("s_cmp_lg_u32 s62, 3")
    a(f"s_cbranch_scc1 {nost}")
    a.c("last of the four waves: write the column-sum pieces")
    for w in range(4):
        for h in range(2):
            a(f"ds_read_b32 v{F+16+2*w+h}, v{V_L4} offset:{CSA + w*512 + h*256}")
    a(f"v_and_b32 v{vS}, 0xff, v{V_L16}")
    for e in range(4):
        a(f"s_lshl4_add_u32 s62, s{strides[e]}, s{dests[e]}")
        a(f"s_mov_b32 exec_lo, {(0xffff << (16*e)) & 0xffffffff if e < 2 else 0:#x}")
        a(f"s_mov_b32 exec_hi, {(0xffff << (16*(e-2))) if e >= 2 else 0:#x}")
        a(f"v_add_u32 v{vS}, s62, v{vS}")
    a("s_mov_b64 exec, -1")
    a("s_lshl_b32 s92, s79, 8")
    a("s_add_u32 s62, s92, s93")
    a("s_waitcnt lgkmcnt(0)")
    for h in range(2):
        c, o = F + 16 + h, F + 24 + 4 * h
        for w in range(1, 4):
            a(f"v_add_f32 v{c}, v{c}, v{c+2*w}")
        a(f"v_cvt_pk_bf16_f32 v{o}, v{c}, v{c}")
        a(f"v_lshlrev_b32 v{o}, 16, v{o}")
        a(f"v_sub_f32 v{o}, v{c}, v{o}")
        a(f"v_cvt_pk_bf16_f32 v{o}, v{c}, v{o}")
        a(f"v_mov_b32 v{o+1}, v{o}")
        a(f"v_mov_b32 v{o+2}, 0")
        a(f"v_mov_b32 v{o+3}, 0")
        a(f"buffer_store_dwordx4 {vr(o,4)}, v{vS}, s[4:7], s{(92, 62)[h]} offen{SC}")
    a(f"{nost}:")
    next_step(1)
    a(f"{hs[2]}:")
    if 2 - HS in (0, 1):
        stamp(a, 2 * (2 - HS))
    nsig = a.label("nosig")
    a(f"v_mov_b32 v{vR}, 1")
    a(f"v_mov_b32 v{vR+1}, {CNT + 4}")
    a("s_waitcnt vmcnt(0)")
    a("s_mov_b64 exec, 1")
    a(f"ds_add_rtn_u32 v{vR+2}, v{vR+1}, v{vR}")
    a("s_mov_b64 exec, -1")
    a("s_and_b32 s23, s2, 15")
    a("s_lshl_b32 s23, s23, 8")
    a(f"s_add_u32 s23, s23, {FL_W:#x}")
    a("s_mov_b32 s38, 1")
    a("s_waitcnt lgkmcnt(0)")
    a(f"v_readfirstlane_b32 s62, v{vR+2}")
    a("s_nop 0")
    a("s_cmp_lg_u32 s62, 3")
    a(f"s_cbranch_scc1 {nsig}")
    a("s_atomic_add s38, s[14:15], s23")
    a(f"{nsig}:")
    if env("WARM", 1):
        a.c("pull the rest of the code into L2 and touch every workspace page once")
        here = a.label("here")
        a("s_getpc_b64 s[98:99]")
        a(f"{here}:")
        a("s_lshl_b32 s62, s26, 13")
        a(f"v_add_u32 v{vC}, s62, v{V_L128}")
        a(f"v_min_u32 v{vC}, {code_end} - {here}, v{vC}")
        a(f"v_lshlrev_b32 v{vC+1}, 20, v0")
        a(f"global_load_dword v{V_PF}, v{vC}, s[98:99]")
        a(f"buffer_load_dword v{V_PF}, v{vC+1}, s[4:7], 0 offen sc1")
    next_step(2)
    a(f"{hs[3]}:")
    a.c("the re-tiled weights are complete once all 16 arrival counters are")
    a(f"s_cmp_lg_u32 s{S_WAVE}, 4")
    a(f"s_cbranch_scc1 {hs[5]}")
    ask = a.label("ask")
    a(f"{ask}:")
    a(f"v_and_b32 v{vS}, 15, v0")
    a(f"v_lshlrev_b32 v{vS}, 8, v{vS}")
    a(f"s_mov_b32 s23, {WS_FLAG + FL_W:#x}")
    a(f"buffer_load_dword v{vR}, v{vS}, s[4:7], s23 offen sc1")
    goto(4, 1)
    a(f"{hs[4]}:")
    a("s_waitcnt vmcnt(0)")
    a(f"v_cmp_gt_u32 vcc, 16, v{vR}")
    a(f"v_mov_b32 v{vS}, {CNT + 8}")
    a(f"s_cbranch_vccnz {ask}")
    a(f"ds_write_b32 v{vS}, v{vS}")
    a(f"s_branch {hs[6]}")
    a(f"{hs[5]}:")
    a(f"v_mov_b32 v{vS}, {CNT + 8}")
    a(f"ds_read_b32 v{vR}, v{vS}")
    a("s_waitcnt lgkmcnt(0)")
    a(f"v_cmp_eq_u32 vcc, 0, v{vR}")
    a("s_nop 0")
    a(f"s_cbranch_vccz {hs[6]}")
    goto(5, 1)
    a(f"{hs[6]}:")
    a("s_add_u32 s23, s50, 8192")
    a(f"buffer_load_dword v{V_PF}, v{V_L128}, s[4:7], s51 offen{SC}")
    a(f"buffer_load_dword v{V_PF}, v{V_L128}, s[4:7], s50 offen{SC}")
    a(f"buffer_load_dword v{V_PF}, v{V_L128}, s[4:7], s23 offen{SC}")
    goto(7, env("ATT_G6", 2))
    a(f"{fb}:")
    a(f"v_add_u32 v{vK}, {KB}, v{vKp}")
    a(f"v_mov_b32 v{t0}, 0xff800000")
    a("s_mov_b32 s31, 64")
    lp2 = a.label("maxl")
    a(f"{lp2}:")
    a(f"ds_read_b128 {vr(KF[0],4)}, v{vK}")
    a(f"v_add_u32 v{vK}, 1024, v{vK}")
    a("s_waitcnt lgkmcnt(0)")
    a(f"{MFMA} {vr(S[0],16)}, {vr(KF[0],4)}, {vr(Q[1],4)}, 0")
    a("s_nop 15")
    for i in range(0, 16, 2):
        a(f"v_max3_f32 v{t0}, v{t0}, v{S[0]+i}, v{S[0]+i+1}")
    a("s_sub_u32 s31, s31, 1")
    a("s_cmp_lg_u32 s31, 0")
    a(f"s_cbranch_scc1 {lp2}")
    a(f"v_mov_b32 v{t1}, v{t0}")
    a("s_nop 1")
    a(f"v_permlane32_swap_b32 v{t0}, v{t1}")
    a("s_nop 1")
    a(f"v_max_f32 v{t0}, v{t0}, v{t1}")
    for i in range(16):
        a(f"v_sub_f32 v{NM[0]+i}, 0, v{t0}")
        a(f"v_mov_b32 v{OO+i}, 0")
    a(f"v_add_u32 v{vK}, {KB}, v{vKp}")
    a(f"v_mov_b32 v{vV}, v{vV0}")
    a(f"v_lshrrev_b32 v{vInc}, {U.bit_length()-1}, v{vInc}")
    a("s_mov_b32 s31, 64")
    lp3 = a.label("pass2")
    a(f"{lp3}:")
    a(f"ds_read_b128 {vr(KF[0],4)}, v{vK}")
    a(f"ds_read_b128 {vr(VF[0],4)}, v{vV}")
    a(f"ds_read_b128 {vr(VF[0]+4,4)}, v{vV} offset:512")
    a(f"v_add_u32 v{vK}, 1024, v{vK}")
    a(f"v_add_u32 v{vV}, v{vInc}, v{vV}")
    a("s_waitcnt lgkmcnt(0)")
    a(f"{MFMA} {vr(S[0],16)}, {vr(KF[0],4)}, {vr(Q[1],4)}, {vr(NM[0],16)}")
    a("s_nop 15")
    for i in range(16):
        a(f"v_exp_f32 v{S[0]+i}, v{S[0]+i}")
    a("s_nop 2")
    a(f"{SMF} {vr(OO,16)}, {vr(VF[0],4)}, {vr(S[0],8)}, v{vIx}")
    a(f"{SMF} {vr(OO,16)}, {vr(VF[0]+4,4)}, {vr(S[0]+8,8)}, v{vIx}")
    a("s_sub_u32 s31, s31, 1")
    a("s_cmp_lg_u32 s31, 0")
    a("s_nop 7")
    a(f"s_cbranch_scc1 {lp3}")
    a("s_nop 15")
    a(f"v_rcp_f32 v{t0}, v{OO+8}")
    a("s_nop 0")
    a(f"s_branch {fin}")
    a(f"{endl}:")
    return R.n


def gen_main(a):
    name = NAME + "_kernel"
    kernel_header(a, name)
    done = a.label("done")
    a("s_cmp_ge_u32 s2, 256")
    a(f"s_cbranch_scc1 {done}")
    if env("FIXT", 0):
        a("s_memrealtime s[56:57]")
    a(f"s_load_dwordx4 s[64:67], s[0:1], {KA_X}")
    a.c("pull the first 8 KB of code into L2 (one 128-byte line per 8 lanes of the workgroup)")
    a("s_getpc_b64 s[98:99]")
    a(f"v_lshlrev_b32 v{V_FREE}, 4, v0")
    a(f"global_load_dword v{V_PF}, v{V_FREE}, s[98:99]")
    a(f"s_and_b32 s{S_XCD}, s2, 7")
    a("s_bfe_u32 s19, s2, 0x20003")
    a(f"s_lshl2_add_u32 s19, s{S_XCD}, s19")
    a("v_lshrrev_b32 v1, 6, v0")
    a("v_and_b32 v0, 63, v0")
    a(f"v_lshlrev_b32 v{V_L16}, 4, v0")
    a(f"v_lshl_add_u32 v{V_FREE}, s19, 3, v1")
    a(f"v_lshl_add_u32 v{V_FREE}, v{V_FREE}, 13, v{V_L16}")
    a("s_waitcnt lgkmcnt(0)")
    a("s_add_u32 s20, s64, 4096")
    a("s_addc_u32 s21, s65, 0")
    for r in range(8):
        a(f"global_load_dwordx4 {vr(V_FREE+4+4*r,4)}, v{V_FREE}, s[20:21] offset:{r*1024-4096}")
    a(f"s_load_dwordx2 s[68:69], s[0:1], {KA_WO}")
    a(f"s_load_dwordx4 s[72:75], s[0:1], {KA_WG}")
    a(f"s_load_dwordx2 s[76:77], s[0:1], {KA_WD}")
    a(f"s_load_dwordx2 s[70:71], s[0:1], {KA_OUT}")
    a(f"s_load_dwordx2 s[94:95], s[0:1], {KA_DBG}")
    a(f"s_load_dwordx2 s[12:13], s[0:1], {KA_WS}")
    a(f"v_readfirstlane_b32 s{S_WAVE}, v1")
    a(f"v_lshlrev_b32 v{V_L128}, 7, v0")
    a(f"s_lshr_b32 s{S_IDX}, s2, 3")
    srd(a, 20, 66, 67, 512 * 1536 * 2)
    if env("TOUCH", 1):
        a.c("cooperative first touch of wqkv: 6 KB per wave")
        a(f"s_lshl3_add_u32 s27, s{S_IDX}, s{S_WAVE}")
        a("s_mul_i32 s27, s27, 6144")
        a("s_mov_b32 exec_hi, 0xffff")
        a(f"buffer_load_dword v{V_PF}, v{V_L128}, s[20:23], s27 offen")
        a("s_mov_b64 exec, -1")
    a(f"s_and_b32 s{S_TT128}, s{S_IDX}, 3")
    a(f"s_lshr_b32 s19, s{S_XCD}, 1")
    a("s_lshl_b32 s19, s19, 2")
    a(f"s_add_u32 s{S_TT128}, s{S_TT128}, s19")
    a(f"s_lshl_b32 s{S_TT128}, s{S_TT128}, 2")
    a(f"s_lshr_b32 s{S_NT128}, s{S_IDX}, 2")
    a(f"s_and_b32 s19, s{S_XCD}, 1")
    a("s_lshl_b32 s19, s19, 3")
    a(f"s_add_u32 s{S_NT128}, s{S_NT128}, s19")
    a(f"s_and_b32 s{S_TT64}, s{S_IDX}, 3")
    a(f"s_lshl_b32 s19, s{S_XCD}, 2")
    a(f"s_add_u32 s{S_TT64}, s{S_TT64}, s19")
    a(f"s_lshl_b32 s{S_TT64}, s{S_TT64}, 1")
    a(f"s_lshr_b32 s{S_NT64}, s{S_IDX}, 2")
    a(f"s_mov_b32 s{S_IT}, 0")
    a(f"s_mov_b32 s{S_BASE}, {WS_IT0:#x}")
    a(f"s_mov_b32 s{S_FL}, 0")
    a(f"s_mov_b32 s{S_SIG}, 0")
    a(f"v_and_b32 v{V_ST}, 15, v0")
    a(f"v_lshlrev_b32 v{V_ST}, 4, v{V_ST}")
    a(f"v_lshrrev_b32 v1, 4, v0")
    a(f"v_lshl_add_u32 v{V_ST}, v1, 2, v{V_ST}")
    a(f"v_lshlrev_b32 v{V_L4}, 2, v0")
    if STAMP:
        a(f"v_mov_b32 v{V_STAMP}, 0")
        a(f"v_mov_b32 v{V_STAMP+1}, 0")
    stamp(a, 31)
    att, fin = a.label("att"), a.label("fin")
    nv = [first_phase(a, att, done)]
    a(f"{att}:")
    if env("FIXT", 0) == 2:
        l_ = a.label("hold")
        a(f"{l_}:")
        a("s_memrealtime s[58:59]")
        a("s_waitcnt lgkmcnt(0)")
        a("s_sub_u32 s58, s58, s56")
        a("s_cmp_lt_u32 s58, 2000")
        a(f"s_cbranch_scc1 {l_}")
    nv.append(attn_phase(a, 5, done))
    if env("FIXT", 0) == 3:
        l_ = a.label("hold")
        a(f"{l_}:")
        a("s_memrealtime s[58:59]")
        a("s_waitcnt lgkmcnt(0)")
        a("s_sub_u32 s58, s58, s56")
        a("s_cmp_lt_u32 s58, 4000")
        a(f"s_cbranch_scc1 {l_}")

    S = Stream(a)
    if GMX == 4:
        a(f"s_mov_b32 s{S_TTG}, s{S_TT128}")
        a(f"s_mov_b32 s{S_NTG}, s{S_NT128}")
    else:
        a(f"s_and_b32 s{S_TTG}, s{S_IDX}, 1")
        a(f"s_lshl_b32 s19, s{S_XCD}, 1")
        a(f"s_add_u32 s{S_TTG}, s{S_TTG}, s19")
        a(f"s_lshl_b32 s{S_TTG}, s{S_TTG}, 2")
        a(f"s_lshr_b32 s{S_NTG}, s{S_IDX}, 1")
    nv.append(gemm_phase(a, Cfg(name="oproj", kind="res", LB=5 * RB, stream=S, PRE1=4, PRE3=1, RA=16, N1=2, BS=0, I0=8, LP=1,
                                STS=0, ABUF=B_O, WBASE=WS_WO, WNT=64 * 1024, OUT=B_X1, STOUT=B_ST1,
                                FIN=FL_A, lsig=True, NEED=32, FOUT=FL_O, final=False, sb=12)))
    nv.append(mlp_phase(a, Cfg(name="down", stream=S, OUT=B_XIN + IT_STRIDE, STOUT=B_STIN + IT_STRIDE, final=True, sb=22)))
    a(f"s_cmp_eq_u32 s{S_IT}, 1")
    a(f"s_cbranch_scc1 {fin}")
    a(f"s_mov_b32 s{S_IT}, 1")
    a(f"s_add_u32 s{S_BASE}, s{S_BASE}, {IT_STRIDE:#x}")
    a(f"s_add_u32 s{S_FL}, s{S_FL}, {FL_IT:#x}")
    nv.append(gemm_phase(a, Cfg(name="qkv", kind="qkv", LB=0, stream=None, RA=24, N1=2, BS=24, I0=12, LP=3, STS=30,
                                ABUF=B_XIN, WBASE=WS_WQKV, WNT=WNT_Q, STIN=B_STIN,
                                FIN=FL_D - FL_IT + (1 << 32), lsig=False, NEED=16, FOUT=FL_Q, sb=0)))
    a(f"s_branch {att}")
    a(f"{fin}:")
    if env("FIXT", 0) == 1:
        l_ = a.label("hold")
        a(f"{l_}:")
        a("s_memrealtime s[58:59]")
        a("s_waitcnt lgkmcnt(0)")
        a("s_sub_u32 s58, s58, s56")
        a("s_cmp_lt_u32 s58, 10000")
        a(f"s_cbranch_scc1 {l_}")
    if STAMP:
        a("s_waitcnt vmcnt(0)")
        a(f"s_mov_b32 s{S_IT}, 1")
        stamp(a, 31)
        stamp_flush(a)
        if env("DBGOUT", 0):
            nd = a.label("nodbg")
            a("s_lshl_b32 s54, s2, 3")
            a(f"s_add_u32 s54, s54, s{S_WAVE}")
            a(f"s_cmp_lg_u32 s54, {env('DBGOUT', 0)}")
            a(f"s_cbranch_scc1 {nd}")
            idx = [31, 8, 10, 13, 14, 18, 24, 33, 34, 40, 42, 45, 46, 50, 56, 63]
            a(f"v_readlane_b32 s55, v{V_STAMP}, 31")
            for i, k in enumerate(idx):
                a(f"v_readlane_b32 s54, v{V_STAMP}, {k}")
                a("s_nop 3")
                a("s_sub_u32 s54, s54, s55")
                a(f"v_writelane_b32 v{V_FREE}, s54, {i}")
            a("s_mov_b64 exec, 0xfffe")
            a(f"global_store_dword v{V_L4}, v{V_FREE}, s[94:95]")
            a(f"{nd}:")
    a(f"{done}:")
    a("s_endpgm")
    print("phase vgprs", nv, file=sys.stderr)
    nv.append(V_TF + 62)
    assert max(nv) <= 256
    return (name, max(nv), 256, 512, LDS_MAX)


HEADER = open("cdna_kernels/" + NAME + ".s.ref").read().split("; Override launch")[0]

def main(out):
    a = Asm()
    k, v, nwg, blk, lds = gen_main(a)
    txt = HEADER
    if env("ASLIST", 0):
        txt += f"; @launch kernel={k} grid=({nwg},1,1) block=({blk},1,1) lds={lds}\n"
    else:
        txt += f"; @launch grid=({nwg},1,1) block=({blk},1,1) lds={lds}\n"
    txt += '.amdgcn_target "amdgcn-amd-amdhsa--gfx950"\n.text\n'
    txt += a.text()
    txt += '.section .rodata,"a"\n'
    txt += kernel_desc(k, v, 102)
    print(f"{k}: vgpr={v} lds={lds}", file=sys.stderr)
    open(out, "w").write(txt)

if __name__ == "__main__":
    main(sys.argv[1] if len(sys.argv) > 1 else "v2.s")
```

```python
import sys, struct, math, os
from asmlib import *

NAME = "interleave_layers__mha_block__glu_gated_bilinear__prompt"
def env(k, d):
    return int(os.environ.get(k, d))

WS_WQKV = 0x000000
WS_WO   = 0x200000
WS_WGU  = 0x300000
WS_WD   = 0x700000
WS_FLAG = 0x8C0000
FL_IT = 0xC000
FL_Q, FL_W, FL_G, FL_T = 0x0, 0x1000, 0x4000, 0x8000
FL_A, FL_O, FL_D = FL_T, FL_T + 4, FL_T + 8
WS_IT0 = 0xA00000
IT_STRIDE = 0x1400000
B_Q, B_K, B_V, B_O, B_X1, B_XIN, B_H, B_ST1, B_STIN = (
    0x0, 0x200000, 0x400000, 0x600000, 0x800000, 0xA00000, 0xC00000, 0x1300000, 0x1340000)
WS_END = WS_IT0 + 2 * IT_STRIDE
WS_STAMP = WS_END
LDS_MAX = 160 * 1024

KA_X, KA_WQKV, KA_WO, KA_BX, KA_WG, KA_WU, KA_WD, KA_OUT, KA_DBG, KA_WS = [8 * i for i in range(10)]

def f32bits(x):
    return struct.unpack("<I", struct.pack("<f", x))[0]

QSCALE = 0.25 * math.log2(math.e)
MFMA = "v_mfma_f32_32x32x16_bf16"
SMF = "v_smfmac_f32_32x32x32_bf16"
M16 = "v_mfma_f32_16x16x32_bf16"
WNT_Q, WNT_G = 102 * 1024, 238 * 1024
STAMP = os.environ.get("STAMP", "") != ""
SC = " sc1"
SPIN_MAX = 1 << 18
PASSES = [int(x) for x in os.environ.get("PASSES", "4,2,1").split(",")]
PFIRST = [sum(PASSES[:p]) for p in range(len(PASSES))]
assert sum(PASSES) == 7

def pass_of(a, si, sf, sw):
    a(f"s_mov_b32 s{sf}, 0")
    a(f"s_mov_b32 s{sw}, {PASSES[0]}")
    for p in range(1, len(PASSES)):
        a(f"s_cmp_ge_u32 s{si}, {PFIRST[p]}")
        a(f"s_cselect_b32 s{sf}, {PFIRST[p]}, s{sf}")
        a(f"s_cselect_b32 s{sw}, {PASSES[p]}, s{sw}")
GMX = env('GMX', 4)
PT = env('PT', 0)

def srd(a, d, lo, hi, nbytes):
    a(f"s_mov_b32 s{d}, s{lo}")
    a(f"s_and_b32 s{d+1}, s{hi}, 0xffff")
    a(f"s_mov_b32 s{d+2}, {nbytes:#x}")
    a(f"s_mov_b32 s{d+3}, 0x20000")

S_WAVE, S_XCD, S_IDX, S_IT, S_BASE, S_FL = 16, 17, 18, 40, 41, 42
S_TT64, S_NT64, S_TT128, S_NT128 = 43, 44, 45, 46
S_TTG, S_NTG, S_TCH = 68, 69, 47
S_ARR, S_SIG = 47, 48
LDS_CNT = LDS_MAX - 16
V_L16, V_ST, V_L4 = 2, 3, 1
V_RES = 4
V_STAMP = 12
V_P16 = 15
V_PF, V_L128 = 14, 15
V_FREE = 16

def stamp(a, i):
    if STAMP:
        a("s_memrealtime s[56:57]")
        a("s_memtime s[58:59]")
        a(f"s_lshl_b32 s60, s{S_IT}, 5")
        a(f"s_add_u32 s60, s60, {i}")
        a("s_waitcnt lgkmcnt(0)")
        a("s_mov_b32 s61, m0")
        a("s_mov_b32 m0, s60")
        a("s_nop 0")
        a(f"v_writelane_b32 v{V_STAMP}, s56, m0")
        a(f"v_writelane_b32 v{V_STAMP+1}, s58, m0")
        a("s_mov_b32 m0, s61")

def stamp_flush(a, which=0):
    if STAMP:
        a("s_lshl_b32 s60, s2, 3")
        a(f"s_add_u32 s60, s60, s{S_WAVE}")
        a("s_lshl_b32 s60, s60, 9")
        a(f"s_add_u32 s60, s60, {WS_STAMP + which*0x100000:#x}")
        a(f"s_mov_b32 s6, {WS_STAMP + 0x200000:#x}")
        a(f"buffer_store_dword v{V_STAMP}, v{V_L4}, s[4:7], s60 offen")
        a(f"buffer_store_dword v{V_STAMP+1}, v{V_L4}, s[4:7], s60 offen offset:256")

def handoff(a, soff, need):
    a("s_mov_b32 s38, 1")
    a(f"s_atomic_add s38, s[14:15], s{S_SIG}")
    if env("PD", 0):
        a("s_waitcnt lgkmcnt(0)")
    poll(a, soff, need)

def poll(a, soff, need):
    lp, ok = a.label("poll"), a.label("pok")
    a(f"s_mov_b32 s39, {SPIN_MAX}")
    a(f"{lp}:")
    a("s_mov_b32 s49, 0")
    a(f"s_atomic_add s49, s[14:15], s{soff} glc")
    a("s_sub_u32 s39, s39, 1")
    a("s_waitcnt lgkmcnt(0)")
    a(f"s_cmp_ge_u32 s49, {need}")
    a(f"s_cbranch_scc1 {ok}")
    if env("POLL_SLEEP", 1):
        a(f"s_sleep {env('POLL_SLEEP', 1)}")
    a("s_cmp_lg_u32 s39, 0")
    a(f"s_cbranch_scc1 {lp}")
    a(f"{ok}:")


V_TF = 176

def first_phase(a, end_label, code_end):
    XB_ = 528
    XT = 64 * XB_
    W0 = 2 * XT
    NSW, WCH, NC = 7, 12288, 16
    assert W0 + NSW * WCH <= LDS_MAX
    FS = 27
    NPS = env("K1_NPS", 2)
    R = Regs(V_FREE)
    vD, vT0, vT1, vXW = R.alloc(), R.alloc(), R.alloc(), R.alloc()
    X = R.alloc(32)
    ST = R.alloc(16)
    U = R.alloc(16)
    vD2, vZ = R.alloc(), R.alloc()
    assert X == V_FREE + 4
    a(f"v_lshrrev_b32 v{vT0}, 3, v0")
    a(f"v_bfe_u32 v{vT1}, v0, 4, 1")
    a(f"v_lshlrev_b32 v{vT1}, 2, v{vT1}")
    a(f"v_and_b32 v{vD2}, 7, v0")
    a(f"v_xor_b32 v{vD2}, v{vD2}, v{vT1}")
    a(f"v_lshlrev_b32 v{vD2}, 4, v{vD2}")
    a(f"v_mul_u32_u24 v{vD}, 3072, v{vT0}")
    a(f"v_add_u32 v{vD}, v{vD}, v{vD2}")
    a(f"s_and_b32 s50, s{S_WAVE}, 3")
    a("s_waitcnt lgkmcnt(0)")
    srd(a, 8, 64, 65, 2048 * 512 * 2)
    srd(a, 4, 12, 13, WS_END)
    a.c("wave 7 of the first workgroups resets 64 hand-off counters each")
    NZ = 2 * FL_IT // 16384
    nz = a.label("nozero")
    a(f"s_sub_u32 s47, 7, s{S_WAVE}")
    a("s_lshl_b32 s47, s47, 8")
    a("s_add_u32 s47, s47, s2")
    a(f"s_cmp_ge_u32 s47, {NZ}")
    a(f"s_cbranch_scc1 {nz}")
    a(f"v_lshlrev_b32 v{ST}, 8, v0")
    for i in range(4):
        a(f"v_mov_b32 v{ST+4+i}, 0")
    a("s_lshl_b32 s54, s2, 14")
    a(f"s_add_u32 s54, s54, {WS_FLAG:#x}")
    a(f"buffer_store_dwordx4 {vr(ST+4,4)}, v{ST}, s[4:7], s54 offen sc1")
    a(f"{nz}:")
    TOUCH = env("TOUCH", 1)
    a(f"s_add_u32 s14, s12, {WS_FLAG:#x}")
    a("s_addc_u32 s15, s13, 0")
    a("s_mov_b32 s49, 0x3f803f80")
    a(f"s_lshr_b32 s55, s{S_WAVE}, 2")
    a(f"s_mul_i32 s39, s55, {XT}")
    a("s_lshl_b32 s54, s50, 7")
    a("s_add_u32 s39, s39, s54")
    a(f"v_mul_u32_u24 v{vXW}, {XB_}, v0")
    a(f"v_add_u32 v{vXW}, s39, v{vXW}")
    a(f"s_mul_i32 s62, s50, {8*3072}")
    a(f"s_lshl_b32 s54, s{S_NT64}, 7")
    a("s_add_u32 s62, s62, s54")
    a(f"s_mul_i32 s54, s55, {NPS*32*3072}")
    a("s_add_u32 s62, s62, s54")
    a("s_lshl_b32 s63, s50, 10")
    a(f"s_add_u32 s63, s63, {W0}")
    a(f"s_mul_i32 s54, s55, {NPS*WCH}")
    a("s_add_u32 s48, s63, s54")
    def w_instr(slot, seg, base=63):
        t = f"s_add_u32 s54, s{base}, {slot*WCH + seg*3072}\ns_mov_b32 m0, s54\ns_nop 0\n"
        t += f"buffer_load_dwordx4 v{vD}, s[20:23], s62 offen offset:{seg*1024} lds"
        if seg == 2:
            t += f"\ns_add_u32 s62, s62, {32*3072}"
        return t
    dma = [w_instr(c, sg, 48) for c in range(NPS) for sg in range(3)]
    ops = []
    pre = len(ops)
    for r in range(8):
        ops.append(("wait", r))
        for i in range(4):
            ops.append(f"v_dot2_f32_bf16 v{ST+r}, v{X+4*r+i}, s49, {'0' if i == 0 else 'v' + str(ST+r)}")
            ops.append(f"v_dot2_f32_bf16 v{ST+8+r}, v{X+4*r+i}, v{X+4*r+i}, {'0' if i == 0 else 'v' + str(ST+8+r)}")
    ops.append("s_nop 2")
    for b in (ST, ST + 8):
        for r in range(4):
            ops.append(f"v_permlane32_swap_b32 v{b+r}, v{b+r+4}")
    for b in (ST, ST + 8):
        for r in range(4):
            ops.append(f"v_add_f32 v{b+r}, v{b+r}, v{b+r+4}")
    ops.append("s_nop 1")
    for b in (ST, ST + 8):
        for r in range(2):
            ops.append(f"v_permlane16_swap_b32 v{b+r}, v{b+r+2}")
    for b in (ST, ST + 8):
        for r in range(2):
            ops.append(f"v_add_f32 v{b+r}, v{b+r}, v{b+r+2}")
    for d in ("row_ror:8", "row_ror:4", "quad_perm:[2,3,0,1]", "quad_perm:[1,0,3,2]"):
        for v in (ST, ST + 1, ST + 8, ST + 9):
            ops.append(f"v_add_f32_dpp v{v}, v{v}, v{v} {d} row_mask:0xf bank_mask:0xf")
    for r in range(2):
        ops.append(f"v_mul_f32 v{ST+r}, {f32bits(-1.0/512):#x}, v{ST+r}")
        ops.append(f"v_mul_f32 v{ST+8+r}, {f32bits(1.0/512):#x}, v{ST+8+r}")
    for r in range(2):
        ops.append(f"v_fma_f32 v{ST+8+r}, -v{ST+r}, v{ST+r}, v{ST+8+r}")
    for r in range(2):
        ops.append(f"v_max_f32 v{ST+8+r}, 0, v{ST+8+r}")
    for r in range(2):
        ops.append(f"v_add_f32 v{ST+8+r}, {f32bits(1e-5):#x}, v{ST+8+r}")
    for r in range(2):
        ops.append(f"v_rsq_f32 v{ST+8+r}, v{ST+8+r}")
    ops.append("s_nop 0")
    for r in range(2):
        ops.append(f"v_mul_f32 v{ST+r}, v{ST+r}, v{ST+8+r}")
    ops.append("s_nop 0")
    for r in range(8):
        ops.append(f"v_readlane_b32 s{78+2*r}, v{ST+8+(r&1)}, {16*(r>>1)}")
        ops.append(f"v_readlane_b32 s{79+2*r}, v{ST+(r&1)}, {16*(r>>1)}")
    for r in range(8):
        u = U + 8 * (r & 1)
        for i in range(4):
            ops.append(f"v_lshlrev_b32 v{u+2*i}, 16, v{X+4*r+i}")
            ops.append(f"v_and_b32 v{u+2*i+1}, 0xffff0000, v{X+4*r+i}")
        for i in range(4):
            ops.append(f"v_pk_fma_f32 {vr(u+2*i,2)}, {vr(u+2*i,2)}, s[{78+2*r}:{79+2*r}], s[{78+2*r}:{79+2*r}] op_sel:[0,0,1] op_sel_hi:[1,0,1]")
        for i in range(4):
            ops.append(f"v_cvt_pk_bf16_f32 v{X+4*r+i}, v{u+2*i}, v{u+2*i+1}")
        ops.append(f"ds_write_b128 v{vXW}, {vr(X+4*r,4)} offset:{r*16}")
    npre = env("K1_PRE", 2)
    issued = TOUCH
    for _ in range(npre):
        a(dma.pop(0)); issued += 1
    step_ = env("K1_STEP", 24)
    k = 0
    for j, op in enumerate(ops):
        if isinstance(op, tuple):
            a(f"s_waitcnt vmcnt({7 - op[1] + issued})")
        else:
            a(op)
        if j >= pre + env("K1_SKIP", 40) and dma:
            k += 1
            if k % step_ == 0:
                a(dma.pop(0)); issued += 1
    assert not dma
    comp = a.label("k1_comp")
    a(f"s_cmp_lt_u32 s{S_WAVE}, 4")
    a(f"s_cbranch_scc1 {comp}")
    DW = env("K1_DW", 5)
    assert 2 * NPS <= DW <= NSW - 2
    for c in range(2 * NPS, DW):
        for sg in range(3):
            a(w_instr(c, sg))
    lp = a.label("k1ld")
    a(f"s_add_u32 s48, s63, {DW*WCH}")
    a(f"s_add_u32 s39, s63, {NSW*WCH}")
    a(f"v_mov_b32 v{vT1}, 0")
    stamp(a, FS)
    a("s_waitcnt lgkmcnt(0)")
    nz = a.label("noflag")
    a(f"s_cmp_ge_u32 s47, {NZ}")
    a(f"s_cbranch_scc1 {nz}")
    a(f"s_waitcnt vmcnt({(DW - NPS)*3})")
    a("s_mov_b32 s38, 1")
    a("s_atomic_add s38, s[94:95], 0x0")
    a(f"{nz}:")
    a(f"s_mov_b32 s47, {NC-DW}")
    a(f"{lp}:")
    a(f"s_waitcnt vmcnt({(DW-1)*3})")
    a("s_barrier")
    for sg in range(3):
        a(w_instr(0, sg, 48))
    a(f"s_add_u32 s48, s48, {WCH}")
    a("s_cmp_eq_u32 s48, s39")
    a("s_cselect_b32 s48, s63, s48")
    a("s_sub_u32 s47, s47, 1")
    a("s_cmp_lg_u32 s47, 0")
    a(f"s_cbranch_scc1 {lp}")
    a(f"global_load_dword v{vZ}, v{vT1}, s[94:95] sc1")
    for c in range(NC - DW, NC):
        a(f"s_waitcnt vmcnt({(NC - 1 - c)*3 + 1})")
        a("s_barrier")
    stamp(a, FS + 2)
    a.c("the counters must have been reset before this workgroup touches them")
    lp, ok = a.label("zpoll"), a.label("zok")
    a(f"s_mov_b32 s39, {SPIN_MAX}")
    a("s_waitcnt vmcnt(0)")
    a(f"{lp}:")
    a(f"v_cmp_gt_u32 vcc, {NZ}, v{vZ}")
    a("s_sub_u32 s39, s39, 1")
    a("s_cmp_eq_u32 s39, 0")
    a(f"s_cbranch_scc1 {ok}")
    a(f"s_cbranch_vccz {ok}")
    a(f"global_load_dword v{vZ}, v{vT1}, s[94:95] sc1")
    a("s_waitcnt vmcnt(0)")
    a(f"s_branch {lp}")
    a(f"{ok}:")
    a("s_barrier")
    a(f"s_branch {end_label}")
    a(f"{comp}:")
    R2 = Regs(V_FREE + 4)
    vA, vW0, vW = R2.alloc(), R2.alloc(), R2.alloc()
    acc = [R2.alloc(16) for _ in range(3)]
    sets = [(R2.alloc(4), [R2.alloc(4) for _ in range(3)]) for _ in range(2)]
    a("s_waitcnt lgkmcnt(0)")
    a(f"s_and_b32 s24, s{S_WAVE}, 1")
    a(f"s_lshr_b32 s25, s{S_WAVE}, 1")
    a(f"s_mul_i32 s26, s24, {XT}")
    a(f"v_lshrrev_b32 v{vT0}, 5, v0")
    a(f"v_mul_u32_u24 v{vA}, {XB_}, v{vT0}")
    a(f"v_and_b32 v{vT1}, 31, v0")
    a(f"v_lshl_add_u32 v{vA}, v{vT1}, 4, v{vA}")
    a(f"v_add_u32 v{vA}, s26, v{vA}")
    a(f"v_bfe_u32 v{vT1}, v0, 2, 2")
    a(f"v_lshl_add_u32 v{vW0}, v{vT0}, 3, v{vT1}")
    a(f"v_lshlrev_b32 v{vW0}, 7, v{vW0}")
    a(f"v_and_b32 v{vT0}, 1, v0")
    a(f"v_bfe_u32 v{vT1}, v0, 1, 1")
    a(f"v_lshl_add_u32 v{vT0}, v{vT0}, 1, v{vT1}")
    a(f"v_lshl_add_u32 v{vW0}, v{vT0}, 3, v{vW0}")
    a(f"v_bfe_u32 v{vT0}, v0, 4, 1")
    a(f"v_lshl_add_u32 v{vW0}, v{vT0}, 5, v{vW0}")
    a(f"v_bfe_u32 v{vT0}, v0, 3, 1")
    a(f"v_xor_b32 v{vT0}, s25, v{vT0}")
    a(f"v_lshl_add_u32 v{vW0}, v{vT0}, 6, v{vW0}")
    a(f"v_add_u32 v{vW0}, {W0}, v{vW0}")
    a(f"v_mov_b32 v{vW}, v{vW0}")
    for t in range(3):
        for i in range(16):
            a(f"v_mov_b32 v{acc[t]+i}, 0")
    a("s_mov_b32 s37, 0")

    def read_list(ks, par):
        xa, wfs = sets[par]
        out = [f"ds_read_b128 {vr(xa,4)}, v{vA} offset:{ks*2*XB_}"]
        for t in range(3):
            for jj in range(2):
                out.append(f"ds_read_b64_tr_b16 {vr(wfs[t]+2*jj,2)}, v{vW} offset:{t*4096 + ks*2048 + jj*512}")
        return out

    def step(par, nxt, boundary, adv=False):
        xa, wfs = sets[par]
        issued = 0
        plan = [3, 5, 7]
        if boundary:
            a("s_barrier")
        for t in range(3):
            while issued < min(plan[t], len(nxt)):
                a(nxt[issued]); issued += 1
            a(f"s_waitcnt lgkmcnt({issued + 7 - (3 + 2*t)})")
            if t == 2:
                a(f"{MFMA} {vr(acc[t],16)}, {vr(xa,4)}, {vr(wfs[t],4)}, {vr(acc[t],16)}")
            else:
                a(f"{MFMA} {vr(acc[t],16)}, {vr(wfs[t],4)}, {vr(xa,4)}, {vr(acc[t],16)}")
        if adv:
            a(f"s_add_u32 s37, s37, {WCH}")
            a(f"s_cmp_eq_u32 s37, {NSW*WCH}")
            a("s_cselect_b32 s37, 0, s37")
            a(f"v_add_u32 v{vW}, s37, v{vW0}")
            a(f"v_add_u32 v{vA}, {4*XB_}, v{vA}")

    a("s_waitcnt vmcnt(0)")
    stamp(a, FS)
    a("s_barrier")
    stamp(a, FS + 1)
    for r in read_list(0, 0):
        a(r)
    lp = a.label("k1loop")
    a(f"s_mov_b32 s35, {NC-1}")
    a(f"{lp}:")
    step(0, read_list(1, 1), False, True)
    step(1, read_list(0, 0), True)
    a("s_sub_u32 s35, s35, 1")
    a("s_cmp_lg_u32 s35, 0")
    a(f"s_cbranch_scc1 {lp}")
    step(0, read_list(1, 1), False)
    step(1, [], False)
    stamp(a, FS + 2)
    ot = sets[0][0]
    a(f"s_lshl_b32 s26, s{S_NT64}, 1")
    a("s_add_u32 s26, s26, s25")
    a("s_lshl_b32 s26, s26, 17")
    a(f"s_add_u32 s27, s{S_TT64}, s24")
    a("s_lshl_b32 s27, s27, 10")
    a("s_add_u32 s26, s26, s27")
    a(f"v_bfe_u32 v{vT0}, v0, 4, 1")
    a(f"v_lshlrev_b32 v{vT0}, 16, v{vT0}")
    a(f"v_lshrrev_b32 v{vT1}, 5, v0")
    a(f"v_lshl_add_u32 v{vT0}, v{vT1}, 8, v{vT0}")
    a(f"v_and_b32 v{vT1}, 15, v0")
    a(f"v_lshl_add_u32 v{vT0}, v{vT1}, 4, v{vT0}")
    a(f"s_mov_b32 s28, {f32bits(QSCALE):#x}")
    a("s_mov_b32 s29, s28")
    K1SC = SC
    a(f"v_lshrrev_b32 v{V_P16}, 4, v0")
    a(f"v_lshlrev_b32 v{V_P16}, 9, v{V_P16}")
    a(f"v_lshl_add_u32 v{V_P16}, v{vT1}, 4, v{V_P16}")
    a(f"s_lshl_b32 s{S_SIG}, s{S_NT64}, 9")
    a(f"s_add_u32 s{S_SIG}, s{S_SIG}, {FL_Q:#x}")
    for t, base in ((0, B_Q), (1, B_K), (2, B_V)):
        for hh in range(2):
            o = ot + 4 * (2 * t + hh)
            for i in range(4):
                r = acc[t] + 8 * hh + 2 * i
                if t == 0:
                    a(f"v_pk_mul_f32 {vr(r,2)}, {vr(r,2)}, s[28:29]")
                a(f"v_cvt_pk_bf16_f32 v{o+i}, v{r}, v{r+1}")
            if t < 2:
                a(f"s_add_u32 s27, s26, {WS_IT0 + base + hh*65536:#x}")
                a(f"buffer_store_dwordx4 {vr(o,4)}, v{V_L16}, s[4:7], s27 offen{K1SC}")
            else:
                a(f"s_add_u32 s27, s26, {WS_IT0 + base:#x}")
                a(f"buffer_store_dwordx4 {vr(o,4)}, v{vT0}, s[4:7], s27 offen offset:{hh*512}{K1SC}")
    a("s_barrier")
    stamp(a, FS + 3)
    a(f"s_branch {end_label}")
    return max(R.n, R2.n)


class Cfg:
    def __init__(self, **kw):
        self.__dict__.update(kw)
        for k in ("NR", "RA", "N1", "N2", "N3", "N4", "BS", "I0", "PS", "STS", "PRE1", "PRE2", "PRE3", "XB", "LP"):
            e = os.environ.get(self.name.upper() + "_" + k)
            if e:
                setattr(self, k, int(e))

def stats_ops(tmp, xc, vR, square):
    f = []
    for i in range(8):
        f.append(f"v_add_f32 v{tmp+i}, v{tmp+i}, v{tmp+8+i}")
    for i in range(4):
        f.append(f"v_add_f32 v{tmp+i}, v{tmp+i}, v{tmp+4+i}")
    f.append(f"v_mov_b32 v{xc+4}, 0")
    f.append(f"v_mov_b32 v{xc+5}, 0")
    f.append(f"v_permlane32_swap_b32 v{tmp}, v{tmp+2}")
    f.append(f"v_permlane32_swap_b32 v{tmp+1}, v{tmp+3}")
    f.append(f"v_add_f32 v{tmp}, v{tmp}, v{tmp+2}")
    f.append(f"v_add_f32 v{tmp+1}, v{tmp+1}, v{tmp+3}")
    f.append(f"v_mov_b32 v{tmp+2}, v{tmp}")
    f.append(f"v_mov_b32 v{tmp+3}, v{tmp+1}")
    f.append("s_nop 1")
    f.append(f"v_permlane16_swap_b32 v{tmp}, v{tmp+2}")
    f.append(f"v_permlane16_swap_b32 v{tmp+1}, v{tmp+3}")
    f.append(f"v_add_f32 v{tmp}, v{tmp}, v{tmp+2}")
    f.append(f"v_add_f32 v{tmp+1}, v{tmp+1}, v{tmp+3}")
    f.append(f"v_mul_f32 v{tmp}, {f32bits(-1.0/512):#x}, v{tmp}")
    f.append(f"v_mul_f32 v{tmp+1}, {f32bits(1.0/512):#x}, v{tmp+1}")
    f.append(f"v_fma_f32 v{tmp+1}, -v{tmp}, v{tmp}, v{tmp+1}")
    f.append(f"v_max_f32 v{tmp+1}, 0, v{tmp+1}")
    f.append(f"v_add_f32 v{tmp+1}, {f32bits(1e-5):#x}, v{tmp+1}")
    f.append(f"{'v_rcp_f32' if square else 'v_rsq_f32'} v{vR}, v{tmp+1}")
    f.append(f"v_cvt_pk_bf16_f32 v{xc}, v{tmp}, v{tmp}")
    f.append(f"v_lshlrev_b32 v{tmp+2}, 16, v{xc}")
    f.append(f"v_sub_f32 v{tmp+2}, v{tmp}, v{tmp+2}")
    f.append(f"v_cvt_pk_bf16_f32 v{xc+1}, v{tmp+2}, v{tmp+2}")
    f.append(f"v_mov_b32 v{tmp+4}, v{vR}")
    f.append(f"v_mov_b32 v{vR+1}, v{vR}")
    f.append(f"v_mov_b32 v{xc+2}, v{xc}")
    f.append(f"v_mov_b32 v{xc+3}, v{xc+1}")
    f.append(f"v_permlane32_swap_b32 v{vR}, v{vR+1}")
    f.append(f"v_permlane32_swap_b32 v{xc}, v{xc+2}")
    f.append(f"v_permlane32_swap_b32 v{xc+1}, v{xc+3}")
    return f

def res_init(c0):
    f = []
    for th in range(2):
        for fh in range(2):
            for c in range(2):
                d, r = c0 + 8 * fh + 4 * th + 2 * c, V_RES + 4 * th + 2 * fh + c
                f.append(f"v_lshlrev_b32 v{d}, 16, v{r}")
                f.append(f"v_and_b32 v{d+1}, 0xffff0000, v{r}")
    return f

def row_offset(a, v, vt):
    a(f"v_and_b32 v{v}, 15, v0")
    a(f"v_lshlrev_b32 v{v}, 10, v{v}")
    a(f"v_and_b32 v{vt}, 48, v0")
    a(f"v_add_u32 v{v}, v{v}, v{vt}")

def res_epilogue(a, g, c0, c1, tmp, end):
    SB = g.sb
    fin = a.label("final")
    a("s_lshl_b32 s26, s31, 15")
    a("s_lshl_b32 s27, s33, 11")
    a("s_add_u32 s26, s26, s27")
    a(f"s_add_u32 s26, s26, s{S_BASE}")
    a(f"s_add_u32 s26, s26, {g.OUT:#x}")
    a("s_lshl_b32 s28, s31, 12")
    a("s_lshl_b32 s29, s33, 8")
    a("s_add_u32 s28, s28, s29")
    for i in range(8):
        if i == 0:
            a("s_waitcnt lgkmcnt(0)")
        a(f"v_pk_add_f32 {vr(c0+2*i,2)}, {vr(c0+2*i,2)}, {vr(c1+2*i,2)}")
    for th in range(2):
        for fh in range(2):
            for c in range(2):
                d = c0 + 8 * fh + 4 * th + 2 * c
                a(f"v_cvt_pk_bf16_f32 v{V_RES + 4*th + 2*fh + c}, v{d}, v{d+1}")
    if g.final:
        a(f"s_cmp_eq_u32 s{S_IT}, 1")
        a(f"s_cbranch_scc1 {fin}")
    a(f"buffer_store_dwordx4 {vr(V_RES,4)}, v{V_P16}, s[4:7], s26 offen{SC}")
    a(f"buffer_store_dwordx4 {vr(V_RES+4,4)}, v{V_P16}, s[4:7], s26 offen offset:256{SC}")
    q = tmp
    for th in range(2):
        a(f"v_pk_mul_f32 {vr(q+2*th,2)}, {vr(c0+4*th,2)}, {vr(c0+4*th,2)}")
    for o in (2, 8, 10):
        for th in range(2):
            r = c0 + 4 * th + o
            a(f"v_pk_fma_f32 {vr(q+2*th,2)}, {vr(r,2)}, {vr(r,2)}, {vr(q+2*th,2)}")
            a(f"v_pk_add_f32 {vr(c0+4*th,2)}, {vr(c0+4*th,2)}, {vr(r,2)}")
    for th in range(2):
        a(f"v_add_f32 v{q+4+th}, v{c0+4*th}, v{c0+4*th+1}")
    for th in range(2):
        a(f"v_add_f32 v{q+6+th}, v{q+2*th}, v{q+2*th+1}")
    a(f"v_permlane32_swap_b32 v{q+4}, v{q+5}")
    a(f"s_add_u32 s28, s28, s{S_BASE}")
    a(f"v_permlane32_swap_b32 v{q+6}, v{q+7}")
    a(f"v_add_f32 v{q+4}, v{q+4}, v{q+5}")
    a(f"v_add_f32 v{q+6}, v{q+6}, v{q+7}")
    a(f"s_add_u32 s28, s28, {g.STOUT:#x}")
    a("s_nop 0")
    a(f"v_permlane16_swap_b32 v{q+4}, v{q+6}")
    a("s_nop 0")
    a(f"v_add_f32 v{q+4}, v{q+4}, v{q+6}")
    a(f"buffer_store_dword v{q+4}, v{V_ST}, s[4:7], s28 offen{SC}")
    a("s_barrier")
    stamp(a, SB + 3)
    if g.final:
        a(f"s_branch {end}")
        a(f"{fin}:")
        srd(a, 8, 70, 71, 2048 * 512 * 2)
        row_offset(a, tmp, tmp + 1)
        a("s_lshl_b32 s26, s31, 15")
        a("s_lshl_b32 s27, s33, 6")
        a("s_add_u32 s26, s26, s27")
        a("s_add_u32 s27, s26, 16384")
        FS_ = ["", " sc1", " nt", " sc0 sc1"][env("FINST", 0)]
        a(f"buffer_store_dwordx4 {vr(V_RES,4)}, v{tmp}, s[8:11], s26 offen{FS_}")
        a(f"buffer_store_dwordx4 {vr(V_RES+4,4)}, v{tmp}, s[8:11], s27 offen{FS_}")
        a("s_barrier")
        stamp(a, SB + 3)

class Lgkm:
    def __init__(self, a):
        self.a, self.q = a, []
    def op(self, text, tag):
        self.a(text); self.q.append(tag)
    def wait(self, tag):
        if tag in self.q:
            i = len(self.q) - 1 - self.q[::-1].index(tag)
            self.a(f"s_waitcnt lgkmcnt({min(15, len(self.q) - 1 - i)})")
            del self.q[:i + 1]

def down_order(nsteps, tail):
    o = [(st, t, fh) for st in range(nsteps - tail) for t in range(2) for fh in range(2)]
    for t in (1, 0):
        o += [(st, t, fh) for st in range(nsteps - tail, nsteps) for fh in range(2)]
    return o

RB = 16384
VS = 32
NPRE = env('NPRE', 5)


class Stream:
    NR, NRND, NREG = 10, 29, 14
    def __init__(self, a):
        self.a = a
        self.nxt = 0
        self.vm, self.lg = [], []
        self.reg = {}
        self.free = list(range(self.NREG - NPRE))
        self.last = self.NRND - NPRE
        for i in range(NPRE):
            self.reg[self.last + i] = self.NREG - NPRE + i
        self.maxreg = self.NREG
    def setup(self):
        a = self.a
        a(f"s_and_b32 s19, s{S_WAVE}, 3")
        a("s_lshl_b32 s25, s19, 12")
        a(f"s_mul_i32 s20, s{S_NTG}, {WNT_G}")
        a("s_add_u32 s20, s20, s25")
        a(f"s_add_u32 s20, s20, {WS_WGU:#x}")
        a(f"s_mul_i32 s21, s{S_NT64}, {224*1024}")
        a("s_add_u32 s21, s21, s25")
        a(f"s_add_u32 s21, s21, {WS_WD:#x}")
        for i in range(3):
            a(f"v_add_u32 v{V_FREE+i}, {i*0x10000}, v{V_L16}")
            a(f"v_add_u32 v{V_FREE+i}, s25, v{V_FREE+i}")
    def src(self, r):
        return f"s_add_u32 s27, s20, {r*RB}" if r < 15 else f"s_add_u32 s27, s21, {(r-15)*RB}"
    def wait_vm(self, pred):
        idx = [i for i, e in enumerate(self.vm) if pred(e)]
        if not idx:
            return None
        n = min(63, (len(self.vm) - 1 - idx[-1]) * 4)
        del self.vm[:idx[-1] + 1]
        return f"vmcnt({n})"
    def flush(self, limit, cap=99):
        a = self.a
        for r in sorted(self.reg)[:cap]:
            if r >= limit:
                break
            w = self.wait_vm(lambda e: e == ("s", r))
            if w:
                a("s_waitcnt " + w)
            k = self.reg.pop(r)
            for i in range(4):
                off = (r % self.NR) * RB + i * 1024
                if env("X_NOFL", 0) and r >= 24:
                    pass
                elif env("FL64", 0):
                    for hh in range(2):
                        a(f"ds_write_b64 v{V_FREE + (off >> 16)}, {vr(VS + (k*4 + i)*4 + 2*hh, 2)} offset:{(off & 0xffff) + 8*hh}")
                        if env("FLW", 1):
                            a("s_waitcnt lgkmcnt(0)")
                else:
                    a(f"ds_write_b128 v{V_FREE + (off >> 16)}, {vr(VS + (k*4 + i)*4, 4)} offset:{off & 0xffff}")
                    if env("FLW", 1):
                        a("s_waitcnt lgkmcnt(0)")
            self.lg.append((r, k))
    def fetch(self, n, limit):
        a = self.a
        while n > 0 and self.nxt < self.last:
            r = self.nxt
            if r < limit:
                a(f"s_add_u32 s26, s25, {(r % self.NR) * RB}")
                a("s_mov_b32 m0, s26")
                a(self.src(r))
                for i in range(4):
                    a(f"buffer_load_dwordx4 v{V_L16}, s[4:7], s27 offen offset:{i*1024}{SC} lds")
                self.vm.append(("d", r))
            else:
                if not self.free:
                    break
                k = self.free.pop(0)
                self.maxreg = max(self.maxreg, k + 1)
                self.reg[r] = k
                a(self.src(r))
                for i in range(4):
                    a(f"buffer_load_dwordx4 {vr(VS + (k*4 + i)*4, 4)}, v{V_L16}, s[4:7], s27 offen offset:{i*1024}{SC}")
                self.vm.append(("s", r))
            self.nxt += 1; n -= 1
    def landed(self, upto):
        assert self.nxt > min(upto, self.last - 1) and all(r > upto for r in self.reg), (upto, self.nxt, self.reg)
        w = []
        x = self.wait_vm(lambda e: e[0] == "d" and e[1] <= upto)
        if x:
            w.append(x)
        if any(r <= upto for r, _ in self.lg):
            w.append("lgkmcnt(0)")
            self.free += [k for _, k in self.lg]
            self.lg = []
        if w:
            self.a("s_waitcnt " + " ".join(w))

def gemm_phase(a, g):
    ln = g.kind == "qkv"
    NT = 3 if ln else 2
    NS = 16 if ln else 8
    SPS = 2 * NT
    NSL = (NS + (1 if ln else 0)) * SPS
    TAIL = env("XTAIL", 4)
    order = [(i // SPS, (i % SPS) // 2, i % 2) for i in range(NSL)] if ln else down_order(NS, TAIL)
    fin_ = [i * 1024 + 1023 if ln else 65535 for i in range(NSL)]
    NRND = fin_[-1] // RB + 1
    LB = g.LB
    SCR = LB + NRND * RB
    assert SCR + (1024 if ln else 16384) <= LDS_MAX
    S = g.stream
    RAH = 6
    s_tt, s_nt = (S_TT128, S_NT128) if ln else (S_TT64, S_NT64)
    comp, end = a.label(g.name + "_comp"), a.label(g.name + "_end")
    SB = g.sb
    bars = [0] + ([g.BS] if g.BS else [])
    a.c(f"================ phase {g.name} ================")
    a(f"s_cmp_lt_u32 s{S_WAVE}, 4")
    a(f"s_cbranch_scc1 {comp}")
    a(f"s_and_b32 s19, s{S_WAVE}, 3")
    a("s_lshl_b32 s25, s19, 12")
    a(f"s_mul_i32 s23, s{s_nt}, {g.WNT}")
    a("s_add_u32 s23, s23, s25")
    if g.WBASE:
        a(f"s_add_u32 s23, s23, {g.WBASE:#x}")
    stamp(a, SB)
    for r in range(NRND):
        a(f"s_add_u32 s26, s25, {LB + r*RB}")
        a("s_mov_b32 m0, s26")
        a(f"s_add_u32 s27, s23, {r*RB}")
        for i in range(4):
            a(f"buffer_load_dwordx4 v{V_L16}, s[4:7], s27 offen offset:{i*1024}{SC} lds")
        if g.lsig and r == g.N1 - 1:
            a(f"s_waitcnt vmcnt({g.N1*4})")
            a("s_mov_b32 s38, 1")
            a(f"s_atomic_add s38, s[14:15], s{S_SIG}")
    extra = 0
    if S:
        S.setup()
        S.fetch(g.PRE1, LB // RB)
        extra = 4 * len(S.vm)
    stamp(a, SB + 1)
    for j, b in enumerate(bars):
        nxt = bars[j + 1] if j + 1 < len(bars) else NSL
        up = fin_[min(NSL - 1, nxt - 1 + RAH)] // RB
        a(f"s_waitcnt vmcnt({(NRND - 1 - up)*4 + extra})")
        a("s_barrier")
    if not ln:
        a("s_barrier")
    if S:
        S.fetch(g.PRE3, LB // RB + NRND)
    a("s_barrier")
    a(f"s_branch {end}")

    a(f"{comp}:")
    R = Regs(V_FREE)
    nwin = -(-SCR // 65536)
    vW = [[R.alloc() for _ in range(nwin)] for _ in range(1 if ln else 2)]
    vX, vY = R.alloc(), R.alloc()
    vR = R.alloc(2)
    xc = R.alloc(6, 2)
    acc = [R.alloc(16) for _ in range(NT)]
    NF = RAH + 2
    wf = [R.alloc(4) for _ in range(NF)]
    RA = min(2 * NS, g.RA)
    ring = [R.alloc(4) for _ in range(RA)]
    tmp = R.alloc(16)
    if ln:
        a(f"s_add_u32 s31, s{s_tt}, s{S_WAVE}")
        a("s_lshl_b32 s22, s31, 15")
        for w in range(nwin):
            a(f"v_add_u32 v{vW[0][w]}, {w*65536}, v{V_L16}")
        a("s_lshl_b32 s36, s31, 12")
        a(f"s_add_u32 s36, s36, s{S_BASE}")
        a(f"s_add_u32 s36, s36, {g.STIN:#x}")
        a(f"s_lshl_b32 s26, s{S_WAVE}, 8")
        a(f"s_add_u32 s26, s26, {SCR}")
        a(f"v_add_u32 v{vX}, s26, v{V_L4}")
        a(f"v_and_b32 v{vY}, 48, v0")
        a(f"v_add_u32 v{vY}, s26, v{vY}")
    else:
        a(f"s_and_b32 s24, s{S_WAVE}, 1")
        a(f"s_lshr_b32 s25, s{S_WAVE}, 1")
        a(f"s_lshl_b32 s33, s{s_nt}, 1")
        a("s_add_u32 s33, s33, s25")
        a(f"s_add_u32 s31, s{s_tt}, s24")
        a("s_lshl_b32 s22, s31, 15")
        a("s_lshl_b32 s27, s25, 11")
        a("s_add_u32 s22, s22, s27")
        a("s_mul_i32 s26, s25, 6144")
        a("s_add_u32 s27, s27, 2048")
        for w in range(nwin):
            a(f"v_add_u32 v{vX}, {w*65536}, v{V_L16}")
            a(f"v_add_u32 v{vW[0][w]}, s26, v{vX}")
            a(f"v_add_u32 v{vW[1][w]}, s27, v{vX}")
        for x in res_init(acc[0]):
            a(x)
        a(f"s_lshl_b32 s26, s{S_WAVE}, 12")
        a(f"s_add_u32 s26, s26, {SCR}")
        a("s_xor_b32 s27, s26, 0x2000")
        assert SCR % 16384 == 0
        a(f"v_add_u32 v{vX}, s26, v{V_L16}")
        a(f"v_add_u32 v{vY}, s27, v{V_L16}")
    a(f"s_add_u32 s22, s22, s{S_BASE}")
    a(f"s_add_u32 s22, s22, {g.ABUF:#x}")
    AST = 2048 if ln else 4096

    cvm, na = [], [0]
    L = Lgkm(a)
    def load_a():
        k = na[0]; na[0] += 1
        off = ((k // 2) * AST) % 4096
        a(f"buffer_load_dwordx4 {vr(ring[k % RA],4)}, v{V_P16}, s[4:7], s22 offen offset:{off + (k%2)*256}{SC}")
        if k % 2 == 1 and off + AST == 4096:
            a("s_add_u32 s22, s22, 4096")
        cvm.append(k)
    def wait_tag(tag):
        if tag in cvm:
            i = len(cvm) - 1 - cvm[::-1].index(tag)
            a(f"s_waitcnt vmcnt({len(cvm) - 1 - i})")
            del cvm[:i + 1]
    def w_read(i):
        st_, t, fh = order[i]
        off = LB + (i * 1024 if ln else st_ * 8192 + fh * 1024)
        base = vW[0 if ln else t][off >> 16]
        L.op(f"ds_read_b128 {vr(wf[i % NF],4)}, v{base} offset:{off & 0xffff}", i)

    a("s_lshl_b32 s23, s31, 8")
    a(f"s_add_u32 s23, s23, s{S_FL}")
    a(f"s_add_u32 s23, s23, {g.FIN:#x}")
    a("s_waitcnt vmcnt(0)")
    stamp(a, SB)
    handoff(a, 23, g.NEED)
    stamp(a, SB + 1)
    while na[0] < g.I0:
        load_a()
    a("s_barrier")
    for i in range(RAH):
        w_read(i)
    a(f"s_lshl_b32 s{S_SIG}, s{s_nt if ln else 31}, 8")
    a(f"s_add_u32 s{S_SIG}, s{S_SIG}, s{S_FL}")
    if g.FOUT:
        a(f"s_add_u32 s{S_SIG}, s{S_SIG}, {g.FOUT:#x}")
    stl = [f"buffer_load_dwordx4 {vr(tmp+4*i,4)}, v{V_L16}, s[4:7], s36 offen offset:{i*1024}{SC}" for i in range(4)] if ln else []
    fill = []
    vRs = tmp + 8
    for i in range(NSL):
        st_, t, fh = order[i]
        if i in bars and i > 0:
            a("s_barrier")
        if ln and i == NS * SPS - 26:
            assert not stl
            wait_tag("st")
            fill.extend(stats_ops(tmp, xc, vR, False))
        if ln and i == NS * SPS:
            assert not fill
        if i % 2 == 0:
            L.wait(i + 1)
        if not ln and i == NSL - 2:
            L.wait("xw")
            a("s_barrier")
            for q in range(4):
                L.op(f"ds_read_b128 {vr(acc[1]+4*q,4)}, v{vY} offset:{q*1024}", "xr")
        for th in range(2):
            if th == 1 and i + RAH < NSL:
                w_read(i + RAH)
            if st_ < NS:
                wait_tag(2 * st_ + 1)
            xa = ring[(2 * st_ + th) % RA] if st_ < NS else xc + 2 * th
            d = acc[t] + 8 * fh + 4 * th
            c = "0" if st_ == 0 and (ln or t == 1) else vr(d, 4)
            if ln and t == 2:
                a(f"{M16} {vr(d,4)}, {vr(xa,4)}, {vr(wf[i % NF],4)}, {c}")
            else:
                a(f"{M16} {vr(d,4)}, {vr(wf[i % NF],4)}, {vr(xa,4)}, {c}")
            if fill:
                a(fill.pop(0))
            j = i - (NSL - 2 * TAIL) - 2
            if not ln and 0 <= j < 2:
                q = 2 * j + th
                L.op(f"ds_write_b128 v{vX}, {vr(acc[1]+4*q,4)} offset:{q*1024}", "xw")
        if (i + 1) % g.LP == 0 and na[0] < 2 * NS and na[0] < 2 * ((i + 1) // SPS) + RA:
            load_a()
        if stl and i >= g.STS and i % SPS == 1:
            a(stl.pop(0)); cvm.append("st")
    assert na[0] == 2 * NS
    if ln:
        a(f"ds_write_b32 v{vX}, v{tmp+4}")
        for th in range(2):
            a(f"ds_read_b128 {vr(vRs+4*th,4)}, v{vY} offset:{th*128}")
    stamp(a, SB + 2)
    if ln:
        ot = ring[0]
        a(f"s_lshl_b32 s26, s{s_nt}, 17")
        a("s_lshl_b32 s27, s31, 10")
        a("s_add_u32 s26, s26, s27")
        a(f"s_add_u32 s26, s26, s{S_BASE}")
        a(f"v_mul_f32 v{tmp}, {f32bits(QSCALE):#x}, v{vR}")
        a(f"v_mul_f32 v{tmp+1}, {f32bits(QSCALE):#x}, v{vR+1}")
        a(f"v_lshrrev_b32 v{tmp+2}, 5, v0")
        a(f"v_and_b32 v{tmp+3}, 0x3ff, v{V_P16}")
        a(f"v_lshl_add_u32 v{tmp+2}, v{tmp+2}, 16, v{tmp+3}")
        for t, base, sc in ((0, B_Q, tmp), (1, B_K, vR)):
            a(f"s_add_u32 s27, s26, {base:#x}")
            for th in range(2):
                o = ot + 4 * (2 * t + th)
                for fh in range(2):
                    for c in range(2):
                        r = acc[t] + 8 * fh + 4 * th + 2 * c
                        a(f"v_pk_mul_f32 {vr(r,2)}, {vr(r,2)}, {vr(sc,2)} op_sel:[0,{th}] op_sel_hi:[1,{th}]")
                for fh in range(2):
                    for c in range(2):
                        r = acc[t] + 8 * fh + 4 * th + 2 * c
                        a(f"v_cvt_pk_bf16_f32 v{o+2*fh+c}, v{r}, v{r+1}")
                a(f"buffer_store_dwordx4 {vr(o,4)}, v{tmp+2}, s[4:7], s27 offen offset:{th*256}{SC}")
        a("s_waitcnt lgkmcnt(0)")
        for fh in range(2):
            o = ot + 16 + 4 * fh
            a(f"s_add_u32 s27, s26, {B_V + fh*65536:#x}")
            for c in range(4):
                r = acc[2] + 8 * fh + 2 * c
                a(f"v_pk_mul_f32 {vr(r,2)}, {vr(vRs+2*c,2)}, {vr(r,2)}")
            for c in range(4):
                r = acc[2] + 8 * fh + 2 * c
                a(f"v_cvt_pk_bf16_f32 v{o+c}, v{r}, v{r+1}")
            a(f"buffer_store_dwordx4 {vr(o,4)}, v{V_L16}, s[4:7], s27 offen{SC}")
        a("s_barrier")
        stamp(a, SB + 3)
    else:
        res_epilogue(a, g, acc[0], acc[1], tmp, end)
    a(f"{end}:")
    return R.n


def mlp_phase(a, g):
    E = lambda k, d: env("MLP_" + k, d)
    NR, RING = 10, 10 * RB
    NG, NOPS = 238, 238 + 112
    TAIL = env("XTAIL", 4)
    dord = down_order(28, TAIL)
    beg = [i * 1024 for i in range(NG)] + [15 * RB + min(x[0] for x in dord[i:]) * 8192 for i in range(112)]
    fin = [i * 1024 + 1023 for i in range(NG)] + [15 * RB + max(x[0] for x in dord[:i + 1]) * 8192 + 8191 for i in range(112)]
    RAH = E("RAH", 6)
    I0, I0D = E("I0", 10), E("I0D", 16)
    sched = os.environ.get("MLP_SCHED", "0:0,20:0,40:0,60:0,88:2,100:1,114:1,130:1,146:1,162:1,178:1,194:1,210:1,226:1,246:0,258:0,270:0,282:0,294:0,306:0,326:0")
    sched = dict((int(x.split(":")[0]), int(x.split(":")[1])) for x in sched.split(","))
    bars = sorted(sched)
    S = g.stream
    comp, end = a.label("mlp_comp"), a.label("mlp_end")
    SB, SD = 17, g.sb
    a.c("================ phase gate/up + down ================")
    a(f"s_cmp_lt_u32 s{S_WAVE}, 4")
    a(f"s_cbranch_scc1 {comp}")
    stamp(a, SB)
    S.flush(NR)
    S.fetch(E("N1", 8), NR)
    stamp(a, SB + 1)
    for j, b in enumerate(bars):
        nxt = bars[j + 1] if j + 1 < len(bars) else NOPS
        S.landed(fin[min(NOPS - 1, nxt - 1 + RAH)] // RB)
        a("s_barrier")
        lim = NR + beg[b] // RB
        S.fetch(sched[b], lim)
        S.flush(lim, E("FCAP", 1))
        a.c(f"barrier {b}: fetched {S.nxt}, staged {sorted(S.reg)}")
    assert S.nxt == S.last and not S.vm and not S.lg and not S.reg
    a("s_barrier")
    a("s_barrier")
    a(f"s_branch {end}")

    a(f"{comp}:")
    R = Regs(V_FREE)
    vW = [R.alloc() for _ in range(3)]
    xc = R.alloc(6, 2)
    vR2 = R.alloc(2)
    vX, vY = R.alloc(), R.alloc()
    vD = [[R.alloc() for _ in range(3)] for _ in range(2)]
    acc = [R.alloc(16) for _ in range(4)]
    NF = RAH + 1
    wf = [R.alloc(4) for _ in range(NF)]
    ring = [R.alloc(4) for _ in range(32)]
    tmp = ring[28]
    NP = len(PASSES)
    pstart = [34 * f for f in PFIRST] + [NG]
    tacc = [acc[t % 4] for t in range(7)]
    dacc = [acc[3], acc[0]]
    hreg = [34, 35, 32, 51]
    a(f"s_add_u32 s31, s{S_TTG}, s{S_WAVE}")
    a("s_lshl_b32 s22, s31, 15")
    a(f"s_add_u32 s22, s22, s{S_BASE}")
    a(f"s_add_u32 s22, s22, {B_X1:#x}")
    a("s_lshl_b32 s36, s31, 12")
    a(f"s_add_u32 s36, s36, s{S_BASE}")
    a(f"s_add_u32 s36, s36, {B_ST1:#x}")
    a(f"s_mul_i32 s26, s31, {112*1024}")
    a(f"s_add_u32 s26, s26, s{S_BASE}")
    a(f"s_add_u32 s26, s26, {B_H:#x}")
    for p in range(NP):
        a(f"s_mul_i32 s{hreg[p]}, s{S_NTG}, {PASSES[p]*1024}")
        a(f"s_add_u32 s{hreg[p]}, s{hreg[p]}, s26")
        if p:
            a(f"s_add_u32 s{hreg[p]}, s{hreg[p]}, {PFIRST[p]*16384}")
    a("s_lshl_b32 s50, s31, 8")
    a(f"s_add_u32 s50, s50, s{S_FL}")
    a(f"s_add_u32 s23, s50, {FL_O:#x}")
    a(f"s_add_u32 s50, s50, {FL_G:#x}")
    a(f"s_and_b32 s24, s{S_WAVE}, 1")
    a(f"s_lshr_b32 s25, s{S_WAVE}, 1")
    a(f"s_lshl_b32 s33, s{S_NT64}, 1")
    a("s_add_u32 s33, s33, s25")
    a(f"s_add_u32 s31, s{S_TT64}, s24")
    a("s_lshl_b32 s52, s31, 8")
    a(f"s_add_u32 s52, s52, s{S_FL}")
    a(f"s_add_u32 s52, s52, {FL_G:#x}")
    a(f"s_mul_i32 s37, s31, {112*1024}")
    a("s_lshl_b32 s30, s25, 11")
    a("s_add_u32 s37, s37, s30")
    a(f"s_add_u32 s37, s37, s{S_BASE}")
    a(f"s_add_u32 s37, s37, {B_H:#x}")
    a("s_mul_i32 s29, s25, 6144")
    a("s_add_u32 s30, s30, 2048")
    for w in range(3):
        a(f"v_add_u32 v{vW[w]}, {w*65536}, v{V_L16}")
        a(f"v_add_u32 v{vD[0][w]}, s29, v{vW[w]}")
        a(f"v_add_u32 v{vD[1][w]}, s30, v{vW[w]}")
    a(f"v_lshrrev_b32 v{vY}, 5, v0")
    a(f"v_and_b32 v{vX}, 0x3ff, v{V_P16}")
    a(f"v_lshl_add_u32 v{vX}, v{vY}, 8, v{vX}")
    cvm = []
    L = Lgkm(a)
    def wait_tag(tag):
        if tag in cvm:
            i = len(cvm) - 1 - cvm[::-1].index(tag)
            a(f"s_waitcnt vmcnt({len(cvm) - 1 - i})")
            del cvm[:i + 1]
    na, nh = [0], [0]
    def load_x():
        k = na[0]; na[0] += 1
        a(f"buffer_load_dwordx4 {vr(ring[k],4)}, v{V_P16}, s[4:7], s22 offen offset:{(k%4//2)*2048 + (k%2)*256}{SC}")
        if k % 4 == 3:
            a("s_add_u32 s22, s22, 4096")
        cvm.append(("x", k))
    def load_h():
        k = nh[0]; nh[0] += 1
        if env("X_NOH", 0):
            return
        a(f"buffer_load_dwordx4 {vr(ring[k%32],4)}, v{V_P16}, s[4:7], s37 offen offset:{(k%2)*256}{SC}")
        if k % 2 == 1:
            a("s_add_u32 s37, s37, 4096")
        cvm.append(("h", k))
    def w_read(i):
        if i < NG:
            off = beg[i] % RING
            base = vW[off >> 16]
        else:
            st_, t_, fh_ = dord[i - NG]
            off = (15 * RB + st_ * 8192) % RING + fh_ * 1024
            base = vD[t_][off >> 16]
        L.op(f"ds_read_b128 {vr(wf[i % NF],4)}, v{base} offset:{off & 0xffff}", i)
    def slot(i):
        for p in range(NP):
            if i < pstart[p + 1]:
                return PFIRST[p] + (i - pstart[p]) // 2 % PASSES[p], (i - pstart[p]) // (2 * PASSES[p])
        return None, dord[i - NG][0]
    fill = []
    stored = set()
    def h_ops(t, packed=True):
        r = tacc[t]
        p = max(q for q in range(NP) if PFIRST[q] <= t)
        so, off = hreg[p], (t - PFIRST[p]) * 1024
        ops = [f"v_pk_mul_f32 {vr(r+2*i,2)}, {vr(r+2*i,2)}, {vr(r+8+2*i,2)}" for i in range(4)]
        ops += [f"v_pk_mul_f32 {vr(r+2*i,2)}, {vr(r+2*i,2)}, {vr(vR2,2)} op_sel:[0,{i//2}] op_sel_hi:[1,{i//2}]" for i in range(4)]
        if not packed:
            ops = [f"v_mul_f32 v{r+i}, v{r+i}, v{r+8+i}" for i in range(8)]
            ops += [f"v_mul_f32 v{r+i}, v{vR2 + i//4}, v{r+i}" for i in range(8)]
        ops += [f"v_cvt_pk_bf16_f32 v{r+8+i}, v{r+2*i}, v{r+2*i+1}" for i in (0, 2, 1, 3)]
        ops += [f"v_permlane32_swap_b32 v{r+8}, v{r+10}", "s_nop 0", f"v_permlane32_swap_b32 v{r+9}, v{r+11}"]
        ops.append((f"buffer_store_dwordx4 {vr(r+8,4)}, v{vX}, s[4:7], s{so} offen offset:{off}{SC}", ("hs", t)))
        return ops

    a("s_waitcnt vmcnt(0)")
    stamp(a, SB)
    handoff(a, 23, 16)
    stamp(a, SB + 1)
    if E("PRIO", 2):
        a(f"s_setprio {E('PRIO', 2)}")
    while na[0] < I0:
        load_x()
        if na[0] == E("STP", 4):
            a("s_barrier")
            for i in range(RAH):
                w_read(i)
            for q in range(4):
                a(f"buffer_load_dwordx4 {vr(tmp+4*q,4)}, v{V_L16}, s[4:7], s36 offen offset:{q*1024}{SC}")
                cvm.append("st")
    a(f"s_add_u32 s{S_SIG}, s52, {FL_D - FL_G:#x}")
    STF = (E("STP", 4) + 1) * PASSES[0]
    evs = os.environ.get("MLP_EV", "170:196:218,240:264:286,260:288:310")
    ev = []
    for p, x in enumerate(evs.split(",")):
        sg, ak, go = map(int, x.split(":"))
        ev.append((PFIRST[p] + PASSES[p] - 1, sg, ak, go, 8 * (PFIRST[p] + PASSES[p])))
    def emit(x):
        if isinstance(x, tuple):
            a(x[0]); cvm.append(x[1]); stored.add(x[1][1])
        else:
            a(x)
    dinit = [False]
    hlim = 0
    treg = list(range(78, 94, 2)) + [96, 98, 100, 62]
    tpos = [int(x) for x in os.environ.get("TRACE", "").split(",") if x]
    for i in range(NOPS):
        t, ks = slot(i)
        if i in tpos:
            r_ = treg[tpos.index(i)]
            a(f"s_memtime s[{r_}:{r_+1}]")
        for gi, (lt, sg, ak, go, lim_) in enumerate(ev):
            if i == sg:
                a.c(f"this wave's part {gi} of H is complete")
                assert lt in stored
                wait_tag(("hs", lt))
                a(f"s_add_u32 s54, s50, {gi*4}")
                a("s_mov_b32 s38, 1")
                a("s_atomic_add s38, s[14:15], s54")
            if i == ak:
                a(f"s_add_u32 s28, s52, {gi*4}")
                a("s_mov_b32 s55, 0")
                a("s_atomic_add s55, s[14:15], s28 glc")
            if i == go:
                ok = a.label("go")
                a("s_waitcnt lgkmcnt(0)")
                a("s_cmp_ge_u32 s55, 16")
                a(f"s_cbranch_scc1 {ok}")
                poll(a, 28, 16)
                a(f"{ok}:")
                hlim = lim_
                if gi in (0, NP - 1) and not tpos:
                    stamp(a, SD + (0 if gi == 0 else 4))
        if i in bars and i > 0:
            a("s_barrier")
        if i == STF:
            wait_tag("st")
            fill.extend(stats_ops(tmp, xc, vR2, True))
        if i == pstart[1] and not tpos:
            stamp(a, SB + 2)
        if i == NG and not tpos:
            stamp(a, SB + 3)
        if i in pstart[1:]:
            p = pstart.index(i) - 1
            assert not fill
            need = set(tacc[q] for q in range(PFIRST[p + 1], PFIRST[p + 1] + PASSES[p + 1])) if p + 1 < NP else set(dacc)
            tiles = list(range(PFIRST[p], PFIRST[p] + PASSES[p]))
            now = [q for q in tiles if tacc[q] in need or (E("SER", 15) >> p) & 1]
            if now:
                if tiles[-1] == now[0]:
                    a("s_nop 7")
                for q in now:
                    for x in h_ops(q):
                        emit(x)
            else:
                fill.extend(["s_nop 0"] * 6)
            for q in tiles:
                if q not in now:
                    fill.extend(h_ops(q, False))
        if i == NG and not tpos:
            stamp(a, SD + 1)
        if 3 in stored and not dinit[0] and not fill:
            dinit[0] = True
            assert i + 10 < NG
            fill.extend(["s_nop 0"] * 2)
            fill.extend(res_init(dacc[0]))
        if i % 2 == 0:
            L.wait(i + 1)
        if i == NOPS - 4 * TAIL:
            dead = beg[bars[-1]] // RB - 1
            assert dead + NR >= 29 and bars[-1] < i and 6 in stored
            SCR = (dead % NR) * RB
            fill.append(f"s_lshl_b32 s26, s{S_WAVE}, 12")
            fill.append(f"s_add_u32 s26, s26, {SCR}")
            fill.append("s_xor_b32 s27, s26, 0x2000")
            fill.append(f"v_add_u32 v{vX}, s26, v{V_L16}")
            fill.append(f"v_add_u32 v{vY}, s27, v{V_L16}")
        if i == NOPS - 2:
            L.wait("xw")
            a("s_barrier")
            for q in range(4):
                L.op(f"ds_read_b128 {vr(dacc[1]+4*q,4)}, v{vY} offset:{q*1024}", "xr")
        fh = i % 2
        for th in range(2):
            if th == 1 and i + RAH < NOPS:
                w_read(i + RAH)
            if t == 0 and fh == 0 and ks < 16:
                wait_tag(("x", 2 * ks + 1))
            if t is None:
                assert nh[0] > 2 * ks + 1
                wait_tag(("h", 2 * ks + 1))
            if t is not None:
                d, xa, first = tacc[t], (xc + 2 * th if ks == 16 else ring[2 * ks + th]), ks == 0
                if first and t >= 4:
                    assert t - 4 in stored
            else:
                d, xa, first = dacc[dord[i - NG][1]], ring[(2 * ks + th) % 32], i - NG in (2, 3)
                assert 4 in stored
            d += 8 * fh + 4 * th
            a(f"{M16} {vr(d,4)}, {vr(wf[i % NF],4)}, {vr(xa,4)}, {'0' if first else vr(d,4)}")
            for _ in range(min(E("FPS", 1), len(fill))):
                emit(fill.pop(0))
            j = i - (NOPS - 2 * TAIL) - 2
            if 0 <= j < 2:
                q = 2 * j + th
                L.op(f"ds_write_b128 v{vX}, {vr(dacc[1]+4*q,4)} offset:{q*1024}", "xw")
        if (i + 1) % PASSES[0] == 0 and na[0] < 32:
            assert na[0] < 28 or (i > STF and not fill), i
            load_x()
        if i >= pstart[NP - 1]:
            done = 2 * ((i + 1 - NG) // 4) if t is None else 0
            half = (i + 1 - NG) // 2 if t is None else 0
            look = I0D if t is not None else max(E("LK", 12), I0D - half)
            assert look <= 30
            if nh[0] < min(hlim, half + look) and (t is None or nh[0] < 2 * ks):
                load_h()
    assert nh[0] == 56 and not fill
    if E("PRIO", 2):
        a("s_setprio 0")
    stamp(a, SD + 2)
    for k in range(len(tpos)):
        a(f"v_writelane_b32 v{V_STAMP+1}, s{treg[k]}, {k}")
    res_epilogue(a, g, dacc[0], dacc[1], tmp, end)
    a(f"{end}:")
    return max(R.n, VS + 16 * S.maxreg)


def attn_phase(a, SB, code_end):
    U = 2
    NIT = 32 // U
    B2IT = env("ATT_B2", 1)
    B3IT = env("ATT_B3", 3)
    PRIO_IT = env("ATT_PRIO", 14)
    PFN = 4 if GMX == 4 else env('PFN', 6)
    CB = 0
    XB = CB + 4096
    KB, VB = 32768, 98304
    assert XB + 8 * 2304 <= KB
    R = Regs(V_FREE)
    vK, vV, vInc, vV0 = R.alloc(), R.alloc(), R.alloc(), R.alloc()
    t0, t1 = R.alloc(), R.alloc()
    vPA, vPP = R.alloc(), R.alloc()
    R.alloc(); R.alloc()
    vIx, vKp = R.alloc(), R.alloc()
    DYN = env("ATT_DYN", 0)
    Q = [R.alloc(4), R.alloc(4)]
    NM = [R.alloc(16), R.alloc(16)]
    O = [R.alloc(16), R.alloc(16)]
    S = [R.alloc(16), R.alloc(16)]
    P = R.alloc(8)
    KF = [R.alloc(4), R.alloc(4)]
    VF = [R.alloc(8), R.alloc(8)]
    a.c("================ phase attention ================")
    a(f"s_and_b32 s19, s{S_IDX}, 3")
    a(f"s_lshl_b32 s20, s{S_XCD}, 2")
    a("s_add_u32 s19, s19, s20")
    a(f"s_lshr_b32 s20, s{S_IDX}, 2")
    a("s_lshl_b32 s20, s20, 3")
    a(f"s_and_b32 s26, s{S_WAVE}, 3")
    a(f"s_lshr_b32 s27, s{S_WAVE}, 2")
    a("s_lshl_b32 s22, s26, 1")
    a("s_add_u32 s20, s20, s22")
    a("s_lshl_b32 s21, s19, 16")
    a(f"s_add_u32 s21, s21, s{S_BASE}")
    setup = a.label("att_setup")
    assert B_Q == 0 and B_V - B_K == 0x200000
    a("s_and_b32 s24, s26, 1")
    a("s_lshr_b32 s25, s26, 1")
    a("s_lshl_b32 s28, s24, 16")
    a(f"s_add_u32 s28, s28, {KB}")
    a("s_lshl_b32 s29, s24, 21")
    a("s_add_u32 s29, s29, s21")
    a(f"s_add_u32 s29, s29, {B_K:#x}")

    def dma(first_tile, per_wave):
        a(f"s_mul_i32 s24, s25, {per_wave*1024}")
        if first_tile:
            a(f"s_add_u32 s24, s24, {first_tile*1024}")
        n = 0
        while n < per_wave:
            a("s_add_u32 s30, s28, s24")
            a("s_mov_b32 m0, s30")
            a("s_add_u32 s31, s29, s24")
            for i in range(min(4, per_wave - n)):
                a(f"buffer_load_dwordx4 v{V_L16}, s[4:7], s31 offen offset:{i*1024}{SC} lds")
            n += 4
            if n < per_wave:
                a("s_add_u32 s24, s24, 4096")
    a(f"v_and_b32 v{t0}, 11, v0")
    a(f"v_cmp_eq_u32 vcc, 0, v{t0}")
    a(f"v_mov_b32 v{t1}, 0x3f803f80")
    a("s_lshl_b32 s30, s26, 10")
    a(f"s_add_u32 s30, s30, {CB}")
    a(f"v_cndmask_b32 v{P}, 0, v{t1}, vcc")
    a(f"v_add_u32 v{t0}, s30, v{V_L16}")
    for i in range(1, 4):
        a(f"v_mov_b32 v{P+i}, v{P}")
    a(f"ds_write_b128 v{t0}, {vr(P,4)}")
    a(f"v_lshrrev_b32 v{t0}, 5, v0")
    a(f"v_lshlrev_b32 v{t0}, 8, v{t0}")
    a(f"v_and_b32 v{t1}, 15, v0")
    a(f"v_lshl_add_u32 v{t0}, v{t1}, 4, v{t0}")
    a(f"v_and_b32 v{t1}, 16, v0")
    a(f"v_cmp_eq_u32 vcc, 0, v{t1}")
    a("s_lshl_b32 s30, s27, 15")
    a(f"s_add_u32 s30, s30, {KB}")
    kp1, kpj = a.label("kp1"), a.label("kpj")
    a(f"s_cmp_lg_u32 s{S_IT}, 0")
    a(f"s_cbranch_scc1 {kp1}")
    a(f"v_and_b32 v{vKp}, 0x33, v0")
    a(f"v_bfe_u32 v{vIx}, v0, 2, 1")
    a(f"v_lshl_or_b32 v{vKp}, v{vIx}, 3, v{vKp}")
    a(f"v_bfe_u32 v{vIx}, v0, 3, 1")
    a(f"v_lshl_or_b32 v{vKp}, v{vIx}, 2, v{vKp}")
    a(f"s_branch {kpj}")
    a(f"{kp1}:")
    a(f"v_and_b32 v{vKp}, 0x23, v0")
    a(f"v_bfe_u32 v{vIx}, v0, 2, 1")
    a(f"v_lshl_or_b32 v{vKp}, v{vIx}, 4, v{vKp}")
    a(f"v_bfe_u32 v{vIx}, v0, 3, 2")
    a(f"v_lshl_or_b32 v{vKp}, v{vIx}, 2, v{vKp}")
    a(f"{kpj}:")
    a(f"v_lshlrev_b32 v{vKp}, 4, v{vKp}")
    a(f"v_mov_b32 v{vIx}, 0xdddddddd")
    a(f"v_add_u32 v{vK}, s30, v{vKp}")
    a("s_add_u32 s31, s30, 0x10000")
    a(f"v_mov_b32 v{t1}, s31")
    a(f"v_mov_b32 v{vInc}, {CB}")
    a(f"v_cndmask_b32 v{t1}, v{vInc}, v{t1}, vcc")
    a(f"v_add_u32 v{vV}, v{t0}, v{t1}")
    a(f"v_mov_b32 v{t1}, {VB}")
    a(f"v_cndmask_b32 v{t1}, v{vInc}, v{t1}, vcc")
    a(f"v_add_u32 v{vV0}, v{t0}, v{t1}")
    a(f"v_mov_b32 v{t1}, {U*1024}")
    a(f"v_cndmask_b32 v{vInc}, 0, v{t1}, vcc")
    for q in range(2):
        for i in range(16):
            a(f"v_mov_b32 v{O[q]+i}, 0")
    for i in range(4, 8):
        a(f"v_mov_b32 v{VF[1]+i}, 0")
    a(f"ds_write_b128 v{V_L16}, {vr(VF[1]+4,4)} offset:{XB + 9216}")
    a("s_mul_i32 s30, s26, 2304")
    a(f"s_add_u32 s30, s30, {XB}")
    a("s_lshl_b32 s31, s26, 12")
    a(f"s_add_u32 s31, s31, {XB + 12288}")
    a("s_cmp_eq_u32 s27, 0")
    a("s_cselect_b32 s35, s30, s31")
    a("s_cselect_b32 s36, s31, s30")
    a(f"v_add_u32 v{vPA}, s35, v{V_L16}")
    a(f"v_add_u32 v{vPP}, s36, v{V_L16}")
    a(f"v_add_u32 v{vPA+2}, s35, v{V_L4}")
    a(f"v_add_u32 v{vPP+2}, s36, v{V_L4}")
    a("s_add_u32 s20, s20, s27")
    a("s_lshl_b32 s22, s20, 10")
    a("s_add_u32 s22, s22, s21")
    a("s_xor_b32 s35, s22, 1024")
    a(f"s_add_u32 s36, s21, {B_K:#x}")
    a("s_lshr_b32 s23, s19, 1")
    a(f"s_cmp_eq_u32 s{S_IT}, 0")
    a("s_cselect_b32 s53, 32, 16")
    a("s_cselect_b32 s52, -2, -1")
    a(f"s_cselect_b32 s32, {NIT - env('ATT_PRIO0', 16)}, {NIT - PRIO_IT}")
    a("s_and_b32 s23, s23, s52")
    a("s_lshl_b32 s23, s23, 8")
    a(f"s_add_u32 s23, s23, s{S_FL}")
    assert FL_Q == 0
    a(f"s_mov_b32 s34, {NIT - B2IT}")
    a(f"s_mov_b32 s33, {NIT - B3IT}")
    a("s_waitcnt vmcnt(0) lgkmcnt(0)")
    stamp(a, SB)
    a("s_barrier")
    a(f"s_cmp_lg_u32 s{S_WAVE}, 0")
    a(f"s_cbranch_scc1 {setup}")
    handoff(a, 23, "s53")
    stamp(a, SB + 1)
    a(f"{setup}:")
    a("s_barrier")

    def qk_loads():
        a(f"buffer_load_dwordx4 {vr(KF[1],4)}, v{vKp}, s[4:7], s36 offen{SC}")
        a(f"buffer_load_dwordx4 {vr(Q[0],4)}, v{V_L16}, s[4:7], s35 offen{SC}")
        a(f"buffer_load_dwordx4 {vr(Q[1],4)}, v{V_L16}, s[4:7], s22 offen{SC}")

    def standin():
        for q in range(2):
            a(f"{MFMA} {vr(S[q],16)}, {vr(KF[1],4)}, {vr(Q[q],4)}, 0")
        a("s_nop 11")
        tt = (t0, t1)
        for q in range(2):
            a(f"v_max3_f32 v{tt[q]}, v{S[q]}, v{S[q]+1}, v{S[q]+2}")
            a(f"v_max3_f32 v{P+q}, v{S[q]+8}, v{S[q]+9}, v{S[q]+10}")
        for i in (3, 5):
            for q in range(2):
                a(f"v_max3_f32 v{tt[q]}, v{tt[q]}, v{S[q]+i}, v{S[q]+i+1}")
                a(f"v_max3_f32 v{P+q}, v{P+q}, v{S[q]+8+i}, v{S[q]+9+i}")
        for q in range(2):
            a(f"v_max3_f32 v{tt[q]}, v{tt[q]}, v{S[q]+7}, v{S[q]+15}")
        for q in range(2):
            a(f"v_max_f32 v{tt[q]}, v{tt[q]}, v{P+q}")
        for q in range(2):
            a(f"v_mov_b32 v{P+q}, v{tt[q]}")
        a("s_nop 0")
        for q in range(2):
            a(f"v_permlane32_swap_b32 v{tt[q]}, v{P+q}")
        for q in range(2):
            a(f"v_min_f32 v{NM[q]}, -v{tt[q]}, -v{P+q}")
        for q in range(2):
            a(f"v_mov_b32 v{NM[q]+1}, v{NM[q]}")
        for q in range(2):
            for i in range(2, 16, 2):
                a(f"v_pk_mov_b32 {vr(NM[q]+i,2)}, {vr(NM[q],2)}, {vr(NM[q],2)}")

    older, join = a.label("older"), a.label("join")
    a("s_cmp_eq_u32 s27, 0")
    a(f"s_cbranch_scc1 {older}")
    dma(0, 2)
    dma(4, 6)
    a("s_waitcnt vmcnt(6)")
    a("s_barrier")
    stamp(a, SB + 2)
    qk_loads()
    dma(16, 8)
    a("s_waitcnt vmcnt(11)")
    a("s_barrier")
    dma(32, 16)
    a("s_waitcnt vmcnt(24)")
    standin()
    F, G_, vS, vR, vC = V_TF, V_TF + 32, V_TF + 48, V_TF + 49, V_TF + 52
    CSA = XB + 10240
    CNT = XB + 9216
    a.c("L2 prefetch: this wave's share of gate/up (2 x 8 KB) and wo (8 KB)")
    a(f"s_mul_i32 s50, s{S_IDX}, {WNT_G // 4}")
    a(f"s_and_b32 s23, s{S_XCD}, 1")
    a(f"s_mul_i32 s23, s23, {8*WNT_G}")
    a("s_add_u32 s50, s50, s23")
    a("s_lshl_b32 s23, s26, 14")
    a("s_add_u32 s50, s50, s23")
    a(f"s_add_u32 s50, s50, {WS_WGU:#x}")
    a(f"s_lshl_b32 s51, s{S_IDX}, 14")
    a("s_and_b32 s23, s26, 1")
    a("s_lshl_b32 s23, s23, 13")
    a("s_add_u32 s51, s51, s23")
    a(f"s_add_u32 s51, s51, {WS_WO:#x}")
    a(f"s_mov_b32 s39, {SPIN_MAX}")
    second, both = a.label("second"), a.label("both")
    a(f"s_cmp_lg_u32 s{S_IT}, 0")
    a(f"s_cbranch_scc1 {second}")
    a.c("re-tiling task: 128 rows x two 64-column strips; this wave takes 32 rows")
    def by_type(fq, fg, fo, fd):
        l_gu, l_o, l_d, l_go = [a.label(x) for x in ("gu", "o", "d", "go")]
        a("s_cmp_ge_u32 s2, 176")
        a(f"s_cbranch_scc1 {l_d}")
        a("s_cmp_ge_u32 s2, 160")
        a(f"s_cbranch_scc1 {l_o}")
        a("s_cmp_ge_u32 s2, 48")
        a(f"s_cbranch_scc1 {l_gu}")
        fq()
        a(f"s_branch {l_go}")
        a(f"{l_gu}:")
        fg()
        a(f"s_branch {l_go}")
        a(f"{l_o}:")
        fo()
        a(f"s_branch {l_go}")
        a(f"{l_d}:")
        fd()
        a(f"{l_go}:")
    def src(lo0, lo1, nbytes, first, stride, kq_low):
        def f():
            srd(a, 80, lo0, lo0 + 1, nbytes)
            srd(a, 84, lo1, lo1 + 1, nbytes)
            a(f"s_sub_u32 s55, s2, {first}")
            a(f"s_and_b32 s{79 if kq_low else 91}, s55, 3")
            a(f"s_lshr_b32 s{91 if kq_low else 79}, s55, 2")
            a(f"s_mov_b32 s88, {stride}")
            a(f"s_lshl_b32 s89, s91, {8 if lo0 == lo1 else 7}")
            a(f"s_add_u32 s90, s89, {128 if lo0 == lo1 else 0}")
        return f
    by_type(src(66, 66, 512 * 1536 * 2, 0, 3072, True), src(72, 74, 512 * 1792 * 2, 48, 3584, True),
            src(68, 68, 512 * 512 * 2, 160, 1024, False), src(76, 76, 1792 * 512 * 2, 176, 1024, False))
    a("s_lshl2_add_u32 s92, s79, s26")
    a("s_lshl_b32 s62, s92, 5")
    a("s_mul_i32 s62, s62, s88")
    a("s_add_u32 s89, s89, s62")
    a("s_add_u32 s90, s90, s62")
    a("s_lshl_b32 s55, s88, 3")
    a(f"v_lshrrev_b32 v{vS}, 3, v0")
    a(f"v_mul_lo_u32 v{vS}, v{vS}, s88")
    a(f"v_and_b32 v{vR}, 7, v0")
    a(f"v_lshl_add_u32 v{vS}, v{vR}, 4, v{vS}")
    for g8 in range(4):
        for h in range(2):
            a(f"buffer_load_dwordx4 {vr(F+16*h+4*g8,4)}, v{vS}, s[{80+4*h}:{83+4*h}], s{89+h} offen")
            a(f"s_add_u32 s{89+h}, s{89+h}, s55")
    a("s_mov_b32 s33, 1")
    a(f"s_mov_b32 s34, {NIT - env('ATT_G0', 4)}")
    a("s_waitcnt vmcnt(8)")
    a(f"s_branch {both}")
    a(f"{second}:")
    a("s_mov_b32 s33, 6")
    a(f"s_mov_b32 s34, {NIT - 1}")
    a("s_waitcnt vmcnt(0)")
    a(f"{both}:")
    a("s_barrier")
    a("s_setprio 1")
    a(f"ds_read_b128 {vr(KF[0],4)}, v{vK}")
    a(f"ds_read_b128 {vr(VF[0],4)}, v{vV}")
    a(f"ds_read_b128 {vr(VF[0]+4,4)}, v{vV} offset:512")
    a("s_waitcnt lgkmcnt(0)")
    a(f"{MFMA} {vr(S[0],16)}, {vr(KF[0],4)}, {vr(Q[0],4)}, {vr(NM[0],16)}")
    a("s_nop 10")
    a(f"s_branch {join}")
    a(f"{older}:")
    qk_loads()
    a("s_waitcnt vmcnt(0)")
    standin()
    a(f"{MFMA} {vr(S[0],16)}, {vr(KF[1],4)}, {vr(Q[0],4)}, {vr(NM[0],16)}")
    a("s_barrier")
    stamp(a, SB + 2)
    a(f"ds_read_b128 {vr(VF[0],4)}, v{vV}")
    a(f"ds_read_b128 {vr(VF[0]+4,4)}, v{vV} offset:512")
    for i in range(0, 4, 2):
        a(f"v_pk_mov_b32 {vr(KF[0]+i,2)}, {vr(KF[1]+i,2)}, {vr(KF[1]+i,2)} op_sel:[0,1]")
    a("s_waitcnt lgkmcnt(0)")
    a("s_nop 5")
    a(f"{join}:")
    a(f"s_mov_b32 s31, {NIT}")
    stamp(a, SB + 3)
    lp, hook, back, hp, exitc = [a.label(x) for x in ("attn", "hook", "back", "hookp", "exitc")]
    a(f"{lp}:")
    order = os.environ.get("ATT_ORD", "E0 E1 P1 RK D E2 E3 E4 W QK R0 E5 E6 E7 E8 E9 E10 P0 R1 S E11 E12 E13 A E14 E15").split()
    for u in range(U):
        for q in range(2):
            c = S[q]
            for tok in order:
                if tok[0] == "E":
                    i = int(tok[1:]); a(f"v_exp_f32 v{c+i}, v{c+i}")
                elif tok[0] == "C":
                    j = int(tok[1:]); a(f"v_cvt_pk_bf16_f32 v{P+j}, v{c+2*j}, v{c+2*j+1}")
                elif tok == "P1":
                    pv = VF[(u + 1) & 1] if q == 0 else VF[u & 1]
                    a(f"{SMF} {vr(O[q^1],16)}, {vr(pv+4,4)}, {vr(S[q^1]+8,8)}, v{vIx}")
                elif tok == "P0":
                    a(f"{SMF} {vr(O[q],16)}, {vr(VF[u&1],4)}, {vr(S[q],8)}, v{vIx}")
                elif tok == "QK":
                    k_ = KF[u & 1] if q == 0 else KF[(u + 1) & 1]
                    a(f"{MFMA} {vr(S[q^1],16)}, {vr(k_,4)}, {vr(Q[q^1],4)}, {vr(NM[q^1],16)}")
                elif tok == "W":
                    if q == 1:
                        a("s_waitcnt lgkmcnt(0)")
                elif tok == "RK":
                    if q == 0:
                        a(f"ds_read_b128 {vr(KF[(u+1)&1],4)}, v{vK} offset:{(u+1)*1024}")
                elif tok == "R0":
                    if q == 0:
                        a(f"ds_read_b128 {vr(VF[(u+1)&1],4)}, v{vV} offset:{(u+1)*1024}")
                elif tok == "R1":
                    if q == 0:
                        a(f"ds_read_b128 {vr(VF[(u+1)&1]+4,4)}, v{vV} offset:{(u+1)*1024+512}")
                elif tok == "A":
                    if u == U - 1 and q == 1:
                        a(f"v_add_u32 v{vK}, {U*1024}, v{vK}")
                        a(f"v_add_u32 v{vV}, v{vInc}, v{vV}")
                elif tok == "D":
                    if 2 * u + q == env("ATT_PU", 1):
                        sk = a.label("keep")
                        a("s_cmp_lg_u32 s31, s32")
                        a(f"s_cbranch_scc1 {sk}")
                        a("s_setprio 0")
                        a(f"{sk}:")
                elif tok == "S":
                    if u == U - 1 and q == 1:
                        a("s_sub_u32 s31, s31, 1")
                        a("s_cmp_lg_u32 s31, s34")
    if "S" not in order:
        a("s_sub_u32 s31, s31, 1")
        a("s_cmp_lg_u32 s31, s34")
    a(f"s_cbranch_scc1 {lp}")
    a("s_cmp_lg_u32 s31, 0")
    a(f"s_cbranch_scc1 {hook}")
    a(f"{exitc}:")
    a("s_cmp_lg_u32 s33, 0")
    a(f"s_cbranch_scc1 {hp}")
    a("s_setprio 0")
    a(f"{SMF} {vr(O[1],16)}, {vr(VF[1]+4,4)}, {vr(S[1]+8,8)}, v{vIx}")
    stamp(a, SB + 4)
    a(f"ds_write_b128 v{vPA}, {vr(O[0],4)}")
    a(f"ds_write_b128 v{vPA}, {vr(O[0]+4,4)} offset:1024")
    a(f"ds_write_b32 v{vPA+2}, v{O[0]+8} offset:2048")
    a("s_lshl_b32 s22, s20, 15")
    a("s_lshl_b32 s23, s19, 10")
    a("s_add_u32 s22, s22, s23")
    a(f"s_add_u32 s22, s22, s{S_BASE}")
    a(f"s_add_u32 s22, s22, {B_O:#x}")
    a(f"s_lshl_b32 s{S_SIG}, s20, 8")
    a(f"s_add_u32 s{S_SIG}, s{S_SIG}, s{S_FL}")
    a(f"s_add_u32 s{S_SIG}, s{S_SIG}, {FL_A:#x}")
    a("s_waitcnt vmcnt(0) lgkmcnt(0)")
    a("s_barrier")
    a(f"ds_read_b32 v{S[0]+8}, v{vPP+2} offset:2048")
    a(f"ds_read_b128 {vr(S[0],4)}, v{vPP}")
    a(f"ds_read_b128 {vr(S[0]+4,4)}, v{vPP} offset:1024")
    OO = O[1]
    a("s_waitcnt lgkmcnt(2)")
    a(f"v_add_f32 v{OO+8}, v{OO+8}, v{S[0]+8}")
    a(f"v_rcp_f32 v{t0}, v{OO+8}")
    for i in range(0, 8, 2):
        if i % 4 == 0:
            a(f"s_waitcnt lgkmcnt({1 - i // 4})")
        a(f"v_pk_add_f32 {vr(OO+i,2)}, {vr(OO+i,2)}, {vr(S[0]+i,2)}")
    fin, fb, endl = a.label("fin"), a.label("fallback"), a.label("att_end")
    a(f"v_pk_add_f32 {vr(S[0],2)}, {vr(OO,2)}, {vr(OO+2,2)}")
    a(f"v_pk_add_f32 {vr(S[0]+2,2)}, {vr(OO+4,2)}, {vr(OO+6,2)}")
    a(f"v_pk_add_f32 {vr(S[0],2)}, {vr(S[0],2)}, {vr(S[0]+2,2)}")
    a(f"v_add_f32 v{t1}, v{S[0]}, v{S[0]+1}")
    a(f"v_fma_f32 v{t1}, 0, v{t1}, v{OO+8}")
    a(f"v_cmp_ngt_f32 vcc, {f32bits(2.0**64):#x}, v{t1}")
    a("s_nop 0")
    a(f"s_cbranch_vccnz {fb}")
    a(f"{fin}:")
    assert t0 % 2 == 0
    for i in range(0, 8, 2):
        a(f"v_pk_mul_f32 {vr(OO+i,2)}, {vr(OO+i,2)}, {vr(t0,2)} op_sel_hi:[1,0]")
    for i in range(4):
        a(f"v_cvt_pk_bf16_f32 v{P+i}, v{OO+2*i}, v{OO+2*i+1}")
    a(f"buffer_store_dwordx4 {vr(P,4)}, v{V_L16}, s[4:7], s22 offen{SC}")
    a("s_barrier")
    stamp(a, SB + 5)
    a(f"s_branch {endl}")
    a(f"{back}:")
    a("s_cmp_lg_u32 s31, 0")
    a(f"s_cbranch_scc1 {lp}")
    a("s_sub_u32 s39, s39, 1")
    a("s_cmp_eq_u32 s39, 0")
    a("s_cselect_b32 s33, 0, s33")
    a(f"s_branch {exitc}")
    a(f"{hook}:")
    a("s_cmp_eq_u32 s27, 0")
    a(f"s_cbranch_scc0 {hp}")
    a("s_barrier")
    a("s_mov_b32 s34, s33")
    a("s_mov_b32 s33, 0")
    a(f"s_add_u32 s23, s34, s{S_IT}")
    a("s_cmp_lg_u32 s23, 0")
    a(f"s_cbranch_scc1 {back}")
    a.c("residual tile of x for the first output projection")
    row_offset(a, V_TF, V_TF + 1)
    a(f"s_and_b32 s23, s{S_WAVE}, 1")
    a(f"s_add_u32 s23, s23, s{S_TT64}")
    a("s_lshl_b32 s23, s23, 15")
    a(f"s_lshl_b32 s24, s{S_NT64}, 1")
    a(f"s_lshr_b32 s25, s{S_WAVE}, 1")
    a("s_add_u32 s24, s24, s25")
    a("s_lshl_b32 s24, s24, 6")
    a("s_add_u32 s23, s23, s24")
    a(f"buffer_load_dwordx4 {vr(V_RES,4)}, v{V_TF}, s[8:11], s23 offen")
    a("s_add_u32 s24, s23, 16384")
    a(f"buffer_load_dwordx4 {vr(V_RES+4,4)}, v{V_TF}, s[8:11], s24 offen")
    a(f"s_branch {back}")
    a(f"{hp}:")
    hs = [a.label(f"hs{i}") for i in range(8)]
    for i in (1, 2, 3, 4, 5, 6):
        a(f"s_cmp_eq_u32 s33, {i}")
        a(f"s_cbranch_scc1 {hs[i]}")
    HS = -9
    def goto(step, gap):
        a(f"s_mov_b32 s33, {step}")
        a(f"s_max_u32 s34, s34, {gap}")
        a(f"s_sub_u32 s34, s34, {gap}")
        a(f"s_branch {back}")
    def next_step(i):
        goto(i + 1, env(f"ATT_G{i}", 3))
    a.c("fetch the last rounds of the down weights into free registers")
    a(f"s_mul_i32 s23, s{S_NT64}, {224*1024}")
    a("s_lshl_b32 s62, s26, 12")
    a("s_add_u32 s23, s23, s62")
    a(f"s_add_u32 s23, s23, {WS_WD + (14 - NPRE)*RB:#x}")
    assert VS + (14 - NPRE) * 16 >= V_TF
    for k in range(NPRE):
        for i in range(4):
            a(f"buffer_load_dwordx4 {vr(VS + (14-NPRE+k)*16 + 4*i, 4)}, v{V_L16}, s[4:7], s23 offen offset:{i*1024}{SC}")
        a(f"s_add_u32 s23, s23, {RB}")
    a("s_mov_b32 s33, 0")
    a("s_mov_b32 s34, 0")
    a(f"s_branch {back}")
    a(f"{hs[1]}:")
    nost = a.label("nostore")
    a("s_cmp_ge_u32 s2, 232")
    a(f"s_cbranch_scc1 {nost}")
    dests, strides = (96, 97, 100, 101), (80, 81, 82, 83)
    vO = vC + 8
    a(f"v_mov_b32 v{vO}, v{V_L16}")
    def plain(d1, delta, stride, cs):
        a("s_add_u32 s97, s96, 1024")
        a(f"s_add_u32 s100, s96, {d1}")
        a(f"s_add_u32 s101, s96, {d1 + 1024}")
        a(f"s_mov_b32 s93, {delta}")
        for e in strides:
            a(f"s_mov_b32 s{e}, {stride}")
        a(f"s_mov_b32 s63, {cs}")
    def dq():
        a("s_and_b32 s62, s91, 3")
        a(f"s_mul_i32 s96, s62, {4*WNT_Q}")
        a("s_lshr_b32 s62, s91, 2")
        a("s_lshr_b32 s78, s62, 1")
        a("s_lshl_b32 s62, s62, 11")
        a("s_add_u32 s96, s96, s62")
        assert WS_WQKV == 0
        plain(WNT_Q, 2 * WNT_Q, 6144, 1)
    def dg():
        a("s_lshl_b32 s55, s91, 2")
        for d, e in zip(dests, strides):
            a("s_mul_i32 s62, s55, 9363")
            a("s_lshr_b32 s62, s62, 16")
            a(f"s_mul_i32 s{d}, s62, {WNT_G}")
            a("s_mul_i32 s62, s62, 7")
            a("s_sub_u32 s62, s55, s62")
            pass_of(a, 62, 78, e)
            a(f"s_lshl_b32 s{e}, s{e}, 11")
            a("s_lshl4_add_u32 s62, s78, s62")
            a("s_lshl_b32 s62, s62, 11")
            a(f"s_add_u32 s{d}, s{d}, s62")
            a(f"s_add_u32 s{d}, s{d}, {WS_WGU:#x}")
            a("s_add_u32 s55, s55, 1")
        a("s_mov_b32 s93, 1024")
        a("s_mov_b32 s63, 1")
        a("s_mov_b32 s78, 1")
    def do():
        a("s_lshl_b32 s96, s91, 17")
        a(f"s_add_u32 s96, s96, {WS_WO:#x}")
        plain(2048, 64 * 1024, 4096, 0)
        a("s_mov_b32 s78, 0")
    def dd():
        a(f"s_mul_i32 s96, s91, {2*224*1024}")
        a(f"s_add_u32 s96, s96, {WS_WD:#x}")
        plain(2048, 224 * 1024, 0, 0)
        for d, inc in ((84, 0), (85, 1)):
            a("s_lshl_b32 s62, s92, 1")
            a(f"s_add_u32 s62, s62, {inc}")
            a("s_mul_i32 s54, s62, 9363")
            a("s_lshr_b32 s54, s54, 16")
            a("s_mul_i32 s55, s54, 7")
            a("s_sub_u32 s55, s62, s55")
            pass_of(a, 55, 78, 49)
            a("s_mul_i32 s54, s54, s49")
            a("s_mul_i32 s78, s78, 15")
            a("s_add_u32 s54, s54, s78")
            a("s_add_u32 s54, s54, s55")
            a("s_lshr_b32 s55, s54, 1")
            a("s_lshl_b32 s55, s55, 12")
            a("s_and_b32 s54, s54, 1")
            a("s_lshl_b32 s54, s54, 9")
            a(f"s_add_u32 s{d}, s54, s55")
        a("v_cmp_gt_u32 vcc, 32, v0")
        a(f"v_mov_b32 v{vC}, s84")
        a(f"v_mov_b32 v{vC+1}, s85")
        a(f"v_cndmask_b32 v{vC}, v{vC+1}, v{vC}, vcc")
        a(f"v_and_b32 v{vO}, 0x1ff, v{V_L16}")
        a(f"v_add_u32 v{vO}, v{vO}, v{vC}")
        a("s_mov_b32 s78, 0")
    by_type(dq, dg, do, dd)
    a("s_lshl_b32 s62, s26, 12")
    a(f"s_add_u32 s62, s62, {XB + 12288}")
    a(f"v_add_u32 v{vS}, s62, v{V_L16}")
    a(f"v_and_b32 v{vC}, 1, v0")
    a(f"v_bfe_u32 v{vC+1}, v0, 1, 1")
    a(f"v_lshl_add_u32 v{vC}, v{vC}, 1, v{vC+1}")
    a(f"v_and_b32 v{vC+1}, 3, v0")
    a(f"v_lshlrev_b32 v{vC+1}, 1, v{vC+1}")
    a("s_cmp_eq_u32 s78, 0")
    a("s_cselect_b64 vcc, -1, 0")
    a("s_cselect_b32 s55, 8, 32")
    a(f"v_lshrrev_b32 v{vR}, 4, v0")
    a(f"v_cndmask_b32 v{vC}, v{vC}, v{vC+1}, vcc")
    a(f"v_bfe_u32 v{vC+1}, v0, 2, 2")
    a(f"v_lshl_add_u32 v{vR}, v{vR}, 3, v{vC+1}")
    a(f"v_lshlrev_b32 v{vR}, 7, v{vR}")
    a(f"v_lshl_add_u32 v{vR}, v{vC}, 3, v{vR}")
    a(f"v_add_u32 v{vR}, s62, v{vR}")
    a(f"v_add_u32 v{vR+1}, s55, v{vR}")
    a("s_mov_b32 s49, 0x3f803f80")
    a("s_waitcnt vmcnt(0)")
    for h in range(2):
        dst = G_ if h == 0 else F
        for g8 in range(4):
            a(f"ds_write_b128 v{vS}, {vr(F+16*h+4*g8,4)} offset:{g8*1024}")
        for e in range(4):
            for jj in range(2):
                a(f"ds_read_b64_tr_b16 {vr(dst+4*e+2*jj,2)}, v{vR + (e&1)} offset:{(e>>1)*64 + jj*512}")
        a("s_waitcnt lgkmcnt(0)")
        for e in range(4):
            a(f"s_mul_i32 s62, s92, s{strides[e]}")
            a(f"s_add_u32 s62, s62, s{dests[e]}")
            if h:
                a("s_add_u32 s62, s62, s93")
            a(f"buffer_store_dwordx4 {vr(dst+4*e,4)}, v{vO}, s[4:7], s62 offen{SC}")
    a("s_cmp_eq_u32 s63, 0")
    a(f"s_cbranch_scc1 {nost}")
    for k in range(4):
        for h in range(2):
            for e in range(4):
                c, x = vC + 4 * h + e, (G_ if h == 0 else F) + 4 * e + k
                if k == 0:
                    a(f"v_dot2_f32_bf16 v{c}, v{x}, s49, 0")
                else:
                    a(f"v_dot2_f32_bf16 v{c}, v{x}, s49, v{c}")
    a("s_lshl_b32 s62, s26, 9")
    a(f"v_add_u32 v{vS}, s62, v{V_L4}")
    a(f"v_mov_b32 v{vR}, 1")
    a(f"v_mov_b32 v{vR+1}, {CNT}")
    for h in range(2):
        for e in range(2):
            a(f"v_permlane32_swap_b32 v{vC+4*h+e}, v{vC+4*h+e+2}")
    for h in range(2):
        for e in range(2):
            a(f"v_add_f32 v{vC+4*h+e}, v{vC+4*h+e}, v{vC+4*h+e+2}")
    a("s_nop 0")
    for h in range(2):
        a(f"v_permlane16_swap_b32 v{vC+4*h}, v{vC+4*h+1}")
    for h in range(2):
        a(f"v_add_f32 v{vC+4*h}, v{vC+4*h}, v{vC+4*h+1}")
    for h in range(2):
        a(f"ds_write_b32 v{vS}, v{vC+4*h} offset:{CSA + h*256}")
    a("s_mov_b64 exec, 1")
    a(f"ds_add_rtn_u32 v{vR+2}, v{vR+1}, v{vR}")
    a("s_mov_b64 exec, -1")
    a("s_waitcnt lgkmcnt(0)")
    a(f"v_readfirstlane_b32 s62, v{vR+2}")
    a("s_nop 0")
    a("s_cmp_lg_u32 s62, 3")
    a(f"s_cbranch_scc1 {nost}")
    a.c("last of the four waves: write the column-sum pieces")
    for w in range(4):
        for h in range(2):
            a(f"ds_read_b32 v{F+16+2*w+h}, v{V_L4} offset:{CSA + w*512 + h*256}")
    a(f"v_and_b32 v{vS}, 0xff, v{V_L16}")
    for e in range(4):
        a(f"s_lshl4_add_u32 s62, s{strides[e]}, s{dests[e]}")
        a(f"s_mov_b32 exec_lo, {(0xffff << (16*e)) & 0xffffffff if e < 2 else 0:#x}")
        a(f"s_mov_b32 exec_hi, {(0xffff << (16*(e-2))) if e >= 2 else 0:#x}")
        a(f"v_add_u32 v{vS}, s62, v{vS}")
    a("s_mov_b64 exec, -1")
    a("s_lshl_b32 s92, s79, 8")
    a("s_add_u32 s62, s92, s93")
    a("s_waitcnt lgkmcnt(0)")
    for h in range(2):
        c, o = F + 16 + h, F + 24 + 4 * h
        for w in range(1, 4):
            a(f"v_add_f32 v{c}, v{c}, v{c+2*w}")
        a(f"v_cvt_pk_bf16_f32 v{o}, v{c}, v{c}")
        a(f"v_lshlrev_b32 v{o}, 16, v{o}")
        a(f"v_sub_f32 v{o}, v{c}, v{o}")
        a(f"v_cvt_pk_bf16_f32 v{o}, v{c}, v{o}")
        a(f"v_mov_b32 v{o+1}, v{o}")
        a(f"v_mov_b32 v{o+2}, 0")
        a(f"v_mov_b32 v{o+3}, 0")
        a(f"buffer_store_dwordx4 {vr(o,4)}, v{vS}, s[4:7], s{(92, 62)[h]} offen{SC}")
    a(f"{nost}:")
    next_step(1)
    a(f"{hs[2]}:")
    if 2 - HS in (0, 1):
        stamp(a, 2 * (2 - HS))
    nsig = a.label("nosig")
    a(f"v_mov_b32 v{vR}, 1")
    a(f"v_mov_b32 v{vR+1}, {CNT + 4}")
    a("s_waitcnt vmcnt(0)")
    a("s_mov_b64 exec, 1")
    a(f"ds_add_rtn_u32 v{vR+2}, v{vR+1}, v{vR}")
    a("s_mov_b64 exec, -1")
    a("s_and_b32 s23, s2, 15")
    a("s_lshl_b32 s23, s23, 8")
    a(f"s_add_u32 s23, s23, {FL_W:#x}")
    a("s_mov_b32 s38, 1")
    a("s_waitcnt lgkmcnt(0)")
    a(f"v_readfirstlane_b32 s62, v{vR+2}")
    a("s_nop 0")
    a("s_cmp_lg_u32 s62, 3")
    a(f"s_cbranch_scc1 {nsig}")
    a("s_atomic_add s38, s[14:15], s23")
    a(f"{nsig}:")
    if env("WARM", 1):
        a.c("pull the rest of the code into L2 and touch every workspace page once")
        here = a.label("here")
        a("s_getpc_b64 s[98:99]")
        a(f"{here}:")
        a("s_lshl_b32 s62, s26, 13")
        a(f"v_add_u32 v{vC}, s62, v{V_L128}")
        a(f"v_min_u32 v{vC}, {code_end} - {here}, v{vC}")
        a(f"v_lshlrev_b32 v{vC+1}, 20, v0")
        a(f"global_load_dword v{V_PF}, v{vC}, s[98:99]")
        a(f"buffer_load_dword v{V_PF}, v{vC+1}, s[4:7], 0 offen sc1")
    next_step(2)
    a(f"{hs[3]}:")
    a.c("the re-tiled weights are complete once all 16 arrival counters are")
    a(f"s_cmp_lg_u32 s{S_WAVE}, 4")
    a(f"s_cbranch_scc1 {hs[5]}")
    ask = a.label("ask")
    a(f"{ask}:")
    a(f"v_and_b32 v{vS}, 15, v0")
    a(f"v_lshlrev_b32 v{vS}, 8, v{vS}")
    a(f"s_mov_b32 s23, {WS_FLAG + FL_W:#x}")
    a(f"buffer_load_dword v{vR}, v{vS}, s[4:7], s23 offen sc1")
    goto(4, 1)
    a(f"{hs[4]}:")
    a("s_waitcnt vmcnt(0)")
    a(f"v_cmp_gt_u32 vcc, 16, v{vR}")
    a(f"v_mov_b32 v{vS}, {CNT + 8}")
    a(f"s_cbranch_vccnz {ask}")
    a(f"ds_write_b32 v{vS}, v{vS}")
    a(f"s_branch {hs[6]}")
    a(f"{hs[5]}:")
    a(f"v_mov_b32 v{vS}, {CNT + 8}")
    a(f"ds_read_b32 v{vR}, v{vS}")
    a("s_waitcnt lgkmcnt(0)")
    a(f"v_cmp_eq_u32 vcc, 0, v{vR}")
    a("s_nop 0")
    a(f"s_cbranch_vccz {hs[6]}")
    goto(5, 1)
    a(f"{hs[6]}:")
    a("s_add_u32 s23, s50, 8192")
    a(f"buffer_load_dword v{V_PF}, v{V_L128}, s[4:7], s51 offen{SC}")
    a(f"buffer_load_dword v{V_PF}, v{V_L128}, s[4:7], s50 offen{SC}")
    a(f"buffer_load_dword v{V_PF}, v{V_L128}, s[4:7], s23 offen{SC}")
    goto(7, env("ATT_G6", 2))
    a(f"{fb}:")
    a(f"v_add_u32 v{vK}, {KB}, v{vKp}")
    a(f"v_mov_b32 v{t0}, 0xff800000")
    a("s_mov_b32 s31, 64")
    lp2 = a.label("maxl")
    a(f"{lp2}:")
    a(f"ds_read_b128 {vr(KF[0],4)}, v{vK}")
    a(f"v_add_u32 v{vK}, 1024, v{vK}")
    a("s_waitcnt lgkmcnt(0)")
    a(f"{MFMA} {vr(S[0],16)}, {vr(KF[0],4)}, {vr(Q[1],4)}, 0")
    a("s_nop 15")
    for i in range(0, 16, 2):
        a(f"v_max3_f32 v{t0}, v{t0}, v{S[0]+i}, v{S[0]+i+1}")
    a("s_sub_u32 s31, s31, 1")
    a("s_cmp_lg_u32 s31, 0")
    a(f"s_cbranch_scc1 {lp2}")
    a(f"v_mov_b32 v{t1}, v{t0}")
    a("s_nop 1")
    a(f"v_permlane32_swap_b32 v{t0}, v{t1}")
    a("s_nop 1")
    a(f"v_max_f32 v{t0}, v{t0}, v{t1}")
    for i in range(16):
        a(f"v_sub_f32 v{NM[0]+i}, 0, v{t0}")
        a(f"v_mov_b32 v{OO+i}, 0")
    a(f"v_add_u32 v{vK}, {KB}, v{vKp}")
    a(f"v_mov_b32 v{vV}, v{vV0}")
    a(f"v_lshrrev_b32 v{vInc}, {U.bit_length()-1}, v{vInc}")
    a("s_mov_b32 s31, 64")
    lp3 = a.label("pass2")
    a(f"{lp3}:")
    a(f"ds_read_b128 {vr(KF[0],4)}, v{vK}")
    a(f"ds_read_b128 {vr(VF[0],4)}, v{vV}")
    a(f"ds_read_b128 {vr(VF[0]+4,4)}, v{vV} offset:512")
    a(f"v_add_u32 v{vK}, 1024, v{vK}")
    a(f"v_add_u32 v{vV}, v{vInc}, v{vV}")
    a("s_waitcnt lgkmcnt(0)")
    a(f"{MFMA} {vr(S[0],16)}, {vr(KF[0],4)}, {vr(Q[1],4)}, {vr(NM[0],16)}")
    a("s_nop 15")
    for i in range(16):
        a(f"v_exp_f32 v{S[0]+i}, v{S[0]+i}")
    a("s_nop 2")
    a(f"{SMF} {vr(OO,16)}, {vr(VF[0],4)}, {vr(S[0],8)}, v{vIx}")
    a(f"{SMF} {vr(OO,16)}, {vr(VF[0]+4,4)}, {vr(S[0]+8,8)}, v{vIx}")
    a("s_sub_u32 s31, s31, 1")
    a("s_cmp_lg_u32 s31, 0")
    a("s_nop 7")
    a(f"s_cbranch_scc1 {lp3}")
    a("s_nop 15")
    a(f"v_rcp_f32 v{t0}, v{OO+8}")
    a("s_nop 0")
    a(f"s_branch {fin}")
    a(f"{endl}:")
    return R.n


def gen_main(a):
    name = NAME + "_kernel"
    kernel_header(a, name)
    done = a.label("done")
    a("s_cmp_ge_u32 s2, 256")
    a(f"s_cbranch_scc1 {done}")
    if env("FIXT", 0):
        a("s_memrealtime s[56:57]")
    a(f"s_load_dwordx4 s[64:67], s[0:1], {KA_X}")
    a.c("pull the first 8 KB of code into L2 (one 128-byte line per 8 lanes of the workgroup)")
    a("s_getpc_b64 s[98:99]")
    a(f"v_lshlrev_b32 v{V_FREE}, 4, v0")
    a(f"global_load_dword v{V_PF}, v{V_FREE}, s[98:99]")
    a(f"s_and_b32 s{S_XCD}, s2, 7")
    FMX = env("FMX", 4)
    lg = {8: 2, 4: 3, 2: 4}[FMX]
    a(f"s_bfe_u32 s19, s2, {(lg << 16) | 3:#x}")
    a(f"s_lshr_b32 s24, s{S_XCD}, {lg - 2}")
    a(f"s_lshl{lg}_add_u32 s19, s24, s19")
    a("v_lshrrev_b32 v1, 6, v0")
    a("v_and_b32 v0, 63, v0")
    a(f"v_lshlrev_b32 v{V_L16}, 4, v0")
    a(f"v_lshl_add_u32 v{V_FREE}, s19, 3, v1")
    a(f"v_lshl_add_u32 v{V_FREE}, v{V_FREE}, 13, v{V_L16}")
    a("s_waitcnt lgkmcnt(0)")
    a("s_add_u32 s20, s64, 4096")
    a("s_addc_u32 s21, s65, 0")
    for r in range(8):
        a(f"global_load_dwordx4 {vr(V_FREE+4+4*r,4)}, v{V_FREE}, s[20:21] offset:{r*1024-4096}")
    a(f"s_load_dwordx2 s[68:69], s[0:1], {KA_WO}")
    a(f"s_load_dwordx4 s[72:75], s[0:1], {KA_WG}")
    a(f"s_load_dwordx2 s[76:77], s[0:1], {KA_WD}")
    a(f"s_load_dwordx2 s[70:71], s[0:1], {KA_OUT}")
    a(f"s_load_dwordx2 s[94:95], s[0:1], {KA_DBG}")
    a(f"s_load_dwordx2 s[12:13], s[0:1], {KA_WS}")
    a(f"v_readfirstlane_b32 s{S_WAVE}, v1")
    a(f"v_lshlrev_b32 v{V_L128}, 7, v0")
    a(f"s_lshr_b32 s{S_IDX}, s2, 3")
    srd(a, 20, 66, 67, 512 * 1536 * 2)
    if env("TOUCH", 1):
        a.c("cooperative first touch of this die's wqkv columns: two rows per wave")
        nl = FMX
        a(f"s_lshl3_add_u32 s27, s{S_IDX}, s{S_WAVE}")
        a("s_mul_i32 s27, s27, 6144")
        a(f"s_and_b32 s26, s{S_XCD}, {8 // FMX - 1}")
        a(f"s_mul_i32 s26, s26, {nl * 128}")
        a("s_add_u32 s27, s27, s26")
        a(f"v_lshrrev_b32 v{V_FREE+1}, {5 - lg}, v0")
        a(f"v_and_b32 v{V_FREE+2}, {nl - 1}, v0")
        a(f"v_lshlrev_b32 v{V_FREE+1}, 10, v{V_FREE+1}")
        a(f"v_lshl_add_u32 v{V_FREE+1}, v{V_FREE+2}, 7, v{V_FREE+1}")
        m = (1 << (6 * nl)) - 1
        a(f"s_mov_b32 exec_lo, {m & 0xffffffff:#x}")
        a(f"s_mov_b32 exec_hi, {m >> 32:#x}")
        a(f"buffer_load_dword v{V_PF}, v{V_FREE+1}, s[20:23], s27 offen")
        a("s_mov_b64 exec, -1")
    a(f"s_lshl_b32 s{S_TT64}, s19, 1")
    a(f"s_and_b32 s26, s{S_XCD}, {8 // FMX - 1}")
    a(f"s_mul_i32 s26, s26, {FMX}")
    a(f"s_lshr_b32 s{S_NT64}, s{S_IDX}, {lg}")
    a(f"s_add_u32 s{S_NT64}, s{S_NT64}, s26")
    a(f"s_and_b32 s{S_TT128}, s{S_IDX}, 3")
    a(f"s_lshr_b32 s19, s{S_XCD}, 1")
    a("s_lshl_b32 s19, s19, 2")
    a(f"s_add_u32 s{S_TT128}, s{S_TT128}, s19")
    a(f"s_lshl_b32 s{S_TT128}, s{S_TT128}, 2")
    a(f"s_lshr_b32 s{S_NT128}, s{S_IDX}, 2")
    a(f"s_and_b32 s19, s{S_XCD}, 1")
    a("s_lshl_b32 s19, s19, 3")
    a(f"s_add_u32 s{S_NT128}, s{S_NT128}, s19")
    a(f"s_mov_b32 s{S_IT}, 0")
    a(f"s_mov_b32 s{S_BASE}, {WS_IT0:#x}")
    a(f"s_mov_b32 s{S_FL}, 0")
    a(f"s_mov_b32 s{S_SIG}, 0")
    a(f"v_and_b32 v{V_ST}, 15, v0")
    a(f"v_lshlrev_b32 v{V_ST}, 4, v{V_ST}")
    a(f"v_lshrrev_b32 v1, 4, v0")
    a(f"v_lshl_add_u32 v{V_ST}, v1, 2, v{V_ST}")
    a(f"v_lshlrev_b32 v{V_L4}, 2, v0")
    if STAMP:
        a(f"v_mov_b32 v{V_STAMP}, 0")
        a(f"v_mov_b32 v{V_STAMP+1}, 0")
    stamp(a, 31)
    att, fin = a.label("att"), a.label("fin")
    nv = [first_phase(a, att, done)]
    a(f"{att}:")
    a(f"s_and_b32 s{S_TT64}, s{S_IDX}, 3")
    a(f"s_lshl_b32 s19, s{S_XCD}, 2")
    a(f"s_add_u32 s{S_TT64}, s{S_TT64}, s19")
    a(f"s_lshl_b32 s{S_TT64}, s{S_TT64}, 1")
    a(f"s_lshr_b32 s{S_NT64}, s{S_IDX}, 2")
    if env("FIXT", 0) == 2:
        l_ = a.label("hold")
        a(f"{l_}:")
        a("s_memrealtime s[58:59]")
        a("s_waitcnt lgkmcnt(0)")
        a("s_sub_u32 s58, s58, s56")
        a("s_cmp_lt_u32 s58, 2000")
        a(f"s_cbranch_scc1 {l_}")
    nv.append(attn_phase(a, 5, done))
    if env("FIXT", 0) == 3:
        l_ = a.label("hold")
        a(f"{l_}:")
        a("s_memrealtime s[58:59]")
        a("s_waitcnt lgkmcnt(0)")
        a("s_sub_u32 s58, s58, s56")
        a("s_cmp_lt_u32 s58, 4000")
        a(f"s_cbranch_scc1 {l_}")

    S = Stream(a)
    if GMX == 4:
        a(f"s_mov_b32 s{S_TTG}, s{S_TT128}")
        a(f"s_mov_b32 s{S_NTG}, s{S_NT128}")
    else:
        a(f"s_and_b32 s{S_TTG}, s{S_IDX}, 1")
        a(f"s_lshl_b32 s19, s{S_XCD}, 1")
        a(f"s_add_u32 s{S_TTG}, s{S_TTG}, s19")
        a(f"s_lshl_b32 s{S_TTG}, s{S_TTG}, 2")
        a(f"s_lshr_b32 s{S_NTG}, s{S_IDX}, 1")
    nv.append(gemm_phase(a, Cfg(name="oproj", kind="res", LB=5 * RB, stream=S, PRE1=4, PRE3=1, RA=16, N1=2, BS=0, I0=8, LP=1,
                                STS=0, ABUF=B_O, WBASE=WS_WO, WNT=64 * 1024, OUT=B_X1, STOUT=B_ST1,
                                FIN=FL_A, lsig=True, NEED=32, FOUT=FL_O, final=False, sb=12)))
    nv.append(mlp_phase(a, Cfg(name="down", stream=S, OUT=B_XIN + IT_STRIDE, STOUT=B_STIN + IT_STRIDE, final=True, sb=22)))
    a(f"s_cmp_eq_u32 s{S_IT}, 1")
    a(f"s_cbranch_scc1 {fin}")
    a(f"s_mov_b32 s{S_IT}, 1")
    a(f"s_add_u32 s{S_BASE}, s{S_BASE}, {IT_STRIDE:#x}")
    a(f"s_add_u32 s{S_FL}, s{S_FL}, {FL_IT:#x}")
    nv.append(gemm_phase(a, Cfg(name="qkv", kind="qkv", LB=0, stream=None, RA=24, N1=2, BS=24, I0=12, LP=3, STS=30,
                                ABUF=B_XIN, WBASE=WS_WQKV, WNT=WNT_Q, STIN=B_STIN,
                                FIN=FL_D - FL_IT + (1 << 32), lsig=False, NEED=16, FOUT=FL_Q, sb=0)))
    a(f"s_branch {att}")
    a(f"{fin}:")
    if env("FIXT", 0) == 1:
        l_ = a.label("hold")
        a(f"{l_}:")
        a("s_memrealtime s[58:59]")
        a("s_waitcnt lgkmcnt(0)")
        a("s_sub_u32 s58, s58, s56")
        a("s_cmp_lt_u32 s58, 10000")
        a(f"s_cbranch_scc1 {l_}")
    if STAMP:
        a("s_waitcnt vmcnt(0)")
        a(f"s_mov_b32 s{S_IT}, 1")
        stamp(a, 31)
        stamp_flush(a)
        if env("DBGOUT", 0):
            nd = a.label("nodbg")
            a("s_lshl_b32 s54, s2, 3")
            a(f"s_add_u32 s54, s54, s{S_WAVE}")
            a(f"s_cmp_lg_u32 s54, {env('DBGOUT', 0)}")
            a(f"s_cbranch_scc1 {nd}")
            idx = [31, 8, 10, 13, 14, 18, 24, 33, 34, 40, 42, 45, 46, 50, 56, 63]
            a(f"v_readlane_b32 s55, v{V_STAMP}, 31")
            for i, k in enumerate(idx):
                a(f"v_readlane_b32 s54, v{V_STAMP}, {k}")
                a("s_nop 3")
                a("s_sub_u32 s54, s54, s55")
                a(f"v_writelane_b32 v{V_FREE}, s54, {i}")
            a("s_mov_b64 exec, 0xfffe")
            a(f"global_store_dword v{V_L4}, v{V_FREE}, s[94:95]")
            a(f"{nd}:")
    a(f"{done}:")
    a("s_endpgm")
    print("phase vgprs", nv, file=sys.stderr)
    nv.append(V_TF + 62)
    assert max(nv) <= 256
    return (name, max(nv), 256, 512, LDS_MAX)


HEADER = open("cdna_kernels/" + NAME + ".s.ref").read().split("; Override launch")[0]

def main(out):
    a = Asm()
    k, v, nwg, blk, lds = gen_main(a)
    txt = HEADER
    if env("ASLIST", 0):
        txt += f"; @launch kernel={k} grid=({nwg},1,1) block=({blk},1,1) lds={lds}\n"
    else:
        txt += f"; @launch grid=({nwg},1,1) block=({blk},1,1) lds={lds}\n"
    txt += '.amdgcn_target "amdgcn-amd-amdhsa--gfx950"\n.text\n'
    txt += a.text()
    txt += '.section .rodata,"a"\n'
    txt += kernel_desc(k, v, 102)
    print(f"{k}: vgpr={v} lds={lds}", file=sys.stderr)
    open(out, "w").write(txt)

if __name__ == "__main__":
    main(sys.argv[1] if len(sys.argv) > 1 else "v2.s")
```

```python
import sys, struct, math, os
from asmlib import *

NAME = "interleave_layers__mha_block__glu_gated_bilinear__prompt"
def env(k, d):
    return int(os.environ.get(k, d))

WS_WQKV = 0x000000
WS_WO   = 0x200000
WS_WGU  = 0x300000
WS_WD   = 0x700000
WS_FLAG = 0x8C0000
FL_IT = 0xC000
FL_Q, FL_W, FL_G, FL_T = 0x0, 0x1000, 0x4000, 0x8000
FL_A, FL_O, FL_D = FL_T, FL_T + 4, FL_T + 8
WS_IT0 = 0xA00000
IT_STRIDE = 0x1400000
B_Q, B_K, B_V, B_O, B_X1, B_XIN, B_H, B_ST1, B_STIN = (
    0x0, 0x200000, 0x400000, 0x600000, 0x800000, 0xA00000, 0xC00000, 0x1300000, 0x1340000)
WS_END = WS_IT0 + 2 * IT_STRIDE
WS_STAMP = WS_END
LDS_MAX = 160 * 1024

KA_X, KA_WQKV, KA_WO, KA_BX, KA_WG, KA_WU, KA_WD, KA_OUT, KA_DBG, KA_WS = [8 * i for i in range(10)]

def f32bits(x):
    return struct.unpack("<I", struct.pack("<f", x))[0]

QSCALE = 0.25 * math.log2(math.e)
MFMA = "v_mfma_f32_32x32x16_bf16"
SMF = "v_smfmac_f32_32x32x32_bf16"
M16 = "v_mfma_f32_16x16x32_bf16"
WNT_Q, WNT_G = 102 * 1024, 238 * 1024
STAMP = os.environ.get("STAMP", "") != ""
SC = " sc1"
SPIN_MAX = 1 << 18
PASSES = [int(x) for x in os.environ.get("PASSES", "4,2,1").split(",")]
PFIRST = [sum(PASSES[:p]) for p in range(len(PASSES))]
assert sum(PASSES) == 7

def tile_map(a, s_tt, s_nt, nm, nn, mx, tshift, tmp=19):
    nx = 8 // mx
    mper, nper = nm // mx, nn // nx
    assert mper * nper == 32
    lgm = mper.bit_length() - 1
    a(f"s_and_b32 s{s_tt}, s{S_IDX}, {mper - 1}")
    a(f"s_lshr_b32 s{tmp}, s{S_XCD}, {nx.bit_length() - 1}")
    a(f"s_lshl_b32 s{tmp}, s{tmp}, {lgm}")
    a(f"s_add_u32 s{s_tt}, s{s_tt}, s{tmp}")
    a(f"s_lshl_b32 s{s_tt}, s{s_tt}, {tshift}")
    a(f"s_lshr_b32 s{s_nt}, s{S_IDX}, {lgm}")
    if nx > 1:
        a(f"s_and_b32 s{tmp}, s{S_XCD}, {nx - 1}")
        a(f"s_mul_i32 s{tmp}, s{tmp}, {nper}")
        a(f"s_add_u32 s{s_nt}, s{s_nt}, s{tmp}")

def pass_of(a, si, sf, sw):
    a(f"s_mov_b32 s{sf}, 0")
    a(f"s_mov_b32 s{sw}, {PASSES[0]}")
    for p in range(1, len(PASSES)):
        a(f"s_cmp_ge_u32 s{si}, {PFIRST[p]}")
        a(f"s_cselect_b32 s{sf}, {PFIRST[p]}, s{sf}")
        a(f"s_cselect_b32 s{sw}, {PASSES[p]}, s{sw}")
GMX = env('GMX', 4)
RMX = env('RMX', 8)
PT = env('PT', 0)

def srd(a, d, lo, hi, nbytes):
    a(f"s_mov_b32 s{d}, s{lo}")
    a(f"s_and_b32 s{d+1}, s{hi}, 0xffff")
    a(f"s_mov_b32 s{d+2}, {nbytes:#x}")
    a(f"s_mov_b32 s{d+3}, 0x20000")

S_WAVE, S_XCD, S_IDX, S_IT, S_BASE, S_FL = 16, 17, 18, 40, 41, 42
S_TT64, S_NT64, S_TT128, S_NT128 = 43, 44, 45, 46
S_TTG, S_NTG, S_TCH = 68, 69, 47
S_ARR, S_SIG = 47, 48
LDS_CNT = LDS_MAX - 16
V_L16, V_ST, V_L4 = 2, 3, 1
V_RES = 4
V_STAMP = 12
V_P16 = 15
V_PF, V_L128 = 14, 15
V_FREE = 16

def stamp(a, i):
    if STAMP:
        a("s_memrealtime s[56:57]")
        a("s_memtime s[58:59]")
        a(f"s_lshl_b32 s60, s{S_IT}, 5")
        a(f"s_add_u32 s60, s60, {i}")
        a("s_waitcnt lgkmcnt(0)")
        a("s_mov_b32 s61, m0")
        a("s_mov_b32 m0, s60")
        a("s_nop 0")
        a(f"v_writelane_b32 v{V_STAMP}, s56, m0")
        a(f"v_writelane_b32 v{V_STAMP+1}, s58, m0")
        a("s_mov_b32 m0, s61")

def stamp_flush(a, which=0):
    if STAMP:
        a("s_lshl_b32 s60, s2, 3")
        a(f"s_add_u32 s60, s60, s{S_WAVE}")
        a("s_lshl_b32 s60, s60, 9")
        a(f"s_add_u32 s60, s60, {WS_STAMP + which*0x100000:#x}")
        a(f"s_mov_b32 s6, {WS_STAMP + 0x200000:#x}")
        a(f"buffer_store_dword v{V_STAMP}, v{V_L4}, s[4:7], s60 offen")
        a(f"buffer_store_dword v{V_STAMP+1}, v{V_L4}, s[4:7], s60 offen offset:256")

def handoff(a, soff, need):
    a("s_mov_b32 s38, 1")
    a(f"s_atomic_add s38, s[14:15], s{S_SIG}")
    if env("PD", 0):
        a("s_waitcnt lgkmcnt(0)")
    poll(a, soff, need)

def poll(a, soff, need):
    lp, ok = a.label("poll"), a.label("pok")
    a(f"s_mov_b32 s39, {SPIN_MAX}")
    a(f"{lp}:")
    a("s_mov_b32 s49, 0")
    a(f"s_atomic_add s49, s[14:15], s{soff} glc")
    a("s_sub_u32 s39, s39, 1")
    a("s_waitcnt lgkmcnt(0)")
    a(f"s_cmp_ge_u32 s49, {need}")
    a(f"s_cbranch_scc1 {ok}")
    if env("POLL_SLEEP", 1):
        a(f"s_sleep {env('POLL_SLEEP', 1)}")
    a("s_cmp_lg_u32 s39, 0")
    a(f"s_cbranch_scc1 {lp}")
    a(f"{ok}:")


V_TF = 176

def first_phase(a, end_label, code_end):
    XB_ = 528
    XT = 64 * XB_
    W0 = 2 * XT
    NSW, WCH, NC = 7, 12288, 16
    assert W0 + NSW * WCH <= LDS_MAX
    FS = 27
    NPS = env("K1_NPS", 2)
    R = Regs(V_FREE)
    vD, vT0, vT1, vXW = R.alloc(), R.alloc(), R.alloc(), R.alloc()
    X = R.alloc(32)
    ST = R.alloc(16)
    U = R.alloc(16)
    vD2, vZ = R.alloc(), R.alloc()
    assert X == V_FREE + 4
    a(f"v_lshrrev_b32 v{vT0}, 3, v0")
    a(f"v_bfe_u32 v{vT1}, v0, 4, 1")
    a(f"v_lshlrev_b32 v{vT1}, 2, v{vT1}")
    a(f"v_and_b32 v{vD2}, 7, v0")
    a(f"v_xor_b32 v{vD2}, v{vD2}, v{vT1}")
    a(f"v_lshlrev_b32 v{vD2}, 4, v{vD2}")
    a(f"v_mul_u32_u24 v{vD}, 3072, v{vT0}")
    a(f"v_add_u32 v{vD}, v{vD}, v{vD2}")
    a(f"s_and_b32 s50, s{S_WAVE}, 3")
    a("s_waitcnt lgkmcnt(0)")
    srd(a, 8, 64, 65, 2048 * 512 * 2)
    srd(a, 4, 12, 13, WS_END)
    a.c("wave 7 of the first workgroups resets 64 hand-off counters each")
    NZ = 2 * FL_IT // 16384
    nz = a.label("nozero")
    a(f"s_sub_u32 s47, 7, s{S_WAVE}")
    a("s_lshl_b32 s47, s47, 8")
    a("s_add_u32 s47, s47, s2")
    a(f"s_cmp_ge_u32 s47, {NZ}")
    a(f"s_cbranch_scc1 {nz}")
    a(f"v_lshlrev_b32 v{ST}, 8, v0")
    for i in range(4):
        a(f"v_mov_b32 v{ST+4+i}, 0")
    a("s_lshl_b32 s54, s2, 14")
    a(f"s_add_u32 s54, s54, {WS_FLAG:#x}")
    a(f"buffer_store_dwordx4 {vr(ST+4,4)}, v{ST}, s[4:7], s54 offen sc1")
    a(f"{nz}:")
    TOUCH = env("TOUCH", 1)
    a(f"s_add_u32 s14, s12, {WS_FLAG:#x}")
    a("s_addc_u32 s15, s13, 0")
    a("s_mov_b32 s49, 0x3f803f80")
    a(f"s_lshr_b32 s55, s{S_WAVE}, 2")
    a(f"s_mul_i32 s39, s55, {XT}")
    a("s_lshl_b32 s54, s50, 7")
    a("s_add_u32 s39, s39, s54")
    a(f"v_mul_u32_u24 v{vXW}, {XB_}, v0")
    a(f"v_add_u32 v{vXW}, s39, v{vXW}")
    a(f"s_mul_i32 s62, s50, {8*3072}")
    a(f"s_lshl_b32 s54, s{S_NT64}, 7")
    a("s_add_u32 s62, s62, s54")
    a(f"s_mul_i32 s54, s55, {NPS*32*3072}")
    a("s_add_u32 s62, s62, s54")
    a("s_lshl_b32 s63, s50, 10")
    a(f"s_add_u32 s63, s63, {W0}")
    a(f"s_mul_i32 s54, s55, {NPS*WCH}")
    a("s_add_u32 s48, s63, s54")
    def w_instr(slot, seg, base=63):
        t = f"s_add_u32 s54, s{base}, {slot*WCH + seg*3072}\ns_mov_b32 m0, s54\ns_nop 0\n"
        t += f"buffer_load_dwordx4 v{vD}, s[20:23], s62 offen offset:{seg*1024} lds"
        if seg == 2:
            t += f"\ns_add_u32 s62, s62, {32*3072}"
        return t
    dma = [w_instr(c, sg, 48) for c in range(NPS) for sg in range(3)]
    ops = []
    pre = len(ops)
    for r in range(8):
        ops.append(("wait", r))
        for i in range(4):
            ops.append(f"v_dot2_f32_bf16 v{ST+r}, v{X+4*r+i}, s49, {'0' if i == 0 else 'v' + str(ST+r)}")
            ops.append(f"v_dot2_f32_bf16 v{ST+8+r}, v{X+4*r+i}, v{X+4*r+i}, {'0' if i == 0 else 'v' + str(ST+8+r)}")
    ops.append("s_nop 2")
    for b in (ST, ST + 8):
        for r in range(4):
            ops.append(f"v_permlane32_swap_b32 v{b+r}, v{b+r+4}")
    for b in (ST, ST + 8):
        for r in range(4):
            ops.append(f"v_add_f32 v{b+r}, v{b+r}, v{b+r+4}")
    ops.append("s_nop 1")
    for b in (ST, ST + 8):
        for r in range(2):
            ops.append(f"v_permlane16_swap_b32 v{b+r}, v{b+r+2}")
    for b in (ST, ST + 8):
        for r in range(2):
            ops.append(f"v_add_f32 v{b+r}, v{b+r}, v{b+r+2}")
    for d in ("row_ror:8", "row_ror:4", "quad_perm:[2,3,0,1]", "quad_perm:[1,0,3,2]"):
        for v in (ST, ST + 1, ST + 8, ST + 9):
            ops.append(f"v_add_f32_dpp v{v}, v{v}, v{v} {d} row_mask:0xf bank_mask:0xf")
    for r in range(2):
        ops.append(f"v_mul_f32 v{ST+r}, {f32bits(-1.0/512):#x}, v{ST+r}")
        ops.append(f"v_mul_f32 v{ST+8+r}, {f32bits(1.0/512):#x}, v{ST+8+r}")
    for r in range(2):
        ops.append(f"v_fma_f32 v{ST+8+r}, -v{ST+r}, v{ST+r}, v{ST+8+r}")
    for r in range(2):
        ops.append(f"v_max_f32 v{ST+8+r}, 0, v{ST+8+r}")
    for r in range(2):
        ops.append(f"v_add_f32 v{ST+8+r}, {f32bits(1e-5):#x}, v{ST+8+r}")
    for r in range(2):
        ops.append(f"v_rsq_f32 v{ST+8+r}, v{ST+8+r}")
    ops.append("s_nop 0")
    for r in range(2):
        ops.append(f"v_mul_f32 v{ST+r}, v{ST+r}, v{ST+8+r}")
    ops.append("s_nop 0")
    for r in range(8):
        ops.append(f"v_readlane_b32 s{78+2*r}, v{ST+8+(r&1)}, {16*(r>>1)}")
        ops.append(f"v_readlane_b32 s{79+2*r}, v{ST+(r&1)}, {16*(r>>1)}")
    for r in range(8):
        u = U + 8 * (r & 1)
        for i in range(4):
            ops.append(f"v_lshlrev_b32 v{u+2*i}, 16, v{X+4*r+i}")
            ops.append(f"v_and_b32 v{u+2*i+1}, 0xffff0000, v{X+4*r+i}")
        for i in range(4):
            ops.append(f"v_pk_fma_f32 {vr(u+2*i,2)}, {vr(u+2*i,2)}, s[{78+2*r}:{79+2*r}], s[{78+2*r}:{79+2*r}] op_sel:[0,0,1] op_sel_hi:[1,0,1]")
        for i in range(4):
            ops.append(f"v_cvt_pk_bf16_f32 v{X+4*r+i}, v{u+2*i}, v{u+2*i+1}")
        ops.append(f"ds_write_b128 v{vXW}, {vr(X+4*r,4)} offset:{r*16}")
    npre = env("K1_PRE", 2)
    issued = TOUCH
    for _ in range(npre):
        a(dma.pop(0)); issued += 1
    step_ = env("K1_STEP", 24)
    k = 0
    for j, op in enumerate(ops):
        if isinstance(op, tuple):
            a(f"s_waitcnt vmcnt({7 - op[1] + issued})")
        else:
            a(op)
        if j >= pre + env("K1_SKIP", 40) and dma:
            k += 1
            if k % step_ == 0:
                a(dma.pop(0)); issued += 1
    assert not dma
    comp = a.label("k1_comp")
    a(f"s_cmp_lt_u32 s{S_WAVE}, 4")
    a(f"s_cbranch_scc1 {comp}")
    DW = env("K1_DW", 5)
    assert 2 * NPS <= DW <= NSW - 2
    for c in range(2 * NPS, DW):
        for sg in range(3):
            a(w_instr(c, sg))
    lp = a.label("k1ld")
    a(f"s_add_u32 s48, s63, {DW*WCH}")
    a(f"s_add_u32 s39, s63, {NSW*WCH}")
    a(f"v_mov_b32 v{vT1}, 0")
    stamp(a, FS)
    a("s_waitcnt lgkmcnt(0)")
    nz = a.label("noflag")
    a(f"s_cmp_ge_u32 s47, {NZ}")
    a(f"s_cbranch_scc1 {nz}")
    a(f"s_waitcnt vmcnt({(DW - NPS)*3})")
    a("s_mov_b32 s38, 1")
    a("s_atomic_add s38, s[94:95], 0x0")
    a(f"{nz}:")
    a(f"s_mov_b32 s47, {NC-DW}")
    a(f"{lp}:")
    a(f"s_waitcnt vmcnt({(DW-1)*3})")
    a("s_barrier")
    for sg in range(3):
        a(w_instr(0, sg, 48))
    a(f"s_add_u32 s48, s48, {WCH}")
    a("s_cmp_eq_u32 s48, s39")
    a("s_cselect_b32 s48, s63, s48")
    a("s_sub_u32 s47, s47, 1")
    a("s_cmp_lg_u32 s47, 0")
    a(f"s_cbranch_scc1 {lp}")
    a(f"global_load_dword v{vZ}, v{vT1}, s[94:95] sc1")
    for c in range(NC - DW, NC):
        a(f"s_waitcnt vmcnt({(NC - 1 - c)*3 + 1})")
        a("s_barrier")
    stamp(a, FS + 2)
    a.c("the counters must have been reset before this workgroup touches them")
    lp, ok = a.label("zpoll"), a.label("zok")
    a(f"s_mov_b32 s39, {SPIN_MAX}")
    a("s_waitcnt vmcnt(0)")
    a(f"{lp}:")
    a(f"v_cmp_gt_u32 vcc, {NZ}, v{vZ}")
    a("s_sub_u32 s39, s39, 1")
    a("s_cmp_eq_u32 s39, 0")
    a(f"s_cbranch_scc1 {ok}")
    a(f"s_cbranch_vccz {ok}")
    a(f"global_load_dword v{vZ}, v{vT1}, s[94:95] sc1")
    a("s_waitcnt vmcnt(0)")
    a(f"s_branch {lp}")
    a(f"{ok}:")
    a("s_barrier")
    a(f"s_branch {end_label}")
    a(f"{comp}:")
    R2 = Regs(V_FREE + 4)
    vA, vW0, vW = R2.alloc(), R2.alloc(), R2.alloc()
    acc = [R2.alloc(16) for _ in range(3)]
    sets = [(R2.alloc(4), [R2.alloc(4) for _ in range(3)]) for _ in range(2)]
    a("s_waitcnt lgkmcnt(0)")
    a(f"s_and_b32 s24, s{S_WAVE}, 1")
    a(f"s_lshr_b32 s25, s{S_WAVE}, 1")
    a(f"s_mul_i32 s26, s24, {XT}")
    a(f"v_lshrrev_b32 v{vT0}, 5, v0")
    a(f"v_mul_u32_u24 v{vA}, {XB_}, v{vT0}")
    a(f"v_and_b32 v{vT1}, 31, v0")
    a(f"v_lshl_add_u32 v{vA}, v{vT1}, 4, v{vA}")
    a(f"v_add_u32 v{vA}, s26, v{vA}")
    a(f"v_bfe_u32 v{vT1}, v0, 2, 2")
    a(f"v_lshl_add_u32 v{vW0}, v{vT0}, 3, v{vT1}")
    a(f"v_lshlrev_b32 v{vW0}, 7, v{vW0}")
    a(f"v_and_b32 v{vT0}, 1, v0")
    a(f"v_bfe_u32 v{vT1}, v0, 1, 1")
    a(f"v_lshl_add_u32 v{vT0}, v{vT0}, 1, v{vT1}")
    a(f"v_lshl_add_u32 v{vW0}, v{vT0}, 3, v{vW0}")
    a(f"v_bfe_u32 v{vT0}, v0, 4, 1")
    a(f"v_lshl_add_u32 v{vW0}, v{vT0}, 5, v{vW0}")
    a(f"v_bfe_u32 v{vT0}, v0, 3, 1")
    a(f"v_xor_b32 v{vT0}, s25, v{vT0}")
    a(f"v_lshl_add_u32 v{vW0}, v{vT0}, 6, v{vW0}")
    a(f"v_add_u32 v{vW0}, {W0}, v{vW0}")
    a(f"v_mov_b32 v{vW}, v{vW0}")
    for t in range(3):
        for i in range(16):
            a(f"v_mov_b32 v{acc[t]+i}, 0")
    a("s_mov_b32 s37, 0")

    def read_list(ks, par):
        xa, wfs = sets[par]
        out = [f"ds_read_b128 {vr(xa,4)}, v{vA} offset:{ks*2*XB_}"]
        for t in range(3):
            for jj in range(2):
                out.append(f"ds_read_b64_tr_b16 {vr(wfs[t]+2*jj,2)}, v{vW} offset:{t*4096 + ks*2048 + jj*512}")
        return out

    def step(par, nxt, boundary, adv=False):
        xa, wfs = sets[par]
        issued = 0
        plan = [3, 5, 7]
        if boundary:
            a("s_barrier")
        for t in range(3):
            while issued < min(plan[t], len(nxt)):
                a(nxt[issued]); issued += 1
            a(f"s_waitcnt lgkmcnt({issued + 7 - (3 + 2*t)})")
            if t == 2:
                a(f"{MFMA} {vr(acc[t],16)}, {vr(xa,4)}, {vr(wfs[t],4)}, {vr(acc[t],16)}")
            else:
                a(f"{MFMA} {vr(acc[t],16)}, {vr(wfs[t],4)}, {vr(xa,4)}, {vr(acc[t],16)}")
        if adv:
            a(f"s_add_u32 s37, s37, {WCH}")
            a(f"s_cmp_eq_u32 s37, {NSW*WCH}")
            a("s_cselect_b32 s37, 0, s37")
            a(f"v_add_u32 v{vW}, s37, v{vW0}")
            a(f"v_add_u32 v{vA}, {4*XB_}, v{vA}")

    a("s_waitcnt vmcnt(0)")
    stamp(a, FS)
    a("s_barrier")
    stamp(a, FS + 1)
    for r in read_list(0, 0):
        a(r)
    lp = a.label("k1loop")
    a(f"s_mov_b32 s35, {NC-1}")
    a(f"{lp}:")
    step(0, read_list(1, 1), False, True)
    step(1, read_list(0, 0), True)
    a("s_sub_u32 s35, s35, 1")
    a("s_cmp_lg_u32 s35, 0")
    a(f"s_cbranch_scc1 {lp}")
    step(0, read_list(1, 1), False)
    step(1, [], False)
    stamp(a, FS + 2)
    ot = sets[0][0]
    a(f"s_lshl_b32 s26, s{S_NT64}, 1")
    a("s_add_u32 s26, s26, s25")
    a("s_lshl_b32 s26, s26, 17")
    a(f"s_add_u32 s27, s{S_TT64}, s24")
    a("s_lshl_b32 s27, s27, 10")
    a("s_add_u32 s26, s26, s27")
    a(f"v_bfe_u32 v{vT0}, v0, 4, 1")
    a(f"v_lshlrev_b32 v{vT0}, 16, v{vT0}")
    a(f"v_lshrrev_b32 v{vT1}, 5, v0")
    a(f"v_lshl_add_u32 v{vT0}, v{vT1}, 8, v{vT0}")
    a(f"v_and_b32 v{vT1}, 15, v0")
    a(f"v_lshl_add_u32 v{vT0}, v{vT1}, 4, v{vT0}")
    a(f"s_mov_b32 s28, {f32bits(QSCALE):#x}")
    a("s_mov_b32 s29, s28")
    K1SC = SC
    a(f"v_lshrrev_b32 v{V_P16}, 4, v0")
    a(f"v_lshlrev_b32 v{V_P16}, 9, v{V_P16}")
    a(f"v_lshl_add_u32 v{V_P16}, v{vT1}, 4, v{V_P16}")
    a(f"s_lshl_b32 s{S_SIG}, s{S_NT64}, 9")
    a(f"s_add_u32 s{S_SIG}, s{S_SIG}, {FL_Q:#x}")
    for t, base in ((0, B_Q), (1, B_K), (2, B_V)):
        for hh in range(2):
            o = ot + 4 * (2 * t + hh)
            for i in range(4):
                r = acc[t] + 8 * hh + 2 * i
                if t == 0:
                    a(f"v_pk_mul_f32 {vr(r,2)}, {vr(r,2)}, s[28:29]")
                a(f"v_cvt_pk_bf16_f32 v{o+i}, v{r}, v{r+1}")
            if t < 2:
                a(f"s_add_u32 s27, s26, {WS_IT0 + base + hh*65536:#x}")
                a(f"buffer_store_dwordx4 {vr(o,4)}, v{V_L16}, s[4:7], s27 offen{K1SC}")
            else:
                a(f"s_add_u32 s27, s26, {WS_IT0 + base:#x}")
                a(f"buffer_store_dwordx4 {vr(o,4)}, v{vT0}, s[4:7], s27 offen offset:{hh*512}{K1SC}")
    a("s_barrier")
    stamp(a, FS + 3)
    a(f"s_branch {end_label}")
    return max(R.n, R2.n)


class Cfg:
    def __init__(self, **kw):
        self.__dict__.update(kw)
        for k in ("NR", "RA", "N1", "N2", "N3", "N4", "BS", "I0", "PS", "STS", "PRE1", "PRE2", "PRE3", "XB", "LP"):
            e = os.environ.get(self.name.upper() + "_" + k)
            if e:
                setattr(self, k, int(e))

def stats_ops(tmp, xc, vR, square):
    f = []
    for i in range(8):
        f.append(f"v_add_f32 v{tmp+i}, v{tmp+i}, v{tmp+8+i}")
    for i in range(4):
        f.append(f"v_add_f32 v{tmp+i}, v{tmp+i}, v{tmp+4+i}")
    f.append(f"v_mov_b32 v{xc+4}, 0")
    f.append(f"v_mov_b32 v{xc+5}, 0")
    f.append(f"v_permlane32_swap_b32 v{tmp}, v{tmp+2}")
    f.append(f"v_permlane32_swap_b32 v{tmp+1}, v{tmp+3}")
    f.append(f"v_add_f32 v{tmp}, v{tmp}, v{tmp+2}")
    f.append(f"v_add_f32 v{tmp+1}, v{tmp+1}, v{tmp+3}")
    f.append(f"v_mov_b32 v{tmp+2}, v{tmp}")
    f.append(f"v_mov_b32 v{tmp+3}, v{tmp+1}")
    f.append("s_nop 1")
    f.append(f"v_permlane16_swap_b32 v{tmp}, v{tmp+2}")
    f.append(f"v_permlane16_swap_b32 v{tmp+1}, v{tmp+3}")
    f.append(f"v_add_f32 v{tmp}, v{tmp}, v{tmp+2}")
    f.append(f"v_add_f32 v{tmp+1}, v{tmp+1}, v{tmp+3}")
    f.append(f"v_mul_f32 v{tmp}, {f32bits(-1.0/512):#x}, v{tmp}")
    f.append(f"v_mul_f32 v{tmp+1}, {f32bits(1.0/512):#x}, v{tmp+1}")
    f.append(f"v_fma_f32 v{tmp+1}, -v{tmp}, v{tmp}, v{tmp+1}")
    f.append(f"v_max_f32 v{tmp+1}, 0, v{tmp+1}")
    f.append(f"v_add_f32 v{tmp+1}, {f32bits(1e-5):#x}, v{tmp+1}")
    f.append(f"{'v_rcp_f32' if square else 'v_rsq_f32'} v{vR}, v{tmp+1}")
    f.append(f"v_cvt_pk_bf16_f32 v{xc}, v{tmp}, v{tmp}")
    f.append(f"v_lshlrev_b32 v{tmp+2}, 16, v{xc}")
    f.append(f"v_sub_f32 v{tmp+2}, v{tmp}, v{tmp+2}")
    f.append(f"v_cvt_pk_bf16_f32 v{xc+1}, v{tmp+2}, v{tmp+2}")
    f.append(f"v_mov_b32 v{tmp+4}, v{vR}")
    f.append(f"v_mov_b32 v{vR+1}, v{vR}")
    f.append(f"v_mov_b32 v{xc+2}, v{xc}")
    f.append(f"v_mov_b32 v{xc+3}, v{xc+1}")
    f.append(f"v_permlane32_swap_b32 v{vR}, v{vR+1}")
    f.append(f"v_permlane32_swap_b32 v{xc}, v{xc+2}")
    f.append(f"v_permlane32_swap_b32 v{xc+1}, v{xc+3}")
    return f

def res_init(c0):
    f = []
    for th in range(2):
        for fh in range(2):
            for c in range(2):
                d, r = c0 + 8 * fh + 4 * th + 2 * c, V_RES + 4 * th + 2 * fh + c
                f.append(f"v_lshlrev_b32 v{d}, 16, v{r}")
                f.append(f"v_and_b32 v{d+1}, 0xffff0000, v{r}")
    return f

def row_offset(a, v, vt):
    a(f"v_and_b32 v{v}, 15, v0")
    a(f"v_lshlrev_b32 v{v}, 10, v{v}")
    a(f"v_and_b32 v{vt}, 48, v0")
    a(f"v_add_u32 v{v}, v{v}, v{vt}")

def res_epilogue(a, g, c0, c1, tmp, end):
    SB = g.sb
    fin = a.label("final")
    a("s_lshl_b32 s26, s31, 15")
    a("s_lshl_b32 s27, s33, 11")
    a("s_add_u32 s26, s26, s27")
    a(f"s_add_u32 s26, s26, s{S_BASE}")
    a(f"s_add_u32 s26, s26, {g.OUT:#x}")
    a("s_lshl_b32 s28, s31, 12")
    a("s_lshl_b32 s29, s33, 8")
    a("s_add_u32 s28, s28, s29")
    for i in range(8):
        if i == 0:
            a("s_waitcnt lgkmcnt(0)")
        a(f"v_pk_add_f32 {vr(c0+2*i,2)}, {vr(c0+2*i,2)}, {vr(c1+2*i,2)}")
    for th in range(2):
        for fh in range(2):
            for c in range(2):
                d = c0 + 8 * fh + 4 * th + 2 * c
                a(f"v_cvt_pk_bf16_f32 v{V_RES + 4*th + 2*fh + c}, v{d}, v{d+1}")
    if g.final:
        a(f"s_cmp_eq_u32 s{S_IT}, 1")
        a(f"s_cbranch_scc1 {fin}")
    a(f"buffer_store_dwordx4 {vr(V_RES,4)}, v{V_P16}, s[4:7], s26 offen{SC}")
    a(f"buffer_store_dwordx4 {vr(V_RES+4,4)}, v{V_P16}, s[4:7], s26 offen offset:256{SC}")
    q = tmp
    for th in range(2):
        a(f"v_pk_mul_f32 {vr(q+2*th,2)}, {vr(c0+4*th,2)}, {vr(c0+4*th,2)}")
    for o in (2, 8, 10):
        for th in range(2):
            r = c0 + 4 * th + o
            a(f"v_pk_fma_f32 {vr(q+2*th,2)}, {vr(r,2)}, {vr(r,2)}, {vr(q+2*th,2)}")
            a(f"v_pk_add_f32 {vr(c0+4*th,2)}, {vr(c0+4*th,2)}, {vr(r,2)}")
    for th in range(2):
        a(f"v_add_f32 v{q+4+th}, v{c0+4*th}, v{c0+4*th+1}")
    for th in range(2):
        a(f"v_add_f32 v{q+6+th}, v{q+2*th}, v{q+2*th+1}")
    a(f"v_permlane32_swap_b32 v{q+4}, v{q+5}")
    a(f"s_add_u32 s28, s28, s{S_BASE}")
    a(f"v_permlane32_swap_b32 v{q+6}, v{q+7}")
    a(f"v_add_f32 v{q+4}, v{q+4}, v{q+5}")
    a(f"v_add_f32 v{q+6}, v{q+6}, v{q+7}")
    a(f"s_add_u32 s28, s28, {g.STOUT:#x}")
    a("s_nop 0")
    a(f"v_permlane16_swap_b32 v{q+4}, v{q+6}")
    a("s_nop 0")
    a(f"v_add_f32 v{q+4}, v{q+4}, v{q+6}")
    a(f"buffer_store_dword v{q+4}, v{V_ST}, s[4:7], s28 offen{SC}")
    a("s_barrier")
    stamp(a, SB + 3)
    if g.final:
        a(f"s_branch {end}")
        a(f"{fin}:")
        srd(a, 8, 70, 71, 2048 * 512 * 2)
        row_offset(a, tmp, tmp + 1)
        a("s_lshl_b32 s26, s31, 15")
        a("s_lshl_b32 s27, s33, 6")
        a("s_add_u32 s26, s26, s27")
        a("s_add_u32 s27, s26, 16384")
        FS_ = ["", " sc1", " nt", " sc0 sc1"][env("FINST", 0)]
        a(f"buffer_store_dwordx4 {vr(V_RES,4)}, v{tmp}, s[8:11], s26 offen{FS_}")
        a(f"buffer_store_dwordx4 {vr(V_RES+4,4)}, v{tmp}, s[8:11], s27 offen{FS_}")
        a("s_barrier")
        stamp(a, SB + 3)

class Lgkm:
    def __init__(self, a):
        self.a, self.q = a, []
    def op(self, text, tag):
        self.a(text); self.q.append(tag)
    def wait(self, tag):
        if tag in self.q:
            i = len(self.q) - 1 - self.q[::-1].index(tag)
            self.a(f"s_waitcnt lgkmcnt({min(15, len(self.q) - 1 - i)})")
            del self.q[:i + 1]

def down_order(nsteps, tail):
    o = [(st, t, fh) for st in range(nsteps - tail) for t in range(2) for fh in range(2)]
    for t in (1, 0):
        o += [(st, t, fh) for st in range(nsteps - tail, nsteps) for fh in range(2)]
    return o

RB = 16384
VS = 32
NPRE = env('NPRE', 5)


class Stream:
    NR, NRND, NREG = 10, 29, 14
    def __init__(self, a):
        self.a = a
        self.nxt = 0
        self.vm, self.lg = [], []
        self.reg = {}
        self.free = list(range(self.NREG - NPRE))
        self.last = self.NRND - NPRE
        for i in range(NPRE):
            self.reg[self.last + i] = self.NREG - NPRE + i
        self.maxreg = self.NREG
    def setup(self):
        a = self.a
        a(f"s_and_b32 s19, s{S_WAVE}, 3")
        a("s_lshl_b32 s25, s19, 12")
        a(f"s_mul_i32 s20, s{S_NTG}, {WNT_G}")
        a("s_add_u32 s20, s20, s25")
        a(f"s_add_u32 s20, s20, {WS_WGU:#x}")
        a(f"s_mul_i32 s21, s{S_NT64}, {224*1024}")
        a("s_add_u32 s21, s21, s25")
        a(f"s_add_u32 s21, s21, {WS_WD:#x}")
        for i in range(3):
            a(f"v_add_u32 v{V_FREE+i}, {i*0x10000}, v{V_L16}")
            a(f"v_add_u32 v{V_FREE+i}, s25, v{V_FREE+i}")
    def src(self, r):
        return f"s_add_u32 s27, s20, {r*RB}" if r < 15 else f"s_add_u32 s27, s21, {(r-15)*RB}"
    def wait_vm(self, pred):
        idx = [i for i, e in enumerate(self.vm) if pred(e)]
        if not idx:
            return None
        n = min(63, (len(self.vm) - 1 - idx[-1]) * 4)
        del self.vm[:idx[-1] + 1]
        return f"vmcnt({n})"
    def flush(self, limit, cap=99):
        a = self.a
        for r in sorted(self.reg)[:cap]:
            if r >= limit:
                break
            w = self.wait_vm(lambda e: e == ("s", r))
            if w:
                a("s_waitcnt " + w)
            k = self.reg.pop(r)
            for i in range(4):
                off = (r % self.NR) * RB + i * 1024
                if env("X_NOFL", 0) and r >= 24:
                    pass
                elif env("FL64", 0):
                    for hh in range(2):
                        a(f"ds_write_b64 v{V_FREE + (off >> 16)}, {vr(VS + (k*4 + i)*4 + 2*hh, 2)} offset:{(off & 0xffff) + 8*hh}")
                        if env("FLW", 1):
                            a("s_waitcnt lgkmcnt(0)")
                else:
                    a(f"ds_write_b128 v{V_FREE + (off >> 16)}, {vr(VS + (k*4 + i)*4, 4)} offset:{off & 0xffff}")
                    if env("FLW", 1):
                        a("s_waitcnt lgkmcnt(0)")
            self.lg.append((r, k))
    def fetch(self, n, limit):
        a = self.a
        while n > 0 and self.nxt < self.last:
            r = self.nxt
            if env("X_SKIP", 0) and r in (2, 4):
                self.nxt += 1
                continue
            if r < limit:
                a(f"s_add_u32 s26, s25, {(r % self.NR) * RB}")
                a("s_mov_b32 m0, s26")
                a(self.src(r))
                for i in range(4):
                    a(f"buffer_load_dwordx4 v{V_L16}, s[4:7], s27 offen offset:{i*1024}{SC} lds")
                self.vm.append(("d", r))
            else:
                if not self.free:
                    break
                k = self.free.pop(0)
                self.maxreg = max(self.maxreg, k + 1)
                self.reg[r] = k
                a(self.src(r))
                for i in range(4):
                    a(f"buffer_load_dwordx4 {vr(VS + (k*4 + i)*4, 4)}, v{V_L16}, s[4:7], s27 offen offset:{i*1024}{SC}")
                self.vm.append(("s", r))
            self.nxt += 1; n -= 1
    def landed(self, upto):
        assert self.nxt > min(upto, self.last - 1) and all(r > upto for r in self.reg), (upto, self.nxt, self.reg)
        w = []
        x = self.wait_vm(lambda e: e[0] == "d" and e[1] <= upto)
        if x:
            w.append(x)
        if any(r <= upto for r, _ in self.lg):
            w.append("lgkmcnt(0)")
            self.free += [k for _, k in self.lg]
            self.lg = []
        if w:
            self.a("s_waitcnt " + " ".join(w))

def gemm_phase(a, g):
    ln = g.kind == "qkv"
    NT = 3 if ln else 2
    NS = 16 if ln else 8
    SPS = 2 * NT
    NSL = (NS + (1 if ln else 0)) * SPS
    TAIL = env("XTAIL", 4)
    order = [(i // SPS, (i % SPS) // 2, i % 2) for i in range(NSL)] if ln else down_order(NS, TAIL)
    fin_ = [i * 1024 + 1023 if ln else 65535 for i in range(NSL)]
    NRND = fin_[-1] // RB + 1
    LB = g.LB
    SCR = LB + NRND * RB
    assert SCR + (1024 if ln else 16384) <= LDS_MAX
    S = g.stream
    RAH = 6
    s_tt, s_nt = (S_TT128, S_NT128) if ln else (S_TT64, S_NT64)
    comp, end = a.label(g.name + "_comp"), a.label(g.name + "_end")
    SB = g.sb
    bars = [0] + ([g.BS] if g.BS else [])
    a.c(f"================ phase {g.name} ================")
    a(f"s_cmp_lt_u32 s{S_WAVE}, 4")
    a(f"s_cbranch_scc1 {comp}")
    a(f"s_and_b32 s19, s{S_WAVE}, 3")
    a("s_lshl_b32 s25, s19, 12")
    a(f"s_mul_i32 s23, s{s_nt}, {g.WNT}")
    a("s_add_u32 s23, s23, s25")
    if g.WBASE:
        a(f"s_add_u32 s23, s23, {g.WBASE:#x}")
    stamp(a, SB)
    for r in range(NRND):
        if env("X_SKIP", 0) and not ln and r in (1, 3):
            if g.lsig and r == g.N1 - 1:
                a("s_waitcnt vmcnt(4)")
                a("s_mov_b32 s38, 1")
                a(f"s_atomic_add s38, s[14:15], s{S_SIG}")
            continue
        a(f"s_add_u32 s26, s25, {LB + r*RB}")
        a("s_mov_b32 m0, s26")
        a(f"s_add_u32 s27, s23, {r*RB}")
        for i in range(4):
            a(f"buffer_load_dwordx4 v{V_L16}, s[4:7], s27 offen offset:{i*1024}{SC} lds")
        if g.lsig and r == g.N1 - 1:
            a(f"s_waitcnt vmcnt({g.N1*4})")
            a("s_mov_b32 s38, 1")
            a(f"s_atomic_add s38, s[14:15], s{S_SIG}")
    extra = 0
    if S:
        S.setup()
        S.fetch(g.PRE1, LB // RB)
        extra = 4 * len(S.vm)
    stamp(a, SB + 1)
    for j, b in enumerate(bars):
        nxt = bars[j + 1] if j + 1 < len(bars) else NSL
        up = fin_[min(NSL - 1, nxt - 1 + RAH)] // RB
        a(f"s_waitcnt vmcnt({(NRND - 1 - up)*4 + extra})")
        a("s_barrier")
    if not ln:
        a("s_barrier")
    if S:
        S.fetch(g.PRE3, LB // RB + NRND)
    a("s_barrier")
    a(f"s_branch {end}")

    a(f"{comp}:")
    R = Regs(V_FREE)
    nwin = -(-SCR // 65536)
    vW = [[R.alloc() for _ in range(nwin)] for _ in range(1 if ln else 2)]
    vX, vY = R.alloc(), R.alloc()
    vR = R.alloc(2)
    xc = R.alloc(6, 2)
    acc = [R.alloc(16) for _ in range(NT)]
    NF = RAH + 2
    wf = [R.alloc(4) for _ in range(NF)]
    RA = min(2 * NS, g.RA)
    ring = [R.alloc(4) for _ in range(RA)]
    tmp = R.alloc(16)
    if ln:
        a(f"s_add_u32 s31, s{s_tt}, s{S_WAVE}")
        a("s_lshl_b32 s22, s31, 15")
        for w in range(nwin):
            a(f"v_add_u32 v{vW[0][w]}, {w*65536}, v{V_L16}")
        a("s_lshl_b32 s36, s31, 12")
        a(f"s_add_u32 s36, s36, s{S_BASE}")
        a(f"s_add_u32 s36, s36, {g.STIN:#x}")
        a(f"s_lshl_b32 s26, s{S_WAVE}, 8")
        a(f"s_add_u32 s26, s26, {SCR}")
        a(f"v_add_u32 v{vX}, s26, v{V_L4}")
        a(f"v_and_b32 v{vY}, 48, v0")
        a(f"v_add_u32 v{vY}, s26, v{vY}")
    else:
        a(f"s_and_b32 s24, s{S_WAVE}, 1")
        a(f"s_lshr_b32 s25, s{S_WAVE}, 1")
        a(f"s_lshl_b32 s33, s{s_nt}, 1")
        a("s_add_u32 s33, s33, s25")
        a(f"s_add_u32 s31, s{s_tt}, s24")
        a("s_lshl_b32 s22, s31, 15")
        a("s_lshl_b32 s27, s25, 11")
        a("s_add_u32 s22, s22, s27")
        a("s_mul_i32 s26, s25, 6144")
        a("s_add_u32 s27, s27, 2048")
        for w in range(nwin):
            a(f"v_add_u32 v{vX}, {w*65536}, v{V_L16}")
            a(f"v_add_u32 v{vW[0][w]}, s26, v{vX}")
            a(f"v_add_u32 v{vW[1][w]}, s27, v{vX}")
        for x in res_init(acc[0]):
            a(x)
        a(f"s_lshl_b32 s26, s{S_WAVE}, 12")
        a(f"s_add_u32 s26, s26, {SCR}")
        a("s_xor_b32 s27, s26, 0x2000")
        assert SCR % 16384 == 0
        a(f"v_add_u32 v{vX}, s26, v{V_L16}")
        a(f"v_add_u32 v{vY}, s27, v{V_L16}")
    a(f"s_add_u32 s22, s22, s{S_BASE}")
    a(f"s_add_u32 s22, s22, {g.ABUF:#x}")
    AST = 2048 if ln else 4096

    cvm, na = [], [0]
    L = Lgkm(a)
    def load_a():
        k = na[0]; na[0] += 1
        off = ((k // 2) * AST) % 4096
        a(f"buffer_load_dwordx4 {vr(ring[k % RA],4)}, v{V_P16}, s[4:7], s22 offen offset:{off + (k%2)*256}{SC}")
        if k % 2 == 1 and off + AST == 4096:
            a("s_add_u32 s22, s22, 4096")
        cvm.append(k)
    def wait_tag(tag):
        if tag in cvm:
            i = len(cvm) - 1 - cvm[::-1].index(tag)
            a(f"s_waitcnt vmcnt({len(cvm) - 1 - i})")
            del cvm[:i + 1]
    def w_read(i):
        st_, t, fh = order[i]
        off = LB + (i * 1024 if ln else st_ * 8192 + fh * 1024)
        base = vW[0 if ln else t][off >> 16]
        L.op(f"ds_read_b128 {vr(wf[i % NF],4)}, v{base} offset:{off & 0xffff}", i)

    a("s_lshl_b32 s23, s31, 8")
    a(f"s_add_u32 s23, s23, s{S_FL}")
    a(f"s_add_u32 s23, s23, {g.FIN:#x}")
    a("s_waitcnt vmcnt(0)")
    stamp(a, SB)
    handoff(a, 23, g.NEED)
    stamp(a, SB + 1)
    while na[0] < g.I0:
        load_a()
    a("s_barrier")
    for i in range(RAH):
        w_read(i)
    a(f"s_lshl_b32 s{S_SIG}, s{s_nt if ln else 31}, 8")
    a(f"s_add_u32 s{S_SIG}, s{S_SIG}, s{S_FL}")
    if g.FOUT:
        a(f"s_add_u32 s{S_SIG}, s{S_SIG}, {g.FOUT:#x}")
    stl = [f"buffer_load_dwordx4 {vr(tmp+4*i,4)}, v{V_L16}, s[4:7], s36 offen offset:{i*1024}{SC}" for i in range(4)] if ln else []
    fill = []
    vRs = tmp + 8
    for i in range(NSL):
        st_, t, fh = order[i]
        if i in bars and i > 0:
            a("s_barrier")
        if ln and i == NS * SPS - 26:
            assert not stl
            wait_tag("st")
            fill.extend(stats_ops(tmp, xc, vR, False))
        if ln and i == NS * SPS:
            assert not fill
        if i % 2 == 0:
            L.wait(i + 1)
        if not ln and i == NSL - 2:
            L.wait("xw")
            a("s_barrier")
            for q in range(4):
                L.op(f"ds_read_b128 {vr(acc[1]+4*q,4)}, v{vY} offset:{q*1024}", "xr")
        for th in range(2):
            if th == 1 and i + RAH < NSL:
                w_read(i + RAH)
            if st_ < NS:
                wait_tag(2 * st_ + 1)
            xa = ring[(2 * st_ + th) % RA] if st_ < NS else xc + 2 * th
            d = acc[t] + 8 * fh + 4 * th
            c = "0" if st_ == 0 and (ln or t == 1) else vr(d, 4)
            if ln and t == 2:
                a(f"{M16} {vr(d,4)}, {vr(xa,4)}, {vr(wf[i % NF],4)}, {c}")
            else:
                a(f"{M16} {vr(d,4)}, {vr(wf[i % NF],4)}, {vr(xa,4)}, {c}")
            if fill:
                a(fill.pop(0))
            j = i - (NSL - 2 * TAIL) - 2
            if not ln and 0 <= j < 2:
                q = 2 * j + th
                L.op(f"ds_write_b128 v{vX}, {vr(acc[1]+4*q,4)} offset:{q*1024}", "xw")
        if (i + 1) % g.LP == 0 and na[0] < 2 * NS and na[0] < 2 * ((i + 1) // SPS) + RA:
            load_a()
        if stl and i >= g.STS and i % SPS == 1:
            a(stl.pop(0)); cvm.append("st")
    assert na[0] == 2 * NS
    if ln:
        a(f"ds_write_b32 v{vX}, v{tmp+4}")
        for th in range(2):
            a(f"ds_read_b128 {vr(vRs+4*th,4)}, v{vY} offset:{th*128}")
    stamp(a, SB + 2)
    if ln:
        ot = ring[0]
        a(f"s_lshl_b32 s26, s{s_nt}, 17")
        a("s_lshl_b32 s27, s31, 10")
        a("s_add_u32 s26, s26, s27")
        a(f"s_add_u32 s26, s26, s{S_BASE}")
        a(f"v_mul_f32 v{tmp}, {f32bits(QSCALE):#x}, v{vR}")
        a(f"v_mul_f32 v{tmp+1}, {f32bits(QSCALE):#x}, v{vR+1}")
        a(f"v_lshrrev_b32 v{tmp+2}, 5, v0")
        a(f"v_and_b32 v{tmp+3}, 0x3ff, v{V_P16}")
        a(f"v_lshl_add_u32 v{tmp+2}, v{tmp+2}, 16, v{tmp+3}")
        for t, base, sc in ((0, B_Q, tmp), (1, B_K, vR)):
            a(f"s_add_u32 s27, s26, {base:#x}")
            for th in range(2):
                o = ot + 4 * (2 * t + th)
                for fh in range(2):
                    for c in range(2):
                        r = acc[t] + 8 * fh + 4 * th + 2 * c
                        a(f"v_pk_mul_f32 {vr(r,2)}, {vr(r,2)}, {vr(sc,2)} op_sel:[0,{th}] op_sel_hi:[1,{th}]")
                for fh in range(2):
                    for c in range(2):
                        r = acc[t] + 8 * fh + 4 * th + 2 * c
                        a(f"v_cvt_pk_bf16_f32 v{o+2*fh+c}, v{r}, v{r+1}")
                a(f"buffer_store_dwordx4 {vr(o,4)}, v{tmp+2}, s[4:7], s27 offen offset:{th*256}{SC}")
        a("s_waitcnt lgkmcnt(0)")
        for fh in range(2):
            o = ot + 16 + 4 * fh
            a(f"s_add_u32 s27, s26, {B_V + fh*65536:#x}")
            for c in range(4):
                r = acc[2] + 8 * fh + 2 * c
                a(f"v_pk_mul_f32 {vr(r,2)}, {vr(vRs+2*c,2)}, {vr(r,2)}")
            for c in range(4):
                r = acc[2] + 8 * fh + 2 * c
                a(f"v_cvt_pk_bf16_f32 v{o+c}, v{r}, v{r+1}")
            a(f"buffer_store_dwordx4 {vr(o,4)}, v{V_L16}, s[4:7], s27 offen{SC}")
        a("s_barrier")
        stamp(a, SB + 3)
    else:
        res_epilogue(a, g, acc[0], acc[1], tmp, end)
    a(f"{end}:")
    return R.n


def mlp_phase(a, g):
    E = lambda k, d: env("MLP_" + k, d)
    NR, RING = 10, 10 * RB
    NG, NOPS = 238, 238 + 112
    TAIL = env("XTAIL", 4)
    dord = down_order(28, TAIL)
    beg = [i * 1024 for i in range(NG)] + [15 * RB + min(x[0] for x in dord[i:]) * 8192 for i in range(112)]
    fin = [i * 1024 + 1023 for i in range(NG)] + [15 * RB + max(x[0] for x in dord[:i + 1]) * 8192 + 8191 for i in range(112)]
    RAH = E("RAH", 6)
    I0, I0D = E("I0", 10), E("I0D", 16)
    sched = os.environ.get("MLP_SCHED", "0:0,20:0,40:0,60:0,88:2,100:1,114:1,130:1,146:1,162:1,178:1,194:1,210:1,226:1,246:0,258:0,270:0,282:0,294:0,306:0,326:0")
    sched = dict((int(x.split(":")[0]), int(x.split(":")[1])) for x in sched.split(","))
    bars = sorted(sched)
    S = g.stream
    comp, end = a.label("mlp_comp"), a.label("mlp_end")
    SB, SD = 17, g.sb
    a.c("================ phase gate/up + down ================")
    a(f"s_cmp_lt_u32 s{S_WAVE}, 4")
    a(f"s_cbranch_scc1 {comp}")
    stamp(a, SB)
    S.flush(NR)
    S.fetch(E("N1", 8), NR)
    stamp(a, SB + 1)
    for j, b in enumerate(bars):
        nxt = bars[j + 1] if j + 1 < len(bars) else NOPS
        S.landed(fin[min(NOPS - 1, nxt - 1 + RAH)] // RB)
        a("s_barrier")
        lim = NR + beg[b] // RB
        S.fetch(sched[b], lim)
        S.flush(lim, E("FCAP", 1))
        a.c(f"barrier {b}: fetched {S.nxt}, staged {sorted(S.reg)}")
        if b == E("QT", 0) and b:
            a.c("pull this wave's share of the wqkv tiles into L2")
            nq = a.label("noq")
            QMX = env("QMX", 4)
            a(f"s_cmp_lg_u32 s{S_IT}, 0")
            a(f"s_cbranch_scc1 {nq}")
            a(f"s_lshl2_add_u32 s22, s{S_IDX}, s19")
            a(f"s_mul_i32 s22, s22, {WNT_Q * QMX // 64}")
            a(f"s_and_b32 s23, s{S_XCD}, {8 // QMX - 1}")
            a(f"s_mul_i32 s23, s23, {2 * QMX * WNT_Q}")
            a("s_add_u32 s22, s22, s23")
            nl = WNT_Q * QMX // 64 // 128
            a(f"s_mov_b32 exec_hi, {(1 << (nl - 32)) - 1:#x}")
            a(f"buffer_load_dword v{V_PF}, v{V_L128}, s[4:7], s22 offen{SC}")
            a("s_mov_b64 exec, -1")
            a(f"{nq}:")
    assert S.nxt == S.last and not S.vm and not S.lg and not S.reg
    a("s_barrier")
    a("s_barrier")
    a(f"s_branch {end}")

    a(f"{comp}:")
    R = Regs(V_FREE)
    vW = [R.alloc() for _ in range(3)]
    xc = R.alloc(6, 2)
    vR2 = R.alloc(2)
    vX, vY = R.alloc(), R.alloc()
    vD = [[R.alloc() for _ in range(3)] for _ in range(2)]
    acc = [R.alloc(16) for _ in range(4)]
    NF = RAH + 1
    wf = [R.alloc(4) for _ in range(NF)]
    ring = [R.alloc(4) for _ in range(32)]
    tmp = ring[28]
    NP = len(PASSES)
    pstart = [34 * f for f in PFIRST] + [NG]
    tacc = [acc[t % 4] for t in range(7)]
    dacc = [acc[3], acc[0]]
    hreg = [34, 35, 32, 51]
    a(f"s_add_u32 s31, s{S_TTG}, s{S_WAVE}")
    a("s_lshl_b32 s22, s31, 15")
    a(f"s_add_u32 s22, s22, s{S_BASE}")
    a(f"s_add_u32 s22, s22, {B_X1:#x}")
    a("s_lshl_b32 s36, s31, 12")
    a(f"s_add_u32 s36, s36, s{S_BASE}")
    a(f"s_add_u32 s36, s36, {B_ST1:#x}")
    a(f"s_mul_i32 s26, s31, {112*1024}")
    a(f"s_add_u32 s26, s26, s{S_BASE}")
    a(f"s_add_u32 s26, s26, {B_H:#x}")
    for p in range(NP):
        a(f"s_mul_i32 s{hreg[p]}, s{S_NTG}, {PASSES[p]*1024}")
        a(f"s_add_u32 s{hreg[p]}, s{hreg[p]}, s26")
        if p:
            a(f"s_add_u32 s{hreg[p]}, s{hreg[p]}, {PFIRST[p]*16384}")
    a("s_lshl_b32 s50, s31, 8")
    a(f"s_add_u32 s50, s50, s{S_FL}")
    a(f"s_add_u32 s23, s50, {FL_O:#x}")
    a(f"s_add_u32 s50, s50, {FL_G:#x}")
    a(f"s_and_b32 s24, s{S_WAVE}, 1")
    a(f"s_lshr_b32 s25, s{S_WAVE}, 1")
    a(f"s_lshl_b32 s33, s{S_NT64}, 1")
    a("s_add_u32 s33, s33, s25")
    a(f"s_add_u32 s31, s{S_TT64}, s24")
    a("s_lshl_b32 s52, s31, 8")
    a(f"s_add_u32 s52, s52, s{S_FL}")
    a(f"s_add_u32 s52, s52, {FL_G:#x}")
    a(f"s_mul_i32 s37, s31, {112*1024}")
    a("s_lshl_b32 s30, s25, 11")
    a("s_add_u32 s37, s37, s30")
    a(f"s_add_u32 s37, s37, s{S_BASE}")
    a(f"s_add_u32 s37, s37, {B_H:#x}")
    a("s_mul_i32 s29, s25, 6144")
    a("s_add_u32 s30, s30, 2048")
    for w in range(3):
        a(f"v_add_u32 v{vW[w]}, {w*65536}, v{V_L16}")
        a(f"v_add_u32 v{vD[0][w]}, s29, v{vW[w]}")
        a(f"v_add_u32 v{vD[1][w]}, s30, v{vW[w]}")
    a(f"v_lshrrev_b32 v{vY}, 5, v0")
    a(f"v_and_b32 v{vX}, 0x3ff, v{V_P16}")
    a(f"v_lshl_add_u32 v{vX}, v{vY}, 8, v{vX}")
    cvm = []
    L = Lgkm(a)
    def wait_tag(tag):
        if tag in cvm:
            i = len(cvm) - 1 - cvm[::-1].index(tag)
            a(f"s_waitcnt vmcnt({len(cvm) - 1 - i})")
            del cvm[:i + 1]
    na, nh = [0], [0]
    def load_x():
        k = na[0]; na[0] += 1
        a(f"buffer_load_dwordx4 {vr(ring[k],4)}, v{V_P16}, s[4:7], s22 offen offset:{(k%4//2)*2048 + (k%2)*256}{SC}")
        if k % 4 == 3:
            a("s_add_u32 s22, s22, 4096")
        cvm.append(("x", k))
    def load_h():
        k = nh[0]; nh[0] += 1
        if env("X_NOH", 0):
            return
        a(f"buffer_load_dwordx4 {vr(ring[k%32],4)}, v{V_P16}, s[4:7], s37 offen offset:{(k%2)*256}{SC}")
        if k % 2 == 1:
            a("s_add_u32 s37, s37, 4096")
        cvm.append(("h", k))
    def w_read(i):
        if i < NG:
            off = beg[i] % RING
            base = vW[off >> 16]
        else:
            st_, t_, fh_ = dord[i - NG]
            off = (15 * RB + st_ * 8192) % RING + fh_ * 1024
            base = vD[t_][off >> 16]
        L.op(f"ds_read_b128 {vr(wf[i % NF],4)}, v{base} offset:{off & 0xffff}", i)
    def slot(i):
        for p in range(NP):
            if i < pstart[p + 1]:
                return PFIRST[p] + (i - pstart[p]) // 2 % PASSES[p], (i - pstart[p]) // (2 * PASSES[p])
        return None, dord[i - NG][0]
    fill = []
    stored = set()
    def h_ops(t, packed=True):
        r = tacc[t]
        p = max(q for q in range(NP) if PFIRST[q] <= t)
        so, off = hreg[p], (t - PFIRST[p]) * 1024
        ops = [f"v_pk_mul_f32 {vr(r+2*i,2)}, {vr(r+2*i,2)}, {vr(r+8+2*i,2)}" for i in range(4)]
        ops += [f"v_pk_mul_f32 {vr(r+2*i,2)}, {vr(r+2*i,2)}, {vr(vR2,2)} op_sel:[0,{i//2}] op_sel_hi:[1,{i//2}]" for i in range(4)]
        if not packed:
            ops = [f"v_mul_f32 v{r+i}, v{r+i}, v{r+8+i}" for i in range(8)]
            ops += [f"v_mul_f32 v{r+i}, v{vR2 + i//4}, v{r+i}" for i in range(8)]
        ops += [f"v_cvt_pk_bf16_f32 v{r+8+i}, v{r+2*i}, v{r+2*i+1}" for i in (0, 2, 1, 3)]
        ops += [f"v_permlane32_swap_b32 v{r+8}, v{r+10}", "s_nop 0", f"v_permlane32_swap_b32 v{r+9}, v{r+11}"]
        ops.append((f"buffer_store_dwordx4 {vr(r+8,4)}, v{vX}, s[4:7], s{so} offen offset:{off}{SC}", ("hs", t)))
        return ops

    a("s_waitcnt vmcnt(0)")
    stamp(a, SB)
    handoff(a, 23, 16)
    stamp(a, SB + 1)
    if E("PRIO", 2):
        a(f"s_setprio {E('PRIO', 2)}")
    while na[0] < I0:
        load_x()
        if na[0] == E("STP", 4):
            a("s_barrier")
            for i in range(RAH):
                w_read(i)
            for q in range(4):
                a(f"buffer_load_dwordx4 {vr(tmp+4*q,4)}, v{V_L16}, s[4:7], s36 offen offset:{q*1024}{SC}")
                cvm.append("st")
    a(f"s_add_u32 s{S_SIG}, s52, {FL_D - FL_G:#x}")
    STF = (E("STP", 4) + 1) * PASSES[0]
    evs = os.environ.get("MLP_EV", "170:196:218,240:264:286,260:288:310")
    ev = []
    for p, x in enumerate(evs.split(",")):
        sg, ak, go = map(int, x.split(":"))
        ev.append((PFIRST[p] + PASSES[p] - 1, sg, ak, go, 8 * (PFIRST[p] + PASSES[p])))
    def emit(x):
        if isinstance(x, tuple):
            a(x[0]); cvm.append(x[1]); stored.add(x[1][1])
        else:
            a(x)
    dinit = [False]
    hlim = 0
    treg = list(range(78, 94, 2)) + [96, 98, 100, 62]
    tpos = [int(x) for x in os.environ.get("TRACE", "").split(",") if x]
    for i in range(NOPS):
        t, ks = slot(i)
        if i in tpos:
            r_ = treg[tpos.index(i)]
            a(f"s_memtime s[{r_}:{r_+1}]")
        for gi, (lt, sg, ak, go, lim_) in enumerate(ev):
            if i == sg:
                a.c(f"this wave's part {gi} of H is complete")
                assert lt in stored
                wait_tag(("hs", lt))
                a(f"s_add_u32 s54, s50, {gi*4}")
                a("s_mov_b32 s38, 1")
                a("s_atomic_add s38, s[14:15], s54")
            if i == ak:
                a(f"s_add_u32 s28, s52, {gi*4}")
                a("s_mov_b32 s55, 0")
                a("s_atomic_add s55, s[14:15], s28 glc")
            if i == go:
                ok = a.label("go")
                a("s_waitcnt lgkmcnt(0)")
                a("s_cmp_ge_u32 s55, 16")
                a(f"s_cbranch_scc1 {ok}")
                poll(a, 28, 16)
                a(f"{ok}:")
                hlim = lim_
                if gi in (0, NP - 1) and not tpos:
                    stamp(a, SD + (0 if gi == 0 else 4))
        if i in bars and i > 0:
            a("s_barrier")
        if i == STF:
            wait_tag("st")
            fill.extend(stats_ops(tmp, xc, vR2, True))
        if i == pstart[1] and not tpos:
            stamp(a, SB + 2)
        if i == NG and not tpos:
            stamp(a, SB + 3)
        if i in pstart[1:]:
            p = pstart.index(i) - 1
            assert not fill
            need = set(tacc[q] for q in range(PFIRST[p + 1], PFIRST[p + 1] + PASSES[p + 1])) if p + 1 < NP else set(dacc)
            tiles = list(range(PFIRST[p], PFIRST[p] + PASSES[p]))
            now = [q for q in tiles if tacc[q] in need or (E("SER", 15) >> p) & 1]
            if now:
                if tiles[-1] == now[0]:
                    a("s_nop 7")
                for q in now:
                    for x in h_ops(q):
                        emit(x)
            else:
                fill.extend(["s_nop 0"] * 6)
            for q in tiles:
                if q not in now:
                    fill.extend(h_ops(q, False))
        if i == NG and not tpos:
            stamp(a, SD + 1)
        if 3 in stored and not dinit[0] and not fill:
            dinit[0] = True
            assert i + 10 < NG
            fill.extend(["s_nop 0"] * 2)
            fill.extend(res_init(dacc[0]))
        if i % 2 == 0:
            L.wait(i + 1)
        if i == NOPS - 4 * TAIL:
            dead = beg[bars[-1]] // RB - 1
            assert dead + NR >= 29 and bars[-1] < i and 6 in stored
            SCR = (dead % NR) * RB
            fill.append(f"s_lshl_b32 s26, s{S_WAVE}, 12")
            fill.append(f"s_add_u32 s26, s26, {SCR}")
            fill.append("s_xor_b32 s27, s26, 0x2000")
            fill.append(f"v_add_u32 v{vX}, s26, v{V_L16}")
            fill.append(f"v_add_u32 v{vY}, s27, v{V_L16}")
        if i == NOPS - 2:
            L.wait("xw")
            a("s_barrier")
            for q in range(4):
                L.op(f"ds_read_b128 {vr(dacc[1]+4*q,4)}, v{vY} offset:{q*1024}", "xr")
        fh = i % 2
        for th in range(2):
            if th == 1 and i + RAH < NOPS:
                w_read(i + RAH)
            if t == 0 and fh == 0 and ks < 16:
                wait_tag(("x", 2 * ks + 1))
            if t is None:
                assert nh[0] > 2 * ks + 1
                wait_tag(("h", 2 * ks + 1))
            if t is not None:
                d, xa, first = tacc[t], (xc + 2 * th if ks == 16 else ring[2 * ks + th]), ks == 0
                if first and t >= 4:
                    assert t - 4 in stored
            else:
                d, xa, first = dacc[dord[i - NG][1]], ring[(2 * ks + th) % 32], i - NG in (2, 3)
                assert 4 in stored
            d += 8 * fh + 4 * th
            a(f"{M16} {vr(d,4)}, {vr(wf[i % NF],4)}, {vr(xa,4)}, {'0' if first else vr(d,4)}")
            for _ in range(min(E("FPS", 1), len(fill))):
                emit(fill.pop(0))
            j = i - (NOPS - 2 * TAIL) - 2
            if 0 <= j < 2:
                q = 2 * j + th
                L.op(f"ds_write_b128 v{vX}, {vr(dacc[1]+4*q,4)} offset:{q*1024}", "xw")
        if (i + 1) % PASSES[0] == 0 and na[0] < 32:
            assert na[0] < 28 or (i > STF and not fill), i
            load_x()
        if i >= pstart[NP - 1]:
            done = 2 * ((i + 1 - NG) // 4) if t is None else 0
            half = (i + 1 - NG) // 2 if t is None else 0
            look = I0D if t is not None else max(E("LK", 12), I0D - half)
            assert look <= 30
            if nh[0] < min(hlim, half + look) and (t is None or nh[0] < 2 * ks):
                load_h()
    assert nh[0] == 56 and not fill
    if E("PRIO", 2):
        a("s_setprio 0")
    stamp(a, SD + 2)
    for k in range(len(tpos)):
        a(f"v_writelane_b32 v{V_STAMP+1}, s{treg[k]}, {k}")
    res_epilogue(a, g, dacc[0], dacc[1], tmp, end)
    a(f"{end}:")
    return max(R.n, VS + 16 * S.maxreg)


def attn_phase(a, SB, code_end):
    U = 2
    NIT = 32 // U
    B2IT = env("ATT_B2", 1)
    B3IT = env("ATT_B3", 3)
    PRIO_IT = env("ATT_PRIO", 14)
    PFN = 4 if GMX == 4 else env('PFN', 6)
    CB = 0
    XB = CB + 4096
    KB, VB = 32768, 98304
    assert XB + 8 * 2304 <= KB
    R = Regs(V_FREE)
    vK, vV, vInc, vV0 = R.alloc(), R.alloc(), R.alloc(), R.alloc()
    t0, t1 = R.alloc(), R.alloc()
    vPA, vPP = R.alloc(), R.alloc()
    R.alloc(); R.alloc()
    vIx, vKp = R.alloc(), R.alloc()
    DYN = env("ATT_DYN", 0)
    Q = [R.alloc(4), R.alloc(4)]
    NM = [R.alloc(16), R.alloc(16)]
    O = [R.alloc(16), R.alloc(16)]
    S = [R.alloc(16), R.alloc(16)]
    P = R.alloc(8)
    KF = [R.alloc(4), R.alloc(4)]
    VF = [R.alloc(8), R.alloc(8)]
    a.c("================ phase attention ================")
    a(f"s_and_b32 s19, s{S_IDX}, 3")
    a(f"s_lshl_b32 s20, s{S_XCD}, 2")
    a("s_add_u32 s19, s19, s20")
    a(f"s_lshr_b32 s20, s{S_IDX}, 2")
    a("s_lshl_b32 s20, s20, 3")
    a(f"s_and_b32 s26, s{S_WAVE}, 3")
    a(f"s_lshr_b32 s27, s{S_WAVE}, 2")
    a("s_lshl_b32 s22, s26, 1")
    a("s_add_u32 s20, s20, s22")
    a("s_lshl_b32 s21, s19, 16")
    a(f"s_add_u32 s21, s21, s{S_BASE}")
    setup = a.label("att_setup")
    assert B_Q == 0 and B_V - B_K == 0x200000
    a("s_and_b32 s24, s26, 1")
    a("s_lshr_b32 s25, s26, 1")
    a("s_lshl_b32 s28, s24, 16")
    a(f"s_add_u32 s28, s28, {KB}")
    a("s_lshl_b32 s29, s24, 21")
    a("s_add_u32 s29, s29, s21")
    a(f"s_add_u32 s29, s29, {B_K:#x}")

    def dma(first_tile, per_wave):
        a(f"s_mul_i32 s24, s25, {per_wave*1024}")
        if first_tile:
            a(f"s_add_u32 s24, s24, {first_tile*1024}")
        n = 0
        while n < per_wave:
            a("s_add_u32 s30, s28, s24")
            a("s_mov_b32 m0, s30")
            a("s_add_u32 s31, s29, s24")
            for i in range(min(4, per_wave - n)):
                a(f"buffer_load_dwordx4 v{V_L16}, s[4:7], s31 offen offset:{i*1024}{SC} lds")
            n += 4
            if n < per_wave:
                a("s_add_u32 s24, s24, 4096")
    a(f"v_and_b32 v{t0}, 11, v0")
    a(f"v_cmp_eq_u32 vcc, 0, v{t0}")
    a(f"v_mov_b32 v{t1}, 0x3f803f80")
    a("s_lshl_b32 s30, s26, 10")
    a(f"s_add_u32 s30, s30, {CB}")
    a(f"v_cndmask_b32 v{P}, 0, v{t1}, vcc")
    a(f"v_add_u32 v{t0}, s30, v{V_L16}")
    for i in range(1, 4):
        a(f"v_mov_b32 v{P+i}, v{P}")
    a(f"ds_write_b128 v{t0}, {vr(P,4)}")
    a(f"v_lshrrev_b32 v{t0}, 5, v0")
    a(f"v_lshlrev_b32 v{t0}, 8, v{t0}")
    a(f"v_and_b32 v{t1}, 15, v0")
    a(f"v_lshl_add_u32 v{t0}, v{t1}, 4, v{t0}")
    a(f"v_and_b32 v{t1}, 16, v0")
    a(f"v_cmp_eq_u32 vcc, 0, v{t1}")
    a("s_lshl_b32 s30, s27, 15")
    a(f"s_add_u32 s30, s30, {KB}")
    kp1, kpj = a.label("kp1"), a.label("kpj")
    a(f"s_cmp_lg_u32 s{S_IT}, 0")
    a(f"s_cbranch_scc1 {kp1}")
    a(f"v_and_b32 v{vKp}, 0x33, v0")
    a(f"v_bfe_u32 v{vIx}, v0, 2, 1")
    a(f"v_lshl_or_b32 v{vKp}, v{vIx}, 3, v{vKp}")
    a(f"v_bfe_u32 v{vIx}, v0, 3, 1")
    a(f"v_lshl_or_b32 v{vKp}, v{vIx}, 2, v{vKp}")
    a(f"s_branch {kpj}")
    a(f"{kp1}:")
    a(f"v_and_b32 v{vKp}, 0x23, v0")
    a(f"v_bfe_u32 v{vIx}, v0, 2, 1")
    a(f"v_lshl_or_b32 v{vKp}, v{vIx}, 4, v{vKp}")
    a(f"v_bfe_u32 v{vIx}, v0, 3, 2")
    a(f"v_lshl_or_b32 v{vKp}, v{vIx}, 2, v{vKp}")
    a(f"{kpj}:")
    a(f"v_lshlrev_b32 v{vKp}, 4, v{vKp}")
    a(f"v_mov_b32 v{vIx}, 0xdddddddd")
    a(f"v_add_u32 v{vK}, s30, v{vKp}")
    a("s_add_u32 s31, s30, 0x10000")
    a(f"v_mov_b32 v{t1}, s31")
    a(f"v_mov_b32 v{vInc}, {CB}")
    a(f"v_cndmask_b32 v{t1}, v{vInc}, v{t1}, vcc")
    a(f"v_add_u32 v{vV}, v{t0}, v{t1}")
    a(f"v_mov_b32 v{t1}, {VB}")
    a(f"v_cndmask_b32 v{t1}, v{vInc}, v{t1}, vcc")
    a(f"v_add_u32 v{vV0}, v{t0}, v{t1}")
    a(f"v_mov_b32 v{t1}, {U*1024}")
    a(f"v_cndmask_b32 v{vInc}, 0, v{t1}, vcc")
    for q in range(2):
        for i in range(16):
            a(f"v_mov_b32 v{O[q]+i}, 0")
    for i in range(4, 8):
        a(f"v_mov_b32 v{VF[1]+i}, 0")
    a(f"ds_write_b128 v{V_L16}, {vr(VF[1]+4,4)} offset:{XB + 9216}")
    a("s_mul_i32 s30, s26, 2304")
    a(f"s_add_u32 s30, s30, {XB}")
    a("s_lshl_b32 s31, s26, 12")
    a(f"s_add_u32 s31, s31, {XB + 12288}")
    a("s_cmp_eq_u32 s27, 0")
    a("s_cselect_b32 s35, s30, s31")
    a("s_cselect_b32 s36, s31, s30")
    a(f"v_add_u32 v{vPA}, s35, v{V_L16}")
    a(f"v_add_u32 v{vPP}, s36, v{V_L16}")
    a(f"v_add_u32 v{vPA+2}, s35, v{V_L4}")
    a(f"v_add_u32 v{vPP+2}, s36, v{V_L4}")
    a("s_add_u32 s20, s20, s27")
    a("s_lshl_b32 s22, s20, 10")
    a("s_add_u32 s22, s22, s21")
    a("s_xor_b32 s35, s22, 1024")
    a(f"s_add_u32 s36, s21, {B_K:#x}")
    a("s_lshr_b32 s23, s19, 1")
    a(f"s_cmp_eq_u32 s{S_IT}, 0")
    a("s_cselect_b32 s53, 32, 16")
    a("s_cselect_b32 s52, -2, -1")
    a(f"s_cselect_b32 s32, {NIT - env('ATT_PRIO0', 15)}, {NIT - PRIO_IT}")
    a("s_and_b32 s23, s23, s52")
    a("s_lshl_b32 s23, s23, 8")
    a(f"s_add_u32 s23, s23, s{S_FL}")
    assert FL_Q == 0
    a(f"s_mov_b32 s34, {NIT - B2IT}")
    a(f"s_mov_b32 s33, {NIT - B3IT}")
    F, G_, vS, vR, vC = V_TF, V_TF + 32, V_TF + 48, V_TF + 49, V_TF + 52
    CSA = XB + 10240
    CNT = XB + 9216
    a.c("re-tiling task: 128 rows x two 64-column strips; this wave takes 32 rows")
    def by_type(fq, fg, fo, fd):
        l_gu, l_o, l_d, l_go = [a.label(x) for x in ("gu", "o", "d", "go")]
        a("s_cmp_ge_u32 s2, 176")
        a(f"s_cbranch_scc1 {l_d}")
        a("s_cmp_ge_u32 s2, 160")
        a(f"s_cbranch_scc1 {l_o}")
        a("s_cmp_ge_u32 s2, 48")
        a(f"s_cbranch_scc1 {l_gu}")
        fq()
        a(f"s_branch {l_go}")
        a(f"{l_gu}:")
        fg()
        a(f"s_branch {l_go}")
        a(f"{l_o}:")
        fo()
        a(f"s_branch {l_go}")
        a(f"{l_d}:")
        fd()
        a(f"{l_go}:")
    def src(lo0, lo1, nbytes, first, stride, kq_low):
        def f():
            srd(a, 80, lo0, lo0 + 1, nbytes)
            srd(a, 84, lo1, lo1 + 1, nbytes)
            a(f"s_sub_u32 s55, s2, {first}")
            a(f"s_and_b32 s{79 if kq_low else 91}, s55, 3")
            a(f"s_lshr_b32 s{91 if kq_low else 79}, s55, 2")
            a(f"s_mov_b32 s88, {stride}")
            a(f"s_lshl_b32 s89, s91, {8 if lo0 == lo1 else 7}")
            a(f"s_add_u32 s90, s89, {128 if lo0 == lo1 else 0}")
        return f
    by_type(src(66, 66, 512 * 1536 * 2, 0, 3072, True), src(72, 74, 512 * 1792 * 2, 48, 3584, True),
            src(68, 68, 512 * 512 * 2, 160, 1024, False), src(76, 76, 1792 * 512 * 2, 176, 1024, False))
    a("s_lshl2_add_u32 s92, s79, s26")
    a("s_lshl_b32 s62, s92, 5")
    a("s_mul_i32 s62, s62, s88")
    a("s_add_u32 s89, s89, s62")
    a("s_add_u32 s90, s90, s62")
    a("s_lshl_b32 s55, s88, 3")
    a(f"v_lshrrev_b32 v{vS}, 3, v0")
    a(f"v_mul_lo_u32 v{vS}, v{vS}, s88")
    a(f"v_and_b32 v{vR}, 7, v0")
    a(f"v_lshl_add_u32 v{vS}, v{vR}, 4, v{vS}")
    a("s_waitcnt vmcnt(0) lgkmcnt(0)")
    stamp(a, SB)
    a("s_barrier")
    yp = a.label("yparam")
    a("s_cmp_lg_u32 s27, 0")
    a(f"s_cbranch_scc1 {yp}")
    a(f"s_cmp_lg_u32 s{S_WAVE}, 0")
    a(f"s_cbranch_scc1 {setup}")
    handoff(a, 23, "s53")
    stamp(a, SB + 1)
    a(f"s_branch {setup}")
    a(f"{yp}:")
    a.c("L2 prefetch: this wave's share of gate/up (2 x 8 KB) and wo (8 KB)")
    NPG = GMX // 2
    a(f"s_mul_i32 s50, s{S_IDX}, {WNT_G * GMX // 16}")
    a(f"s_and_b32 s23, s{S_XCD}, {8 // GMX - 1}")
    a(f"s_mul_i32 s23, s23, {2 * GMX * WNT_G}")
    a("s_add_u32 s50, s50, s23")
    a(f"s_mul_i32 s23, s26, {NPG * 8192}")
    a("s_add_u32 s50, s50, s23")
    a(f"s_add_u32 s50, s50, {WS_WGU:#x}")
    a(f"s_lshl2_add_u32 s51, s{S_IDX}, s26")
    a(f"s_mul_i32 s51, s51, {RMX * 512}")
    a(f"s_and_b32 s23, s{S_XCD}, {8 // RMX - 1}")
    a(f"s_mul_i32 s23, s23, {RMX * 65536}")
    a("s_add_u32 s51, s51, s23")
    a(f"s_add_u32 s51, s51, {WS_WO:#x}")
    a(f"s_lshl2_add_u32 s52, s{S_IDX}, s26")
    a(f"s_mul_i32 s52, s52, {RMX * 1792}")
    a(f"s_and_b32 s23, s{S_XCD}, {8 // RMX - 1}")
    a(f"s_mul_i32 s23, s23, {RMX * 224 * 1024}")
    a("s_add_u32 s52, s52, s23")
    a(f"s_add_u32 s52, s52, {WS_WD:#x}")
    a(f"s_mov_b32 s39, {SPIN_MAX}")
    a("s_mov_b32 s33, 6")
    a(f"s_mov_b32 s34, {NIT - 1}")
    a(f"s_cmp_lg_u32 s{S_IT}, 0")
    a(f"s_cbranch_scc1 {setup}")
    a("s_mov_b32 s33, 1")
    a(f"s_mov_b32 s34, {NIT - env('ATT_G0', 4)}")
    a(f"{setup}:")
    a("s_barrier")

    def qk_loads():
        a(f"buffer_load_dwordx4 {vr(KF[1],4)}, v{vKp}, s[4:7], s36 offen{SC}")
        a(f"buffer_load_dwordx4 {vr(Q[0],4)}, v{V_L16}, s[4:7], s35 offen{SC}")
        a(f"buffer_load_dwordx4 {vr(Q[1],4)}, v{V_L16}, s[4:7], s22 offen{SC}")

    def standin():
        for q in range(2):
            a(f"{MFMA} {vr(S[q],16)}, {vr(KF[1],4)}, {vr(Q[q],4)}, 0")
        a("s_nop 11")
        tt = (t0, t1)
        for q in range(2):
            a(f"v_max3_f32 v{tt[q]}, v{S[q]}, v{S[q]+1}, v{S[q]+2}")
            a(f"v_max3_f32 v{P+q}, v{S[q]+8}, v{S[q]+9}, v{S[q]+10}")
        for i in (3, 5):
            for q in range(2):
                a(f"v_max3_f32 v{tt[q]}, v{tt[q]}, v{S[q]+i}, v{S[q]+i+1}")
                a(f"v_max3_f32 v{P+q}, v{P+q}, v{S[q]+8+i}, v{S[q]+9+i}")
        for q in range(2):
            a(f"v_max3_f32 v{tt[q]}, v{tt[q]}, v{S[q]+7}, v{S[q]+15}")
        for q in range(2):
            a(f"v_max_f32 v{tt[q]}, v{tt[q]}, v{P+q}")
        for q in range(2):
            a(f"v_mov_b32 v{P+q}, v{tt[q]}")
        a("s_nop 0")
        for q in range(2):
            a(f"v_permlane32_swap_b32 v{tt[q]}, v{P+q}")
        for q in range(2):
            a(f"v_min_f32 v{NM[q]}, -v{tt[q]}, -v{P+q}")
        for q in range(2):
            a(f"v_mov_b32 v{NM[q]+1}, v{NM[q]}")
        for q in range(2):
            for i in range(2, 16, 2):
                a(f"v_pk_mov_b32 {vr(NM[q]+i,2)}, {vr(NM[q],2)}, {vr(NM[q],2)}")

    older, join = a.label("older"), a.label("join")
    a("s_cmp_eq_u32 s27, 0")
    a(f"s_cbranch_scc1 {older}")
    dma(0, 2)
    dma(4, 6)
    a("s_waitcnt vmcnt(6)")
    a("s_barrier")
    stamp(a, SB + 2)
    qk_loads()
    dma(16, 8)
    a("s_waitcnt vmcnt(11)")
    a("s_barrier")
    dma(32, 16)
    a("s_waitcnt vmcnt(24)")
    standin()
    a("s_waitcnt vmcnt(0)")
    a("s_barrier")
    a("s_setprio 1")
    a(f"ds_read_b128 {vr(KF[0],4)}, v{vK}")
    a(f"ds_read_b128 {vr(VF[0],4)}, v{vV}")
    a(f"ds_read_b128 {vr(VF[0]+4,4)}, v{vV} offset:512")
    nl0 = a.label("noraw")
    a(f"s_cmp_lg_u32 s{S_IT}, 0")
    a(f"s_cbranch_scc1 {nl0}")
    for g8 in range(4):
        for h in range(2):
            a(f"buffer_load_dwordx4 {vr(F+16*h+4*g8,4)}, v{vS}, s[{80+4*h}:{83+4*h}], s{89+h} offen")
            a(f"s_add_u32 s{89+h}, s{89+h}, s55")
    a(f"{nl0}:")
    a("s_waitcnt lgkmcnt(0)")
    a(f"{MFMA} {vr(S[0],16)}, {vr(KF[0],4)}, {vr(Q[0],4)}, {vr(NM[0],16)}")
    a("s_nop 10")
    a(f"s_branch {join}")
    a(f"{older}:")
    qk_loads()
    a("s_waitcnt vmcnt(0)")
    standin()
    a(f"{MFMA} {vr(S[0],16)}, {vr(KF[1],4)}, {vr(Q[0],4)}, {vr(NM[0],16)}")
    a("s_barrier")
    stamp(a, SB + 2)
    a(f"ds_read_b128 {vr(VF[0],4)}, v{vV}")
    a(f"ds_read_b128 {vr(VF[0]+4,4)}, v{vV} offset:512")
    for i in range(0, 4, 2):
        a(f"v_pk_mov_b32 {vr(KF[0]+i,2)}, {vr(KF[1]+i,2)}, {vr(KF[1]+i,2)} op_sel:[0,1]")
    a("s_waitcnt lgkmcnt(0)")
    a("s_nop 5")
    a(f"{join}:")
    a(f"s_mov_b32 s31, {NIT}")
    stamp(a, SB + 3)
    lp, hook, back, hp, exitc = [a.label(x) for x in ("attn", "hook", "back", "hookp", "exitc")]
    a(f"{lp}:")
    order = os.environ.get("ATT_ORD", "E0 E1 P1 W RK E2 E3 E4 QK R0 D E5 E6 E7 E8 E9 E10 P0 R1 S E11 E12 E13 A E14 E15").split()
    for u in range(U):
        for q in range(2):
            c = S[q]
            for tok in order:
                if tok[0] == "E":
                    i = int(tok[1:]); a(f"v_exp_f32 v{c+i}, v{c+i}")
                elif tok[0] == "C":
                    j = int(tok[1:]); a(f"v_cvt_pk_bf16_f32 v{P+j}, v{c+2*j}, v{c+2*j+1}")
                elif tok == "P1":
                    pv = VF[(u + 1) & 1] if q == 0 else VF[u & 1]
                    a(f"{SMF} {vr(O[q^1],16)}, {vr(pv+4,4)}, {vr(S[q^1]+8,8)}, v{vIx}")
                elif tok == "P0":
                    a(f"{SMF} {vr(O[q],16)}, {vr(VF[u&1],4)}, {vr(S[q],8)}, v{vIx}")
                elif tok == "QK":
                    k_ = KF[u & 1] if q == 0 else KF[(u + 1) & 1]
                    a(f"{MFMA} {vr(S[q^1],16)}, {vr(k_,4)}, {vr(Q[q^1],4)}, {vr(NM[q^1],16)}")
                elif tok == "W":
                    if q == 1:
                        a("s_waitcnt lgkmcnt(0)")
                elif tok == "RK":
                    if q == 0:
                        a(f"ds_read_b128 {vr(KF[(u+1)&1],4)}, v{vK} offset:{(u+1)*1024}")
                elif tok == "R0":
                    if q == 0:
                        a(f"ds_read_b128 {vr(VF[(u+1)&1],4)}, v{vV} offset:{(u+1)*1024}")
                elif tok == "R1":
                    if q == 0:
                        a(f"ds_read_b128 {vr(VF[(u+1)&1]+4,4)}, v{vV} offset:{(u+1)*1024+512}")
                elif tok == "A":
                    if u == U - 1 and q == 1:
                        a(f"v_add_u32 v{vK}, {U*1024}, v{vK}")
                        a(f"v_add_u32 v{vV}, v{vInc}, v{vV}")
                elif tok == "D":
                    if 2 * u + q == env("ATT_PU", 3):
                        sk = a.label("keep")
                        a("s_cmp_lg_u32 s31, s32")
                        a(f"s_cbranch_scc1 {sk}")
                        a("s_setprio 0")
                        a(f"{sk}:")
                elif tok == "S":
                    if u == U - 1 and q == 1:
                        a("s_sub_u32 s31, s31, 1")
                        a("s_cmp_lg_u32 s31, s34")
    if "S" not in order:
        a("s_sub_u32 s31, s31, 1")
        a("s_cmp_lg_u32 s31, s34")
    a(f"s_cbranch_scc1 {lp}")
    a("s_cmp_lg_u32 s31, 0")
    a(f"s_cbranch_scc1 {hook}")
    a(f"{exitc}:")
    a("s_cmp_lg_u32 s33, 0")
    a(f"s_cbranch_scc1 {hp}")
    a("s_setprio 0")
    a(f"{SMF} {vr(O[1],16)}, {vr(VF[1]+4,4)}, {vr(S[1]+8,8)}, v{vIx}")
    stamp(a, SB + 4)
    a(f"ds_write_b128 v{vPA}, {vr(O[0],4)}")
    a(f"ds_write_b128 v{vPA}, {vr(O[0]+4,4)} offset:1024")
    a(f"ds_write_b32 v{vPA+2}, v{O[0]+8} offset:2048")
    a("s_lshl_b32 s22, s20, 15")
    a("s_lshl_b32 s23, s19, 10")
    a("s_add_u32 s22, s22, s23")
    a(f"s_add_u32 s22, s22, s{S_BASE}")
    a(f"s_add_u32 s22, s22, {B_O:#x}")
    a(f"s_lshl_b32 s{S_SIG}, s20, 8")
    a(f"s_add_u32 s{S_SIG}, s{S_SIG}, s{S_FL}")
    a(f"s_add_u32 s{S_SIG}, s{S_SIG}, {FL_A:#x}")
    a("s_waitcnt vmcnt(0) lgkmcnt(0)")
    a("s_barrier")
    a(f"ds_read_b32 v{S[0]+8}, v{vPP+2} offset:2048")
    a(f"ds_read_b128 {vr(S[0],4)}, v{vPP}")
    a(f"ds_read_b128 {vr(S[0]+4,4)}, v{vPP} offset:1024")
    OO = O[1]
    a("s_waitcnt lgkmcnt(2)")
    a(f"v_add_f32 v{OO+8}, v{OO+8}, v{S[0]+8}")
    a(f"v_rcp_f32 v{t0}, v{OO+8}")
    for i in range(0, 8, 2):
        if i % 4 == 0:
            a(f"s_waitcnt lgkmcnt({1 - i // 4})")
        a(f"v_pk_add_f32 {vr(OO+i,2)}, {vr(OO+i,2)}, {vr(S[0]+i,2)}")
    fin, fb, endl = a.label("fin"), a.label("fallback"), a.label("att_end")
    a(f"v_pk_add_f32 {vr(S[0],2)}, {vr(OO,2)}, {vr(OO+2,2)}")
    a(f"v_pk_add_f32 {vr(S[0]+2,2)}, {vr(OO+4,2)}, {vr(OO+6,2)}")
    a(f"v_pk_add_f32 {vr(S[0],2)}, {vr(S[0],2)}, {vr(S[0]+2,2)}")
    a(f"v_add_f32 v{t1}, v{S[0]}, v{S[0]+1}")
    a(f"v_fma_f32 v{t1}, 0, v{t1}, v{OO+8}")
    a(f"v_cmp_ngt_f32 vcc, {f32bits(2.0**64):#x}, v{t1}")
    a("s_nop 0")
    a(f"s_cbranch_vccnz {fb}")
    a(f"{fin}:")
    assert t0 % 2 == 0
    for i in range(0, 8, 2):
        a(f"v_pk_mul_f32 {vr(OO+i,2)}, {vr(OO+i,2)}, {vr(t0,2)} op_sel_hi:[1,0]")
    for i in range(4):
        a(f"v_cvt_pk_bf16_f32 v{P+i}, v{OO+2*i}, v{OO+2*i+1}")
    a(f"buffer_store_dwordx4 {vr(P,4)}, v{V_L16}, s[4:7], s22 offen{SC}")
    a("s_barrier")
    stamp(a, SB + 5)
    a(f"s_branch {endl}")
    a(f"{back}:")
    a("s_cmp_lg_u32 s31, 0")
    a(f"s_cbranch_scc1 {lp}")
    a("s_sub_u32 s39, s39, 1")
    a("s_cmp_eq_u32 s39, 0")
    a("s_cselect_b32 s33, 0, s33")
    a(f"s_branch {exitc}")
    a(f"{hook}:")
    a("s_cmp_eq_u32 s27, 0")
    a(f"s_cbranch_scc0 {hp}")
    a("s_barrier")
    a("s_mov_b32 s34, s33")
    a("s_mov_b32 s33, 0")
    a(f"s_add_u32 s23, s34, s{S_IT}")
    a("s_cmp_lg_u32 s23, 0")
    a(f"s_cbranch_scc1 {back}")
    a.c("residual tile of x for the first output projection")
    row_offset(a, V_TF, V_TF + 1)
    a(f"s_and_b32 s23, s{S_WAVE}, 1")
    a(f"s_add_u32 s23, s23, s{S_TT64}")
    a("s_lshl_b32 s23, s23, 15")
    a(f"s_lshl_b32 s24, s{S_NT64}, 1")
    a(f"s_lshr_b32 s25, s{S_WAVE}, 1")
    a("s_add_u32 s24, s24, s25")
    a("s_lshl_b32 s24, s24, 6")
    a("s_add_u32 s23, s23, s24")
    a(f"buffer_load_dwordx4 {vr(V_RES,4)}, v{V_TF}, s[8:11], s23 offen")
    a("s_add_u32 s24, s23, 16384")
    a(f"buffer_load_dwordx4 {vr(V_RES+4,4)}, v{V_TF}, s[8:11], s24 offen")
    a(f"s_branch {back}")
    a(f"{hp}:")
    hs = [a.label(f"hs{i}") for i in range(8)]
    for i in (1, 2, 3, 4, 5, 6):
        a(f"s_cmp_eq_u32 s33, {i}")
        a(f"s_cbranch_scc1 {hs[i]}")
    HS = -9
    def goto(step, gap):
        a(f"s_mov_b32 s33, {step}")
        a(f"s_max_u32 s34, s34, {gap}")
        a(f"s_sub_u32 s34, s34, {gap}")
        a(f"s_branch {back}")
    def next_step(i):
        goto(i + 1, env(f"ATT_G{i}", 3))
    a.c("fetch the last rounds of the down weights into free registers")
    a(f"s_mul_i32 s23, s{S_NT64}, {224*1024}")
    a("s_lshl_b32 s62, s26, 12")
    a("s_add_u32 s23, s23, s62")
    a(f"s_add_u32 s23, s23, {WS_WD + (14 - NPRE)*RB:#x}")
    assert VS + (14 - NPRE) * 16 >= V_TF
    for k in range(NPRE):
        for i in range(4):
            a(f"buffer_load_dwordx4 {vr(VS + (14-NPRE+k)*16 + 4*i, 4)}, v{V_L16}, s[4:7], s23 offen offset:{i*1024}{SC}")
        a(f"s_add_u32 s23, s23, {RB}")
    a("s_mov_b32 s33, 0")
    a("s_mov_b32 s34, 0")
    a(f"s_branch {back}")
    a(f"{hs[1]}:")
    nost = a.label("nostore")
    a("s_cmp_ge_u32 s2, 232")
    a(f"s_cbranch_scc1 {nost}")
    if env("X_NOTR", 0):
        a(f"s_branch {nost}")
    dests, strides = (96, 97, 100, 101), (80, 81, 82, 83)
    vO = vC + 8
    a(f"v_mov_b32 v{vO}, v{V_L16}")
    def plain(d1, delta, stride, cs):
        a("s_add_u32 s97, s96, 1024")
        a(f"s_add_u32 s100, s96, {d1}")
        a(f"s_add_u32 s101, s96, {d1 + 1024}")
        a(f"s_mov_b32 s93, {delta}")
        for e in strides:
            a(f"s_mov_b32 s{e}, {stride}")
        a(f"s_mov_b32 s63, {cs}")
    def dq():
        a("s_and_b32 s62, s91, 3")
        a(f"s_mul_i32 s96, s62, {4*WNT_Q}")
        a("s_lshr_b32 s62, s91, 2")
        a("s_lshr_b32 s78, s62, 1")
        a("s_lshl_b32 s62, s62, 11")
        a("s_add_u32 s96, s96, s62")
        assert WS_WQKV == 0
        plain(WNT_Q, 2 * WNT_Q, 6144, 1)
    def dg():
        a("s_lshl_b32 s55, s91, 2")
        for d, e in zip(dests, strides):
            a("s_mul_i32 s62, s55, 9363")
            a("s_lshr_b32 s62, s62, 16")
            a(f"s_mul_i32 s{d}, s62, {WNT_G}")
            a("s_mul_i32 s62, s62, 7")
            a("s_sub_u32 s62, s55, s62")
            pass_of(a, 62, 78, e)
            a(f"s_lshl_b32 s{e}, s{e}, 11")
            a("s_lshl4_add_u32 s62, s78, s62")
            a("s_lshl_b32 s62, s62, 11")
            a(f"s_add_u32 s{d}, s{d}, s62")
            a(f"s_add_u32 s{d}, s{d}, {WS_WGU:#x}")
            a("s_add_u32 s55, s55, 1")
        a("s_mov_b32 s93, 1024")
        a("s_mov_b32 s63, 1")
        a("s_mov_b32 s78, 1")
    def do():
        a("s_lshl_b32 s96, s91, 17")
        a(f"s_add_u32 s96, s96, {WS_WO:#x}")
        plain(2048, 64 * 1024, 4096, 0)
        a("s_mov_b32 s78, 0")
    def dd():
        a(f"s_mul_i32 s96, s91, {2*224*1024}")
        a(f"s_add_u32 s96, s96, {WS_WD:#x}")
        plain(2048, 224 * 1024, 0, 0)
        for d, inc in ((84, 0), (85, 1)):
            a("s_lshl_b32 s62, s92, 1")
            a(f"s_add_u32 s62, s62, {inc}")
            a("s_mul_i32 s54, s62, 9363")
            a("s_lshr_b32 s54, s54, 16")
            a("s_mul_i32 s55, s54, 7")
            a("s_sub_u32 s55, s62, s55")
            pass_of(a, 55, 78, 49)
            a("s_mul_i32 s54, s54, s49")
            a("s_mul_i32 s78, s78, 15")
            a("s_add_u32 s54, s54, s78")
            a("s_add_u32 s54, s54, s55")
            a("s_lshr_b32 s55, s54, 1")
            a("s_lshl_b32 s55, s55, 12")
            a("s_and_b32 s54, s54, 1")
            a("s_lshl_b32 s54, s54, 9")
            a(f"s_add_u32 s{d}, s54, s55")
        a("v_cmp_gt_u32 vcc, 32, v0")
        a(f"v_mov_b32 v{vC}, s84")
        a(f"v_mov_b32 v{vC+1}, s85")
        a(f"v_cndmask_b32 v{vC}, v{vC+1}, v{vC}, vcc")
        a(f"v_and_b32 v{vO}, 0x1ff, v{V_L16}")
        a(f"v_add_u32 v{vO}, v{vO}, v{vC}")
        a("s_mov_b32 s78, 0")
    by_type(dq, dg, do, dd)
    a("s_lshl_b32 s62, s26, 12")
    a(f"s_add_u32 s62, s62, {XB + 12288}")
    a(f"v_add_u32 v{vS}, s62, v{V_L16}")
    a(f"v_and_b32 v{vC}, 1, v0")
    a(f"v_bfe_u32 v{vC+1}, v0, 1, 1")
    a(f"v_lshl_add_u32 v{vC}, v{vC}, 1, v{vC+1}")
    a(f"v_and_b32 v{vC+1}, 3, v0")
    a(f"v_lshlrev_b32 v{vC+1}, 1, v{vC+1}")
    a("s_cmp_eq_u32 s78, 0")
    a("s_cselect_b64 vcc, -1, 0")
    a("s_cselect_b32 s55, 8, 32")
    a(f"v_lshrrev_b32 v{vR}, 4, v0")
    a(f"v_cndmask_b32 v{vC}, v{vC}, v{vC+1}, vcc")
    a(f"v_bfe_u32 v{vC+1}, v0, 2, 2")
    a(f"v_lshl_add_u32 v{vR}, v{vR}, 3, v{vC+1}")
    a(f"v_lshlrev_b32 v{vR}, 7, v{vR}")
    a(f"v_lshl_add_u32 v{vR}, v{vC}, 3, v{vR}")
    a(f"v_add_u32 v{vR}, s62, v{vR}")
    a(f"v_add_u32 v{vR+1}, s55, v{vR}")
    a("s_mov_b32 s49, 0x3f803f80")
    a("s_waitcnt vmcnt(0)")
    for h in range(2):
        dst = G_ if h == 0 else F
        for g8 in range(4):
            a(f"ds_write_b128 v{vS}, {vr(F+16*h+4*g8,4)} offset:{g8*1024}")
        for e in range(4):
            for jj in range(2):
                a(f"ds_read_b64_tr_b16 {vr(dst+4*e+2*jj,2)}, v{vR + (e&1)} offset:{(e>>1)*64 + jj*512}")
        a("s_waitcnt lgkmcnt(0)")
        for e in range(4):
            a(f"s_mul_i32 s62, s92, s{strides[e]}")
            a(f"s_add_u32 s62, s62, s{dests[e]}")
            if h:
                a("s_add_u32 s62, s62, s93")
            if not env("X_NOST", 0):
                a(f"buffer_store_dwordx4 {vr(dst+4*e,4)}, v{vO}, s[4:7], s62 offen{SC}")
    a("s_cmp_eq_u32 s63, 0")
    a(f"s_cbranch_scc1 {nost}")
    if env("X_NOCS", 0):
        a(f"s_branch {nost}")
    for k in range(4):
        for h in range(2):
            for e in range(4):
                c, x = vC + 4 * h + e, (G_ if h == 0 else F) + 4 * e + k
                if k == 0:
                    a(f"v_dot2_f32_bf16 v{c}, v{x}, s49, 0")
                else:
                    a(f"v_dot2_f32_bf16 v{c}, v{x}, s49, v{c}")
    a("s_lshl_b32 s62, s26, 9")
    a(f"v_add_u32 v{vS}, s62, v{V_L4}")
    a(f"v_mov_b32 v{vR}, 1")
    a(f"v_mov_b32 v{vR+1}, {CNT}")
    for h in range(2):
        for e in range(2):
            a(f"v_permlane32_swap_b32 v{vC+4*h+e}, v{vC+4*h+e+2}")
    for h in range(2):
        for e in range(2):
            a(f"v_add_f32 v{vC+4*h+e}, v{vC+4*h+e}, v{vC+4*h+e+2}")
    a("s_nop 0")
    for h in range(2):
        a(f"v_permlane16_swap_b32 v{vC+4*h}, v{vC+4*h+1}")
    for h in range(2):
        a(f"v_add_f32 v{vC+4*h}, v{vC+4*h}, v{vC+4*h+1}")
    for h in range(2):
        a(f"ds_write_b32 v{vS}, v{vC+4*h} offset:{CSA + h*256}")
    a("s_mov_b64 exec, 1")
    a(f"ds_add_rtn_u32 v{vR+2}, v{vR+1}, v{vR}")
    a("s_mov_b64 exec, -1")
    a("s_waitcnt lgkmcnt(0)")
    a(f"v_readfirstlane_b32 s62, v{vR+2}")
    a("s_nop 0")
    a("s_cmp_lg_u32 s62, 3")
    a(f"s_cbranch_scc1 {nost}")
    a.c("last of the four waves: write the column-sum pieces")
    for w in range(4):
        for h in range(2):
            a(f"ds_read_b32 v{F+16+2*w+h}, v{V_L4} offset:{CSA + w*512 + h*256}")
    a(f"v_and_b32 v{vS}, 0xff, v{V_L16}")
    for e in range(4):
        a(f"s_lshl4_add_u32 s62, s{strides[e]}, s{dests[e]}")
        a(f"s_mov_b32 exec_lo, {(0xffff << (16*e)) & 0xffffffff if e < 2 else 0:#x}")
        a(f"s_mov_b32 exec_hi, {(0xffff << (16*(e-2))) if e >= 2 else 0:#x}")
        a(f"v_add_u32 v{vS}, s62, v{vS}")
    a("s_mov_b64 exec, -1")
    a("s_lshl_b32 s92, s79, 8")
    a("s_add_u32 s62, s92, s93")
    a("s_waitcnt lgkmcnt(0)")
    for h in range(2):
        c, o = F + 16 + h, F + 24 + 4 * h
        for w in range(1, 4):
            a(f"v_add_f32 v{c}, v{c}, v{c+2*w}")
        a(f"v_cvt_pk_bf16_f32 v{o}, v{c}, v{c}")
        a(f"v_lshlrev_b32 v{o}, 16, v{o}")
        a(f"v_sub_f32 v{o}, v{c}, v{o}")
        a(f"v_cvt_pk_bf16_f32 v{o}, v{c}, v{o}")
        a(f"v_mov_b32 v{o+1}, v{o}")
        a(f"v_mov_b32 v{o+2}, 0")
        a(f"v_mov_b32 v{o+3}, 0")
        a(f"buffer_store_dwordx4 {vr(o,4)}, v{vS}, s[4:7], s{(92, 62)[h]} offen{SC}")
    a(f"{nost}:")
    next_step(1)
    a(f"{hs[2]}:")
    if 2 - HS in (0, 1):
        stamp(a, 2 * (2 - HS))
    nsig = a.label("nosig")
    a(f"v_mov_b32 v{vR}, 1")
    a(f"v_mov_b32 v{vR+1}, {CNT + 4}")
    a("s_waitcnt vmcnt(0)")
    a("s_mov_b64 exec, 1")
    a(f"ds_add_rtn_u32 v{vR+2}, v{vR+1}, v{vR}")
    a("s_mov_b64 exec, -1")
    a("s_and_b32 s23, s2, 15")
    a("s_lshl_b32 s23, s23, 8")
    a(f"s_add_u32 s23, s23, {FL_W:#x}")
    a("s_mov_b32 s38, 1")
    a("s_waitcnt lgkmcnt(0)")
    a(f"v_readfirstlane_b32 s62, v{vR+2}")
    a("s_nop 0")
    a("s_cmp_lg_u32 s62, 3")
    a(f"s_cbranch_scc1 {nsig}")
    a("s_atomic_add s38, s[14:15], s23")
    a(f"{nsig}:")
    if env("WARM", 1):
        a.c("pull the rest of the code into L2 and touch every workspace page once")
        here = a.label("here")
        a("s_getpc_b64 s[98:99]")
        a(f"{here}:")
        a("s_lshl_b32 s62, s26, 13")
        a(f"v_add_u32 v{vC}, s62, v{V_L128}")
        a(f"v_min_u32 v{vC}, {code_end} - {here}, v{vC}")
        a(f"v_lshlrev_b32 v{vC+1}, 20, v0")
        a(f"global_load_dword v{V_PF}, v{vC}, s[98:99]")
        a(f"buffer_load_dword v{V_PF}, v{vC+1}, s[4:7], 0 offen sc1")
    next_step(2)
    a(f"{hs[3]}:")
    a.c("the re-tiled weights are complete once all 16 arrival counters are")
    a(f"s_cmp_lg_u32 s{S_WAVE}, 4")
    a(f"s_cbranch_scc1 {hs[5]}")
    ask = a.label("ask")
    a(f"{ask}:")
    a(f"v_and_b32 v{vS}, 15, v0")
    a(f"v_lshlrev_b32 v{vS}, 8, v{vS}")
    a(f"s_mov_b32 s23, {WS_FLAG + FL_W:#x}")
    a(f"buffer_load_dword v{vR}, v{vS}, s[4:7], s23 offen sc1")
    goto(4, 1)
    a(f"{hs[4]}:")
    a("s_waitcnt vmcnt(0)")
    a(f"v_cmp_gt_u32 vcc, 16, v{vR}")
    a(f"v_mov_b32 v{vS}, {CNT + 8}")
    a(f"s_cbranch_vccnz {ask}")
    a(f"ds_write_b32 v{vS}, v{vS}")
    a(f"s_branch {hs[6]}")
    a(f"{hs[5]}:")
    a(f"v_mov_b32 v{vS}, {CNT + 8}")
    a(f"ds_read_b32 v{vR}, v{vS}")
    a("s_waitcnt lgkmcnt(0)")
    a(f"v_cmp_eq_u32 vcc, 0, v{vR}")
    a("s_nop 0")
    a(f"s_cbranch_vccz {hs[6]}")
    goto(5, 1)
    a(f"{hs[6]}:")
    a(f"s_mov_b64 exec, {(1 << (RMX * 4)) - 1 if RMX < 8 else 0x7fffffff:#x}")
    if RMX == 8:
        a("s_mov_b32 exec_lo, -1")
    a(f"buffer_load_dword v{V_PF}, v{V_L128}, s[4:7], s51 offen{SC}")
    a("s_mov_b64 exec, -1")
    for i in range(NPG):
        a(f"buffer_load_dword v{V_PF}, v{V_L128}, s[4:7], s50 offen{SC}")
        a("s_add_u32 s50, s50, 8192")
    for i in range(env("PFD", 0)):
        a(f"buffer_load_dword v{V_PF}, v{V_L128}, s[4:7], s52 offen{SC}")
        a("s_add_u32 s52, s52, 8192")
    goto(7, env("ATT_G6", 2))
    a(f"{fb}:")
    a(f"v_add_u32 v{vK}, {KB}, v{vKp}")
    a(f"v_mov_b32 v{t0}, 0xff800000")
    a("s_mov_b32 s31, 64")
    lp2 = a.label("maxl")
    a(f"{lp2}:")
    a(f"ds_read_b128 {vr(KF[0],4)}, v{vK}")
    a(f"v_add_u32 v{vK}, 1024, v{vK}")
    a("s_waitcnt lgkmcnt(0)")
    a(f"{MFMA} {vr(S[0],16)}, {vr(KF[0],4)}, {vr(Q[1],4)}, 0")
    a("s_nop 15")
    for i in range(0, 16, 2):
        a(f"v_max3_f32 v{t0}, v{t0}, v{S[0]+i}, v{S[0]+i+1}")
    a("s_sub_u32 s31, s31, 1")
    a("s_cmp_lg_u32 s31, 0")
    a(f"s_cbranch_scc1 {lp2}")
    a(f"v_mov_b32 v{t1}, v{t0}")
    a("s_nop 1")
    a(f"v_permlane32_swap_b32 v{t0}, v{t1}")
    a("s_nop 1")
    a(f"v_max_f32 v{t0}, v{t0}, v{t1}")
    for i in range(16):
        a(f"v_sub_f32 v{NM[0]+i}, 0, v{t0}")
        a(f"v_mov_b32 v{OO+i}, 0")
    a(f"v_add_u32 v{vK}, {KB}, v{vKp}")
    a(f"v_mov_b32 v{vV}, v{vV0}")
    a(f"v_lshrrev_b32 v{vInc}, {U.bit_length()-1}, v{vInc}")
    a("s_mov_b32 s31, 64")
    lp3 = a.label("pass2")
    a(f"{lp3}:")
    a(f"ds_read_b128 {vr(KF[0],4)}, v{vK}")
    a(f"ds_read_b128 {vr(VF[0],4)}, v{vV}")
    a(f"ds_read_b128 {vr(VF[0]+4,4)}, v{vV} offset:512")
    a(f"v_add_u32 v{vK}, 1024, v{vK}")
    a(f"v_add_u32 v{vV}, v{vInc}, v{vV}")
    a("s_waitcnt lgkmcnt(0)")
    a(f"{MFMA} {vr(S[0],16)}, {vr(KF[0],4)}, {vr(Q[1],4)}, {vr(NM[0],16)}")
    a("s_nop 15")
    for i in range(16):
        a(f"v_exp_f32 v{S[0]+i}, v{S[0]+i}")
    a("s_nop 2")
    a(f"{SMF} {vr(OO,16)}, {vr(VF[0],4)}, {vr(S[0],8)}, v{vIx}")
    a(f"{SMF} {vr(OO,16)}, {vr(VF[0]+4,4)}, {vr(S[0]+8,8)}, v{vIx}")
    a("s_sub_u32 s31, s31, 1")
    a("s_cmp_lg_u32 s31, 0")
    a("s_nop 7")
    a(f"s_cbranch_scc1 {lp3}")
    a("s_nop 15")
    a(f"v_rcp_f32 v{t0}, v{OO+8}")
    a("s_nop 0")
    a(f"s_branch {fin}")
    a(f"{endl}:")
    return R.n


def gen_main(a):
    name = NAME + "_kernel"
    kernel_header(a, name)
    done = a.label("done")
    a("s_cmp_ge_u32 s2, 256")
    a(f"s_cbranch_scc1 {done}")
    if env("FIXT", 0):
        a("s_memrealtime s[56:57]")
    a(f"s_load_dwordx4 s[64:67], s[0:1], {KA_X}")
    a.c("pull the first 8 KB of code into L2 (one 128-byte line per 8 lanes of the workgroup)")
    a("s_getpc_b64 s[98:99]")
    a(f"v_lshlrev_b32 v{V_FREE}, 4, v0")
    a(f"global_load_dword v{V_PF}, v{V_FREE}, s[98:99]")
    a(f"s_and_b32 s{S_XCD}, s2, 7")
    FMX = env("FMX", 4)
    lg = {8: 2, 4: 3, 2: 4}[FMX]
    a(f"s_bfe_u32 s19, s2, {(lg << 16) | 3:#x}")
    a(f"s_lshr_b32 s24, s{S_XCD}, {lg - 2}")
    a(f"s_lshl{lg}_add_u32 s19, s24, s19")
    a("v_lshrrev_b32 v1, 6, v0")
    a("v_and_b32 v0, 63, v0")
    a(f"v_lshlrev_b32 v{V_L16}, 4, v0")
    a(f"v_lshl_add_u32 v{V_FREE}, s19, 3, v1")
    a(f"v_lshl_add_u32 v{V_FREE}, v{V_FREE}, 13, v{V_L16}")
    a("s_waitcnt lgkmcnt(0)")
    a("s_add_u32 s20, s64, 4096")
    a("s_addc_u32 s21, s65, 0")
    for r in range(8):
        a(f"global_load_dwordx4 {vr(V_FREE+4+4*r,4)}, v{V_FREE}, s[20:21] offset:{r*1024-4096}")
    a(f"s_load_dwordx2 s[68:69], s[0:1], {KA_WO}")
    a(f"s_load_dwordx4 s[72:75], s[0:1], {KA_WG}")
    a(f"s_load_dwordx2 s[76:77], s[0:1], {KA_WD}")
    a(f"s_load_dwordx2 s[70:71], s[0:1], {KA_OUT}")
    a(f"s_load_dwordx2 s[94:95], s[0:1], {KA_DBG}")
    a(f"s_load_dwordx2 s[12:13], s[0:1], {KA_WS}")
    a(f"v_readfirstlane_b32 s{S_WAVE}, v1")
    a(f"v_lshlrev_b32 v{V_L128}, 7, v0")
    a(f"s_lshr_b32 s{S_IDX}, s2, 3")
    srd(a, 20, 66, 67, 512 * 1536 * 2)
    if env("TOUCH", 1):
        a.c("cooperative first touch of this die's wqkv columns: two rows per wave")
        nl = FMX
        a(f"s_lshl3_add_u32 s27, s{S_IDX}, s{S_WAVE}")
        a("s_mul_i32 s27, s27, 6144")
        a(f"s_and_b32 s26, s{S_XCD}, {8 // FMX - 1}")
        a(f"s_mul_i32 s26, s26, {nl * 128}")
        a("s_add_u32 s27, s27, s26")
        a(f"v_lshrrev_b32 v{V_FREE+1}, {5 - lg}, v0")
        a(f"v_and_b32 v{V_FREE+2}, {nl - 1}, v0")
        a(f"v_lshlrev_b32 v{V_FREE+1}, 10, v{V_FREE+1}")
        a(f"v_lshl_add_u32 v{V_FREE+1}, v{V_FREE+2}, 7, v{V_FREE+1}")
        m = (1 << (6 * nl)) - 1
        a(f"s_mov_b32 exec_lo, {m & 0xffffffff:#x}")
        a(f"s_mov_b32 exec_hi, {m >> 32:#x}")
        a(f"buffer_load_dword v{V_PF}, v{V_FREE+1}, s[20:23], s27 offen")
        a("s_mov_b64 exec, -1")
    a(f"s_lshl_b32 s{S_TT64}, s19, 1")
    a(f"s_and_b32 s26, s{S_XCD}, {8 // FMX - 1}")
    a(f"s_mul_i32 s26, s26, {FMX}")
    a(f"s_lshr_b32 s{S_NT64}, s{S_IDX}, {lg}")
    a(f"s_add_u32 s{S_NT64}, s{S_NT64}, s26")
    tile_map(a, S_TT128, S_NT128, 16, 16, env("QMX", 4), 2)
    a(f"s_mov_b32 s{S_IT}, 0")
    a(f"s_mov_b32 s{S_BASE}, {WS_IT0:#x}")
    a(f"s_mov_b32 s{S_FL}, 0")
    a(f"s_mov_b32 s{S_SIG}, 0")
    a(f"v_and_b32 v{V_ST}, 15, v0")
    a(f"v_lshlrev_b32 v{V_ST}, 4, v{V_ST}")
    a(f"v_lshrrev_b32 v1, 4, v0")
    a(f"v_lshl_add_u32 v{V_ST}, v1, 2, v{V_ST}")
    a(f"v_lshlrev_b32 v{V_L4}, 2, v0")
    if STAMP:
        a(f"v_mov_b32 v{V_STAMP}, 0")
        a(f"v_mov_b32 v{V_STAMP+1}, 0")
    stamp(a, 31)
    att, fin = a.label("att"), a.label("fin")
    nv = [first_phase(a, att, done)]
    a(f"{att}:")
    tile_map(a, S_TT64, S_NT64, 32, 8, RMX, 1)
    if env("FIXT", 0) == 2:
        l_ = a.label("hold")
        a(f"{l_}:")
        a("s_memrealtime s[58:59]")
        a("s_waitcnt lgkmcnt(0)")
        a("s_sub_u32 s58, s58, s56")
        a("s_cmp_lt_u32 s58, 2000")
        a(f"s_cbranch_scc1 {l_}")
    nv.append(attn_phase(a, 5, done))
    if env("FIXT", 0) == 3:
        l_ = a.label("hold")
        a(f"{l_}:")
        a("s_memrealtime s[58:59]")
        a("s_waitcnt lgkmcnt(0)")
        a("s_sub_u32 s58, s58, s56")
        a("s_cmp_lt_u32 s58, 4000")
        a(f"s_cbranch_scc1 {l_}")

    S = Stream(a)
    tile_map(a, S_TTG, S_NTG, 16, 16, GMX, 2)
    nv.append(gemm_phase(a, Cfg(name="oproj", kind="res", LB=5 * RB, stream=S, PRE1=4, PRE3=1, RA=16, N1=2, BS=0, I0=8, LP=1,
                                STS=0, ABUF=B_O, WBASE=WS_WO, WNT=64 * 1024, OUT=B_X1, STOUT=B_ST1,
                                FIN=FL_A, lsig=True, NEED=32, FOUT=FL_O, final=False, sb=12)))
    nv.append(mlp_phase(a, Cfg(name="down", stream=S, OUT=B_XIN + IT_STRIDE, STOUT=B_STIN + IT_STRIDE, final=True, sb=22)))
    a(f"s_cmp_eq_u32 s{S_IT}, 1")
    a(f"s_cbranch_scc1 {fin}")
    a(f"s_mov_b32 s{S_IT}, 1")
    a(f"s_add_u32 s{S_BASE}, s{S_BASE}, {IT_STRIDE:#x}")
    a(f"s_add_u32 s{S_FL}, s{S_FL}, {FL_IT:#x}")
    nv.append(gemm_phase(a, Cfg(name="qkv", kind="qkv", LB=0, stream=None, RA=24, N1=2, BS=24, I0=12, LP=3, STS=30,
                                ABUF=B_XIN, WBASE=WS_WQKV, WNT=WNT_Q, STIN=B_STIN,
                                FIN=FL_D - FL_IT + (1 << 32), lsig=False, NEED=16, FOUT=FL_Q, sb=0)))
    a(f"s_branch {att}")
    a(f"{fin}:")
    if env("FIXT", 0) == 1:
        l_ = a.label("hold")
        a(f"{l_}:")
        a("s_memrealtime s[58:59]")
        a("s_waitcnt lgkmcnt(0)")
        a("s_sub_u32 s58, s58, s56")
        a("s_cmp_lt_u32 s58, 10000")
        a(f"s_cbranch_scc1 {l_}")
    if STAMP:
        a("s_waitcnt vmcnt(0)")
        a(f"s_mov_b32 s{S_IT}, 1")
        stamp(a, 31)
        stamp_flush(a)
        if env("DBGOUT", 0):
            nd = a.label("nodbg")
            a("s_lshl_b32 s54, s2, 3")
            a(f"s_add_u32 s54, s54, s{S_WAVE}")
            a(f"s_cmp_lg_u32 s54, {env('DBGOUT', 0)}")
            a(f"s_cbranch_scc1 {nd}")
            idx = [31, 8, 10, 13, 14, 18, 24, 33, 34, 40, 42, 45, 46, 50, 56, 63]
            a(f"v_readlane_b32 s55, v{V_STAMP}, 31")
            for i, k in enumerate(idx):
                a(f"v_readlane_b32 s54, v{V_STAMP}, {k}")
                a("s_nop 3")
                a("s_sub_u32 s54, s54, s55")
                a(f"v_writelane_b32 v{V_FREE}, s54, {i}")
            a("s_mov_b64 exec, 0xfffe")
            a(f"global_store_dword v{V_L4}, v{V_FREE}, s[94:95]")
            a(f"{nd}:")
    a(f"{done}:")
    a("s_endpgm")
    print("phase vgprs", nv, file=sys.stderr)
    nv.append(V_TF + 62)
    assert max(nv) <= 256
    return (name, max(nv), 256, 512, LDS_MAX)


HEADER = open("cdna_kernels/" + NAME + ".s.ref").read().split("; Override launch")[0]

def main(out):
    a = Asm()
    k, v, nwg, blk, lds = gen_main(a)
    txt = HEADER
    if env("ASLIST", 0):
        txt += f"; @launch kernel={k} grid=({nwg},1,1) block=({blk},1,1) lds={lds}\n"
    else:
        txt += f"; @launch grid=({nwg},1,1) block=({blk},1,1) lds={lds}\n"
    txt += '.amdgcn_target "amdgcn-amd-amdhsa--gfx950"\n.text\n'
    txt += a.text()
    txt += '.section .rodata,"a"\n'
    txt += kernel_desc(k, v, 102)
    print(f"{k}: vgpr={v} lds={lds}", file=sys.stderr)
    open(out, "w").write(txt)

if __name__ == "__main__":
    main(sys.argv[1] if len(sys.argv) > 1 else "v2.s")
```

```python
import sys, struct, math, os
from asmlib import *

NAME = "interleave_layers__mha_block__glu_gated_bilinear__prompt"
def env(k, d):
    return int(os.environ.get(k, d))

WS_WQKV = 0x000000
WS_WO   = 0x200000
WS_WGU  = 0x300000
WS_WD   = 0x700000
WS_FLAG = 0x8C0000
FL_IT = 0xC000
FL_Q, FL_W, FL_G, FL_T = 0x0, 0x1000, 0x4000, 0x8000
FL_A, FL_O, FL_D = FL_T, FL_T + 4, FL_T + 8
WS_IT0 = 0xA00000
IT_STRIDE = 0x1400000
B_Q, B_K, B_V, B_O, B_X1, B_XIN, B_H, B_ST1, B_STIN = (
    0x0, 0x200000, 0x400000, 0x600000, 0x800000, 0xA00000, 0xC00000, 0x1300000, 0x1340000)
WS_END = WS_IT0 + 2 * IT_STRIDE
WS_STAMP = WS_END
LDS_MAX = 160 * 1024

KA_X, KA_WQKV, KA_WO, KA_BX, KA_WG, KA_WU, KA_WD, KA_OUT, KA_DBG, KA_WS = [8 * i for i in range(10)]

def f32bits(x):
    return struct.unpack("<I", struct.pack("<f", x))[0]

QSCALE = 0.25 * math.log2(math.e)
MFMA = "v_mfma_f32_32x32x16_bf16"
SMF = "v_smfmac_f32_32x32x32_bf16"
M16 = "v_mfma_f32_16x16x32_bf16"
WNT_Q, WNT_G = 102 * 1024, 238 * 1024
STAMP = os.environ.get("STAMP", "") != ""
SC = " sc1"
SPIN_MAX = 1 << 18
PASSES = [int(x) for x in os.environ.get("PASSES", "4,2,1").split(",")]
PFIRST = [sum(PASSES[:p]) for p in range(len(PASSES))]
assert sum(PASSES) == 7

def tile_map(a, s_tt, s_nt, nm, nn, mx, tshift, tmp=19):
    nx = 8 // mx
    mper, nper = nm // mx, nn // nx
    assert mper * nper == 32
    lgm = mper.bit_length() - 1
    a(f"s_and_b32 s{s_tt}, s{S_IDX}, {mper - 1}")
    a(f"s_lshr_b32 s{tmp}, s{S_XCD}, {nx.bit_length() - 1}")
    a(f"s_lshl_b32 s{tmp}, s{tmp}, {lgm}")
    a(f"s_add_u32 s{s_tt}, s{s_tt}, s{tmp}")
    a(f"s_lshl_b32 s{s_tt}, s{s_tt}, {tshift}")
    a(f"s_lshr_b32 s{s_nt}, s{S_IDX}, {lgm}")
    if nx > 1:
        a(f"s_and_b32 s{tmp}, s{S_XCD}, {nx - 1}")
        a(f"s_mul_i32 s{tmp}, s{tmp}, {nper}")
        a(f"s_add_u32 s{s_nt}, s{s_nt}, s{tmp}")

def pass_of(a, si, sf, sw):
    a(f"s_mov_b32 s{sf}, 0")
    a(f"s_mov_b32 s{sw}, {PASSES[0]}")
    for p in range(1, len(PASSES)):
        a(f"s_cmp_ge_u32 s{si}, {PFIRST[p]}")
        a(f"s_cselect_b32 s{sf}, {PFIRST[p]}, s{sf}")
        a(f"s_cselect_b32 s{sw}, {PASSES[p]}, s{sw}")
GMX = env('GMX', 4)
RMX = env('RMX', 8)
PT = env('PT', 0)

def srd(a, d, lo, hi, nbytes):
    a(f"s_mov_b32 s{d}, s{lo}")
    a(f"s_and_b32 s{d+1}, s{hi}, 0xffff")
    a(f"s_mov_b32 s{d+2}, {nbytes:#x}")
    a(f"s_mov_b32 s{d+3}, 0x20000")

S_WAVE, S_XCD, S_IDX, S_IT, S_BASE, S_FL = 16, 17, 18, 40, 41, 42
S_TT64, S_NT64, S_TT128, S_NT128 = 43, 44, 45, 46
S_TTG, S_NTG, S_TCH = 68, 69, 47
S_ARR, S_SIG = 47, 48
LDS_CNT = LDS_MAX - 16
V_L16, V_ST, V_L4 = 2, 3, 1
V_RES = 4
V_STAMP = 12
V_P16 = 15
V_PF, V_L128 = 14, 15
V_FREE = 16

def stamp(a, i):
    if STAMP:
        a("s_memrealtime s[56:57]")
        a("s_memtime s[58:59]")
        a(f"s_lshl_b32 s60, s{S_IT}, 5")
        a(f"s_add_u32 s60, s60, {i}")
        a("s_waitcnt lgkmcnt(0)")
        a("s_mov_b32 s61, m0")
        a("s_mov_b32 m0, s60")
        a("s_nop 0")
        a(f"v_writelane_b32 v{V_STAMP}, s56, m0")
        a(f"v_writelane_b32 v{V_STAMP+1}, s58, m0")
        a("s_mov_b32 m0, s61")

def stamp_flush(a, which=0):
    if STAMP:
        a("s_lshl_b32 s60, s2, 3")
        a(f"s_add_u32 s60, s60, s{S_WAVE}")
        a("s_lshl_b32 s60, s60, 9")
        a(f"s_add_u32 s60, s60, {WS_STAMP + which*0x100000:#x}")
        a(f"s_mov_b32 s6, {WS_STAMP + 0x200000:#x}")
        a(f"buffer_store_dword v{V_STAMP}, v{V_L4}, s[4:7], s60 offen")
        a(f"buffer_store_dword v{V_STAMP+1}, v{V_L4}, s[4:7], s60 offen offset:256")

def handoff(a, soff, need):
    a("s_mov_b32 s38, 1")
    a(f"s_atomic_add s38, s[14:15], s{S_SIG}")
    if env("PD", 0):
        a("s_waitcnt lgkmcnt(0)")
    poll(a, soff, need)

def poll(a, soff, need):
    lp, ok = a.label("poll"), a.label("pok")
    a(f"s_mov_b32 s39, {SPIN_MAX}")
    a(f"{lp}:")
    a("s_mov_b32 s49, 0")
    a(f"s_atomic_add s49, s[14:15], s{soff} glc")
    a("s_sub_u32 s39, s39, 1")
    a("s_waitcnt lgkmcnt(0)")
    a(f"s_cmp_ge_u32 s49, {need}")
    a(f"s_cbranch_scc1 {ok}")
    if env("POLL_SLEEP", 1):
        a(f"s_sleep {env('POLL_SLEEP', 1)}")
    a("s_cmp_lg_u32 s39, 0")
    a(f"s_cbranch_scc1 {lp}")
    a(f"{ok}:")


V_TF = 176

def first_phase(a, end_label, code_end):
    XB_ = 528
    XT = 64 * XB_
    W0 = 2 * XT
    NSW, WCH, NC = 7, 12288, 16
    assert W0 + NSW * WCH <= LDS_MAX
    FS = 27
    NPS = env("K1_NPS", 2)
    R = Regs(V_FREE)
    vD, vT0, vT1, vXW = R.alloc(), R.alloc(), R.alloc(), R.alloc()
    X = R.alloc(32)
    ST = R.alloc(16)
    U = R.alloc(16)
    vD2, vZ = R.alloc(), R.alloc()
    assert X == V_FREE + 4
    a(f"v_lshrrev_b32 v{vT0}, 3, v0")
    a(f"v_bfe_u32 v{vT1}, v0, 4, 1")
    a(f"v_lshlrev_b32 v{vT1}, 2, v{vT1}")
    a(f"v_and_b32 v{vD2}, 7, v0")
    a(f"v_xor_b32 v{vD2}, v{vD2}, v{vT1}")
    a(f"v_lshlrev_b32 v{vD2}, 4, v{vD2}")
    a(f"v_mul_u32_u24 v{vD}, 3072, v{vT0}")
    a(f"v_add_u32 v{vD}, v{vD}, v{vD2}")
    a(f"s_and_b32 s50, s{S_WAVE}, 3")
    a("s_waitcnt lgkmcnt(0)")
    srd(a, 8, 64, 65, 2048 * 512 * 2)
    srd(a, 4, 12, 13, WS_END)
    a.c("wave 7 of the first workgroups resets 64 hand-off counters each")
    NZ = 2 * FL_IT // 16384
    nz = a.label("nozero")
    a(f"s_sub_u32 s47, 7, s{S_WAVE}")
    a("s_lshl_b32 s47, s47, 8")
    a("s_add_u32 s47, s47, s2")
    a(f"s_cmp_ge_u32 s47, {NZ}")
    a(f"s_cbranch_scc1 {nz}")
    a(f"v_lshlrev_b32 v{ST}, 8, v0")
    for i in range(4):
        a(f"v_mov_b32 v{ST+4+i}, 0")
    a("s_lshl_b32 s54, s2, 14")
    a(f"s_add_u32 s54, s54, {WS_FLAG:#x}")
    a(f"buffer_store_dwordx4 {vr(ST+4,4)}, v{ST}, s[4:7], s54 offen sc1")
    a(f"{nz}:")
    TOUCH = env("TOUCH", 1)
    a(f"s_add_u32 s14, s12, {WS_FLAG:#x}")
    a("s_addc_u32 s15, s13, 0")
    a("s_mov_b32 s49, 0x3f803f80")
    a(f"s_lshr_b32 s55, s{S_WAVE}, 2")
    a(f"s_mul_i32 s39, s55, {XT}")
    a("s_lshl_b32 s54, s50, 7")
    a("s_add_u32 s39, s39, s54")
    a(f"v_mul_u32_u24 v{vXW}, {XB_}, v0")
    a(f"v_add_u32 v{vXW}, s39, v{vXW}")
    a(f"s_mul_i32 s62, s50, {8*3072}")
    a(f"s_lshl_b32 s54, s{S_NT64}, 7")
    a("s_add_u32 s62, s62, s54")
    a(f"s_mul_i32 s54, s55, {NPS*32*3072}")
    a("s_add_u32 s62, s62, s54")
    a("s_lshl_b32 s63, s50, 10")
    a(f"s_add_u32 s63, s63, {W0}")
    a(f"s_mul_i32 s54, s55, {NPS*WCH}")
    a("s_add_u32 s48, s63, s54")
    def w_instr(slot, seg, base=63):
        t = f"s_add_u32 s54, s{base}, {slot*WCH + seg*3072}\ns_mov_b32 m0, s54\ns_nop 0\n"
        t += f"buffer_load_dwordx4 v{vD}, s[20:23], s62 offen offset:{seg*1024} lds"
        if seg == 2:
            t += f"\ns_add_u32 s62, s62, {32*3072}"
        return t
    dma = [w_instr(c, sg, 48) for c in range(NPS) for sg in range(3)]
    ops = []
    pre = len(ops)
    for r in range(8):
        ops.append(("wait", r))
        for i in range(4):
            ops.append(f"v_dot2_f32_bf16 v{ST+r}, v{X+4*r+i}, s49, {'0' if i == 0 else 'v' + str(ST+r)}")
            ops.append(f"v_dot2_f32_bf16 v{ST+8+r}, v{X+4*r+i}, v{X+4*r+i}, {'0' if i == 0 else 'v' + str(ST+8+r)}")
    ops.append("s_nop 2")
    for b in (ST, ST + 8):
        for r in range(4):
            ops.append(f"v_permlane32_swap_b32 v{b+r}, v{b+r+4}")
    for b in (ST, ST + 8):
        for r in range(4):
            ops.append(f"v_add_f32 v{b+r}, v{b+r}, v{b+r+4}")
    ops.append("s_nop 1")
    for b in (ST, ST + 8):
        for r in range(2):
            ops.append(f"v_permlane16_swap_b32 v{b+r}, v{b+r+2}")
    for b in (ST, ST + 8):
        for r in range(2):
            ops.append(f"v_add_f32 v{b+r}, v{b+r}, v{b+r+2}")
    for d in ("row_ror:8", "row_ror:4", "quad_perm:[2,3,0,1]", "quad_perm:[1,0,3,2]"):
        for v in (ST, ST + 1, ST + 8, ST + 9):
            ops.append(f"v_add_f32_dpp v{v}, v{v}, v{v} {d} row_mask:0xf bank_mask:0xf")
    for r in range(2):
        ops.append(f"v_mul_f32 v{ST+r}, {f32bits(-1.0/512):#x}, v{ST+r}")
        ops.append(f"v_mul_f32 v{ST+8+r}, {f32bits(1.0/512):#x}, v{ST+8+r}")
    for r in range(2):
        ops.append(f"v_fma_f32 v{ST+8+r}, -v{ST+r}, v{ST+r}, v{ST+8+r}")
    for r in range(2):
        ops.append(f"v_max_f32 v{ST+8+r}, 0, v{ST+8+r}")
    for r in range(2):
        ops.append(f"v_add_f32 v{ST+8+r}, {f32bits(1e-5):#x}, v{ST+8+r}")
    for r in range(2):
        ops.append(f"v_rsq_f32 v{ST+8+r}, v{ST+8+r}")
    ops.append("s_nop 0")
    for r in range(2):
        ops.append(f"v_mul_f32 v{ST+r}, v{ST+r}, v{ST+8+r}")
    ops.append("s_nop 0")
    for r in range(8):
        ops.append(f"v_readlane_b32 s{78+2*r}, v{ST+8+(r&1)}, {16*(r>>1)}")
        ops.append(f"v_readlane_b32 s{79+2*r}, v{ST+(r&1)}, {16*(r>>1)}")
    for r in range(8):
        u = U + 8 * (r & 1)
        for i in range(4):
            ops.append(f"v_lshlrev_b32 v{u+2*i}, 16, v{X+4*r+i}")
            ops.append(f"v_and_b32 v{u+2*i+1}, 0xffff0000, v{X+4*r+i}")
        for i in range(4):
            ops.append(f"v_pk_fma_f32 {vr(u+2*i,2)}, {vr(u+2*i,2)}, s[{78+2*r}:{79+2*r}], s[{78+2*r}:{79+2*r}] op_sel:[0,0,1] op_sel_hi:[1,0,1]")
        for i in range(4):
            ops.append(f"v_cvt_pk_bf16_f32 v{X+4*r+i}, v{u+2*i}, v{u+2*i+1}")
        ops.append(f"ds_write_b128 v{vXW}, {vr(X+4*r,4)} offset:{r*16}")
    npre = env("K1_PRE", 2)
    issued = TOUCH
    for _ in range(npre):
        a(dma.pop(0)); issued += 1
    step_ = env("K1_STEP", 24)
    k = 0
    for j, op in enumerate(ops):
        if isinstance(op, tuple):
            a(f"s_waitcnt vmcnt({7 - op[1] + issued})")
        else:
            a(op)
        if j >= pre + env("K1_SKIP", 40) and dma:
            k += 1
            if k % step_ == 0:
                a(dma.pop(0)); issued += 1
    assert not dma
    comp = a.label("k1_comp")
    a(f"s_cmp_lt_u32 s{S_WAVE}, 4")
    a(f"s_cbranch_scc1 {comp}")
    DW = env("K1_DW", 5)
    assert 2 * NPS <= DW <= NSW - 2
    for c in range(2 * NPS, DW):
        for sg in range(3):
            a(w_instr(c, sg))
    lp = a.label("k1ld")
    a(f"s_add_u32 s48, s63, {DW*WCH}")
    a(f"s_add_u32 s39, s63, {NSW*WCH}")
    a(f"v_mov_b32 v{vT1}, 0")
    stamp(a, FS)
    a("s_waitcnt lgkmcnt(0)")
    nz = a.label("noflag")
    a(f"s_cmp_ge_u32 s47, {NZ}")
    a(f"s_cbranch_scc1 {nz}")
    a(f"s_waitcnt vmcnt({(DW - NPS)*3})")
    a("s_mov_b32 s38, 1")
    a("s_atomic_add s38, s[94:95], 0x0")
    a(f"{nz}:")
    a(f"s_mov_b32 s47, {NC-DW}")
    a(f"{lp}:")
    a(f"s_waitcnt vmcnt({(DW-1)*3})")
    a("s_barrier")
    for sg in range(3):
        a(w_instr(0, sg, 48))
    a(f"s_add_u32 s48, s48, {WCH}")
    a("s_cmp_eq_u32 s48, s39")
    a("s_cselect_b32 s48, s63, s48")
    a("s_sub_u32 s47, s47, 1")
    a("s_cmp_lg_u32 s47, 0")
    a(f"s_cbranch_scc1 {lp}")
    a(f"global_load_dword v{vZ}, v{vT1}, s[94:95] sc1")
    for c in range(NC - DW, NC):
        a(f"s_waitcnt vmcnt({(NC - 1 - c)*3 + 1})")
        a("s_barrier")
    stamp(a, FS + 2)
    a.c("the counters must have been reset before this workgroup touches them")
    lp, ok = a.label("zpoll"), a.label("zok")
    a(f"s_mov_b32 s39, {SPIN_MAX}")
    a("s_waitcnt vmcnt(0)")
    a(f"{lp}:")
    a(f"v_cmp_gt_u32 vcc, {NZ}, v{vZ}")
    a("s_sub_u32 s39, s39, 1")
    a("s_cmp_eq_u32 s39, 0")
    a(f"s_cbranch_scc1 {ok}")
    a(f"s_cbranch_vccz {ok}")
    a(f"global_load_dword v{vZ}, v{vT1}, s[94:95] sc1")
    a("s_waitcnt vmcnt(0)")
    a(f"s_branch {lp}")
    a(f"{ok}:")
    a("s_barrier")
    a(f"s_branch {end_label}")
    a(f"{comp}:")
    R2 = Regs(V_FREE + 4)
    vA, vW0, vW = R2.alloc(), R2.alloc(), R2.alloc()
    acc = [R2.alloc(16) for _ in range(3)]
    sets = [(R2.alloc(4), [R2.alloc(4) for _ in range(3)]) for _ in range(2)]
    a("s_waitcnt lgkmcnt(0)")
    a(f"s_and_b32 s24, s{S_WAVE}, 1")
    a(f"s_lshr_b32 s25, s{S_WAVE}, 1")
    a(f"s_mul_i32 s26, s24, {XT}")
    a(f"v_lshrrev_b32 v{vT0}, 5, v0")
    a(f"v_mul_u32_u24 v{vA}, {XB_}, v{vT0}")
    a(f"v_and_b32 v{vT1}, 31, v0")
    a(f"v_lshl_add_u32 v{vA}, v{vT1}, 4, v{vA}")
    a(f"v_add_u32 v{vA}, s26, v{vA}")
    a(f"v_bfe_u32 v{vT1}, v0, 2, 2")
    a(f"v_lshl_add_u32 v{vW0}, v{vT0}, 3, v{vT1}")
    a(f"v_lshlrev_b32 v{vW0}, 7, v{vW0}")
    a(f"v_and_b32 v{vT0}, 1, v0")
    a(f"v_bfe_u32 v{vT1}, v0, 1, 1")
    a(f"v_lshl_add_u32 v{vT0}, v{vT0}, 1, v{vT1}")
    a(f"v_lshl_add_u32 v{vW0}, v{vT0}, 3, v{vW0}")
    a(f"v_bfe_u32 v{vT0}, v0, 4, 1")
    a(f"v_lshl_add_u32 v{vW0}, v{vT0}, 5, v{vW0}")
    a(f"v_bfe_u32 v{vT0}, v0, 3, 1")
    a(f"v_xor_b32 v{vT0}, s25, v{vT0}")
    a(f"v_lshl_add_u32 v{vW0}, v{vT0}, 6, v{vW0}")
    a(f"v_add_u32 v{vW0}, {W0}, v{vW0}")
    a(f"v_mov_b32 v{vW}, v{vW0}")
    for t in range(3):
        for i in range(16):
            a(f"v_mov_b32 v{acc[t]+i}, 0")
    a("s_mov_b32 s37, 0")

    def read_list(ks, par):
        xa, wfs = sets[par]
        out = [f"ds_read_b128 {vr(xa,4)}, v{vA} offset:{ks*2*XB_}"]
        for t in range(3):
            for jj in range(2):
                out.append(f"ds_read_b64_tr_b16 {vr(wfs[t]+2*jj,2)}, v{vW} offset:{t*4096 + ks*2048 + jj*512}")
        return out

    def step(par, nxt, boundary, adv=False):
        xa, wfs = sets[par]
        issued = 0
        plan = [3, 5, 7]
        if boundary:
            a("s_barrier")
        for t in range(3):
            while issued < min(plan[t], len(nxt)):
                a(nxt[issued]); issued += 1
            a(f"s_waitcnt lgkmcnt({issued + 7 - (3 + 2*t)})")
            if t == 2:
                a(f"{MFMA} {vr(acc[t],16)}, {vr(xa,4)}, {vr(wfs[t],4)}, {vr(acc[t],16)}")
            else:
                a(f"{MFMA} {vr(acc[t],16)}, {vr(wfs[t],4)}, {vr(xa,4)}, {vr(acc[t],16)}")
        if adv:
            a(f"s_add_u32 s37, s37, {WCH}")
            a(f"s_cmp_eq_u32 s37, {NSW*WCH}")
            a("s_cselect_b32 s37, 0, s37")
            a(f"v_add_u32 v{vW}, s37, v{vW0}")
            a(f"v_add_u32 v{vA}, {4*XB_}, v{vA}")

    a("s_waitcnt vmcnt(0)")
    stamp(a, FS)
    a("s_barrier")
    stamp(a, FS + 1)
    for r in read_list(0, 0):
        a(r)
    lp = a.label("k1loop")
    a(f"s_mov_b32 s35, {NC-1}")
    a(f"{lp}:")
    step(0, read_list(1, 1), False, True)
    step(1, read_list(0, 0), True)
    a("s_sub_u32 s35, s35, 1")
    a("s_cmp_lg_u32 s35, 0")
    a(f"s_cbranch_scc1 {lp}")
    step(0, read_list(1, 1), False)
    step(1, [], False)
    stamp(a, FS + 2)
    ot = sets[0][0]
    a(f"s_lshl_b32 s26, s{S_NT64}, 1")
    a("s_add_u32 s26, s26, s25")
    a("s_lshl_b32 s26, s26, 17")
    a(f"s_add_u32 s27, s{S_TT64}, s24")
    a("s_lshl_b32 s27, s27, 10")
    a("s_add_u32 s26, s26, s27")
    a(f"v_bfe_u32 v{vT0}, v0, 4, 1")
    a(f"v_lshlrev_b32 v{vT0}, 16, v{vT0}")
    a(f"v_lshrrev_b32 v{vT1}, 5, v0")
    a(f"v_lshl_add_u32 v{vT0}, v{vT1}, 8, v{vT0}")
    a(f"v_and_b32 v{vT1}, 15, v0")
    a(f"v_lshl_add_u32 v{vT0}, v{vT1}, 4, v{vT0}")
    a(f"s_mov_b32 s28, {f32bits(QSCALE):#x}")
    a("s_mov_b32 s29, s28")
    K1SC = SC
    a(f"v_lshrrev_b32 v{V_P16}, 4, v0")
    a(f"v_lshlrev_b32 v{V_P16}, 9, v{V_P16}")
    a(f"v_lshl_add_u32 v{V_P16}, v{vT1}, 4, v{V_P16}")
    a(f"s_lshl_b32 s{S_SIG}, s{S_NT64}, 9")
    a(f"s_add_u32 s{S_SIG}, s{S_SIG}, {FL_Q:#x}")
    for t, base in ((0, B_Q), (1, B_K), (2, B_V)):
        for hh in range(2):
            o = ot + 4 * (2 * t + hh)
            for i in range(4):
                r = acc[t] + 8 * hh + 2 * i
                if t == 0:
                    a(f"v_pk_mul_f32 {vr(r,2)}, {vr(r,2)}, s[28:29]")
                a(f"v_cvt_pk_bf16_f32 v{o+i}, v{r}, v{r+1}")
            if t < 2:
                a(f"s_add_u32 s27, s26, {WS_IT0 + base + hh*65536:#x}")
                a(f"buffer_store_dwordx4 {vr(o,4)}, v{V_L16}, s[4:7], s27 offen{K1SC}")
            else:
                a(f"s_add_u32 s27, s26, {WS_IT0 + base:#x}")
                a(f"buffer_store_dwordx4 {vr(o,4)}, v{vT0}, s[4:7], s27 offen offset:{hh*512}{K1SC}")
    a("s_barrier")
    stamp(a, FS + 3)
    a(f"s_branch {end_label}")
    return max(R.n, R2.n)


class Cfg:
    def __init__(self, **kw):
        self.__dict__.update(kw)
        for k in ("NR", "RA", "N1", "N2", "N3", "N4", "BS", "I0", "PS", "STS", "PRE1", "PRE2", "PRE3", "XB", "LP"):
            e = os.environ.get(self.name.upper() + "_" + k)
            if e:
                setattr(self, k, int(e))

def stats_ops(tmp, xc, vR, square):
    f = []
    for i in range(8):
        f.append(f"v_add_f32 v{tmp+i}, v{tmp+i}, v{tmp+8+i}")
    for i in range(4):
        f.append(f"v_add_f32 v{tmp+i}, v{tmp+i}, v{tmp+4+i}")
    f.append(f"v_mov_b32 v{xc+4}, 0")
    f.append(f"v_mov_b32 v{xc+5}, 0")
    f.append(f"v_permlane32_swap_b32 v{tmp}, v{tmp+2}")
    f.append(f"v_permlane32_swap_b32 v{tmp+1}, v{tmp+3}")
    f.append(f"v_add_f32 v{tmp}, v{tmp}, v{tmp+2}")
    f.append(f"v_add_f32 v{tmp+1}, v{tmp+1}, v{tmp+3}")
    f.append(f"v_mov_b32 v{tmp+2}, v{tmp}")
    f.append(f"v_mov_b32 v{tmp+3}, v{tmp+1}")
    f.append("s_nop 1")
    f.append(f"v_permlane16_swap_b32 v{tmp}, v{tmp+2}")
    f.append(f"v_permlane16_swap_b32 v{tmp+1}, v{tmp+3}")
    f.append(f"v_add_f32 v{tmp}, v{tmp}, v{tmp+2}")
    f.append(f"v_add_f32 v{tmp+1}, v{tmp+1}, v{tmp+3}")
    f.append(f"v_mul_f32 v{tmp}, {f32bits(-1.0/512):#x}, v{tmp}")
    f.append(f"v_mul_f32 v{tmp+1}, {f32bits(1.0/512):#x}, v{tmp+1}")
    f.append(f"v_fma_f32 v{tmp+1}, -v{tmp}, v{tmp}, v{tmp+1}")
    f.append(f"v_max_f32 v{tmp+1}, 0, v{tmp+1}")
    f.append(f"v_add_f32 v{tmp+1}, {f32bits(1e-5):#x}, v{tmp+1}")
    f.append(f"{'v_rcp_f32' if square else 'v_rsq_f32'} v{vR}, v{tmp+1}")
    f.append(f"v_cvt_pk_bf16_f32 v{xc}, v{tmp}, v{tmp}")
    f.append(f"v_lshlrev_b32 v{tmp+2}, 16, v{xc}")
    f.append(f"v_sub_f32 v{tmp+2}, v{tmp}, v{tmp+2}")
    f.append(f"v_cvt_pk_bf16_f32 v{xc+1}, v{tmp+2}, v{tmp+2}")
    f.append(f"v_mov_b32 v{tmp+4}, v{vR}")
    f.append(f"v_mov_b32 v{vR+1}, v{vR}")
    f.append(f"v_mov_b32 v{xc+2}, v{xc}")
    f.append(f"v_mov_b32 v{xc+3}, v{xc+1}")
    f.append(f"v_permlane32_swap_b32 v{vR}, v{vR+1}")
    f.append(f"v_permlane32_swap_b32 v{xc}, v{xc+2}")
    f.append(f"v_permlane32_swap_b32 v{xc+1}, v{xc+3}")
    return f

def res_init(c0):
    f = []
    for th in range(2):
        for fh in range(2):
            for c in range(2):
                d, r = c0 + 8 * fh + 4 * th + 2 * c, V_RES + 4 * th + 2 * fh + c
                f.append(f"v_lshlrev_b32 v{d}, 16, v{r}")
                f.append(f"v_and_b32 v{d+1}, 0xffff0000, v{r}")
    return f

def row_offset(a, v, vt):
    a(f"v_and_b32 v{v}, 15, v0")
    a(f"v_lshlrev_b32 v{v}, 10, v{v}")
    a(f"v_and_b32 v{vt}, 48, v0")
    a(f"v_add_u32 v{v}, v{v}, v{vt}")

def res_epilogue(a, g, c0, c1, tmp, end):
    SB = g.sb
    fin = a.label("final")
    a("s_lshl_b32 s26, s31, 15")
    a("s_lshl_b32 s27, s33, 11")
    a("s_add_u32 s26, s26, s27")
    a(f"s_add_u32 s26, s26, s{S_BASE}")
    a(f"s_add_u32 s26, s26, {g.OUT:#x}")
    a("s_lshl_b32 s28, s31, 12")
    a("s_lshl_b32 s29, s33, 8")
    a("s_add_u32 s28, s28, s29")
    for i in range(8):
        if i == 0:
            a("s_waitcnt lgkmcnt(0)")
        a(f"v_pk_add_f32 {vr(c0+2*i,2)}, {vr(c0+2*i,2)}, {vr(c1+2*i,2)}")
    for th in range(2):
        for fh in range(2):
            for c in range(2):
                d = c0 + 8 * fh + 4 * th + 2 * c
                a(f"v_cvt_pk_bf16_f32 v{V_RES + 4*th + 2*fh + c}, v{d}, v{d+1}")
    if g.final:
        a(f"s_cmp_eq_u32 s{S_IT}, 1")
        a(f"s_cbranch_scc1 {fin}")
    a(f"buffer_store_dwordx4 {vr(V_RES,4)}, v{V_P16}, s[4:7], s26 offen{SC}")
    a(f"buffer_store_dwordx4 {vr(V_RES+4,4)}, v{V_P16}, s[4:7], s26 offen offset:256{SC}")
    q = tmp
    for th in range(2):
        a(f"v_pk_mul_f32 {vr(q+2*th,2)}, {vr(c0+4*th,2)}, {vr(c0+4*th,2)}")
    for o in (2, 8, 10):
        for th in range(2):
            r = c0 + 4 * th + o
            a(f"v_pk_fma_f32 {vr(q+2*th,2)}, {vr(r,2)}, {vr(r,2)}, {vr(q+2*th,2)}")
            a(f"v_pk_add_f32 {vr(c0+4*th,2)}, {vr(c0+4*th,2)}, {vr(r,2)}")
    for th in range(2):
        a(f"v_add_f32 v{q+4+th}, v{c0+4*th}, v{c0+4*th+1}")
    for th in range(2):
        a(f"v_add_f32 v{q+6+th}, v{q+2*th}, v{q+2*th+1}")
    a(f"v_permlane32_swap_b32 v{q+4}, v{q+5}")
    a(f"s_add_u32 s28, s28, s{S_BASE}")
    a(f"v_permlane32_swap_b32 v{q+6}, v{q+7}")
    a(f"v_add_f32 v{q+4}, v{q+4}, v{q+5}")
    a(f"v_add_f32 v{q+6}, v{q+6}, v{q+7}")
    a(f"s_add_u32 s28, s28, {g.STOUT:#x}")
    a("s_nop 0")
    a(f"v_permlane16_swap_b32 v{q+4}, v{q+6}")
    a("s_nop 0")
    a(f"v_add_f32 v{q+4}, v{q+4}, v{q+6}")
    a(f"buffer_store_dword v{q+4}, v{V_ST}, s[4:7], s28 offen{SC}")
    a("s_barrier")
    stamp(a, SB + 3)
    if g.final:
        a(f"s_branch {end}")
        a(f"{fin}:")
        srd(a, 8, 70, 71, 2048 * 512 * 2)
        row_offset(a, tmp, tmp + 1)
        a("s_lshl_b32 s26, s31, 15")
        a("s_lshl_b32 s27, s33, 6")
        a("s_add_u32 s26, s26, s27")
        a("s_add_u32 s27, s26, 16384")
        FS_ = ["", " sc1", " nt", " sc0 sc1"][env("FINST", 0)]
        a(f"buffer_store_dwordx4 {vr(V_RES,4)}, v{tmp}, s[8:11], s26 offen{FS_}")
        a(f"buffer_store_dwordx4 {vr(V_RES+4,4)}, v{tmp}, s[8:11], s27 offen{FS_}")
        a("s_barrier")
        stamp(a, SB + 3)

class Lgkm:
    def __init__(self, a):
        self.a, self.q = a, []
    def op(self, text, tag):
        self.a(text); self.q.append(tag)
    def wait(self, tag):
        if tag in self.q:
            i = len(self.q) - 1 - self.q[::-1].index(tag)
            self.a(f"s_waitcnt lgkmcnt({min(15, len(self.q) - 1 - i)})")
            del self.q[:i + 1]

def down_order(nsteps, tail):
    o = [(st, t, fh) for st in range(nsteps - tail) for t in range(2) for fh in range(2)]
    for t in (1, 0):
        o += [(st, t, fh) for st in range(nsteps - tail, nsteps) for fh in range(2)]
    return o

RB = 16384
VS = 32
NPRE = env('NPRE', 5)


class Stream:
    NR, NRND, NREG = 10, 29, 14
    def __init__(self, a):
        self.a = a
        self.nxt = 0
        self.vm, self.lg = [], []
        self.reg = {}
        self.free = list(range(self.NREG - NPRE))
        self.last = self.NRND - NPRE
        for i in range(NPRE):
            self.reg[self.last + i] = self.NREG - NPRE + i
        self.maxreg = self.NREG
    def setup(self):
        a = self.a
        a(f"s_and_b32 s19, s{S_WAVE}, 3")
        a("s_lshl_b32 s25, s19, 12")
        a(f"s_mul_i32 s20, s{S_NTG}, {WNT_G}")
        a("s_add_u32 s20, s20, s25")
        a(f"s_add_u32 s20, s20, {WS_WGU:#x}")
        a(f"s_mul_i32 s21, s{S_NT64}, {224*1024}")
        a("s_add_u32 s21, s21, s25")
        a(f"s_add_u32 s21, s21, {WS_WD:#x}")
        for i in range(3):
            a(f"v_add_u32 v{V_FREE+i}, {i*0x10000}, v{V_L16}")
            a(f"v_add_u32 v{V_FREE+i}, s25, v{V_FREE+i}")
    def src(self, r):
        return f"s_add_u32 s27, s20, {r*RB}" if r < 15 else f"s_add_u32 s27, s21, {(r-15)*RB}"
    def wait_vm(self, pred):
        idx = [i for i, e in enumerate(self.vm) if pred(e)]
        if not idx:
            return None
        n = min(63, (len(self.vm) - 1 - idx[-1]) * 4)
        del self.vm[:idx[-1] + 1]
        return f"vmcnt({n})"
    def flush(self, limit, cap=99):
        a = self.a
        for r in sorted(self.reg)[:cap]:
            if r >= limit:
                break
            w = self.wait_vm(lambda e: e == ("s", r))
            if w:
                a("s_waitcnt " + w)
            k = self.reg.pop(r)
            for i in range(4):
                off = (r % self.NR) * RB + i * 1024
                if env("X_NOFL", 0) and r >= 24:
                    pass
                elif env("FL64", 0):
                    for hh in range(2):
                        a(f"ds_write_b64 v{V_FREE + (off >> 16)}, {vr(VS + (k*4 + i)*4 + 2*hh, 2)} offset:{(off & 0xffff) + 8*hh}")
                        if env("FLW", 1):
                            a("s_waitcnt lgkmcnt(0)")
                else:
                    a(f"ds_write_b128 v{V_FREE + (off >> 16)}, {vr(VS + (k*4 + i)*4, 4)} offset:{off & 0xffff}")
                    if env("FLW", 1):
                        a("s_waitcnt lgkmcnt(0)")
            self.lg.append((r, k))
    def fetch(self, n, limit):
        a = self.a
        while n > 0 and self.nxt < self.last:
            r = self.nxt
            if env("X_SKIP", 0) and r in (2, 4):
                self.nxt += 1
                continue
            if r < limit:
                a(f"s_add_u32 s26, s25, {(r % self.NR) * RB}")
                a("s_mov_b32 m0, s26")
                a(self.src(r))
                for i in range(4):
                    a(f"buffer_load_dwordx4 v{V_L16}, s[4:7], s27 offen offset:{i*1024}{SC} lds")
                self.vm.append(("d", r))
            else:
                if not self.free:
                    break
                k = self.free.pop(0)
                self.maxreg = max(self.maxreg, k + 1)
                self.reg[r] = k
                a(self.src(r))
                for i in range(4):
                    a(f"buffer_load_dwordx4 {vr(VS + (k*4 + i)*4, 4)}, v{V_L16}, s[4:7], s27 offen offset:{i*1024}{SC}")
                self.vm.append(("s", r))
            self.nxt += 1; n -= 1
    def landed(self, upto):
        assert self.nxt > min(upto, self.last - 1) and all(r > upto for r in self.reg), (upto, self.nxt, self.reg)
        w = []
        x = self.wait_vm(lambda e: e[0] == "d" and e[1] <= upto)
        if x:
            w.append(x)
        if any(r <= upto for r, _ in self.lg):
            w.append("lgkmcnt(0)")
            self.free += [k for _, k in self.lg]
            self.lg = []
        if w:
            self.a("s_waitcnt " + " ".join(w))

def gemm_phase(a, g):
    ln = g.kind == "qkv"
    NT = 3 if ln else 2
    NS = 16 if ln else 8
    SPS = 2 * NT
    NSL = (NS + (1 if ln else 0)) * SPS
    TAIL = env("XTAIL", 4)
    order = [(i // SPS, (i % SPS) // 2, i % 2) for i in range(NSL)] if ln else down_order(NS, TAIL)
    fin_ = [i * 1024 + 1023 if ln else 65535 for i in range(NSL)]
    NRND = fin_[-1] // RB + 1
    LB = g.LB
    SCR = LB + NRND * RB
    assert SCR + (1024 if ln else 16384) <= LDS_MAX
    S = g.stream
    RAH = 6
    s_tt, s_nt = (S_TT128, S_NT128) if ln else (S_TT64, S_NT64)
    comp, end = a.label(g.name + "_comp"), a.label(g.name + "_end")
    SB = g.sb
    bars = [0] + ([g.BS] if g.BS else [])
    a.c(f"================ phase {g.name} ================")
    a(f"s_cmp_lt_u32 s{S_WAVE}, 4")
    a(f"s_cbranch_scc1 {comp}")
    a(f"s_and_b32 s19, s{S_WAVE}, 3")
    a("s_lshl_b32 s25, s19, 12")
    a(f"s_mul_i32 s23, s{s_nt}, {g.WNT}")
    a("s_add_u32 s23, s23, s25")
    if g.WBASE:
        a(f"s_add_u32 s23, s23, {g.WBASE:#x}")
    stamp(a, SB)
    for r in range(NRND):
        if env("X_SKIP", 0) and not ln and r in (1, 3):
            if g.lsig and r == g.N1 - 1:
                a("s_waitcnt vmcnt(4)")
                a("s_mov_b32 s38, 1")
                a(f"s_atomic_add s38, s[14:15], s{S_SIG}")
            continue
        a(f"s_add_u32 s26, s25, {LB + r*RB}")
        a("s_mov_b32 m0, s26")
        a(f"s_add_u32 s27, s23, {r*RB}")
        for i in range(4):
            a(f"buffer_load_dwordx4 v{V_L16}, s[4:7], s27 offen offset:{i*1024}{SC} lds")
        if g.lsig and r == g.N1 - 1:
            a(f"s_waitcnt vmcnt({g.N1*4})")
            a("s_mov_b32 s38, 1")
            a(f"s_atomic_add s38, s[14:15], s{S_SIG}")
    extra = 0
    if S:
        S.setup()
        S.fetch(g.PRE1, LB // RB)
        extra = 4 * len(S.vm)
    stamp(a, SB + 1)
    for j, b in enumerate(bars):
        nxt = bars[j + 1] if j + 1 < len(bars) else NSL
        up = fin_[min(NSL - 1, nxt - 1 + RAH)] // RB
        a(f"s_waitcnt vmcnt({(NRND - 1 - up)*4 + extra})")
        a("s_barrier")
    if not ln:
        a("s_barrier")
    if S:
        S.fetch(g.PRE3, LB // RB + NRND)
    a("s_barrier")
    a(f"s_branch {end}")

    a(f"{comp}:")
    R = Regs(V_FREE)
    nwin = -(-SCR // 65536)
    vW = [[R.alloc() for _ in range(nwin)] for _ in range(1 if ln else 2)]
    vX, vY = R.alloc(), R.alloc()
    vR = R.alloc(2)
    xc = R.alloc(6, 2)
    acc = [R.alloc(16) for _ in range(NT)]
    NF = RAH + 2
    wf = [R.alloc(4) for _ in range(NF)]
    RA = min(2 * NS, g.RA)
    ring = [R.alloc(4) for _ in range(RA)]
    tmp = R.alloc(16)
    if ln:
        a(f"s_add_u32 s31, s{s_tt}, s{S_WAVE}")
        a("s_lshl_b32 s22, s31, 15")
        for w in range(nwin):
            a(f"v_add_u32 v{vW[0][w]}, {w*65536}, v{V_L16}")
        a("s_lshl_b32 s36, s31, 12")
        a(f"s_add_u32 s36, s36, s{S_BASE}")
        a(f"s_add_u32 s36, s36, {g.STIN:#x}")
        a(f"s_lshl_b32 s26, s{S_WAVE}, 8")
        a(f"s_add_u32 s26, s26, {SCR}")
        a(f"v_add_u32 v{vX}, s26, v{V_L4}")
        a(f"v_and_b32 v{vY}, 48, v0")
        a(f"v_add_u32 v{vY}, s26, v{vY}")
    else:
        a(f"s_and_b32 s24, s{S_WAVE}, 1")
        a(f"s_lshr_b32 s25, s{S_WAVE}, 1")
        a(f"s_lshl_b32 s33, s{s_nt}, 1")
        a("s_add_u32 s33, s33, s25")
        a(f"s_add_u32 s31, s{s_tt}, s24")
        a("s_lshl_b32 s22, s31, 15")
        a("s_lshl_b32 s27, s25, 11")
        a("s_add_u32 s22, s22, s27")
        a("s_mul_i32 s26, s25, 6144")
        a("s_add_u32 s27, s27, 2048")
        for w in range(nwin):
            a(f"v_add_u32 v{vX}, {w*65536}, v{V_L16}")
            a(f"v_add_u32 v{vW[0][w]}, s26, v{vX}")
            a(f"v_add_u32 v{vW[1][w]}, s27, v{vX}")
        for x in res_init(acc[0]):
            a(x)
        a(f"s_lshl_b32 s26, s{S_WAVE}, 12")
        a(f"s_add_u32 s26, s26, {SCR}")
        a("s_xor_b32 s27, s26, 0x2000")
        assert SCR % 16384 == 0
        a(f"v_add_u32 v{vX}, s26, v{V_L16}")
        a(f"v_add_u32 v{vY}, s27, v{V_L16}")
    a(f"s_add_u32 s22, s22, s{S_BASE}")
    a(f"s_add_u32 s22, s22, {g.ABUF:#x}")
    AST = 2048 if ln else 4096

    cvm, na = [], [0]
    L = Lgkm(a)
    def load_a():
        k = na[0]; na[0] += 1
        off = ((k // 2) * AST) % 4096
        a(f"buffer_load_dwordx4 {vr(ring[k % RA],4)}, v{V_P16}, s[4:7], s22 offen offset:{off + (k%2)*256}{SC}")
        if k % 2 == 1 and off + AST == 4096:
            a("s_add_u32 s22, s22, 4096")
        cvm.append(k)
    def wait_tag(tag):
        if tag in cvm:
            i = len(cvm) - 1 - cvm[::-1].index(tag)
            a(f"s_waitcnt vmcnt({len(cvm) - 1 - i})")
            del cvm[:i + 1]
    def w_read(i):
        st_, t, fh = order[i]
        off = LB + (i * 1024 if ln else st_ * 8192 + fh * 1024)
        base = vW[0 if ln else t][off >> 16]
        L.op(f"ds_read_b128 {vr(wf[i % NF],4)}, v{base} offset:{off & 0xffff}", i)

    a("s_lshl_b32 s23, s31, 8")
    a(f"s_add_u32 s23, s23, s{S_FL}")
    a(f"s_add_u32 s23, s23, {g.FIN:#x}")
    a("s_waitcnt vmcnt(0)")
    stamp(a, SB)
    handoff(a, 23, g.NEED)
    stamp(a, SB + 1)
    while na[0] < g.I0:
        load_a()
    a("s_barrier")
    for i in range(RAH):
        w_read(i)
    a(f"s_lshl_b32 s{S_SIG}, s{s_nt if ln else 31}, 8")
    a(f"s_add_u32 s{S_SIG}, s{S_SIG}, s{S_FL}")
    if g.FOUT:
        a(f"s_add_u32 s{S_SIG}, s{S_SIG}, {g.FOUT:#x}")
    stl = [f"buffer_load_dwordx4 {vr(tmp+4*i,4)}, v{V_L16}, s[4:7], s36 offen offset:{i*1024}{SC}" for i in range(4)] if ln else []
    fill = []
    vRs = tmp + 8
    for i in range(NSL):
        st_, t, fh = order[i]
        if i in bars and i > 0:
            a("s_barrier")
        if ln and i == NS * SPS - 26:
            assert not stl
            wait_tag("st")
            fill.extend(stats_ops(tmp, xc, vR, False))
        if ln and i == NS * SPS:
            assert not fill
        if i % 2 == 0:
            L.wait(i + 1)
        if not ln and i == NSL - 2:
            L.wait("xw")
            a("s_barrier")
            for q in range(4):
                L.op(f"ds_read_b128 {vr(acc[1]+4*q,4)}, v{vY} offset:{q*1024}", "xr")
        for th in range(2):
            if th == 1 and i + RAH < NSL:
                w_read(i + RAH)
            if st_ < NS:
                wait_tag(2 * st_ + 1)
            xa = ring[(2 * st_ + th) % RA] if st_ < NS else xc + 2 * th
            d = acc[t] + 8 * fh + 4 * th
            c = "0" if st_ == 0 and (ln or t == 1) else vr(d, 4)
            if ln and t == 2:
                a(f"{M16} {vr(d,4)}, {vr(xa,4)}, {vr(wf[i % NF],4)}, {c}")
            else:
                a(f"{M16} {vr(d,4)}, {vr(wf[i % NF],4)}, {vr(xa,4)}, {c}")
            if fill:
                a(fill.pop(0))
            j = i - (NSL - 2 * TAIL) - 2
            if not ln and 0 <= j < 2:
                q = 2 * j + th
                L.op(f"ds_write_b128 v{vX}, {vr(acc[1]+4*q,4)} offset:{q*1024}", "xw")
        if (i + 1) % g.LP == 0 and na[0] < 2 * NS and na[0] < 2 * ((i + 1) // SPS) + RA:
            load_a()
        if stl and i >= g.STS and i % SPS == 1:
            a(stl.pop(0)); cvm.append("st")
    assert na[0] == 2 * NS
    if ln:
        a(f"ds_write_b32 v{vX}, v{tmp+4}")
        for th in range(2):
            a(f"ds_read_b128 {vr(vRs+4*th,4)}, v{vY} offset:{th*128}")
    stamp(a, SB + 2)
    if ln:
        ot = ring[0]
        a(f"s_lshl_b32 s26, s{s_nt}, 17")
        a("s_lshl_b32 s27, s31, 10")
        a("s_add_u32 s26, s26, s27")
        a(f"s_add_u32 s26, s26, s{S_BASE}")
        a(f"v_mul_f32 v{tmp}, {f32bits(QSCALE):#x}, v{vR}")
        a(f"v_mul_f32 v{tmp+1}, {f32bits(QSCALE):#x}, v{vR+1}")
        a(f"v_lshrrev_b32 v{tmp+2}, 5, v0")
        a(f"v_and_b32 v{tmp+3}, 0x3ff, v{V_P16}")
        a(f"v_lshl_add_u32 v{tmp+2}, v{tmp+2}, 16, v{tmp+3}")
        for t, base, sc in ((0, B_Q, tmp), (1, B_K, vR)):
            a(f"s_add_u32 s27, s26, {base:#x}")
            for th in range(2):
                o = ot + 4 * (2 * t + th)
                for fh in range(2):
                    for c in range(2):
                        r = acc[t] + 8 * fh + 4 * th + 2 * c
                        a(f"v_pk_mul_f32 {vr(r,2)}, {vr(r,2)}, {vr(sc,2)} op_sel:[0,{th}] op_sel_hi:[1,{th}]")
                for fh in range(2):
                    for c in range(2):
                        r = acc[t] + 8 * fh + 4 * th + 2 * c
                        a(f"v_cvt_pk_bf16_f32 v{o+2*fh+c}, v{r}, v{r+1}")
                a(f"buffer_store_dwordx4 {vr(o,4)}, v{tmp+2}, s[4:7], s27 offen offset:{th*256}{SC}")
        a("s_waitcnt lgkmcnt(0)")
        for fh in range(2):
            o = ot + 16 + 4 * fh
            a(f"s_add_u32 s27, s26, {B_V + fh*65536:#x}")
            for c in range(4):
                r = acc[2] + 8 * fh + 2 * c
                a(f"v_pk_mul_f32 {vr(r,2)}, {vr(vRs+2*c,2)}, {vr(r,2)}")
            for c in range(4):
                r = acc[2] + 8 * fh + 2 * c
                a(f"v_cvt_pk_bf16_f32 v{o+c}, v{r}, v{r+1}")
            a(f"buffer_store_dwordx4 {vr(o,4)}, v{V_L16}, s[4:7], s27 offen{SC}")
        a("s_barrier")
        stamp(a, SB + 3)
    else:
        res_epilogue(a, g, acc[0], acc[1], tmp, end)
    a(f"{end}:")
    return R.n


def mlp_phase(a, g):
    E = lambda k, d: env("MLP_" + k, d)
    NR, RING = 10, 10 * RB
    NG, NOPS = 238, 238 + 112
    TAIL = env("XTAIL", 4)
    dord = down_order(28, TAIL)
    beg = [i * 1024 for i in range(NG)] + [15 * RB + min(x[0] for x in dord[i:]) * 8192 for i in range(112)]
    fin = [i * 1024 + 1023 for i in range(NG)] + [15 * RB + max(x[0] for x in dord[:i + 1]) * 8192 + 8191 for i in range(112)]
    RAH = E("RAH", 6)
    I0, I0D = E("I0", 8), E("I0D", 16)
    sched = os.environ.get("MLP_SCHED", "0:0,20:0,40:0,60:0,88:2,100:1,114:1,130:1,146:1,162:1,178:1,194:1,210:1,226:1,246:0,258:0,270:0,282:0,294:0,306:0,326:0")
    sched = dict((int(x.split(":")[0]), int(x.split(":")[1])) for x in sched.split(","))
    bars = sorted(sched)
    S = g.stream
    comp, end = a.label("mlp_comp"), a.label("mlp_end")
    SB, SD = 17, g.sb
    a.c("================ phase gate/up + down ================")
    a(f"s_cmp_lt_u32 s{S_WAVE}, 4")
    a(f"s_cbranch_scc1 {comp}")
    stamp(a, SB)
    S.flush(NR)
    S.fetch(E("N1", 8), NR)
    stamp(a, SB + 1)
    for j, b in enumerate(bars):
        nxt = bars[j + 1] if j + 1 < len(bars) else NOPS
        S.landed(fin[min(NOPS - 1, nxt - 1 + RAH)] // RB)
        a("s_barrier")
        lim = NR + beg[b] // RB
        S.fetch(sched[b], lim)
        S.flush(lim, E("FCAP", 1))
        a.c(f"barrier {b}: fetched {S.nxt}, staged {sorted(S.reg)}")
        if b == E("QT", 0) and b:
            a.c("pull this wave's share of the wqkv tiles into L2")
            nq = a.label("noq")
            QMX = env("QMX", 4)
            a(f"s_cmp_lg_u32 s{S_IT}, 0")
            a(f"s_cbranch_scc1 {nq}")
            a(f"s_lshl2_add_u32 s22, s{S_IDX}, s19")
            a(f"s_mul_i32 s22, s22, {WNT_Q * QMX // 64}")
            a(f"s_and_b32 s23, s{S_XCD}, {8 // QMX - 1}")
            a(f"s_mul_i32 s23, s23, {2 * QMX * WNT_Q}")
            a("s_add_u32 s22, s22, s23")
            nl = WNT_Q * QMX // 64 // 128
            a(f"s_mov_b32 exec_hi, {(1 << (nl - 32)) - 1:#x}")
            a(f"buffer_load_dword v{V_PF}, v{V_L128}, s[4:7], s22 offen{SC}")
            a("s_mov_b64 exec, -1")
            a(f"{nq}:")
    assert S.nxt == S.last and not S.vm and not S.lg and not S.reg
    a("s_barrier")
    a("s_barrier")
    a(f"s_branch {end}")

    a(f"{comp}:")
    R = Regs(V_FREE)
    vW = [R.alloc() for _ in range(3)]
    xc = R.alloc(6, 2)
    vR2 = R.alloc(2)
    vX, vY = R.alloc(), R.alloc()
    vD = [[R.alloc() for _ in range(3)] for _ in range(2)]
    acc = [R.alloc(16) for _ in range(4)]
    NF = RAH + 1
    wf = [R.alloc(4) for _ in range(NF)]
    ring = [R.alloc(4) for _ in range(32)]
    tmp = ring[28]
    NP = len(PASSES)
    pstart = [34 * f for f in PFIRST] + [NG]
    tacc = [acc[t % 4] for t in range(7)]
    dacc = [acc[3], acc[0]]
    hreg = [34, 35, 32, 51]
    a(f"s_add_u32 s31, s{S_TTG}, s{S_WAVE}")
    a("s_lshl_b32 s22, s31, 15")
    a(f"s_add_u32 s22, s22, s{S_BASE}")
    a(f"s_add_u32 s22, s22, {B_X1:#x}")
    a("s_lshl_b32 s36, s31, 12")
    a(f"s_add_u32 s36, s36, s{S_BASE}")
    a(f"s_add_u32 s36, s36, {B_ST1:#x}")
    a(f"s_mul_i32 s26, s31, {112*1024}")
    a(f"s_add_u32 s26, s26, s{S_BASE}")
    a(f"s_add_u32 s26, s26, {B_H:#x}")
    for p in range(NP):
        a(f"s_mul_i32 s{hreg[p]}, s{S_NTG}, {PASSES[p]*1024}")
        a(f"s_add_u32 s{hreg[p]}, s{hreg[p]}, s26")
        if p:
            a(f"s_add_u32 s{hreg[p]}, s{hreg[p]}, {PFIRST[p]*16384}")
    a("s_lshl_b32 s50, s31, 8")
    a(f"s_add_u32 s50, s50, s{S_FL}")
    a(f"s_add_u32 s23, s50, {FL_O:#x}")
    a(f"s_add_u32 s50, s50, {FL_G:#x}")
    a(f"s_and_b32 s24, s{S_WAVE}, 1")
    a(f"s_lshr_b32 s25, s{S_WAVE}, 1")
    a(f"s_lshl_b32 s33, s{S_NT64}, 1")
    a("s_add_u32 s33, s33, s25")
    a(f"s_add_u32 s31, s{S_TT64}, s24")
    a("s_lshl_b32 s52, s31, 8")
    a(f"s_add_u32 s52, s52, s{S_FL}")
    a(f"s_add_u32 s52, s52, {FL_G:#x}")
    a(f"s_mul_i32 s37, s31, {112*1024}")
    a("s_lshl_b32 s30, s25, 11")
    a("s_add_u32 s37, s37, s30")
    a(f"s_add_u32 s37, s37, s{S_BASE}")
    a(f"s_add_u32 s37, s37, {B_H:#x}")
    a("s_mul_i32 s29, s25, 6144")
    a("s_add_u32 s30, s30, 2048")
    for w in range(3):
        a(f"v_add_u32 v{vW[w]}, {w*65536}, v{V_L16}")
        a(f"v_add_u32 v{vD[0][w]}, s29, v{vW[w]}")
        a(f"v_add_u32 v{vD[1][w]}, s30, v{vW[w]}")
    a(f"v_lshrrev_b32 v{vY}, 5, v0")
    a(f"v_and_b32 v{vX}, 0x3ff, v{V_P16}")
    a(f"v_lshl_add_u32 v{vX}, v{vY}, 8, v{vX}")
    cvm = []
    L = Lgkm(a)
    def wait_tag(tag):
        if tag in cvm:
            i = len(cvm) - 1 - cvm[::-1].index(tag)
            a(f"s_waitcnt vmcnt({len(cvm) - 1 - i})")
            del cvm[:i + 1]
    na, nh = [0], [0]
    def load_x():
        k = na[0]; na[0] += 1
        a(f"buffer_load_dwordx4 {vr(ring[k],4)}, v{V_P16}, s[4:7], s22 offen offset:{(k%4//2)*2048 + (k%2)*256}{SC}")
        if k % 4 == 3:
            a("s_add_u32 s22, s22, 4096")
        cvm.append(("x", k))
    def load_h():
        k = nh[0]; nh[0] += 1
        if env("X_NOH", 0):
            return
        a(f"buffer_load_dwordx4 {vr(ring[k%32],4)}, v{V_P16}, s[4:7], s37 offen offset:{(k%2)*256}{SC}")
        if k % 2 == 1:
            a("s_add_u32 s37, s37, 4096")
        cvm.append(("h", k))
    def w_read(i):
        if i < NG:
            off = beg[i] % RING
            base = vW[off >> 16]
        else:
            st_, t_, fh_ = dord[i - NG]
            off = (15 * RB + st_ * 8192) % RING + fh_ * 1024
            base = vD[t_][off >> 16]
        L.op(f"ds_read_b128 {vr(wf[i % NF],4)}, v{base} offset:{off & 0xffff}", i)
    def slot(i):
        for p in range(NP):
            if i < pstart[p + 1]:
                return PFIRST[p] + (i - pstart[p]) // 2 % PASSES[p], (i - pstart[p]) // (2 * PASSES[p])
        return None, dord[i - NG][0]
    fill = []
    stored = set()
    def h_ops(t, packed=True):
        r = tacc[t]
        p = max(q for q in range(NP) if PFIRST[q] <= t)
        so, off = hreg[p], (t - PFIRST[p]) * 1024
        ops = [f"v_pk_mul_f32 {vr(r+2*i,2)}, {vr(r+2*i,2)}, {vr(r+8+2*i,2)}" for i in range(4)]
        ops += [f"v_pk_mul_f32 {vr(r+2*i,2)}, {vr(r+2*i,2)}, {vr(vR2,2)} op_sel:[0,{i//2}] op_sel_hi:[1,{i//2}]" for i in range(4)]
        if not packed:
            ops = [f"v_mul_f32 v{r+i}, v{r+i}, v{r+8+i}" for i in range(8)]
            ops += [f"v_mul_f32 v{r+i}, v{vR2 + i//4}, v{r+i}" for i in range(8)]
        ops += [f"v_cvt_pk_bf16_f32 v{r+8+i}, v{r+2*i}, v{r+2*i+1}" for i in (0, 2, 1, 3)]
        ops += [f"v_permlane32_swap_b32 v{r+8}, v{r+10}", "s_nop 0", f"v_permlane32_swap_b32 v{r+9}, v{r+11}"]
        ops.append((f"buffer_store_dwordx4 {vr(r+8,4)}, v{vX}, s[4:7], s{so} offen offset:{off}{SC}", ("hs", t)))
        return ops

    a("s_waitcnt vmcnt(0)")
    stamp(a, SB)
    handoff(a, 23, 16)
    stamp(a, SB + 1)
    if E("PRIO", 2):
        a(f"s_setprio {E('PRIO', 2)}")
    while na[0] < I0:
        load_x()
        if na[0] == E("STP", 4):
            a("s_barrier")
            for i in range(RAH):
                w_read(i)
            for q in range(4):
                a(f"buffer_load_dwordx4 {vr(tmp+4*q,4)}, v{V_L16}, s[4:7], s36 offen offset:{q*1024}{SC}")
                cvm.append("st")
    a(f"s_add_u32 s{S_SIG}, s52, {FL_D - FL_G:#x}")
    STF = (E("STP", 4) + 1) * PASSES[0]
    evs = os.environ.get("MLP_EV", "170:196:218,240:264:286,260:288:310")
    ev = []
    for p, x in enumerate(evs.split(",")):
        sg, ak, go = map(int, x.split(":"))
        ev.append((PFIRST[p] + PASSES[p] - 1, sg, ak, go, 8 * (PFIRST[p] + PASSES[p])))
    def emit(x):
        if isinstance(x, tuple):
            a(x[0]); cvm.append(x[1]); stored.add(x[1][1])
        else:
            a(x)
    dinit = [False]
    hlim = 0
    treg = list(range(78, 94, 2)) + [96, 98, 100, 62]
    tpos = [int(x) for x in os.environ.get("TRACE", "").split(",") if x]
    for i in range(NOPS):
        t, ks = slot(i)
        if i in tpos:
            r_ = treg[tpos.index(i)]
            a(f"s_memtime s[{r_}:{r_+1}]")
        for gi, (lt, sg, ak, go, lim_) in enumerate(ev):
            if i == sg:
                a.c(f"this wave's part {gi} of H is complete")
                assert lt in stored
                wait_tag(("hs", lt))
                a(f"s_add_u32 s54, s50, {gi*4}")
                a("s_mov_b32 s38, 1")
                a("s_atomic_add s38, s[14:15], s54")
            if i == ak:
                a(f"s_add_u32 s28, s52, {gi*4}")
                a("s_mov_b32 s55, 0")
                a("s_atomic_add s55, s[14:15], s28 glc")
            if i == go:
                ok = a.label("go")
                a("s_waitcnt lgkmcnt(0)")
                a("s_cmp_ge_u32 s55, 16")
                a(f"s_cbranch_scc1 {ok}")
                poll(a, 28, 16)
                a(f"{ok}:")
                hlim = lim_
                if gi in (0, NP - 1) and not tpos:
                    stamp(a, SD + (0 if gi == 0 else 4))
        if i in bars and i > 0:
            a("s_barrier")
        if i == STF:
            wait_tag("st")
            fill.extend(stats_ops(tmp, xc, vR2, True))
        if i == pstart[1] and not tpos:
            stamp(a, SB + 2)
        if i == NG and not tpos:
            stamp(a, SB + 3)
        if i in pstart[1:]:
            p = pstart.index(i) - 1
            assert not fill
            need = set(tacc[q] for q in range(PFIRST[p + 1], PFIRST[p + 1] + PASSES[p + 1])) if p + 1 < NP else set(dacc)
            tiles = list(range(PFIRST[p], PFIRST[p] + PASSES[p]))
            now = [q for q in tiles if tacc[q] in need or (E("SER", 15) >> p) & 1]
            if now:
                if tiles[-1] == now[0]:
                    a("s_nop 7")
                for q in now:
                    for x in h_ops(q):
                        emit(x)
            else:
                fill.extend(["s_nop 0"] * 6)
            for q in tiles:
                if q not in now:
                    fill.extend(h_ops(q, False))
        if i == NG and not tpos:
            stamp(a, SD + 1)
        if 3 in stored and not dinit[0] and not fill:
            dinit[0] = True
            assert i + 10 < NG
            fill.extend(["s_nop 0"] * 2)
            fill.extend(res_init(dacc[0]))
        if i % 2 == 0:
            L.wait(i + 1)
        if i == NOPS - 4 * TAIL:
            dead = beg[bars[-1]] // RB - 1
            assert dead + NR >= 29 and bars[-1] < i and 6 in stored
            SCR = (dead % NR) * RB
            fill.append(f"s_lshl_b32 s26, s{S_WAVE}, 12")
            fill.append(f"s_add_u32 s26, s26, {SCR}")
            fill.append("s_xor_b32 s27, s26, 0x2000")
            fill.append(f"v_add_u32 v{vX}, s26, v{V_L16}")
            fill.append(f"v_add_u32 v{vY}, s27, v{V_L16}")
        if i == NOPS - 2:
            L.wait("xw")
            a("s_barrier")
            for q in range(4):
                L.op(f"ds_read_b128 {vr(dacc[1]+4*q,4)}, v{vY} offset:{q*1024}", "xr")
        fh = i % 2
        for th in range(2):
            if th == 1 and i + RAH < NOPS:
                w_read(i + RAH)
            if t == 0 and fh == 0 and ks < 16:
                wait_tag(("x", 2 * ks + 1))
            if t is None:
                assert nh[0] > 2 * ks + 1
                wait_tag(("h", 2 * ks + 1))
            if t is not None:
                d, xa, first = tacc[t], (xc + 2 * th if ks == 16 else ring[2 * ks + th]), ks == 0
                if first and t >= 4:
                    assert t - 4 in stored
            else:
                d, xa, first = dacc[dord[i - NG][1]], ring[(2 * ks + th) % 32], i - NG in (2, 3)
                assert 4 in stored
            d += 8 * fh + 4 * th
            a(f"{M16} {vr(d,4)}, {vr(wf[i % NF],4)}, {vr(xa,4)}, {'0' if first else vr(d,4)}")
            for _ in range(min(E("FPS", 1), len(fill))):
                emit(fill.pop(0))
            j = i - (NOPS - 2 * TAIL) - 2
            if 0 <= j < 2:
                q = 2 * j + th
                L.op(f"ds_write_b128 v{vX}, {vr(dacc[1]+4*q,4)} offset:{q*1024}", "xw")
        if (i + 1) % PASSES[0] == 0 and na[0] < 32:
            assert na[0] < 28 or (i > STF and not fill), i
            load_x()
        if i >= pstart[NP - 1]:
            done = 2 * ((i + 1 - NG) // 4) if t is None else 0
            half = (i + 1 - NG) // 2 if t is None else 0
            look = I0D if t is not None else max(E("LK", 12), I0D - half)
            assert look <= 30
            if nh[0] < min(hlim, half + look) and (t is None or nh[0] < 2 * ks):
                load_h()
    assert nh[0] == 56 and not fill
    if E("PRIO", 2):
        a("s_setprio 0")
    stamp(a, SD + 2)
    for k in range(len(tpos)):
        a(f"v_writelane_b32 v{V_STAMP+1}, s{treg[k]}, {k}")
    res_epilogue(a, g, dacc[0], dacc[1], tmp, end)
    a(f"{end}:")
    return max(R.n, VS + 16 * S.maxreg)


def attn_phase(a, SB, code_end):
    U = 2
    NIT = 32 // U
    B2IT = env("ATT_B2", 1)
    B3IT = env("ATT_B3", 3)
    PRIO_IT = env("ATT_PRIO", 14)
    PFN = 4 if GMX == 4 else env('PFN', 6)
    CB = 0
    XB = CB + 4096
    KB, VB = 32768, 98304
    assert XB + 8 * 2304 <= KB
    R = Regs(V_FREE)
    vK, vV, vInc, vV0 = R.alloc(), R.alloc(), R.alloc(), R.alloc()
    t0, t1 = R.alloc(), R.alloc()
    vPA, vPP = R.alloc(), R.alloc()
    R.alloc(); R.alloc()
    vIx, vKp = R.alloc(), R.alloc()
    DYN = env("ATT_DYN", 0)
    Q = [R.alloc(4), R.alloc(4)]
    NM = [R.alloc(16), R.alloc(16)]
    O = [R.alloc(16), R.alloc(16)]
    S = [R.alloc(16), R.alloc(16)]
    P = R.alloc(8)
    KF = [R.alloc(4), R.alloc(4)]
    VF = [R.alloc(8), R.alloc(8)]
    a.c("================ phase attention ================")
    a(f"s_and_b32 s19, s{S_IDX}, 3")
    a(f"s_lshl_b32 s20, s{S_XCD}, 2")
    a("s_add_u32 s19, s19, s20")
    a(f"s_lshr_b32 s20, s{S_IDX}, 2")
    a("s_lshl_b32 s20, s20, 3")
    a(f"s_and_b32 s26, s{S_WAVE}, 3")
    a(f"s_lshr_b32 s27, s{S_WAVE}, 2")
    a("s_lshl_b32 s22, s26, 1")
    a("s_add_u32 s20, s20, s22")
    a("s_lshl_b32 s21, s19, 16")
    a(f"s_add_u32 s21, s21, s{S_BASE}")
    setup = a.label("att_setup")
    assert B_Q == 0 and B_V - B_K == 0x200000
    a("s_and_b32 s24, s26, 1")
    a("s_lshr_b32 s25, s26, 1")
    a("s_lshl_b32 s28, s24, 16")
    a(f"s_add_u32 s28, s28, {KB}")
    a("s_lshl_b32 s29, s24, 21")
    a("s_add_u32 s29, s29, s21")
    a(f"s_add_u32 s29, s29, {B_K:#x}")

    def dma(first_tile, per_wave):
        a(f"s_mul_i32 s24, s25, {per_wave*1024}")
        if first_tile:
            a(f"s_add_u32 s24, s24, {first_tile*1024}")
        n = 0
        while n < per_wave:
            a("s_add_u32 s30, s28, s24")
            a("s_mov_b32 m0, s30")
            a("s_add_u32 s31, s29, s24")
            for i in range(min(4, per_wave - n)):
                a(f"buffer_load_dwordx4 v{V_L16}, s[4:7], s31 offen offset:{i*1024}{SC} lds")
            n += 4
            if n < per_wave:
                a("s_add_u32 s24, s24, 4096")
    a(f"v_and_b32 v{t0}, 11, v0")
    a(f"v_cmp_eq_u32 vcc, 0, v{t0}")
    a(f"v_mov_b32 v{t1}, 0x3f803f80")
    a("s_lshl_b32 s30, s26, 10")
    a(f"s_add_u32 s30, s30, {CB}")
    a(f"v_cndmask_b32 v{P}, 0, v{t1}, vcc")
    a(f"v_add_u32 v{t0}, s30, v{V_L16}")
    for i in range(1, 4):
        a(f"v_mov_b32 v{P+i}, v{P}")
    a(f"ds_write_b128 v{t0}, {vr(P,4)}")
    a(f"v_lshrrev_b32 v{t0}, 5, v0")
    a(f"v_lshlrev_b32 v{t0}, 8, v{t0}")
    a(f"v_and_b32 v{t1}, 15, v0")
    a(f"v_lshl_add_u32 v{t0}, v{t1}, 4, v{t0}")
    a(f"v_and_b32 v{t1}, 16, v0")
    a(f"v_cmp_eq_u32 vcc, 0, v{t1}")
    a("s_lshl_b32 s30, s27, 15")
    a(f"s_add_u32 s30, s30, {KB}")
    kp1, kpj = a.label("kp1"), a.label("kpj")
    a(f"s_cmp_lg_u32 s{S_IT}, 0")
    a(f"s_cbranch_scc1 {kp1}")
    a(f"v_and_b32 v{vKp}, 0x33, v0")
    a(f"v_bfe_u32 v{vIx}, v0, 2, 1")
    a(f"v_lshl_or_b32 v{vKp}, v{vIx}, 3, v{vKp}")
    a(f"v_bfe_u32 v{vIx}, v0, 3, 1")
    a(f"v_lshl_or_b32 v{vKp}, v{vIx}, 2, v{vKp}")
    a(f"s_branch {kpj}")
    a(f"{kp1}:")
    a(f"v_and_b32 v{vKp}, 0x23, v0")
    a(f"v_bfe_u32 v{vIx}, v0, 2, 1")
    a(f"v_lshl_or_b32 v{vKp}, v{vIx}, 4, v{vKp}")
    a(f"v_bfe_u32 v{vIx}, v0, 3, 2")
    a(f"v_lshl_or_b32 v{vKp}, v{vIx}, 2, v{vKp}")
    a(f"{kpj}:")
    a(f"v_lshlrev_b32 v{vKp}, 4, v{vKp}")
    a(f"v_mov_b32 v{vIx}, 0xdddddddd")
    a(f"v_add_u32 v{vK}, s30, v{vKp}")
    a("s_add_u32 s31, s30, 0x10000")
    a(f"v_mov_b32 v{t1}, s31")
    a(f"v_mov_b32 v{vInc}, {CB}")
    a(f"v_cndmask_b32 v{t1}, v{vInc}, v{t1}, vcc")
    a(f"v_add_u32 v{vV}, v{t0}, v{t1}")
    a(f"v_mov_b32 v{t1}, {VB}")
    a(f"v_cndmask_b32 v{t1}, v{vInc}, v{t1}, vcc")
    a(f"v_add_u32 v{vV0}, v{t0}, v{t1}")
    a(f"v_mov_b32 v{t1}, {U*1024}")
    a(f"v_cndmask_b32 v{vInc}, 0, v{t1}, vcc")
    for q in range(2):
        for i in range(16):
            a(f"v_mov_b32 v{O[q]+i}, 0")
    for i in range(4, 8):
        a(f"v_mov_b32 v{VF[1]+i}, 0")
    a(f"ds_write_b128 v{V_L16}, {vr(VF[1]+4,4)} offset:{XB + 9216}")
    a("s_mul_i32 s30, s26, 2304")
    a(f"s_add_u32 s30, s30, {XB}")
    a("s_lshl_b32 s31, s26, 12")
    a(f"s_add_u32 s31, s31, {XB + 12288}")
    a("s_cmp_eq_u32 s27, 0")
    a("s_cselect_b32 s35, s30, s31")
    a("s_cselect_b32 s36, s31, s30")
    a(f"v_add_u32 v{vPA}, s35, v{V_L16}")
    a(f"v_add_u32 v{vPP}, s36, v{V_L16}")
    a(f"v_add_u32 v{vPA+2}, s35, v{V_L4}")
    a(f"v_add_u32 v{vPP+2}, s36, v{V_L4}")
    a("s_add_u32 s20, s20, s27")
    a("s_lshl_b32 s22, s20, 10")
    a("s_add_u32 s22, s22, s21")
    a("s_xor_b32 s35, s22, 1024")
    a(f"s_add_u32 s36, s21, {B_K:#x}")
    a("s_lshr_b32 s23, s19, 1")
    a(f"s_cmp_eq_u32 s{S_IT}, 0")
    a("s_cselect_b32 s53, 32, 16")
    a("s_cselect_b32 s52, -2, -1")
    a(f"s_cselect_b32 s32, {NIT - env('ATT_PRIO0', 15)}, {NIT - PRIO_IT}")
    a("s_and_b32 s23, s23, s52")
    a("s_lshl_b32 s23, s23, 8")
    a(f"s_add_u32 s23, s23, s{S_FL}")
    assert FL_Q == 0
    a(f"s_mov_b32 s34, {NIT - B2IT}")
    a(f"s_mov_b32 s33, {NIT - B3IT}")
    F, G_, vS, vR, vC = V_TF, V_TF + 32, V_TF + 48, V_TF + 49, V_TF + 52
    CSA = XB + 10240
    CNT = XB + 9216
    a.c("re-tiling task: 128 rows x two 64-column strips; this wave takes 32 rows")
    def by_type(fq, fg, fo, fd):
        l_gu, l_o, l_d, l_go = [a.label(x) for x in ("gu", "o", "d", "go")]
        a("s_cmp_ge_u32 s2, 176")
        a(f"s_cbranch_scc1 {l_d}")
        a("s_cmp_ge_u32 s2, 160")
        a(f"s_cbranch_scc1 {l_o}")
        a("s_cmp_ge_u32 s2, 48")
        a(f"s_cbranch_scc1 {l_gu}")
        fq()
        a(f"s_branch {l_go}")
        a(f"{l_gu}:")
        fg()
        a(f"s_branch {l_go}")
        a(f"{l_o}:")
        fo()
        a(f"s_branch {l_go}")
        a(f"{l_d}:")
        fd()
        a(f"{l_go}:")
    def src(lo0, lo1, nbytes, first, stride, kq_low):
        def f():
            srd(a, 80, lo0, lo0 + 1, nbytes)
            srd(a, 84, lo1, lo1 + 1, nbytes)
            a(f"s_sub_u32 s55, s2, {first}")
            a(f"s_and_b32 s{79 if kq_low else 91}, s55, 3")
            a(f"s_lshr_b32 s{91 if kq_low else 79}, s55, 2")
            a(f"s_mov_b32 s88, {stride}")
            a(f"s_lshl_b32 s89, s91, {8 if lo0 == lo1 else 7}")
            a(f"s_add_u32 s90, s89, {128 if lo0 == lo1 else 0}")
        return f
    by_type(src(66, 66, 512 * 1536 * 2, 0, 3072, True), src(72, 74, 512 * 1792 * 2, 48, 3584, True),
            src(68, 68, 512 * 512 * 2, 160, 1024, False), src(76, 76, 1792 * 512 * 2, 176, 1024, False))
    a("s_lshl2_add_u32 s92, s79, s26")
    a("s_lshl_b32 s62, s92, 5")
    a("s_mul_i32 s62, s62, s88")
    a("s_add_u32 s89, s89, s62")
    a("s_add_u32 s90, s90, s62")
    a("s_lshl_b32 s55, s88, 3")
    a(f"v_lshrrev_b32 v{vS}, 3, v0")
    a(f"v_mul_lo_u32 v{vS}, v{vS}, s88")
    a(f"v_and_b32 v{vR}, 7, v0")
    a(f"v_lshl_add_u32 v{vS}, v{vR}, 4, v{vS}")
    a("s_waitcnt vmcnt(0) lgkmcnt(0)")
    stamp(a, SB)
    a("s_barrier")
    yp = a.label("yparam")
    a("s_cmp_lg_u32 s27, 0")
    a(f"s_cbranch_scc1 {yp}")
    a(f"s_cmp_lg_u32 s{S_WAVE}, 0")
    a(f"s_cbranch_scc1 {setup}")
    handoff(a, 23, "s53")
    stamp(a, SB + 1)
    a(f"s_branch {setup}")
    a(f"{yp}:")
    a.c("L2 prefetch: this wave's share of gate/up (2 x 8 KB) and wo (8 KB)")
    NPG = GMX // 2
    a(f"s_mul_i32 s50, s{S_IDX}, {WNT_G * GMX // 16}")
    a(f"s_and_b32 s23, s{S_XCD}, {8 // GMX - 1}")
    a(f"s_mul_i32 s23, s23, {2 * GMX * WNT_G}")
    a("s_add_u32 s50, s50, s23")
    a(f"s_mul_i32 s23, s26, {NPG * 8192}")
    a("s_add_u32 s50, s50, s23")
    a(f"s_add_u32 s50, s50, {WS_WGU:#x}")
    a(f"s_lshl2_add_u32 s51, s{S_IDX}, s26")
    a(f"s_mul_i32 s51, s51, {RMX * 512}")
    a(f"s_and_b32 s23, s{S_XCD}, {8 // RMX - 1}")
    a(f"s_mul_i32 s23, s23, {RMX * 65536}")
    a("s_add_u32 s51, s51, s23")
    a(f"s_add_u32 s51, s51, {WS_WO:#x}")
    a(f"s_lshl2_add_u32 s52, s{S_IDX}, s26")
    a(f"s_mul_i32 s52, s52, {RMX * 1792}")
    a(f"s_and_b32 s23, s{S_XCD}, {8 // RMX - 1}")
    a(f"s_mul_i32 s23, s23, {RMX * 224 * 1024}")
    a("s_add_u32 s52, s52, s23")
    a(f"s_add_u32 s52, s52, {WS_WD:#x}")
    a(f"s_mov_b32 s39, {SPIN_MAX}")
    a("s_mov_b32 s33, 6")
    a(f"s_mov_b32 s34, {NIT - 1}")
    a(f"s_cmp_lg_u32 s{S_IT}, 0")
    a(f"s_cbranch_scc1 {setup}")
    a("s_mov_b32 s33, 1")
    a(f"s_mov_b32 s34, {NIT - env('ATT_G0', 4)}")
    a(f"{setup}:")
    a("s_barrier")

    def qk_loads():
        a(f"buffer_load_dwordx4 {vr(KF[1],4)}, v{vKp}, s[4:7], s36 offen{SC}")
        a(f"buffer_load_dwordx4 {vr(Q[0],4)}, v{V_L16}, s[4:7], s35 offen{SC}")
        a(f"buffer_load_dwordx4 {vr(Q[1],4)}, v{V_L16}, s[4:7], s22 offen{SC}")

    def standin():
        for q in range(2):
            a(f"{MFMA} {vr(S[q],16)}, {vr(KF[1],4)}, {vr(Q[q],4)}, 0")
        a("s_nop 11")
        tt = (t0, t1)
        for q in range(2):
            a(f"v_max3_f32 v{tt[q]}, v{S[q]}, v{S[q]+1}, v{S[q]+2}")
            a(f"v_max3_f32 v{P+q}, v{S[q]+8}, v{S[q]+9}, v{S[q]+10}")
        for i in (3, 5):
            for q in range(2):
                a(f"v_max3_f32 v{tt[q]}, v{tt[q]}, v{S[q]+i}, v{S[q]+i+1}")
                a(f"v_max3_f32 v{P+q}, v{P+q}, v{S[q]+8+i}, v{S[q]+9+i}")
        for q in range(2):
            a(f"v_max3_f32 v{tt[q]}, v{tt[q]}, v{S[q]+7}, v{S[q]+15}")
        for q in range(2):
            a(f"v_max_f32 v{tt[q]}, v{tt[q]}, v{P+q}")
        for q in range(2):
            a(f"v_mov_b32 v{P+q}, v{tt[q]}")
        a("s_nop 0")
        for q in range(2):
            a(f"v_permlane32_swap_b32 v{tt[q]}, v{P+q}")
        for q in range(2):
            a(f"v_min_f32 v{NM[q]}, -v{tt[q]}, -v{P+q}")
        for q in range(2):
            a(f"v_mov_b32 v{NM[q]+1}, v{NM[q]}")
        for q in range(2):
            for i in range(2, 16, 2):
                a(f"v_pk_mov_b32 {vr(NM[q]+i,2)}, {vr(NM[q],2)}, {vr(NM[q],2)}")

    older, join = a.label("older"), a.label("join")
    a("s_cmp_eq_u32 s27, 0")
    a(f"s_cbranch_scc1 {older}")
    dma(0, 2)
    dma(4, 6)
    a("s_waitcnt vmcnt(6)")
    a("s_barrier")
    stamp(a, SB + 2)
    qk_loads()
    dma(16, 8)
    a("s_waitcnt vmcnt(11)")
    a("s_barrier")
    dma(32, 16)
    a("s_waitcnt vmcnt(24)")
    standin()
    a("s_waitcnt vmcnt(0)")
    a("s_barrier")
    a("s_setprio 1")
    a(f"ds_read_b128 {vr(KF[0],4)}, v{vK}")
    a(f"ds_read_b128 {vr(VF[0],4)}, v{vV}")
    a(f"ds_read_b128 {vr(VF[0]+4,4)}, v{vV} offset:512")
    nl0 = a.label("noraw")
    a(f"s_cmp_lg_u32 s{S_IT}, 0")
    a(f"s_cbranch_scc1 {nl0}")
    for g8 in range(4):
        for h in range(2):
            a(f"buffer_load_dwordx4 {vr(F+16*h+4*g8,4)}, v{vS}, s[{80+4*h}:{83+4*h}], s{89+h} offen")
            a(f"s_add_u32 s{89+h}, s{89+h}, s55")
    a(f"{nl0}:")
    a("s_waitcnt lgkmcnt(0)")
    a(f"{MFMA} {vr(S[0],16)}, {vr(KF[0],4)}, {vr(Q[0],4)}, {vr(NM[0],16)}")
    a("s_nop 10")
    a(f"s_branch {join}")
    a(f"{older}:")
    qk_loads()
    a("s_waitcnt vmcnt(0)")
    standin()
    a(f"{MFMA} {vr(S[0],16)}, {vr(KF[1],4)}, {vr(Q[0],4)}, {vr(NM[0],16)}")
    a("s_barrier")
    stamp(a, SB + 2)
    a(f"ds_read_b128 {vr(VF[0],4)}, v{vV}")
    a(f"ds_read_b128 {vr(VF[0]+4,4)}, v{vV} offset:512")
    for i in range(0, 4, 2):
        a(f"v_pk_mov_b32 {vr(KF[0]+i,2)}, {vr(KF[1]+i,2)}, {vr(KF[1]+i,2)} op_sel:[0,1]")
    a("s_waitcnt lgkmcnt(0)")
    a("s_nop 5")
    a(f"{join}:")
    a(f"s_mov_b32 s31, {NIT}")
    stamp(a, SB + 3)
    lp, hook, back, hp, exitc = [a.label(x) for x in ("attn", "hook", "back", "hookp", "exitc")]
    if env("ALN", 0):
        a(f".p2alignl {env('ALN', 0)}, 0xbf800000")
        for _ in range(env("ALP", 0)):
            a("s_nop 0")
    a(f"{lp}:")
    order = os.environ.get("ATT_ORD", "E0 E1 P1 W RK E2 E3 E4 QK R0 D E5 E6 E7 E8 E9 E10 P0 R1 S E11 E12 E13 A E14 E15").split()
    for u in range(U):
        for q in range(2):
            c = S[q]
            for tok in order:
                if tok[0] == "E":
                    i = int(tok[1:]); a(f"v_exp_f32 v{c+i}, v{c+i}")
                elif tok[0] == "C":
                    j = int(tok[1:]); a(f"v_cvt_pk_bf16_f32 v{P+j}, v{c+2*j}, v{c+2*j+1}")
                elif tok == "P1":
                    pv = VF[(u + 1) & 1] if q == 0 else VF[u & 1]
                    a(f"{SMF} {vr(O[q^1],16)}, {vr(pv+4,4)}, {vr(S[q^1]+8,8)}, v{vIx}")
                elif tok == "P0":
                    a(f"{SMF} {vr(O[q],16)}, {vr(VF[u&1],4)}, {vr(S[q],8)}, v{vIx}")
                elif tok == "QK":
                    k_ = KF[u & 1] if q == 0 else KF[(u + 1) & 1]
                    a(f"{MFMA} {vr(S[q^1],16)}, {vr(k_,4)}, {vr(Q[q^1],4)}, {vr(NM[q^1],16)}")
                elif tok == "W":
                    if q == 1:
                        a("s_waitcnt lgkmcnt(0)")
                elif tok == "RK":
                    if q == 0:
                        a(f"ds_read_b128 {vr(KF[(u+1)&1],4)}, v{vK} offset:{(u+1)*1024}")
                elif tok == "R0":
                    if q == 0:
                        a(f"ds_read_b128 {vr(VF[(u+1)&1],4)}, v{vV} offset:{(u+1)*1024}")
                elif tok == "R1":
                    if q == 0:
                        a(f"ds_read_b128 {vr(VF[(u+1)&1]+4,4)}, v{vV} offset:{(u+1)*1024+512}")
                elif tok == "A":
                    if u == U - 1 and q == 1:
                        a(f"v_add_u32 v{vK}, {U*1024}, v{vK}")
                        a(f"v_add_u32 v{vV}, v{vInc}, v{vV}")
                elif tok == "D":
                    if 2 * u + q == env("ATT_PU", 3):
                        sk = a.label("keep")
                        a("s_cmp_lg_u32 s31, s32")
                        a(f"s_cbranch_scc1 {sk}")
                        a("s_setprio 0")
                        a(f"{sk}:")
                elif tok == "S":
                    if u == U - 1 and q == 1:
                        a("s_sub_u32 s31, s31, 1")
                        a("s_cmp_lg_u32 s31, s34")
    if "S" not in order:
        a("s_sub_u32 s31, s31, 1")
        a("s_cmp_lg_u32 s31, s34")
    a(f"s_cbranch_scc1 {lp}")
    a("s_cmp_lg_u32 s31, 0")
    a(f"s_cbranch_scc1 {hook}")
    a(f"{exitc}:")
    a("s_cmp_lg_u32 s33, 0")
    a(f"s_cbranch_scc1 {hp}")
    a("s_setprio 0")
    a(f"{SMF} {vr(O[1],16)}, {vr(VF[1]+4,4)}, {vr(S[1]+8,8)}, v{vIx}")
    stamp(a, SB + 4)
    a(f"ds_write_b128 v{vPA}, {vr(O[0],4)}")
    a(f"ds_write_b128 v{vPA}, {vr(O[0]+4,4)} offset:1024")
    a(f"ds_write_b32 v{vPA+2}, v{O[0]+8} offset:2048")
    a("s_lshl_b32 s22, s20, 15")
    a("s_lshl_b32 s23, s19, 10")
    a("s_add_u32 s22, s22, s23")
    a(f"s_add_u32 s22, s22, s{S_BASE}")
    a(f"s_add_u32 s22, s22, {B_O:#x}")
    a(f"s_lshl_b32 s{S_SIG}, s20, 8")
    a(f"s_add_u32 s{S_SIG}, s{S_SIG}, s{S_FL}")
    a(f"s_add_u32 s{S_SIG}, s{S_SIG}, {FL_A:#x}")
    a("s_waitcnt vmcnt(0) lgkmcnt(0)")
    a("s_barrier")
    a(f"ds_read_b32 v{S[0]+8}, v{vPP+2} offset:2048")
    a(f"ds_read_b128 {vr(S[0],4)}, v{vPP}")
    a(f"ds_read_b128 {vr(S[0]+4,4)}, v{vPP} offset:1024")
    OO = O[1]
    a("s_waitcnt lgkmcnt(2)")
    a(f"v_add_f32 v{OO+8}, v{OO+8}, v{S[0]+8}")
    a(f"v_rcp_f32 v{t0}, v{OO+8}")
    for i in range(0, 8, 2):
        if i % 4 == 0:
            a(f"s_waitcnt lgkmcnt({1 - i // 4})")
        a(f"v_pk_add_f32 {vr(OO+i,2)}, {vr(OO+i,2)}, {vr(S[0]+i,2)}")
    fin, fb, endl = a.label("fin"), a.label("fallback"), a.label("att_end")
    a(f"v_pk_add_f32 {vr(S[0],2)}, {vr(OO,2)}, {vr(OO+2,2)}")
    a(f"v_pk_add_f32 {vr(S[0]+2,2)}, {vr(OO+4,2)}, {vr(OO+6,2)}")
    a(f"v_pk_add_f32 {vr(S[0],2)}, {vr(S[0],2)}, {vr(S[0]+2,2)}")
    a(f"v_add_f32 v{t1}, v{S[0]}, v{S[0]+1}")
    a(f"v_fma_f32 v{t1}, 0, v{t1}, v{OO+8}")
    a(f"v_cmp_ngt_f32 vcc, {f32bits(2.0**64):#x}, v{t1}")
    a("s_nop 0")
    a(f"s_cbranch_vccnz {fb}")
    a(f"{fin}:")
    assert t0 % 2 == 0
    for i in range(0, 8, 2):
        a(f"v_pk_mul_f32 {vr(OO+i,2)}, {vr(OO+i,2)}, {vr(t0,2)} op_sel_hi:[1,0]")
    for i in range(4):
        a(f"v_cvt_pk_bf16_f32 v{P+i}, v{OO+2*i}, v{OO+2*i+1}")
    a(f"buffer_store_dwordx4 {vr(P,4)}, v{V_L16}, s[4:7], s22 offen{SC}")
    a("s_barrier")
    stamp(a, SB + 5)
    a(f"s_branch {endl}")
    a(f"{back}:")
    a("s_cmp_lg_u32 s31, 0")
    a(f"s_cbranch_scc1 {lp}")
    a("s_sub_u32 s39, s39, 1")
    a("s_cmp_eq_u32 s39, 0")
    a("s_cselect_b32 s33, 0, s33")
    a(f"s_branch {exitc}")
    a(f"{hook}:")
    a("s_cmp_eq_u32 s27, 0")
    a(f"s_cbranch_scc0 {hp}")
    a("s_barrier")
    a("s_mov_b32 s34, s33")
    a("s_mov_b32 s33, 0")
    a(f"s_add_u32 s23, s34, s{S_IT}")
    a("s_cmp_lg_u32 s23, 0")
    a(f"s_cbranch_scc1 {back}")
    a.c("residual tile of x for the first output projection")
    row_offset(a, V_TF, V_TF + 1)
    a(f"s_and_b32 s23, s{S_WAVE}, 1")
    a(f"s_add_u32 s23, s23, s{S_TT64}")
    a("s_lshl_b32 s23, s23, 15")
    a(f"s_lshl_b32 s24, s{S_NT64}, 1")
    a(f"s_lshr_b32 s25, s{S_WAVE}, 1")
    a("s_add_u32 s24, s24, s25")
    a("s_lshl_b32 s24, s24, 6")
    a("s_add_u32 s23, s23, s24")
    a(f"buffer_load_dwordx4 {vr(V_RES,4)}, v{V_TF}, s[8:11], s23 offen")
    a("s_add_u32 s24, s23, 16384")
    a(f"buffer_load_dwordx4 {vr(V_RES+4,4)}, v{V_TF}, s[8:11], s24 offen")
    a(f"s_branch {back}")
    a(f"{hp}:")
    hs = [a.label(f"hs{i}") for i in range(8)]
    for i in (1, 2, 3, 4, 5, 6):
        a(f"s_cmp_eq_u32 s33, {i}")
        a(f"s_cbranch_scc1 {hs[i]}")
    HS = -9
    def goto(step, gap):
        a(f"s_mov_b32 s33, {step}")
        a(f"s_max_u32 s34, s34, {gap}")
        a(f"s_sub_u32 s34, s34, {gap}")
        a(f"s_branch {back}")
    def next_step(i):
        goto(i + 1, env(f"ATT_G{i}", 3))
    a.c("fetch the last rounds of the down weights into free registers")
    a(f"s_mul_i32 s23, s{S_NT64}, {224*1024}")
    a("s_lshl_b32 s62, s26, 12")
    a("s_add_u32 s23, s23, s62")
    a(f"s_add_u32 s23, s23, {WS_WD + (14 - NPRE)*RB:#x}")
    assert VS + (14 - NPRE) * 16 >= V_TF
    for k in range(NPRE):
        for i in range(4):
            a(f"buffer_load_dwordx4 {vr(VS + (14-NPRE+k)*16 + 4*i, 4)}, v{V_L16}, s[4:7], s23 offen offset:{i*1024}{SC}")
        a(f"s_add_u32 s23, s23, {RB}")
    a("s_mov_b32 s33, 0")
    a("s_mov_b32 s34, 0")
    a(f"s_branch {back}")
    a(f"{hs[1]}:")
    nost = a.label("nostore")
    a("s_cmp_ge_u32 s2, 232")
    a(f"s_cbranch_scc1 {nost}")
    if env("X_NOTR", 0):
        a(f"s_branch {nost}")
    dests, strides = (96, 97, 100, 101), (80, 81, 82, 83)
    vO = vC + 8
    a(f"v_mov_b32 v{vO}, v{V_L16}")
    def plain(d1, delta, stride, cs):
        a("s_add_u32 s97, s96, 1024")
        a(f"s_add_u32 s100, s96, {d1}")
        a(f"s_add_u32 s101, s96, {d1 + 1024}")
        a(f"s_mov_b32 s93, {delta}")
        for e in strides:
            a(f"s_mov_b32 s{e}, {stride}")
        a(f"s_mov_b32 s63, {cs}")
    def dq():
        a("s_and_b32 s62, s91, 3")
        a(f"s_mul_i32 s96, s62, {4*WNT_Q}")
        a("s_lshr_b32 s62, s91, 2")
        a("s_lshr_b32 s78, s62, 1")
        a("s_lshl_b32 s62, s62, 11")
        a("s_add_u32 s96, s96, s62")
        assert WS_WQKV == 0
        plain(WNT_Q, 2 * WNT_Q, 6144, 1)
    def dg():
        a("s_lshl_b32 s55, s91, 2")
        for d, e in zip(dests, strides):
            a("s_mul_i32 s62, s55, 9363")
            a("s_lshr_b32 s62, s62, 16")
            a(f"s_mul_i32 s{d}, s62, {WNT_G}")
            a("s_mul_i32 s62, s62, 7")
            a("s_sub_u32 s62, s55, s62")
            pass_of(a, 62, 78, e)
            a(f"s_lshl_b32 s{e}, s{e}, 11")
            a("s_lshl4_add_u32 s62, s78, s62")
            a("s_lshl_b32 s62, s62, 11")
            a(f"s_add_u32 s{d}, s{d}, s62")
            a(f"s_add_u32 s{d}, s{d}, {WS_WGU:#x}")
            a("s_add_u32 s55, s55, 1")
        a("s_mov_b32 s93, 1024")
        a("s_mov_b32 s63, 1")
        a("s_mov_b32 s78, 1")
    def do():
        a("s_lshl_b32 s96, s91, 17")
        a(f"s_add_u32 s96, s96, {WS_WO:#x}")
        plain(2048, 64 * 1024, 4096, 0)
        a("s_mov_b32 s78, 0")
    def dd():
        a(f"s_mul_i32 s96, s91, {2*224*1024}")
        a(f"s_add_u32 s96, s96, {WS_WD:#x}")
        plain(2048, 224 * 1024, 0, 0)
        for d, inc in ((84, 0), (85, 1)):
            a("s_lshl_b32 s62, s92, 1")
            a(f"s_add_u32 s62, s62, {inc}")
            a("s_mul_i32 s54, s62, 9363")
            a("s_lshr_b32 s54, s54, 16")
            a("s_mul_i32 s55, s54, 7")
            a("s_sub_u32 s55, s62, s55")
            pass_of(a, 55, 78, 49)
            a("s_mul_i32 s54, s54, s49")
            a("s_mul_i32 s78, s78, 15")
            a("s_add_u32 s54, s54, s78")
            a("s_add_u32 s54, s54, s55")
            a("s_lshr_b32 s55, s54, 1")
            a("s_lshl_b32 s55, s55, 12")
            a("s_and_b32 s54, s54, 1")
            a("s_lshl_b32 s54, s54, 9")
            a(f"s_add_u32 s{d}, s54, s55")
        a("v_cmp_gt_u32 vcc, 32, v0")
        a(f"v_mov_b32 v{vC}, s84")
        a(f"v_mov_b32 v{vC+1}, s85")
        a(f"v_cndmask_b32 v{vC}, v{vC+1}, v{vC}, vcc")
        a(f"v_and_b32 v{vO}, 0x1ff, v{V_L16}")
        a(f"v_add_u32 v{vO}, v{vO}, v{vC}")
        a("s_mov_b32 s78, 0")
    by_type(dq, dg, do, dd)
    a("s_lshl_b32 s62, s26, 12")
    a(f"s_add_u32 s62, s62, {XB + 12288}")
    a(f"v_add_u32 v{vS}, s62, v{V_L16}")
    a(f"v_and_b32 v{vC}, 1, v0")
    a(f"v_bfe_u32 v{vC+1}, v0, 1, 1")
    a(f"v_lshl_add_u32 v{vC}, v{vC}, 1, v{vC+1}")
    a(f"v_and_b32 v{vC+1}, 3, v0")
    a(f"v_lshlrev_b32 v{vC+1}, 1, v{vC+1}")
    a("s_cmp_eq_u32 s78, 0")
    a("s_cselect_b64 vcc, -1, 0")
    a("s_cselect_b32 s55, 8, 32")
    a(f"v_lshrrev_b32 v{vR}, 4, v0")
    a(f"v_cndmask_b32 v{vC}, v{vC}, v{vC+1}, vcc")
    a(f"v_bfe_u32 v{vC+1}, v0, 2, 2")
    a(f"v_lshl_add_u32 v{vR}, v{vR}, 3, v{vC+1}")
    a(f"v_lshlrev_b32 v{vR}, 7, v{vR}")
    a(f"v_lshl_add_u32 v{vR}, v{vC}, 3, v{vR}")
    a(f"v_add_u32 v{vR}, s62, v{vR}")
    a(f"v_add_u32 v{vR+1}, s55, v{vR}")
    a("s_mov_b32 s49, 0x3f803f80")
    a("s_waitcnt vmcnt(0)")
    for h in range(2):
        dst = G_ if h == 0 else F
        for g8 in range(4):
            a(f"ds_write_b128 v{vS}, {vr(F+16*h+4*g8,4)} offset:{g8*1024}")
        for e in range(4):
            for jj in range(2):
                a(f"ds_read_b64_tr_b16 {vr(dst+4*e+2*jj,2)}, v{vR + (e&1)} offset:{(e>>1)*64 + jj*512}")
        a("s_waitcnt lgkmcnt(0)")
        for e in range(4):
            a(f"s_mul_i32 s62, s92, s{strides[e]}")
            a(f"s_add_u32 s62, s62, s{dests[e]}")
            if h:
                a("s_add_u32 s62, s62, s93")
            if not env("X_NOST", 0):
                a(f"buffer_store_dwordx4 {vr(dst+4*e,4)}, v{vO}, s[4:7], s62 offen{SC}")
    a("s_cmp_eq_u32 s63, 0")
    a(f"s_cbranch_scc1 {nost}")
    if env("X_NOCS", 0):
        a(f"s_branch {nost}")
    for k in range(4):
        for h in range(2):
            for e in range(4):
                c, x = vC + 4 * h + e, (G_ if h == 0 else F) + 4 * e + k
                if k == 0:
                    a(f"v_dot2_f32_bf16 v{c}, v{x}, s49, 0")
                else:
                    a(f"v_dot2_f32_bf16 v{c}, v{x}, s49, v{c}")
    a("s_lshl_b32 s62, s26, 9")
    a(f"v_add_u32 v{vS}, s62, v{V_L4}")
    a(f"v_mov_b32 v{vR}, 1")
    a(f"v_mov_b32 v{vR+1}, {CNT}")
    for h in range(2):
        for e in range(2):
            a(f"v_permlane32_swap_b32 v{vC+4*h+e}, v{vC+4*h+e+2}")
    for h in range(2):
        for e in range(2):
            a(f"v_add_f32 v{vC+4*h+e}, v{vC+4*h+e}, v{vC+4*h+e+2}")
    a("s_nop 0")
    for h in range(2):
        a(f"v_permlane16_swap_b32 v{vC+4*h}, v{vC+4*h+1}")
    for h in range(2):
        a(f"v_add_f32 v{vC+4*h}, v{vC+4*h}, v{vC+4*h+1}")
    for h in range(2):
        a(f"ds_write_b32 v{vS}, v{vC+4*h} offset:{CSA + h*256}")
    a("s_mov_b64 exec, 1")
    a(f"ds_add_rtn_u32 v{vR+2}, v{vR+1}, v{vR}")
    a("s_mov_b64 exec, -1")
    a("s_waitcnt lgkmcnt(0)")
    a(f"v_readfirstlane_b32 s62, v{vR+2}")
    a("s_nop 0")
    a("s_cmp_lg_u32 s62, 3")
    a(f"s_cbranch_scc1 {nost}")
    a.c("last of the four waves: write the column-sum pieces")
    for w in range(4):
        for h in range(2):
            a(f"ds_read_b32 v{F+16+2*w+h}, v{V_L4} offset:{CSA + w*512 + h*256}")
    a(f"v_and_b32 v{vS}, 0xff, v{V_L16}")
    for e in range(4):
        a(f"s_lshl4_add_u32 s62, s{strides[e]}, s{dests[e]}")
        a(f"s_mov_b32 exec_lo, {(0xffff << (16*e)) & 0xffffffff if e < 2 else 0:#x}")
        a(f"s_mov_b32 exec_hi, {(0xffff << (16*(e-2))) if e >= 2 else 0:#x}")
        a(f"v_add_u32 v{vS}, s62, v{vS}")
    a("s_mov_b64 exec, -1")
    a("s_lshl_b32 s92, s79, 8")
    a("s_add_u32 s62, s92, s93")
    a("s_waitcnt lgkmcnt(0)")
    for h in range(2):
        c, o = F + 16 + h, F + 24 + 4 * h
        for w in range(1, 4):
            a(f"v_add_f32 v{c}, v{c}, v{c+2*w}")
        a(f"v_cvt_pk_bf16_f32 v{o}, v{c}, v{c}")
        a(f"v_lshlrev_b32 v{o}, 16, v{o}")
        a(f"v_sub_f32 v{o}, v{c}, v{o}")
        a(f"v_cvt_pk_bf16_f32 v{o}, v{c}, v{o}")
        a(f"v_mov_b32 v{o+1}, v{o}")
        a(f"v_mov_b32 v{o+2}, 0")
        a(f"v_mov_b32 v{o+3}, 0")
        a(f"buffer_store_dwordx4 {vr(o,4)}, v{vS}, s[4:7], s{(92, 62)[h]} offen{SC}")
    a(f"{nost}:")
    next_step(1)
    a(f"{hs[2]}:")
    if 2 - HS in (0, 1):
        stamp(a, 2 * (2 - HS))
    nsig = a.label("nosig")
    a(f"v_mov_b32 v{vR}, 1")
    a(f"v_mov_b32 v{vR+1}, {CNT + 4}")
    a("s_waitcnt vmcnt(0)")
    a("s_mov_b64 exec, 1")
    a(f"ds_add_rtn_u32 v{vR+2}, v{vR+1}, v{vR}")
    a("s_mov_b64 exec, -1")
    a("s_and_b32 s23, s2, 15")
    a("s_lshl_b32 s23, s23, 8")
    a(f"s_add_u32 s23, s23, {FL_W:#x}")
    a("s_mov_b32 s38, 1")
    a("s_waitcnt lgkmcnt(0)")
    a(f"v_readfirstlane_b32 s62, v{vR+2}")
    a("s_nop 0")
    a("s_cmp_lg_u32 s62, 3")
    a(f"s_cbranch_scc1 {nsig}")
    a("s_atomic_add s38, s[14:15], s23")
    a(f"{nsig}:")
    if env("WARM", 1):
        a.c("pull the rest of the code into L2 and touch every workspace page once")
        here = a.label("here")
        a("s_getpc_b64 s[98:99]")
        a(f"{here}:")
        a("s_lshl_b32 s62, s26, 13")
        a(f"v_add_u32 v{vC}, s62, v{V_L128}")
        a(f"v_min_u32 v{vC}, {code_end} - {here}, v{vC}")
        a(f"v_lshlrev_b32 v{vC+1}, 20, v0")
        a(f"global_load_dword v{V_PF}, v{vC}, s[98:99]")
        a(f"buffer_load_dword v{V_PF}, v{vC+1}, s[4:7], 0 offen sc1")
    next_step(2)
    a(f"{hs[3]}:")
    a.c("the re-tiled weights are complete once all 16 arrival counters are")
    a(f"s_cmp_lg_u32 s{S_WAVE}, 4")
    a(f"s_cbranch_scc1 {hs[5]}")
    ask = a.label("ask")
    a(f"{ask}:")
    a(f"v_and_b32 v{vS}, 15, v0")
    a(f"v_lshlrev_b32 v{vS}, 8, v{vS}")
    a(f"s_mov_b32 s23, {WS_FLAG + FL_W:#x}")
    a(f"buffer_load_dword v{vR}, v{vS}, s[4:7], s23 offen sc1")
    goto(4, 1)
    a(f"{hs[4]}:")
    a("s_waitcnt vmcnt(0)")
    a(f"v_cmp_gt_u32 vcc, 16, v{vR}")
    a(f"v_mov_b32 v{vS}, {CNT + 8}")
    a(f"s_cbranch_vccnz {ask}")
    a(f"ds_write_b32 v{vS}, v{vS}")
    a(f"s_branch {hs[6]}")
    a(f"{hs[5]}:")
    a(f"v_mov_b32 v{vS}, {CNT + 8}")
    a(f"ds_read_b32 v{vR}, v{vS}")
    a("s_waitcnt lgkmcnt(0)")
    a(f"v_cmp_eq_u32 vcc, 0, v{vR}")
    a("s_nop 0")
    a(f"s_cbranch_vccz {hs[6]}")
    goto(5, 1)
    a(f"{hs[6]}:")
    a(f"s_mov_b64 exec, {(1 << (RMX * 4)) - 1 if RMX < 8 else 0x7fffffff:#x}")
    if RMX == 8:
        a("s_mov_b32 exec_lo, -1")
    a(f"buffer_load_dword v{V_PF}, v{V_L128}, s[4:7], s51 offen{SC}")
    a("s_mov_b64 exec, -1")
    for i in range(NPG):
        a(f"buffer_load_dword v{V_PF}, v{V_L128}, s[4:7], s50 offen{SC}")
        a("s_add_u32 s50, s50, 8192")
    for i in range(env("PFD", 0)):
        a(f"buffer_load_dword v{V_PF}, v{V_L128}, s[4:7], s52 offen{SC}")
        a("s_add_u32 s52, s52, 8192")
    goto(7, env("ATT_G6", 2))
    a(f"{fb}:")
    a(f"v_add_u32 v{vK}, {KB}, v{vKp}")
    a(f"v_mov_b32 v{t0}, 0xff800000")
    a("s_mov_b32 s31, 64")
    lp2 = a.label("maxl")
    a(f"{lp2}:")
    a(f"ds_read_b128 {vr(KF[0],4)}, v{vK}")
    a(f"v_add_u32 v{vK}, 1024, v{vK}")
    a("s_waitcnt lgkmcnt(0)")
    a(f"{MFMA} {vr(S[0],16)}, {vr(KF[0],4)}, {vr(Q[1],4)}, 0")
    a("s_nop 15")
    for i in range(0, 16, 2):
        a(f"v_max3_f32 v{t0}, v{t0}, v{S[0]+i}, v{S[0]+i+1}")
    a("s_sub_u32 s31, s31, 1")
    a("s_cmp_lg_u32 s31, 0")
    a(f"s_cbranch_scc1 {lp2}")
    a(f"v_mov_b32 v{t1}, v{t0}")
    a("s_nop 1")
    a(f"v_permlane32_swap_b32 v{t0}, v{t1}")
    a("s_nop 1")
    a(f"v_max_f32 v{t0}, v{t0}, v{t1}")
    for i in range(16):
        a(f"v_sub_f32 v{NM[0]+i}, 0, v{t0}")
        a(f"v_mov_b32 v{OO+i}, 0")
    a(f"v_add_u32 v{vK}, {KB}, v{vKp}")
    a(f"v_mov_b32 v{vV}, v{vV0}")
    a(f"v_lshrrev_b32 v{vInc}, {U.bit_length()-1}, v{vInc}")
    a("s_mov_b32 s31, 64")
    lp3 = a.label("pass2")
    a(f"{lp3}:")
    a(f"ds_read_b128 {vr(KF[0],4)}, v{vK}")
    a(f"ds_read_b128 {vr(VF[0],4)}, v{vV}")
    a(f"ds_read_b128 {vr(VF[0]+4,4)}, v{vV} offset:512")
    a(f"v_add_u32 v{vK}, 1024, v{vK}")
    a(f"v_add_u32 v{vV}, v{vInc}, v{vV}")
    a("s_waitcnt lgkmcnt(0)")
    a(f"{MFMA} {vr(S[0],16)}, {vr(KF[0],4)}, {vr(Q[1],4)}, {vr(NM[0],16)}")
    a("s_nop 15")
    for i in range(16):
        a(f"v_exp_f32 v{S[0]+i}, v{S[0]+i}")
    a("s_nop 2")
    a(f"{SMF} {vr(OO,16)}, {vr(VF[0],4)}, {vr(S[0],8)}, v{vIx}")
    a(f"{SMF} {vr(OO,16)}, {vr(VF[0]+4,4)}, {vr(S[0]+8,8)}, v{vIx}")
    a("s_sub_u32 s31, s31, 1")
    a("s_cmp_lg_u32 s31, 0")
    a("s_nop 7")
    a(f"s_cbranch_scc1 {lp3}")
    a("s_nop 15")
    a(f"v_rcp_f32 v{t0}, v{OO+8}")
    a("s_nop 0")
    a(f"s_branch {fin}")
    a(f"{endl}:")
    return R.n


def gen_main(a):
    name = NAME + "_kernel"
    kernel_header(a, name)
    done = a.label("done")
    a("s_cmp_ge_u32 s2, 256")
    a(f"s_cbranch_scc1 {done}")
    if env("FIXT", 0):
        a("s_memrealtime s[56:57]")
    a(f"s_load_dwordx4 s[64:67], s[0:1], {KA_X}")
    a.c("pull the first 8 KB of code into L2 (one 128-byte line per 8 lanes of the workgroup)")
    a("s_getpc_b64 s[98:99]")
    a(f"v_lshlrev_b32 v{V_FREE}, 4, v0")
    a(f"global_load_dword v{V_PF}, v{V_FREE}, s[98:99]")
    a(f"s_and_b32 s{S_XCD}, s2, 7")
    FMX = env("FMX", 4)
    lg = {8: 2, 4: 3, 2: 4}[FMX]
    a(f"s_bfe_u32 s19, s2, {(lg << 16) | 3:#x}")
    a(f"s_lshr_b32 s24, s{S_XCD}, {lg - 2}")
    a(f"s_lshl{lg}_add_u32 s19, s24, s19")
    a("v_lshrrev_b32 v1, 6, v0")
    a("v_and_b32 v0, 63, v0")
    a(f"v_lshlrev_b32 v{V_L16}, 4, v0")
    a(f"v_lshl_add_u32 v{V_FREE}, s19, 3, v1")
    a(f"v_lshl_add_u32 v{V_FREE}, v{V_FREE}, 13, v{V_L16}")
    a("s_waitcnt lgkmcnt(0)")
    a("s_add_u32 s20, s64, 4096")
    a("s_addc_u32 s21, s65, 0")
    for r in range(8):
        a(f"global_load_dwordx4 {vr(V_FREE+4+4*r,4)}, v{V_FREE}, s[20:21] offset:{r*1024-4096}")
    a(f"s_load_dwordx2 s[68:69], s[0:1], {KA_WO}")
    a(f"s_load_dwordx4 s[72:75], s[0:1], {KA_WG}")
    a(f"s_load_dwordx2 s[76:77], s[0:1], {KA_WD}")
    a(f"s_load_dwordx2 s[70:71], s[0:1], {KA_OUT}")
    a(f"s_load_dwordx2 s[94:95], s[0:1], {KA_DBG}")
    a(f"s_load_dwordx2 s[12:13], s[0:1], {KA_WS}")
    a(f"v_readfirstlane_b32 s{S_WAVE}, v1")
    a(f"v_lshlrev_b32 v{V_L128}, 7, v0")
    a(f"s_lshr_b32 s{S_IDX}, s2, 3")
    srd(a, 20, 66, 67, 512 * 1536 * 2)
    if env("TOUCH", 1):
        a.c("cooperative first touch of this die's wqkv columns: two rows per wave")
        nl = FMX
        a(f"s_lshl3_add_u32 s27, s{S_IDX}, s{S_WAVE}")
        a("s_mul_i32 s27, s27, 6144")
        a(f"s_and_b32 s26, s{S_XCD}, {8 // FMX - 1}")
        a(f"s_mul_i32 s26, s26, {nl * 128}")
        a("s_add_u32 s27, s27, s26")
        a(f"v_lshrrev_b32 v{V_FREE+1}, {5 - lg}, v0")
        a(f"v_and_b32 v{V_FREE+2}, {nl - 1}, v0")
        a(f"v_lshlrev_b32 v{V_FREE+1}, 10, v{V_FREE+1}")
        a(f"v_lshl_add_u32 v{V_FREE+1}, v{V_FREE+2}, 7, v{V_FREE+1}")
        m = (1 << (6 * nl)) - 1
        a(f"s_mov_b32 exec_lo, {m & 0xffffffff:#x}")
        a(f"s_mov_b32 exec_hi, {m >> 32:#x}")
        a(f"buffer_load_dword v{V_PF}, v{V_FREE+1}, s[20:23], s27 offen")
        a("s_mov_b64 exec, -1")
    a(f"s_lshl_b32 s{S_TT64}, s19, 1")
    a(f"s_and_b32 s26, s{S_XCD}, {8 // FMX - 1}")
    a(f"s_mul_i32 s26, s26, {FMX}")
    a(f"s_lshr_b32 s{S_NT64}, s{S_IDX}, {lg}")
    a(f"s_add_u32 s{S_NT64}, s{S_NT64}, s26")
    tile_map(a, S_TT128, S_NT128, 16, 16, env("QMX", 4), 2)
    a(f"s_mov_b32 s{S_IT}, 0")
    a(f"s_mov_b32 s{S_BASE}, {WS_IT0:#x}")
    a(f"s_mov_b32 s{S_FL}, 0")
    a(f"s_mov_b32 s{S_SIG}, 0")
    a(f"v_and_b32 v{V_ST}, 15, v0")
    a(f"v_lshlrev_b32 v{V_ST}, 4, v{V_ST}")
    a(f"v_lshrrev_b32 v1, 4, v0")
    a(f"v_lshl_add_u32 v{V_ST}, v1, 2, v{V_ST}")
    a(f"v_lshlrev_b32 v{V_L4}, 2, v0")
    if STAMP:
        a(f"v_mov_b32 v{V_STAMP}, 0")
        a(f"v_mov_b32 v{V_STAMP+1}, 0")
    stamp(a, 31)
    att, fin = a.label("att"), a.label("fin")
    nv = [first_phase(a, att, done)]
    a(f"{att}:")
    tile_map(a, S_TT64, S_NT64, 32, 8, RMX, 1)
    if env("FIXT", 0) == 2:
        l_ = a.label("hold")
        a(f"{l_}:")
        a("s_memrealtime s[58:59]")
        a("s_waitcnt lgkmcnt(0)")
        a("s_sub_u32 s58, s58, s56")
        a("s_cmp_lt_u32 s58, 2000")
        a(f"s_cbranch_scc1 {l_}")
    nv.append(attn_phase(a, 5, done))
    if env("FIXT", 0) == 3:
        l_ = a.label("hold")
        a(f"{l_}:")
        a("s_memrealtime s[58:59]")
        a("s_waitcnt lgkmcnt(0)")
        a("s_sub_u32 s58, s58, s56")
        a("s_cmp_lt_u32 s58, 4000")
        a(f"s_cbranch_scc1 {l_}")

    S = Stream(a)
    tile_map(a, S_TTG, S_NTG, 16, 16, GMX, 2)
    nv.append(gemm_phase(a, Cfg(name="oproj", kind="res", LB=5 * RB, stream=S, PRE1=4, PRE3=1, RA=16, N1=2, BS=0, I0=6, LP=1,
                                STS=0, ABUF=B_O, WBASE=WS_WO, WNT=64 * 1024, OUT=B_X1, STOUT=B_ST1,
                                FIN=FL_A, lsig=True, NEED=32, FOUT=FL_O, final=False, sb=12)))
    nv.append(mlp_phase(a, Cfg(name="down", stream=S, OUT=B_XIN + IT_STRIDE, STOUT=B_STIN + IT_STRIDE, final=True, sb=22)))
    a(f"s_cmp_eq_u32 s{S_IT}, 1")
    a(f"s_cbranch_scc1 {fin}")
    a(f"s_mov_b32 s{S_IT}, 1")
    a(f"s_add_u32 s{S_BASE}, s{S_BASE}, {IT_STRIDE:#x}")
    a(f"s_add_u32 s{S_FL}, s{S_FL}, {FL_IT:#x}")
    nv.append(gemm_phase(a, Cfg(name="qkv", kind="qkv", LB=0, stream=None, RA=24, N1=2, BS=24, I0=8, LP=3, STS=30,
                                ABUF=B_XIN, WBASE=WS_WQKV, WNT=WNT_Q, STIN=B_STIN,
                                FIN=FL_D - FL_IT + (1 << 32), lsig=False, NEED=16, FOUT=FL_Q, sb=0)))
    a(f"s_branch {att}")
    a(f"{fin}:")
    if env("FIXT", 0) == 1:
        l_ = a.label("hold")
        a(f"{l_}:")
        a("s_memrealtime s[58:59]")
        a("s_waitcnt lgkmcnt(0)")
        a("s_sub_u32 s58, s58, s56")
        a("s_cmp_lt_u32 s58, 10000")
        a(f"s_cbranch_scc1 {l_}")
    if STAMP:
        a("s_waitcnt vmcnt(0)")
        a(f"s_mov_b32 s{S_IT}, 1")
        stamp(a, 31)
        stamp_flush(a)
        if env("DBGOUT", 0):
            nd = a.label("nodbg")
            a("s_lshl_b32 s54, s2, 3")
            a(f"s_add_u32 s54, s54, s{S_WAVE}")
            a(f"s_cmp_lg_u32 s54, {env('DBGOUT', 0)}")
            a(f"s_cbranch_scc1 {nd}")
            idx = [31, 8, 10, 13, 14, 18, 24, 33, 34, 40, 42, 45, 46, 50, 56, 63]
            a(f"v_readlane_b32 s55, v{V_STAMP}, 31")
            for i, k in enumerate(idx):
                a(f"v_readlane_b32 s54, v{V_STAMP}, {k}")
                a("s_nop 3")
                a("s_sub_u32 s54, s54, s55")
                a(f"v_writelane_b32 v{V_FREE}, s54, {i}")
            a("s_mov_b64 exec, 0xfffe")
            a(f"global_store_dword v{V_L4}, v{V_FREE}, s[94:95]")
            a(f"{nd}:")
    a(f"{done}:")
    a("s_endpgm")
    print("phase vgprs", nv, file=sys.stderr)
    nv.append(V_TF + 62)
    assert max(nv) <= 256
    return (name, max(nv), 256, 512, LDS_MAX)


HEADER = open("cdna_kernels/" + NAME + ".s.ref").read().split("; Override launch")[0]

def main(out):
    a = Asm()
    k, v, nwg, blk, lds = gen_main(a)
    txt = HEADER
    if env("ASLIST", 0):
        txt += f"; @launch kernel={k} grid=({nwg},1,1) block=({blk},1,1) lds={lds}\n"
    else:
        txt += f"; @launch grid=({nwg},1,1) block=({blk},1,1) lds={lds}\n"
    txt += '.amdgcn_target "amdgcn-amd-amdhsa--gfx950"\n.text\n'
    txt += a.text()
    txt += '.section .rodata,"a"\n'
    txt += kernel_desc(k, v, 102)
    print(f"{k}: vgpr={v} lds={lds}", file=sys.stderr)
    open(out, "w").write(txt)

if __name__ == "__main__":
    main(sys.argv[1] if len(sys.argv) > 1 else "v2.s")
```
